```python
import torch

def _softmax(x, axis=-1):
    return torch.softmax(x, dim=axis)
def _gelu(x):
    return torch.nn.functional.gelu(x, approximate="tanh")
def _silu(x):
    return torch.nn.functional.silu(x)
def _sigmoid(x):
    return torch.sigmoid(x)
def _layernorm(x, axis=-1, eps=1e-5):
    m = x.mean(dim=axis, keepdim=True)
    v = x.var(dim=axis, keepdim=True, unbiased=False)
    return (x - m) / torch.sqrt(v + eps)
def _scatter_add(tgt, idx, src, axis=0):
    return tgt.clone().index_add_(axis, idx, src)
def _segment_sum(src, seg, n):
    out = torch.zeros((n,) + src.shape[1:], dtype=src.dtype)
    return out.index_add_(0, seg, src)
def _pad(x, pw):
    flat = tuple(v for pair in reversed(pw) for v in pair)
    return torch.nn.functional.pad(x, flat)

kernel_name = 'recurrent_scan__softmax_full_mha__moe_arch_mod__prompt'

def setup_inputs():

    _w = (lambda a: (lambda t: t.to(torch.bfloat16) if t.is_floating_point() else t)(torch.as_tensor(a)))
    def _A_setup():
        B, S, D = 1, 2048, 1024
        return {
            "x": _w((lambda *s: torch.randn(*s, dtype=torch.bfloat16) * 0.05)(B, S, D)),
            "wqkv": _w((lambda *s: torch.randn(*s, dtype=torch.bfloat16) * 0.05)(D, 3 * D)),
            "wo": _w((lambda *s: torch.randn(*s, dtype=torch.bfloat16) * 0.05)(D, D)),
        }
    _A_in = _A_setup()

    def _B_setup():
        B, S, D, F, C = 1, 2048, 1024, 3584, 8
        return {
            "x": _w((lambda *s: torch.randn(*s, dtype=torch.bfloat16) * 0.05)(B, S, D)),
            "w_r": _w((lambda *s: torch.randn(*s, dtype=torch.bfloat16) * 0.05)(D)),
            "w_gate": _w((lambda *s: torch.randn(*s, dtype=torch.bfloat16) * 0.05)(D, F)),
            "w_up": _w((lambda *s: torch.randn(*s, dtype=torch.bfloat16) * 0.05)(D, F)),
            "w_down": _w((lambda *s: torch.randn(*s, dtype=torch.bfloat16) * 0.05)(F, D)),
        }
    _B_in = _B_setup()

    return {
        "A_x": _A_in["x"],
        "A_wqkv": _A_in["wqkv"],
        "A_wo": _A_in["wo"],
        "B_x": _B_in["x"],
        "B_w_r": _B_in["w_r"],
        "B_w_gate": _B_in["w_gate"],
        "B_w_up": _B_in["w_up"],
        "B_w_down": _B_in["w_down"],
    }

def reference(A_x, A_wqkv, A_wo, B_x, B_w_r, B_w_gate, B_w_up, B_w_down):
    def _A_ref(x, wqkv, wo):
        B, S, D = x.shape
        H = 32; Dh = D // H
        qkv = (lambda x, *d: x.permute(*d))((x @ wqkv).reshape(B, S, 3, H, Dh), 2, 0, 3, 1, 4)
        q, k, v = qkv[0], qkv[1], qkv[2]
        scale = Dh ** -0.5
        scores = torch.einsum("bhqd,bhkd->bhqk", q, k) * scale
        p = _softmax(scores, axis=-1)
        o = torch.einsum("bhqk,bhkd->bhqd", p, v)
        return (lambda x, *d: x.permute(*d))(o, 0, 2, 1, 3).reshape(B, S, D) @ wo

    def _B_ref(x, w_r, w_gate, w_up, w_down):
        B, S, D = x.shape
        C = 8
        r = x @ w_r
        idx = torch.argsort(-r, axis=-1)[:, :C]
        idx_e = (lambda x, n, axis: torch.repeat_interleave(x, n, dim=axis))(idx.reshape(B, C, 1), D, axis=2)
        x_sel = (lambda x, i, axis: torch.take_along_dim(x, i, dim=axis))(x, idx_e, axis=1)
        g = _silu(x_sel @ w_gate)
        u = x_sel @ w_up
        y = (g * u) @ w_down
        r_sel = _sigmoid((lambda x, i, axis: torch.take_along_dim(x, i, dim=axis))(r, idx, axis=1))
        y = y * r_sel.reshape(B, C, 1)
        b_off = (torch.arange(B) * S).reshape(B, 1)
        flat_idx = (idx + b_off).reshape(B * C)
        zero = (x * 0.0).reshape(B * S, D)
        upd = _scatter_add(zero, flat_idx, y.reshape(B * C, D), axis=0)
        return x + upd.reshape(B, S, D)

    x = A_x
    xn = _layernorm(x, axis=-1)
    s = _A_ref(xn, A_wqkv, A_wo)
    g = _silu(_B_ref(xn, B_w_r, B_w_gate, B_w_up, B_w_down))
    return x + s * g
```

```python
def v(i): return f"v{i}"
def s(i): return f"s{i}"
def vr(i, n): return f"v{i}" if n == 1 else f"v[{i}:{i+n-1}]"
def sr(i, n): return f"s{i}" if n == 1 else f"s[{i}:{i+n-1}]"
def ar(i, n): return f"a{i}" if n == 1 else f"a[{i}:{i+n-1}]"

class Asm:
    def __init__(self):
        self.lines = []
        self.uid = 0
    def __call__(self, *ls):
        for l in ls:
            for x in l.split("\n"):
                x = x.strip()
                if x:
                    self.lines.append(("" if x.endswith(":") else "    ") + x)
    def label(self, name): self.lines.append(name + ":")
    def new_label(self, base):
        self.uid += 1
        return f"{base}_{self.uid}"
    def comment(self, c): self.lines.append("    ; " + c)
    def text(self): return "\n".join(self.lines) + "\n"

    def srd(self, d, base, off, nbytes):
        if off:
            self(f"s_add_u32 s{d}, s{base}, {off:#x}")
            self(f"s_addc_u32 s{d+1}, s{base+1}, 0")
        else:
            self(f"s_mov_b32 s{d}, s{base}")
            self(f"s_mov_b32 s{d+1}, s{base+1}")
        self(f"s_mov_b32 s{d+2}, {nbytes:#x}")
        self(f"s_mov_b32 s{d+3}, 0x00020000")

    def wave_sum(self, r, tmp=None):
        for ctl in ("row_shr:1", "row_shr:2", "row_shr:4", "row_shr:8"):
            self("s_nop 1")
            self(f"v_add_f32_dpp v{r}, v{r}, v{r} {ctl} row_mask:0xf bank_mask:0xf bound_ctrl:0")
        self("s_nop 1")
        self(f"v_add_f32_dpp v{r}, v{r}, v{r} row_bcast:15 row_mask:0xa bank_mask:0xf")
        self("s_nop 1")
        self(f"v_add_f32_dpp v{r}, v{r}, v{r} row_bcast:31 row_mask:0xc bank_mask:0xf")

def kernel_header(name):
    return f""".text
.globl {name}
.p2align 8
.type {name},@function
{name}:
"""

def kernel_desc(name, vgpr, sgpr=96, accum=None, wg_y=False):
    if accum is None:
        accum = (vgpr + 3) // 4 * 4
    return f""".section .rodata,"a"
.p2align 6
.amdhsa_kernel {name}
  .amdhsa_next_free_vgpr {vgpr}
  .amdhsa_next_free_sgpr {sgpr}
  .amdhsa_accum_offset {accum}
  .amdhsa_group_segment_fixed_size 0
  .amdhsa_kernarg_size 88
  .amdhsa_user_sgpr_count 2
  .amdhsa_user_sgpr_kernarg_segment_ptr 1
  .amdhsa_system_sgpr_workgroup_id_x 1
  .amdhsa_float_denorm_mode_32 3
.end_amdhsa_kernel
"""

def interleave(primary, filler):
    out = []
    n, m = len(filler), len(primary)
    j = 0
    for i, x in enumerate(primary):
        out.append(x)
        k = (i + 1) * n // m
        out += filler[j:k]
        j = k
    return out
```

```python
from asmlib import *
from layout import *

def M32(d, A, B, c): return f"v_mfma_f32_32x32x16_bf16 {vr(d,16)}, {vr(A,4)}, {vr(B,4)}, " + (vr(c,16) if c is not None else "0")
def M16(d, A, B, c): return f"v_mfma_f32_16x16x32_bf16 {vr(d,4)}, {vr(A,4)}, {vr(B,4)}, " + (vr(c,4) if c is not None else "0")

def gen_attn(name):
    a = Asm()
    VL, CUR, PRV = 1, 2, 3
    Q, K, V, P, ONES, L = 4, 12, 20, 28, 36, 40
    O, S0, S1 = 44, 60, 76
    T = 92
    a("s_cmp_ge_u32 s2, 256")
    a(f"s_cbranch_scc1 {name}_done")
    a(f"s_load_dwordx2 s[8:9], s[0:1], {A_WS}")
    a("v_lshrrev_b32 v4, 6, v0")
    a("v_and_b32 v0, 63, v0")
    a("v_readfirstlane_b32 s3, v4")
    a(f"v_lshlrev_b32 v{VL}, 4, v0")
    a("s_and_b32 s10, s2, 7")
    a("s_lshl_b32 s10, s10, 2")
    a("s_lshr_b32 s11, s2, 6")
    a("s_add_u32 s10, s10, s11")
    a("s_bfe_u32 s11, s2, 0x30003")
    a("s_lshl_b32 s11, s11, 3")
    a("s_add_u32 s11, s11, s3")
    a("s_lshl_b32 s24, s3, 11")
    a("s_lshl_b32 s25, s10, 18")
    a("s_add_u32 s26, s25, s24")
    a("s_mov_b32 s27, s24")
    a("s_lshl_b32 s28, s10, 17")
    a("s_lshl_b32 s29, s11, 11")
    a("s_add_u32 s28, s28, s29")
    a("s_waitcnt lgkmcnt(0)")
    a.srd(12, 8, WS_KV, KV_BYTES)
    a.srd(16, 8, WS_Q, Q_BYTES)
    a.srd(20, 8, WS_O, O_BYTES)
    def dma():
        a("s_mov_b32 m0, s27")
        a("s_add_u32 s27, s27, 16384")
        a(f"buffer_load_dwordx4 v{VL}, s[12:15], s26 offen lds")
        a(f"buffer_load_dwordx4 v{VL}, s[12:15], s26 offen offset:1024 lds")
        a("s_and_b32 s27, s27, 0xffff")
        a("s_add_u32 s26, s26, 16384")
    a(f"buffer_load_dwordx4 {vr(Q,4)}, v{VL}, s[16:19], s28 offen")
    a(f"buffer_load_dwordx4 {vr(Q+4,4)}, v{VL}, s[16:19], s28 offen offset:1024")
    dma(); dma()
    a(f"v_lshrrev_b32 v{T}, 4, v0")
    a(f"v_lshrrev_b32 v{T+1}, 2, v0")
    a(f"v_xor_b32 v{T}, v{T}, v{T+1}")
    a(f"v_and_b32 v{T}, 1, v{T}")
    a(f"v_cmp_eq_u32 vcc, 0, v{T}")
    a(f"v_mov_b32 v{T+1}, 0x3f803f80")
    a(f"v_mov_b32 v{CUR}, v{VL}")
    for r in range(4): a(f"v_cndmask_b32 v{ONES+r}, 0, v{T+1}, vcc")
    for r in range(16): a(f"v_mov_b32 v{O+r}, 0")
    for r in range(4):
        a(f"v_mov_b32 v{L+r}, 0")
        a(f"v_mov_b32 v{V+4+r}, 0")
        a(f"v_mov_b32 v{P+4+r}, 0")
    a("s_mov_b32 s30, 0")
    a("s_waitcnt vmcnt(2)")
    a("s_barrier")
    a(f"ds_read_b128 {vr(K,4)}, v{CUR}")
    a(f"ds_read_b128 {vr(K+4,4)}, v{CUR} offset:1024")
    a(f"ds_read_b128 {vr(V,4)}, v{CUR} offset:2048")
    dma()
    a("s_waitcnt lgkmcnt(0)")
    a(M32(S0, K, Q, None))
    a(M32(S0, K+4, Q+4, S0))
    a(f"ds_read_b128 {vr(K,4)}, v{CUR} offset:4096")
    a(f"ds_read_b128 {vr(K+4,4)}, v{CUR} offset:5120")
    a("s_waitcnt lgkmcnt(0)")
    a("s_nop 10")
    a(f"s_branch {name}_p2")

    def phase(p):
        Sc, Sn = (S0, S1) if (p & 1) == 0 else (S1, S0)
        e = lambda i: f"v_exp_f32 v{Sc+i}, v{Sc+i}"
        c = lambda i: f"v_cvt_pk_bf16_f32 v{P+i}, v{Sc+2*i}, v{Sc+2*i+1}"
        def rd(dst, tile, part):
            base, t = (CUR, tile) if tile >= 0 else (PRV, tile + 4)
            return f"ds_read_b128 {vr(dst,4)}, v{base} offset:{t*4096+part*1024}"
        a("s_waitcnt lgkmcnt(2)")
        a(M32(Sn, K, Q, None), rd(K, p, 0), e(0), e(1), e(2))
        a(M32(O, V+4, P+4, O), rd(V+4, p-2, 3), e(3), c(0), e(4), c(1))
        a(M16(L, ONES, P+4, L), e(5))
        a("s_waitcnt lgkmcnt(2)")
        a(M32(Sn, K+4, Q+4, Sn), rd(K+4, p, 1), e(6), c(2), e(7), e(8), c(3), e(9), e(10))
        a(M32(O, V, P, O), rd(V, p-1, 2), e(11), c(4), e(12), c(5))
        a(M16(L, ONES, P, L), e(13), e(14), e(15), c(6), c(7))

    a(".p2align 6")
    a.label(f"{name}_loop")
    a("s_cmp_lt_u32 s30, 15")
    a(f"s_cbranch_scc1 {name}_w2")
    a("s_waitcnt vmcnt(0)")
    a.label(f"{name}_w2")
    a("s_waitcnt vmcnt(2)")
    a("s_barrier")
    a(f"v_mov_b32 v{PRV}, v{CUR}")
    a(f"v_add_u32 v{CUR}, 16384, v{CUR}")
    a(f"v_and_b32 v{CUR}, 0xffff, v{CUR}")
    a("s_cmp_ge_u32 s30, 14")
    a(f"s_cbranch_scc1 {name}_nodma")
    dma()
    a.label(f"{name}_nodma")
    phase(0)
    phase(1)
    a("s_cmp_eq_u32 s30, 16")
    a(f"s_cbranch_scc1 {name}_exit")
    a.label(f"{name}_p2")
    phase(2)
    phase(3)
    a("s_add_u32 s30, s30, 1")
    a(f"s_branch {name}_loop")
    a.label(f"{name}_exit")
    a("s_waitcnt lgkmcnt(0)")
    a(M32(O, V+4, P+4, O))
    a(M16(L, ONES, P+4, L))
    a("s_lshl_b32 s28, s11, 16")
    a("s_lshl_b32 s29, s10, 11")
    a("s_add_u32 s28, s28, s29")
    a("s_nop 7")
    a("s_nop 3")
    a(f"v_mov_b32 v{T+1}, 0")
    for r in range(16):
        a(f"v_fmac_f32 v{T+1}, 0, v{O+r}")
    a("s_mov_b32 s32, 0x2b800000")
    a("s_mov_b32 s33, 0x5d800000")
    a(f"v_cmp_nle_f32 s[34:35], s32, v{L}")
    a(f"v_cmp_nge_f32 s[36:37], s33, v{L}")
    a(f"v_cmp_u_f32 vcc, v{T+1}, v{T+1}")
    a("s_or_b64 s[34:35], s[34:35], s[36:37]")
    a("s_or_b64 s[34:35], s[34:35], vcc")
    a("s_cmp_lg_u64 s[34:35], 0")
    a(f"s_cbranch_scc1 {name}_slow")
    a.label(f"{name}_fin")
    a(f"v_rcp_f32 v{T}, v{L}")
    a("s_nop 0")
    for jj in range(2):
        for e_ in range(4):
            r0 = O + 8*jj + 2*e_
            a(f"v_mul_f32 v{r0}, v{r0}, v{T}")
            a(f"v_mul_f32 v{r0+1}, v{r0+1}, v{T}")
            a(f"v_cvt_pk_bf16_f32 v{P+4*jj+e_}, v{r0}, v{r0+1}")
        a(f"buffer_store_dwordx4 {vr(P+4*jj,4)}, v{VL}, s[20:23], s28 offen offset:{jj*1024}")
    a("s_endpgm")

    a.label(f"{name}_slow")
    a("s_waitcnt vmcnt(0)")
    a(f"v_mov_b32 v{T}, 0xff800000")
    a("s_mov_b32 s30, 0")
    a.label(f"{name}_slow1")
    a("s_lshl_b32 s31, s30, 12")
    a("s_add_u32 s31, s31, s25")
    a(f"buffer_load_dwordx4 {vr(K,4)}, v{VL}, s[12:15], s31 offen")
    a(f"buffer_load_dwordx4 {vr(K+4,4)}, v{VL}, s[12:15], s31 offen offset:1024")
    a("s_waitcnt vmcnt(0)")
    a(M32(S0, K, Q, None))
    a(M32(S0, K+4, Q+4, S0))
    a("s_nop 15")
    for r in range(0, 16, 2):
        a(f"v_max3_f32 v{T}, v{T}, v{S0+r}, v{S0+r+1}")
    a("s_add_u32 s30, s30, 1")
    a("s_cmp_lt_u32 s30, 64")
    a(f"s_cbranch_scc1 {name}_slow1")
    a(f"v_mov_b32 v{T+1}, v{T}")
    a("s_nop 1")
    a(f"v_permlane32_swap_b32 v{T}, v{T+1}")
    a("s_nop 1")
    a(f"v_max_f32 v{T}, v{T}, v{T+1}")
    for r in range(16):
        a(f"v_sub_f32 v{S1+r}, 0, v{T}")
        a(f"v_mov_b32 v{O+r}, 0")
    for r in range(4): a(f"v_mov_b32 v{L+r}, 0")
    a("s_mov_b32 s30, 0")
    a.label(f"{name}_slow2")
    a("s_lshl_b32 s31, s30, 12")
    a("s_add_u32 s31, s31, s25")
    for q in range(4):
        a(f"buffer_load_dwordx4 {vr(K+4*q,4)}, v{VL}, s[12:15], s31 offen offset:{q*1024}")
    a("s_waitcnt vmcnt(0)")
    a(M32(S0, K, Q, S1))
    a(M32(S0, K+4, Q+4, S0))
    a("s_nop 15")
    for r in range(16): a(f"v_exp_f32 v{S0+r}, v{S0+r}")
    a("s_nop 0")
    for r in range(8): a(f"v_cvt_pk_bf16_f32 v{P+r}, v{S0+2*r}, v{S0+2*r+1}")
    a("s_nop 1")
    a(M32(O, V, P, O))
    a(M32(O, V+4, P+4, O))
    a(M16(L, ONES, P, L))
    a(M16(L, ONES, P+4, L))
    a("s_add_u32 s30, s30, 1")
    a("s_cmp_lt_u32 s30, 64")
    a(f"s_cbranch_scc1 {name}_slow2")
    a("s_nop 15")
    a(f"s_branch {name}_fin")
    a.label(f"{name}_done")
    a("s_endpgm")
    return kernel_header(name) + a.text() + kernel_desc(name, 100, 48)
```

```python
from asmlib import *
from layout import *

def ln_rows(a, nrows, X, XB, WR, tmp, srow, srd_x, srd_xn, srd_r, voff, stmp):
    R = range(nrows)
    F_ = lambda i, e: XB + 16*i + e
    T = lambda i, k: tmp + 4*i + k
    for i in R:
        for p in range(8):
            a(f"v_lshlrev_b32 v{F_(i,2*p)}, 16, v{X+8*i+p}")
            a(f"v_and_b32 v{F_(i,2*p+1)}, 0xffff0000, v{X+8*i+p}")
    for i in R:
        a(f"v_add_f32 v{T(i,0)}, v{F_(i,0)}, v{F_(i,1)}")
        a(f"v_add_f32 v{T(i,1)}, v{F_(i,2)}, v{F_(i,3)}")
    for e in range(4, 16, 2):
        for i in R:
            a(f"v_add_f32 v{T(i,0)}, v{T(i,0)}, v{F_(i,e)}")
            a(f"v_add_f32 v{T(i,1)}, v{T(i,1)}, v{F_(i,e+1)}")
    for i in R:
        a(f"v_add_f32 v{T(i,0)}, v{T(i,0)}, v{T(i,1)}")
    def wsum(k):
        for ctl in ("row_shr:1 row_mask:0xf bank_mask:0xf bound_ctrl:0", "row_shr:2 row_mask:0xf bank_mask:0xf bound_ctrl:0",
                    "row_shr:4 row_mask:0xf bank_mask:0xf bound_ctrl:0", "row_shr:8 row_mask:0xf bank_mask:0xf bound_ctrl:0",
                    "row_bcast:15 row_mask:0xa bank_mask:0xf", "row_bcast:31 row_mask:0xc bank_mask:0xf"):
            a("s_nop 1")
            for i in R:
                a(f"v_add_f32_dpp v{T(i,k)}, v{T(i,k)}, v{T(i,k)} {ctl}")
        a("s_nop 1")
        for i in R:
            a(f"v_readlane_b32 s{stmp+i}, v{T(i,k)}, 63")
        a("s_nop 1")
    wsum(0)
    for i in R:
        a(f"v_mov_b32 v{T(i,0)}, s{stmp+i}")
        a(f"v_mul_f32 v{T(i,0)}, 0x3a800000, v{T(i,0)}")
    for i in R:
        a(f"v_sub_f32 v{T(i,2)}, v{F_(i,0)}, v{T(i,0)}")
        a(f"v_mul_f32 v{T(i,1)}, v{T(i,2)}, v{T(i,2)}")
    for e in range(1, 16):
        for i in R:
            a(f"v_sub_f32 v{T(i,2)}, v{F_(i,e)}, v{T(i,0)}")
            a(f"v_fmac_f32 v{T(i,1)}, v{T(i,2)}, v{T(i,2)}")
    wsum(1)
    for i in R:
        a(f"v_mov_b32 v{T(i,1)}, s{stmp+i}")
        a(f"v_mul_f32 v{T(i,1)}, 0x3a800000, v{T(i,1)}")
        a(f"v_cvt_pk_bf16_f32 v{T(i,2)}, v{T(i,0)}, v{T(i,1)}")
    for i in R:
        a(f"v_lshlrev_b32 v{T(i,0)}, 16, v{T(i,2)}")
        a(f"v_and_b32 v{T(i,1)}, 0xffff0000, v{T(i,2)}")
        a(f"v_add_f32 v{T(i,1)}, 0x3727c5ac, v{T(i,1)}")
        a(f"v_cvt_pk_bf16_f32 v{T(i,1)}, v{T(i,1)}, v{T(i,1)}")
        a(f"v_and_b32 v{T(i,1)}, 0xffff0000, v{T(i,1)}")
        a(f"v_sqrt_f32 v{T(i,1)}, v{T(i,1)}")
        a("s_nop 0")
        a(f"v_cvt_pk_bf16_f32 v{T(i,1)}, v{T(i,1)}, v{T(i,1)}")
        a(f"v_and_b32 v{T(i,1)}, 0xffff0000, v{T(i,1)}")
        a(f"v_rcp_f32 v{T(i,1)}, v{T(i,1)}")
        a("s_nop 0")
    for i in R:
        for p in range(8):
            a(f"v_sub_f32 v{F_(i,2*p)}, v{F_(i,2*p)}, v{T(i,0)}")
            a(f"v_sub_f32 v{F_(i,2*p+1)}, v{F_(i,2*p+1)}, v{T(i,0)}")
            a(f"v_cvt_pk_bf16_f32 v{T(i,2)}, v{F_(i,2*p)}, v{F_(i,2*p+1)}")
            a(f"v_lshlrev_b32 v{F_(i,2*p)}, 16, v{T(i,2)}")
            a(f"v_and_b32 v{F_(i,2*p+1)}, 0xffff0000, v{T(i,2)}")
            a(f"v_mul_f32 v{F_(i,2*p)}, v{F_(i,2*p)}, v{T(i,1)}")
            a(f"v_mul_f32 v{F_(i,2*p+1)}, v{F_(i,2*p+1)}, v{T(i,1)}")
            a(f"v_cvt_pk_bf16_f32 v{X+8*i+p}, v{F_(i,2*p)}, v{F_(i,2*p+1)}")
    for i in R:
        a(f"buffer_store_dwordx4 {vr(X+8*i,4)}, v{voff+i}, {sr(srd_xn,4)}, 0 offen")
        a(f"buffer_store_dwordx4 {vr(X+8*i+4,4)}, v{voff+i}, {sr(srd_xn,4)}, 0 offen offset:1024")
    for i in R:
        a(f"v_mov_b32 v{T(i,3)}, 0")
    for p in range(8):
        for i in R:
            a(f"v_dot2_f32_bf16 v{T(i,3)}, v{X+8*i+p}, v{WR+p}, v{T(i,3)}")
    a("s_nop 2")
    wsum(3)
    for i in R:
        a(f"v_mov_b32 v{T(i,0)}, s{stmp+i}")
        a(f"v_cvt_pk_bf16_f32 v{T(i,0)}, v{T(i,0)}, v{T(i,0)}")
        a(f"v_and_b32 v{T(i,0)}, 0xffff0000, v{T(i,0)}")
        a(f"s_add_u32 s{stmp+i}, s{srow}, {i}")
        a(f"s_lshl_b32 s{stmp+i}, s{stmp+i}, 2")
        a(f"v_mov_b32 v{T(i,1)}, s{stmp+i}")
        a(f"buffer_store_dword v{T(i,0)}, v{T(i,1)}, {sr(srd_r,4)}, 0 offen")

def gen_ln(name):
    a = Asm()
    a("s_cmp_ge_u32 s2, 256")
    a(f"s_cbranch_scc1 {name}_done")
    a(f"s_load_dwordx2 s[4:5], s[0:1], {A_X}")
    a(f"s_load_dwordx2 s[6:7], s[0:1], {A_WR}")
    a(f"s_load_dwordx2 s[8:9], s[0:1], {A_WS}")
    a("v_lshrrev_b32 v1, 6, v0")
    a("v_and_b32 v2, 63, v0")
    a("v_readfirstlane_b32 s3, v1")
    a("v_lshlrev_b32 v2, 4, v2")
    a("s_lshl_b32 s10, s2, 3")
    a("s_lshl_b32 s3, s3, 1")
    a("s_add_u32 s10, s10, s3")
    a("s_lshl_b32 s11, s10, 11")
    a("v_add_u32 v3, s11, v2")
    a("v_add_u32 v4, 2048, v3")
    a("s_waitcnt lgkmcnt(0)")
    a.srd(12, 4, 0, S*D*2)
    a.srd(16, 6, 0, D*2)
    a.srd(20, 8, WS_XN, XN_BYTES)
    a.srd(24, 8, WS_R, R_BYTES)
    a.srd(32, 8, WS_Y, Y_BYTES)
    a("v_and_b32 v5, 31, v0")
    a("v_lshlrev_b32 v5, 2, v5")
    a("s_lshl_b32 s11, s2, 7")
    a("v_mov_b32 v6, 0")
    a("buffer_store_dword v6, v5, s[32:35], s11 offen")
    X, WR, XB, T = 8, 24, 32, 64
    for i in range(2):
        a(f"buffer_load_dwordx4 {vr(X+8*i,4)}, v{3+i}, s[12:15], 0 offen")
        a(f"buffer_load_dwordx4 {vr(X+8*i+4,4)}, v{3+i}, s[12:15], 0 offen offset:1024")
    a(f"buffer_load_dwordx4 {vr(WR,4)}, v2, s[16:19], 0 offen")
    a(f"buffer_load_dwordx4 {vr(WR+4,4)}, v2, s[16:19], 0 offen offset:1024")
    a("s_waitcnt vmcnt(0)")
    ln_rows(a, 2, X, XB, WR, T, 10, 12, 20, 24, 3, 28)
    a.label(f"{name}_done")
    a("s_endpgm")
    return kernel_header(name) + a.text() + kernel_desc(name, 72, 40)
```

```python
from asmlib import *
from layout import *

def pi_row(a, dst, lane, t1):
    a(f"v_bfe_u32 v{dst}, v{lane}, 3, 2")
    a(f"v_lshlrev_b32 v{dst}, 3, v{dst}")
    a(f"v_lshrrev_b32 v{t1}, 5, v{lane}")
    a(f"v_lshl_add_u32 v{dst}, v{t1}, 2, v{dst}")
    a(f"v_bfe_u32 v{t1}, v{lane}, 1, 2")
    a(f"v_add_u32 v{dst}, v{dst}, v{t1}")

def silu_bf16(a, r, t):
    a(f"v_mul_f32 v{t}, 0xbfb8aa3b, v{r}")
    a(f"v_exp_f32 v{t}, v{t}")
    a("s_nop 0")
    a(f"v_add_f32 v{t}, 1.0, v{t}")
    a(f"v_rcp_f32 v{t}, v{t}")
    a("s_nop 0")
    a(f"v_mul_f32 v{r}, v{r}, v{t}")

def round_bf16(a, r):
    a(f"v_cvt_pk_bf16_f32 v{r}, v{r}, v{r}")
    a(f"v_and_b32 v{r}, 0xffff0000, v{r}")

def gen_moe1(name):
    a = Asm()
    a("s_cmp_ge_u32 s2, 224")
    a(f"s_cbranch_scc1 {name}_done")
    a(f"s_load_dwordx4 s[4:7], s[0:1], {A_WG}")
    a(f"s_load_dwordx2 s[8:9], s[0:1], {A_WS}")
    a("v_lshrrev_b32 v1, 6, v0")
    a("v_and_b32 v2, 63, v0")
    a("v_readfirstlane_b32 s3, v1")
    a("s_and_b32 s10, s2, 7")
    a("s_lshr_b32 s11, s2, 3")
    a("s_mul_i32 s10, s10, 28")
    a("s_add_u32 s10, s10, s11")
    pi_row(a, 3, 2, 4)
    a("v_mul_u32_u24 v3, 7168, v3")
    a("v_and_b32 v4, 1, v2")
    a("v_lshl_add_u32 v3, v4, 4, v3")
    a("s_lshl_b32 s11, s10, 5")
    a("s_mul_i32 s28, s3, 256*7168")
    a("s_add_u32 s11, s11, s28")
    a("v_add_u32 v3, s11, v3")
    a("s_waitcnt lgkmcnt(0)")
    a.srd(12, 4, 0, D*F*2)
    a.srd(16, 6, 0, D*F*2)
    a.srd(20, 8, WS_XN, XN_BYTES)
    a.srd(24, 8, WS_IDX, IDX_BYTES)
    a.srd(32, 8, WS_H, H_BYTES)
    a("v_and_b32 v5, 7, v2")
    a("v_lshlrev_b32 v5, 2, v5")
    a("buffer_load_dword v5, v5, s[24:27], 0 offen")
    a("s_lshl_b32 s29, s3, 14")
    for ks in range(8):
        for m in range(2):
            a(f"s_add_u32 m0, s29, {(ks*2+m)*1024}")
            a(f"s_mov_b32 s30, {ks*32*7168}")
            a(f"buffer_load_dwordx4 v3, s[{12+4*m}:{15+4*m}], s30 offen lds")
    a("s_waitcnt vmcnt(16)")
    a("v_lshlrev_b32 v5, 11, v5")
    a("v_lshrrev_b32 v6, 4, v2")
    a("v_lshl_add_u32 v5, v6, 4, v5")
    a("s_lshl_b32 s30, s3, 9")
    XS = 16
    for ks in range(8):
        a(f"buffer_load_dwordx4 {vr(XS+4*ks,4)}, v5, s[20:23], s30 offen offset:{ks*64}")
    a("v_lshlrev_b32 v7, 3, v2")
    a("v_add_u32 v7, s29, v7")
    for r in range(8, 16):
        a(f"v_mov_b32 v{r}, 0")
    a("s_waitcnt vmcnt(0)")
    WB = 48
    for ks in range(8):
        for m in range(2):
            a(f"ds_read_b64_tr_b16 {vr(WB+8*(ks&1)+4*m,2)}, v7 offset:{(ks*2+m)*1024}")
            a(f"ds_read_b64_tr_b16 {vr(WB+8*(ks&1)+4*m+2,2)}, v7 offset:{(ks*2+m)*1024+512}")
        a("s_waitcnt lgkmcnt(0)")
        for m in range(2):
            a(f"v_mfma_f32_16x16x32_bf16 {vr(8+4*m,4)}, {vr(XS+4*ks,4)}, {vr(WB+8*(ks&1)+4*m,4)}, {vr(8+4*m,4)}")
    a("s_nop 7")
    a("v_lshlrev_b32 v7, 4, v2")
    a("v_add_u32 v6, s29, v7")
    a("ds_write_b128 v6, v[8:11]")
    a("ds_write_b128 v6, v[12:15] offset:1024")
    a("s_waitcnt lgkmcnt(0)")
    a("s_barrier")
    a("s_cmp_lg_u32 s3, 0")
    a(f"s_cbranch_scc1 {name}_done")
    for w in range(1, 4):
        a(f"ds_read_b128 {vr(16+8*(w-1),4)}, v7 offset:{w*16384}")
        a(f"ds_read_b128 {vr(20+8*(w-1),4)}, v7 offset:{w*16384+1024}")
    a("s_waitcnt lgkmcnt(0)")
    for w in range(3):
        for r in range(8):
            a(f"v_add_f32 v{8+r}, v{8+r}, v{16+8*w+r}")
    for r in range(4):
        round_bf16(a, 8+r)
        silu_bf16(a, 8+r, 16)
        round_bf16(a, 8+r)
        round_bf16(a, 12+r)
        a(f"v_mul_f32 v{8+r}, v{8+r}, v{12+r}")
        a(f"v_cvt_pk_bf16_f32 v{8+r}, v{8+r}, v{8+r}")
    a("v_lshrrev_b32 v4, 4, v2")
    a("v_mul_u32_u24 v4, 4*7168, v4")
    a("v_and_b32 v5, 15, v2")
    a("v_lshl_add_u32 v4, v5, 1, v4")
    a("s_lshl_b32 s11, s10, 5")
    a("v_add_u32 v4, s11, v4")
    a("v_cmp_gt_u32 vcc, 32, v2")
    a("s_and_saveexec_b64 s[30:31], vcc")
    for r in range(4):
        a(f"s_mov_b32 s28, {r*7168}")
        a(f"buffer_store_short v{8+r}, v4, s[32:35], s28 offen")
    a("s_mov_b64 exec, s[30:31]")
    a.label(f"{name}_done")
    a("s_endpgm")
    return kernel_header(name) + a.text() + kernel_desc(name, 64, 48)

def gen_moe2(name):
    a = Asm()
    a("s_cmp_ge_u32 s2, 256")
    a(f"s_cbranch_scc1 {name}_done")
    a(f"s_load_dwordx2 s[4:5], s[0:1], {A_WD}")
    a(f"s_load_dwordx2 s[8:9], s[0:1], {A_WS}")
    a("v_lshrrev_b32 v1, 6, v0")
    a("v_and_b32 v2, 63, v0")
    a("v_readfirstlane_b32 s3, v1")
    a("s_lshr_b32 s10, s2, 4")
    a("s_and_b32 s11, s2, 15")
    pi_row(a, 3, 2, 4)
    a("v_lshlrev_b32 v3, 11, v3")
    a("v_and_b32 v4, 1, v2")
    a("v_lshl_add_u32 v3, v4, 4, v3")
    a("s_mul_i32 s28, s10, 224*2048")
    a("s_lshl_b32 s29, s11, 7")
    a("s_add_u32 s28, s28, s29")
    a("s_lshl_b32 s29, s3, 5")
    a("s_add_u32 s28, s28, s29")
    a("v_add_u32 v3, s28, v3")
    a("s_waitcnt lgkmcnt(0)")
    a.srd(12, 4, 0, D*F*2)
    a.srd(16, 8, WS_H, H_BYTES)
    a.srd(20, 8, WS_Y, Y_BYTES)
    a("s_mul_i32 s29, s3, 7168")
    for ks in range(7):
        a(f"s_add_u32 m0, s29, {ks*1024}")
        a(f"s_mov_b32 s30, {ks*32*2048}")
        a(f"buffer_load_dwordx4 v3, s[12:15], s30 offen lds")
    a("v_and_b32 v5, 7, v2")
    a("v_mul_u32_u24 v5, 7168, v5")
    a("v_lshrrev_b32 v6, 4, v2")
    a("v_lshl_add_u32 v5, v6, 4, v5")
    a("s_mul_i32 s30, s10, 448")
    XS = 16
    for ks in range(7):
        a(f"buffer_load_dwordx4 {vr(XS+4*ks,4)}, v5, s[16:19], s30 offen offset:{ks*64}")
    a("v_lshlrev_b32 v7, 3, v2")
    a("v_add_u32 v7, s29, v7")
    for r in range(8, 12):
        a(f"v_mov_b32 v{r}, 0")
    a("s_waitcnt vmcnt(0)")
    WB = 48
    for ks in range(7):
        a(f"ds_read_b64_tr_b16 {vr(WB+4*(ks&1),2)}, v7 offset:{ks*1024}")
        a(f"ds_read_b64_tr_b16 {vr(WB+4*(ks&1)+2,2)}, v7 offset:{ks*1024+512}")
        a("s_waitcnt lgkmcnt(0)")
        a(f"v_mfma_f32_16x16x32_bf16 v[8:11], {vr(XS+4*ks,4)}, {vr(WB+4*(ks&1),4)}, v[8:11]")
    a("v_lshrrev_b32 v4, 4, v2")
    a("v_lshlrev_b32 v4, 14, v4")
    a("v_and_b32 v5, 15, v2")
    a("v_lshl_add_u32 v4, v5, 2, v4")
    a("s_lshl_b32 s28, s11, 8")
    a("s_lshl_b32 s29, s3, 6")
    a("s_add_u32 s28, s28, s29")
    a("v_add_u32 v4, s28, v4")
    a("s_nop 4")
    a("v_cmp_gt_u32 vcc, 32, v2")
    a("s_and_saveexec_b64 s[30:31], vcc")
    for r in range(4):
        a(f"s_mov_b32 s28, {r*4096}")
        a(f"buffer_atomic_add_f32 v{8+r}, v4, s[20:23], s28 offen")
    a("s_mov_b64 exec, s[30:31]")
    a.label(f"{name}_done")
    a("s_endpgm")
    return kernel_header(name) + a.text() + kernel_desc(name, 64, 48)
```

```python
from asmlib import *
from layout import *
from k_moe import round_bf16

def gen_oproj(name):
    a = Asm()
    WA0, WA1, VL, VX, VD = 1, 2, 3, 4, 5
    ACC = 8
    OB = 40
    WB = 104
    XP = 120
    G = 136
    NP = 168
    T = 184
    a("s_cmp_ge_u32 s2, 256")
    a(f"s_cbranch_scc1 {name}_done")
    a(f"s_load_dwordx2 s[4:5], s[0:1], {A_X}")
    a(f"s_load_dwordx2 s[6:7], s[0:1], {A_WO}")
    a(f"s_load_dwordx2 s[8:9], s[0:1], {A_OUT}")
    a(f"s_load_dwordx2 s[10:11], s[0:1], {A_WS}")
    a("v_lshrrev_b32 v6, 6, v0")
    a("v_and_b32 v0, 63, v0")
    a("v_readfirstlane_b32 s3, v6")
    a("s_bfe_u32 s36, s2, 0x20001")
    a("s_lshl_b32 s36, s36, 2")
    a("s_bfe_u32 s37, s2, 0x20003")
    a("s_add_u32 s36, s36, s37")
    a("s_and_b32 s37, s2, 1")
    a("s_lshl_b32 s37, s37, 3")
    a("s_lshr_b32 s38, s2, 5")
    a("s_add_u32 s37, s37, s38")
    a("s_lshl_b32 s38, s36, 2")
    a("s_add_u32 s38, s38, s3")
    a(f"v_lshlrev_b32 v{VL}, 4, v0")
    a("v_bfe_u32 v6, v0, 4, 1")
    a("v_lshlrev_b32 v6, 2, v6")
    a("v_and_b32 v7, 7, v0")
    a("v_xor_b32 v6, v6, v7")
    a("v_lshrrev_b32 v7, 3, v0")
    a("v_lshlrev_b32 v7, 11, v7")
    a(f"v_lshl_add_u32 v{VD}, v6, 4, v7")
    a("s_lshl_b32 s39, s37, 7")
    a("s_lshl_b32 s40, s3, 16")
    a("s_add_u32 s39, s39, s40")
    a(f"v_add_u32 v{VD}, s39, v{VD}")
    a("v_and_b32 v6, 31, v0")
    a("s_lshl_b32 s39, s38, 5")
    a("v_add_u32 v6, s39, v6")
    a("v_lshrrev_b32 v7, 5, v0")
    a(f"v_lshlrev_b32 v{VX}, 11, v6")
    a(f"v_lshl_add_u32 v{VX}, v7, 4, v{VX}")
    a("s_lshl_b32 s39, s37, 7")
    a(f"v_add_u32 v{VX}, s39, v{VX}")
    a("s_waitcnt lgkmcnt(0)")
    a("s_add_u32 s44, s10, " + hex(WS_IDX))
    a("s_addc_u32 s45, s11, 0")
    a("s_load_dwordx16 s[48:63], s[44:45], 0")
    a.srd(12, 4, 0, S*D*2)
    a.srd(16, 6, 0, D*D*2)
    a.srd(20, 8, 0, S*D*2)
    a.srd(24, 10, WS_XN, XN_BYTES)
    a.srd(28, 10, WS_O, O_BYTES)
    a.srd(32, 10, WS_Y, Y_BYTES)
    for q in range(4):
        a(f"buffer_load_dwordx4 {vr(NP+4*q,4)}, v{VX}, s[24:27], 0 offen offset:{q*32}")
    for q in range(4):
        a(f"buffer_load_dwordx4 {vr(XP+4*q,4)}, v{VX}, s[12:15], 0 offen offset:{q*32}")
    a("s_lshl_b32 s41, s38, 16")
    a("s_mov_b32 s42, 0")
    a("s_lshl_b32 s43, s3, 12")
    def dma_chunk():
        o = []
        for i in range(4):
            o.append(f"s_add_u32 m0, s43, {i*1024}\ns_add_u32 s46, s42, {i*8*2048}\nbuffer_load_dwordx4 v{VD}, s[16:19], s46 offen lds")
        o.append(f"s_add_u32 s43, s43, 16384\ns_add_u32 s42, s42, {128*2048}")
        return o
    def oload(par, ks):
        base = "s41" if ks < 4 else "s47"
        return f"buffer_load_dwordx4 {vr(OB+32*par+4*ks,4)}, v{VL}, s[28:31], {base} offen offset:{(ks&3)*1024}"
    def oadv(): return "s_add_u32 s41, s41, 8192\ns_add_u32 s47, s47, 8192"
    a("s_add_u32 s47, s41, 4096")
    for par in range(2):
        a(*dma_chunk())
        for ks in range(8): a(oload(par, ks))
        a(oadv())
    a("v_bfe_u32 v6, v0, 2, 2")
    a("v_lshl_add_u32 v6, v7, 2, v6")
    a("v_lshlrev_b32 v6, 7, v6")
    a(f"v_bfe_u32 v{T}, v0, 4, 1")
    a(f"v_lshlrev_b32 v{T}, 1, v{T}")
    a(f"v_bfe_u32 v{T+1}, v0, 1, 1")
    a(f"v_add_u32 v{T}, v{T}, v{T+1}")
    a(f"v_bfe_u32 v{T+1}, v0, 3, 1")
    a(f"v_lshlrev_b32 v{T+1}, 2, v{T+1}")
    a(f"v_xor_b32 v{T}, v{T}, v{T+1}")
    a(f"v_and_b32 v{T+1}, 1, v0")
    a(f"v_lshl_add_u32 v6, v{T+1}, 3, v6")
    a(f"v_lshl_add_u32 v{WA0}, v{T}, 4, v6")
    a(f"v_xor_b32 v{WA1}, 64, v{WA0}")
    for r in range(32): a(f"v_mov_b32 v{ACC+r}, 0")
    a("s_waitcnt vmcnt(28)")
    for p in range(16):
        a(f"v_lshlrev_b32 v{G+2*p}, 16, v{NP+p}")
        a(f"v_and_b32 v{G+2*p+1}, 0xffff0000, v{NP+p}")
    a(f"v_lshrrev_b32 v{T}, 11, v{VX}")
    a(f"v_mov_b32 v{T+1}, -1")
    a(f"v_mov_b32 v{T+2}, 0")
    a("s_waitcnt lgkmcnt(0)")
    for i in range(8):
        a(f"v_cmp_eq_u32 vcc, s{48+i}, v{T}")
        a(f"v_mov_b32 v{T+3}, {i}")
        a(f"v_mov_b32 v{T+4}, s{56+i}")
        a(f"v_cndmask_b32 v{T+1}, v{T+1}, v{T+3}, vcc")
        a(f"v_cndmask_b32 v{T+2}, v{T+2}, v{T+4}, vcc")
    a(f"v_cmp_le_i32 vcc, 0, v{T+1}")
    a("s_and_saveexec_b64 s[44:45], vcc")
    a(f"s_cbranch_execz {name}_norout")
    a(f"v_and_b32 v{T+3}, 0x7ff, v{VX}")
    a(f"v_lshlrev_b32 v{T+3}, 1, v{T+3}")
    a(f"v_lshl_add_u32 v{T+3}, v{T+1}, 12, v{T+3}")
    for q in range(4):
        for hh in range(2):
            a(f"buffer_load_dwordx4 {vr(NP+4*hh,4)}, v{T+3}, s[32:35], 0 offen offset:{q*64+hh*16}")
        a("s_waitcnt vmcnt(0)")
        for e in range(8):
            round_bf16(a, NP+e)
            a(f"v_mul_f32 v{NP+e}, v{NP+e}, v{T+2}")
            round_bf16(a, NP+e)
            a(f"v_add_f32 v{G+8*q+e}, v{G+8*q+e}, v{NP+e}")
            round_bf16(a, G+8*q+e)
    a.label(f"{name}_norout")
    a("s_mov_b64 exec, s[44:45]")
    for b in range(0, 32, 8):
        for e in range(8): a(f"v_mul_f32 v{T+e}, 0xbfb8aa3b, v{G+b+e}")
        for e in range(8): a(f"v_exp_f32 v{T+e}, v{T+e}")
        for e in range(8): a(f"v_add_f32 v{T+e}, 1.0, v{T+e}")
        for e in range(8): a(f"v_rcp_f32 v{T+e}, v{T+e}")
        for e in range(8): a(f"v_mul_f32 v{G+b+e}, v{G+b+e}, v{T+e}")

    def wreads(buf, ks):
        o = []
        for ct in range(2):
            for t in range(2):
                o.append(f"ds_read_b64_tr_b16 {vr(WB+8*buf+4*ct+2*t,2)}, v{WA0+ct} offset:{ks*2048+t*1024}")
        return o
    def chunk(par, issue, last):
        a(f"s_waitcnt vmcnt({0 if last else 12})")
        a("s_barrier")
        a(*wreads(0, 0))
        if issue: a(*dma_chunk())
        for ks in range(8):
            if ks < 7:
                a(*wreads((ks+1) & 1, ks+1))
                a("s_waitcnt lgkmcnt(4)")
            else:
                a("s_waitcnt lgkmcnt(0)")
            for ct in range(2):
                a(f"v_mfma_f32_32x32x16_bf16 {vr(ACC+16*ct,16)}, {vr(WB+8*(ks&1)+4*ct,4)}, {vr(OB+32*par+4*ks,4)}, {vr(ACC+16*ct,16)}")
            if issue: a(oload(par, ks))
        if issue: a(oadv())
        a(f"v_add_u32 v{WA0}, 16384, v{WA0}")
        a(f"v_add_u32 v{WA1}, 16384, v{WA1}")
    a("s_mov_b32 s46, 0")
    a("s_mov_b32 s64, 0")
    a(".p2align 6")
    a.label(f"{name}_loop")
    chunk(0, True, False)
    chunk(1, True, False)
    a("s_add_u32 s64, s64, 1")
    a("s_cmp_lt_u32 s64, 3")
    a(f"s_cbranch_scc1 {name}_loop")
    chunk(0, False, False)
    chunk(1, False, True)
    a("s_nop 7")
    a("s_nop 3")
    for ct in range(2):
        for jj in range(2):
            b = ACC + 16*ct + 8*jj
            for e in range(4):
                a(f"v_permlane32_swap_b32 v{b+e}, v{b+4+e}")
            q = 2*ct + jj
            for p in range(4):
                a(f"v_lshlrev_b32 v{T}, 16, v{XP+4*q+p}")
                a(f"v_and_b32 v{T+1}, 0xffff0000, v{XP+4*q+p}")
                a(f"v_fmac_f32 v{T}, v{b+2*p}, v{G+8*q+2*p}")
                a(f"v_fmac_f32 v{T+1}, v{b+2*p+1}, v{G+8*q+2*p+1}")
                a(f"v_cvt_pk_bf16_f32 v{XP+4*q+p}, v{T}, v{T+1}")
            a(f"buffer_store_dwordx4 {vr(XP+4*q,4)}, v{VX}, s[20:23], 0 offen offset:{q*32}")
    a.label(f"{name}_done")
    a("s_endpgm")
    return kernel_header(name) + a.text() + kernel_desc(name, 192, 72)
```

```python
from asmlib import *
from layout import *

SLOT = 40960
QSCALE = 0x3e8293ee

def gen_qkv(name):
    a = Asm()
    a("s_cmp_ge_u32 s2, 256")
    a(f"s_cbranch_scc1 {name}_done")
    a(f"s_load_dwordx2 s[4:5], s[0:1], {A_WQKV}")
    a(f"s_load_dwordx2 s[8:9], s[0:1], {A_WS}")
    a("v_lshrrev_b32 v1, 6, v0")
    a("v_and_b32 v0, 63, v0")
    a("v_readfirstlane_b32 s3, v1")
    a("s_and_b32 s10, s2, 1")
    a("s_lshl_b32 s10, s10, 3")
    a("s_bfe_u32 s11, s2, 0x30003")
    a("s_add_u32 s10, s10, s11")
    a("s_bfe_u32 s11, s2, 0x20001")
    a("s_lshl_b32 s11, s11, 2")
    a("s_lshr_b32 s28, s2, 6")
    a("s_add_u32 s11, s11, s28")
    a("s_cmp_ge_u32 s3, 4")
    a(f"s_cbranch_scc1 {name}_loader")

    XA, WA = 2, 6
    B0 = 8
    ACC = 48
    a("s_lshr_b32 s29, s3, 1")
    a("s_and_b32 s30, s3, 1")
    a("v_and_b32 v1, 31, v0")
    a("s_lshl_b32 s31, s29, 6")
    a("v_add_u32 v1, s31, v1")
    a("v_lshlrev_b32 v1, 7, v1")
    a("v_bfe_u32 v7, v0, 1, 3")
    a("v_lshrrev_b32 v8, 5, v0")
    for ks in range(4):
        a(f"v_add_u32 v9, {2*ks}, v8")
        a("v_xor_b32 v9, v9, v7")
        a(f"v_lshl_add_u32 v{XA+ks}, v9, 4, v1")
    a("v_bfe_u32 v1, v0, 2, 2")
    a("v_lshl_add_u32 v1, v8, 3, v1")
    a("v_lshlrev_b32 v1, 7, v1")
    a("v_bfe_u32 v9, v0, 4, 1")
    a("v_lshlrev_b32 v9, 1, v9")
    a("v_bfe_u32 v10, v0, 1, 1")
    a("v_add_u32 v9, v9, v10")
    a("s_lshl_b32 s31, s30, 2")
    a("v_add_u32 v9, s31, v9")
    a("v_bfe_u32 v10, v0, 3, 1")
    a("v_lshlrev_b32 v10, 2, v10")
    a("v_xor_b32 v9, v9, v10")
    a("v_lshl_add_u32 v1, v9, 4, v1")
    a("v_and_b32 v9, 1, v0")
    a("v_lshl_add_u32 v1, v9, 3, v1")
    a(f"v_add_u32 v{WA}, 16384, v1")
    for r in range(96):
        a(f"v_mov_b32 v{ACC+r}, 0")
    a("s_waitcnt lgkmcnt(0)")
    a.srd(12, 8, WS_Q, Q_BYTES)
    a.srd(16, 8, WS_KV, KV_BYTES)

    def reads(buf, ks):
        b = B0 + 20*buf
        o = [f"ds_read_b128 {vr(b,4)}, v{XA+ks}"]
        for t in range(2): o.append(f"ds_read_b64_tr_b16 {vr(b+8+2*t,2)}, v{WA} offset:{ks*2048+t*512}")
        o.append(f"ds_read_b128 {vr(b+4,4)}, v{XA+ks} offset:4096")
        for seg in (1, 2):
            for t in range(2): o.append(f"ds_read_b64_tr_b16 {vr(b+8+4*seg+2*t,2)}, v{WA} offset:{seg*8192+ks*2048+t*512}")
        return o
    def mfmas(buf):
        b = B0 + 20*buf
        o = []
        for seg in range(3):
            for aa in range(2):
                acc = ACC + 16*(aa*3+seg)
                x = vr(b+4*aa, 4); w = vr(b+8+4*seg, 4)
                A, B = (w, x) if seg < 2 else (x, w)
                o.append(f"v_mfma_f32_32x32x16_bf16 {vr(acc,16)}, {A}, {B}, {vr(acc,16)}")
        return o
    a("s_mov_b32 s20, 0")
    a("s_mov_b32 s21, 0")
    a(f"s_mov_b32 s23, {(-2*SLOT) & 0xffffffff:#x}")
    a("s_barrier")
    a(*reads(0, 0))
    a(".p2align 6")
    a.label(f"{name}_cloop")
    for ks in range(4):
        m = mfmas(ks & 1)
        a("s_waitcnt lgkmcnt(0)")
        if ks < 3:
            r = reads((ks+1) & 1, ks+1)
            a(m[0], *r[0:3], m[1], *r[3:6], m[2], *r[6:8], m[3], m[4], m[5])
        else:
            a(m[0])
            a("s_add_u32 s21, s21, 1")
            a("s_cmp_eq_u32 s21, 3")
            a(f"s_cselect_b32 s22, s23, {SLOT}")
            a("s_cselect_b32 s21, 0, s21")
            a("s_add_u32 s20, s20, 1")
            a("s_barrier")
            for q in range(5):
                a(f"v_add_u32 v{XA+q}, s22, v{XA+q}")
            r = reads(0, 0)
            a(m[1], *r[0:3], m[2], *r[3:6], m[3], *r[6:8], m[4])
            a("s_cmp_lt_u32 s20, 16")
            a(m[5])
            a(f"s_cbranch_scc1 {name}_cloop")
    a("s_lshl_b32 s20, s11, 1")
    a("s_add_u32 s20, s20, s30")
    a("s_lshl_b32 s21, s10, 2")
    a("s_lshl_b32 s22, s29, 1")
    a("s_add_u32 s21, s21, s22")
    a("s_lshl_b32 s22, s20, 17")
    a("s_lshl_b32 s23, s21, 11")
    a("s_add_u32 s22, s22, s23")
    a("s_lshl_b32 s24, s20, 18")
    a("s_lshl_b32 s23, s21, 12")
    a("s_add_u32 s24, s24, s23")
    a("s_add_u32 s25, s24, 4096")
    a("v_lshlrev_b32 v1, 4, v0")
    a(f"s_mov_b32 s26, {QSCALE:#x}")
    a("s_waitcnt lgkmcnt(0)")
    a("s_nop 7")
    P = B0
    n = 0
    for seg in (1, 2, 0):
        for aa in range(2):
            acc = ACC + 16*(aa*3+seg)
            for jj in range(2):
                p = P + 4*(n % 4); n += 1
                for e in range(4):
                    r0 = acc + 8*jj + 2*e
                    if seg == 0:
                        a(f"v_mul_f32 v{r0}, s26, v{r0}")
                        a(f"v_mul_f32 v{r0+1}, s26, v{r0+1}")
                    a(f"v_cvt_pk_bf16_f32 v{p+e}, v{r0}, v{r0+1}")
                if seg == 0:
                    a(f"buffer_store_dwordx4 {vr(p,4)}, v1, s[12:15], s22 offen offset:{aa*2048+jj*1024}")
                else:
                    a(f"buffer_store_dwordx4 {vr(p,4)}, v1, s[16:19], s{24+aa} offen offset:{(seg-1)*2048+jj*1024}")
    a("s_endpgm")

    a.label(f"{name}_loader")
    a("s_sub_u32 s3, s3, 4")
    a("v_lshrrev_b32 v1, 3, v0")
    a("v_and_b32 v2, 7, v0")
    a("s_lshl_b32 s28, s10, 7")
    a("s_lshl_b32 s29, s3, 5")
    a("s_add_u32 s28, s28, s29")
    a("v_add_u32 v3, s28, v1")
    a("v_lshlrev_b32 v3, 11, v3")
    a("v_lshrrev_b32 v4, 1, v1")
    for i in range(4):
        a(f"v_add_u32 v5, {(4*i) & 7}, v4")
        a("v_xor_b32 v5, v5, v2")
        a(f"v_lshl_add_u32 v{8+i}, v5, 4, v3")
        if i: a(f"v_add_u32 v{8+i}, {i*8*2048}, v{8+i}")
    a("v_bfe_u32 v5, v0, 4, 1")
    a("v_lshlrev_b32 v5, 2, v5")
    a("v_xor_b32 v5, v5, v2")
    a("v_mul_u32_u24 v6, 6144, v1")
    a("v_lshl_add_u32 v6, v5, 4, v6")
    a("s_lshl_b32 s28, s11, 7")
    a("v_add_u32 v6, s28, v6")
    a("s_mul_i32 s29, s3, 6")
    for ii in range(6):
        a(f"s_add_u32 s30, s29, {ii}")
        a("s_lshr_b32 s31, s30, 3")
        a("s_lshl_b32 s31, s31, 11")
        a("s_and_b32 s30, s30, 7")
        a("s_mul_i32 s30, s30, 8*6144")
        a("s_add_u32 s30, s30, s31")
        a(f"v_add_u32 v{12+ii}, s30, v6")
    a("s_lshl_b32 s24, s3, 12")
    a("s_mul_i32 s25, s3, 6144")
    a("s_add_u32 s25, s25, 16384")
    a("s_waitcnt lgkmcnt(0)")
    a.srd(12, 8, WS_XN, XN_BYTES)
    a.srd(16, 4, 0, D*3*D*2)
    a("s_mov_b32 s20, 0")
    a("s_mov_b32 s21, 0")
    a("s_mov_b32 s22, 0")
    def issue():
        a("s_add_u32 s26, s22, s24")
        a("s_add_u32 s27, s22, s25")
        for i in range(4):
            a(f"s_add_u32 m0, s26, {i*1024}")
            a("s_nop 0")
            a(f"buffer_load_dwordx4 v{8+i}, s[12:15], s20 offen lds")
        for ii in range(6):
            a(f"s_add_u32 m0, s27, {ii*1024}")
            a("s_nop 0")
            a(f"buffer_load_dwordx4 v{12+ii}, s[16:19], s21 offen lds")
        a("s_add_u32 s20, s20, 128")
        a(f"s_add_u32 s21, s21, {64*6144}")
        a(f"s_add_u32 s22, s22, {SLOT}")
        a(f"s_cmp_eq_u32 s22, {3*SLOT}")
        a("s_cselect_b32 s22, 0, s22")
    a("s_mov_b32 s23, 0")
    a.label(f"{name}_lpro")
    issue()
    a("s_add_u32 s23, s23, 1")
    a("s_cmp_lt_u32 s23, 3")
    a(f"s_cbranch_scc1 {name}_lpro")
    a("s_waitcnt vmcnt(20)")
    a("s_barrier")
    a.label(f"{name}_lloop")
    a("s_waitcnt vmcnt(10)")
    a("s_barrier")
    issue()
    a("s_add_u32 s23, s23, 1")
    a("s_cmp_lt_u32 s23, 16")
    a(f"s_cbranch_scc1 {name}_lloop")
    a("s_waitcnt vmcnt(10)")
    a("s_barrier")
    a("s_waitcnt vmcnt(0)")
    a("s_barrier")
    a("s_barrier")
    a.label(f"{name}_done")
    a("s_endpgm")
    return kernel_header(name) + a.text() + kernel_desc(name, 144, 48)
```

```python
from asmlib import *
from layout import *

DPPS = ("row_shr:1 row_mask:0xf bank_mask:0xf", "row_shr:2 row_mask:0xf bank_mask:0xf",
        "row_shr:4 row_mask:0xf bank_mask:0xf", "row_shr:8 row_mask:0xf bank_mask:0xf",
        "row_bcast:15 row_mask:0xa bank_mask:0xf", "row_bcast:31 row_mask:0xc bank_mask:0xf")

def top8_rounds(a, keys, T, cand, stmp):
    n = len(keys)
    a(f"s_mov_b32 s{stmp}, -1")
    for rnd in range(8):
        for e in range(n):
            a(f"v_sub_u32 v{T+e}, s{stmp}, v{keys[e]}")
        e = 1
        while e + 1 < n:
            a(f"v_min3_u32 v{T}, v{T}, v{T+e}, v{T+e+1}")
            e += 2
        if e < n:
            a(f"v_min_u32 v{T}, v{T}, v{T+e}")
        for ctl in DPPS:
            a("s_nop 1")
            a(f"v_min_u32_dpp v{T}, v{T}, v{T} {ctl}")
        a("s_nop 0")
        a(f"v_readlane_b32 s{stmp+1}, v{T}, 63")
        a("s_nop 3")
        a(f"s_sub_u32 s{stmp}, s{stmp}, s{stmp+1}")
        a(f"v_writelane_b32 v{cand}, s{stmp}, {rnd}")
        a(f"s_sub_u32 s{stmp}, s{stmp}, 1")

def make_keys(a, K, T, vidx0, offs=range(8)):
    for e in range(8):
        a(f"v_ashrrev_i32 v{T}, 31, v{K+e}")
        a(f"v_or_b32 v{T}, 0x80000000, v{T}")
        a(f"v_xor_b32 v{K+e}, v{T}, v{K+e}")
        a(f"v_and_b32 v{K+e}, 0xffff0000, v{K+e}")
        a(f"v_sub_u32 v{T}, {2047-offs[e]}, v{vidx0}")
        a(f"v_or_b32 v{K+e}, v{K+e}, v{T}")

def decode_keys(a, cand, vi, vw, T):
    a(f"v_and_b32 v{vi}, 0xffff, v{cand}")
    a(f"v_sub_u32 v{vi}, 2047, v{vi}")
    a(f"v_not_b32 v{T}, v{cand}")
    a(f"v_ashrrev_i32 v{T}, 31, v{T}")
    a(f"v_or_b32 v{T}, 0x80000000, v{T}")
    a(f"v_xor_b32 v{vw}, v{T}, v{cand}")
    a(f"v_and_b32 v{vw}, 0xffff0000, v{vw}")
    a(f"v_mul_f32 v{vw}, 0xbfb8aa3b, v{vw}")
    a(f"v_exp_f32 v{vw}, v{vw}")
    a("s_nop 0")
    a(f"v_add_f32 v{vw}, 1.0, v{vw}")
    a(f"v_rcp_f32 v{vw}, v{vw}")
    a("s_nop 0")
    a(f"v_cvt_pk_bf16_f32 v{vw}, v{vw}, v{vw}")
    a(f"v_and_b32 v{vw}, 0xffff0000, v{vw}")

def gen_top8(name):
    a = Asm()
    a("s_cmp_ge_u32 s2, 1")
    a(f"s_cbranch_scc1 {name}_done")
    a(f"s_load_dwordx2 s[8:9], s[0:1], {A_WS}")
    a("v_lshlrev_b32 v1, 5, v0")
    a("v_lshlrev_b32 v2, 3, v0")
    a("v_lshrrev_b32 v3, 6, v0")
    a("v_and_b32 v4, 63, v0")
    a("v_readfirstlane_b32 s3, v3")
    a("s_waitcnt lgkmcnt(0)")
    a.srd(12, 8, WS_R, R_BYTES)
    a.srd(16, 8, WS_IDX, IDX_BYTES)
    K, T, CAND = 8, 16, 24
    a(f"buffer_load_dwordx4 {vr(K,4)}, v1, s[12:15], 0 offen")
    a(f"buffer_load_dwordx4 {vr(K+4,4)}, v1, s[12:15], 0 offen offset:16")
    a(f"v_mov_b32 v{CAND}, 0")
    a("s_waitcnt vmcnt(0)")
    make_keys(a, K, T, 2)
    top8_rounds(a, list(range(K, K+8)), T, CAND, 20)
    a("v_lshlrev_b32 v5, 2, v4")
    a("s_lshl_b32 s4, s3, 5")
    a("v_add_u32 v6, s4, v5")
    a("v_cmp_gt_u32 vcc, 8, v4")
    a("s_and_saveexec_b64 s[22:23], vcc")
    a(f"ds_write_b32 v6, v{CAND}")
    a("s_mov_b64 exec, s[22:23]")
    a("s_waitcnt lgkmcnt(0)")
    a("s_barrier")
    a("s_cmp_lg_u32 s3, 0")
    a(f"s_cbranch_scc1 {name}_done")
    a(f"v_mov_b32 v{K}, 0")
    a("v_cmp_gt_u32 vcc, 32, v4")
    a("s_and_saveexec_b64 s[22:23], vcc")
    a(f"ds_read_b32 v{K}, v5")
    a("s_mov_b64 exec, s[22:23]")
    a("s_waitcnt lgkmcnt(0)")
    top8_rounds(a, [K], T, CAND, 20)
    decode_keys(a, CAND, 26, 27, T)
    a("v_cmp_gt_u32 vcc, 8, v4")
    a("s_and_saveexec_b64 s[22:23], vcc")
    a("buffer_store_dword v26, v5, s[16:19], 0 offen")
    a("buffer_store_dword v27, v5, s[16:19], 0 offen offset:32")
    a("s_mov_b64 exec, s[22:23]")
    a.label(f"{name}_done")
    a("s_endpgm")
    return kernel_header(name) + a.text() + kernel_desc(name, 32, 40)
```

```python
A_X, A_WQKV, A_WO, A_BX, A_WR, A_WG, A_WU, A_WD, A_OUT, A_DBG, A_WS = [8*i for i in range(11)]
S, D, H, DH, F, C = 2048, 1024, 32, 32, 3584, 8
WS_XN  = 0x0000000; XN_BYTES  = S*D*2
WS_Q   = 0x0400000; Q_BYTES   = S*D*2
WS_KV  = 0x0800000; KV_BYTES  = S*D*4
WS_O   = 0x1000000; O_BYTES   = S*D*2
WS_R   = 0x1400000; R_BYTES   = S*4
WS_IDX = 0x1410000; IDX_BYTES = 64
WS_H   = 0x1420000; H_BYTES   = 8*F*2
WS_Y   = 0x1440000; Y_BYTES   = 8*D*4
```

```python
import sys
from asmlib import *
from layout import *
from k_ln import gen_ln
from k_top8 import gen_top8
from k_moe import gen_moe1, gen_moe2
from k_qkv import gen_qkv
from k_attn import gen_attn
from k_oproj import gen_oproj

HEAD = open("recurrent_scan__softmax_full_mha__moe_arch_mod__prompt.s.ref").read().split("; Override launch")[0]

def build(launches, extra=""):
    out = HEAD
    for name, fn, grid, block, lds in launches:
        out += f"; @launch kernel={name} grid=({grid},1,1) block=({block},1,1) lds={lds}\n"
    out += '.amdgcn_target "amdgcn-amd-amdhsa--gfx950"\n'
    seen = set()
    for name, fn, grid, block, lds in launches:
        if name in seen: continue
        seen.add(name)
        out += fn(name)
    return out

BASE = [
    ("ln_kernel", gen_ln, 256, 256, 0),
    ("top8_kernel", gen_top8, 1, 256, 256),
    ("qkv_kernel", gen_qkv, 256, 512, 3*40960),
    ("moe1_kernel", gen_moe1, 224, 256, 65536),
    ("moe2_kernel", gen_moe2, 256, 256, 28672),
    ("attn_kernel", gen_attn, 256, 512, 65536),
    ("oproj_kernel", gen_oproj, 256, 256, 131072),
]
if __name__ == "__main__":
    path = sys.argv[1] if len(sys.argv) > 1 else "recurrent_scan__softmax_full_mha__moe_arch_mod__prompt.s"
    open(path, "w").write(build(BASE))
    print("wrote", path)
```

```python
from build import *
def gen_empty(name):
    return kernel_header(name) + "    s_endpgm\n" + kernel_desc(name, 8, 16)
E = ("empty_kernel", gen_empty, 256, 256, 0)
open("base.s", "w").write(build(BASE))
open("e4.s", "w").write(build(BASE + [E]*4))
open("e8.s", "w").write(build(BASE + [E]*8))
open("pre4.s", "w").write(build([E]*4 + BASE))
```

```python
def v(i): return f"v{i}"
def s(i): return f"s{i}"
def vr(i, n): return f"v{i}" if n == 1 else f"v[{i}:{i+n-1}]"
def sr(i, n): return f"s{i}" if n == 1 else f"s[{i}:{i+n-1}]"
def ar(i, n): return f"a{i}" if n == 1 else f"a[{i}:{i+n-1}]"

import os
DIAG = os.environ.get("DIAG") == "1"
TRACE = os.environ.get("TRACE") == "1"

class Asm:
    def __init__(self):
        self.lines = []
        self.uid = 0
    def __call__(self, *ls):
        for l in ls:
            for x in l.split("\n"):
                x = x.strip()
                if x:
                    self.lines.append(("" if x.endswith(":") else "    ") + x)
    def label(self, name): self.lines.append(name + ":")
    def new_label(self, base):
        self.uid += 1
        return f"{base}_{self.uid}"
    def comment(self, c): self.lines.append("    ; " + c)
    def text(self): return "\n".join(self.lines) + "\n"

    def srd(self, d, base, off, nbytes):
        if off:
            self(f"s_add_u32 s{d}, s{base}, {off:#x}")
            self(f"s_addc_u32 s{d+1}, s{base+1}, 0")
        else:
            self(f"s_mov_b32 s{d}, s{base}")
            self(f"s_mov_b32 s{d+1}, s{base+1}")
        self(f"s_mov_b32 s{d+2}, {nbytes:#x}")
        self(f"s_mov_b32 s{d+3}, 0x00020000")

    def stamp(self, i):
        if DIAG:
            self(f"s_memrealtime s[{82+2*i}:{83+2*i}]")
    def cstamp(self, i):
        if DIAG:
            self(f"s_memtime s[{82+2*i}:{83+2*i}]")
    def trace(self, i, grp="a"):
        if DIAG and TRACE and grp in os.environ.get("TGRP", "a"):
            self("s_memtime s[76:77]" if grp == "u" else "s_memrealtime s[76:77]")
            self("s_waitcnt lgkmcnt(0)")
            self(f"v_writelane_b32 v255, s76, {i}")
    def stamp_init(self):
        if DIAG and TRACE: self("v_mov_b32 v255, 0")
        if DIAG:
            for i in range(10): self(f"s_mov_b32 s{82+2*i}, 0")
            self("s_mov_b32 s81, s2")
    def stamp_dump(self, kid, swave, last=9):
        if DIAG:
            self("s_waitcnt vmcnt(0) lgkmcnt(0)")
            self.stamp(last)
            self("s_load_dwordx2 s[76:77], s[0:1], 80")
            self("s_waitcnt lgkmcnt(0)")
            self("s_add_u32 s76, s76, 0x2000000")
            self("s_addc_u32 s77, s77, 0")
            self("s_mov_b32 s78, 0x1000000")
            self("s_mov_b32 s79, 0x00020000")
            self(f"s_add_u32 s80, s81, {kid*256}")
            self("s_lshl_b32 s80, s80, 4")
            self(f"s_add_u32 s80, s80, s{swave}")
            self("s_lshl_b32 s80, s80, 6")
            if TRACE:
                self("v_mbcnt_lo_u32_b32 v1, -1, 0")
                self("v_mbcnt_hi_u32_b32 v1, -1, v1")
                self("v_lshlrev_b32 v1, 2, v1")
                self("s_lshl_b32 s83, s80, 2")
                self("s_add_u32 s83, s83, 0x800000")
                self("buffer_store_dword v255, v1, s[76:79], s83 offen")
            self("v_mov_b32 v1, 0")
            for i in range(10):
                self(f"v_mov_b32 v2, s{82+2*i}")
                self(f"buffer_store_dword v2, v1, s[76:79], s80 offen offset:{4*i}")
                self("s_nop 1")

    def wave_sum(self, r, tmp=None):
        for ctl in ("row_shr:1", "row_shr:2", "row_shr:4", "row_shr:8"):
            self("s_nop 1")
            self(f"v_add_f32_dpp v{r}, v{r}, v{r} {ctl} row_mask:0xf bank_mask:0xf bound_ctrl:0")
        self("s_nop 1")
        self(f"v_add_f32_dpp v{r}, v{r}, v{r} row_bcast:15 row_mask:0xa bank_mask:0xf")
        self("s_nop 1")
        self(f"v_add_f32_dpp v{r}, v{r}, v{r} row_bcast:31 row_mask:0xc bank_mask:0xf")

def kernel_header(name):
    return f""".text
.globl {name}
.p2align 8
.type {name},@function
{name}:
"""

def kernel_desc(name, vgpr, sgpr=96, accum=None, wg_y=False):
    if DIAG: sgpr = 102
    if accum is None:
        accum = (vgpr + 3) // 4 * 4
    return f""".section .rodata,"a"
.p2align 6
.amdhsa_kernel {name}
  .amdhsa_next_free_vgpr {vgpr}
  .amdhsa_next_free_sgpr {sgpr}
  .amdhsa_accum_offset {accum}
  .amdhsa_group_segment_fixed_size 0
  .amdhsa_kernarg_size 88
  .amdhsa_user_sgpr_count 2
  .amdhsa_user_sgpr_kernarg_segment_ptr 1
  .amdhsa_system_sgpr_workgroup_id_x 1
  .amdhsa_float_denorm_mode_32 3
.end_amdhsa_kernel
"""

def interleave(primary, filler):
    out = []
    n, m = len(filler), len(primary)
    j = 0
    for i, x in enumerate(primary):
        out.append(x)
        k = (i + 1) * n // m
        out += filler[j:k]
        j = k
    return out


class VM:
    def __init__(self, a): self.a = a; self.q = []
    def issue(self, tag, n=1, cond=False): self.q += [(tag, cond)] * n
    def wait(self, *tags):
        idx = [i for i, (t, c) in enumerate(self.q) if t in tags]
        if not idx: return
        i = idx[-1]
        n = sum(1 for (t, c) in self.q[i+1:] if not c)
        assert n <= 63
        self.a(f"s_waitcnt vmcnt({n})")
        self.q = self.q[i+1:]
    def drain(self):
        self.a("s_waitcnt vmcnt(0)"); self.q = []
    def copy(self):
        v_ = VM(self.a); v_.q = list(self.q); return v_
```

```python
import os
from asmlib import *
from layout import *
from k_top8 import DPPS, make_keys, decode_keys
from k_attn import M32, M16
import k_attn2 as AT
from k_moe import pi_row, silu_bf16, round_bf16

QSCALE = 0x3e8293ee
sX, sWQ, sWS, sWR, sDBG, sWG, sWU, sWD, sWO, sOUT = 4, 8, 12, 16, 20, 24, 28, 32, 36, 40
sJ, sMT, sLI, sXC = 44, 45, 46, 47
sIDX, sWT = 48, 56
sT = 64
W = 3
SLOT, WOFF = 40960, 16384
L_Q, L_XS, L_MISC = 122880, 139264, 159744
L_M, L_RS, L_CS, L_CAND, L_IDX, L_H = L_MISC, L_MISC+512, L_MISC+1024, L_MISC+1792, L_MISC+1920, L_MISC+2048
L_ST, L_CNT = L_MISC+3072, L_MISC+3200
LDS_BYTES = 163840
SPIN_LIMIT = 400000
XSEL_RAW, XSEL_ST = 200, 216

def srd(r): return f"s[{r}:{r+3}]"

def wsum(a, r, sdst, op="add_f32"):
    for ctl in DPPS:
        bc = " bound_ctrl:0" if ctl.startswith("row_shr") and op == "add_f32" else ""
        a("s_nop 1")
        a(f"v_{op}_dpp v{r}, v{r}, v{r} {ctl}{bc}")
    a("s_nop 0")
    a(f"v_readlane_b32 s{sdst}, v{r}, 63")
    a("s_nop 1")

def ln_rows2(a, vm, X, WR, XB, T, voff, dbg):
    R2 = range(2)
    F_ = lambda i, e: XB + 16*i + e
    T_ = lambda i, k: T + 6*i + k
    def wsum2(k, sd):
        for ctl in DPPS:
            bc = " bound_ctrl:0" if ctl.startswith("row_shr") else ""
            a("s_nop 0")
            for i in R2: a(f"v_add_f32_dpp v{T_(i,k)}, v{T_(i,k)}, v{T_(i,k)} {ctl}{bc}")
        a("s_nop 0")
        for i in R2: a(f"v_readlane_b32 s{sT+3*i+sd}, v{T_(i,k)}, 63")
        a("s_nop 0")
    for i in R2:
        for p in range(8):
            a(f"v_lshlrev_b32 v{F_(i,2*p)}, 16, v{X+8*i+p}")
            a(f"v_and_b32 v{F_(i,2*p+1)}, 0xffff0000, v{X+8*i+p}")
    for i in R2:
        a(f"v_add_f32 v{T_(i,0)}, v{F_(i,0)}, v{F_(i,1)}")
    for e in range(2, 16):
        for i in R2: a(f"v_add_f32 v{T_(i,0)}, v{T_(i,0)}, v{F_(i,e)}")
    a("s_nop 0")
    wsum2(0, 0)
    for i in R2:
        a(f"v_mov_b32 v{T_(i,0)}, s{sT+3*i}")
    for i in R2:
        a(f"v_mul_f32 v{T_(i,0)}, 0x3a800000, v{T_(i,0)}")
    for i in R2:
        a(f"v_sub_f32 v{T_(i,2)}, v{F_(i,0)}, v{T_(i,0)}")
        a(f"v_mul_f32 v{T_(i,1)}, v{T_(i,2)}, v{T_(i,2)}")
    for e in range(1, 16):
        for i in R2:
            a(f"v_sub_f32 v{T_(i,2)}, v{F_(i,e)}, v{T_(i,0)}")
            a(f"v_fmac_f32 v{T_(i,1)}, v{T_(i,2)}, v{T_(i,2)}")
    wsum2(1, 0)
    seq = lambda i: [
        f"v_mov_b32 v{T_(i,1)}, s{sT+3*i}",
        f"v_mul_f32 v{T_(i,1)}, 0x3a800000, v{T_(i,1)}",
        f"v_cvt_pk_bf16_f32 v{T_(i,2)}, v{T_(i,0)}, v{T_(i,1)}",
        f"v_lshlrev_b32 v{T_(i,0)}, 16, v{T_(i,2)}",
        f"v_and_b32 v{T_(i,1)}, 0xffff0000, v{T_(i,2)}",
        f"v_add_f32 v{T_(i,1)}, 0x3727c5ac, v{T_(i,1)}",
        f"v_cvt_pk_bf16_f32 v{T_(i,1)}, v{T_(i,1)}, v{T_(i,1)}",
        f"v_and_b32 v{T_(i,1)}, 0xffff0000, v{T_(i,1)}",
        f"v_sqrt_f32 v{T_(i,1)}, v{T_(i,1)}",
        f"v_readfirstlane_b32 s{sT+3*i}, v{T_(i,0)}",
        f"v_cvt_pk_bf16_f32 v{T_(i,1)}, v{T_(i,1)}, v{T_(i,1)}",
        f"v_and_b32 v{T_(i,1)}, 0xffff0000, v{T_(i,1)}",
        f"v_rcp_f32 v{T_(i,1)}, v{T_(i,1)}",
        f"v_mov_b32 v{T_(i,3)}, 0"]
    for x, y in zip(seq(0), seq(1)): a(x, y)
    for p in range(8):
        st = lambda i: [
            f"v_sub_f32 v{F_(i,2*p)}, v{F_(i,2*p)}, v{T_(i,0)}",
            f"v_sub_f32 v{F_(i,2*p+1)}, v{F_(i,2*p+1)}, v{T_(i,0)}",
            f"v_cvt_pk_bf16_f32 v{T_(i,2)}, v{F_(i,2*p)}, v{F_(i,2*p+1)}",
            f"v_lshlrev_b32 v{F_(i,2*p)}, 16, v{T_(i,2)}",
            f"v_and_b32 v{F_(i,2*p+1)}, 0xffff0000, v{T_(i,2)}",
            f"v_mul_f32 v{F_(i,2*p)}, v{F_(i,2*p)}, v{T_(i,1)}",
            f"v_mul_f32 v{F_(i,2*p+1)}, v{F_(i,2*p+1)}, v{T_(i,1)}",
            f"v_cvt_pk_bf16_f32 v{X+8*i+p}, v{F_(i,2*p)}, v{F_(i,2*p+1)}"]
        for x, y in zip(st(0), st(1)): a(x, y)
    for i in R2: a(f"v_readfirstlane_b32 s{sT+3*i+1}, v{T_(i,1)}")
    if dbg:
        for i in R2:
            a(f"buffer_store_dwordx4 {vr(X+8*i,4)}, v{voff}, {srd(sWS)}, 0 offen offset:{2048*i}")
            a(f"buffer_store_dwordx4 {vr(X+8*i+4,4)}, v{voff}, {srd(sWS)}, 0 offen offset:{2048*i+1024}")
    for p in range(8):
        for i in R2: a(f"v_dot2c_f32_bf16 v{T_(i,3)}, v{X+8*i+p}, v{WR+p}")
    a("s_nop 1")
    wsum2(3, 2)
    for i in R2: a(f"v_mov_b32 v{T_(i,0)}, s{sT+3*i+2}")
    for i in R2: a(f"v_cvt_pk_bf16_f32 v{T_(i,0)}, v{T_(i,0)}, v{T_(i,0)}")
    for i in R2: a(f"v_and_b32 v{T_(i,0)}, 0xffff0000, v{T_(i,0)}")
    a(f"v_mov_b32 v{T+1}, s{sT}")
    a(f"v_readfirstlane_b32 s{sT+2}, v{T_(0,0)}")
    a(f"v_readfirstlane_b32 s{sT+5}, v{T_(1,0)}")
    a(f"v_lshlrev_b32 v{T+2}, 5, v0")
    a(f"s_lshl_b32 s{sT+6}, s{W}, 3")
    a(f"s_add_u32 s{sT+6}, s{sT+6}, {L_ST}")
    a(f"v_add_u32 v{T+2}, s{sT+6}, v{T+2}")
    for l in range(1, 6): a(f"v_writelane_b32 v{T+1}, s{sT+l}, {l}")
    for l in range(3):
        a(f"s_add_u32 s{sT+7}, s{sT+6}, {l*32+4}")
        a(f"v_writelane_b32 v{T+2}, s{sT+7}, {3+l}")
    a("s_mov_b64 exec, 63")
    a(f"ds_write_b32 v{T+2}, v{T+1}")
    a("s_mov_b64 exec, -1")

def rec_of(a, d):
    a(f"s_lshl_b32 s{d}, s{sMT}, 4")
    a(f"s_add_u32 s{d}, s{d}, s{sJ}")

def publish_stats(a, vm, T):
    A_, D_, U_ = T, T+1, T+2
    t = sT
    a(f"v_lshlrev_b32 v{U_}, 2, v0")
    a(f"v_add_u32 v{A_}, {L_ST}, v{U_}")
    a(f"ds_read_b32 v{D_}, v{A_}")
    rec_of(a, t)
    a(f"s_lshl_b32 s{t}, s{t}, 7")
    a(f"s_add_u32 s{t}, s{t}, {WS_ST}")
    a(f"v_add_u32 v{A_}, s{t}, v{U_}")
    rec_of(a, t)
    a(f"s_lshl_b32 s{t}, s{t}, 5")
    a(f"s_add_u32 s{t}, s{t}, {WS_R - 64}")
    a(f"v_cmp_le_u32 vcc, 16, v0")
    a(f"v_add_u32 v{U_}, s{t}, v{U_}")
    a("s_nop 0")
    a(f"v_cndmask_b32 v{A_}, v{A_}, v{U_}, vcc")
    a(f"s_lshl_b32 s{t}, s{sJ}, 5")
    a(f"s_add_u32 s{t}, s{t}, s{sMT}")
    a(f"s_lshl_b32 s{t}, s{t}, 7")
    a(f"s_add_u32 s{t}, s{t}, {WS_KVF}")
    a(f"v_bfe_u32 v{U_}, v0, 2, 1")
    a(f"v_lshlrev_b32 v{U_}, 11, v{U_}")
    a(f"v_and_b32 v{U_+1}, 3, v0")
    a(f"v_lshl_add_u32 v{U_}, v{U_+1}, 2, v{U_}")
    a(f"v_add_u32 v{U_}, s{t}, v{U_}")
    a(f"v_cmp_le_u32 vcc, 24, v0")
    a(f"s_lshl_b32 s{t}, s{sMT}, 3")
    a(f"s_lshr_b32 s{t+1}, s{sJ}, 3")
    a(f"v_cndmask_b32 v{A_}, v{A_}, v{U_}, vcc")
    a(f"s_add_u32 s{t}, s{t}, s{t+1}")
    a(f"s_lshl_b32 s{t}, s{t}, 7")
    a(f"s_and_b32 s{t+1}, s{sJ}, 7")
    a(f"s_lshl_b32 s{t+1}, s{t+1}, 3")
    a(f"s_add_u32 s{t}, s{t}, s{t+1}")
    a(f"s_add_u32 s{t}, s{t}, {WS_OF}")
    a(f"v_bfe_u32 v{U_}, v0, 1, 2")
    a(f"v_lshlrev_b32 v{U_}, 8, v{U_}")
    a(f"v_and_b32 v{U_+1}, 1, v0")
    a(f"v_lshl_add_u32 v{U_}, v{U_+1}, 2, v{U_}")
    a(f"v_add_u32 v{U_}, s{t}, v{U_}")
    a(f"v_cmp_le_u32 vcc, 32, v0")
    yf_addr(a, t, t+1)
    a(f"v_cndmask_b32 v{A_}, v{A_}, v{U_}, vcc")
    hf_addr(a, t+1)
    a(f"s_cmp_lt_u32 s{sLI}, 28")
    a(f"s_cselect_b32 s{t+1}, s{t+1}, s{t}")
    a(f"v_writelane_b32 v{A_}, s{t}, 40")
    a(f"v_writelane_b32 v{A_}, s{t+1}, 41")
    a(f"v_cmp_gt_u32 vcc, 24, v0")
    a("s_waitcnt lgkmcnt(0)")
    a(f"s_lshl_b32 s{t}, s2, 7")
    a(f"v_cndmask_b32 v{D_}, 0, v{D_}, vcc")
    a("s_bfm_b64 exec, 42, 0")
    a(f"buffer_store_dword v{D_}, v{A_}, {srd(sWS)}, 0 offen sc1")
    a("s_mov_b64 exec, -1")
    a(f"s_add_u32 s{t}, s{t}, {WS_Y}")
    for r in range(4): a(f"v_mov_b32 v{T+4+r}, 0")
    a("s_mov_b64 exec, 0xff")
    a(f"buffer_store_dwordx4 {vr(T+4,4)}, v94, {srd(sWS)}, s{t} offen sc1")
    a("s_mov_b64 exec, -1")
    vm.issue("st", 2, cond=True)

def kvf_addr(a, d, t):
    a(f"s_lshr_b32 s{t}, s{W}, 2")
    a(f"s_lshl_b32 s{d}, s{sJ}, 1")
    a(f"s_add_u32 s{d}, s{d}, s{t}")
    a(f"s_lshl_b32 s{d}, s{d}, 4")
    a(f"s_add_u32 s{d}, s{d}, s{sMT}")
    a(f"s_lshl_b32 s{d}, s{d}, 5")
    a(f"s_and_b32 s{t}, s{W}, 3")
    a(f"s_add_u32 s{d}, s{d}, s{t}")
    a(f"s_lshl_b32 s{d}, s{d}, 2")
    a(f"s_add_u32 s{d}, s{d}, {WS_KVF}")
def otile(a, d, t):
    a(f"s_lshl_b32 s{d}, s{sMT}, 2")
    a(f"s_and_b32 s{t}, s{W}, 2")
    a(f"s_add_u32 s{d}, s{d}, s{t}")
    a(f"s_lshr_b32 s{t}, s{W}, 2")
    a(f"s_add_u32 s{d}, s{d}, s{t}")
def head_of(a, d, t):
    a(f"s_lshl_b32 s{d}, s{sJ}, 1")
    a(f"s_and_b32 s{t}, s{W}, 1")
    a(f"s_add_u32 s{d}, s{d}, s{t}")
def of_addr(a, d, t):
    otile(a, d, t)
    a(f"s_lshl_b32 s{d}, s{d}, 1")
    a(f"s_lshr_b32 s{t}, s{sJ}, 3")
    a(f"s_add_u32 s{d}, s{d}, s{t}")
    a(f"s_lshl_b32 s{d}, s{d}, 5")
    a(f"s_and_b32 s{t}, s{sJ}, 7")
    a(f"s_lshl_b32 s{t}, s{t}, 1")
    a(f"s_add_u32 s{d}, s{d}, s{t}")
    a(f"s_and_b32 s{t}, s{W}, 1")
    a(f"s_add_u32 s{d}, s{d}, s{t}")
    a(f"s_lshl_b32 s{d}, s{d}, 2")
    a(f"s_add_u32 s{d}, s{d}, {WS_OF}")
def cg_of(a, d):
    a(f"s_mul_i32 s{d}, s{sXC}, 28")
    a(f"s_add_u32 s{d}, s{d}, s{sLI}")
def hf_addr(a, d):
    cg_of(a, d)
    a(f"s_lshl_b32 s{d}, s{d}, 7")
    a(f"s_add_u32 s{d}, s{d}, {WS_HF}")
def yf_addr(a, d, t):
    a(f"s_and_b32 s{d}, s2, 15")
    a(f"s_lshl_b32 s{d}, s{d}, 4")
    a(f"s_lshr_b32 s{t}, s2, 4")
    a(f"s_add_u32 s{d}, s{d}, s{t}")
    a(f"s_lshl_b32 s{d}, s{d}, 7")
    a(f"s_add_u32 s{d}, s{d}, {WS_YF}")

def poll_check(a, name, vreg, vaddr, s_srd, want, mask, cold):
    lab = a.new_label(name)
    def cmp(o):
        o(f"v_cmp_ne_u32 vcc, {want}, v{vreg}")
        if mask != -1:
            o(f"s_and_b32 vcc_lo, vcc_lo, {mask & 0xffffffff:#x}")
            o(f"s_and_b32 vcc_hi, vcc_hi, {(mask >> 32) & 0xffffffff:#x}")
        o("s_cmp_lg_u64 vcc, 0")
    cmp(a)
    a(f"s_cbranch_scc1 {lab}_spin")
    a.label(f"{lab}_ok")
    c = Asm()
    c.label(f"{lab}_spin")
    c(f"s_mov_b32 s{sT+11}, 0")
    c.label(f"{lab}_again")
    c(f"buffer_load_dword v{vreg}, v{vaddr}, {srd(s_srd)}, 0 offen sc1")
    c(f"s_add_u32 s{sT+11}, s{sT+11}, 1")
    c(f"s_cmp_gt_u32 s{sT+11}, {SPIN_LIMIT}")
    c(f"s_cbranch_scc1 {lab}_ok")
    c("s_waitcnt vmcnt(0)")
    cmp(c)
    c(f"s_cbranch_scc1 {lab}_again")
    c(f"s_branch {lab}_ok")
    cold.append(c)

def top8_round(a, keys, T, cand, st, rnd):
    n = len(keys)
    if rnd == 0: a(f"s_mov_b32 s{st}, -1")
    for e in range(n):
        a(f"v_sub_u32 v{T+e}, s{st}, v{keys[e]}")
    e = 1
    while e + 1 < n:
        a(f"v_min3_u32 v{T}, v{T}, v{T+e}, v{T+e+1}")
        e += 2
    if e < n: a(f"v_min_u32 v{T}, v{T}, v{T+e}")
    wsum(a, T, st+1, "min_u32")
    a(f"s_sub_u32 s{st}, s{st}, s{st+1}")
    a(f"v_writelane_b32 v{cand}, s{st}, {rnd}")
    a(f"s_sub_u32 s{st}, s{st}, 1")

def prologue(a, name):
    a("s_cmp_ge_u32 s2, 256")
    a(f"s_cbranch_scc1 {name}_done")
    a.stamp_init(); a.stamp(0)
    for r, off in ((sX, A_X), (sWQ, A_WQKV), (sWS, A_WS), (sWR, A_WR), (sDBG, A_DBG), (sWG, A_WG), (sWU, A_WU),
                   (sWD, A_WD), (sWO, A_WO), (sOUT, A_OUT)):
        a(f"s_load_dwordx2 s[{r}:{r+1}], s[0:1], {off}")
    a("v_lshrrev_b32 v1, 6, v0")
    a("v_and_b32 v0, 63, v0")
    a(f"v_readfirstlane_b32 s{W}, v1")
    a(f"s_and_b32 s{sXC}, s2, 7")
    a(f"s_lshr_b32 s{sLI}, s2, 3")
    a(f"s_and_b32 s{sMT}, s{sXC}, 1")
    a(f"s_lshl_b32 s{sMT}, s{sMT}, 3")
    a(f"s_and_b32 s{sT}, s{sLI}, 7")
    a(f"s_add_u32 s{sMT}, s{sMT}, s{sT}")
    a(f"s_lshr_b32 s{sJ}, s{sXC}, 1")
    a(f"s_lshl_b32 s{sJ}, s{sJ}, 2")
    a(f"s_lshr_b32 s{sT}, s{sLI}, 3")
    a(f"s_add_u32 s{sJ}, s{sJ}, s{sT}")
    a(f"s_lshl_b32 s{sT+3}, s{sMT}, 4")
    a(f"s_add_u32 s{sT+3}, s{sT+3}, s{sJ}")
    a(f"s_lshl_b32 s{sT+3}, s{sT+3}, 2")
    a(f"s_add_u32 s{sT+3}, s{sT+3}, s{W}")
    a(f"s_lshl_b32 s{sT}, s{sT+3}, 12")
    a("v_lshlrev_b32 v94, 4, v0")
    a(f"v_add_u32 v95, s{sT}, v94")
    for r, n in ((sX, S*D*2), (sWQ, D*3*D*2), (sWS, WS_USED), (sWR, D*2), (sDBG, 256), (sWG, D*F*2), (sWU, D*F*2),
                 (sWD, D*F*2), (sWO, D*D*2), (sOUT, S*D*2)):
        a(f"s_mov_b32 s{r+2}, {n:#x}")
        a(f"s_mov_b32 s{r+3}, 0x00020000")

def phaseA_loader(a, name, cold, opt):
    vm = VM(a)
    LW, XB_, WB_, SX, SW = 48, 49, 50, 51, 52
    a(f"s_sub_u32 s{LW}, s{W}, 4")
    a("v_lshrrev_b32 v16, 3, v0")
    a("v_and_b32 v17, 7, v0")
    a(f"s_lshl_b32 s{sT}, s{sMT}, 7")
    a(f"s_lshl_b32 s{sT+1}, s{LW}, 5")
    a(f"s_add_u32 s{sT}, s{sT}, s{sT+1}")
    a(f"v_add_u32 v18, s{sT}, v16")
    a("v_lshlrev_b32 v18, 11, v18")
    a("v_lshrrev_b32 v19, 1, v16")
    a("v_xor_b32 v20, v19, v17")
    a("v_lshl_add_u32 v1, v20, 4, v18")
    a("v_xor_b32 v20, 4, v20")
    a("v_lshl_add_u32 v2, v20, 4, v18")
    a(f"v_add_u32 v2, {8*2048}, v2")
    a(f"v_add_u32 v3, {16*2048}, v1")
    a(f"v_add_u32 v4, {16*2048}, v2")
    a(f"s_lshl_b32 s{sT}, s{LW}, 4")
    a(f"v_add_u32 v18, s{sT}, v16")
    a("v_mul_u32_u24 v18, 6144, v18")
    a(f"s_lshl_b32 s{sT}, s{sJ}, 7")
    a(f"v_add_u32 v18, s{sT}, v18")
    a("v_bfe_u32 v19, v0, 4, 1")
    a("v_lshlrev_b32 v19, 1, v19")
    a("v_xor_b32 v19, v19, v17")
    a("v_lshl_add_u32 v5, v19, 4, v18")
    a("v_xor_b32 v19, 4, v19")
    a("v_lshl_add_u32 v6, v19, 4, v18")
    a(f"v_add_u32 v6, {8*6144}, v6")
    a(f"s_lshl_b32 s{XB_}, s{LW}, 12")
    a(f"s_lshl_b32 s{WB_}, s{LW}, 11")
    KR = 56
    a(f"s_and_b32 s{KR}, s{sJ}, 3")
    a(f"s_lshl_b32 s{KR}, s{KR}, 2")
    a(f"s_add_u32 s{KR}, s{KR}, s{sMT}")
    def issue(kt, atoms=()):
        slot = (kt % 3) * SLOT
        atoms = list(atoms)
        a(f"s_and_b32 s{KR}, s{KR}, 15")
        a(f"s_lshl_b32 s{SX}, s{KR}, 7")
        a(f"s_mul_i32 s{SW}, s{KR}, {64*6144}")
        a(f"s_add_u32 s{SW+1}, s{SW}, 2048")
        a(f"s_add_u32 s{SW+2}, s{SW}, 4096")
        a(f"s_add_u32 s{KR}, s{KR}, 1")
        d = [(f"s_add_u32 m0, s{XB_}, {slot + i*1024}", f"buffer_load_dwordx4 v{1+i}, {srd(sX)}, s{SX} offen lds") for i in range(4)]
        d += [(f"s_add_u32 m0, s{WB_}, {slot + WOFF + seg*8192 + i*1024}", f"buffer_load_dwordx4 v{5+i}, {srd(sWQ)}, s{SW+seg} offen lds")
              for seg in range(3) for i in range(2)]
        k = 0
        for i, (m, ld) in enumerate(d):
            a(m); a("s_nop 0"); a(ld)
            vm.issue(f"T{kt}")
            k2 = (i + 1) * len(atoms) // len(d)
            for at in atoms[k:k2]: at()
            k = k2
    a("s_waitcnt lgkmcnt(0)")
    a.stamp(4)
    issue(0); issue(1); issue(2)
    a.stamp(5)
    a("v_lshrrev_b32 v16, 4, v0")
    a("v_bfe_u32 v17, v0, 2, 2")
    a("v_lshl_add_u32 v17, v16, 3, v17")
    a("v_lshlrev_b32 v17, 7, v17")
    a("v_and_b32 v18, 3, v0")
    a("v_lshl_add_u32 v17, v18, 3, v17")
    a("v_and_b32 v16, 1, v16")
    a("v_lshlrev_b32 v16, 1, v16")
    a("v_bfe_u32 v18, v0, 3, 1")
    a("v_or_b32 v16, v16, v18")
    a(f"s_and_b32 s{sT}, s{LW}, 1")
    a(f"s_lshl_b32 s{sT}, s{sT}, 1")
    a(f"v_xor_b32 v16, s{sT}, v16")
    a("v_lshl_add_u32 v17, v16, 5, v17")
    a(f"s_lshr_b32 s{sT}, s{LW}, 1")
    a(f"s_lshl_b32 s{sT}, s{sT}, 12")
    a(f"s_add_u32 s{sT}, s{sT}, {WOFF}")
    a(f"v_add_u32 v10, s{sT}, v17")
    a("v_xor_b32 v11, 32, v10")
    for c in range(6): a(f"v_mov_b32 v{60+c}, 0")
    a("v_mov_b32 v16, 0\nv_mov_b32 v17, 0\nv_mov_b32 v18, 0\nv_mov_b32 v19, 0")
    a(f"v_add_u32 v20, {L_CS}, v94")
    a("ds_write_b128 v20, v[16:19]")
    a("ds_write_b128 v20, v[16:19] offset:1024")
    ONES = 55
    a(f"s_mov_b32 s{ONES}, 0x3f803f80")
    if opt.get("lprio", 1): a(f"s_setprio {opt.get('lprio', 1)}")
    KEY, TT, CAND = 28, 36, 44
    ST = sT
    keys = list(range(KEY, KEY+8))
    XR, XST = XSEL_RAW, XSEL_ST
    a("s_waitcnt lgkmcnt(0)")
    vm.wait("T0")
    a("s_barrier")
    a.stamp(1)
    P0 = opt.get("p0", 7)
    def lines(fn):
        tmp = Asm(); tmp.uid = a.uid; fn(tmp); a.uid = tmp.uid
        out, grp = [], None
        for l in tmp.lines:
            s_ = l.strip()
            if grp is not None:
                grp.append(s_)
                if s_ == "s_mov_b64 exec, -1": out.append(grp); grp = None
            elif ("exec," in s_ and s_ != "s_mov_b64 exec, -1") or "saveexec" in s_: grp = [s_]
            else: out.append([s_])
        assert grp is None
        return [(lambda g=g: a(*g)) for g in out]
    def cs_load(i):
        def f():
            a(f"s_mul_i32 s{sT+2}, s{sJ}, {32*768}")
            a(f"s_mul_i32 s{sT+3}, s{LW}, 192")
            a(f"s_add_u32 s{sT+2}, s{sT+2}, s{sT+3}")
            a(f"s_add_u32 s{sT+2}, s{sT+2}, {WS_CSP + (i//4)*4*768}")
            a(f"buffer_load_dwordx4 {vr(60+4*i,4)}, v51, {srd(sWS)}, s{sT+2} offen offset:{(i%4)*768} sc1")
            vm.issue("csl")
        return f
    for kt in range(16):
        atoms = []
        if kt == 0:
            a(f"s_cmp_lg_u32 s{W}, 4")
            a(f"s_cbranch_scc1 {name}_nopub")
            publish_stats(a, vm, 96)
            a.label(f"{name}_nopub")
            for c in range(6):
                for t_ in range(2):
                    a(f"ds_read_b64_tr_b16 {vr(68+4*c+2*t_,2)}, v{10+(c&1)} offset:{(c>>1)*8192+t_*512}")
            for hf in range(2):
                a(f"s_waitcnt lgkmcnt({6-6*hf})")
                for q in range(4):
                    for c in range(3*hf, 3*hf+3):
                        a(f"v_dot2c_f32_bf16 v{60+c}, s{ONES}, v{68+4*c+q}")
            a("s_nop 2")
            a("v_permlane32_swap_b32 v60, v62")
            a("v_permlane32_swap_b32 v61, v63")
            a("v_permlane16_swap_b32 v64, v65")
            a("v_add_f32 v60, v60, v62")
            a("v_add_f32 v61, v61, v63")
            a("v_add_f32 v64, v64, v65")
            a("s_nop 0")
            a("v_mov_b32 v65, v64")
            a("v_permlane16_swap_b32 v60, v61")
            a("s_nop 0")
            a("v_permlane32_swap_b32 v64, v65")
            a("v_add_f32 v60, v60, v61")
            a("v_add_f32 v64, v64, v65")
            a(f"s_lshl_b32 s{sT}, s{sJ}, 4")
            a(f"s_add_u32 s{sT}, s{sT}, s{sMT}")
            a(f"s_lshl_b32 s{sT}, s{sT}, 2")
            a(f"s_add_u32 s{sT}, s{sT}, s{LW}")
            a(f"s_mul_i32 s{sT}, s{sT}, 384")
            a(f"s_add_u32 s{sT}, s{sT}, {WS_CSP}")
            a("v_lshlrev_b32 v47, 2, v0")
            a(f"buffer_store_dword v60, v47, {srd(sWS)}, s{sT} offen sc1")
            a("s_bfm_b64 exec, 32, 0")
            a(f"buffer_store_dword v64, v47, {srd(sWS)}, s{sT} offen offset:256 sc1")
            a("s_mov_b64 exec, -1")
            vm.issue("cs", 2)
        if kt == 2:
            a(f"s_cmp_lg_u32 s{W}, 4")
            a(f"s_cbranch_scc1 {name}_nosig")
            a(f"s_lshl_b32 s{sT}, s{sMT}, 4")
            a(f"v_mov_b32 v45, s{sT}")
            a("v_mov_b32 v46, 1")
            a("s_mov_b64 exec, 1")
            a(f"buffer_atomic_add v46, v45, {srd(sDBG)}, 0 offen sc1")
            a("s_mov_b64 exec, -1")
            a.label(f"{name}_nosig")
            vm.issue("sig", 1, cond=True)
        if kt == P0:
            a("v_and_b32 v45, 15, v0")
            a("v_lshlrev_b32 v45, 4, v45")
            a(f"buffer_load_dword v46, v45, {srd(sDBG)}, 0 offen sc1")
            vm.issue("poll")
        if kt == P0 + 1:
            poll_check(a, f"{name}_p1", 46, 45, sDBG, 16, -1, cold)
            a(f"s_lshl_b32 s{sT}, s{LW}, 11")
            a(f"s_add_u32 s{sT}, s{sT}, {WS_R}")
            a(f"buffer_load_dwordx4 {vr(KEY,4)}, v94, {srd(sWS)}, s{sT} offen sc1")
            a(f"buffer_load_dwordx4 {vr(KEY+4,4)}, v94, {srd(sWS)}, s{sT} offen offset:1024 sc1")
            a(f"s_lshl_b32 s{sT}, s{sMT}, 11")
            a(f"s_and_b32 s{sT+1}, s{LW}, 1")
            a(f"s_lshl_b32 s{sT+1}, s{sT+1}, 10")
            a(f"s_add_u32 s{sT}, s{sT}, s{sT+1}")
            a(f"s_add_u32 s{sT}, s{sT}, {WS_ST}")
            a("v_lshrrev_b32 v47, 3, v0")
            a("v_lshlrev_b32 v47, 7, v47")
            a("v_and_b32 v48, 7, v0")
            a("v_lshl_add_u32 v47, v48, 2, v47")
            a(f"buffer_load_dword v48, v47, {srd(sWS)}, s{sT} offen sc1")
            a(f"buffer_load_dword v49, v47, {srd(sWS)}, s{sT} offen offset:32 sc1")
            vm.issue("side", 4)
            def f(o):
                o("v_and_b32 v51, 15, v0")
                o("v_cmp_gt_u32 vcc, 12, v51")
                o("v_lshlrev_b32 v51, 4, v51")
                o("v_lshrrev_b32 v50, 4, v0")
                o("v_mul_u32_u24 v50, 8*768, v50")
                o("v_add_u32 v51, v51, v50")
                o("v_mov_b32 v50, 0x7fff0000")
                o("v_cndmask_b32 v51, v50, v51, vcc")
            atoms += lines(f)
        if P0 + 2 <= kt <= P0 + 5:
            i0 = 2*(kt - P0 - 2)
            atoms += [cs_load(i0), cs_load(i0+1)]
        if kt == P0 + 2:
            def f(o):
                o(f"s_and_b32 s{sT}, s{LW}, 1")
                o(f"s_lshl_b32 s{sT}, s{sT}, 8")
                o(f"s_add_u32 s{sT}, s{sT}, {L_M}")
                o("v_lshlrev_b32 v47, 2, v0")
                o(f"v_add_u32 v47, s{sT}, v47")
                o("ds_write_b32 v47, v48")
                o("ds_write_b32 v47, v49 offset:512")
                o(f"s_lshl_b32 s{sT}, s{LW}, 9")
                o("v_lshlrev_b32 v47, 2, v0")
                o(f"v_add_u32 v47, s{sT}, v47")
                make_keys(o, KEY, TT, 47, [0, 1, 2, 3, 256, 257, 258, 259])
                o(f"v_mov_b32 v{CAND}, 0")
                top8_round(o, keys, TT, CAND, ST, 0)
            atoms += lines(f)
        if kt == P0 + 3: atoms += lines(lambda o: [top8_round(o, keys, TT, CAND, ST, r) for r in (1, 2)])
        if kt == P0 + 4: atoms += lines(lambda o: [top8_round(o, keys, TT, CAND, ST, r) for r in (3, 4, 5)])
        if kt == P0 + 5:
            def f(o):
                for r in (6, 7): top8_round(o, keys, TT, CAND, ST, r)
                o(f"s_lshl_b32 s{sT}, s{LW}, 5")
                o(f"s_add_u32 s{sT}, s{sT}, {L_CAND}")
                o("v_lshlrev_b32 v47, 2, v0")
                o(f"v_add_u32 v47, s{sT}, v47")
                o("s_mov_b64 exec, 0xff")
                o(f"ds_write_b32 v47, v{CAND}")
                o("s_mov_b64 exec, -1")
            atoms += lines(f)
        if kt == P0 + 6:
            def f(o):
                o("v_and_b32 v47, 31, v0")
                o("v_lshlrev_b32 v47, 2, v47")
                o(f"v_add_u32 v47, {L_CAND}, v47")
                o(f"ds_read_b32 v{KEY}, v47")
                o("v_cmp_gt_u32 vcc, 32, v0")
                o("s_waitcnt lgkmcnt(0)")
                o(f"v_cndmask_b32 v{KEY}, 0, v{KEY}, vcc")
                for r in range(4): top8_round(o, [KEY], TT, CAND, ST, r)
            atoms += lines(f)
        if kt == P0 + 7:
            def f(o):
                for r in range(4, 8): top8_round(o, [KEY], TT, CAND, ST, r)
                decode_keys(o, CAND, 48, 49, TT)
                o("v_lshlrev_b32 v47, 2, v0")
                o(f"v_add_u32 v47, {L_IDX}, v47")
                o("s_mov_b64 exec, 0xff")
                o("ds_write_b32 v47, v48")
                o("ds_write_b32 v47, v49 offset:32")
                o("s_mov_b64 exec, -1")
            atoms += lines(f)
        if kt == 15:
            for i in range(2):
                a(f"s_lshl_b32 s{sT}, s{LW}, 1")
                a(f"s_add_u32 s{sT}, s{sT}, {i}")
                a(f"v_readlane_b32 s{sT}, v48, s{sT}")
                a("s_nop 3")
                a(f"s_lshl_b32 s{sT+1}, s{sT}, 11")
                a(f"buffer_load_dwordx4 {vr(XR+8*i,4)}, v94, {srd(sX)}, s{sT+1} offen")
                a(f"buffer_load_dwordx4 {vr(XR+8*i+4,4)}, v94, {srd(sX)}, s{sT+1} offen offset:1024")
                a(f"s_lshr_b32 s{sT+1}, s{sT}, 3")
                a(f"s_lshl_b32 s{sT+1}, s{sT+1}, 5")
                a(f"s_and_b32 s{sT}, s{sT}, 7")
                a(f"s_add_u32 s{sT}, s{sT}, s{sT+1}")
                a(f"s_lshl_b32 s{sT}, s{sT}, 2")
                a(f"s_add_u32 s{sT}, s{sT}, {WS_ST}")
                a(f"v_mov_b32 v50, s{sT}")
                a(f"buffer_load_dword v{XST+2*i}, v50, {srd(sWS)}, 0 offen sc1")
                a(f"buffer_load_dword v{XST+2*i+1}, v50, {srd(sWS)}, 0 offen offset:32 sc1")
            vm.issue("xsel", 8)
            vm.wait("csl")
            for i in range(1, 8):
                for r in range(4): a(f"v_add_f32 v{60+r}, v{60+r}, v{60+4*i+r}")
            a("s_nop 1")
            a("v_permlane32_swap_b32 v60, v62")
            a("v_permlane32_swap_b32 v61, v63")
            a("v_add_f32 v60, v60, v62")
            a("v_add_f32 v61, v61, v63")
            a("s_nop 1")
            a("v_permlane16_swap_b32 v60, v61")
            a("v_add_f32 v60, v60, v61")
            a("v_and_b32 v47, 15, v0")
            a("v_cmp_gt_u32 vcc, 12, v47")
            a("v_lshlrev_b32 v47, 4, v47")
            a("v_lshrrev_b32 v50, 4, v0")
            a("v_lshl_add_u32 v47, v50, 2, v47")
            a(f"s_mul_i32 s{sT}, s{LW}, 192")
            a(f"s_add_u32 s{sT}, s{sT}, {L_CS}")
            a(f"v_add_u32 v47, s{sT}, v47")
            a("s_and_saveexec_b64 s[66:67], vcc")
            a("ds_write_b32 v47, v60")
            a("s_mov_b64 exec, -1")
        if 1 <= kt <= 13: issue(kt+2, atoms)
        else:
            for at in atoms: at()
        a("s_waitcnt lgkmcnt(0)")
        a.trace(3*kt+1)
        if kt < 15: vm.wait(f"T{kt+1}", "poll", "side", *(["cs", "st"] if kt == 1 else []))
        a.trace(3*kt+2)
        a("s_barrier")
        a.trace(3*kt+3)
    return vm

ACC, B0 = 96, 8
def accreg(ct, tt): return ACC + 16*ct + 4*tt

def phaseA_consumer(a, name, cold, opt):
    vm = VM(a)
    XA, WA = 1, 3
    a("s_waitcnt lgkmcnt(0)")
    a.stamp(4)
    for q in range(4):
        a(f"buffer_load_dwordx4 {vr(96+4*q,4)}, v95, {srd(sX)}, 0 offen offset:{q*1024}")
    for q in range(2):
        a(f"buffer_load_dwordx4 {vr(112+4*q,4)}, v94, {srd(sWR)}, 0 offen offset:{q*1024}")
    vm.issue("lnld", 6)
    WM, WN = 52, 53
    a(f"s_lshr_b32 s{WM}, s{W}, 1")
    a(f"s_and_b32 s{WN}, s{W}, 1")
    a("v_and_b32 v8, 15, v0")
    a("v_lshrrev_b32 v9, 4, v0")
    a(f"s_lshl_b32 s{sT}, s{WM}, 6")
    a(f"v_add_u32 v10, s{sT}, v8")
    a("v_lshlrev_b32 v10, 7, v10")
    a("v_bfe_u32 v11, v0, 1, 3")
    a("v_xor_b32 v11, v11, v9")
    a(f"v_lshl_add_u32 v{XA}, v11, 4, v10")
    a(f"v_xor_b32 v{XA+1}, 64, v{XA}")
    a("v_bfe_u32 v10, v0, 2, 2")
    a("v_lshl_add_u32 v10, v9, 3, v10")
    a("v_lshlrev_b32 v10, 7, v10")
    a("v_and_b32 v11, 3, v0")
    a("v_lshl_add_u32 v10, v11, 3, v10")
    a("v_and_b32 v11, 1, v9")
    a("v_lshlrev_b32 v11, 1, v11")
    a("v_bfe_u32 v12, v0, 3, 1")
    a("v_or_b32 v11, v11, v12")
    a(f"s_lshl_b32 s{sT}, s{WN}, 1")
    a(f"v_xor_b32 v11, s{sT}, v11")
    a("v_lshl_add_u32 v10, v11, 5, v10")
    a(f"v_add_u32 v{WA}, {WOFF}, v10")
    a(f"v_xor_b32 v{WA+1}, 32, v{WA}")
    a.stamp(5)
    vm.wait("lnld")
    a.stamp(6)
    assert WS_XN == 0
    ln_rows2(a, vm, 96, 112, 120, 152, 95, opt.get("dbg"))
    for r in range(96): a(f"v_mov_b32 v{ACC+r}, 0")
    def reads(buf, ks):
        b = B0 + 40*buf
        xr = [f"ds_read_b128 {vr(b+4*tt,4)}, v{XA+ks} offset:{tt*2048}" for tt in range(4)]
        wr = [f"ds_read_b64_tr_b16 {vr(b+16+4*ct+2*t,2)}, v{WA+(ct&1)} offset:{(ct>>1)*8192+ks*4096+t*512}" for ct in range(6) for t in range(2)]
        return [xr[0]] + wr[0:2] + xr[1:4] + wr[2:]
    def mfmas(buf):
        b = B0 + 40*buf
        o = []
        for ct in range(6):
            for tt in range(4):
                x = vr(b+4*tt, 4); w = vr(b+16+4*ct, 4)
                A, B = (w, x) if ct < 4 else (x, w)
                o.append(f"v_mfma_f32_16x16x32_bf16 {vr(accreg(ct,tt),4)}, {A}, {B}, {vr(accreg(ct,tt),4)}")
        return o
    KT, SI, DL, NEG = 48, 49, 50, 51
    a(f"s_mov_b32 s{KT}, 0")
    a(f"s_mov_b32 s{SI}, 0")
    a(f"s_mov_b32 s{NEG}, {(-2*SLOT) & 0xffffffff:#x}")
    a("s_waitcnt lgkmcnt(0)")
    a("s_barrier")
    a.stamp(1); a.cstamp(7)
    a(*reads(0, 0))
    a(".p2align 6")
    a.label(f"{name}_cloop")
    per = opt.get("rpg", 1)
    def weave(m, r, extra):
        i = 0
        for k, x in enumerate(m):
            a(x)
            a(*r[i:i+per]); i += per
            if i - per >= len(r) and extra: a(extra.pop(0))
    m = mfmas(0); r = reads(1, 1)
    a(f"s_add_u32 s{SI}, s{SI}, 1")
    a(f"s_cmp_eq_u32 s{SI}, 3")
    a(f"s_cselect_b32 s{DL}, s{NEG}, {SLOT}")
    a(f"s_cselect_b32 s{SI}, 0, s{SI}")
    a("s_waitcnt lgkmcnt(0)")
    weave(m, r, [f"v_add_u32 v{q}, s{DL}, v{q}" for q in (1, 2, 3, 4)])
    m = mfmas(1); r = reads(0, 0)
    a("s_waitcnt lgkmcnt(0)")
    a(m[0])
    a("s_barrier")
    weave(m[1:], r, [f"s_add_u32 s{KT}, s{KT}, 1", f"s_cmp_lt_u32 s{KT}, 16"])
    a(f"s_cbranch_scc1 {name}_cloop")
    vm.q = []
    a.stamp(2); a.cstamp(8)
    MR, CSQ, MV, RV, CSV, QR, AD, PK = 8, 16, 32, 48, 64, 66, 74, 78
    a("s_waitcnt lgkmcnt(0)")
    a("v_and_b32 v1, 15, v0")
    a("v_lshrrev_b32 v2, 4, v0")
    a(f"s_lshl_b32 s{sT}, s{WM}, 8")
    a(f"s_add_u32 s{sT}, s{sT}, {L_M}")
    a(f"s_mul_i32 s{sT+1}, s{WN}, 384")
    a(f"s_add_u32 s{sT+1}, s{sT+1}, {L_CS}")
    a("v_lshlrev_b32 v3, 2, v1")
    a(f"v_add_u32 v4, s{sT}, v3")
    for tt in range(4):
        a(f"ds_read_b32 v{MR+2*tt}, v4 offset:{tt*64}")
        a(f"ds_read_b32 v{MR+2*tt+1}, v4 offset:{tt*64+512}")
    a("v_lshlrev_b32 v5, 4, v2")
    a(f"v_add_u32 v6, s{sT+1}, v5")
    for ct in range(4): a(f"ds_read_b128 {vr(CSQ+4*ct,4)}, v6 offset:{ct*64}")
    a(f"v_add_u32 v6, s{sT}, v5")
    a(f"v_add_u32 v3, s{sT+1}, v3")
    a(f"ds_read_b32 v{CSV}, v3 offset:256")
    a(f"ds_read_b32 v{CSV+1}, v3 offset:320")
    for tt in range(4):
        a(f"ds_read_b128 {vr(MV+4*tt,4)}, v6 offset:{tt*64}")
        a(f"ds_read_b128 {vr(RV+4*tt,4)}, v6 offset:{tt*64+512}")
    a("v_lshrrev_b32 v3, 1, v2")
    a("v_and_b32 v4, 1, v2")
    a("v_lshl_add_u32 v5, v3, 5, v1")
    a("v_lshlrev_b32 v5, 4, v5")
    a("v_lshl_add_u32 v5, v4, 3, v5")
    a("v_lshl_add_u32 v6, v4, 5, v1")
    a("v_lshlrev_b32 v6, 4, v6")
    a("v_lshl_add_u32 v6, v3, 3, v6")
    a(f"s_lshl_b32 s{sT}, s{WN}, 1")
    a(f"s_add_u32 s{sT}, s{sT}, s{WM}")
    a(f"s_lshl_b32 s{sT}, s{sT}, 13")
    a(f"v_add_u32 v{AD}, s{sT}, v5")
    a(f"v_add_u32 v{AD+1}, s{sT}, v6")
    a(f"s_lshr_b32 s{sT}, s{sT}, 1")
    a(f"s_add_u32 s{sT}, s{sT}, {L_Q}")
    a(f"v_add_u32 v{AD+2}, s{sT}, v5")
    a(f"s_mov_b32 s{sT+1}, {QSCALE:#x}")
    a("s_waitcnt lgkmcnt(10)")
    for tt in range(4):
        a(f"v_mul_f32 v{QR+2*tt+1}, s{sT+1}, v{MR+2*tt+1}")
    n = 0
    def fin(ct, tt):
        nonlocal n
        r = accreg(ct, tt)
        p = PK + 2*(n % 4); n += 1
        for hf in range(2):
            pr = vr(r+2*hf, 2)
            if ct < 4:
                a(f"v_pk_fma_f32 {pr}, {vr(CSQ+4*ct+2*hf,2)}, {vr(MR+2*tt,2)}, {pr} op_sel_hi:[1,0,1] neg_lo:[0,1,0] neg_hi:[0,1,0]")
                sc = QR if ct < 2 else MR
                a(f"v_pk_mul_f32 {pr}, {pr}, {vr(sc+2*tt,2)} op_sel:[0,1] op_sel_hi:[1,1]")
            else:
                sel = "op_sel_hi:[1,0,1]" if ct == 4 else "op_sel:[0,1,0] op_sel_hi:[1,1,1]"
                a(f"v_pk_fma_f32 {pr}, {vr(MV+4*tt+2*hf,2)}, {vr(CSV,2)}, {pr} {sel} neg_lo:[0,1,0] neg_hi:[0,1,0]")
                a(f"v_pk_mul_f32 {pr}, {pr}, {vr(RV+4*tt+2*hf,2)}")
            a(f"v_cvt_pk_bf16_f32 v{p+hf}, v{r+2*hf}, v{r+2*hf+1}")
        if ct < 2:   a(f"ds_write_b64 v{AD+2}, {vr(p,2)} offset:{(tt>>1)*2048 + ct*1024 + (tt&1)*256}")
        elif ct < 4: a(f"ds_write_b64 v{AD}, {vr(p,2)} offset:{(tt>>1)*4096 + (ct-2)*1024 + (tt&1)*256}")
        else:        a(f"ds_write_b64 v{AD+1}, {vr(p,2)} offset:{(tt>>1)*4096 + 2048 + (tt&1)*1024 + (ct-4)*256}")
    a("s_waitcnt lgkmcnt(0)")
    for ct in (2, 3, 4, 5, 0, 1):
        for tt in range(4): fin(ct, tt)
    a("s_waitcnt lgkmcnt(0)")
    return vm

def publish_kv(a, vm, R, opt):
    a(f"v_lshlrev_b32 v{R.VL}, 4, v0")
    a(f"s_lshl_b32 s{sT}, s{W}, 12")
    a(f"v_add_u32 v2, s{sT}, v{R.VL}")
    for q in range(4): a(f"ds_read_b128 {vr(R.S0+4*q,4)}, v2 offset:{q*1024}")
    a(f"s_and_b32 s{sT+1}, s{W}, 1")
    a(f"s_lshl_b32 s{sT+1}, s{sT+1}, 1")
    a(f"s_bfe_u32 s{sT+2}, s{W}, 0x10001")
    a(f"s_add_u32 s{sT+1}, s{sT+1}, s{sT+2}")
    a(f"s_lshl_b32 s{sT+1}, s{sT+1}, 12")
    a(f"s_add_u32 s{sT+1}, s{sT+1}, {L_Q}")
    a(f"v_add_u32 v3, s{sT+1}, v{R.VL}")
    for q in range(4): a(f"ds_read_b128 {vr(R.Q+4*q,4)}, v3 offset:{q*1024}")
    a(f"s_lshl_b32 s{sT+1}, s{sJ}, 1")
    a(f"s_lshr_b32 s{sT+2}, s{W}, 2")
    a(f"s_add_u32 s{sT+1}, s{sT+1}, s{sT+2}")
    a(f"s_lshl_b32 s{sT+1}, s{sT+1}, 6")
    a(f"s_lshl_b32 s{sT+2}, s{sMT}, 2")
    a(f"s_add_u32 s{sT+1}, s{sT+1}, s{sT+2}")
    a(f"s_and_b32 s{sT+2}, s{W}, 3")
    a(f"s_add_u32 s{sT+1}, s{sT+1}, s{sT+2}")
    a(f"s_lshl_b32 s{sT+1}, s{sT+1}, 12")
    a(f"s_add_u32 s{sT+1}, s{sT+1}, {WS_KV}")
    a("s_waitcnt lgkmcnt(4)")
    for q in range(4):
        a(f"buffer_store_dwordx4 {vr(R.S0+4*q,4)}, v{R.VL}, {srd(sWS)}, s{sT+1} offen offset:{q*1024} sc1")
    vm.issue("kvst", 4)
    if opt.get("dbg"):
        a("s_waitcnt lgkmcnt(0)")
        head_of(a, sT+1, sT+2)
        a(f"s_lshl_b32 s{sT+1}, s{sT+1}, 6")
        a(f"s_lshl_b32 s{sT+2}, s{sMT}, 2")
        a(f"s_add_u32 s{sT+1}, s{sT+1}, s{sT+2}")
        a(f"s_and_b32 s{sT+2}, s{W}, 2")
        a(f"s_add_u32 s{sT+1}, s{sT+1}, s{sT+2}")
        a(f"s_lshl_b32 s{sT+1}, s{sT+1}, 11")
        a(f"s_add_u32 s{sT+1}, s{sT+1}, {WS_Q}")
        for q in range(4):
            a(f"buffer_store_dwordx4 {vr(R.Q+4*q,4)}, v{R.VL}, {srd(sWS)}, s{sT+1} offen offset:{q*1024}")
        a(f"v_lshlrev_b32 v2, 2, v0")
        a(f"v_add_u32 v3, {L_IDX}, v2")
        a("s_mov_b64 exec, 0xffff")
        a("ds_read_b32 v131, v3")
        a("s_waitcnt lgkmcnt(0)")
        a(f"s_mov_b32 s{sT+1}, {WS_IDX}")
        a(f"buffer_store_dword v131, v2, {srd(sWS)}, s{sT+1} offen")
        a("s_mov_b64 exec, -1")
        vm.drain()

def gen_fused(name, **opt):
    a = Asm(); cold = []
    R = AT.AttnRegs
    prologue(a, name)
    a(f"s_cmp_ge_u32 s{W}, 4")
    a(f"s_cbranch_scc1 {name}_loader")
    phaseA_consumer(a, name, cold, opt)
    a(f"s_branch {name}_joinA")
    a.label(f"{name}_loader")
    phaseA_loader(a, name, cold, opt)
    a.stamp(2)
    a("s_setprio 0")
    a.label(f"{name}_joinA")
    a("s_barrier")
    a.stamp(3)
    vm = VM(a)
    publish_kv(a, vm, R, opt)
    if opt.get("stop") != "A":
        import fused_bc
        fused_bc.phaseB(a, name, cold, opt, vm)
        if opt.get("stop") != "B":
            fused_bc.phaseC(a, name, cold, opt, vm)
    a.stamp_dump(0, W)
    a.label(f"{name}_done")
    a("s_endpgm")
    for c in cold: a.lines += c.lines
    return kernel_header(name) + a.text() + kernel_desc(name, 256, 102)

def xsel_normalise(a, T):
    XR, XST, XF = XSEL_RAW, XSEL_ST, T + 2
    a(f"v_lshrrev_b32 v{T}, 2, v0")
    a(f"v_lshlrev_b32 v{T}, 9, v{T}")
    a(f"v_and_b32 v{T+1}, 3, v0")
    a(f"v_lshl_add_u32 v{T}, v{T+1}, 7, v{T}")
    a(f"s_lshl_b32 s{sT}, s{W}, 5")
    a(f"s_add_u32 s{sT}, s{sT}, {L_XS - 128}")
    a(f"v_add_u32 v{T}, s{sT}, v{T}")
    for i in range(2):
        for p in range(8):
            x = XR + 8*i + p
            f0, f1 = XF + 2*(p & 1), XF + 2*(p & 1) + 1
            a(f"v_lshlrev_b32 v{f0}, 16, v{x}")
            a(f"v_and_b32 v{f1}, 0xffff0000, v{x}")
            a(f"v_sub_f32 v{f0}, v{f0}, v{XST+2*i}")
            a(f"v_sub_f32 v{f1}, v{f1}, v{XST+2*i}")
            a(f"v_cvt_pk_bf16_f32 v{x}, v{f0}, v{f1}")
            a(f"v_lshlrev_b32 v{f0}, 16, v{x}")
            a(f"v_and_b32 v{f1}, 0xffff0000, v{x}")
            a(f"v_mul_f32 v{f0}, v{f0}, v{XST+2*i+1}")
            a(f"v_mul_f32 v{f1}, v{f1}, v{XST+2*i+1}")
            a(f"v_cvt_pk_bf16_f32 v{x}, v{f0}, v{f1}")
        a(f"ds_write_b128 v{T}, {vr(XR+8*i,4)} offset:{16*i}")
        a(f"ds_write_b128 v{T}, {vr(XR+8*i+4,4)} offset:{16*i+8192}")
```

```python
from asmlib import *
from layout import *
from fused import *
import fused as FU
from k_attn import M32, M16
import k_attn2 as AT
from k_attn2 import SM
from k_attn3 import Regs3
from k_moe import pi_row, round_bf16

L_S1, L_S2, L_EX = 32768, 98304, 98304
KH, HB, KA, KBK, VA, VBK, MASK, NEED, RET, S1O, HASJ, S2O, WOO, WOM = 48, 49, 50, 51, 52, 53, 54, 55, 56, 58, 59, 60, 61, 62
XSF, MACC, VD1, VD2, VP, VPA, VT = 220, 236, 244, 245, 246, 247, 248
WBF = 20

def unit(a, R, t, q, nb, hook=None, noqk=False):
    Sc, Sn = (R.S0, R.S1) if q == 0 else (R.S1, R.S0)
    P, Q, O, L = R.P, R.Q, R.O, R.L
    qn = 1 - q
    kn = t if q == 0 else t + 1
    vp = t - 1 if q == 0 else t
    K = R.KB + 8*(kn % nb); Vp = R.VB + 8*(vp % nb); Vc = R.VB + 8*(t % nb)
    e = lambda i: f"v_exp_f32 v{Sc+i}, v{Sc+i}"
    c = lambda i: f"v_cvt_pk_bf16_f32 v{P+i}, v{Sc+2*i}, v{Sc+2*i+1}"
    h = hook or (lambda pos: None)
    h("Ma")
    if not noqk: a(M32(Sn, K, Q+8*qn, None))
    h("Ma+"); a(e(0), e(1), e(2))
    h("Md"); a(M32(O+16*qn, Vp+4, P+4, O+16*qn)); h("Md+"); a(e(3), e(4), e(5))
    a(SM(L+4*qn, R.ONES, P, R.IDX), c(0), c(1), e(6), e(7))
    h("Mb")
    if not noqk: a(M32(Sn, K+4, Q+8*qn+4, Sn))
    h("Mb+"); a(c(2), c(3), e(8), e(9))
    h("Mc"); a(M32(O+16*q, Vc, P, O+16*q)); h("Mc+")
    a(e(10), e(11), c(4), e(12), c(5), e(13), e(14), e(15), c(6), c(7))

def flag_set(a, vm, saddr, v0_, v1_):
    a(f"v_mov_b32 v{v0_}, s{saddr}")
    a(f"v_mov_b32 v{v1_}, 1")
    a("s_mov_b64 exec, 1")
    a(f"buffer_store_dword v{v1_}, v{v0_}, {srd(sWS)}, 0 offen sc1")
    a("s_mov_b64 exec, -1")

def phaseB(a, name, cold, opt, vm):
    R = Regs3
    VL, Q, P, O, L, T = R.VL, R.Q, R.P, R.O, R.L, R.T
    NB, NT = 4, 32
    BAR = opt.get("bar", 8)
    moe = opt.get("moe", True)
    a(f"s_lshr_b32 s{KH}, s{W}, 2")
    a(f"s_and_b32 s{sT}, s{W}, 1")
    a(f"s_lshl_b32 s{sT}, s{sT}, 1")
    a(f"s_add_u32 s{sT}, s{sT}, s{KH}")
    a(f"s_lshl_b32 s{sT}, s{sT}, 13")
    a(f"v_add_u32 v2, s{sT}, v{VL}")
    for t in range(2):
        for hf in range(2):
            a(f"ds_read_b128 {vr(R.KB+8*t+4*hf,4)}, v2 offset:{t*4096+hf*1024}")
    for t in range(2):
        for hf in range(2):
            a(f"ds_read_b128 {vr(R.VB+8*t+4*hf,4)}, v2 offset:{t*4096+2048+hf*1024}")
    head_of(a, HB, sT)
    a(f"s_lshl_b32 s{sT+1}, s{HB}, 11")
    a(f"s_lshl_b32 s{HB}, s{HB}, 18")
    a(f"s_add_u32 s{HB}, s{HB}, {WS_KV}")
    a(f"s_add_u32 s{KBK}, s{sMT}, 1")
    a(f"s_and_b32 s{KBK}, s{KBK}, 15")
    a(f"s_lshl_b32 s{KBK}, s{KBK}, 14")
    a(f"s_mov_b32 s{VBK}, s{KBK}")
    a(f"s_lshl_b32 s{sT}, s{KH}, 13")
    a(f"s_add_u32 s{S1O}, s{HB}, s{sT}")
    KVB = 63
    a(f"s_mov_b32 s{KVB}, s{S1O}")
    a(f"v_bfe_u32 v{VPA}, v0, 1, 4")
    a(f"v_add_u32 v{VPA}, s{sMT}, v{VPA}")
    a(f"v_and_b32 v{VPA}, 15, v{VPA}")
    a(f"v_lshlrev_b32 v{VPA}, 7, v{VPA}")
    a(f"v_and_b32 v{VT}, 1, v0")
    a(f"v_lshl_add_u32 v{VPA}, v{VT}, 2, v{VPA}")
    a(f"s_lshl_b32 s{sT}, s{KH}, 3")
    a(f"s_add_u32 s{sT}, s{sT}, s{sT+1}")
    a(f"s_add_u32 s{sT}, s{sT}, {WS_KVF}")
    a(f"v_add_u32 v{VPA}, s{sT}, v{VPA}")
    a(f"s_mov_b32 s{MASK}, 0")
    if moe:
        a(f"s_cmp_lt_u32 s{sLI}, 28")
        a(f"s_cselect_b32 s{HASJ}, 1, 0")
        pi_row(a, VD2, 0, VT)
        a(f"v_and_b32 v{VT}, 1, v0")
        a(f"v_lshlrev_b32 v{VT}, 4, v{VT}")
        a(f"v_mul_u32_u24 v{VD1}, 7168, v{VD2}")
        a(f"v_add_u32 v{VD1}, v{VD1}, v{VT}")
        a(f"v_lshl_add_u32 v{VD2}, v{VD2}, 11, v{VT}")
        cg_of(a, S1O)
        a(f"s_lshl_b32 s{S1O}, s{S1O}, 5")
        a(f"s_mul_i32 s{sT}, s{W}, {128*7168}")
        a(f"s_add_u32 s{S1O}, s{S1O}, s{sT}")
        a(f"s_lshr_b32 s{S2O}, s2, 4")
        a(f"s_mul_i32 s{S2O}, s{S2O}, {224*2048}")
        a(f"s_and_b32 s{sT}, s2, 15")
        a(f"s_lshl_b32 s{sT}, s{sT}, 7")
        a(f"s_add_u32 s{S2O}, s{S2O}, s{sT}")
        a(f"s_and_b32 s{sT}, s{W}, 3")
        a(f"s_lshl_b32 s{sT}, s{sT}, 5")
        a(f"s_add_u32 s{S2O}, s{S2O}, s{sT}")
        a(f"s_lshl_b32 s{sT}, s{KH}, 18")
        a(f"s_add_u32 s{S2O}, s{S2O}, s{sT}")
    AT.attn_consts(a, R)
    for r in range(4): a(f"v_mov_b32 v{R.VB+8*3+4+r}, 0")
    a("s_waitcnt lgkmcnt(0)")
    a(M32(R.S0, R.KB, Q, None))
    a(M32(R.S0, R.KB+4, Q+4, R.S0))
    a("s_nop 10")

    c = Asm()
    c.label(f"{name}_kvspin")
    c(f"s_mov_b32 s{sT+11}, 0")
    c.label(f"{name}_kvagain")
    c(f"buffer_load_dword v{VP}, v{VPA}, {srd(sWS)}, 0 offen sc1")
    c(f"s_add_u32 s{sT+11}, s{sT+11}, 1")
    c(f"s_cmp_gt_u32 s{sT+11}, {SPIN_LIMIT}")
    c(f"s_cbranch_scc1 {name}_kvout")
    c("s_waitcnt vmcnt(0)")
    c(f"v_cmp_eq_u32 vcc, 1, v{VP}")
    c(f"s_mov_b32 s{MASK}, vcc_lo")
    c(f"s_and_b32 s{sT+10}, s{MASK}, s{NEED}")
    c(f"s_cmp_lg_u32 s{sT+10}, s{NEED}")
    c(f"s_cbranch_scc1 {name}_kvagain")
    c.label(f"{name}_kvout")
    c(f"s_setpc_b64 s[{RET}:{RET+1}]")
    cold.append(c)
    def need_block(i):
        lab = a.new_label(f"{name}_nb")
        a(f"s_mov_b32 s{NEED}, {(3 << (2*i)) & 0xffffffff:#x}")
        a(f"s_and_b32 s{sT+10}, s{MASK}, s{NEED}")
        a(f"s_cmp_eq_u32 s{sT+10}, s{NEED}")
        a(f"s_cbranch_scc1 {lab}")
        a(f"s_call_b64 s[{RET}:{RET+1}], {name}_kvspin")
        a.label(lab)
    def adv(sr_, sblk, t):
        if t & 1:
            a(f"s_add_u32 s{sr_}, s{sr_}, 4096")
        else:
            a(f"s_add_u32 s{sr_}, s{KVB}, s{sblk}")
            a(f"s_add_u32 s{sblk}, s{sblk}, 16384")
            a(f"s_and_b32 s{sblk}, s{sblk}, 0x3ffff")
    def ldK(t, half):
        if half == 0:
            if not (t & 1) and t > 4: need_block(t >> 1)
            adv(KA, KBK, t)
        a(f"buffer_load_dwordx4 {vr(R.KB+8*(t%NB)+4*half,4)}, v{VL}, {srd(sWS)}, s{KA} offen offset:{half*1024}")
        vm.issue(f"K{t}_{half}")
    def ldV(t, half):
        if half == 0: adv(VA, VBK, t)
        a(f"buffer_load_dwordx4 {vr(R.VB+8*(t%NB)+4*half,4)}, v{VL}, {srd(sWS)}, s{VA} offen offset:{2048+half*1024}")
        vm.issue(f"V{t}_{half}")

    def guarded(fn):
        lab = a.new_label(f"{name}_g")
        a(f"s_cmp_eq_u32 s{HASJ}, 0")
        a(f"s_cbranch_scc1 {lab}")
        fn()
        a.label(lab)
    def s1_dma(i):
        def f():
            a(f"s_lshl_b32 s{sT}, s{W}, 13")
            a(f"s_add_u32 m0, s{sT}, {L_S1 + i*1024}")
            a(f"s_add_u32 s{sT}, s{S1O}, {(i>>1)*32*7168}")
            a(f"buffer_load_dwordx4 v{VD1}, {srd(sWG if (i&1) == 0 else sWU)}, s{sT} offen lds")
            vm.issue("s1w", 1, cond=True)
        guarded(f)
    def s2_dma(i):
        a(f"s_lshl_b32 s{sT}, s{W}, 12")
        a(f"s_add_u32 m0, s{sT}, {L_S2 + i*1024}")
        a(f"s_add_u32 s{sT}, s{S2O}, {i*32*2048}")
        if i == 3:
            a(f"s_cmp_eq_u32 s{KH}, 0")
            a(f"s_cselect_b32 s{sT}, s{sT}, s{S2O}")
        a(f"buffer_load_dwordx4 v{VD2}, {srd(sWD)}, s{sT} offen lds")
        vm.issue("s2w")
    def s1_compute():
        def f():
            vm.copy().wait("s1w")
            a(f"v_and_b32 v{VT}, 7, v0")
            a(f"v_lshlrev_b32 v{VT}, 4, v{VT}")
            a(f"v_lshrrev_b32 v{VT+1}, 4, v0")
            a(f"v_lshl_add_u32 v{VT}, v{VT+1}, 7, v{VT}")
            a(f"s_lshl_b32 s{sT}, s{W}, 11")
            a(f"s_add_u32 s{sT}, s{sT}, {L_XS}")
            a(f"v_add_u32 v{VT}, s{sT}, v{VT}")
            for ks in range(4): a(f"ds_read_b128 {vr(XSF+4*ks,4)}, v{VT} offset:{ks*512}")
            a(f"s_lshl_b32 s{sT}, s{W}, 13")
            a(f"s_add_u32 s{sT}, s{sT}, {L_S1}")
            a(f"v_lshlrev_b32 v{VT+2}, 3, v0")
            a(f"v_add_u32 v{VT+2}, s{sT}, v{VT+2}")
            for pr in range(2):
                for i in range(4):
                    for t_ in range(2):
                        a(f"ds_read_b64_tr_b16 {vr(WBF+4*i+2*t_,2)}, v{VT+2} offset:{(4*pr+i)*1024+t_*512}")
                a("s_waitcnt lgkmcnt(0)")
                for i in range(4):
                    ks, m = 2*pr + (i >> 1), i & 1
                    cin = vr(MACC+4*m, 4) if ks else "0"
                    a(f"v_mfma_f32_16x16x32_bf16 {vr(MACC+4*m,4)}, {vr(XSF+4*ks,4)}, {vr(WBF+4*i,4)}, {cin}")
            a(f"v_lshlrev_b32 v{VT+1}, 8, v{VT+1}")
            a(f"v_and_b32 v{VT}, 15, v0")
            a(f"v_lshl_add_u32 v{VT}, v{VT}, 2, v{VT+1}")
            a(f"v_add_u32 v{VT}, {L_H}, v{VT}")
            a("s_nop 3")
            a("s_bfm_b64 exec, 32, 0")
            for m in range(2):
                for r in range(4): a(f"ds_add_f32 v{VT}, v{MACC+4*m+r} offset:{m*512+r*64}")
            a("s_mov_b64 exec, -1")
            a("s_waitcnt lgkmcnt(0)")
        guarded(f)
    def s1_final():
        lab = a.new_label(f"{name}_s1f")
        a(f"s_cmp_lg_u32 s{W}, 0")
        a(f"s_cbranch_scc1 {lab}")
        def f():
            a(f"v_lshlrev_b32 v{VT}, 3, v0")
            a(f"v_add_u32 v{VT}, {L_H}, v{VT}")
            a(f"ds_read_b64 {vr(MACC,2)}, v{VT}")
            a(f"ds_read_b64 {vr(MACC+2,2)}, v{VT} offset:512")
            a(f"v_lshrrev_b32 v{VT+1}, 3, v0")
            a(f"v_mul_u32_u24 v{VT+1}, 7168, v{VT+1}")
            a(f"v_and_b32 v{VT+2}, 7, v0")
            a(f"v_lshl_add_u32 v{VT+1}, v{VT+2}, 2, v{VT+1}")
            cg_of(a, sT)
            a(f"s_lshl_b32 s{sT}, s{sT}, 5")
            a(f"s_add_u32 s{sT}, s{sT}, {WS_H}")
            a("s_waitcnt lgkmcnt(0)")
            for r in range(2):
                round_bf16(a, MACC+r)
                silu_bf16(a, MACC+r, VT+2)
                round_bf16(a, MACC+r)
                round_bf16(a, MACC+2+r)
                a(f"v_mul_f32 v{MACC+r}, v{MACC+r}, v{MACC+2+r}")
            a(f"v_cvt_pk_bf16_f32 v{MACC}, v{MACC}, v{MACC+1}")
            a(f"buffer_store_dword v{MACC}, v{VT+1}, {srd(sWS)}, s{sT} offen sc1")
            vm.issue("hst", 1, cond=True)
        guarded(f)
        a.label(lab)
    def s1_flag():
        lab = a.new_label(f"{name}_s1g")
        a(f"s_cmp_lg_u32 s{W}, 0")
        a(f"s_cbranch_scc1 {lab}")
        def f():
            vm.copy().wait("hst")
            hf_addr(a, sT)
            flag_set(a, vm, sT, VT, VT+1)
            vm.issue("hfl", 1, cond=True)
        guarded(f)
        a.label(lab)
    def s2_poll():
        a(f"s_lshr_b32 s{sT}, s2, 4")
        a(f"s_mul_i32 s{sT}, s{sT}, {14*128}")
        a(f"s_add_u32 s{sT}, s{sT}, {WS_HF}")
        a(f"v_min_u32 v{VT+4}, 13, v0")
        a(f"v_lshlrev_b32 v{VT+4}, 7, v{VT+4}")
        a(f"v_add_u32 v{VT+4}, s{sT}, v{VT+4}")
        a(f"buffer_load_dword v{VT+5}, v{VT+4}, {srd(sWS)}, 0 offen sc1")
        vm.issue("hpoll")
    def s2_load():
        vm.wait("hpoll")
        poll_check(a, f"{name}_hp", VT+5, VT+4, sWS, 1, -1, cold)
        a(f"v_and_b32 v{VT}, 7, v0")
        a(f"v_mul_u32_u24 v{VT}, 7168, v{VT}")
        a(f"v_lshrrev_b32 v{VT+1}, 4, v0")
        a(f"v_lshl_add_u32 v{VT}, v{VT+1}, 4, v{VT}")
        a(f"s_lshr_b32 s{sT}, s2, 4")
        a(f"s_mul_i32 s{sT}, s{sT}, 448")
        a(f"s_lshl_b32 s{sT+1}, s{KH}, 8")
        a(f"s_add_u32 s{sT}, s{sT}, s{sT+1}")
        a(f"s_add_u32 s{sT}, s{sT}, {WS_H}")
        for ks in range(4):
            a(f"buffer_load_dwordx4 {vr(XSF+4*ks,4)}, v{VT}, {srd(sWS)}, s{sT} offen offset:{ks*64} sc1")
        vm.issue("hld", 4)
    def s2_compute():
        vm.wait("hld", "s2w")
        a(f"s_lshl_b32 s{sT}, s{W}, 12")
        a(f"s_add_u32 s{sT}, s{sT}, {L_S2}")
        a(f"v_lshlrev_b32 v{VT+2}, 3, v0")
        a(f"v_add_u32 v{VT+2}, s{sT}, v{VT+2}")
        for i in range(4):
            for t_ in range(2):
                a(f"ds_read_b64_tr_b16 {vr(WBF+4*i+2*t_,2)}, v{VT+2} offset:{i*1024+t_*512}")
        a(f"v_lshrrev_b32 v{VT}, 4, v0")
        a(f"v_lshlrev_b32 v{VT}, 14, v{VT}")
        a(f"v_and_b32 v{VT+1}, 15, v0")
        a(f"v_lshl_add_u32 v{VT}, v{VT+1}, 2, v{VT}")
        a(f"s_and_b32 s{sT}, s2, 15")
        a(f"s_lshl_b32 s{sT}, s{sT}, 8")
        a(f"s_and_b32 s{sT+1}, s{W}, 3")
        a(f"s_lshl_b32 s{sT+1}, s{sT+1}, 6")
        a(f"s_add_u32 s{sT}, s{sT}, s{sT+1}")
        a(f"s_add_u32 s{sT}, s{sT}, {WS_Y}")
        a(f"v_add_u32 v{VT}, s{sT}, v{VT}")
        a(f"s_cmp_lg_u32 s{KH}, 0")
        a("s_waitcnt lgkmcnt(0)")
        lab = a.new_label(f"{name}_s2k")
        for i in range(4):
            if i == 3: a(f"s_cbranch_scc1 {lab}")
            cin = vr(MACC, 4) if i else "0"
            a(f"v_mfma_f32_16x16x32_bf16 {vr(MACC,4)}, {vr(XSF+4*i,4)}, {vr(WBF+4*i,4)}, {cin}")
        a.label(lab)
        a("s_nop 7")
        a("s_bfm_b64 exec, 32, 0")
        for r in range(4):
            a(f"s_mov_b32 s{sT}, {r*4096}")
            a(f"buffer_atomic_add_f32 v{MACC+r}, v{VT}, {srd(sWS)}, s{sT} offen")
        a("s_mov_b64 exec, -1")
        vm.issue("yat", 4)
    def wo_setup():
        a(f"v_lshrrev_b32 v{VD1}, 3, v0")
        a(f"v_lshlrev_b32 v{VD1}, 11, v{VD1}")
        a(f"v_bfe_u32 v{VT}, v0, 4, 1")
        a(f"s_bfe_u32 s{sT}, s{W}, 0x10001")
        a(f"s_lshl_b32 s{sT}, s{sT}, 1")
        a(f"v_or_b32 v{VT}, s{sT}, v{VT}")
        a(f"v_lshlrev_b32 v{VT}, 1, v{VT}")
        a(f"v_and_b32 v{VT+1}, 7, v0")
        a(f"v_xor_b32 v{VT}, v{VT}, v{VT+1}")
        a(f"v_lshl_add_u32 v{VD1}, v{VT}, 4, v{VD1}")
        a(f"s_lshl_b32 s{WOO}, s{W}, 14")
        a(f"s_lshl_b32 s{sT}, s{sJ}, 7")
        a(f"s_add_u32 s{WOO}, s{WOO}, s{sT}")
        a(f"s_lshl_b32 s{WOM}, s{W}, 10")
    def wo_dma(i):
        a(f"s_add_u32 m0, s{WOM}, {i*8192}")
        a(f"s_add_u32 s{sT}, s{WOO}, {i*64*2048}")
        a(f"buffer_load_dwordx4 v{VD1}, {srd(sWO)}, s{sT} offen lds")
        vm.issue("wo")
    FU.wo_dma = wo_dma

    sched = {}
    def at(t, q, fn): sched.setdefault((t, q), []).append(fn)
    S1D = opt.get("s1d", 2)
    if moe:
        for i in range(8): at(S1D + i, 1, lambda i=i: s1_dma(i))
        for i in range(4): at(S1D + 8 + i, 1, lambda i=i: s2_dma(i))
        at(14, 0, s1_compute)
        at(16, 0, s1_final)
        at(19, 0, s1_flag)
        at(21, 1, s2_poll)
        at(23, 1, s2_load)
        at(26, 0, s2_compute)
    at(16, 1, wo_setup)
    for i in range(12): at(17 + i, 1, lambda i=i: wo_dma(i))

    def hooks(t, q):
        def h(pos):
            if t < 2: return
            if q == 0:
                if pos == "Mc": vm.wait(f"V{t}_0")
                if pos == "Ma+" and t + 3 < NT: ldV(t+3, 0)
                if pos == "Mb+" and t + 3 < NT: ldV(t+3, 1)
            else:
                if pos == "Ma": vm.wait(f"K{t+1}_1", f"V{t}_1")
                if pos == "Md+" and t + 4 < NT: ldK(t+4, 0)
                if pos == "Mc+" and t + 4 < NT: ldK(t+4, 1)
        return h
    def prio(t): a(f"s_setprio {3 - (t % BAR) * 4 // BAR}")
    prio(0)
    unit(a, R, 0, 0, NB); unit(a, R, 0, 1, NB)
    vm.wait("kvst")
    kvf_addr(a, sT, sT+1)
    flag_set(a, vm, sT, VT, VT+1)
    vm.issue("kvfl")
    a.stamp(4)
    prio(1)
    unit(a, R, 1, 0, NB); unit(a, R, 1, 1, NB, noqk=True)
    if moe:
        lab = a.new_label(f"{name}_xs")
        a(f"s_cmp_eq_u32 s{KH}, 0")
        a(f"s_cbranch_scc1 {lab}")
        xsel_normalise(a, VT)
        a("s_waitcnt lgkmcnt(0)")
        a.label(lab)
    a.stamp(5)
    a(f"s_mov_b32 s{NEED}, 0x3c")
    a(f"s_call_b64 s[{RET}:{RET+1}], {name}_kvspin")
    a.stamp(6)
    ldK(2, 0); ldK(2, 1); ldV(2, 0); ldV(2, 1); ldK(3, 0); ldK(3, 1); ldV(3, 0); ldV(3, 1)
    ldK(4, 0); ldK(4, 1); ldV(4, 0); ldV(4, 1); ldK(5, 0); ldK(5, 1)
    vm.wait("K2_1")
    a(M32(R.S0, R.KB+16, Q, None))
    a(M32(R.S0, R.KB+20, Q+4, R.S0))
    a("s_nop 10")
    for t in range(2, NT):
        prio(t)
        for q in range(2):
            for fn in sched.get((t, q), []): fn()
            unit(a, R, t, q, NB, hooks(t, q))
        if ((t % BAR) == BAR - 1 or t == 27) and t != NT - 1: a("s_barrier")
    a("s_setprio 0")
    a.stamp(7)
    a(M32(O+16, R.VB+8*((NT-1)%NB)+4, P+4, O+16))
    a(SM(L+4, R.ONES, P, R.IDX))
    vm.wait("yat")
    a("s_nop 7")
    a("s_nop 7")
    exchange_and_store(a, name, vm, R, opt)
    c = Asm()
    AT.attn_slow_path(c, R, name, KH, sWS, HB, s0=sT)
    cold.append(c)

def exchange_and_store(a, name, vm, R, opt):
    O, L, T, VL, P = R.O, R.L, R.T, R.VL, R.P
    a(f"v_add_f32 v{L}, v{L}, v{L+1}")
    a(f"v_add_f32 v{L+4}, v{L+4}, v{L+5}")
    a(f"s_mul_i32 s{sT}, s{W}, 4352")
    a(f"s_add_u32 s{sT}, s{sT}, {L_EX}")
    a(f"s_xor_b32 s{sT+1}, s{W}, 4")
    a(f"s_mul_i32 s{sT+1}, s{sT+1}, 4352")
    a(f"s_add_u32 s{sT+1}, s{sT+1}, {L_EX}")
    a(f"v_add_u32 v{T}, s{sT}, v{VL}")
    a(f"v_add_u32 v{T+1}, s{sT+1}, v{VL}")
    a(f"v_lshrrev_b32 v{T+2}, 2, v{VL}")
    a(f"v_add_u32 v{T+3}, s{sT+1}, v{T+2}")
    a(f"v_add_u32 v{T+2}, s{sT}, v{T+2}")
    a(f"s_cmp_eq_u32 s{KH}, 0")
    a(f"s_cbranch_scc1 {name}_kh0")
    for r in range(4): a(f"ds_write_b128 v{T}, {vr(O+4*r,4)} offset:{r*1024}")
    a(f"ds_write_b32 v{T+2}, v{L} offset:4096")
    a("s_waitcnt lgkmcnt(0)")
    for r in range(16): a(f"v_mov_b32 v{O+r}, v{O+16+r}")
    a(f"v_mov_b32 v{L}, v{L+4}")
    a(f"s_branch {name}_khj")
    a.label(f"{name}_kh0")
    for r in range(4): a(f"ds_write_b128 v{T}, {vr(O+16+4*r,4)} offset:{r*1024}")
    a(f"ds_write_b32 v{T+2}, v{L+4} offset:4096")
    a.label(f"{name}_khj")
    a("s_waitcnt lgkmcnt(0)")
    a("s_barrier")
    for r in range(4): a(f"ds_read_b128 {vr(O+16+4*r,4)}, v{T+1} offset:{r*1024}")
    a(f"ds_read_b32 v{L+4}, v{T+3} offset:4096")
    if opt.get("moe", True):
        lab = a.new_label(f"{name}_yf")
        a(f"s_cmp_lg_u32 s{W}, 0")
        a(f"s_cbranch_scc1 {lab}")
        yf_addr(a, sT, sT+1)
        flag_set(a, vm, sT, T+4, T+5)
        vm.issue("yfl", 1, cond=True)
        a.label(lab)
    otile(a, sT, sT+1)
    a(f"s_lshl_b32 s{sT}, s{sT}, 6")
    head_of(a, sT+1, sT+2)
    a(f"s_add_u32 s{sT}, s{sT}, s{sT+1}")
    a(f"s_lshl_b32 s{sT+4}, s{sT}, 10")
    a(f"s_add_u32 s{sT+4}, s{sT+4}, {WS_O}")
    a(f"v_bfe_u32 v{T+4}, v0, 4, 1")
    a(f"v_lshlrev_b32 v{T+4}, 15, v{T+4}")
    a(f"v_lshrrev_b32 v{T+5}, 5, v0")
    a(f"v_lshl_add_u32 v{T+4}, v{T+5}, 9, v{T+4}")
    a(f"v_and_b32 v{T+5}, 15, v0")
    a(f"v_lshl_add_u32 v{T+4}, v{T+5}, 4, v{T+4}")
    a("s_waitcnt lgkmcnt(0)")
    a("s_barrier")
    for r in range(16): a(f"v_add_f32 v{O+r}, v{O+r}, v{O+16+r}")
    a(f"v_add_f32 v{L}, v{L}, v{L+4}")
    a(f"v_mov_b32 v{T+1}, 0")
    for r in range(16): a(f"v_fmac_f32 v{T+1}, 0, v{O+r}")
    a(f"s_mov_b32 s{sT}, 0x2b800000")
    a(f"s_mov_b32 s{sT+1}, 0x5d800000")
    a(f"v_cmp_nle_f32 s[{sT+6}:{sT+7}], s{sT}, v{L}")
    a(f"v_cmp_nge_f32 s[{sT+8}:{sT+9}], s{sT+1}, v{L}")
    a(f"v_cmp_u_f32 vcc, v{T+1}, v{T+1}")
    a(f"s_or_b64 s[{sT+6}:{sT+7}], s[{sT+6}:{sT+7}], s[{sT+8}:{sT+9}]")
    a(f"s_or_b64 s[{sT+6}:{sT+7}], s[{sT+6}:{sT+7}], vcc")
    a(f"s_cmp_lg_u64 s[{sT+6}:{sT+7}], 0")
    a(f"s_cbranch_scc1 {name}_slow")
    a.label(f"{name}_fin")
    a(f"v_rcp_f32 v{T}, v{L}")
    a("s_nop 0")
    for jj in range(2):
        for e_ in range(4):
            r0 = O + 8*jj + 2*e_
            a(f"v_mul_f32 v{r0}, v{r0}, v{T}")
            a(f"v_mul_f32 v{r0+1}, v{r0+1}, v{T}")
            a(f"v_cvt_pk_bf16_f32 v{P+4*jj+e_}, v{r0}, v{r0+1}")
        a(f"buffer_store_dwordx4 {vr(P+4*jj,4)}, v{T+4}, {srd(sWS)}, s{sT+4} offen offset:{jj*256} sc1")
    vm.issue("ost", 2)

def phaseC(a, name, cold, opt, vm):
    ACC, WB, OB, XF, G = 4, 36, 68, 132, 148
    WA, VL2, VX, VPo, VPa, MS, T = 164, 168, 169, 170, 171, 172, 180
    XP = 196
    TT = 48
    sTT, sOA, sOB = 49, 50, 51
    moe = opt.get("moe", True)
    a(f"s_and_b32 s{sTT}, s{W}, 3")
    a(f"v_lshlrev_b32 v{VL2}, 4, v0")
    a(f"v_and_b32 v{T}, 15, v0")
    a(f"v_lshrrev_b32 v{T+1}, 4, v0")
    a(f"s_lshl_b32 s{sT}, s{sTT}, 5")
    a(f"v_add_u32 v{T+2}, s{sT}, v{T}")
    a(f"v_lshlrev_b32 v{T+3}, 2, v{T+2}")
    a(f"v_add_u32 v{T+3}, {L_M}, v{T+3}")
    for t16 in range(2):
        a(f"ds_read_b32 v{MS+2*t16}, v{T+3} offset:{t16*64}")
        a(f"ds_read_b32 v{MS+2*t16+1}, v{T+3} offset:{t16*64+512}")
    a(f"v_lshlrev_b32 v{T+3}, 2, v0")
    a(f"v_add_u32 v{T+3}, {L_IDX}, v{T+3}")
    a(f"ds_read_b32 v{T+4}, v{T+3}")
    a(f"s_lshl_b32 s{sT}, s{sMT}, 7")
    a(f"v_add_u32 v{T+2}, s{sT}, v{T+2}")
    a(f"v_lshlrev_b32 v{VX}, 11, v{T+2}")
    a(f"v_and_b32 v{T+5}, 1, v{T+1}")
    a(f"v_lshlrev_b32 v{T+5}, 5, v{T+5}")
    a(f"v_lshrrev_b32 v{T+6}, 1, v{T+1}")
    a(f"v_lshl_add_u32 v{T+5}, v{T+6}, 4, v{T+5}")
    a(f"s_lshl_b32 s{sT}, s{sJ}, 7")
    a(f"s_lshl_b32 s{sT+1}, s{KH}, 6")
    a(f"s_add_u32 s{sT}, s{sT}, s{sT+1}")
    a(f"v_add_u32 v{T+5}, s{sT}, v{T+5}")
    a(f"v_add_u32 v{VX}, v{VX}, v{T+5}")
    a(f"s_mov_b32 s{sOB}, 32768")
    a(f"buffer_load_dwordx4 {vr(XP,4)}, v{VX}, {srd(sX)}, 0 offen")
    a(f"buffer_load_dwordx4 {vr(XP+4,4)}, v{VX}, {srd(sX)}, s{sOB} offen")
    vm.issue("xc", 2)
    for i in range(12, 16): FU.wo_dma(i)
    a(f"s_lshl_b32 s{sT}, s{sMT}, 2")
    a(f"s_add_u32 s{sT}, s{sT}, s{sTT}")
    a(f"s_lshl_b32 s{sOA}, s{sT}, 16")
    a(f"s_lshl_b32 s{sT+1}, s{KH}, 14")
    a(f"s_add_u32 s{sOA}, s{sOA}, s{sT+1}")
    a(f"s_add_u32 s{sOA}, s{sOA}, {WS_O}")
    a(f"s_add_u32 s{sOB}, s{sOA}, 32768")
    a(f"s_lshl_b32 s{sT}, s{sT}, 1")
    a(f"s_add_u32 s{sT}, s{sT}, s{KH}")
    a(f"s_lshl_b32 s{sT}, s{sT}, 7")
    a(f"s_add_u32 s{sT}, s{sT}, {WS_OF}")
    a(f"v_lshlrev_b32 v{VPa}, 2, v{T}")
    a(f"v_add_u32 v{VPa}, s{sT}, v{VPa}")
    a(f"v_and_b32 v{T+6}, 1, v{T+1}")
    a(f"v_lshlrev_b32 v{T+7}, 4, v{T+6}")
    a(f"v_lshrrev_b32 v{T+8}, 1, v{T+1}")
    a(f"v_lshl_add_u32 v{T+7}, v{T+8}, 2, v{T+7}")
    a(f"v_bfe_u32 v{T+8}, v0, 2, 2")
    a(f"v_add_u32 v{T+7}, v{T+7}, v{T+8}")
    a(f"v_lshlrev_b32 v{T+7}, 7, v{T+7}")
    a(f"v_and_b32 v{T+8}, 3, v0")
    a(f"v_lshl_add_u32 v{T+7}, v{T+8}, 3, v{T+7}")
    a(f"v_lshlrev_b32 v{T+6}, 1, v{T+6}")
    a(f"v_bfe_u32 v{T+8}, v0, 3, 1")
    a(f"v_or_b32 v{T+6}, v{T+6}, v{T+8}")
    a(f"v_lshl_add_u32 v{T+7}, v{T+6}, 5, v{T+7}")
    a(f"s_lshl_b32 s{sT}, s{KH}, 16")
    a(f"v_add_u32 v{WA}, s{sT}, v{T+7}")
    for ct in range(1, 4): a(f"v_xor_b32 v{WA+ct}, {ct*32}, v{WA}")
    vm.wait("ost")
    of_addr(a, sT, sT+1)
    flag_set(a, vm, sT, T+6, T+7)
    vm.issue("ofl")
    a.stamp(8)
    a(f"buffer_load_dword v{VPo}, v{VPa}, {srd(sWS)}, 0 offen sc1")
    vm.issue("opoll")
    a("s_waitcnt lgkmcnt(0)")
    IDXS, WTS = 52, 64
    for i in range(8): a(f"v_readlane_b32 s{IDXS+i}, v{T+4}, {i}")
    for i in range(8): a(f"v_readlane_b32 s{WTS+i}, v{T+4}, {8+i}")
    vm.wait("xc")
    for t16 in range(2):
        for p in range(4):
            x0, x1 = XF + 8*t16 + 2*p, XF + 8*t16 + 2*p + 1
            g0, g1 = G + 8*t16 + 2*p, G + 8*t16 + 2*p + 1
            a(f"v_lshlrev_b32 v{x0}, 16, v{XP+4*t16+p}")
            a(f"v_and_b32 v{x1}, 0xffff0000, v{XP+4*t16+p}")
            a(f"v_sub_f32 v{g0}, v{x0}, v{MS+2*t16}")
            a(f"v_sub_f32 v{g1}, v{x1}, v{MS+2*t16}")
            a(f"v_cvt_pk_bf16_f32 v{T+6}, v{g0}, v{g1}")
            a(f"v_lshlrev_b32 v{g0}, 16, v{T+6}")
            a(f"v_and_b32 v{g1}, 0xffff0000, v{T+6}")
            a(f"v_mul_f32 v{g0}, v{g0}, v{MS+2*t16+1}")
            a(f"v_mul_f32 v{g1}, v{g1}, v{MS+2*t16+1}")
            a(f"v_cvt_pk_bf16_f32 v{T+6}, v{g0}, v{g1}")
            a(f"v_lshlrev_b32 v{g0}, 16, v{T+6}")
            a(f"v_and_b32 v{g1}, 0xffff0000, v{T+6}")
    if moe:
        SL, WT_ = T+8, T+10
        for t16 in range(2):
            a(f"v_mov_b32 v{SL+t16}, -1")
            a(f"v_mov_b32 v{WT_+t16}, 0")
            a(f"v_add_u32 v{T+7}, {16*t16}, v{T+2}")
            for i in range(8):
                a(f"v_cmp_eq_u32 vcc, s{IDXS+i}, v{T+7}")
                a(f"v_mov_b32 v{T+12}, {i}")
                a(f"v_mov_b32 v{T+13}, s{WTS+i}")
                a(f"v_cndmask_b32 v{SL+t16}, v{SL+t16}, v{T+12}, vcc")
                a(f"v_cndmask_b32 v{WT_+t16}, v{WT_+t16}, v{T+13}, vcc")
        a(f"v_max_i32 v{T+7}, v{SL}, v{SL+1}")
        a(f"v_cmp_le_i32 vcc, 0, v{T+7}")
        a("s_cmp_lg_u64 vcc, 0")
        a(f"s_cbranch_scc1 {name}_routed")
        a.label(f"{name}_routed_done")
        c = Asm()
        c.label(f"{name}_routed")
        c(f"s_lshl_b32 s{sT+8}, s{sJ}, 11")
        c(f"s_add_u32 s{sT+8}, s{sT+8}, {WS_YF}")
        c(f"v_lshlrev_b32 v{T+12}, 7, v{T}")
        c(f"v_add_u32 v{T+12}, s{sT+8}, v{T+12}")
        c(f"buffer_load_dword v{T+13}, v{T+12}, {srd(sWS)}, 0 offen sc1")
        c("s_waitcnt vmcnt(0)")
        poll_check(c, f"{name}_yp", T+13, T+12, sWS, 1, -1, cold)
        for t16 in range(2):
            lab = c.new_label(f"{name}_rt")
            c(f"v_cmp_le_i32 vcc, 0, v{SL+t16}")
            c(f"s_and_saveexec_b64 s[{sT+8}:{sT+9}], vcc")
            c(f"s_cbranch_execz {lab}")
            c(f"v_lshlrev_b32 v{T+12}, 1, v{T+5}")
            c(f"v_lshl_add_u32 v{T+12}, v{SL+t16}, 12, v{T+12}")
            c(f"v_add_u32 v{T+12}, {WS_Y}, v{T+12}")
            c(f"buffer_load_dwordx4 {vr(WB,4)}, v{T+12}, {srd(sWS)}, 0 offen sc1")
            c(f"buffer_load_dwordx4 {vr(WB+4,4)}, v{T+12}, {srd(sWS)}, 0 offen offset:16 sc1")
            c("s_waitcnt vmcnt(0)")
            for e in range(8):
                round_bf16(c, WB+e)
                c(f"v_mul_f32 v{WB+e}, v{WB+e}, v{WT_+t16}")
                round_bf16(c, WB+e)
                c(f"v_add_f32 v{G+8*t16+e}, v{G+8*t16+e}, v{WB+e}")
                round_bf16(c, G+8*t16+e)
            c.label(lab)
            c(f"s_mov_b64 exec, s[{sT+8}:{sT+9}]")
        c(f"s_branch {name}_routed_done")
        cold.append(c)
    for b in range(0, 16, 8):
        for e in range(8): a(f"v_mul_f32 v{T+6+e}, 0xbfb8aa3b, v{G+b+e}")
        for e in range(8): a(f"v_exp_f32 v{T+6+e}, v{T+6+e}")
        for e in range(8): a(f"v_add_f32 v{T+6+e}, 1.0, v{T+6+e}")
        for e in range(8): a(f"v_rcp_f32 v{T+6+e}, v{T+6+e}")
        for e in range(8): a(f"v_mul_f32 v{G+b+e}, v{G+b+e}, v{T+6+e}")
    vm.wait("opoll", "wo")
    poll_check(a, f"{name}_op", VPo, VPa, sWS, 1, -1, cold)
    a.trace(60)
    def oload(i):
        for t16 in range(2):
            off = i*1024
            a(f"buffer_load_dwordx4 {vr(OB+8*(i%8)+4*t16,4)}, v{VL2}, {srd(sWS)}, s{(sOA, sOB)[t16]} offen offset:{off % 4096}")
            vm.issue(f"O{i}")
        if i % 4 == 3:
            a(f"s_add_u32 s{sOA}, s{sOA}, 4096")
            a(f"s_add_u32 s{sOB}, s{sOB}, 4096")
    for i in range(8): oload(i)
    a("s_barrier")
    def wreads(i):
        return [f"ds_read_b64_tr_b16 {vr(WB+16*(i&1)+4*ct+2*t_,2)}, v{WA+ct} offset:{i*4096+t_*1024}" for ct in range(4) for t_ in range(2)]
    a(*wreads(0))
    for i in range(16):
        r = wreads(i+1) if i < 15 else []
        vm.wait(f"O{i}")
        a("s_waitcnt lgkmcnt(0)")
        k = 0
        for ct in range(4):
            for t16 in range(2):
                d = vr(ACC+16*t16+4*ct, 4)
                a(f"v_mfma_f32_16x16x32_bf16 {d}, {vr(WB+16*(i&1)+4*ct,4)}, {vr(OB+8*(i%8)+4*t16,4)}, {d if i else 0}")
                if r: a(r[k])
                k += 1
        if i + 8 < 16: oload(i+8)
    a.trace(61)
    EX = 131072
    a(f"s_lshl_b32 s{sT}, s{W}, 12")
    a(f"s_add_u32 s{sT}, s{sT}, {EX}")
    a(f"s_xor_b32 s{sT+1}, s{sT}, 16384")
    a(f"v_add_u32 v{T}, s{sT}, v{VL2}")
    a(f"v_add_u32 v{T+1}, s{sT+1}, v{VL2}")
    a(f"s_cmp_eq_u32 s{KH}, 0")
    a("s_nop 3")
    a(f"s_cbranch_scc1 {name}_ck0")
    for t16 in range(2):
        for cc in range(2): a(f"ds_write_b128 v{T}, {vr(ACC+16*t16+4*cc,4)} offset:{(2*t16+cc)*1024}")
    a("s_waitcnt lgkmcnt(0)")
    for t16 in range(2):
        for r in range(8): a(f"v_mov_b32 v{ACC+16*t16+r}, v{ACC+16*t16+8+r}")
    a(f"s_branch {name}_ckj")
    a.label(f"{name}_ck0")
    for t16 in range(2):
        for cc in range(2): a(f"ds_write_b128 v{T}, {vr(ACC+16*t16+8+4*cc,4)} offset:{(2*t16+cc)*1024}")
    a.label(f"{name}_ckj")
    a("s_waitcnt lgkmcnt(0)")
    a("s_barrier")
    for t16 in range(2):
        for cc in range(2): a(f"ds_read_b128 {vr(ACC+16*t16+8+4*cc,4)}, v{T+1} offset:{(2*t16+cc)*1024}")
    a(f"s_mov_b32 s{sT}, 32768")
    for t16 in range(2):
        b = ACC + 16*t16
        a(f"s_waitcnt lgkmcnt({2-2*t16})")
        for r in range(8): a(f"v_add_f32 v{b+r}, v{b+r}, v{b+8+r}")
        for r in range(4): a(f"v_permlane16_swap_b32 v{b+r}, v{b+4+r}")
        for e in range(8): a(f"v_fmac_f32 v{XF+8*t16+e}, v{b+e}, v{G+8*t16+e}")
        for p in range(4): a(f"v_cvt_pk_bf16_f32 v{XP+4*t16+p}, v{XF+8*t16+2*p}, v{XF+8*t16+2*p+1}")
        a(f"buffer_store_dwordx4 {vr(XP+4*t16,4)}, v{VX}, {srd(sOUT)}, {'0' if t16 == 0 else f's{sT}'} offen")
```

```python
from asmlib import *
from layout import *

def M32(d, A, B, c): return f"v_mfma_f32_32x32x16_bf16 {vr(d,16)}, {vr(A,4)}, {vr(B,4)}, " + (vr(c,16) if c is not None else "0")
def M16(d, A, B, c): return f"v_mfma_f32_16x16x32_bf16 {vr(d,4)}, {vr(A,4)}, {vr(B,4)}, " + (vr(c,4) if c is not None else "0")

def gen_attn(name, kid=5):
    a = Asm()
    VL, CUR, PRV = 1, 2, 3
    Q, K, V, P, ONES, L = 4, 12, 20, 28, 36, 40
    O, S0, S1 = 44, 60, 76
    T = 92
    a("s_cmp_ge_u32 s2, 256")
    a(f"s_cbranch_scc1 {name}_done")
    a.stamp_init(); a.stamp(0)
    a(f"s_load_dwordx2 s[8:9], s[0:1], {A_WS}")
    a("v_lshrrev_b32 v4, 6, v0")
    a("v_and_b32 v0, 63, v0")
    a("v_readfirstlane_b32 s3, v4")
    a(f"v_lshlrev_b32 v{VL}, 4, v0")
    a("s_and_b32 s10, s2, 7")
    a("s_lshl_b32 s10, s10, 2")
    a("s_lshr_b32 s11, s2, 6")
    a("s_add_u32 s10, s10, s11")
    a("s_bfe_u32 s11, s2, 0x30003")
    a("s_lshl_b32 s11, s11, 3")
    a("s_add_u32 s11, s11, s3")
    a("s_lshl_b32 s24, s3, 11")
    a("s_lshl_b32 s25, s10, 18")
    a("s_add_u32 s26, s25, s24")
    a("s_mov_b32 s27, s24")
    a("s_lshl_b32 s28, s10, 17")
    a("s_lshl_b32 s29, s11, 11")
    a("s_add_u32 s28, s28, s29")
    a("s_waitcnt lgkmcnt(0)")
    a.srd(12, 8, WS_KV, KV_BYTES)
    a.srd(16, 8, WS_Q, Q_BYTES)
    a.srd(20, 8, WS_O, O_BYTES)
    def dma():
        a("s_mov_b32 m0, s27")
        a("s_add_u32 s27, s27, 16384")
        a(f"buffer_load_dwordx4 v{VL}, s[12:15], s26 offen lds")
        a(f"buffer_load_dwordx4 v{VL}, s[12:15], s26 offen offset:1024 lds")
        a("s_and_b32 s27, s27, 0xffff")
        a("s_add_u32 s26, s26, 16384")
    a(f"buffer_load_dwordx4 {vr(Q,4)}, v{VL}, s[16:19], s28 offen")
    a(f"buffer_load_dwordx4 {vr(Q+4,4)}, v{VL}, s[16:19], s28 offen offset:1024")
    dma(); dma()
    a(f"v_lshrrev_b32 v{T}, 4, v0")
    a(f"v_lshrrev_b32 v{T+1}, 2, v0")
    a(f"v_xor_b32 v{T}, v{T}, v{T+1}")
    a(f"v_and_b32 v{T}, 1, v{T}")
    a(f"v_cmp_eq_u32 vcc, 0, v{T}")
    a(f"v_mov_b32 v{T+1}, 0x3f803f80")
    a(f"v_mov_b32 v{CUR}, v{VL}")
    for r in range(4): a(f"v_cndmask_b32 v{ONES+r}, 0, v{T+1}, vcc")
    for r in range(16): a(f"v_mov_b32 v{O+r}, 0")
    for r in range(4):
        a(f"v_mov_b32 v{L+r}, 0")
        a(f"v_mov_b32 v{V+4+r}, 0")
        a(f"v_mov_b32 v{P+4+r}, 0")
    a("s_mov_b32 s30, 0")
    a.stamp(1)
    a("s_waitcnt vmcnt(2)")
    a("s_barrier")
    a.stamp(2); a.cstamp(5)
    a(f"ds_read_b128 {vr(K,4)}, v{CUR}")
    a(f"ds_read_b128 {vr(K+4,4)}, v{CUR} offset:1024")
    a(f"ds_read_b128 {vr(V,4)}, v{CUR} offset:2048")
    dma()
    a("s_waitcnt lgkmcnt(0)")
    a(M32(S0, K, Q, None))
    a(M32(S0, K+4, Q+4, S0))
    a(f"ds_read_b128 {vr(K,4)}, v{CUR} offset:4096")
    a(f"ds_read_b128 {vr(K+4,4)}, v{CUR} offset:5120")
    a("s_waitcnt lgkmcnt(0)")
    a("s_nop 10")
    a(f"s_branch {name}_p2")

    def phase(p):
        Sc, Sn = (S0, S1) if (p & 1) == 0 else (S1, S0)
        e = lambda i: f"v_exp_f32 v{Sc+i}, v{Sc+i}"
        c = lambda i: f"v_cvt_pk_bf16_f32 v{P+i}, v{Sc+2*i}, v{Sc+2*i+1}"
        def rd(dst, tile, part):
            base, t = (CUR, tile) if tile >= 0 else (PRV, tile + 4)
            return f"ds_read_b128 {vr(dst,4)}, v{base} offset:{t*4096+part*1024}"
        a("s_waitcnt lgkmcnt(2)")
        a(M32(Sn, K, Q, None), rd(K, p, 0), e(0), e(1), e(2))
        a(M32(O, V+4, P+4, O), rd(V+4, p-2, 3), e(3), c(0), e(4), c(1))
        a(M16(L, ONES, P+4, L), e(5))
        a("s_waitcnt lgkmcnt(2)")
        a(M32(Sn, K+4, Q+4, Sn), rd(K+4, p, 1), e(6), c(2), e(7), e(8), c(3), e(9), e(10))
        a(M32(O, V, P, O), rd(V, p-1, 2), e(11), c(4), e(12), c(5))
        a(M16(L, ONES, P, L), e(13), e(14), e(15), c(6), c(7))

    a(".p2align 6")
    a.label(f"{name}_loop")
    a("s_cmp_lt_u32 s30, 15")
    a(f"s_cbranch_scc1 {name}_w2")
    a("s_waitcnt vmcnt(0)")
    a.label(f"{name}_w2")
    a("s_waitcnt vmcnt(2)")
    a("s_barrier")
    a(f"v_mov_b32 v{PRV}, v{CUR}")
    a(f"v_add_u32 v{CUR}, 16384, v{CUR}")
    a(f"v_and_b32 v{CUR}, 0xffff, v{CUR}")
    a("s_cmp_ge_u32 s30, 14")
    a(f"s_cbranch_scc1 {name}_nodma")
    dma()
    a.label(f"{name}_nodma")
    phase(0)
    phase(1)
    a("s_cmp_eq_u32 s30, 16")
    a(f"s_cbranch_scc1 {name}_exit")
    a.label(f"{name}_p2")
    phase(2)
    phase(3)
    a("s_add_u32 s30, s30, 1")
    a(f"s_branch {name}_loop")
    a.label(f"{name}_exit")
    a.stamp(3); a.cstamp(6)
    a("s_waitcnt lgkmcnt(0)")
    a(M32(O, V+4, P+4, O))
    a(M16(L, ONES, P+4, L))
    a("s_lshl_b32 s28, s11, 16")
    a("s_lshl_b32 s29, s10, 11")
    a("s_add_u32 s28, s28, s29")
    a("s_nop 7")
    a("s_nop 3")
    a(f"v_mov_b32 v{T+1}, 0")
    for r in range(16):
        a(f"v_fmac_f32 v{T+1}, 0, v{O+r}")
    a("s_mov_b32 s32, 0x2b800000")
    a("s_mov_b32 s33, 0x5d800000")
    a(f"v_cmp_nle_f32 s[34:35], s32, v{L}")
    a(f"v_cmp_nge_f32 s[36:37], s33, v{L}")
    a(f"v_cmp_u_f32 vcc, v{T+1}, v{T+1}")
    a("s_or_b64 s[34:35], s[34:35], s[36:37]")
    a("s_or_b64 s[34:35], s[34:35], vcc")
    a("s_cmp_lg_u64 s[34:35], 0")
    a(f"s_cbranch_scc1 {name}_slow")
    a.label(f"{name}_fin")
    a(f"v_rcp_f32 v{T}, v{L}")
    a("s_nop 0")
    for jj in range(2):
        for e_ in range(4):
            r0 = O + 8*jj + 2*e_
            a(f"v_mul_f32 v{r0}, v{r0}, v{T}")
            a(f"v_mul_f32 v{r0+1}, v{r0+1}, v{T}")
            a(f"v_cvt_pk_bf16_f32 v{P+4*jj+e_}, v{r0}, v{r0+1}")
        a(f"buffer_store_dwordx4 {vr(P+4*jj,4)}, v{VL}, s[20:23], s28 offen offset:{jj*1024}")
    a.stamp(4)
    a.stamp_dump(kid, 3)
    a("s_endpgm")

    a.label(f"{name}_slow")
    a("s_waitcnt vmcnt(0)")
    a(f"v_mov_b32 v{T}, 0xff800000")
    a("s_mov_b32 s30, 0")
    a.label(f"{name}_slow1")
    a("s_lshl_b32 s31, s30, 12")
    a("s_add_u32 s31, s31, s25")
    a(f"buffer_load_dwordx4 {vr(K,4)}, v{VL}, s[12:15], s31 offen")
    a(f"buffer_load_dwordx4 {vr(K+4,4)}, v{VL}, s[12:15], s31 offen offset:1024")
    a("s_waitcnt vmcnt(0)")
    a(M32(S0, K, Q, None))
    a(M32(S0, K+4, Q+4, S0))
    a("s_nop 15")
    for r in range(0, 16, 2):
        a(f"v_max3_f32 v{T}, v{T}, v{S0+r}, v{S0+r+1}")
    a("s_add_u32 s30, s30, 1")
    a("s_cmp_lt_u32 s30, 64")
    a(f"s_cbranch_scc1 {name}_slow1")
    a(f"v_mov_b32 v{T+1}, v{T}")
    a("s_nop 1")
    a(f"v_permlane32_swap_b32 v{T}, v{T+1}")
    a("s_nop 1")
    a(f"v_max_f32 v{T}, v{T}, v{T+1}")
    for r in range(16):
        a(f"v_sub_f32 v{S1+r}, 0, v{T}")
        a(f"v_mov_b32 v{O+r}, 0")
    for r in range(4): a(f"v_mov_b32 v{L+r}, 0")
    a("s_mov_b32 s30, 0")
    a.label(f"{name}_slow2")
    a("s_lshl_b32 s31, s30, 12")
    a("s_add_u32 s31, s31, s25")
    for q in range(4):
        a(f"buffer_load_dwordx4 {vr(K+4*q,4)}, v{VL}, s[12:15], s31 offen offset:{q*1024}")
    a("s_waitcnt vmcnt(0)")
    a(M32(S0, K, Q, S1))
    a(M32(S0, K+4, Q+4, S0))
    a("s_nop 15")
    for r in range(16): a(f"v_exp_f32 v{S0+r}, v{S0+r}")
    a("s_nop 0")
    for r in range(8): a(f"v_cvt_pk_bf16_f32 v{P+r}, v{S0+2*r}, v{S0+2*r+1}")
    a("s_nop 1")
    a(M32(O, V, P, O))
    a(M32(O, V+4, P+4, O))
    a(M16(L, ONES, P, L))
    a(M16(L, ONES, P+4, L))
    a("s_add_u32 s30, s30, 1")
    a("s_cmp_lt_u32 s30, 64")
    a(f"s_cbranch_scc1 {name}_slow2")
    a("s_nop 15")
    a(f"s_branch {name}_fin")
    a.label(f"{name}_done")
    a("s_endpgm")
    return kernel_header(name) + a.text() + kernel_desc(name, 100, 48)
```

```python
from asmlib import *
from layout import *
from k_attn import M32, M16

class AttnRegs:
    VL, CUR, PRV = 1, 2, 3
    Q, K, V, P = 4, 20, 28, 36
    ONES, IDX, L = 44, 48, 52
    O, S0, S1 = 60, 92, 108
    T = 124
    END = 132

def SM(d, A, B, idx): return f"v_smfmac_f32_16x16x64_bf16 {vr(d,4)}, {vr(A,4)}, {vr(B,8)}, v{idx}"

def attn_consts(a, R, lane=0):
    T = R.T
    a(f"v_bfe_u32 v{T}, v{lane}, 2, 1")
    a(f"v_cmp_eq_u32 vcc, 0, v{T}")
    a(f"v_mov_b32 v{T+1}, 0x3f803f80")
    a(f"v_and_b32 v{T}, 1, v{lane}")
    a(f"v_cndmask_b32 v{R.ONES}, 0, v{T+1}, vcc")
    a(f"v_cndmask_b32 v{R.ONES+1}, 0, v{T+1}, vcc")
    a(f"v_cndmask_b32 v{R.ONES+2}, v{T+1}, 0, vcc")
    a(f"v_cndmask_b32 v{R.ONES+3}, v{T+1}, 0, vcc")
    a(f"v_mul_u32_u24 v{T}, 0xaaaa, v{T}")
    a(f"v_add_u32 v{R.IDX}, 0x4444, v{T}")
    for r in range(32): a(f"v_mov_b32 v{R.O+r}, 0")
    for r in range(8):
        a(f"v_mov_b32 v{R.L+r}, 0")
        a(f"v_mov_b32 v{R.P+r}, 0")
    for r in range(4): a(f"v_mov_b32 v{R.V+4+r}, 0")

def attn_phase(a, R, p, mode="smf", exp=True):
    q = p & 1
    Sc, Sn = (R.S0, R.S1) if q == 0 else (R.S1, R.S0)
    K, V, P, Q, O, L = R.K, R.V, R.P, R.Q, R.O, R.L
    qn, qp = 1 - q, 1 - q
    e = lambda i: f"v_exp_f32 v{Sc+i}, v{Sc+i}"
    c = lambda i: f"v_cvt_pk_bf16_f32 v{P+i}, v{Sc+2*i}, v{Sc+2*i+1}"
    def rd(dst, base, tile, part): return f"ds_read_b128 {vr(dst,4)}, v{base} offset:{tile*4096+part*1024}"
    if q == 0:
        kt = 0 if p == 0 else 1
        vb, vt = (R.PRV, 1) if p == 0 else (R.CUR, 0)
        rK0, rK1, rV1, rV0 = [rd(K, R.CUR, kt, 0)], [rd(K+4, R.CUR, kt, 1)], [rd(V+4, vb, vt, 3)], []
        w0, w1 = [], ["s_waitcnt lgkmcnt(3)"]
    else:
        rK0, rK1, rV1, rV0 = [], [], [], [rd(V, R.CUR, 0 if p == 1 else 1, 2)]
        w0, w1 = ["s_waitcnt lgkmcnt(0)"], []
    Ma = M32(Sn, K, Q+8*qn, None)
    Mb = M32(Sn, K+4, Q+8*qn+4, Sn)
    Mc = M32(O+16*q, V, P, O+16*q)
    Md = M32(O+16*qp, V+4, P+4, O+16*qp)
    if mode == "smf":
        a(*w0, Ma, *rK0, e(0), e(1), e(2))
        a(Md, *rV1, e(3), e(4), e(5))
        a(SM(L+4*qp, R.ONES, P, R.IDX), c(0), c(1), e(6), e(7))
        a(Mb, *rK1, c(2), c(3), e(8), e(9))
        a(*w1, Mc, *rV0, e(10), e(11), c(4), e(12), c(5), e(13), e(14), e(15), c(6), c(7))
    elif mode == "m16":
        a(*w0, Ma, *rK0, e(0), e(1), e(2))
        a(Md, *rV1, e(3), c(0), e(4), c(1))
        a(M16(L+4*qp, R.ONES, P+4, L+4*qp), e(5))
        a(Mb, *rK1, e(6), c(2), e(7), e(8), c(3), e(9), e(10))
        a(*w1, Mc, *rV0, e(11), c(4), e(12), c(5))
        a(M16(L+4*q, R.ONES, P, L+4*q), e(13), e(14), e(15), c(6), c(7))
    elif mode == "nosum":
        a(*w0, Ma, *rK0, e(0), e(1), e(2))
        a(Md, *rV1, e(3), e(4), e(5))
        a(c(0), c(1), e(6), e(7))
        a(Mb, *rK1, c(2), c(3), e(8), e(9))
        a(*w1, Mc, *rV0, e(10), e(11), c(4), e(12), c(5), e(13), e(14), e(15), c(6), c(7))

def attn_check_and_pair_reduce(a, R, name, skh, swave, xbase):
    O, L, T, VL = R.O, R.L, R.T, R.VL
    a(f"v_add_f32 v{L}, v{L}, v{L+1}")
    a(f"v_add_f32 v{L+4}, v{L+4}, v{L+5}")
    a(f"s_mul_i32 s31, s{swave}, 4352")
    a(f"s_add_u32 s31, s31, {xbase}")
    a(f"v_add_u32 v{T}, s31, v{VL}")
    a(f"s_xor_b32 s31, s{swave}, 4")
    a(f"s_mul_i32 s31, s31, 4352")
    a(f"s_add_u32 s31, s31, {xbase}")
    a(f"v_add_u32 v{T+1}, s31, v{VL}")
    a(f"v_lshrrev_b32 v{T+2}, 2, v{VL}")
    a(f"v_add_u32 v{T+3}, s31, v{T+2}")
    a(f"s_mul_i32 s31, s{swave}, 4352")
    a(f"s_add_u32 s31, s31, {xbase}")
    a(f"v_add_u32 v{T+2}, s31, v{T+2}")
    a(f"s_cmp_eq_u32 s{skh}, 0")
    a(f"s_cbranch_scc1 {name}_kh0")
    for r in range(4): a(f"ds_write_b128 v{T}, {vr(O+4*r,4)} offset:{r*1024}")
    a(f"ds_write_b32 v{T+2}, v{L} offset:4096")
    a("s_waitcnt lgkmcnt(0)")
    for r in range(16): a(f"v_mov_b32 v{O+r}, v{O+16+r}")
    a(f"v_mov_b32 v{L}, v{L+4}")
    a(f"s_branch {name}_khj")
    a.label(f"{name}_kh0")
    for r in range(4): a(f"ds_write_b128 v{T}, {vr(O+16+4*r,4)} offset:{r*1024}")
    a(f"ds_write_b32 v{T+2}, v{L+4} offset:4096")
    a.label(f"{name}_khj")
    a("s_waitcnt lgkmcnt(0)")
    a("s_barrier")
    for r in range(4): a(f"ds_read_b128 {vr(O+16+4*r,4)}, v{T+1} offset:{r*1024}")
    a(f"ds_read_b32 v{L+4}, v{T+3} offset:4096")
    a("s_waitcnt lgkmcnt(0)")
    for r in range(16): a(f"v_add_f32 v{O+r}, v{O+r}, v{O+16+r}")
    a(f"v_add_f32 v{L}, v{L}, v{L+4}")
    a(f"v_mov_b32 v{T+1}, 0")
    for r in range(16): a(f"v_fmac_f32 v{T+1}, 0, v{O+r}")
    a("s_mov_b32 s32, 0x2b800000")
    a("s_mov_b32 s33, 0x5d800000")
    a(f"v_cmp_nle_f32 s[34:35], s32, v{L}")
    a(f"v_cmp_nge_f32 s[36:37], s33, v{L}")
    a(f"v_cmp_u_f32 vcc, v{T+1}, v{T+1}")
    a("s_or_b64 s[34:35], s[34:35], s[36:37]")
    a("s_or_b64 s[34:35], s[34:35], vcc")
    a("s_cmp_lg_u64 s[34:35], 0")
    a(f"s_cbranch_scc1 {name}_slow")
    a.label(f"{name}_fin")

def attn_slow_path(a, R, name, skh, srd_kv, shead, ld_flags="", s0=30):
    K, V, P, Q, O, L, T, VL, S0, S1 = R.K, R.V, R.P, R.Q, R.O, R.L, R.T, R.VL, R.S0, R.S1
    a.label(f"{name}_slow")
    a("s_waitcnt vmcnt(0)")
    a(f"s_cmp_eq_u32 s{skh}, 0")
    a(f"s_cbranch_scc1 {name}_slow0")
    for r in range(8): a(f"v_mov_b32 v{Q+r}, v{Q+8+r}")
    a.label(f"{name}_slow0")
    a(f"v_mov_b32 v{T}, 0xff800000")
    a(f"s_mov_b32 s{s0}, 0")
    a.label(f"{name}_slow1")
    a(f"s_lshl_b32 s{s0+1}, s{s0}, 12")
    a(f"s_add_u32 s{s0+1}, s{s0+1}, s{shead}")
    a(f"buffer_load_dwordx4 {vr(K,4)}, v{VL}, {sr(srd_kv,4)}, s{s0+1} offen {ld_flags}")
    a(f"buffer_load_dwordx4 {vr(K+4,4)}, v{VL}, {sr(srd_kv,4)}, s{s0+1} offen offset:1024 {ld_flags}")
    a("s_waitcnt vmcnt(0)")
    a(M32(S0, K, Q, None))
    a(M32(S0, K+4, Q+4, S0))
    a("s_nop 15")
    for r in range(0, 16, 2):
        a(f"v_max3_f32 v{T}, v{T}, v{S0+r}, v{S0+r+1}")
    a(f"s_add_u32 s{s0}, s{s0}, 1")
    a(f"s_cmp_lt_u32 s{s0}, 64")
    a(f"s_cbranch_scc1 {name}_slow1")
    a(f"v_mov_b32 v{T+1}, v{T}")
    a("s_nop 1")
    a(f"v_permlane32_swap_b32 v{T}, v{T+1}")
    a("s_nop 1")
    a(f"v_max_f32 v{T}, v{T}, v{T+1}")
    for r in range(16):
        a(f"v_sub_f32 v{S1+r}, 0, v{T}")
        a(f"v_mov_b32 v{O+r}, 0")
    for r in range(4): a(f"v_mov_b32 v{L+r}, 0")
    a(f"s_mov_b32 s{s0}, 0")
    a.label(f"{name}_slow2")
    a(f"s_lshl_b32 s{s0+1}, s{s0}, 12")
    a(f"s_add_u32 s{s0+1}, s{s0+1}, s{shead}")
    for q in range(4):
        a(f"buffer_load_dwordx4 {vr(K+4*q,4)}, v{VL}, {sr(srd_kv,4)}, s{s0+1} offen offset:{q*1024} {ld_flags}")
    a("s_waitcnt vmcnt(0)")
    a(M32(S0, K, Q, S1))
    a(M32(S0, K+4, Q+4, S0))
    a("s_nop 15")
    for r in range(16): a(f"v_exp_f32 v{S0+r}, v{S0+r}")
    a("s_nop 0")
    for r in range(8): a(f"v_cvt_pk_bf16_f32 v{P+r}, v{S0+2*r}, v{S0+2*r+1}")
    a("s_nop 1")
    a(M32(O, V, P, O))
    a(M32(O, V+4, P+4, O))
    a(SM(L, R.ONES, P, R.IDX))
    a(f"s_add_u32 s{s0}, s{s0}, 1")
    a(f"s_cmp_lt_u32 s{s0}, 64")
    a(f"s_cbranch_scc1 {name}_slow2")
    a("s_nop 15")
    a(f"v_add_f32 v{L}, v{L}, v{L+1}")
    a(f"s_branch {name}_fin")

def gen_attn2(name, kid=5, mode="smf", prio=False, spread=False):
    a = Asm()
    R = AttnRegs
    VL, CUR, PRV, Q, K, V, P, O, L, T = R.VL, R.CUR, R.PRV, R.Q, R.K, R.V, R.P, R.O, R.L, R.T
    a("s_cmp_ge_u32 s2, 256")
    a(f"s_cbranch_scc1 {name}_done")
    a.stamp_init(); a.stamp(0)
    a(f"s_load_dwordx2 s[8:9], s[0:1], {A_WS}")
    a("v_lshrrev_b32 v4, 6, v0")
    a("v_and_b32 v0, 63, v0")
    a("v_readfirstlane_b32 s3, v4")
    a(f"v_lshlrev_b32 v{VL}, 4, v0")
    a("s_and_b32 s10, s2, 7")
    a("s_lshl_b32 s10, s10, 2")
    a("s_lshr_b32 s11, s2, 6")
    a("s_add_u32 s10, s10, s11")
    a("s_bfe_u32 s11, s2, 0x30003")
    a("s_lshr_b32 s38, s3, 2")
    a("s_and_b32 s39, s3, 3")
    a("s_lshl_b32 s11, s11, 3")
    a("s_lshl_b32 s24, s39, 1")
    a("s_add_u32 s11, s11, s24")
    a("s_lshl_b32 s24, s3, 11")
    a("s_lshl_b32 s25, s10, 18")
    a("s_add_u32 s26, s25, s24")
    a("s_mov_b32 s27, s24")
    a("s_lshl_b32 s28, s10, 17")
    a("s_lshl_b32 s29, s11, 11")
    a("s_add_u32 s28, s28, s29")
    a("s_waitcnt lgkmcnt(0)")
    a.srd(12, 8, WS_KV, KV_BYTES)
    a.srd(16, 8, WS_Q, Q_BYTES)
    a.srd(20, 8, WS_O, O_BYTES)
    def dma():
        a("s_mov_b32 m0, s27")
        a("s_add_u32 s27, s27, 16384")
        a(f"buffer_load_dwordx4 v{VL}, s[12:15], s26 offen lds")
        a(f"buffer_load_dwordx4 v{VL}, s[12:15], s26 offen offset:1024 lds")
        a("s_and_b32 s27, s27, 0xffff")
        a("s_add_u32 s26, s26, 16384")
    for q in range(4):
        a(f"buffer_load_dwordx4 {vr(Q+4*q,4)}, v{VL}, s[16:19], s28 offen offset:{q*1024}")
    dma(); dma()
    a("s_lshl_b32 s31, s38, 13")
    a(f"v_add_u32 v{CUR}, s31, v{VL}")
    attn_consts(a, R)
    a("s_mov_b32 s30, 0")
    a.stamp(1)
    a("s_waitcnt vmcnt(2)")
    a("s_barrier")
    a.stamp(2); a.cstamp(5)
    a(f"ds_read_b128 {vr(K,4)}, v{CUR}")
    a(f"ds_read_b128 {vr(K+4,4)}, v{CUR} offset:1024")
    a(f"ds_read_b128 {vr(V,4)}, v{CUR} offset:2048")
    dma()
    a("s_waitcnt lgkmcnt(0)")
    a(M32(R.S0, K, Q, None))
    a(M32(R.S0, K+4, Q+4, R.S0))
    a("s_nop 10")
    a(f"s_branch {name}_p2")
    def sp(p):
        if prio: a(f"s_setprio {3-p}")
    def dma1(i):
        a("s_cmp_ge_u32 s30, 14")
        a(f"s_cbranch_scc1 {name}_nd{i}")
        if i == 0:
            a("s_mov_b32 m0, s27")
            a("s_add_u32 s27, s27, 16384")
            a(f"buffer_load_dwordx4 v{VL}, s[12:15], s26 offen lds")
            a("s_and_b32 s27, s27, 0xffff")
        else:
            a(f"buffer_load_dwordx4 v{VL}, s[12:15], s26 offen offset:1024 lds")
            a("s_add_u32 s26, s26, 16384")
        a.label(f"{name}_nd{i}")
    a(".p2align 6")
    a.label(f"{name}_loop")
    sp(1)
    if spread: dma1(0)
    attn_phase(a, R, 1, mode)
    a("s_cmp_eq_u32 s30, 16")
    a(f"s_cbranch_scc1 {name}_exit")
    sp(2)
    if spread: dma1(1)
    a.label(f"{name}_p2")
    attn_phase(a, R, 2, mode)
    a("s_add_u32 s30, s30, 1")
    sp(3); attn_phase(a, R, 3, mode)
    a("s_cmp_ge_u32 s30, 15")
    a(f"s_cbranch_scc1 {name}_tail")
    a("s_waitcnt vmcnt(2)")
    a("s_barrier")
    if prio: a("s_setprio 3")
    if not spread:
        a("s_cmp_ge_u32 s30, 14")
        a(f"s_cbranch_scc1 {name}_rej")
        dma()
    a.label(f"{name}_rej")
    a(f"v_mov_b32 v{PRV}, v{CUR}")
    a(f"v_add_u32 v{CUR}, 16384, v{CUR}")
    a(f"v_and_b32 v{CUR}, 0xffff, v{CUR}")
    attn_phase(a, R, 0, mode)
    a(f"s_branch {name}_loop")
    a.label(f"{name}_tail")
    a("s_waitcnt vmcnt(0)")
    a("s_barrier")
    if prio: a("s_setprio 3")
    a(f"s_branch {name}_rej")
    a.label(f"{name}_exit")
    a.stamp(3); a.cstamp(6)
    a("s_waitcnt lgkmcnt(0)")
    a("s_nop 0")
    a(M32(O+16, V+4, P+4, O+16))
    a(SM(L+4, R.ONES, P, R.IDX))
    a("s_add_u32 s28, s11, s38")
    a("s_lshl_b32 s28, s28, 16")
    a("s_lshl_b32 s29, s10, 11")
    a("s_add_u32 s28, s28, s29")
    a("s_nop 7")
    a("s_nop 7")
    attn_check_and_pair_reduce(a, R, name, 38, 3, 65536)
    a(f"v_rcp_f32 v{T}, v{L}")
    a("s_nop 0")
    for jj in range(2):
        for e_ in range(4):
            r0 = O + 8*jj + 2*e_
            a(f"v_mul_f32 v{r0}, v{r0}, v{T}")
            a(f"v_mul_f32 v{r0+1}, v{r0+1}, v{T}")
            a(f"v_cvt_pk_bf16_f32 v{P+4*jj+e_}, v{r0}, v{r0+1}")
        a(f"buffer_store_dwordx4 {vr(P+4*jj,4)}, v{VL}, s[20:23], s28 offen offset:{jj*1024}")
    a.stamp(4)
    a.stamp_dump(kid, 3)
    a("s_endpgm")
    attn_slow_path(a, R, name, 38, 12, 25)
    a.label(f"{name}_done")
    a("s_endpgm")
    return kernel_header(name) + a.text() + kernel_desc(name, R.END, 48)
```

```python
from asmlib import *
from layout import *
from k_attn import M32, M16
import k_attn2 as AT
from k_attn2 import SM

class Regs3(AT.AttnRegs):
    KB = 132
    VB = 164
    END = 196

def unit(a, R, t, q, nb, hook=None):
    Sc, Sn = (R.S0, R.S1) if q == 0 else (R.S1, R.S0)
    P, Q, O, L = R.P, R.Q, R.O, R.L
    qn = 1 - q
    kn = t if q == 0 else t + 1
    vp = t - 1 if q == 0 else t
    K = R.KB + 8*(kn % nb); Vp = R.VB + 8*(vp % nb); Vc = R.VB + 8*(t % nb)
    e = lambda i: f"v_exp_f32 v{Sc+i}, v{Sc+i}"
    c = lambda i: f"v_cvt_pk_bf16_f32 v{P+i}, v{Sc+2*i}, v{Sc+2*i+1}"
    h = hook or (lambda pos: None)
    h("Ma"); a(M32(Sn, K, Q+8*qn, None)); h("Ma+"); a(e(0), e(1), e(2))
    h("Md"); a(M32(O+16*qn, Vp+4, P+4, O+16*qn)); h("Md+"); a(e(3), e(4), e(5))
    a(SM(L+4*qn, R.ONES, P, R.IDX), c(0), c(1), e(6), e(7))
    h("Mb"); a(M32(Sn, K+4, Q+8*qn+4, Sn)); h("Mb+"); a(c(2), c(3), e(8), e(9))
    h("Mc"); a(M32(O+16*q, Vc, P, O+16*q)); h("Mc+")
    a(e(10), e(11), c(4), e(12), c(5), e(13), e(14), e(15), c(6), c(7))

def gen_attn3(name, kid=5, prio=True, bar=4, rolled=True, filt=None):
    a = Asm()
    R = Regs3
    VL, Q, P, O, L, T = R.VL, R.Q, R.P, R.O, R.L, R.T
    NB = 4
    a("s_cmp_ge_u32 s2, 256")
    a(f"s_cbranch_scc1 {name}_done")
    a.stamp_init(); a.stamp(0)
    a(f"s_load_dwordx2 s[8:9], s[0:1], {A_WS}")
    a("v_lshrrev_b32 v4, 6, v0")
    a("v_and_b32 v0, 63, v0")
    a("v_readfirstlane_b32 s3, v4")
    a(f"v_lshlrev_b32 v{VL}, 4, v0")
    a("s_and_b32 s40, s2, 1")
    a("s_lshl_b32 s40, s40, 3")
    a("s_bfe_u32 s41, s2, 0x30003")
    a("s_add_u32 s40, s40, s41")
    a("s_bfe_u32 s41, s2, 0x20001")
    a("s_lshl_b32 s41, s41, 2")
    a("s_lshr_b32 s28, s2, 6")
    a("s_add_u32 s41, s41, s28")
    a("s_lshr_b32 s38, s3, 2")
    a("s_and_b32 s39, s3, 1")
    a("s_lshl_b32 s10, s41, 1")
    a("s_add_u32 s10, s10, s39")
    a("s_bfe_u32 s39, s3, 0x10001")
    a("s_lshl_b32 s11, s40, 2")
    a("s_lshl_b32 s24, s39, 1")
    a("s_add_u32 s11, s11, s24")
    a("s_lshl_b32 s25, s10, 18")
    a("s_lshl_b32 s28, s10, 17")
    a("s_lshl_b32 s29, s11, 11")
    a("s_add_u32 s28, s28, s29")
    a("s_lshl_b32 s26, s38, 13")
    a("s_add_u32 s25, s25, 0")
    a("s_add_u32 s26, s26, s25")
    a("s_lshl_b32 s27, s40, 14")
    a("s_waitcnt lgkmcnt(0)")
    a.srd(12, 8, WS_KV, KV_BYTES)
    a.srd(16, 8, WS_Q, Q_BYTES)
    a.srd(20, 8, WS_O, O_BYTES)
    vm = VM(a)
    for q in range(4):
        a(f"buffer_load_dwordx4 {vr(Q+4*q,4)}, v{VL}, s[16:19], s28 offen offset:{q*1024}")
    vm.issue("Q", 4)
    def adv(sr_, sblk, t):
        if t & 1:
            a(f"s_add_u32 s{sr_}, s{sr_}, 4096")
        else:
            a(f"s_add_u32 s{sr_}, s26, s{sblk}")
            a(f"s_add_u32 s{sblk}, s{sblk}, 16384")
            a(f"s_and_b32 s{sblk}, s{sblk}, 0x3ffff")
    a("s_mov_b32 s44, s27")
    a("s_mov_b32 s45, s27")
    def ldK(t, half):
        if half == 0: adv(42, 44, t)
        a(f"buffer_load_dwordx4 {vr(R.KB+8*(t%NB)+4*half,4)}, v{VL}, s[12:15], s42 offen offset:{half*1024}")
        vm.issue(f"K{t}{half}")
    def ldV(t, half):
        if half == 0: adv(43, 45, t)
        a(f"buffer_load_dwordx4 {vr(R.VB+8*(t%NB)+4*half,4)}, v{VL}, s[12:15], s43 offen offset:{2048+half*1024}")
        vm.issue(f"V{t}{half}")
    for t in range(3):
        ldK(t, 0); ldK(t, 1); ldV(t, 0); ldV(t, 1)
    ldK(3, 0); ldK(3, 1)
    AT.attn_consts(a, R)
    for r in range(4): a(f"v_mov_b32 v{R.VB+8*3+4+r}, 0")
    a.stamp(1)
    vm.wait("Q", "K00", "K01")
    a.stamp(2); a.cstamp(5)
    a(M32(R.S0, R.KB, Q, None))
    a(M32(R.S0, R.KB+4, Q+4, R.S0))
    a("s_nop 10")
    NT = 32
    def hooks(t, q):
        def h(pos):
            if q == 0:
                if pos == "Mc": vm.wait(f"V{t}0")
                if pos == "Md+" and t + 3 < NT and t >= 0:
                    pass
                if pos == "Ma+" and t + 3 < NT: ldV(t+3, 0)
                if pos == "Mb+" and t + 3 < NT: ldV(t+3, 1)
            else:
                if pos == "Ma": vm.wait(f"K{t+1}1", f"V{t}1")
                if pos == "Md+" and t + 4 < NT: ldK(t+4, 0)
                if pos == "Mc+" and t + 4 < NT: ldK(t+4, 1)
        return h
    def tile(t):
        if prio: a(f"s_setprio {3 - (t % bar) * 4 // bar}")
        unit(a, R, t, 0, NB, hooks(t, 0))
        unit(a, R, t, 1, NB, hooks(t, 1))
        if bar and (t % bar) == bar - 1 and t != NT - 1: a("s_barrier")
    n0 = len(a.lines)
    if not rolled:
        for t in range(NT): tile(t)
    else:
        for t in range(5): tile(t)
        a("s_mov_b32 s30, 0")
        a(".p2align 6")
        a.label(f"{name}_loop")
        q0 = list(vm.q)
        for t in range(5, 9): tile(t)
        import re
        sh = lambda q, d: [(re.sub(r"^([KV])(\d+)(\d)$", lambda m: f"{m.group(1)}{int(m.group(2))+d}{m.group(3)}", x), c) for x, c in q]
        assert sh(q0, 4) == vm.q, (q0, vm.q)
        a("s_add_u32 s30, s30, 1")
        a("s_cmp_lt_u32 s30, 6")
        a(f"s_cbranch_scc1 {name}_loop")
        vm.q = sh(vm.q, 20)
        for t in range(29, 32): tile(t)
    if filt: a.lines[n0:] = [y for x in a.lines[n0:] for y in filt(x)]
    a.stamp(3); a.cstamp(6)
    a("s_nop 1")
    a(M32(O+16, R.VB+8*((NT-1)%NB)+4, P+4, O+16))
    a(SM(L+4, R.ONES, P, R.IDX))
    a("s_add_u32 s28, s11, s38")
    a("s_lshl_b32 s28, s28, 16")
    a("s_lshl_b32 s29, s10, 11")
    a("s_add_u32 s28, s28, s29")
    a("s_nop 7")
    a("s_nop 7")
    AT.attn_check_and_pair_reduce(a, R, name, 38, 3, 0)
    a(f"v_rcp_f32 v{T}, v{L}")
    a("s_nop 0")
    for jj in range(2):
        for e_ in range(4):
            r0 = O + 8*jj + 2*e_
            a(f"v_mul_f32 v{r0}, v{r0}, v{T}")
            a(f"v_mul_f32 v{r0+1}, v{r0+1}, v{T}")
            a(f"v_cvt_pk_bf16_f32 v{P+4*jj+e_}, v{r0}, v{r0+1}")
        a(f"buffer_store_dwordx4 {vr(P+4*jj,4)}, v{VL}, s[20:23], s28 offen offset:{jj*1024}")
    a.stamp(4)
    a.stamp_dump(kid, 3)
    a("s_endpgm")
    AT.attn_slow_path(a, R, name, 38, 12, 25)
    a.label(f"{name}_done")
    a("s_endpgm")
    return kernel_header(name) + a.text() + kernel_desc(name, R.END, 48)
```

```python
from asmlib import *
from layout import *

def ln_rows(a, nrows, X, XB, WR, tmp, srow, srd_x, srd_xn, srd_r, voff, stmp):
    R = range(nrows)
    F_ = lambda i, e: XB + 16*i + e
    T = lambda i, k: tmp + 4*i + k
    for i in R:
        for p in range(8):
            a(f"v_lshlrev_b32 v{F_(i,2*p)}, 16, v{X+8*i+p}")
            a(f"v_and_b32 v{F_(i,2*p+1)}, 0xffff0000, v{X+8*i+p}")
    for i in R:
        a(f"v_add_f32 v{T(i,0)}, v{F_(i,0)}, v{F_(i,1)}")
        a(f"v_add_f32 v{T(i,1)}, v{F_(i,2)}, v{F_(i,3)}")
    for e in range(4, 16, 2):
        for i in R:
            a(f"v_add_f32 v{T(i,0)}, v{T(i,0)}, v{F_(i,e)}")
            a(f"v_add_f32 v{T(i,1)}, v{T(i,1)}, v{F_(i,e+1)}")
    for i in R:
        a(f"v_add_f32 v{T(i,0)}, v{T(i,0)}, v{T(i,1)}")
    def wsum(k):
        for ctl in ("row_shr:1 row_mask:0xf bank_mask:0xf bound_ctrl:0", "row_shr:2 row_mask:0xf bank_mask:0xf bound_ctrl:0",
                    "row_shr:4 row_mask:0xf bank_mask:0xf bound_ctrl:0", "row_shr:8 row_mask:0xf bank_mask:0xf bound_ctrl:0",
                    "row_bcast:15 row_mask:0xa bank_mask:0xf", "row_bcast:31 row_mask:0xc bank_mask:0xf"):
            a("s_nop 1")
            for i in R:
                a(f"v_add_f32_dpp v{T(i,k)}, v{T(i,k)}, v{T(i,k)} {ctl}")
        a("s_nop 1")
        for i in R:
            a(f"v_readlane_b32 s{stmp+i}, v{T(i,k)}, 63")
        a("s_nop 1")
    wsum(0)
    for i in R:
        a(f"v_mov_b32 v{T(i,0)}, s{stmp+i}")
        a(f"v_mul_f32 v{T(i,0)}, 0x3a800000, v{T(i,0)}")
    for i in R:
        a(f"v_sub_f32 v{T(i,2)}, v{F_(i,0)}, v{T(i,0)}")
        a(f"v_mul_f32 v{T(i,1)}, v{T(i,2)}, v{T(i,2)}")
    for e in range(1, 16):
        for i in R:
            a(f"v_sub_f32 v{T(i,2)}, v{F_(i,e)}, v{T(i,0)}")
            a(f"v_fmac_f32 v{T(i,1)}, v{T(i,2)}, v{T(i,2)}")
    wsum(1)
    for i in R:
        a(f"v_mov_b32 v{T(i,1)}, s{stmp+i}")
        a(f"v_mul_f32 v{T(i,1)}, 0x3a800000, v{T(i,1)}")
        a(f"v_cvt_pk_bf16_f32 v{T(i,2)}, v{T(i,0)}, v{T(i,1)}")
    for i in R:
        a(f"v_lshlrev_b32 v{T(i,0)}, 16, v{T(i,2)}")
        a(f"v_and_b32 v{T(i,1)}, 0xffff0000, v{T(i,2)}")
        a(f"v_add_f32 v{T(i,1)}, 0x3727c5ac, v{T(i,1)}")
        a(f"v_cvt_pk_bf16_f32 v{T(i,1)}, v{T(i,1)}, v{T(i,1)}")
        a(f"v_and_b32 v{T(i,1)}, 0xffff0000, v{T(i,1)}")
        a(f"v_sqrt_f32 v{T(i,1)}, v{T(i,1)}")
        a("s_nop 0")
        a(f"v_cvt_pk_bf16_f32 v{T(i,1)}, v{T(i,1)}, v{T(i,1)}")
        a(f"v_and_b32 v{T(i,1)}, 0xffff0000, v{T(i,1)}")
        a(f"v_rcp_f32 v{T(i,1)}, v{T(i,1)}")
        a("s_nop 0")
    for i in R:
        for p in range(8):
            a(f"v_sub_f32 v{F_(i,2*p)}, v{F_(i,2*p)}, v{T(i,0)}")
            a(f"v_sub_f32 v{F_(i,2*p+1)}, v{F_(i,2*p+1)}, v{T(i,0)}")
            a(f"v_cvt_pk_bf16_f32 v{T(i,2)}, v{F_(i,2*p)}, v{F_(i,2*p+1)}")
            a(f"v_lshlrev_b32 v{F_(i,2*p)}, 16, v{T(i,2)}")
            a(f"v_and_b32 v{F_(i,2*p+1)}, 0xffff0000, v{T(i,2)}")
            a(f"v_mul_f32 v{F_(i,2*p)}, v{F_(i,2*p)}, v{T(i,1)}")
            a(f"v_mul_f32 v{F_(i,2*p+1)}, v{F_(i,2*p+1)}, v{T(i,1)}")
            a(f"v_cvt_pk_bf16_f32 v{X+8*i+p}, v{F_(i,2*p)}, v{F_(i,2*p+1)}")
    for i in R:
        a(f"buffer_store_dwordx4 {vr(X+8*i,4)}, v{voff+i}, {sr(srd_xn,4)}, 0 offen")
        a(f"buffer_store_dwordx4 {vr(X+8*i+4,4)}, v{voff+i}, {sr(srd_xn,4)}, 0 offen offset:1024")
    for i in R:
        a(f"v_mov_b32 v{T(i,3)}, 0")
    for p in range(8):
        for i in R:
            a(f"v_dot2_f32_bf16 v{T(i,3)}, v{X+8*i+p}, v{WR+p}, v{T(i,3)}")
    a("s_nop 2")
    wsum(3)
    for i in R:
        a(f"v_mov_b32 v{T(i,0)}, s{stmp+i}")
        a(f"v_cvt_pk_bf16_f32 v{T(i,0)}, v{T(i,0)}, v{T(i,0)}")
        a(f"v_and_b32 v{T(i,0)}, 0xffff0000, v{T(i,0)}")
        a(f"s_add_u32 s{stmp+i}, s{srow}, {i}")
        a(f"s_lshl_b32 s{stmp+i}, s{stmp+i}, 2")
        a(f"v_mov_b32 v{T(i,1)}, s{stmp+i}")
        a(f"buffer_store_dword v{T(i,0)}, v{T(i,1)}, {sr(srd_r,4)}, 0 offen")

def gen_ln(name):
    a = Asm()
    a("s_cmp_ge_u32 s2, 256")
    a(f"s_cbranch_scc1 {name}_done")
    a.stamp_init(); a.stamp(0)
    a(f"s_load_dwordx2 s[4:5], s[0:1], {A_X}")
    a(f"s_load_dwordx2 s[6:7], s[0:1], {A_WR}")
    a(f"s_load_dwordx2 s[8:9], s[0:1], {A_WS}")
    a("v_lshrrev_b32 v1, 6, v0")
    a("v_and_b32 v2, 63, v0")
    a("v_readfirstlane_b32 s3, v1")
    a("v_lshlrev_b32 v2, 4, v2")
    a("s_lshl_b32 s10, s2, 3")
    a("s_lshl_b32 s3, s3, 1")
    a("s_add_u32 s10, s10, s3")
    a("s_lshl_b32 s11, s10, 11")
    a("v_add_u32 v3, s11, v2")
    a("v_add_u32 v4, 2048, v3")
    a("s_waitcnt lgkmcnt(0)")
    a.srd(12, 4, 0, S*D*2)
    a.srd(16, 6, 0, D*2)
    a.srd(20, 8, WS_XN, XN_BYTES)
    a.srd(24, 8, WS_R, R_BYTES)
    a.srd(32, 8, WS_Y, Y_BYTES)
    a("v_and_b32 v5, 31, v0")
    a("v_lshlrev_b32 v5, 2, v5")
    a("s_lshl_b32 s11, s2, 7")
    a("v_mov_b32 v6, 0")
    a("buffer_store_dword v6, v5, s[32:35], s11 offen")
    X, WR, XB, T = 8, 24, 32, 64
    for i in range(2):
        a(f"buffer_load_dwordx4 {vr(X+8*i,4)}, v{3+i}, s[12:15], 0 offen")
        a(f"buffer_load_dwordx4 {vr(X+8*i+4,4)}, v{3+i}, s[12:15], 0 offen offset:1024")
    a(f"buffer_load_dwordx4 {vr(WR,4)}, v2, s[16:19], 0 offen")
    a(f"buffer_load_dwordx4 {vr(WR+4,4)}, v2, s[16:19], 0 offen offset:1024")
    a.stamp(1)
    a("s_waitcnt vmcnt(0)")
    a.stamp(2)
    ln_rows(a, 2, X, XB, WR, T, 10, 12, 20, 24, 3, 28)
    a.stamp(3)
    a("s_lshr_b32 s3, s3, 1")
    a.stamp_dump(0, 3)
    a.label(f"{name}_done")
    a("s_endpgm")
    return kernel_header(name) + a.text() + kernel_desc(name, 72, 40)
```

```python
from asmlib import *
from layout import *
from k_moe import round_bf16

def gen_oproj(name):
    a = Asm()
    WA0, WA1, VL, VX, VD = 1, 2, 3, 4, 5
    ACC = 8
    OB = 40
    WB = 104
    XP = 120
    G = 136
    NP = 168
    T = 184
    a("s_cmp_ge_u32 s2, 256")
    a(f"s_cbranch_scc1 {name}_done")
    a.stamp_init(); a.stamp(0)
    a(f"s_load_dwordx2 s[4:5], s[0:1], {A_X}")
    a(f"s_load_dwordx2 s[6:7], s[0:1], {A_WO}")
    a(f"s_load_dwordx2 s[8:9], s[0:1], {A_OUT}")
    a(f"s_load_dwordx2 s[10:11], s[0:1], {A_WS}")
    a("v_lshrrev_b32 v6, 6, v0")
    a("v_and_b32 v0, 63, v0")
    a("v_readfirstlane_b32 s3, v6")
    a("s_bfe_u32 s36, s2, 0x20001")
    a("s_lshl_b32 s36, s36, 2")
    a("s_bfe_u32 s37, s2, 0x20003")
    a("s_add_u32 s36, s36, s37")
    a("s_and_b32 s37, s2, 1")
    a("s_lshl_b32 s37, s37, 3")
    a("s_lshr_b32 s38, s2, 5")
    a("s_add_u32 s37, s37, s38")
    a("s_lshl_b32 s38, s36, 2")
    a("s_add_u32 s38, s38, s3")
    a(f"v_lshlrev_b32 v{VL}, 4, v0")
    a("v_bfe_u32 v6, v0, 4, 1")
    a("v_lshlrev_b32 v6, 2, v6")
    a("v_and_b32 v7, 7, v0")
    a("v_xor_b32 v6, v6, v7")
    a("v_lshrrev_b32 v7, 3, v0")
    a("v_lshlrev_b32 v7, 11, v7")
    a(f"v_lshl_add_u32 v{VD}, v6, 4, v7")
    a("s_lshl_b32 s39, s37, 7")
    a("s_lshl_b32 s40, s3, 16")
    a("s_add_u32 s39, s39, s40")
    a(f"v_add_u32 v{VD}, s39, v{VD}")
    a("v_and_b32 v6, 31, v0")
    a("s_lshl_b32 s39, s38, 5")
    a("v_add_u32 v6, s39, v6")
    a("v_lshrrev_b32 v7, 5, v0")
    a(f"v_lshlrev_b32 v{VX}, 11, v6")
    a(f"v_lshl_add_u32 v{VX}, v7, 4, v{VX}")
    a("s_lshl_b32 s39, s37, 7")
    a(f"v_add_u32 v{VX}, s39, v{VX}")
    a("s_waitcnt lgkmcnt(0)")
    a("s_add_u32 s44, s10, " + hex(WS_IDX))
    a("s_addc_u32 s45, s11, 0")
    a("s_load_dwordx16 s[48:63], s[44:45], 0")
    a.srd(12, 4, 0, S*D*2)
    a.srd(16, 6, 0, D*D*2)
    a.srd(20, 8, 0, S*D*2)
    a.srd(24, 10, WS_XN, XN_BYTES)
    a.srd(28, 10, WS_O, O_BYTES)
    a.srd(32, 10, WS_Y, Y_BYTES)
    for q in range(4):
        a(f"buffer_load_dwordx4 {vr(NP+4*q,4)}, v{VX}, s[24:27], 0 offen offset:{q*32}")
    for q in range(4):
        a(f"buffer_load_dwordx4 {vr(XP+4*q,4)}, v{VX}, s[12:15], 0 offen offset:{q*32}")
    a("s_lshl_b32 s41, s38, 16")
    a("s_mov_b32 s42, 0")
    a("s_lshl_b32 s43, s3, 12")
    def dma_chunk():
        o = []
        for i in range(4):
            o.append(f"s_add_u32 m0, s43, {i*1024}\ns_add_u32 s46, s42, {i*8*2048}\nbuffer_load_dwordx4 v{VD}, s[16:19], s46 offen lds")
        o.append(f"s_add_u32 s43, s43, 16384\ns_add_u32 s42, s42, {128*2048}")
        return o
    def oload(par, ks):
        base = "s41" if ks < 4 else "s47"
        return f"buffer_load_dwordx4 {vr(OB+32*par+4*ks,4)}, v{VL}, s[28:31], {base} offen offset:{(ks&3)*1024}"
    def oadv(): return "s_add_u32 s41, s41, 8192\ns_add_u32 s47, s47, 8192"
    a("s_add_u32 s47, s41, 4096")
    for par in range(2):
        a(*dma_chunk())
        for ks in range(8): a(oload(par, ks))
        a(oadv())
    a("v_bfe_u32 v6, v0, 2, 2")
    a("v_lshl_add_u32 v6, v7, 2, v6")
    a("v_lshlrev_b32 v6, 7, v6")
    a(f"v_bfe_u32 v{T}, v0, 4, 1")
    a(f"v_lshlrev_b32 v{T}, 1, v{T}")
    a(f"v_bfe_u32 v{T+1}, v0, 1, 1")
    a(f"v_add_u32 v{T}, v{T}, v{T+1}")
    a(f"v_bfe_u32 v{T+1}, v0, 3, 1")
    a(f"v_lshlrev_b32 v{T+1}, 2, v{T+1}")
    a(f"v_xor_b32 v{T}, v{T}, v{T+1}")
    a(f"v_and_b32 v{T+1}, 1, v0")
    a(f"v_lshl_add_u32 v6, v{T+1}, 3, v6")
    a(f"v_lshl_add_u32 v{WA0}, v{T}, 4, v6")
    a(f"v_xor_b32 v{WA1}, 64, v{WA0}")
    for r in range(32): a(f"v_mov_b32 v{ACC+r}, 0")
    a.stamp(1)
    a("s_waitcnt vmcnt(28)")
    for p in range(16):
        a(f"v_lshlrev_b32 v{G+2*p}, 16, v{NP+p}")
        a(f"v_and_b32 v{G+2*p+1}, 0xffff0000, v{NP+p}")
    a(f"v_lshrrev_b32 v{T}, 11, v{VX}")
    a(f"v_mov_b32 v{T+1}, -1")
    a(f"v_mov_b32 v{T+2}, 0")
    a("s_waitcnt lgkmcnt(0)")
    for i in range(8):
        a(f"v_cmp_eq_u32 vcc, s{48+i}, v{T}")
        a(f"v_mov_b32 v{T+3}, {i}")
        a(f"v_mov_b32 v{T+4}, s{56+i}")
        a(f"v_cndmask_b32 v{T+1}, v{T+1}, v{T+3}, vcc")
        a(f"v_cndmask_b32 v{T+2}, v{T+2}, v{T+4}, vcc")
    a(f"v_cmp_le_i32 vcc, 0, v{T+1}")
    a("s_and_saveexec_b64 s[44:45], vcc")
    a(f"s_cbranch_execz {name}_norout")
    a(f"v_and_b32 v{T+3}, 0x7ff, v{VX}")
    a(f"v_lshlrev_b32 v{T+3}, 1, v{T+3}")
    a(f"v_lshl_add_u32 v{T+3}, v{T+1}, 12, v{T+3}")
    for q in range(4):
        for hh in range(2):
            a(f"buffer_load_dwordx4 {vr(NP+4*hh,4)}, v{T+3}, s[32:35], 0 offen offset:{q*64+hh*16}")
        a("s_waitcnt vmcnt(0)")
        for e in range(8):
            round_bf16(a, NP+e)
            a(f"v_mul_f32 v{NP+e}, v{NP+e}, v{T+2}")
            round_bf16(a, NP+e)
            a(f"v_add_f32 v{G+8*q+e}, v{G+8*q+e}, v{NP+e}")
            round_bf16(a, G+8*q+e)
    a.label(f"{name}_norout")
    a("s_mov_b64 exec, s[44:45]")
    a.stamp(2)
    for b in range(0, 32, 8):
        for e in range(8): a(f"v_mul_f32 v{T+e}, 0xbfb8aa3b, v{G+b+e}")
        for e in range(8): a(f"v_exp_f32 v{T+e}, v{T+e}")
        for e in range(8): a(f"v_add_f32 v{T+e}, 1.0, v{T+e}")
        for e in range(8): a(f"v_rcp_f32 v{T+e}, v{T+e}")
        for e in range(8): a(f"v_mul_f32 v{G+b+e}, v{G+b+e}, v{T+e}")

    def wreads(buf, ks):
        o = []
        for ct in range(2):
            for t in range(2):
                o.append(f"ds_read_b64_tr_b16 {vr(WB+8*buf+4*ct+2*t,2)}, v{WA0+ct} offset:{ks*2048+t*1024}")
        return o
    def chunk(par, issue, last):
        a(f"s_waitcnt vmcnt({0 if last else 12})")
        a("s_barrier")
        a(*wreads(0, 0))
        if issue: a(*dma_chunk())
        for ks in range(8):
            if ks < 7:
                a(*wreads((ks+1) & 1, ks+1))
                a("s_waitcnt lgkmcnt(4)")
            else:
                a("s_waitcnt lgkmcnt(0)")
            for ct in range(2):
                a(f"v_mfma_f32_32x32x16_bf16 {vr(ACC+16*ct,16)}, {vr(WB+8*(ks&1)+4*ct,4)}, {vr(OB+32*par+4*ks,4)}, {vr(ACC+16*ct,16)}")
            if issue: a(oload(par, ks))
        if issue: a(oadv())
        a(f"v_add_u32 v{WA0}, 16384, v{WA0}")
        a(f"v_add_u32 v{WA1}, 16384, v{WA1}")
    a.stamp(3)
    a("s_mov_b32 s46, 0")
    a("s_mov_b32 s64, 0")
    a(".p2align 6")
    a.label(f"{name}_loop")
    chunk(0, True, False)
    chunk(1, True, False)
    a("s_add_u32 s64, s64, 1")
    a("s_cmp_lt_u32 s64, 3")
    a(f"s_cbranch_scc1 {name}_loop")
    a.stamp(4)
    chunk(0, False, False)
    chunk(1, False, True)
    a.stamp(5)
    a("s_nop 7")
    a("s_nop 3")
    for ct in range(2):
        for jj in range(2):
            b = ACC + 16*ct + 8*jj
            for e in range(4):
                a(f"v_permlane32_swap_b32 v{b+e}, v{b+4+e}")
            q = 2*ct + jj
            for p in range(4):
                a(f"v_lshlrev_b32 v{T}, 16, v{XP+4*q+p}")
                a(f"v_and_b32 v{T+1}, 0xffff0000, v{XP+4*q+p}")
                a(f"v_fmac_f32 v{T}, v{b+2*p}, v{G+8*q+2*p}")
                a(f"v_fmac_f32 v{T+1}, v{b+2*p+1}, v{G+8*q+2*p+1}")
                a(f"v_cvt_pk_bf16_f32 v{XP+4*q+p}, v{T}, v{T+1}")
            a(f"buffer_store_dwordx4 {vr(XP+4*q,4)}, v{VX}, s[20:23], 0 offen offset:{q*32}")
    a.stamp(6)
    a.stamp_dump(6, 3)
    a.label(f"{name}_done")
    a("s_endpgm")
    return kernel_header(name) + a.text() + kernel_desc(name, 192, 72)
```

```python
from asmlib import *
from layout import *

SLOT = 40960
QSCALE = 0x3e8293ee

def gen_qkv(name, nomfma=False, noload=False, kid=2, nods=False, fake16=False):
    a = Asm()
    a("s_cmp_ge_u32 s2, 256")
    a(f"s_cbranch_scc1 {name}_done")
    a.stamp_init(); a.stamp(0)
    a(f"s_load_dwordx2 s[4:5], s[0:1], {A_WQKV}")
    a(f"s_load_dwordx2 s[8:9], s[0:1], {A_WS}")
    a("v_lshrrev_b32 v1, 6, v0")
    a("v_and_b32 v0, 63, v0")
    a("v_readfirstlane_b32 s3, v1")
    a("s_and_b32 s10, s2, 1")
    a("s_lshl_b32 s10, s10, 3")
    a("s_bfe_u32 s11, s2, 0x30003")
    a("s_add_u32 s10, s10, s11")
    a("s_bfe_u32 s11, s2, 0x20001")
    a("s_lshl_b32 s11, s11, 2")
    a("s_lshr_b32 s28, s2, 6")
    a("s_add_u32 s11, s11, s28")
    a("s_cmp_ge_u32 s3, 4")
    a(f"s_cbranch_scc1 {name}_loader")

    XA, WA = 2, 6
    B0 = 8
    ACC = 48
    a("s_lshr_b32 s29, s3, 1")
    a("s_and_b32 s30, s3, 1")
    a("v_and_b32 v1, 31, v0")
    a("s_lshl_b32 s31, s29, 6")
    a("v_add_u32 v1, s31, v1")
    a("v_lshlrev_b32 v1, 7, v1")
    a("v_bfe_u32 v7, v0, 1, 3")
    a("v_lshrrev_b32 v8, 5, v0")
    for ks in range(4):
        a(f"v_add_u32 v9, {2*ks}, v8")
        a("v_xor_b32 v9, v9, v7")
        a(f"v_lshl_add_u32 v{XA+ks}, v9, 4, v1")
    a("v_bfe_u32 v1, v0, 2, 2")
    a("v_lshl_add_u32 v1, v8, 3, v1")
    a("v_lshlrev_b32 v1, 7, v1")
    a("v_bfe_u32 v9, v0, 4, 1")
    a("v_lshlrev_b32 v9, 1, v9")
    a("v_bfe_u32 v10, v0, 1, 1")
    a("v_add_u32 v9, v9, v10")
    a("s_lshl_b32 s31, s30, 2")
    a("v_add_u32 v9, s31, v9")
    a("v_bfe_u32 v10, v0, 3, 1")
    a("v_lshlrev_b32 v10, 2, v10")
    a("v_xor_b32 v9, v9, v10")
    a("v_lshl_add_u32 v1, v9, 4, v1")
    a("v_and_b32 v9, 1, v0")
    a("v_lshl_add_u32 v1, v9, 3, v1")
    a(f"v_add_u32 v{WA}, 16384, v1")
    for r in range(96):
        a(f"v_mov_b32 v{ACC+r}, 0")
    a("s_waitcnt lgkmcnt(0)")
    a.srd(12, 8, WS_Q, Q_BYTES)
    a.srd(16, 8, WS_KV, KV_BYTES)

    def reads(buf, ks):
        b = B0 + 20*buf
        if nods: return ["s_nop 0"]*8
        o = [f"ds_read_b128 {vr(b,4)}, v{XA+ks}"]
        for t in range(2): o.append(f"ds_read_b64_tr_b16 {vr(b+8+2*t,2)}, v{WA} offset:{ks*2048+t*512}")
        o.append(f"ds_read_b128 {vr(b+4,4)}, v{XA+ks} offset:4096")
        for seg in (1, 2):
            for t in range(2): o.append(f"ds_read_b64_tr_b16 {vr(b+8+4*seg+2*t,2)}, v{WA} offset:{seg*8192+ks*2048+t*512}")
        return o
    def mfmas(buf):
        b = B0 + 20*buf
        o = []
        for seg in range(3):
            for aa in range(2):
                acc = ACC + 16*(aa*3+seg)
                x = vr(b+4*aa, 4); w = vr(b+8+4*seg, 4)
                A, B = (w, x) if seg < 2 else (x, w)
                if fake16:
                    q = 4*(buf*2)
                    o.append(f"v_mfma_f32_16x16x32_bf16 {vr(acc+q,4)}, {A}, {B}, {vr(acc+q,4)}\nv_mfma_f32_16x16x32_bf16 {vr(acc+q+4,4)}, {B}, {A}, {vr(acc+q+4,4)}")
                else:
                    o.append(f"v_mfma_f32_32x32x16_bf16 {vr(acc,16)}, {A}, {B}, {vr(acc,16)}" if not nomfma else "s_nop 0")
        return o
    a("s_mov_b32 s20, 0")
    a("s_mov_b32 s21, 0")
    a(f"s_mov_b32 s23, {(-2*SLOT) & 0xffffffff:#x}")
    a.stamp(1)
    a("s_barrier")
    a.stamp(2); a.cstamp(5)
    a(*reads(0, 0))
    a(".p2align 6")
    a.label(f"{name}_cloop")
    for ks in range(4):
        m = mfmas(ks & 1)
        a("s_waitcnt lgkmcnt(0)")
        if ks < 3:
            r = reads((ks+1) & 1, ks+1)
            a(m[0], *r[0:3], m[1], *r[3:6], m[2], *r[6:8], m[3], m[4], m[5])
        else:
            a(m[0])
            a("s_add_u32 s21, s21, 1")
            a("s_cmp_eq_u32 s21, 3")
            a(f"s_cselect_b32 s22, s23, {SLOT}")
            a("s_cselect_b32 s21, 0, s21")
            a("s_add_u32 s20, s20, 1")
            a("s_barrier")
            for q in range(5):
                a(f"v_add_u32 v{XA+q}, s22, v{XA+q}")
            r = reads(0, 0)
            a(m[1], *r[0:3], m[2], *r[3:6], m[3], *r[6:8], m[4])
            a("s_cmp_lt_u32 s20, 16")
            a(m[5])
            a(f"s_cbranch_scc1 {name}_cloop")
    a.stamp(3); a.cstamp(6)
    a("s_lshl_b32 s20, s11, 1")
    a("s_add_u32 s20, s20, s30")
    a("s_lshl_b32 s21, s10, 2")
    a("s_lshl_b32 s22, s29, 1")
    a("s_add_u32 s21, s21, s22")
    a("s_lshl_b32 s22, s20, 17")
    a("s_lshl_b32 s23, s21, 11")
    a("s_add_u32 s22, s22, s23")
    a("s_lshl_b32 s24, s20, 18")
    a("s_lshl_b32 s23, s21, 12")
    a("s_add_u32 s24, s24, s23")
    a("s_add_u32 s25, s24, 4096")
    a("v_lshlrev_b32 v1, 4, v0")
    a(f"s_mov_b32 s26, {QSCALE:#x}")
    a("s_waitcnt lgkmcnt(0)")
    a("s_nop 7")
    P = B0
    n = 0
    for seg in (1, 2, 0):
        for aa in range(2):
            acc = ACC + 16*(aa*3+seg)
            for jj in range(2):
                p = P + 4*(n % 4); n += 1
                for e in range(4):
                    r0 = acc + 8*jj + 2*e
                    if seg == 0:
                        a(f"v_mul_f32 v{r0}, s26, v{r0}")
                        a(f"v_mul_f32 v{r0+1}, s26, v{r0+1}")
                    a(f"v_cvt_pk_bf16_f32 v{p+e}, v{r0}, v{r0+1}")
                if seg == 0:
                    a(f"buffer_store_dwordx4 {vr(p,4)}, v1, s[12:15], s22 offen offset:{aa*2048+jj*1024}")
                else:
                    a(f"buffer_store_dwordx4 {vr(p,4)}, v1, s[16:19], s{24+aa} offen offset:{(seg-1)*2048+jj*1024}")
    a.stamp(4)
    a.stamp_dump(kid, 3)
    a("s_endpgm")

    a.label(f"{name}_loader")
    a("s_sub_u32 s3, s3, 4")
    a("v_lshrrev_b32 v1, 3, v0")
    a("v_and_b32 v2, 7, v0")
    a("s_lshl_b32 s28, s10, 7")
    a("s_lshl_b32 s29, s3, 5")
    a("s_add_u32 s28, s28, s29")
    a("v_add_u32 v3, s28, v1")
    a("v_lshlrev_b32 v3, 11, v3")
    a("v_lshrrev_b32 v4, 1, v1")
    for i in range(4):
        a(f"v_add_u32 v5, {(4*i) & 7}, v4")
        a("v_xor_b32 v5, v5, v2")
        a(f"v_lshl_add_u32 v{8+i}, v5, 4, v3")
        if i: a(f"v_add_u32 v{8+i}, {i*8*2048}, v{8+i}")
    a("v_bfe_u32 v5, v0, 4, 1")
    a("v_lshlrev_b32 v5, 2, v5")
    a("v_xor_b32 v5, v5, v2")
    a("v_mul_u32_u24 v6, 6144, v1")
    a("v_lshl_add_u32 v6, v5, 4, v6")
    a("s_lshl_b32 s28, s11, 7")
    a("v_add_u32 v6, s28, v6")
    a("s_mul_i32 s29, s3, 6")
    for ii in range(6):
        a(f"s_add_u32 s30, s29, {ii}")
        a("s_lshr_b32 s31, s30, 3")
        a("s_lshl_b32 s31, s31, 11")
        a("s_and_b32 s30, s30, 7")
        a("s_mul_i32 s30, s30, 8*6144")
        a("s_add_u32 s30, s30, s31")
        a(f"v_add_u32 v{12+ii}, s30, v6")
    a("s_lshl_b32 s24, s3, 12")
    a("s_mul_i32 s25, s3, 6144")
    a("s_add_u32 s25, s25, 16384")
    a("s_waitcnt lgkmcnt(0)")
    a.srd(12, 8, WS_XN, XN_BYTES)
    a.srd(16, 4, 0, D*3*D*2)
    a("s_mov_b32 s20, 0")
    a("s_mov_b32 s21, 0")
    a("s_mov_b32 s22, 0")
    def issue():
        a("s_add_u32 s26, s22, s24")
        a("s_add_u32 s27, s22, s25")
        for i in range(4):
            a(f"s_add_u32 m0, s26, {i*1024}")
            a("s_nop 0")
            if not noload: a(f"buffer_load_dwordx4 v{8+i}, s[12:15], s20 offen lds")
        for ii in range(6):
            a(f"s_add_u32 m0, s27, {ii*1024}")
            a("s_nop 0")
            if not noload: a(f"buffer_load_dwordx4 v{12+ii}, s[16:19], s21 offen lds")
        a("s_add_u32 s20, s20, 128")
        a(f"s_add_u32 s21, s21, {64*6144}")
        a(f"s_add_u32 s22, s22, {SLOT}")
        a(f"s_cmp_eq_u32 s22, {3*SLOT}")
        a("s_cselect_b32 s22, 0, s22")
    a("s_mov_b32 s23, 0")
    a.stamp(1)
    a.label(f"{name}_lpro")
    issue()
    a("s_add_u32 s23, s23, 1")
    a("s_cmp_lt_u32 s23, 3")
    a(f"s_cbranch_scc1 {name}_lpro")
    a.stamp(2)
    a("s_waitcnt vmcnt(20)")
    a.stamp(3)
    a("s_barrier")
    a.label(f"{name}_lloop")
    a("s_waitcnt vmcnt(10)")
    a("s_barrier")
    issue()
    a("s_add_u32 s23, s23, 1")
    a("s_cmp_lt_u32 s23, 16")
    a(f"s_cbranch_scc1 {name}_lloop")
    a("s_waitcnt vmcnt(10)")
    a("s_barrier")
    a("s_waitcnt vmcnt(0)")
    a("s_barrier")
    a("s_barrier")
    a.stamp(4)
    a("s_add_u32 s3, s3, 4")
    a.stamp_dump(kid, 3)
    a.label(f"{name}_done")
    a("s_endpgm")
    return kernel_header(name) + a.text() + kernel_desc(name, 144, 48)
```

```python
A_X, A_WQKV, A_WO, A_BX, A_WR, A_WG, A_WU, A_WD, A_OUT, A_DBG, A_WS = [8*i for i in range(11)]
S, D, H, DH, F, C = 2048, 1024, 32, 32, 3584, 8
WS_XN  = 0x0000000; XN_BYTES  = S*D*2
WS_Q   = 0x0400000; Q_BYTES   = S*D*2
WS_KV  = 0x0800000; KV_BYTES  = S*D*4
WS_O   = 0x1000000; O_BYTES   = S*D*2
WS_R   = 0x1400000; R_BYTES   = S*4
WS_IDX = 0x1410000; IDX_BYTES = 64
WS_H   = 0x1420000; H_BYTES   = 8*F*2
WS_Y   = 0x1440000; Y_BYTES   = 8*D*4
WS_ST  = 0x1450000
WS_KVF = 0x1460000
WS_OF  = 0x1470000
WS_HF  = 0x1474000
WS_YF  = 0x147C000
WS_CSP = 0x1490000
WS_DBG = 0x14F8000
WS_USED = 0x1500000
```

```python
import sys, json
from build import build
from fused import gen_fused, LDS_BYTES
import functools as ft
out = sys.argv[1]
opt = json.loads(sys.argv[2]) if len(sys.argv) > 2 else {}
KN = "recurrent_scan__softmax_full_mha__moe_arch_mod__prompt_kernel"
txt = build([(KN, ft.partial(gen_fused, **opt), 256, 512, LDS_BYTES)])
if opt.get("plain"): txt = txt.replace(f"; @launch kernel={KN} grid", "; @launch grid")
open(out, "w").write(txt)
```

```python
import os
from asmlib import *
from layout import *
from k_top8 import DPPS, make_keys, decode_keys
from k_attn import M32, M16
import k_attn2 as AT
from k_moe import pi_row, silu_bf16, round_bf16

QSCALE = 0x3e8293ee
sX, sWQ, sWS, sWR, sDBG, sWG, sWU, sWD, sWO, sOUT = 4, 8, 12, 16, 20, 24, 28, 32, 36, 40
sJ, sMT, sLI, sXC = 44, 45, 46, 47
sIDX, sWT = 48, 56
sT = 64
W = 3
SLOT, WOFF = 40960, 16384
L_Q, L_XS, L_MISC = 122880, 139264, 159744
L_M, L_RS, L_CS, L_CAND, L_IDX, L_H = L_MISC, L_MISC+512, L_MISC+1024, L_MISC+1792, L_MISC+1920, L_MISC+2048
L_ST, L_CNT = L_MISC+3072, L_MISC+3200
LDS_BYTES = 163840
SPIN_LIMIT = 400000
XSEL_RAW, XSEL_ST = 200, 216

def srd(r): return f"s[{r}:{r+3}]"

def wsum(a, r, sdst, op="add_f32"):
    for ctl in DPPS:
        bc = " bound_ctrl:0" if ctl.startswith("row_shr") and op == "add_f32" else ""
        a("s_nop 1")
        a(f"v_{op}_dpp v{r}, v{r}, v{r} {ctl}{bc}")
    a("s_nop 0")
    a(f"v_readlane_b32 s{sdst}, v{r}, 63")
    a("s_nop 1")

def ln_rows2(a, vm, X, WR, XB, T, voff, dbg):
    R2 = range(2)
    F_ = lambda i, e: XB + 16*i + e
    T_ = lambda i, k: T + 6*i + k
    def wsum2(k, sd):
        for ctl in DPPS:
            bc = " bound_ctrl:0" if ctl.startswith("row_shr") else ""
            a("s_nop 0")
            for i in R2: a(f"v_add_f32_dpp v{T_(i,k)}, v{T_(i,k)}, v{T_(i,k)} {ctl}{bc}")
        a("s_nop 0")
        for i in R2: a(f"v_readlane_b32 s{sT+3*i+sd}, v{T_(i,k)}, 63")
        a("s_nop 0")
    for i in R2:
        for p in range(8):
            a(f"v_lshlrev_b32 v{F_(i,2*p)}, 16, v{X+8*i+p}")
            a(f"v_and_b32 v{F_(i,2*p+1)}, 0xffff0000, v{X+8*i+p}")
    for i in R2:
        a(f"v_add_f32 v{T_(i,0)}, v{F_(i,0)}, v{F_(i,1)}")
    for e in range(2, 16):
        for i in R2: a(f"v_add_f32 v{T_(i,0)}, v{T_(i,0)}, v{F_(i,e)}")
    a("s_nop 0")
    wsum2(0, 0)
    for i in R2:
        a(f"v_mov_b32 v{T_(i,0)}, s{sT+3*i}")
    for i in R2:
        a(f"v_mul_f32 v{T_(i,0)}, 0x3a800000, v{T_(i,0)}")
    for i in R2:
        a(f"v_sub_f32 v{T_(i,2)}, v{F_(i,0)}, v{T_(i,0)}")
        a(f"v_mul_f32 v{T_(i,1)}, v{T_(i,2)}, v{T_(i,2)}")
    for e in range(1, 16):
        for i in R2:
            a(f"v_sub_f32 v{T_(i,2)}, v{F_(i,e)}, v{T_(i,0)}")
            a(f"v_fmac_f32 v{T_(i,1)}, v{T_(i,2)}, v{T_(i,2)}")
    wsum2(1, 0)
    seq = lambda i: [
        f"v_mov_b32 v{T_(i,1)}, s{sT+3*i}",
        f"v_mul_f32 v{T_(i,1)}, 0x3a800000, v{T_(i,1)}",
        f"v_cvt_pk_bf16_f32 v{T_(i,2)}, v{T_(i,0)}, v{T_(i,1)}",
        f"v_lshlrev_b32 v{T_(i,0)}, 16, v{T_(i,2)}",
        f"v_and_b32 v{T_(i,1)}, 0xffff0000, v{T_(i,2)}",
        f"v_add_f32 v{T_(i,1)}, 0x3727c5ac, v{T_(i,1)}",
        f"v_cvt_pk_bf16_f32 v{T_(i,1)}, v{T_(i,1)}, v{T_(i,1)}",
        f"v_and_b32 v{T_(i,1)}, 0xffff0000, v{T_(i,1)}",
        f"v_sqrt_f32 v{T_(i,1)}, v{T_(i,1)}",
        f"v_readfirstlane_b32 s{sT+3*i}, v{T_(i,0)}",
        f"v_cvt_pk_bf16_f32 v{T_(i,1)}, v{T_(i,1)}, v{T_(i,1)}",
        f"v_and_b32 v{T_(i,1)}, 0xffff0000, v{T_(i,1)}",
        f"v_rcp_f32 v{T_(i,1)}, v{T_(i,1)}",
        f"v_mov_b32 v{T_(i,3)}, 0"]
    for x, y in zip(seq(0), seq(1)): a(x, y)
    for p in range(8):
        st = lambda i: [
            f"v_sub_f32 v{F_(i,2*p)}, v{F_(i,2*p)}, v{T_(i,0)}",
            f"v_sub_f32 v{F_(i,2*p+1)}, v{F_(i,2*p+1)}, v{T_(i,0)}",
            f"v_cvt_pk_bf16_f32 v{T_(i,2)}, v{F_(i,2*p)}, v{F_(i,2*p+1)}",
            f"v_lshlrev_b32 v{F_(i,2*p)}, 16, v{T_(i,2)}",
            f"v_and_b32 v{F_(i,2*p+1)}, 0xffff0000, v{T_(i,2)}",
            f"v_mul_f32 v{F_(i,2*p)}, v{F_(i,2*p)}, v{T_(i,1)}",
            f"v_mul_f32 v{F_(i,2*p+1)}, v{F_(i,2*p+1)}, v{T_(i,1)}",
            f"v_cvt_pk_bf16_f32 v{X+8*i+p}, v{F_(i,2*p)}, v{F_(i,2*p+1)}"]
        for x, y in zip(st(0), st(1)): a(x, y)
    for i in R2: a(f"v_readfirstlane_b32 s{sT+3*i+1}, v{T_(i,1)}")
    if dbg:
        for i in R2:
            a(f"buffer_store_dwordx4 {vr(X+8*i,4)}, v{voff}, {srd(sWS)}, 0 offen offset:{2048*i}")
            a(f"buffer_store_dwordx4 {vr(X+8*i+4,4)}, v{voff}, {srd(sWS)}, 0 offen offset:{2048*i+1024}")
    for p in range(8):
        for i in R2: a(f"v_dot2c_f32_bf16 v{T_(i,3)}, v{X+8*i+p}, v{WR+p}")
    a("s_nop 1")
    wsum2(3, 2)
    for i in R2: a(f"v_mov_b32 v{T_(i,0)}, s{sT+3*i+2}")
    for i in R2: a(f"v_cvt_pk_bf16_f32 v{T_(i,0)}, v{T_(i,0)}, v{T_(i,0)}")
    for i in R2: a(f"v_and_b32 v{T_(i,0)}, 0xffff0000, v{T_(i,0)}")
    a(f"v_mov_b32 v{T+1}, s{sT}")
    a(f"v_readfirstlane_b32 s{sT+2}, v{T_(0,0)}")
    a(f"v_readfirstlane_b32 s{sT+5}, v{T_(1,0)}")
    a(f"v_lshlrev_b32 v{T+2}, 5, v0")
    a(f"s_lshl_b32 s{sT+6}, s{W}, 3")
    a(f"s_add_u32 s{sT+6}, s{sT+6}, {L_ST}")
    a(f"v_add_u32 v{T+2}, s{sT+6}, v{T+2}")
    for l in range(1, 6): a(f"v_writelane_b32 v{T+1}, s{sT+l}, {l}")
    for l in range(3):
        a(f"s_add_u32 s{sT+7}, s{sT+6}, {l*32+4}")
        a(f"v_writelane_b32 v{T+2}, s{sT+7}, {3+l}")
    a("s_mov_b64 exec, 63")
    a(f"ds_write_b32 v{T+2}, v{T+1}")
    a("s_mov_b64 exec, -1")

def rec_of(a, d):
    a(f"s_lshl_b32 s{d}, s{sMT}, 4")
    a(f"s_add_u32 s{d}, s{d}, s{sJ}")

def publish_stats(a, vm, T):
    A_, D_, U_ = T, T+1, T+2
    t = sT
    a(f"v_lshlrev_b32 v{U_}, 2, v0")
    a(f"v_add_u32 v{A_}, {L_ST}, v{U_}")
    a(f"ds_read_b32 v{D_}, v{A_}")
    rec_of(a, t)
    a(f"s_lshl_b32 s{t}, s{t}, 7")
    a(f"s_add_u32 s{t}, s{t}, {WS_ST}")
    a(f"v_add_u32 v{A_}, s{t}, v{U_}")
    rec_of(a, t)
    a(f"s_lshl_b32 s{t}, s{t}, 5")
    a(f"s_add_u32 s{t}, s{t}, {WS_R - 64}")
    a(f"v_cmp_le_u32 vcc, 16, v0")
    a(f"v_add_u32 v{U_}, s{t}, v{U_}")
    a("s_nop 0")
    a(f"v_cndmask_b32 v{A_}, v{A_}, v{U_}, vcc")
    a(f"s_lshl_b32 s{t}, s{sJ}, 5")
    a(f"s_add_u32 s{t}, s{t}, s{sMT}")
    a(f"s_lshl_b32 s{t}, s{t}, 7")
    a(f"s_add_u32 s{t}, s{t}, {WS_KVF}")
    a(f"v_bfe_u32 v{U_}, v0, 2, 1")
    a(f"v_lshlrev_b32 v{U_}, 11, v{U_}")
    a(f"v_and_b32 v{U_+1}, 3, v0")
    a(f"v_lshl_add_u32 v{U_}, v{U_+1}, 2, v{U_}")
    a(f"v_add_u32 v{U_}, s{t}, v{U_}")
    a(f"v_cmp_le_u32 vcc, 24, v0")
    a(f"s_lshl_b32 s{t}, s{sMT}, 3")
    a(f"s_lshr_b32 s{t+1}, s{sJ}, 3")
    a(f"v_cndmask_b32 v{A_}, v{A_}, v{U_}, vcc")
    a(f"s_add_u32 s{t}, s{t}, s{t+1}")
    a(f"s_lshl_b32 s{t}, s{t}, 7")
    a(f"s_and_b32 s{t+1}, s{sJ}, 7")
    a(f"s_lshl_b32 s{t+1}, s{t+1}, 3")
    a(f"s_add_u32 s{t}, s{t}, s{t+1}")
    a(f"s_add_u32 s{t}, s{t}, {WS_OF}")
    a(f"v_bfe_u32 v{U_}, v0, 1, 2")
    a(f"v_lshlrev_b32 v{U_}, 8, v{U_}")
    a(f"v_and_b32 v{U_+1}, 1, v0")
    a(f"v_lshl_add_u32 v{U_}, v{U_+1}, 2, v{U_}")
    a(f"v_add_u32 v{U_}, s{t}, v{U_}")
    a(f"v_cmp_le_u32 vcc, 32, v0")
    yf_addr(a, t, t+1)
    a(f"v_cndmask_b32 v{A_}, v{A_}, v{U_}, vcc")
    hf_addr(a, t+1)
    a(f"s_cmp_lt_u32 s{sLI}, 28")
    a(f"s_cselect_b32 s{t+1}, s{t+1}, s{t}")
    a(f"v_writelane_b32 v{A_}, s{t}, 40")
    a(f"v_writelane_b32 v{A_}, s{t+1}, 41")
    a(f"v_cmp_gt_u32 vcc, 24, v0")
    a("s_waitcnt lgkmcnt(0)")
    a(f"s_lshl_b32 s{t}, s2, 7")
    a(f"v_cndmask_b32 v{D_}, 0, v{D_}, vcc")
    a("s_bfm_b64 exec, 42, 0")
    a(f"buffer_store_dword v{D_}, v{A_}, {srd(sWS)}, 0 offen sc1")
    a("s_mov_b64 exec, -1")
    a(f"s_add_u32 s{t}, s{t}, {WS_Y}")
    for r in range(4): a(f"v_mov_b32 v{T+4+r}, 0")
    a("s_mov_b64 exec, 0xff")
    a(f"buffer_store_dwordx4 {vr(T+4,4)}, v94, {srd(sWS)}, s{t} offen sc1")
    a("s_mov_b64 exec, -1")
    vm.issue("st", 2, cond=True)

def kvf_addr(a, d, t):
    a(f"s_lshr_b32 s{t}, s{W}, 2")
    a(f"s_lshl_b32 s{d}, s{sJ}, 1")
    a(f"s_add_u32 s{d}, s{d}, s{t}")
    a(f"s_lshl_b32 s{d}, s{d}, 4")
    a(f"s_add_u32 s{d}, s{d}, s{sMT}")
    a(f"s_lshl_b32 s{d}, s{d}, 5")
    a(f"s_and_b32 s{t}, s{W}, 3")
    a(f"s_add_u32 s{d}, s{d}, s{t}")
    a(f"s_lshl_b32 s{d}, s{d}, 2")
    a(f"s_add_u32 s{d}, s{d}, {WS_KVF}")
def otile(a, d, t):
    a(f"s_lshl_b32 s{d}, s{sMT}, 2")
    a(f"s_and_b32 s{t}, s{W}, 2")
    a(f"s_add_u32 s{d}, s{d}, s{t}")
    a(f"s_lshr_b32 s{t}, s{W}, 2")
    a(f"s_add_u32 s{d}, s{d}, s{t}")
def head_of(a, d, t):
    a(f"s_lshl_b32 s{d}, s{sJ}, 1")
    a(f"s_and_b32 s{t}, s{W}, 1")
    a(f"s_add_u32 s{d}, s{d}, s{t}")
def of_addr(a, d, t):
    otile(a, d, t)
    a(f"s_lshl_b32 s{d}, s{d}, 1")
    a(f"s_lshr_b32 s{t}, s{sJ}, 3")
    a(f"s_add_u32 s{d}, s{d}, s{t}")
    a(f"s_lshl_b32 s{d}, s{d}, 5")
    a(f"s_and_b32 s{t}, s{sJ}, 7")
    a(f"s_lshl_b32 s{t}, s{t}, 1")
    a(f"s_add_u32 s{d}, s{d}, s{t}")
    a(f"s_and_b32 s{t}, s{W}, 1")
    a(f"s_add_u32 s{d}, s{d}, s{t}")
    a(f"s_lshl_b32 s{d}, s{d}, 2")
    a(f"s_add_u32 s{d}, s{d}, {WS_OF}")
def cg_of(a, d):
    a(f"s_mul_i32 s{d}, s{sXC}, 28")
    a(f"s_add_u32 s{d}, s{d}, s{sLI}")
def hf_addr(a, d):
    cg_of(a, d)
    a(f"s_lshl_b32 s{d}, s{d}, 7")
    a(f"s_add_u32 s{d}, s{d}, {WS_HF}")
def yf_addr(a, d, t):
    a(f"s_and_b32 s{d}, s2, 15")
    a(f"s_lshl_b32 s{d}, s{d}, 4")
    a(f"s_lshr_b32 s{t}, s2, 4")
    a(f"s_add_u32 s{d}, s{d}, s{t}")
    a(f"s_lshl_b32 s{d}, s{d}, 7")
    a(f"s_add_u32 s{d}, s{d}, {WS_YF}")

def poll_check(a, name, vreg, vaddr, s_srd, want, mask, cold):
    lab = a.new_label(name)
    def cmp(o):
        o(f"v_cmp_ne_u32 vcc, {want}, v{vreg}")
        if mask != -1:
            o(f"s_and_b32 vcc_lo, vcc_lo, {mask & 0xffffffff:#x}")
            o(f"s_and_b32 vcc_hi, vcc_hi, {(mask >> 32) & 0xffffffff:#x}")
        o("s_cmp_lg_u64 vcc, 0")
    cmp(a)
    a(f"s_cbranch_scc1 {lab}_spin")
    a.label(f"{lab}_ok")
    c = Asm()
    c.label(f"{lab}_spin")
    c(f"s_mov_b32 s{sT+11}, 0")
    c.label(f"{lab}_again")
    c(f"buffer_load_dword v{vreg}, v{vaddr}, {srd(s_srd)}, 0 offen sc1")
    c(f"s_add_u32 s{sT+11}, s{sT+11}, 1")
    c(f"s_cmp_gt_u32 s{sT+11}, {SPIN_LIMIT}")
    c(f"s_cbranch_scc1 {lab}_ok")
    c("s_waitcnt vmcnt(0)")
    cmp(c)
    c(f"s_cbranch_scc1 {lab}_again")
    c(f"s_branch {lab}_ok")
    cold.append(c)

def top8_round(a, keys, T, cand, st, rnd):
    n = len(keys)
    if rnd == 0: a(f"s_mov_b32 s{st}, -1")
    for e in range(n):
        a(f"v_sub_u32 v{T+e}, s{st}, v{keys[e]}")
    e = 1
    while e + 1 < n:
        a(f"v_min3_u32 v{T}, v{T}, v{T+e}, v{T+e+1}")
        e += 2
    if e < n: a(f"v_min_u32 v{T}, v{T}, v{T+e}")
    wsum(a, T, st+1, "min_u32")
    a(f"s_sub_u32 s{st}, s{st}, s{st+1}")
    a(f"v_writelane_b32 v{cand}, s{st}, {rnd}")
    a(f"s_sub_u32 s{st}, s{st}, 1")

def prologue(a, name, opt):
    a("s_cmp_ge_u32 s2, 256")
    a(f"s_cbranch_scc1 {name}_done")
    a.stamp_init(); a.stamp(0)
    if opt.get("dbgtime"): a("s_memrealtime s[96:97]")
    for r, off in ((sX, A_X), (sWQ, A_WQKV), (sWS, A_WS), (sWR, A_WR), (sDBG, A_DBG), (sWG, A_WG), (sWU, A_WU),
                   (sWD, A_WD), (sWO, A_WO), (sOUT, A_OUT)):
        a(f"s_load_dwordx2 s[{r}:{r+1}], s[0:1], {off}")
    a("v_lshrrev_b32 v1, 6, v0")
    a("v_and_b32 v0, 63, v0")
    a(f"v_readfirstlane_b32 s{W}, v1")
    a(f"s_and_b32 s{sXC}, s2, 7")
    a(f"s_lshr_b32 s{sLI}, s2, 3")
    a(f"s_and_b32 s{sMT}, s{sXC}, 1")
    a(f"s_lshl_b32 s{sMT}, s{sMT}, 3")
    a(f"s_and_b32 s{sT}, s{sLI}, 7")
    a(f"s_add_u32 s{sMT}, s{sMT}, s{sT}")
    a(f"s_lshr_b32 s{sJ}, s{sXC}, 1")
    a(f"s_lshl_b32 s{sJ}, s{sJ}, 2")
    a(f"s_lshr_b32 s{sT}, s{sLI}, 3")
    a(f"s_add_u32 s{sJ}, s{sJ}, s{sT}")
    a(f"s_lshl_b32 s{sT+3}, s{sMT}, 4")
    a(f"s_add_u32 s{sT+3}, s{sT+3}, s{sJ}")
    a(f"s_lshl_b32 s{sT+3}, s{sT+3}, 2")
    a(f"s_add_u32 s{sT+3}, s{sT+3}, s{W}")
    a(f"s_lshl_b32 s{sT}, s{sT+3}, 12")
    a("v_lshlrev_b32 v94, 4, v0")
    a(f"v_add_u32 v95, s{sT}, v94")
    for r, n in ((sX, S*D*2), (sWQ, D*3*D*2), (sWS, WS_USED), (sWR, D*2), (sDBG, 256), (sWG, D*F*2), (sWU, D*F*2),
                 (sWD, D*F*2), (sWO, D*D*2), (sOUT, S*D*2)):
        a(f"s_mov_b32 s{r+2}, {n:#x}")
        a(f"s_mov_b32 s{r+3}, 0x00020000")

def phaseA_loader(a, name, cold, opt):
    vm = VM(a)
    LW, XB_, WB_, SX, SW = 48, 49, 50, 51, 52
    a(f"s_sub_u32 s{LW}, s{W}, 4")
    a("v_lshrrev_b32 v16, 3, v0")
    a("v_and_b32 v17, 7, v0")
    a(f"s_lshl_b32 s{sT}, s{sMT}, 7")
    a(f"s_lshl_b32 s{sT+1}, s{LW}, 5")
    a(f"s_add_u32 s{sT}, s{sT}, s{sT+1}")
    a(f"v_add_u32 v18, s{sT}, v16")
    a("v_lshlrev_b32 v18, 11, v18")
    a("v_lshrrev_b32 v19, 1, v16")
    a("v_xor_b32 v20, v19, v17")
    a("v_lshl_add_u32 v1, v20, 4, v18")
    a("v_xor_b32 v20, 4, v20")
    a("v_lshl_add_u32 v2, v20, 4, v18")
    a(f"v_add_u32 v2, {8*2048}, v2")
    a(f"v_add_u32 v3, {16*2048}, v1")
    a(f"v_add_u32 v4, {16*2048}, v2")
    a(f"s_lshl_b32 s{sT}, s{LW}, 4")
    a(f"v_add_u32 v18, s{sT}, v16")
    a("v_mul_u32_u24 v18, 6144, v18")
    a(f"s_lshl_b32 s{sT}, s{sJ}, 7")
    a(f"v_add_u32 v18, s{sT}, v18")
    a("v_bfe_u32 v19, v0, 4, 1")
    a("v_lshlrev_b32 v19, 1, v19")
    a("v_xor_b32 v19, v19, v17")
    a("v_lshl_add_u32 v5, v19, 4, v18")
    a("v_xor_b32 v19, 4, v19")
    a("v_lshl_add_u32 v6, v19, 4, v18")
    a(f"v_add_u32 v6, {8*6144}, v6")
    a(f"s_lshl_b32 s{XB_}, s{LW}, 12")
    a(f"s_lshl_b32 s{WB_}, s{LW}, 11")
    KR = 56
    a(f"s_and_b32 s{KR}, s{sJ}, 3")
    a(f"s_lshl_b32 s{KR}, s{KR}, 2")
    a(f"s_add_u32 s{KR}, s{KR}, s{sMT}")
    def issue(kt, atoms=()):
        slot = (kt % 3) * SLOT
        atoms = list(atoms)
        a(f"s_and_b32 s{KR}, s{KR}, 15")
        a(f"s_lshl_b32 s{SX}, s{KR}, 7")
        a(f"s_mul_i32 s{SW}, s{KR}, {64*6144}")
        a(f"s_add_u32 s{SW+1}, s{SW}, 2048")
        a(f"s_add_u32 s{SW+2}, s{SW}, 4096")
        a(f"s_add_u32 s{KR}, s{KR}, 1")
        d = [(f"s_add_u32 m0, s{XB_}, {slot + i*1024}", f"buffer_load_dwordx4 v{1+i}, {srd(sX)}, s{SX} offen lds") for i in range(4)]
        d += [(f"s_add_u32 m0, s{WB_}, {slot + WOFF + seg*8192 + i*1024}", f"buffer_load_dwordx4 v{5+i}, {srd(sWQ)}, s{SW+seg} offen lds")
              for seg in range(3) for i in range(2)]
        k = 0
        for i, (m, ld) in enumerate(d):
            a(m); a("s_nop 0"); a(ld)
            vm.issue(f"T{kt}")
            k2 = (i + 1) * len(atoms) // len(d)
            for at in atoms[k:k2]: at()
            k = k2
    a("s_waitcnt lgkmcnt(0)")
    a.stamp(4)
    issue(0); issue(1); issue(2)
    a.stamp(5)
    a("v_lshrrev_b32 v16, 4, v0")
    a("v_bfe_u32 v17, v0, 2, 2")
    a("v_lshl_add_u32 v17, v16, 3, v17")
    a("v_lshlrev_b32 v17, 7, v17")
    a("v_and_b32 v18, 3, v0")
    a("v_lshl_add_u32 v17, v18, 3, v17")
    a("v_and_b32 v16, 1, v16")
    a("v_lshlrev_b32 v16, 1, v16")
    a("v_bfe_u32 v18, v0, 3, 1")
    a("v_or_b32 v16, v16, v18")
    a(f"s_and_b32 s{sT}, s{LW}, 1")
    a(f"s_lshl_b32 s{sT}, s{sT}, 1")
    a(f"v_xor_b32 v16, s{sT}, v16")
    a("v_lshl_add_u32 v17, v16, 5, v17")
    a(f"s_lshr_b32 s{sT}, s{LW}, 1")
    a(f"s_lshl_b32 s{sT}, s{sT}, 12")
    a(f"s_add_u32 s{sT}, s{sT}, {WOFF}")
    a(f"v_add_u32 v10, s{sT}, v17")
    a("v_xor_b32 v11, 32, v10")
    for c in range(6): a(f"v_mov_b32 v{60+c}, 0")
    a("v_mov_b32 v16, 0\nv_mov_b32 v17, 0\nv_mov_b32 v18, 0\nv_mov_b32 v19, 0")
    a(f"v_add_u32 v20, {L_CS}, v94")
    a("ds_write_b128 v20, v[16:19]")
    a("ds_write_b128 v20, v[16:19] offset:1024")
    ONES = 55
    a(f"s_mov_b32 s{ONES}, 0x3f803f80")
    if opt.get("lprio", 1): a(f"s_setprio {opt.get('lprio', 1)}")
    KEY, TT, CAND = 28, 36, 44
    ST = sT
    keys = list(range(KEY, KEY+8))
    XR, XST = XSEL_RAW, XSEL_ST
    a("s_waitcnt lgkmcnt(0)")
    vm.wait("T0")
    a("s_barrier")
    a.stamp(1)
    P0 = opt.get("p0", 7)
    def lines(fn):
        tmp = Asm(); tmp.uid = a.uid; fn(tmp); a.uid = tmp.uid
        out, grp = [], None
        for l in tmp.lines:
            s_ = l.strip()
            if grp is not None:
                grp.append(s_)
                if s_ == "s_mov_b64 exec, -1": out.append(grp); grp = None
            elif ("exec," in s_ and s_ != "s_mov_b64 exec, -1") or "saveexec" in s_: grp = [s_]
            else: out.append([s_])
        assert grp is None
        return [(lambda g=g: a(*g)) for g in out]
    def cs_load(i):
        def f():
            a(f"s_mul_i32 s{sT+2}, s{sJ}, {32*768}")
            a(f"s_mul_i32 s{sT+3}, s{LW}, 192")
            a(f"s_add_u32 s{sT+2}, s{sT+2}, s{sT+3}")
            a(f"s_add_u32 s{sT+2}, s{sT+2}, {WS_CSP + (i//4)*4*768}")
            a(f"buffer_load_dwordx4 {vr(60+4*i,4)}, v51, {srd(sWS)}, s{sT+2} offen offset:{(i%4)*768} sc1")
            vm.issue("csl")
        return f
    for kt in range(16):
        atoms = []
        if kt == 0:
            a(f"s_cmp_lg_u32 s{W}, 4")
            a(f"s_cbranch_scc1 {name}_nopub")
            publish_stats(a, vm, 96)
            a.label(f"{name}_nopub")
            for c in range(6):
                for t_ in range(2):
                    a(f"ds_read_b64_tr_b16 {vr(68+4*c+2*t_,2)}, v{10+(c&1)} offset:{(c>>1)*8192+t_*512}")
            for hf in range(2):
                a(f"s_waitcnt lgkmcnt({6-6*hf})")
                for q in range(4):
                    for c in range(3*hf, 3*hf+3):
                        a(f"v_dot2c_f32_bf16 v{60+c}, s{ONES}, v{68+4*c+q}")
            a("s_nop 2")
            a("v_permlane32_swap_b32 v60, v62")
            a("v_permlane32_swap_b32 v61, v63")
            a("v_permlane16_swap_b32 v64, v65")
            a("v_add_f32 v60, v60, v62")
            a("v_add_f32 v61, v61, v63")
            a("v_add_f32 v64, v64, v65")
            a("s_nop 0")
            a("v_mov_b32 v65, v64")
            a("v_permlane16_swap_b32 v60, v61")
            a("s_nop 0")
            a("v_permlane32_swap_b32 v64, v65")
            a("v_add_f32 v60, v60, v61")
            a("v_add_f32 v64, v64, v65")
            a(f"s_lshl_b32 s{sT}, s{sJ}, 4")
            a(f"s_add_u32 s{sT}, s{sT}, s{sMT}")
            a(f"s_lshl_b32 s{sT}, s{sT}, 2")
            a(f"s_add_u32 s{sT}, s{sT}, s{LW}")
            a(f"s_mul_i32 s{sT}, s{sT}, 384")
            a(f"s_add_u32 s{sT}, s{sT}, {WS_CSP}")
            a("v_lshlrev_b32 v47, 2, v0")
            a(f"buffer_store_dword v60, v47, {srd(sWS)}, s{sT} offen sc1")
            a("s_bfm_b64 exec, 32, 0")
            a(f"buffer_store_dword v64, v47, {srd(sWS)}, s{sT} offen offset:256 sc1")
            a("s_mov_b64 exec, -1")
            vm.issue("cs", 2)
        if kt == 2:
            a(f"s_cmp_lg_u32 s{W}, 4")
            a(f"s_cbranch_scc1 {name}_nosig")
            a(f"s_lshl_b32 s{sT}, s{sMT}, 4")
            a(f"v_mov_b32 v45, s{sT}")
            a("v_mov_b32 v46, 1")
            a("s_mov_b64 exec, 1")
            a(f"buffer_atomic_add v46, v45, {srd(sDBG)}, 0 offen sc1")
            a("s_mov_b64 exec, -1")
            a.label(f"{name}_nosig")
            vm.issue("sig", 1, cond=True)
        if kt == P0:
            a("v_and_b32 v45, 15, v0")
            a("v_lshlrev_b32 v45, 4, v45")
            a(f"buffer_load_dword v46, v45, {srd(sDBG)}, 0 offen sc1")
            vm.issue("poll")
        if kt == P0 + 1:
            poll_check(a, f"{name}_p1", 46, 45, sDBG, 16, -1, cold)
            a(f"s_lshl_b32 s{sT}, s{LW}, 11")
            a(f"s_add_u32 s{sT}, s{sT}, {WS_R}")
            a(f"buffer_load_dwordx4 {vr(KEY,4)}, v94, {srd(sWS)}, s{sT} offen sc1")
            a(f"buffer_load_dwordx4 {vr(KEY+4,4)}, v94, {srd(sWS)}, s{sT} offen offset:1024 sc1")
            a(f"s_lshl_b32 s{sT}, s{sMT}, 11")
            a(f"s_and_b32 s{sT+1}, s{LW}, 1")
            a(f"s_lshl_b32 s{sT+1}, s{sT+1}, 10")
            a(f"s_add_u32 s{sT}, s{sT}, s{sT+1}")
            a(f"s_add_u32 s{sT}, s{sT}, {WS_ST}")
            a("v_lshrrev_b32 v47, 3, v0")
            a("v_lshlrev_b32 v47, 7, v47")
            a("v_and_b32 v48, 7, v0")
            a("v_lshl_add_u32 v47, v48, 2, v47")
            a(f"buffer_load_dword v48, v47, {srd(sWS)}, s{sT} offen sc1")
            a(f"buffer_load_dword v49, v47, {srd(sWS)}, s{sT} offen offset:32 sc1")
            vm.issue("side", 4)
            def f(o):
                o("v_and_b32 v51, 15, v0")
                o("v_cmp_gt_u32 vcc, 12, v51")
                o("v_lshlrev_b32 v51, 4, v51")
                o("v_lshrrev_b32 v50, 4, v0")
                o("v_mul_u32_u24 v50, 8*768, v50")
                o("v_add_u32 v51, v51, v50")
                o("v_mov_b32 v50, 0x7fff0000")
                o("v_cndmask_b32 v51, v50, v51, vcc")
            atoms += lines(f)
        if P0 + 2 <= kt <= P0 + 5:
            i0 = 2*(kt - P0 - 2)
            atoms += [cs_load(i0), cs_load(i0+1)]
        if kt == P0 + 2:
            def f(o):
                o(f"s_and_b32 s{sT}, s{LW}, 1")
                o(f"s_lshl_b32 s{sT}, s{sT}, 8")
                o(f"s_add_u32 s{sT}, s{sT}, {L_M}")
                o("v_lshlrev_b32 v47, 2, v0")
                o(f"v_add_u32 v47, s{sT}, v47")
                o("ds_write_b32 v47, v48")
                o("ds_write_b32 v47, v49 offset:512")
                o(f"s_lshl_b32 s{sT}, s{LW}, 9")
                o("v_lshlrev_b32 v47, 2, v0")
                o(f"v_add_u32 v47, s{sT}, v47")
                make_keys(o, KEY, TT, 47, [0, 1, 2, 3, 256, 257, 258, 259])
                o(f"v_mov_b32 v{CAND}, 0")
                top8_round(o, keys, TT, CAND, ST, 0)
            atoms += lines(f)
        if kt == P0 + 3: atoms += lines(lambda o: [top8_round(o, keys, TT, CAND, ST, r) for r in (1, 2)])
        if kt == P0 + 4: atoms += lines(lambda o: [top8_round(o, keys, TT, CAND, ST, r) for r in (3, 4, 5)])
        if kt == P0 + 5:
            def f(o):
                for r in (6, 7): top8_round(o, keys, TT, CAND, ST, r)
                o(f"s_lshl_b32 s{sT}, s{LW}, 5")
                o(f"s_add_u32 s{sT}, s{sT}, {L_CAND}")
                o("v_lshlrev_b32 v47, 2, v0")
                o(f"v_add_u32 v47, s{sT}, v47")
                o("s_mov_b64 exec, 0xff")
                o(f"ds_write_b32 v47, v{CAND}")
                o("s_mov_b64 exec, -1")
            atoms += lines(f)
        if kt == P0 + 6:
            def f(o):
                o("v_and_b32 v47, 31, v0")
                o("v_lshlrev_b32 v47, 2, v47")
                o(f"v_add_u32 v47, {L_CAND}, v47")
                o(f"ds_read_b32 v{KEY}, v47")
                o("v_cmp_gt_u32 vcc, 32, v0")
                o("s_waitcnt lgkmcnt(0)")
                o(f"v_cndmask_b32 v{KEY}, 0, v{KEY}, vcc")
                for r in range(4): top8_round(o, [KEY], TT, CAND, ST, r)
            atoms += lines(f)
        if kt == P0 + 7:
            def f(o):
                for r in range(4, 8): top8_round(o, [KEY], TT, CAND, ST, r)
                decode_keys(o, CAND, 48, 49, TT)
                o("v_lshlrev_b32 v47, 2, v0")
                o(f"v_add_u32 v47, {L_IDX}, v47")
                o("s_mov_b64 exec, 0xff")
                o("ds_write_b32 v47, v48")
                o("ds_write_b32 v47, v49 offset:32")
                o("s_mov_b64 exec, -1")
            atoms += lines(f)
        if kt == 15:
            for i in range(2):
                a(f"s_lshl_b32 s{sT}, s{LW}, 1")
                a(f"s_add_u32 s{sT}, s{sT}, {i}")
                a(f"v_readlane_b32 s{sT}, v48, s{sT}")
                a("s_nop 3")
                a(f"s_lshl_b32 s{sT+1}, s{sT}, 11")
                a(f"buffer_load_dwordx4 {vr(XR+8*i,4)}, v94, {srd(sX)}, s{sT+1} offen")
                a(f"buffer_load_dwordx4 {vr(XR+8*i+4,4)}, v94, {srd(sX)}, s{sT+1} offen offset:1024")
                a(f"s_lshr_b32 s{sT+1}, s{sT}, 3")
                a(f"s_lshl_b32 s{sT+1}, s{sT+1}, 5")
                a(f"s_and_b32 s{sT}, s{sT}, 7")
                a(f"s_add_u32 s{sT}, s{sT}, s{sT+1}")
                a(f"s_lshl_b32 s{sT}, s{sT}, 2")
                a(f"s_add_u32 s{sT}, s{sT}, {WS_ST}")
                a(f"v_mov_b32 v50, s{sT}")
                a(f"buffer_load_dword v{XST+2*i}, v50, {srd(sWS)}, 0 offen sc1")
                a(f"buffer_load_dword v{XST+2*i+1}, v50, {srd(sWS)}, 0 offen offset:32 sc1")
            vm.issue("xsel", 8)
            vm.wait("csl")
            for i in range(1, 8):
                for r in range(4): a(f"v_add_f32 v{60+r}, v{60+r}, v{60+4*i+r}")
            a("s_nop 1")
            a("v_permlane32_swap_b32 v60, v62")
            a("v_permlane32_swap_b32 v61, v63")
            a("v_add_f32 v60, v60, v62")
            a("v_add_f32 v61, v61, v63")
            a("s_nop 1")
            a("v_permlane16_swap_b32 v60, v61")
            a("v_add_f32 v60, v60, v61")
            a("v_and_b32 v47, 15, v0")
            a("v_cmp_gt_u32 vcc, 12, v47")
            a("v_lshlrev_b32 v47, 4, v47")
            a("v_lshrrev_b32 v50, 4, v0")
            a("v_lshl_add_u32 v47, v50, 2, v47")
            a(f"s_mul_i32 s{sT}, s{LW}, 192")
            a(f"s_add_u32 s{sT}, s{sT}, {L_CS}")
            a(f"v_add_u32 v47, s{sT}, v47")
            a("s_and_saveexec_b64 s[66:67], vcc")
            a("ds_write_b32 v47, v60")
            a("s_mov_b64 exec, -1")
        if 1 <= kt <= 13: issue(kt+2, atoms)
        else:
            for at in atoms: at()
        a("s_waitcnt lgkmcnt(0)")
        a.trace(3*kt+1)
        if kt < 15: vm.wait(f"T{kt+1}", "poll", "side", *(["cs", "st"] if kt == 1 else []))
        a.trace(3*kt+2)
        a("s_barrier")
        a.trace(3*kt+3)
    return vm

ACC, B0 = 96, 8
def accreg(ct, tt): return ACC + 16*ct + 4*tt

def phaseA_consumer(a, name, cold, opt):
    vm = VM(a)
    XA, WA = 1, 3
    a("s_waitcnt lgkmcnt(0)")
    a.stamp(4)
    for q in range(4):
        a(f"buffer_load_dwordx4 {vr(96+4*q,4)}, v95, {srd(sX)}, 0 offen offset:{q*1024}")
    for q in range(2):
        a(f"buffer_load_dwordx4 {vr(112+4*q,4)}, v94, {srd(sWR)}, 0 offen offset:{q*1024}")
    vm.issue("lnld", 6)
    WM, WN = 52, 53
    a(f"s_lshr_b32 s{WM}, s{W}, 1")
    a(f"s_and_b32 s{WN}, s{W}, 1")
    a("v_and_b32 v8, 15, v0")
    a("v_lshrrev_b32 v9, 4, v0")
    a(f"s_lshl_b32 s{sT}, s{WM}, 6")
    a(f"v_add_u32 v10, s{sT}, v8")
    a("v_lshlrev_b32 v10, 7, v10")
    a("v_bfe_u32 v11, v0, 1, 3")
    a("v_xor_b32 v11, v11, v9")
    a(f"v_lshl_add_u32 v{XA}, v11, 4, v10")
    a(f"v_xor_b32 v{XA+1}, 64, v{XA}")
    a("v_bfe_u32 v10, v0, 2, 2")
    a("v_lshl_add_u32 v10, v9, 3, v10")
    a("v_lshlrev_b32 v10, 7, v10")
    a("v_and_b32 v11, 3, v0")
    a("v_lshl_add_u32 v10, v11, 3, v10")
    a("v_and_b32 v11, 1, v9")
    a("v_lshlrev_b32 v11, 1, v11")
    a("v_bfe_u32 v12, v0, 3, 1")
    a("v_or_b32 v11, v11, v12")
    a(f"s_lshl_b32 s{sT}, s{WN}, 1")
    a(f"v_xor_b32 v11, s{sT}, v11")
    a("v_lshl_add_u32 v10, v11, 5, v10")
    a(f"v_add_u32 v{WA}, {WOFF}, v10")
    a(f"v_xor_b32 v{WA+1}, 32, v{WA}")
    a.stamp(5)
    vm.wait("lnld")
    a.stamp(6)
    assert WS_XN == 0
    ln_rows2(a, vm, 96, 112, 120, 152, 95, opt.get("dbg"))
    for r in range(96): a(f"v_mov_b32 v{ACC+r}, 0")
    def reads(buf, ks):
        b = B0 + 40*buf
        xr = [f"ds_read_b128 {vr(b+4*tt,4)}, v{XA+ks} offset:{tt*2048}" for tt in range(4)]
        wr = [f"ds_read_b64_tr_b16 {vr(b+16+4*ct+2*t,2)}, v{WA+(ct&1)} offset:{(ct>>1)*8192+ks*4096+t*512}" for ct in range(6) for t in range(2)]
        return [xr[0]] + wr[0:2] + xr[1:4] + wr[2:]
    def mfmas(buf):
        b = B0 + 40*buf
        o = []
        for ct in range(6):
            for tt in range(4):
                x = vr(b+4*tt, 4); w = vr(b+16+4*ct, 4)
                A, B = (w, x) if ct < 4 else (x, w)
                o.append(f"v_mfma_f32_16x16x32_bf16 {vr(accreg(ct,tt),4)}, {A}, {B}, {vr(accreg(ct,tt),4)}")
        return o
    KT, SI, DL, NEG = 48, 49, 50, 51
    a(f"s_mov_b32 s{KT}, 0")
    a(f"s_mov_b32 s{SI}, 0")
    a(f"s_mov_b32 s{NEG}, {(-2*SLOT) & 0xffffffff:#x}")
    a("s_waitcnt lgkmcnt(0)")
    a("s_barrier")
    a.stamp(1); a.cstamp(7)
    a(*reads(0, 0))
    a(".p2align 6")
    a.label(f"{name}_cloop")
    per = opt.get("rpg", 1)
    def weave(m, r, extra):
        i = 0
        for k, x in enumerate(m):
            a(x)
            a(*r[i:i+per]); i += per
            if i - per >= len(r) and extra: a(extra.pop(0))
    m = mfmas(0); r = reads(1, 1)
    a(f"s_add_u32 s{SI}, s{SI}, 1")
    a(f"s_cmp_eq_u32 s{SI}, 3")
    a(f"s_cselect_b32 s{DL}, s{NEG}, {SLOT}")
    a(f"s_cselect_b32 s{SI}, 0, s{SI}")
    a("s_waitcnt lgkmcnt(0)")
    weave(m, r, [f"v_add_u32 v{q}, s{DL}, v{q}" for q in (1, 2, 3, 4)])
    m = mfmas(1); r = reads(0, 0)
    a("s_waitcnt lgkmcnt(0)")
    a(m[0])
    a("s_barrier")
    weave(m[1:], r, [f"s_add_u32 s{KT}, s{KT}, 1", f"s_cmp_lt_u32 s{KT}, 16"])
    a(f"s_cbranch_scc1 {name}_cloop")
    vm.q = []
    a.stamp(2); a.cstamp(8)
    MR, CSQ, MV, RV, CSV, QR, AD, PK = 8, 16, 32, 48, 64, 66, 74, 78
    a("s_waitcnt lgkmcnt(0)")
    a("v_and_b32 v1, 15, v0")
    a("v_lshrrev_b32 v2, 4, v0")
    a(f"s_lshl_b32 s{sT}, s{WM}, 8")
    a(f"s_add_u32 s{sT}, s{sT}, {L_M}")
    a(f"s_mul_i32 s{sT+1}, s{WN}, 384")
    a(f"s_add_u32 s{sT+1}, s{sT+1}, {L_CS}")
    a("v_lshlrev_b32 v3, 2, v1")
    a(f"v_add_u32 v4, s{sT}, v3")
    for tt in range(4):
        a(f"ds_read_b32 v{MR+2*tt}, v4 offset:{tt*64}")
        a(f"ds_read_b32 v{MR+2*tt+1}, v4 offset:{tt*64+512}")
    a("v_lshlrev_b32 v5, 4, v2")
    a(f"v_add_u32 v6, s{sT+1}, v5")
    for ct in range(4): a(f"ds_read_b128 {vr(CSQ+4*ct,4)}, v6 offset:{ct*64}")
    a(f"v_add_u32 v6, s{sT}, v5")
    a(f"v_add_u32 v3, s{sT+1}, v3")
    a(f"ds_read_b32 v{CSV}, v3 offset:256")
    a(f"ds_read_b32 v{CSV+1}, v3 offset:320")
    for tt in range(4):
        a(f"ds_read_b128 {vr(MV+4*tt,4)}, v6 offset:{tt*64}")
        a(f"ds_read_b128 {vr(RV+4*tt,4)}, v6 offset:{tt*64+512}")
    a("v_lshrrev_b32 v3, 1, v2")
    a("v_and_b32 v4, 1, v2")
    a("v_lshl_add_u32 v5, v3, 5, v1")
    a("v_lshlrev_b32 v5, 4, v5")
    a("v_lshl_add_u32 v5, v4, 3, v5")
    a("v_lshl_add_u32 v6, v4, 5, v1")
    a("v_lshlrev_b32 v6, 4, v6")
    a("v_lshl_add_u32 v6, v3, 3, v6")
    a(f"s_lshl_b32 s{sT}, s{WN}, 1")
    a(f"s_add_u32 s{sT}, s{sT}, s{WM}")
    a(f"s_lshl_b32 s{sT}, s{sT}, 13")
    a(f"v_add_u32 v{AD}, s{sT}, v5")
    a(f"v_add_u32 v{AD+1}, s{sT}, v6")
    a(f"s_lshr_b32 s{sT}, s{sT}, 1")
    a(f"s_add_u32 s{sT}, s{sT}, {L_Q}")
    a(f"v_add_u32 v{AD+2}, s{sT}, v5")
    a(f"s_mov_b32 s{sT+1}, {QSCALE:#x}")
    a("s_waitcnt lgkmcnt(10)")
    for tt in range(4):
        a(f"v_mul_f32 v{QR+2*tt+1}, s{sT+1}, v{MR+2*tt+1}")
    n = 0
    def fin(ct, tt):
        nonlocal n
        r = accreg(ct, tt)
        p = PK + 2*(n % 4); n += 1
        for hf in range(2):
            pr = vr(r+2*hf, 2)
            if ct < 4:
                a(f"v_pk_fma_f32 {pr}, {vr(CSQ+4*ct+2*hf,2)}, {vr(MR+2*tt,2)}, {pr} op_sel_hi:[1,0,1] neg_lo:[0,1,0] neg_hi:[0,1,0]")
                sc = QR if ct < 2 else MR
                a(f"v_pk_mul_f32 {pr}, {pr}, {vr(sc+2*tt,2)} op_sel:[0,1] op_sel_hi:[1,1]")
            else:
                sel = "op_sel_hi:[1,0,1]" if ct == 4 else "op_sel:[0,1,0] op_sel_hi:[1,1,1]"
                a(f"v_pk_fma_f32 {pr}, {vr(MV+4*tt+2*hf,2)}, {vr(CSV,2)}, {pr} {sel} neg_lo:[0,1,0] neg_hi:[0,1,0]")
                a(f"v_pk_mul_f32 {pr}, {pr}, {vr(RV+4*tt+2*hf,2)}")
            a(f"v_cvt_pk_bf16_f32 v{p+hf}, v{r+2*hf}, v{r+2*hf+1}")
        if ct < 2:   a(f"ds_write_b64 v{AD+2}, {vr(p,2)} offset:{(tt>>1)*2048 + ct*1024 + (tt&1)*256}")
        elif ct < 4: a(f"ds_write_b64 v{AD}, {vr(p,2)} offset:{(tt>>1)*4096 + (ct-2)*1024 + (tt&1)*256}")
        else:        a(f"ds_write_b64 v{AD+1}, {vr(p,2)} offset:{(tt>>1)*4096 + 2048 + (tt&1)*1024 + (ct-4)*256}")
    a("s_waitcnt lgkmcnt(0)")
    for ct in (2, 3, 4, 5, 0, 1):
        for tt in range(4): fin(ct, tt)
    a("s_waitcnt lgkmcnt(0)")
    return vm

def publish_kv(a, vm, R, opt):
    a(f"v_lshlrev_b32 v{R.VL}, 4, v0")
    a(f"s_lshl_b32 s{sT}, s{W}, 12")
    a(f"v_add_u32 v2, s{sT}, v{R.VL}")
    for q in range(4): a(f"ds_read_b128 {vr(R.S0+4*q,4)}, v2 offset:{q*1024}")
    a(f"s_and_b32 s{sT+1}, s{W}, 1")
    a(f"s_lshl_b32 s{sT+1}, s{sT+1}, 1")
    a(f"s_bfe_u32 s{sT+2}, s{W}, 0x10001")
    a(f"s_add_u32 s{sT+1}, s{sT+1}, s{sT+2}")
    a(f"s_lshl_b32 s{sT+1}, s{sT+1}, 12")
    a(f"s_add_u32 s{sT+1}, s{sT+1}, {L_Q}")
    a(f"v_add_u32 v3, s{sT+1}, v{R.VL}")
    for q in range(4): a(f"ds_read_b128 {vr(R.Q+4*q,4)}, v3 offset:{q*1024}")
    a(f"s_lshl_b32 s{sT+1}, s{sJ}, 1")
    a(f"s_lshr_b32 s{sT+2}, s{W}, 2")
    a(f"s_add_u32 s{sT+1}, s{sT+1}, s{sT+2}")
    a(f"s_lshl_b32 s{sT+1}, s{sT+1}, 6")
    a(f"s_lshl_b32 s{sT+2}, s{sMT}, 2")
    a(f"s_add_u32 s{sT+1}, s{sT+1}, s{sT+2}")
    a(f"s_and_b32 s{sT+2}, s{W}, 3")
    a(f"s_add_u32 s{sT+1}, s{sT+1}, s{sT+2}")
    a(f"s_lshl_b32 s{sT+1}, s{sT+1}, 12")
    a(f"s_add_u32 s{sT+1}, s{sT+1}, {WS_KV}")
    a("s_waitcnt lgkmcnt(4)")
    for q in range(4):
        a(f"buffer_store_dwordx4 {vr(R.S0+4*q,4)}, v{R.VL}, {srd(sWS)}, s{sT+1} offen offset:{q*1024} sc1")
    vm.issue("kvst", 4)
    if opt.get("dbg"):
        a("s_waitcnt lgkmcnt(0)")
        head_of(a, sT+1, sT+2)
        a(f"s_lshl_b32 s{sT+1}, s{sT+1}, 6")
        a(f"s_lshl_b32 s{sT+2}, s{sMT}, 2")
        a(f"s_add_u32 s{sT+1}, s{sT+1}, s{sT+2}")
        a(f"s_and_b32 s{sT+2}, s{W}, 2")
        a(f"s_add_u32 s{sT+1}, s{sT+1}, s{sT+2}")
        a(f"s_lshl_b32 s{sT+1}, s{sT+1}, 11")
        a(f"s_add_u32 s{sT+1}, s{sT+1}, {WS_Q}")
        for q in range(4):
            a(f"buffer_store_dwordx4 {vr(R.Q+4*q,4)}, v{R.VL}, {srd(sWS)}, s{sT+1} offen offset:{q*1024}")
        a(f"v_lshlrev_b32 v2, 2, v0")
        a(f"v_add_u32 v3, {L_IDX}, v2")
        a("s_mov_b64 exec, 0xffff")
        a("ds_read_b32 v131, v3")
        a("s_waitcnt lgkmcnt(0)")
        a(f"s_mov_b32 s{sT+1}, {WS_IDX}")
        a(f"buffer_store_dword v131, v2, {srd(sWS)}, s{sT+1} offen")
        a("s_mov_b64 exec, -1")
        vm.drain()

def gen_fused(name, **opt):
    a = Asm(); cold = []
    R = AT.AttnRegs
    prologue(a, name, opt)
    a(f"s_cmp_ge_u32 s{W}, 4")
    a(f"s_cbranch_scc1 {name}_loader")
    phaseA_consumer(a, name, cold, opt)
    a(f"s_branch {name}_joinA")
    a.label(f"{name}_loader")
    phaseA_loader(a, name, cold, opt)
    a.stamp(2)
    a("s_setprio 0")
    a.label(f"{name}_joinA")
    a("s_barrier")
    a.stamp(3)
    if opt.get("dbgtime"):
        a("s_memrealtime s[98:99]")
        a("s_waitcnt lgkmcnt(0)")
        a("v_mov_b32 v1, 4")
        a("v_mov_b32 v3, s98")
        a("s_mov_b64 exec, 1")
        a(f"buffer_atomic_umax v3, v1, {srd(sDBG)}, 0 offen offset:8 sc1")
        a("s_mov_b64 exec, -1")
    vm = VM(a)
    publish_kv(a, vm, R, opt)
    if opt.get("stop") != "A":
        import fused_bc
        fused_bc.phaseB(a, name, cold, opt, vm)
        if opt.get("stop") != "B":
            fused_bc.phaseC(a, name, cold, opt, vm)
    a.stamp_dump(0, W)
    if opt.get("dbgtime"):
        a("s_waitcnt vmcnt(0)")
        a("s_memrealtime s[98:99]")
        a("s_waitcnt lgkmcnt(0)")
        a("s_not_b32 s96, s96")
        a("v_mov_b32 v1, 4")
        a("v_mov_b32 v2, s96")
        a("v_mov_b32 v3, s98")
        a("s_mov_b64 exec, 1")
        a(f"buffer_atomic_umax v2, v1, {srd(sDBG)}, 0 offen sc1")
        a(f"buffer_atomic_umax v3, v1, {srd(sDBG)}, 0 offen offset:4 sc1")
        a("s_mov_b64 exec, -1")
    a.label(f"{name}_done")
    a("s_endpgm")
    for c in cold: a.lines += c.lines
    return kernel_header(name) + a.text() + kernel_desc(name, 256, 102)

def xsel_normalise(a, T):
    XR, XST, XF = XSEL_RAW, XSEL_ST, T + 2
    a(f"v_lshrrev_b32 v{T}, 2, v0")
    a(f"v_lshlrev_b32 v{T}, 9, v{T}")
    a(f"v_and_b32 v{T+1}, 3, v0")
    a(f"v_lshl_add_u32 v{T}, v{T+1}, 7, v{T}")
    a(f"s_lshl_b32 s{sT}, s{W}, 5")
    a(f"s_add_u32 s{sT}, s{sT}, {L_XS - 128}")
    a(f"v_add_u32 v{T}, s{sT}, v{T}")
    for i in range(2):
        for p in range(8):
            x = XR + 8*i + p
            f0, f1 = XF + 2*(p & 1), XF + 2*(p & 1) + 1
            a(f"v_lshlrev_b32 v{f0}, 16, v{x}")
            a(f"v_and_b32 v{f1}, 0xffff0000, v{x}")
            a(f"v_sub_f32 v{f0}, v{f0}, v{XST+2*i}")
            a(f"v_sub_f32 v{f1}, v{f1}, v{XST+2*i}")
            a(f"v_cvt_pk_bf16_f32 v{x}, v{f0}, v{f1}")
            a(f"v_lshlrev_b32 v{f0}, 16, v{x}")
            a(f"v_and_b32 v{f1}, 0xffff0000, v{x}")
            a(f"v_mul_f32 v{f0}, v{f0}, v{XST+2*i+1}")
            a(f"v_mul_f32 v{f1}, v{f1}, v{XST+2*i+1}")
            a(f"v_cvt_pk_bf16_f32 v{x}, v{f0}, v{f1}")
        a(f"ds_write_b128 v{T}, {vr(XR+8*i,4)} offset:{16*i}")
        a(f"ds_write_b128 v{T}, {vr(XR+8*i+4,4)} offset:{16*i+8192}")
```

```python
from asmlib import *
from layout import *
from fused import *
import fused as FU
from k_attn import M32, M16
import k_attn2 as AT
from k_attn2 import SM
from k_attn3 import Regs3
from k_moe import pi_row, round_bf16

L_S1, L_S2, L_EX = 32768, 98304, 98304
KH, HB, KA, KBK, VA, VBK, MASK, NEED, RET, S1O, HASJ, S2O, WOO, WOM = 48, 49, 50, 51, 52, 53, 54, 55, 56, 58, 59, 60, 61, 62
XSF, MACC, VD1, VD2, VP, VPA, VT = 220, 236, 244, 245, 246, 247, 248
WBF = 20

def unit(a, R, t, q, nb, hook=None, noqk=False):
    Sc, Sn = (R.S0, R.S1) if q == 0 else (R.S1, R.S0)
    P, Q, O, L = R.P, R.Q, R.O, R.L
    qn = 1 - q
    kn = t if q == 0 else t + 1
    vp = t - 1 if q == 0 else t
    K = R.KB + 8*(kn % nb); Vp = R.VB + 8*(vp % nb); Vc = R.VB + 8*(t % nb)
    e = lambda i: f"v_exp_f32 v{Sc+i}, v{Sc+i}"
    c = lambda i: f"v_cvt_pk_bf16_f32 v{P+i}, v{Sc+2*i}, v{Sc+2*i+1}"
    h = hook or (lambda pos: None)
    h("Ma")
    if not noqk: a(M32(Sn, K, Q+8*qn, None))
    h("Ma+"); a(e(0), e(1), e(2))
    h("Md"); a(M32(O+16*qn, Vp+4, P+4, O+16*qn)); h("Md+"); a(e(3), e(4), e(5))
    a(SM(L+4*qn, R.ONES, P, R.IDX), c(0), c(1), e(6), e(7))
    h("Mb")
    if not noqk: a(M32(Sn, K+4, Q+8*qn+4, Sn))
    h("Mb+"); a(c(2), c(3), e(8), e(9))
    h("Mc"); a(M32(O+16*q, Vc, P, O+16*q)); h("Mc+")
    a(e(10), e(11), c(4), e(12), c(5), e(13), e(14), e(15), c(6), c(7))

def flag_set(a, vm, saddr, v0_, v1_):
    a(f"v_mov_b32 v{v0_}, s{saddr}")
    a(f"v_mov_b32 v{v1_}, 1")
    a("s_mov_b64 exec, 1")
    a(f"buffer_store_dword v{v1_}, v{v0_}, {srd(sWS)}, 0 offen sc1")
    a("s_mov_b64 exec, -1")

def phaseB(a, name, cold, opt, vm):
    R = Regs3
    VL, Q, P, O, L, T = R.VL, R.Q, R.P, R.O, R.L, R.T
    NB, NT = 4, 32
    BAR = opt.get("bar", 8)
    moe = opt.get("moe", True)
    a(f"s_lshr_b32 s{KH}, s{W}, 2")
    a(f"s_and_b32 s{sT}, s{W}, 1")
    a(f"s_lshl_b32 s{sT}, s{sT}, 1")
    a(f"s_add_u32 s{sT}, s{sT}, s{KH}")
    a(f"s_lshl_b32 s{sT}, s{sT}, 13")
    a(f"v_add_u32 v2, s{sT}, v{VL}")
    for t in range(2):
        for hf in range(2):
            a(f"ds_read_b128 {vr(R.KB+8*t+4*hf,4)}, v2 offset:{t*4096+hf*1024}")
    for t in range(2):
        for hf in range(2):
            a(f"ds_read_b128 {vr(R.VB+8*t+4*hf,4)}, v2 offset:{t*4096+2048+hf*1024}")
    head_of(a, HB, sT)
    a(f"s_lshl_b32 s{sT+1}, s{HB}, 11")
    a(f"s_lshl_b32 s{HB}, s{HB}, 18")
    a(f"s_add_u32 s{HB}, s{HB}, {WS_KV}")
    a(f"s_add_u32 s{KBK}, s{sMT}, 1")
    a(f"s_and_b32 s{KBK}, s{KBK}, 15")
    a(f"s_lshl_b32 s{KBK}, s{KBK}, 14")
    a(f"s_mov_b32 s{VBK}, s{KBK}")
    a(f"s_lshl_b32 s{sT}, s{KH}, 13")
    a(f"s_add_u32 s{S1O}, s{HB}, s{sT}")
    KVB = 63
    a(f"s_mov_b32 s{KVB}, s{S1O}")
    a(f"v_bfe_u32 v{VPA}, v0, 1, 4")
    a(f"v_add_u32 v{VPA}, s{sMT}, v{VPA}")
    a(f"v_and_b32 v{VPA}, 15, v{VPA}")
    a(f"v_lshlrev_b32 v{VPA}, 7, v{VPA}")
    a(f"v_and_b32 v{VT}, 1, v0")
    a(f"v_lshl_add_u32 v{VPA}, v{VT}, 2, v{VPA}")
    a(f"s_lshl_b32 s{sT}, s{KH}, 3")
    a(f"s_add_u32 s{sT}, s{sT}, s{sT+1}")
    a(f"s_add_u32 s{sT}, s{sT}, {WS_KVF}")
    a(f"v_add_u32 v{VPA}, s{sT}, v{VPA}")
    a(f"s_mov_b32 s{MASK}, 0")
    if moe:
        a(f"s_cmp_lt_u32 s{sLI}, 28")
        a(f"s_cselect_b32 s{HASJ}, 1, 0")
        pi_row(a, VD2, 0, VT)
        a(f"v_and_b32 v{VT}, 1, v0")
        a(f"v_lshlrev_b32 v{VT}, 4, v{VT}")
        a(f"v_mul_u32_u24 v{VD1}, 7168, v{VD2}")
        a(f"v_add_u32 v{VD1}, v{VD1}, v{VT}")
        a(f"v_lshl_add_u32 v{VD2}, v{VD2}, 11, v{VT}")
        cg_of(a, S1O)
        a(f"s_lshl_b32 s{S1O}, s{S1O}, 5")
        a(f"s_mul_i32 s{sT}, s{W}, {128*7168}")
        a(f"s_add_u32 s{S1O}, s{S1O}, s{sT}")
        a(f"s_lshr_b32 s{S2O}, s2, 4")
        a(f"s_mul_i32 s{S2O}, s{S2O}, {224*2048}")
        a(f"s_and_b32 s{sT}, s2, 15")
        a(f"s_lshl_b32 s{sT}, s{sT}, 7")
        a(f"s_add_u32 s{S2O}, s{S2O}, s{sT}")
        a(f"s_and_b32 s{sT}, s{W}, 3")
        a(f"s_lshl_b32 s{sT}, s{sT}, 5")
        a(f"s_add_u32 s{S2O}, s{S2O}, s{sT}")
        a(f"s_lshl_b32 s{sT}, s{KH}, 18")
        a(f"s_add_u32 s{S2O}, s{S2O}, s{sT}")
    AT.attn_consts(a, R)
    for r in range(4): a(f"v_mov_b32 v{R.VB+8*3+4+r}, 0")
    a("s_waitcnt lgkmcnt(0)")
    a(M32(R.S0, R.KB, Q, None))
    a(M32(R.S0, R.KB+4, Q+4, R.S0))
    a("s_nop 10")

    c = Asm()
    c.label(f"{name}_kvspin")
    c(f"s_mov_b32 s{sT+11}, 0")
    c.label(f"{name}_kvagain")
    c(f"buffer_load_dword v{VP}, v{VPA}, {srd(sWS)}, 0 offen sc1")
    c(f"s_add_u32 s{sT+11}, s{sT+11}, 1")
    c(f"s_cmp_gt_u32 s{sT+11}, {SPIN_LIMIT}")
    c(f"s_cbranch_scc1 {name}_kvout")
    c("s_waitcnt vmcnt(0)")
    c(f"v_cmp_eq_u32 vcc, 1, v{VP}")
    c(f"s_mov_b32 s{MASK}, vcc_lo")
    c(f"s_and_b32 s{sT+10}, s{MASK}, s{NEED}")
    c(f"s_cmp_lg_u32 s{sT+10}, s{NEED}")
    c(f"s_cbranch_scc1 {name}_kvagain")
    c.label(f"{name}_kvout")
    c(f"s_setpc_b64 s[{RET}:{RET+1}]")
    cold.append(c)
    def need_block(i):
        lab = a.new_label(f"{name}_nb")
        a(f"s_mov_b32 s{NEED}, {(3 << (2*i)) & 0xffffffff:#x}")
        a(f"s_and_b32 s{sT+10}, s{MASK}, s{NEED}")
        a(f"s_cmp_eq_u32 s{sT+10}, s{NEED}")
        a(f"s_cbranch_scc1 {lab}")
        a(f"s_call_b64 s[{RET}:{RET+1}], {name}_kvspin")
        a.label(lab)
    def adv(sr_, sblk, t):
        if t & 1:
            a(f"s_add_u32 s{sr_}, s{sr_}, 4096")
        else:
            a(f"s_add_u32 s{sr_}, s{KVB}, s{sblk}")
            a(f"s_add_u32 s{sblk}, s{sblk}, 16384")
            a(f"s_and_b32 s{sblk}, s{sblk}, 0x3ffff")
    def ldK(t, half):
        if half == 0:
            if not (t & 1) and t > 4: need_block(t >> 1)
            adv(KA, KBK, t)
        a(f"buffer_load_dwordx4 {vr(R.KB+8*(t%NB)+4*half,4)}, v{VL}, {srd(sWS)}, s{KA} offen offset:{half*1024}")
        vm.issue(f"K{t}_{half}")
    def ldV(t, half):
        if half == 0: adv(VA, VBK, t)
        a(f"buffer_load_dwordx4 {vr(R.VB+8*(t%NB)+4*half,4)}, v{VL}, {srd(sWS)}, s{VA} offen offset:{2048+half*1024}")
        vm.issue(f"V{t}_{half}")

    def guarded(fn):
        lab = a.new_label(f"{name}_g")
        a(f"s_cmp_eq_u32 s{HASJ}, 0")
        a(f"s_cbranch_scc1 {lab}")
        fn()
        a.label(lab)
    def s1_dma(i):
        def f():
            a(f"s_lshl_b32 s{sT}, s{W}, 13")
            a(f"s_add_u32 m0, s{sT}, {L_S1 + i*1024}")
            a(f"s_add_u32 s{sT}, s{S1O}, {(i>>1)*32*7168}")
            a(f"buffer_load_dwordx4 v{VD1}, {srd(sWG if (i&1) == 0 else sWU)}, s{sT} offen lds")
            vm.issue("s1w", 1, cond=True)
        guarded(f)
    def s2_dma(i):
        a(f"s_lshl_b32 s{sT}, s{W}, 12")
        a(f"s_add_u32 m0, s{sT}, {L_S2 + i*1024}")
        a(f"s_add_u32 s{sT}, s{S2O}, {i*32*2048}")
        if i == 3:
            a(f"s_cmp_eq_u32 s{KH}, 0")
            a(f"s_cselect_b32 s{sT}, s{sT}, s{S2O}")
        a(f"buffer_load_dwordx4 v{VD2}, {srd(sWD)}, s{sT} offen lds")
        vm.issue("s2w")
    def s1_compute():
        def f():
            vm.copy().wait("s1w")
            a(f"v_and_b32 v{VT}, 7, v0")
            a(f"v_lshlrev_b32 v{VT}, 4, v{VT}")
            a(f"v_lshrrev_b32 v{VT+1}, 4, v0")
            a(f"v_lshl_add_u32 v{VT}, v{VT+1}, 7, v{VT}")
            a(f"s_lshl_b32 s{sT}, s{W}, 11")
            a(f"s_add_u32 s{sT}, s{sT}, {L_XS}")
            a(f"v_add_u32 v{VT}, s{sT}, v{VT}")
            for ks in range(4): a(f"ds_read_b128 {vr(XSF+4*ks,4)}, v{VT} offset:{ks*512}")
            a(f"s_lshl_b32 s{sT}, s{W}, 13")
            a(f"s_add_u32 s{sT}, s{sT}, {L_S1}")
            a(f"v_lshlrev_b32 v{VT+2}, 3, v0")
            a(f"v_add_u32 v{VT+2}, s{sT}, v{VT+2}")
            for pr in range(2):
                for i in range(4):
                    for t_ in range(2):
                        a(f"ds_read_b64_tr_b16 {vr(WBF+4*i+2*t_,2)}, v{VT+2} offset:{(4*pr+i)*1024+t_*512}")
                a("s_waitcnt lgkmcnt(0)")
                for i in range(4):
                    ks, m = 2*pr + (i >> 1), i & 1
                    cin = vr(MACC+4*m, 4) if ks else "0"
                    a(f"v_mfma_f32_16x16x32_bf16 {vr(MACC+4*m,4)}, {vr(XSF+4*ks,4)}, {vr(WBF+4*i,4)}, {cin}")
            a(f"v_lshlrev_b32 v{VT+1}, 8, v{VT+1}")
            a(f"v_and_b32 v{VT}, 15, v0")
            a(f"v_lshl_add_u32 v{VT}, v{VT}, 2, v{VT+1}")
            a(f"v_add_u32 v{VT}, {L_H}, v{VT}")
            a("s_nop 3")
            a("s_bfm_b64 exec, 32, 0")
            for m in range(2):
                for r in range(4): a(f"ds_add_f32 v{VT}, v{MACC+4*m+r} offset:{m*512+r*64}")
            a("s_mov_b64 exec, -1")
            a("s_waitcnt lgkmcnt(0)")
        guarded(f)
    def s1_final():
        lab = a.new_label(f"{name}_s1f")
        a(f"s_cmp_lg_u32 s{W}, 0")
        a(f"s_cbranch_scc1 {lab}")
        def f():
            a(f"v_lshlrev_b32 v{VT}, 3, v0")
            a(f"v_add_u32 v{VT}, {L_H}, v{VT}")
            a(f"ds_read_b64 {vr(MACC,2)}, v{VT}")
            a(f"ds_read_b64 {vr(MACC+2,2)}, v{VT} offset:512")
            a(f"v_lshrrev_b32 v{VT+1}, 3, v0")
            a(f"v_mul_u32_u24 v{VT+1}, 7168, v{VT+1}")
            a(f"v_and_b32 v{VT+2}, 7, v0")
            a(f"v_lshl_add_u32 v{VT+1}, v{VT+2}, 2, v{VT+1}")
            cg_of(a, sT)
            a(f"s_lshl_b32 s{sT}, s{sT}, 5")
            a(f"s_add_u32 s{sT}, s{sT}, {WS_H}")
            a("s_waitcnt lgkmcnt(0)")
            for r in range(2):
                round_bf16(a, MACC+r)
                silu_bf16(a, MACC+r, VT+2)
                round_bf16(a, MACC+r)
                round_bf16(a, MACC+2+r)
                a(f"v_mul_f32 v{MACC+r}, v{MACC+r}, v{MACC+2+r}")
            a(f"v_cvt_pk_bf16_f32 v{MACC}, v{MACC}, v{MACC+1}")
            a(f"buffer_store_dword v{MACC}, v{VT+1}, {srd(sWS)}, s{sT} offen sc1")
            vm.issue("hst", 1, cond=True)
        guarded(f)
        a.label(lab)
    def s1_flag():
        lab = a.new_label(f"{name}_s1g")
        a(f"s_cmp_lg_u32 s{W}, 0")
        a(f"s_cbranch_scc1 {lab}")
        def f():
            vm.copy().wait("hst")
            hf_addr(a, sT)
            flag_set(a, vm, sT, VT, VT+1)
            vm.issue("hfl", 1, cond=True)
        guarded(f)
        a.label(lab)
    def s2_poll():
        a(f"s_lshr_b32 s{sT}, s2, 4")
        a(f"s_mul_i32 s{sT}, s{sT}, {14*128}")
        a(f"s_add_u32 s{sT}, s{sT}, {WS_HF}")
        a(f"v_min_u32 v{VT+4}, 13, v0")
        a(f"v_lshlrev_b32 v{VT+4}, 7, v{VT+4}")
        a(f"v_add_u32 v{VT+4}, s{sT}, v{VT+4}")
        a(f"buffer_load_dword v{VT+5}, v{VT+4}, {srd(sWS)}, 0 offen sc1")
        vm.issue("hpoll")
    def s2_load():
        vm.wait("hpoll")
        poll_check(a, f"{name}_hp", VT+5, VT+4, sWS, 1, -1, cold)
        a(f"v_and_b32 v{VT}, 7, v0")
        a(f"v_mul_u32_u24 v{VT}, 7168, v{VT}")
        a(f"v_lshrrev_b32 v{VT+1}, 4, v0")
        a(f"v_lshl_add_u32 v{VT}, v{VT+1}, 4, v{VT}")
        a(f"s_lshr_b32 s{sT}, s2, 4")
        a(f"s_mul_i32 s{sT}, s{sT}, 448")
        a(f"s_lshl_b32 s{sT+1}, s{KH}, 8")
        a(f"s_add_u32 s{sT}, s{sT}, s{sT+1}")
        a(f"s_add_u32 s{sT}, s{sT}, {WS_H}")
        for ks in range(4):
            a(f"buffer_load_dwordx4 {vr(XSF+4*ks,4)}, v{VT}, {srd(sWS)}, s{sT} offen offset:{ks*64} sc1")
        vm.issue("hld", 4)
    def s2_compute():
        vm.wait("hld", "s2w")
        a(f"s_lshl_b32 s{sT}, s{W}, 12")
        a(f"s_add_u32 s{sT}, s{sT}, {L_S2}")
        a(f"v_lshlrev_b32 v{VT+2}, 3, v0")
        a(f"v_add_u32 v{VT+2}, s{sT}, v{VT+2}")
        for i in range(4):
            for t_ in range(2):
                a(f"ds_read_b64_tr_b16 {vr(WBF+4*i+2*t_,2)}, v{VT+2} offset:{i*1024+t_*512}")
        a(f"v_lshrrev_b32 v{VT}, 4, v0")
        a(f"v_lshlrev_b32 v{VT}, 14, v{VT}")
        a(f"v_and_b32 v{VT+1}, 15, v0")
        a(f"v_lshl_add_u32 v{VT}, v{VT+1}, 2, v{VT}")
        a(f"s_and_b32 s{sT}, s2, 15")
        a(f"s_lshl_b32 s{sT}, s{sT}, 8")
        a(f"s_and_b32 s{sT+1}, s{W}, 3")
        a(f"s_lshl_b32 s{sT+1}, s{sT+1}, 6")
        a(f"s_add_u32 s{sT}, s{sT}, s{sT+1}")
        a(f"s_add_u32 s{sT}, s{sT}, {WS_Y}")
        a(f"v_add_u32 v{VT}, s{sT}, v{VT}")
        a(f"s_cmp_lg_u32 s{KH}, 0")
        a("s_waitcnt lgkmcnt(0)")
        lab = a.new_label(f"{name}_s2k")
        for i in range(4):
            if i == 3: a(f"s_cbranch_scc1 {lab}")
            cin = vr(MACC, 4) if i else "0"
            a(f"v_mfma_f32_16x16x32_bf16 {vr(MACC,4)}, {vr(XSF+4*i,4)}, {vr(WBF+4*i,4)}, {cin}")
        a.label(lab)
        a("s_nop 7")
        a("s_bfm_b64 exec, 32, 0")
        for r in range(4):
            a(f"s_mov_b32 s{sT}, {r*4096}")
            a(f"buffer_atomic_add_f32 v{MACC+r}, v{VT}, {srd(sWS)}, s{sT} offen")
        a("s_mov_b64 exec, -1")
        vm.issue("yat", 4)
    def wo_setup():
        a(f"v_lshrrev_b32 v{VD1}, 3, v0")
        a(f"v_lshlrev_b32 v{VD1}, 11, v{VD1}")
        a(f"v_bfe_u32 v{VT}, v0, 4, 1")
        a(f"s_bfe_u32 s{sT}, s{W}, 0x10001")
        a(f"s_lshl_b32 s{sT}, s{sT}, 1")
        a(f"v_or_b32 v{VT}, s{sT}, v{VT}")
        a(f"v_lshlrev_b32 v{VT}, 1, v{VT}")
        a(f"v_and_b32 v{VT+1}, 7, v0")
        a(f"v_xor_b32 v{VT}, v{VT}, v{VT+1}")
        a(f"v_lshl_add_u32 v{VD1}, v{VT}, 4, v{VD1}")
        a(f"s_lshl_b32 s{WOO}, s{W}, 14")
        a(f"s_lshl_b32 s{sT}, s{sJ}, 7")
        a(f"s_add_u32 s{WOO}, s{WOO}, s{sT}")
        a(f"s_lshl_b32 s{WOM}, s{W}, 10")
    def wo_dma(i):
        a(f"s_add_u32 m0, s{WOM}, {i*8192}")
        a(f"s_add_u32 s{sT}, s{WOO}, {i*64*2048}")
        a(f"buffer_load_dwordx4 v{VD1}, {srd(sWO)}, s{sT} offen lds")
        vm.issue("wo")
    FU.wo_dma = wo_dma

    sched = {}
    def at(t, q, fn): sched.setdefault((t, q), []).append(fn)
    S1D = opt.get("s1d", 2)
    if moe:
        for i in range(8): at(S1D + i, 1, lambda i=i: s1_dma(i))
        for i in range(4): at(S1D + 8 + i, 1, lambda i=i: s2_dma(i))
        at(14, 0, s1_compute)
        at(16, 0, s1_final)
        at(19, 0, s1_flag)
        at(21, 1, s2_poll)
        at(23, 1, s2_load)
        at(26, 0, s2_compute)
    at(16, 1, wo_setup)
    for i in range(12): at(17 + i, 1, lambda i=i: wo_dma(i))

    def hooks(t, q):
        def h(pos):
            if t < 2: return
            if q == 0:
                if pos == "Mc": vm.wait(f"V{t}_0")
                if pos == "Ma+" and t + 3 < NT: ldV(t+3, 0)
                if pos == "Mb+" and t + 3 < NT: ldV(t+3, 1)
            else:
                if pos == "Ma": vm.wait(f"K{t+1}_1", f"V{t}_1")
                if pos == "Md+" and t + 4 < NT: ldK(t+4, 0)
                if pos == "Mc+" and t + 4 < NT: ldK(t+4, 1)
        return h
    def prio(t): a(f"s_setprio {3 - (t % BAR) * 4 // BAR}")
    prio(0)
    unit(a, R, 0, 0, NB); unit(a, R, 0, 1, NB)
    vm.wait("kvst")
    kvf_addr(a, sT, sT+1)
    flag_set(a, vm, sT, VT, VT+1)
    vm.issue("kvfl")
    a.stamp(4)
    prio(1)
    unit(a, R, 1, 0, NB); unit(a, R, 1, 1, NB, noqk=True)
    if moe:
        lab = a.new_label(f"{name}_xs")
        a(f"s_cmp_eq_u32 s{KH}, 0")
        a(f"s_cbranch_scc1 {lab}")
        xsel_normalise(a, VT)
        a("s_waitcnt lgkmcnt(0)")
        a.label(lab)
    a.stamp(5)
    a(f"s_mov_b32 s{NEED}, 0x3c")
    a(f"s_call_b64 s[{RET}:{RET+1}], {name}_kvspin")
    a.stamp(6)
    ldK(2, 0); ldK(2, 1); ldV(2, 0); ldV(2, 1); ldK(3, 0); ldK(3, 1); ldV(3, 0); ldV(3, 1)
    ldK(4, 0); ldK(4, 1); ldV(4, 0); ldV(4, 1); ldK(5, 0); ldK(5, 1)
    vm.wait("K2_1")
    a(M32(R.S0, R.KB+16, Q, None))
    a(M32(R.S0, R.KB+20, Q+4, R.S0))
    a("s_nop 10")
    for t in range(2, NT):
        prio(t)
        for q in range(2):
            for fn in sched.get((t, q), []): fn()
            unit(a, R, t, q, NB, hooks(t, q))
        if ((t % BAR) == BAR - 1 or t == 27) and t != NT - 1: a("s_barrier")
    a("s_setprio 0")
    a.stamp(7)
    a(M32(O+16, R.VB+8*((NT-1)%NB)+4, P+4, O+16))
    a(SM(L+4, R.ONES, P, R.IDX))
    vm.wait("yat")
    a.trace(50)
    a("s_nop 7")
    a("s_nop 7")
    exchange_and_store(a, name, vm, R, opt)
    c = Asm()
    AT.attn_slow_path(c, R, name, KH, sWS, HB, s0=sT)
    cold.append(c)

def exchange_and_store(a, name, vm, R, opt):
    O, L, T, VL, P = R.O, R.L, R.T, R.VL, R.P
    a(f"v_add_f32 v{L}, v{L}, v{L+1}")
    a(f"v_add_f32 v{L+4}, v{L+4}, v{L+5}")
    a(f"s_mul_i32 s{sT}, s{W}, 4352")
    a(f"s_add_u32 s{sT}, s{sT}, {L_EX}")
    a(f"s_xor_b32 s{sT+1}, s{W}, 4")
    a(f"s_mul_i32 s{sT+1}, s{sT+1}, 4352")
    a(f"s_add_u32 s{sT+1}, s{sT+1}, {L_EX}")
    a(f"v_add_u32 v{T}, s{sT}, v{VL}")
    a(f"v_add_u32 v{T+1}, s{sT+1}, v{VL}")
    a(f"v_lshrrev_b32 v{T+2}, 2, v{VL}")
    a(f"v_add_u32 v{T+3}, s{sT+1}, v{T+2}")
    a(f"v_add_u32 v{T+2}, s{sT}, v{T+2}")
    a(f"s_cmp_eq_u32 s{KH}, 0")
    a(f"s_cbranch_scc1 {name}_kh0")
    for r in range(4): a(f"ds_write_b128 v{T}, {vr(O+4*r,4)} offset:{r*1024}")
    a(f"ds_write_b32 v{T+2}, v{L} offset:4096")
    a("s_waitcnt lgkmcnt(0)")
    for r in range(16): a(f"v_mov_b32 v{O+r}, v{O+16+r}")
    a(f"v_mov_b32 v{L}, v{L+4}")
    a(f"s_branch {name}_khj")
    a.label(f"{name}_kh0")
    for r in range(4): a(f"ds_write_b128 v{T}, {vr(O+16+4*r,4)} offset:{r*1024}")
    a(f"ds_write_b32 v{T+2}, v{L+4} offset:4096")
    a.label(f"{name}_khj")
    a("s_waitcnt lgkmcnt(0)")
    a("s_barrier")
    for r in range(4): a(f"ds_read_b128 {vr(O+16+4*r,4)}, v{T+1} offset:{r*1024}")
    a(f"ds_read_b32 v{L+4}, v{T+3} offset:4096")
    if opt.get("moe", True):
        lab = a.new_label(f"{name}_yf")
        a(f"s_cmp_lg_u32 s{W}, 0")
        a(f"s_cbranch_scc1 {lab}")
        yf_addr(a, sT, sT+1)
        flag_set(a, vm, sT, T+4, T+5)
        vm.issue("yfl", 1, cond=True)
        a.label(lab)
    otile(a, sT, sT+1)
    a(f"s_lshl_b32 s{sT}, s{sT}, 6")
    head_of(a, sT+1, sT+2)
    a(f"s_add_u32 s{sT}, s{sT}, s{sT+1}")
    a(f"s_lshl_b32 s{sT+4}, s{sT}, 10")
    a(f"s_add_u32 s{sT+4}, s{sT+4}, {WS_O}")
    a(f"v_bfe_u32 v{T+4}, v0, 4, 1")
    a(f"v_lshlrev_b32 v{T+4}, 15, v{T+4}")
    a(f"v_lshrrev_b32 v{T+5}, 5, v0")
    a(f"v_lshl_add_u32 v{T+4}, v{T+5}, 9, v{T+4}")
    a(f"v_and_b32 v{T+5}, 15, v0")
    a(f"v_lshl_add_u32 v{T+4}, v{T+5}, 4, v{T+4}")
    a("s_waitcnt lgkmcnt(0)")
    a("s_barrier")
    a.trace(51)
    for r in range(16): a(f"v_add_f32 v{O+r}, v{O+r}, v{O+16+r}")
    a(f"v_add_f32 v{L}, v{L}, v{L+4}")
    a(f"v_mov_b32 v{T+1}, 0")
    for r in range(16): a(f"v_fmac_f32 v{T+1}, 0, v{O+r}")
    a(f"s_mov_b32 s{sT}, 0x2b800000")
    a(f"s_mov_b32 s{sT+1}, 0x5d800000")
    a(f"v_cmp_nle_f32 s[{sT+6}:{sT+7}], s{sT}, v{L}")
    a(f"v_cmp_nge_f32 s[{sT+8}:{sT+9}], s{sT+1}, v{L}")
    a(f"v_cmp_u_f32 vcc, v{T+1}, v{T+1}")
    a(f"s_or_b64 s[{sT+6}:{sT+7}], s[{sT+6}:{sT+7}], s[{sT+8}:{sT+9}]")
    a(f"s_or_b64 s[{sT+6}:{sT+7}], s[{sT+6}:{sT+7}], vcc")
    a(f"s_cmp_lg_u64 s[{sT+6}:{sT+7}], 0")
    a(f"s_cbranch_scc1 {name}_slow")
    a.label(f"{name}_fin")
    a(f"v_rcp_f32 v{T}, v{L}")
    a("s_nop 0")
    for jj in range(2):
        for e_ in range(4):
            r0 = O + 8*jj + 2*e_
            a(f"v_mul_f32 v{r0}, v{r0}, v{T}")
            a(f"v_mul_f32 v{r0+1}, v{r0+1}, v{T}")
            a(f"v_cvt_pk_bf16_f32 v{P+4*jj+e_}, v{r0}, v{r0+1}")
        a(f"buffer_store_dwordx4 {vr(P+4*jj,4)}, v{T+4}, {srd(sWS)}, s{sT+4} offen offset:{jj*256} sc1")
    vm.issue("ost", 2)
    a.trace(52)

def phaseC(a, name, cold, opt, vm):
    ACC, WB, OB, XF, G = 4, 36, 68, 132, 148
    WA, VL2, VX, VPo, VPa, MS, T = 164, 168, 169, 170, 171, 172, 180
    XP = 196
    TT = 48
    sTT, sOA, sOB = 49, 50, 51
    moe = opt.get("moe", True)
    a(f"s_and_b32 s{sTT}, s{W}, 3")
    a(f"v_lshlrev_b32 v{VL2}, 4, v0")
    a(f"v_and_b32 v{T}, 15, v0")
    a(f"v_lshrrev_b32 v{T+1}, 4, v0")
    a(f"s_lshl_b32 s{sT}, s{sTT}, 5")
    a(f"v_add_u32 v{T+2}, s{sT}, v{T}")
    a(f"v_lshlrev_b32 v{T+3}, 2, v{T+2}")
    a(f"v_add_u32 v{T+3}, {L_M}, v{T+3}")
    for t16 in range(2):
        a(f"ds_read_b32 v{MS+2*t16}, v{T+3} offset:{t16*64}")
        a(f"ds_read_b32 v{MS+2*t16+1}, v{T+3} offset:{t16*64+512}")
    a(f"v_lshlrev_b32 v{T+3}, 2, v0")
    a(f"v_add_u32 v{T+3}, {L_IDX}, v{T+3}")
    a(f"ds_read_b32 v{T+4}, v{T+3}")
    a(f"s_lshl_b32 s{sT}, s{sMT}, 7")
    a(f"v_add_u32 v{T+2}, s{sT}, v{T+2}")
    a(f"v_lshlrev_b32 v{VX}, 11, v{T+2}")
    a(f"v_and_b32 v{T+5}, 1, v{T+1}")
    a(f"v_lshlrev_b32 v{T+5}, 5, v{T+5}")
    a(f"v_lshrrev_b32 v{T+6}, 1, v{T+1}")
    a(f"v_lshl_add_u32 v{T+5}, v{T+6}, 4, v{T+5}")
    a(f"s_lshl_b32 s{sT}, s{sJ}, 7")
    a(f"s_lshl_b32 s{sT+1}, s{KH}, 6")
    a(f"s_add_u32 s{sT}, s{sT}, s{sT+1}")
    a(f"v_add_u32 v{T+5}, s{sT}, v{T+5}")
    a(f"v_add_u32 v{VX}, v{VX}, v{T+5}")
    a(f"s_mov_b32 s{sOB}, 32768")
    a(f"buffer_load_dwordx4 {vr(XP,4)}, v{VX}, {srd(sX)}, 0 offen")
    a(f"buffer_load_dwordx4 {vr(XP+4,4)}, v{VX}, {srd(sX)}, s{sOB} offen")
    vm.issue("xc", 2)
    for i in range(12, 16): FU.wo_dma(i)
    a(f"s_lshl_b32 s{sT}, s{sMT}, 2")
    a(f"s_add_u32 s{sT}, s{sT}, s{sTT}")
    a(f"s_lshl_b32 s{sOA}, s{sT}, 16")
    a(f"s_lshl_b32 s{sT+1}, s{KH}, 14")
    a(f"s_add_u32 s{sOA}, s{sOA}, s{sT+1}")
    a(f"s_add_u32 s{sOA}, s{sOA}, {WS_O}")
    a(f"s_add_u32 s{sOB}, s{sOA}, 32768")
    a(f"s_lshl_b32 s{sT}, s{sT}, 1")
    a(f"s_add_u32 s{sT}, s{sT}, s{KH}")
    a(f"s_lshl_b32 s{sT}, s{sT}, 7")
    a(f"s_add_u32 s{sT}, s{sT}, {WS_OF}")
    a(f"v_lshlrev_b32 v{VPa}, 2, v{T}")
    a(f"v_add_u32 v{VPa}, s{sT}, v{VPa}")
    a(f"v_and_b32 v{T+6}, 1, v{T+1}")
    a(f"v_lshlrev_b32 v{T+7}, 4, v{T+6}")
    a(f"v_lshrrev_b32 v{T+8}, 1, v{T+1}")
    a(f"v_lshl_add_u32 v{T+7}, v{T+8}, 2, v{T+7}")
    a(f"v_bfe_u32 v{T+8}, v0, 2, 2")
    a(f"v_add_u32 v{T+7}, v{T+7}, v{T+8}")
    a(f"v_lshlrev_b32 v{T+7}, 7, v{T+7}")
    a(f"v_and_b32 v{T+8}, 3, v0")
    a(f"v_lshl_add_u32 v{T+7}, v{T+8}, 3, v{T+7}")
    a(f"v_lshlrev_b32 v{T+6}, 1, v{T+6}")
    a(f"v_bfe_u32 v{T+8}, v0, 3, 1")
    a(f"v_or_b32 v{T+6}, v{T+6}, v{T+8}")
    a(f"v_lshl_add_u32 v{T+7}, v{T+6}, 5, v{T+7}")
    a(f"s_lshl_b32 s{sT}, s{KH}, 16")
    a(f"v_add_u32 v{WA}, s{sT}, v{T+7}")
    for ct in range(1, 4): a(f"v_xor_b32 v{WA+ct}, {ct*32}, v{WA}")
    a.trace(53)
    vm.wait("ost")
    a.trace(54)
    of_addr(a, sT, sT+1)
    flag_set(a, vm, sT, T+6, T+7)
    vm.issue("ofl")
    a.stamp(8)
    a(f"buffer_load_dword v{VPo}, v{VPa}, {srd(sWS)}, 0 offen sc1")
    vm.issue("opoll")
    a("s_waitcnt lgkmcnt(0)")
    IDXS, WTS = 52, 64
    for i in range(8): a(f"v_readlane_b32 s{IDXS+i}, v{T+4}, {i}")
    for i in range(8): a(f"v_readlane_b32 s{WTS+i}, v{T+4}, {8+i}")
    vm.wait("xc")
    a.trace(55)
    for t16 in range(2):
        for p in range(4):
            x0, x1 = XF + 8*t16 + 2*p, XF + 8*t16 + 2*p + 1
            g0, g1 = G + 8*t16 + 2*p, G + 8*t16 + 2*p + 1
            a(f"v_lshlrev_b32 v{x0}, 16, v{XP+4*t16+p}")
            a(f"v_and_b32 v{x1}, 0xffff0000, v{XP+4*t16+p}")
            a(f"v_sub_f32 v{g0}, v{x0}, v{MS+2*t16}")
            a(f"v_sub_f32 v{g1}, v{x1}, v{MS+2*t16}")
            a(f"v_cvt_pk_bf16_f32 v{T+6}, v{g0}, v{g1}")
            a(f"v_lshlrev_b32 v{g0}, 16, v{T+6}")
            a(f"v_and_b32 v{g1}, 0xffff0000, v{T+6}")
            a(f"v_mul_f32 v{g0}, v{g0}, v{MS+2*t16+1}")
            a(f"v_mul_f32 v{g1}, v{g1}, v{MS+2*t16+1}")
            a(f"v_cvt_pk_bf16_f32 v{T+6}, v{g0}, v{g1}")
            a(f"v_lshlrev_b32 v{g0}, 16, v{T+6}")
            a(f"v_and_b32 v{g1}, 0xffff0000, v{T+6}")
    if moe:
        SL, WT_ = T+8, T+10
        for t16 in range(2):
            a(f"v_mov_b32 v{SL+t16}, -1")
            a(f"v_mov_b32 v{WT_+t16}, 0")
            a(f"v_add_u32 v{T+7}, {16*t16}, v{T+2}")
            for i in range(8):
                a(f"v_cmp_eq_u32 vcc, s{IDXS+i}, v{T+7}")
                a(f"v_mov_b32 v{T+12}, {i}")
                a(f"v_mov_b32 v{T+13}, s{WTS+i}")
                a(f"v_cndmask_b32 v{SL+t16}, v{SL+t16}, v{T+12}, vcc")
                a(f"v_cndmask_b32 v{WT_+t16}, v{WT_+t16}, v{T+13}, vcc")
        a(f"v_max_i32 v{T+7}, v{SL}, v{SL+1}")
        a(f"v_cmp_le_i32 vcc, 0, v{T+7}")
        a("s_cmp_lg_u64 vcc, 0")
        a(f"s_cbranch_scc1 {name}_routed")
        a.label(f"{name}_routed_done")
        c = Asm()
        c.label(f"{name}_routed")
        c(f"s_lshl_b32 s{sT+8}, s{sJ}, 11")
        c(f"s_add_u32 s{sT+8}, s{sT+8}, {WS_YF}")
        c(f"v_lshlrev_b32 v{T+12}, 7, v{T}")
        c(f"v_add_u32 v{T+12}, s{sT+8}, v{T+12}")
        c(f"buffer_load_dword v{T+13}, v{T+12}, {srd(sWS)}, 0 offen sc1")
        c("s_waitcnt vmcnt(0)")
        poll_check(c, f"{name}_yp", T+13, T+12, sWS, 1, -1, cold)
        for t16 in range(2):
            lab = c.new_label(f"{name}_rt")
            c(f"v_cmp_le_i32 vcc, 0, v{SL+t16}")
            c(f"s_and_saveexec_b64 s[{sT+8}:{sT+9}], vcc")
            c(f"s_cbranch_execz {lab}")
            c(f"v_lshlrev_b32 v{T+12}, 1, v{T+5}")
            c(f"v_lshl_add_u32 v{T+12}, v{SL+t16}, 12, v{T+12}")
            c(f"v_add_u32 v{T+12}, {WS_Y}, v{T+12}")
            c(f"buffer_load_dwordx4 {vr(WB,4)}, v{T+12}, {srd(sWS)}, 0 offen sc1")
            c(f"buffer_load_dwordx4 {vr(WB+4,4)}, v{T+12}, {srd(sWS)}, 0 offen offset:16 sc1")
            c("s_waitcnt vmcnt(0)")
            for e in range(8):
                round_bf16(c, WB+e)
                c(f"v_mul_f32 v{WB+e}, v{WB+e}, v{WT_+t16}")
                round_bf16(c, WB+e)
                c(f"v_add_f32 v{G+8*t16+e}, v{G+8*t16+e}, v{WB+e}")
                round_bf16(c, G+8*t16+e)
            c.label(lab)
            c(f"s_mov_b64 exec, s[{sT+8}:{sT+9}]")
        c(f"s_branch {name}_routed_done")
        cold.append(c)
    for b in range(0, 16, 8):
        for e in range(8): a(f"v_mul_f32 v{T+6+e}, 0xbfb8aa3b, v{G+b+e}")
        for e in range(8): a(f"v_exp_f32 v{T+6+e}, v{T+6+e}")
        for e in range(8): a(f"v_add_f32 v{T+6+e}, 1.0, v{T+6+e}")
        for e in range(8): a(f"v_rcp_f32 v{T+6+e}, v{T+6+e}")
        for e in range(8): a(f"v_mul_f32 v{G+b+e}, v{G+b+e}, v{T+6+e}")
    a.trace(56)
    vm.wait("opoll", "wo")
    a.trace(57)
    poll_check(a, f"{name}_op", VPo, VPa, sWS, 1, -1, cold)
    a.trace(60)
    def oload(i):
        for t16 in range(2):
            off = i*1024
            a(f"buffer_load_dwordx4 {vr(OB+8*(i%8)+4*t16,4)}, v{VL2}, {srd(sWS)}, s{(sOA, sOB)[t16]} offen offset:{off % 4096}")
            vm.issue(f"O{i}")
        if i % 4 == 3:
            a(f"s_add_u32 s{sOA}, s{sOA}, 4096")
            a(f"s_add_u32 s{sOB}, s{sOB}, 4096")
    for i in range(8): oload(i)
    a.trace(58)
    a("s_barrier")
    a.trace(59)
    def wreads(i):
        return [f"ds_read_b64_tr_b16 {vr(WB+16*(i&1)+4*ct+2*t_,2)}, v{WA+ct} offset:{i*4096+t_*1024}" for ct in range(4) for t_ in range(2)]
    a(*wreads(0))
    for i in range(16):
        r = wreads(i+1) if i < 15 else []
        vm.wait(f"O{i}")
        a("s_waitcnt lgkmcnt(0)")
        if i == 0: a.trace(62)
        if i == 8: a.trace(63)
        k = 0
        for ct in range(4):
            for t16 in range(2):
                d = vr(ACC+16*t16+4*ct, 4)
                a(f"v_mfma_f32_16x16x32_bf16 {d}, {vr(WB+16*(i&1)+4*ct,4)}, {vr(OB+8*(i%8)+4*t16,4)}, {d if i else 0}")
                if r: a(r[k])
                k += 1
        if i + 8 < 16: oload(i+8)
    a.trace(61)
    EX = 131072
    a(f"s_lshl_b32 s{sT}, s{W}, 12")
    a(f"s_add_u32 s{sT}, s{sT}, {EX}")
    a(f"s_xor_b32 s{sT+1}, s{sT}, 16384")
    a(f"v_add_u32 v{T}, s{sT}, v{VL2}")
    a(f"v_add_u32 v{T+1}, s{sT+1}, v{VL2}")
    a(f"s_cmp_eq_u32 s{KH}, 0")
    a("s_nop 3")
    a(f"s_cbranch_scc1 {name}_ck0")
    for t16 in range(2):
        for cc in range(2): a(f"ds_write_b128 v{T}, {vr(ACC+16*t16+4*cc,4)} offset:{(2*t16+cc)*1024}")
    a("s_waitcnt lgkmcnt(0)")
    for t16 in range(2):
        for r in range(8): a(f"v_mov_b32 v{ACC+16*t16+r}, v{ACC+16*t16+8+r}")
    a(f"s_branch {name}_ckj")
    a.label(f"{name}_ck0")
    for t16 in range(2):
        for cc in range(2): a(f"ds_write_b128 v{T}, {vr(ACC+16*t16+8+4*cc,4)} offset:{(2*t16+cc)*1024}")
    a.label(f"{name}_ckj")
    a("s_waitcnt lgkmcnt(0)")
    a("s_barrier")
    for t16 in range(2):
        for cc in range(2): a(f"ds_read_b128 {vr(ACC+16*t16+8+4*cc,4)}, v{T+1} offset:{(2*t16+cc)*1024}")
    a(f"s_mov_b32 s{sT}, 32768")
    for t16 in range(2):
        b = ACC + 16*t16
        a(f"s_waitcnt lgkmcnt({2-2*t16})")
        for r in range(8): a(f"v_add_f32 v{b+r}, v{b+r}, v{b+8+r}")
        for r in range(4): a(f"v_permlane16_swap_b32 v{b+r}, v{b+4+r}")
        for e in range(8): a(f"v_fmac_f32 v{XF+8*t16+e}, v{b+e}, v{G+8*t16+e}")
        for p in range(4): a(f"v_cvt_pk_bf16_f32 v{XP+4*t16+p}, v{XF+8*t16+2*p}, v{XF+8*t16+2*p+1}")
        a(f"buffer_store_dwordx4 {vr(XP+4*t16,4)}, v{VX}, {srd(sOUT)}, {'0' if t16 == 0 else f's{sT}'} offen")
```

```python
import os
from asmlib import *
from layout import *
from k_top8 import DPPS, make_keys, decode_keys
from k_attn import M32, M16
import k_attn2 as AT
from k_moe import pi_row, silu_bf16, round_bf16

QSCALE = 0x3e8293ee
sX, sWQ, sWS, sWR, sDBG, sWG, sWU, sWD, sWO, sOUT = 4, 8, 12, 16, 20, 24, 28, 32, 36, 40
sJ, sMT, sLI, sXC = 44, 45, 46, 47
sIDX, sWT = 48, 56
sT = 64
W = 3
SLOT, WOFF = 40960, 16384
L_Q, L_XS, L_MISC = 122880, 139264, 159744
L_M, L_RS, L_CS, L_CAND, L_IDX, L_H = L_MISC, L_MISC+512, L_MISC+1024, L_MISC+1792, L_MISC+1920, L_MISC+2048
L_ST, L_CNT = L_MISC+3072, L_MISC+3200
LDS_BYTES = 163840
SPIN_LIMIT = 400000
XSEL_RAW, XSEL_ST = 200, 216

def srd(r): return f"s[{r}:{r+3}]"

def wsum(a, r, sdst, op="add_f32"):
    for ctl in DPPS:
        bc = " bound_ctrl:0" if ctl.startswith("row_shr") and op == "add_f32" else ""
        a("s_nop 1")
        a(f"v_{op}_dpp v{r}, v{r}, v{r} {ctl}{bc}")
    a("s_nop 0")
    a(f"v_readlane_b32 s{sdst}, v{r}, 63")
    a("s_nop 1")

def ln_rows2(a, vm, X, WR, XB, T, voff, dbg):
    R2 = range(2)
    F_ = lambda i, e: XB + 16*i + e
    T_ = lambda i, k: T + 6*i + k
    def wsum2(k, sd):
        for ctl in DPPS:
            bc = " bound_ctrl:0" if ctl.startswith("row_shr") else ""
            a("s_nop 0")
            for i in R2: a(f"v_add_f32_dpp v{T_(i,k)}, v{T_(i,k)}, v{T_(i,k)} {ctl}{bc}")
        a("s_nop 0")
        for i in R2: a(f"v_readlane_b32 s{sT+3*i+sd}, v{T_(i,k)}, 63")
        a("s_nop 0")
    for i in R2:
        for p in range(8):
            a(f"v_lshlrev_b32 v{F_(i,2*p)}, 16, v{X+8*i+p}")
            a(f"v_and_b32 v{F_(i,2*p+1)}, 0xffff0000, v{X+8*i+p}")
    for i in R2:
        a(f"v_add_f32 v{T_(i,0)}, v{F_(i,0)}, v{F_(i,1)}")
    for e in range(2, 16):
        for i in R2: a(f"v_add_f32 v{T_(i,0)}, v{T_(i,0)}, v{F_(i,e)}")
    a("s_nop 0")
    wsum2(0, 0)
    for i in R2:
        a(f"v_mov_b32 v{T_(i,0)}, s{sT+3*i}")
    for i in R2:
        a(f"v_mul_f32 v{T_(i,0)}, 0x3a800000, v{T_(i,0)}")
    for i in R2:
        a(f"v_sub_f32 v{T_(i,2)}, v{F_(i,0)}, v{T_(i,0)}")
        a(f"v_mul_f32 v{T_(i,1)}, v{T_(i,2)}, v{T_(i,2)}")
    for e in range(1, 16):
        for i in R2:
            a(f"v_sub_f32 v{T_(i,2)}, v{F_(i,e)}, v{T_(i,0)}")
            a(f"v_fmac_f32 v{T_(i,1)}, v{T_(i,2)}, v{T_(i,2)}")
    wsum2(1, 0)
    seq = lambda i: [
        f"v_mov_b32 v{T_(i,1)}, s{sT+3*i}",
        f"v_mul_f32 v{T_(i,1)}, 0x3a800000, v{T_(i,1)}",
        f"v_cvt_pk_bf16_f32 v{T_(i,2)}, v{T_(i,0)}, v{T_(i,1)}",
        f"v_lshlrev_b32 v{T_(i,0)}, 16, v{T_(i,2)}",
        f"v_and_b32 v{T_(i,1)}, 0xffff0000, v{T_(i,2)}",
        f"v_add_f32 v{T_(i,1)}, 0x3727c5ac, v{T_(i,1)}",
        f"v_cvt_pk_bf16_f32 v{T_(i,1)}, v{T_(i,1)}, v{T_(i,1)}",
        f"v_and_b32 v{T_(i,1)}, 0xffff0000, v{T_(i,1)}",
        f"v_sqrt_f32 v{T_(i,1)}, v{T_(i,1)}",
        f"v_readfirstlane_b32 s{sT+3*i}, v{T_(i,0)}",
        f"v_cvt_pk_bf16_f32 v{T_(i,1)}, v{T_(i,1)}, v{T_(i,1)}",
        f"v_and_b32 v{T_(i,1)}, 0xffff0000, v{T_(i,1)}",
        f"v_rcp_f32 v{T_(i,1)}, v{T_(i,1)}",
        f"v_mov_b32 v{T_(i,3)}, 0"]
    for x, y in zip(seq(0), seq(1)): a(x, y)
    for p in range(8):
        st = lambda i: [
            f"v_sub_f32 v{F_(i,2*p)}, v{F_(i,2*p)}, v{T_(i,0)}",
            f"v_sub_f32 v{F_(i,2*p+1)}, v{F_(i,2*p+1)}, v{T_(i,0)}",
            f"v_cvt_pk_bf16_f32 v{T_(i,2)}, v{F_(i,2*p)}, v{F_(i,2*p+1)}",
            f"v_lshlrev_b32 v{F_(i,2*p)}, 16, v{T_(i,2)}",
            f"v_and_b32 v{F_(i,2*p+1)}, 0xffff0000, v{T_(i,2)}",
            f"v_mul_f32 v{F_(i,2*p)}, v{F_(i,2*p)}, v{T_(i,1)}",
            f"v_mul_f32 v{F_(i,2*p+1)}, v{F_(i,2*p+1)}, v{T_(i,1)}",
            f"v_cvt_pk_bf16_f32 v{X+8*i+p}, v{F_(i,2*p)}, v{F_(i,2*p+1)}"]
        for x, y in zip(st(0), st(1)): a(x, y)
    for i in R2: a(f"v_readfirstlane_b32 s{sT+3*i+1}, v{T_(i,1)}")
    if dbg:
        for i in R2:
            a(f"buffer_store_dwordx4 {vr(X+8*i,4)}, v{voff}, {srd(sWS)}, 0 offen offset:{2048*i}")
            a(f"buffer_store_dwordx4 {vr(X+8*i+4,4)}, v{voff}, {srd(sWS)}, 0 offen offset:{2048*i+1024}")
    for p in range(8):
        for i in R2: a(f"v_dot2c_f32_bf16 v{T_(i,3)}, v{X+8*i+p}, v{WR+p}")
    a("s_nop 1")
    wsum2(3, 2)
    for i in R2: a(f"v_mov_b32 v{T_(i,0)}, s{sT+3*i+2}")
    for i in R2: a(f"v_cvt_pk_bf16_f32 v{T_(i,0)}, v{T_(i,0)}, v{T_(i,0)}")
    for i in R2: a(f"v_and_b32 v{T_(i,0)}, 0xffff0000, v{T_(i,0)}")
    a(f"v_mov_b32 v{T+1}, s{sT}")
    a(f"v_readfirstlane_b32 s{sT+2}, v{T_(0,0)}")
    a(f"v_readfirstlane_b32 s{sT+5}, v{T_(1,0)}")
    a(f"v_lshlrev_b32 v{T+2}, 5, v0")
    a(f"s_lshl_b32 s{sT+6}, s{W}, 3")
    a(f"s_add_u32 s{sT+6}, s{sT+6}, {L_ST}")
    a(f"v_add_u32 v{T+2}, s{sT+6}, v{T+2}")
    for l in range(1, 6): a(f"v_writelane_b32 v{T+1}, s{sT+l}, {l}")
    for l in range(3):
        a(f"s_add_u32 s{sT+7}, s{sT+6}, {l*32+4}")
        a(f"v_writelane_b32 v{T+2}, s{sT+7}, {3+l}")
    a("s_mov_b64 exec, 63")
    a(f"ds_write_b32 v{T+2}, v{T+1}")
    a("s_mov_b64 exec, -1")

def rec_of(a, d):
    a(f"s_lshl_b32 s{d}, s{sMT}, 4")
    a(f"s_add_u32 s{d}, s{d}, s{sJ}")

def publish_stats(a, vm, T):
    A_, D_, U_ = T, T+1, T+2
    t = sT
    a(f"v_lshlrev_b32 v{U_}, 2, v0")
    a(f"v_add_u32 v{A_}, {L_ST}, v{U_}")
    a(f"ds_read_b32 v{D_}, v{A_}")
    rec_of(a, t)
    a(f"s_lshl_b32 s{t}, s{t}, 7")
    a(f"s_add_u32 s{t}, s{t}, {WS_ST}")
    a(f"v_add_u32 v{A_}, s{t}, v{U_}")
    rec_of(a, t)
    a(f"s_lshl_b32 s{t}, s{t}, 5")
    a(f"s_add_u32 s{t}, s{t}, {WS_R - 64}")
    a(f"v_cmp_le_u32 vcc, 16, v0")
    a(f"v_add_u32 v{U_}, s{t}, v{U_}")
    a("s_nop 0")
    a(f"v_cndmask_b32 v{A_}, v{A_}, v{U_}, vcc")
    a(f"s_lshl_b32 s{t}, s{sJ}, 5")
    a(f"s_add_u32 s{t}, s{t}, s{sMT}")
    a(f"s_lshl_b32 s{t}, s{t}, 7")
    a(f"s_add_u32 s{t}, s{t}, {WS_KVF}")
    a(f"v_bfe_u32 v{U_}, v0, 2, 1")
    a(f"v_lshlrev_b32 v{U_}, 11, v{U_}")
    a(f"v_and_b32 v{U_+1}, 3, v0")
    a(f"v_lshl_add_u32 v{U_}, v{U_+1}, 2, v{U_}")
    a(f"v_add_u32 v{U_}, s{t}, v{U_}")
    a(f"v_cmp_le_u32 vcc, 24, v0")
    a(f"s_lshl_b32 s{t}, s{sMT}, 3")
    a(f"s_lshr_b32 s{t+1}, s{sJ}, 3")
    a(f"v_cndmask_b32 v{A_}, v{A_}, v{U_}, vcc")
    a(f"s_add_u32 s{t}, s{t}, s{t+1}")
    a(f"s_lshl_b32 s{t}, s{t}, 7")
    a(f"s_and_b32 s{t+1}, s{sJ}, 7")
    a(f"s_lshl_b32 s{t+1}, s{t+1}, 3")
    a(f"s_add_u32 s{t}, s{t}, s{t+1}")
    a(f"s_add_u32 s{t}, s{t}, {WS_OF}")
    a(f"v_bfe_u32 v{U_}, v0, 1, 2")
    a(f"v_lshlrev_b32 v{U_}, 8, v{U_}")
    a(f"v_and_b32 v{U_+1}, 1, v0")
    a(f"v_lshl_add_u32 v{U_}, v{U_+1}, 2, v{U_}")
    a(f"v_add_u32 v{U_}, s{t}, v{U_}")
    a(f"v_cmp_le_u32 vcc, 32, v0")
    yf_addr(a, t, t+1)
    a(f"v_cndmask_b32 v{A_}, v{A_}, v{U_}, vcc")
    hf_addr(a, t+1)
    a(f"s_cmp_lt_u32 s{sLI}, 28")
    a(f"s_cselect_b32 s{t+1}, s{t+1}, s{t}")
    a(f"v_writelane_b32 v{A_}, s{t}, 40")
    a(f"v_writelane_b32 v{A_}, s{t+1}, 41")
    a(f"v_cmp_gt_u32 vcc, 24, v0")
    a("s_waitcnt lgkmcnt(0)")
    a(f"s_lshl_b32 s{t}, s2, 7")
    a(f"v_cndmask_b32 v{D_}, 0, v{D_}, vcc")
    a("s_bfm_b64 exec, 42, 0")
    a(f"buffer_store_dword v{D_}, v{A_}, {srd(sWS)}, 0 offen sc1")
    a("s_mov_b64 exec, -1")
    a(f"s_add_u32 s{t}, s{t}, {WS_Y}")
    for r in range(4): a(f"v_mov_b32 v{T+4+r}, 0")
    a("s_mov_b64 exec, 0xff")
    a(f"buffer_store_dwordx4 {vr(T+4,4)}, v94, {srd(sWS)}, s{t} offen sc1")
    a("s_mov_b64 exec, -1")
    vm.issue("st", 2, cond=True)

def kvf_addr(a, d, t):
    a(f"s_lshr_b32 s{t}, s{W}, 2")
    a(f"s_lshl_b32 s{d}, s{sJ}, 1")
    a(f"s_add_u32 s{d}, s{d}, s{t}")
    a(f"s_lshl_b32 s{d}, s{d}, 4")
    a(f"s_add_u32 s{d}, s{d}, s{sMT}")
    a(f"s_lshl_b32 s{d}, s{d}, 5")
    a(f"s_and_b32 s{t}, s{W}, 3")
    a(f"s_add_u32 s{d}, s{d}, s{t}")
    a(f"s_lshl_b32 s{d}, s{d}, 2")
    a(f"s_add_u32 s{d}, s{d}, {WS_KVF}")
def otile(a, d, t):
    a(f"s_lshl_b32 s{d}, s{sMT}, 2")
    a(f"s_and_b32 s{t}, s{W}, 2")
    a(f"s_add_u32 s{d}, s{d}, s{t}")
    a(f"s_lshr_b32 s{t}, s{W}, 2")
    a(f"s_add_u32 s{d}, s{d}, s{t}")
def head_of(a, d, t):
    a(f"s_lshl_b32 s{d}, s{sJ}, 1")
    a(f"s_and_b32 s{t}, s{W}, 1")
    a(f"s_add_u32 s{d}, s{d}, s{t}")
def of_addr(a, d, t):
    otile(a, d, t)
    a(f"s_lshl_b32 s{d}, s{d}, 1")
    a(f"s_lshr_b32 s{t}, s{sJ}, 3")
    a(f"s_add_u32 s{d}, s{d}, s{t}")
    a(f"s_lshl_b32 s{d}, s{d}, 5")
    a(f"s_and_b32 s{t}, s{sJ}, 7")
    a(f"s_lshl_b32 s{t}, s{t}, 1")
    a(f"s_add_u32 s{d}, s{d}, s{t}")
    a(f"s_and_b32 s{t}, s{W}, 1")
    a(f"s_add_u32 s{d}, s{d}, s{t}")
    a(f"s_lshl_b32 s{d}, s{d}, 2")
    a(f"s_add_u32 s{d}, s{d}, {WS_OF}")
def cg_of(a, d):
    a(f"s_mul_i32 s{d}, s{sXC}, 28")
    a(f"s_add_u32 s{d}, s{d}, s{sLI}")
def hf_addr(a, d):
    cg_of(a, d)
    a(f"s_lshl_b32 s{d}, s{d}, 7")
    a(f"s_add_u32 s{d}, s{d}, {WS_HF}")
def yf_addr(a, d, t):
    a(f"s_and_b32 s{d}, s2, 15")
    a(f"s_lshl_b32 s{d}, s{d}, 4")
    a(f"s_lshr_b32 s{t}, s2, 4")
    a(f"s_add_u32 s{d}, s{d}, s{t}")
    a(f"s_lshl_b32 s{d}, s{d}, 7")
    a(f"s_add_u32 s{d}, s{d}, {WS_YF}")

def poll_check(a, name, vreg, vaddr, s_srd, want, mask, cold):
    lab = a.new_label(name)
    def cmp(o):
        o(f"v_cmp_gt_u32 vcc, {want}, v{vreg}" if want != 1 else f"v_cmp_ne_u32 vcc, 1, v{vreg}")
        if mask != -1:
            o(f"s_and_b32 vcc_lo, vcc_lo, {mask & 0xffffffff:#x}")
            o(f"s_and_b32 vcc_hi, vcc_hi, {(mask >> 32) & 0xffffffff:#x}")
        o("s_cmp_lg_u64 vcc, 0")
    cmp(a)
    a(f"s_cbranch_scc1 {lab}_spin")
    a.label(f"{lab}_ok")
    c = Asm()
    c.label(f"{lab}_spin")
    c(f"s_mov_b32 s{sT+11}, 0")
    c.label(f"{lab}_again")
    c(f"buffer_load_dword v{vreg}, v{vaddr}, {srd(s_srd)}, 0 offen sc1")
    c(f"s_add_u32 s{sT+11}, s{sT+11}, 1")
    c(f"s_cmp_gt_u32 s{sT+11}, {SPIN_LIMIT}")
    c(f"s_cbranch_scc1 {lab}_ok")
    c("s_waitcnt vmcnt(0)")
    cmp(c)
    c(f"s_cbranch_scc1 {lab}_again")
    c(f"s_branch {lab}_ok")
    cold.append(c)

def top8_round(a, keys, T, cand, st, rnd):
    n = len(keys)
    if rnd == 0: a(f"s_mov_b32 s{st}, -1")
    for e in range(n):
        a(f"v_sub_u32 v{T+e}, s{st}, v{keys[e]}")
    e = 1
    while e + 1 < n:
        a(f"v_min3_u32 v{T}, v{T}, v{T+e}, v{T+e+1}")
        e += 2
    if e < n: a(f"v_min_u32 v{T}, v{T}, v{T+e}")
    wsum(a, T, st+1, "min_u32")
    a(f"s_sub_u32 s{st}, s{st}, s{st+1}")
    a(f"v_writelane_b32 v{cand}, s{st}, {rnd}")
    a(f"s_sub_u32 s{st}, s{st}, 1")

def prologue(a, name, opt):
    a("s_cmp_ge_u32 s2, 256")
    a(f"s_cbranch_scc1 {name}_done")
    a.stamp_init(); a.stamp(0)
    if opt.get("dbgtime"): a("s_memrealtime s[96:97]")
    for r, off in ((sX, A_X), (sWQ, A_WQKV), (sWS, A_WS), (sWR, A_WR), (sDBG, A_DBG), (sWG, A_WG), (sWU, A_WU),
                   (sWD, A_WD), (sWO, A_WO), (sOUT, A_OUT)):
        a(f"s_load_dwordx2 s[{r}:{r+1}], s[0:1], {off}")
    a("v_lshrrev_b32 v1, 6, v0")
    a("v_and_b32 v0, 63, v0")
    a(f"v_readfirstlane_b32 s{W}, v1")
    a(f"s_and_b32 s{sXC}, s2, 7")
    a(f"s_lshr_b32 s{sLI}, s2, 3")
    a(f"s_and_b32 s{sMT}, s{sXC}, 1")
    a(f"s_lshl_b32 s{sMT}, s{sMT}, 3")
    a(f"s_and_b32 s{sT}, s{sLI}, 7")
    a(f"s_add_u32 s{sMT}, s{sMT}, s{sT}")
    a(f"s_lshr_b32 s{sJ}, s{sXC}, 1")
    a(f"s_lshl_b32 s{sJ}, s{sJ}, 2")
    a(f"s_lshr_b32 s{sT}, s{sLI}, 3")
    a(f"s_add_u32 s{sJ}, s{sJ}, s{sT}")
    a(f"s_lshl_b32 s{sT+3}, s{sMT}, 4")
    a(f"s_add_u32 s{sT+3}, s{sT+3}, s{sJ}")
    a(f"s_lshl_b32 s{sT+3}, s{sT+3}, 2")
    a(f"s_add_u32 s{sT+3}, s{sT+3}, s{W}")
    a(f"s_lshl_b32 s{sT}, s{sT+3}, 12")
    a("v_lshlrev_b32 v94, 4, v0")
    a(f"v_add_u32 v95, s{sT}, v94")
    for r, n in ((sX, S*D*2), (sWQ, D*3*D*2), (sWS, WS_USED), (sWR, D*2), (sDBG, 256), (sWG, D*F*2), (sWU, D*F*2),
                 (sWD, D*F*2), (sWO, D*D*2), (sOUT, S*D*2)):
        a(f"s_mov_b32 s{r+2}, {n:#x}")
        a(f"s_mov_b32 s{r+3}, 0x00020000")

def phaseA_loader(a, name, cold, opt):
    vm = VM(a)
    LW, XB_, WB_, SX, SW = 48, 49, 50, 51, 52
    a(f"s_sub_u32 s{LW}, s{W}, 4")
    a("v_lshrrev_b32 v16, 3, v0")
    a("v_and_b32 v17, 7, v0")
    a(f"s_lshl_b32 s{sT}, s{sMT}, 7")
    a(f"s_lshl_b32 s{sT+1}, s{LW}, 5")
    a(f"s_add_u32 s{sT}, s{sT}, s{sT+1}")
    a(f"v_add_u32 v18, s{sT}, v16")
    a("v_lshlrev_b32 v18, 11, v18")
    a("v_lshrrev_b32 v19, 1, v16")
    a("v_xor_b32 v20, v19, v17")
    a("v_lshl_add_u32 v1, v20, 4, v18")
    a("v_xor_b32 v20, 4, v20")
    a("v_lshl_add_u32 v2, v20, 4, v18")
    a(f"v_add_u32 v2, {8*2048}, v2")
    a(f"v_add_u32 v3, {16*2048}, v1")
    a(f"v_add_u32 v4, {16*2048}, v2")
    a(f"s_lshl_b32 s{sT}, s{LW}, 4")
    a(f"v_add_u32 v18, s{sT}, v16")
    a("v_mul_u32_u24 v18, 6144, v18")
    a(f"s_lshl_b32 s{sT}, s{sJ}, 7")
    a(f"v_add_u32 v18, s{sT}, v18")
    a("v_bfe_u32 v19, v0, 4, 1")
    a("v_lshlrev_b32 v19, 1, v19")
    a("v_xor_b32 v19, v19, v17")
    a("v_lshl_add_u32 v5, v19, 4, v18")
    a("v_xor_b32 v19, 4, v19")
    a("v_lshl_add_u32 v6, v19, 4, v18")
    a(f"v_add_u32 v6, {8*6144}, v6")
    a(f"s_lshl_b32 s{XB_}, s{LW}, 12")
    a(f"s_lshl_b32 s{WB_}, s{LW}, 11")
    KR = 56
    a(f"s_and_b32 s{KR}, s{sJ}, 3")
    a(f"s_lshl_b32 s{KR}, s{KR}, 2")
    a(f"s_add_u32 s{KR}, s{KR}, s{sMT}")
    def issue(kt, atoms=()):
        slot = (kt % 3) * SLOT
        atoms = list(atoms)
        a(f"s_and_b32 s{KR}, s{KR}, 15")
        a(f"s_lshl_b32 s{SX}, s{KR}, 7")
        a(f"s_mul_i32 s{SW}, s{KR}, {64*6144}")
        a(f"s_add_u32 s{SW+1}, s{SW}, 2048")
        a(f"s_add_u32 s{SW+2}, s{SW}, 4096")
        a(f"s_add_u32 s{KR}, s{KR}, 1")
        d = [(f"s_add_u32 m0, s{XB_}, {slot + i*1024}", f"buffer_load_dwordx4 v{1+i}, {srd(sX)}, s{SX} offen lds") for i in range(4)]
        d += [(f"s_add_u32 m0, s{WB_}, {slot + WOFF + seg*8192 + i*1024}", f"buffer_load_dwordx4 v{5+i}, {srd(sWQ)}, s{SW+seg} offen lds")
              for seg in range(3) for i in range(2)]
        k = 0
        for i, (m, ld) in enumerate(d):
            a(m); a("s_nop 0"); a(ld)
            vm.issue(f"T{kt}")
            k2 = (i + 1) * len(atoms) // len(d)
            for at in atoms[k:k2]: at()
            k = k2
    a("s_waitcnt lgkmcnt(0)")
    a.stamp(4)
    issue(0); issue(1); issue(2)
    a.stamp(5)
    a("v_lshrrev_b32 v16, 4, v0")
    a("v_bfe_u32 v17, v0, 2, 2")
    a("v_lshl_add_u32 v17, v16, 3, v17")
    a("v_lshlrev_b32 v17, 7, v17")
    a("v_and_b32 v18, 3, v0")
    a("v_lshl_add_u32 v17, v18, 3, v17")
    a("v_and_b32 v16, 1, v16")
    a("v_lshlrev_b32 v16, 1, v16")
    a("v_bfe_u32 v18, v0, 3, 1")
    a("v_or_b32 v16, v16, v18")
    a(f"s_and_b32 s{sT}, s{LW}, 1")
    a(f"s_lshl_b32 s{sT}, s{sT}, 1")
    a(f"v_xor_b32 v16, s{sT}, v16")
    a("v_lshl_add_u32 v17, v16, 5, v17")
    a(f"s_lshr_b32 s{sT}, s{LW}, 1")
    a(f"s_lshl_b32 s{sT}, s{sT}, 12")
    a(f"s_add_u32 s{sT}, s{sT}, {WOFF}")
    a(f"v_add_u32 v10, s{sT}, v17")
    a("v_xor_b32 v11, 32, v10")
    for c in range(6): a(f"v_mov_b32 v{60+c}, 0")
    a("v_mov_b32 v16, 0\nv_mov_b32 v17, 0\nv_mov_b32 v18, 0\nv_mov_b32 v19, 0")
    a(f"v_add_u32 v20, {L_CS}, v94")
    a("ds_write_b128 v20, v[16:19]")
    a("ds_write_b128 v20, v[16:19] offset:1024")
    ONES = 55
    a(f"s_mov_b32 s{ONES}, 0x3f803f80")
    if opt.get("lprio", 1): a(f"s_setprio {opt.get('lprio', 1)}")
    KEY, TT, CAND = 28, 36, 44
    ST = sT
    keys = list(range(KEY, KEY+8))
    XR, XST = XSEL_RAW, XSEL_ST
    a("s_waitcnt lgkmcnt(0)")
    vm.wait("T0")
    a("s_barrier")
    a.stamp(1)
    P0 = opt.get("p0", 7)
    def lines(fn):
        tmp = Asm(); tmp.uid = a.uid; fn(tmp); a.uid = tmp.uid
        out, grp = [], None
        for l in tmp.lines:
            s_ = l.strip()
            if grp is not None:
                grp.append(s_)
                if s_ == "s_mov_b64 exec, -1": out.append(grp); grp = None
            elif ("exec," in s_ and s_ != "s_mov_b64 exec, -1") or "saveexec" in s_: grp = [s_]
            else: out.append([s_])
        assert grp is None
        return [(lambda g=g: a(*g)) for g in out]
    def cs_load(i):
        def f():
            a(f"s_mul_i32 s{sT+2}, s{sJ}, {32*768}")
            a(f"s_mul_i32 s{sT+3}, s{LW}, 192")
            a(f"s_add_u32 s{sT+2}, s{sT+2}, s{sT+3}")
            a(f"s_add_u32 s{sT+2}, s{sT+2}, {WS_CSP + (i//4)*4*768}")
            a(f"buffer_load_dwordx4 {vr(60+4*i,4)}, v51, {srd(sWS)}, s{sT+2} offen offset:{(i%4)*768} sc1")
            vm.issue("csl")
        return f
    for kt in range(16):
        atoms = []
        if kt == 0:
            a(f"s_cmp_lg_u32 s{W}, 4")
            a(f"s_cbranch_scc1 {name}_nopub")
            publish_stats(a, vm, 96)
            a.label(f"{name}_nopub")
            for c in range(6):
                for t_ in range(2):
                    a(f"ds_read_b64_tr_b16 {vr(68+4*c+2*t_,2)}, v{10+(c&1)} offset:{(c>>1)*8192+t_*512}")
            for hf in range(2):
                a(f"s_waitcnt lgkmcnt({6-6*hf})")
                for q in range(4):
                    for c in range(3*hf, 3*hf+3):
                        a(f"v_dot2c_f32_bf16 v{60+c}, s{ONES}, v{68+4*c+q}")
            a("s_nop 2")
            a("v_permlane32_swap_b32 v60, v62")
            a("v_permlane32_swap_b32 v61, v63")
            a("v_permlane16_swap_b32 v64, v65")
            a("v_add_f32 v60, v60, v62")
            a("v_add_f32 v61, v61, v63")
            a("v_add_f32 v64, v64, v65")
            a("s_nop 0")
            a("v_mov_b32 v65, v64")
            a("v_permlane16_swap_b32 v60, v61")
            a("s_nop 0")
            a("v_permlane32_swap_b32 v64, v65")
            a("v_add_f32 v60, v60, v61")
            a("v_add_f32 v64, v64, v65")
            a(f"s_lshl_b32 s{sT}, s{sJ}, 4")
            a(f"s_add_u32 s{sT}, s{sT}, s{sMT}")
            a(f"s_lshl_b32 s{sT}, s{sT}, 2")
            a(f"s_add_u32 s{sT}, s{sT}, s{LW}")
            a(f"s_mul_i32 s{sT}, s{sT}, 384")
            a(f"s_add_u32 s{sT}, s{sT}, {WS_CSP}")
            a("v_lshlrev_b32 v47, 2, v0")
            a(f"buffer_store_dword v60, v47, {srd(sWS)}, s{sT} offen sc1")
            a("s_bfm_b64 exec, 32, 0")
            a(f"buffer_store_dword v64, v47, {srd(sWS)}, s{sT} offen offset:256 sc1")
            a("s_mov_b64 exec, -1")
            vm.issue("cs", 2)
        if kt == 2:
            a(f"s_cmp_lg_u32 s{W}, 4")
            a(f"s_cbranch_scc1 {name}_nosig")
            a(f"s_lshl_b32 s{sT}, s{sMT}, 4")
            a(f"v_mov_b32 v45, s{sT}")
            a("v_mov_b32 v46, 1")
            a("s_mov_b64 exec, 1")
            a(f"buffer_atomic_add v46, v45, {srd(sDBG)}, 0 offen sc1")
            a("s_mov_b64 exec, -1")
            a.label(f"{name}_nosig")
            vm.issue("sig", 1, cond=True)
        if kt == P0:
            a("v_and_b32 v45, 15, v0")
            a("v_lshlrev_b32 v45, 4, v45")
            a(f"buffer_load_dword v46, v45, {srd(sDBG)}, 0 offen sc1")
            vm.issue("poll")
        if kt == P0 + 1:
            poll_check(a, f"{name}_p1", 46, 45, sDBG, 16, -1, cold)
            a(f"s_lshl_b32 s{sT}, s{LW}, 11")
            a(f"s_add_u32 s{sT}, s{sT}, {WS_R}")
            a(f"buffer_load_dwordx4 {vr(KEY,4)}, v94, {srd(sWS)}, s{sT} offen sc1")
            a(f"buffer_load_dwordx4 {vr(KEY+4,4)}, v94, {srd(sWS)}, s{sT} offen offset:1024 sc1")
            a(f"s_lshl_b32 s{sT}, s{sMT}, 11")
            a(f"s_and_b32 s{sT+1}, s{LW}, 1")
            a(f"s_lshl_b32 s{sT+1}, s{sT+1}, 10")
            a(f"s_add_u32 s{sT}, s{sT}, s{sT+1}")
            a(f"s_add_u32 s{sT}, s{sT}, {WS_ST}")
            a("v_lshrrev_b32 v47, 3, v0")
            a("v_lshlrev_b32 v47, 7, v47")
            a("v_and_b32 v48, 7, v0")
            a("v_lshl_add_u32 v47, v48, 2, v47")
            a(f"buffer_load_dword v48, v47, {srd(sWS)}, s{sT} offen sc1")
            a(f"buffer_load_dword v49, v47, {srd(sWS)}, s{sT} offen offset:32 sc1")
            vm.issue("side", 4)
            def f(o):
                o("v_and_b32 v51, 15, v0")
                o("v_cmp_gt_u32 vcc, 12, v51")
                o("v_lshlrev_b32 v51, 4, v51")
                o("v_lshrrev_b32 v50, 4, v0")
                o("v_mul_u32_u24 v50, 8*768, v50")
                o("v_add_u32 v51, v51, v50")
                o("v_mov_b32 v50, 0x7fff0000")
                o("v_cndmask_b32 v51, v50, v51, vcc")
            atoms += lines(f)
        if P0 + 2 <= kt <= P0 + 5:
            i0 = 2*(kt - P0 - 2)
            atoms += [cs_load(i0), cs_load(i0+1)]
        if kt == P0 + 2:
            def f(o):
                o(f"s_and_b32 s{sT}, s{LW}, 1")
                o(f"s_lshl_b32 s{sT}, s{sT}, 8")
                o(f"s_add_u32 s{sT}, s{sT}, {L_M}")
                o("v_lshlrev_b32 v47, 2, v0")
                o(f"v_add_u32 v47, s{sT}, v47")
                o("ds_write_b32 v47, v48")
                o("ds_write_b32 v47, v49 offset:512")
                o(f"s_lshl_b32 s{sT}, s{LW}, 9")
                o("v_lshlrev_b32 v47, 2, v0")
                o(f"v_add_u32 v47, s{sT}, v47")
                make_keys(o, KEY, TT, 47, [0, 1, 2, 3, 256, 257, 258, 259])
                o(f"v_mov_b32 v{CAND}, 0")
                top8_round(o, keys, TT, CAND, ST, 0)
            atoms += lines(f)
        if kt == P0 + 3: atoms += lines(lambda o: [top8_round(o, keys, TT, CAND, ST, r) for r in (1, 2)])
        if kt == P0 + 4: atoms += lines(lambda o: [top8_round(o, keys, TT, CAND, ST, r) for r in (3, 4, 5)])
        if kt == P0 + 5:
            def f(o):
                for r in (6, 7): top8_round(o, keys, TT, CAND, ST, r)
                o(f"s_lshl_b32 s{sT}, s{LW}, 5")
                o(f"s_add_u32 s{sT}, s{sT}, {L_CAND}")
                o("v_lshlrev_b32 v47, 2, v0")
                o(f"v_add_u32 v47, s{sT}, v47")
                o("s_mov_b64 exec, 0xff")
                o(f"ds_write_b32 v47, v{CAND}")
                o("s_mov_b64 exec, -1")
            atoms += lines(f)
        if kt == P0 + 6:
            def f(o):
                o("v_and_b32 v47, 31, v0")
                o("v_lshlrev_b32 v47, 2, v47")
                o(f"v_add_u32 v47, {L_CAND}, v47")
                o(f"ds_read_b32 v{KEY}, v47")
                o("v_cmp_gt_u32 vcc, 32, v0")
                o("s_waitcnt lgkmcnt(0)")
                o(f"v_cndmask_b32 v{KEY}, 0, v{KEY}, vcc")
                for r in range(4): top8_round(o, [KEY], TT, CAND, ST, r)
            atoms += lines(f)
        if kt == P0 + 7:
            def f(o):
                for r in range(4, 8): top8_round(o, [KEY], TT, CAND, ST, r)
                decode_keys(o, CAND, 48, 49, TT)
                o("v_lshlrev_b32 v47, 2, v0")
                o(f"v_add_u32 v47, {L_IDX}, v47")
                o("s_mov_b64 exec, 0xff")
                o("ds_write_b32 v47, v48")
                o("ds_write_b32 v47, v49 offset:32")
                o("s_mov_b64 exec, -1")
            atoms += lines(f)
        if kt == 15:
            for i in range(2):
                a(f"s_lshl_b32 s{sT}, s{LW}, 1")
                a(f"s_add_u32 s{sT}, s{sT}, {i}")
                a(f"v_readlane_b32 s{sT}, v48, s{sT}")
                a("s_nop 3")
                a(f"s_lshl_b32 s{sT+1}, s{sT}, 11")
                a(f"buffer_load_dwordx4 {vr(XR+8*i,4)}, v94, {srd(sX)}, s{sT+1} offen")
                a(f"buffer_load_dwordx4 {vr(XR+8*i+4,4)}, v94, {srd(sX)}, s{sT+1} offen offset:1024")
                a(f"s_lshr_b32 s{sT+1}, s{sT}, 3")
                a(f"s_lshl_b32 s{sT+1}, s{sT+1}, 5")
                a(f"s_and_b32 s{sT}, s{sT}, 7")
                a(f"s_add_u32 s{sT}, s{sT}, s{sT+1}")
                a(f"s_lshl_b32 s{sT}, s{sT}, 2")
                a(f"s_add_u32 s{sT}, s{sT}, {WS_ST}")
                a(f"v_mov_b32 v50, s{sT}")
                a(f"buffer_load_dword v{XST+2*i}, v50, {srd(sWS)}, 0 offen sc1")
                a(f"buffer_load_dword v{XST+2*i+1}, v50, {srd(sWS)}, 0 offen offset:32 sc1")
            vm.issue("xsel", 8)
            vm.wait("csl")
            for i in range(1, 8):
                for r in range(4): a(f"v_add_f32 v{60+r}, v{60+r}, v{60+4*i+r}")
            a("s_nop 1")
            a("v_permlane32_swap_b32 v60, v62")
            a("v_permlane32_swap_b32 v61, v63")
            a("v_add_f32 v60, v60, v62")
            a("v_add_f32 v61, v61, v63")
            a("s_nop 1")
            a("v_permlane16_swap_b32 v60, v61")
            a("v_add_f32 v60, v60, v61")
            a("v_and_b32 v47, 15, v0")
            a("v_cmp_gt_u32 vcc, 12, v47")
            a("v_lshlrev_b32 v47, 4, v47")
            a("v_lshrrev_b32 v50, 4, v0")
            a("v_lshl_add_u32 v47, v50, 2, v47")
            a(f"s_mul_i32 s{sT}, s{LW}, 192")
            a(f"s_add_u32 s{sT}, s{sT}, {L_CS}")
            a(f"v_add_u32 v47, s{sT}, v47")
            a("s_and_saveexec_b64 s[66:67], vcc")
            a("ds_write_b32 v47, v60")
            a("s_mov_b64 exec, -1")
        if 1 <= kt <= 13: issue(kt+2, atoms)
        else:
            for at in atoms: at()
        a("s_waitcnt lgkmcnt(0)")
        a.trace(3*kt+1)
        if kt < 15: vm.wait(f"T{kt+1}", "poll", "side", *(["cs", "st"] if kt == 1 else []))
        a.trace(3*kt+2)
        a("s_barrier")
        a.trace(3*kt+3)
    return vm

ACC, B0 = 96, 8
def accreg(ct, tt): return ACC + 16*ct + 4*tt

def phaseA_consumer(a, name, cold, opt):
    vm = VM(a)
    XA, WA = 1, 3
    a("s_waitcnt lgkmcnt(0)")
    a.stamp(4)
    for q in range(4):
        a(f"buffer_load_dwordx4 {vr(96+4*q,4)}, v95, {srd(sX)}, 0 offen offset:{q*1024}")
    for q in range(2):
        a(f"buffer_load_dwordx4 {vr(112+4*q,4)}, v94, {srd(sWR)}, 0 offen offset:{q*1024}")
    vm.issue("lnld", 6)
    WM, WN = 52, 53
    a(f"s_lshr_b32 s{WM}, s{W}, 1")
    a(f"s_and_b32 s{WN}, s{W}, 1")
    a("v_and_b32 v8, 15, v0")
    a("v_lshrrev_b32 v9, 4, v0")
    a(f"s_lshl_b32 s{sT}, s{WM}, 6")
    a(f"v_add_u32 v10, s{sT}, v8")
    a("v_lshlrev_b32 v10, 7, v10")
    a("v_bfe_u32 v11, v0, 1, 3")
    a("v_xor_b32 v11, v11, v9")
    a(f"v_lshl_add_u32 v{XA}, v11, 4, v10")
    a(f"v_xor_b32 v{XA+1}, 64, v{XA}")
    a("v_bfe_u32 v10, v0, 2, 2")
    a("v_lshl_add_u32 v10, v9, 3, v10")
    a("v_lshlrev_b32 v10, 7, v10")
    a("v_and_b32 v11, 3, v0")
    a("v_lshl_add_u32 v10, v11, 3, v10")
    a("v_and_b32 v11, 1, v9")
    a("v_lshlrev_b32 v11, 1, v11")
    a("v_bfe_u32 v12, v0, 3, 1")
    a("v_or_b32 v11, v11, v12")
    a(f"s_lshl_b32 s{sT}, s{WN}, 1")
    a(f"v_xor_b32 v11, s{sT}, v11")
    a("v_lshl_add_u32 v10, v11, 5, v10")
    a(f"v_add_u32 v{WA}, {WOFF}, v10")
    a(f"v_xor_b32 v{WA+1}, 32, v{WA}")
    a.stamp(5)
    vm.wait("lnld")
    a.stamp(6)
    assert WS_XN == 0
    ln_rows2(a, vm, 96, 112, 120, 152, 95, opt.get("dbg"))
    for r in range(96): a(f"v_mov_b32 v{ACC+r}, 0")
    def reads(buf, ks):
        b = B0 + 40*buf
        xr = [f"ds_read_b128 {vr(b+4*tt,4)}, v{XA+ks} offset:{tt*2048}" for tt in range(4)]
        wr = [f"ds_read_b64_tr_b16 {vr(b+16+4*ct+2*t,2)}, v{WA+(ct&1)} offset:{(ct>>1)*8192+ks*4096+t*512}" for ct in range(6) for t in range(2)]
        return [xr[0]] + wr[0:2] + xr[1:4] + wr[2:]
    def mfmas(buf):
        b = B0 + 40*buf
        o = []
        for ct in range(6):
            for tt in range(4):
                x = vr(b+4*tt, 4); w = vr(b+16+4*ct, 4)
                A, B = (w, x) if ct < 4 else (x, w)
                o.append(f"v_mfma_f32_16x16x32_bf16 {vr(accreg(ct,tt),4)}, {A}, {B}, {vr(accreg(ct,tt),4)}")
        return o
    KT, SI, DL, NEG = 48, 49, 50, 51
    a(f"s_mov_b32 s{KT}, 0")
    a(f"s_mov_b32 s{SI}, 0")
    a(f"s_mov_b32 s{NEG}, {(-2*SLOT) & 0xffffffff:#x}")
    a("s_waitcnt lgkmcnt(0)")
    a("s_barrier")
    a.stamp(1); a.cstamp(7)
    a(*reads(0, 0))
    a(".p2align 6")
    a.label(f"{name}_cloop")
    per = opt.get("rpg", 1)
    def weave(m, r, extra):
        i = 0
        for k, x in enumerate(m):
            a(x)
            a(*r[i:i+per]); i += per
            if i - per >= len(r) and extra: a(extra.pop(0))
    m = mfmas(0); r = reads(1, 1)
    a(f"s_add_u32 s{SI}, s{SI}, 1")
    a(f"s_cmp_eq_u32 s{SI}, 3")
    a(f"s_cselect_b32 s{DL}, s{NEG}, {SLOT}")
    a(f"s_cselect_b32 s{SI}, 0, s{SI}")
    a("s_waitcnt lgkmcnt(0)")
    weave(m, r, [f"v_add_u32 v{q}, s{DL}, v{q}" for q in (1, 2, 3, 4)])
    m = mfmas(1); r = reads(0, 0)
    a("s_waitcnt lgkmcnt(0)")
    a(m[0])
    a("s_barrier")
    weave(m[1:], r, [f"s_add_u32 s{KT}, s{KT}, 1", f"s_cmp_lt_u32 s{KT}, 16"])
    a(f"s_cbranch_scc1 {name}_cloop")
    vm.q = []
    a.stamp(2); a.cstamp(8)
    MR, CSQ, MV, RV, CSV, QR, AD, PK = 8, 16, 32, 48, 64, 66, 74, 78
    a("s_waitcnt lgkmcnt(0)")
    a("v_and_b32 v1, 15, v0")
    a("v_lshrrev_b32 v2, 4, v0")
    a(f"s_lshl_b32 s{sT}, s{WM}, 8")
    a(f"s_add_u32 s{sT}, s{sT}, {L_M}")
    a(f"s_mul_i32 s{sT+1}, s{WN}, 384")
    a(f"s_add_u32 s{sT+1}, s{sT+1}, {L_CS}")
    a("v_lshlrev_b32 v3, 2, v1")
    a(f"v_add_u32 v4, s{sT}, v3")
    for tt in range(4):
        a(f"ds_read_b32 v{MR+2*tt}, v4 offset:{tt*64}")
        a(f"ds_read_b32 v{MR+2*tt+1}, v4 offset:{tt*64+512}")
    a("v_lshlrev_b32 v5, 4, v2")
    a(f"v_add_u32 v6, s{sT+1}, v5")
    for ct in range(4): a(f"ds_read_b128 {vr(CSQ+4*ct,4)}, v6 offset:{ct*64}")
    a(f"v_add_u32 v6, s{sT}, v5")
    a(f"v_add_u32 v3, s{sT+1}, v3")
    a(f"ds_read_b32 v{CSV}, v3 offset:256")
    a(f"ds_read_b32 v{CSV+1}, v3 offset:320")
    for tt in range(4):
        a(f"ds_read_b128 {vr(MV+4*tt,4)}, v6 offset:{tt*64}")
        a(f"ds_read_b128 {vr(RV+4*tt,4)}, v6 offset:{tt*64+512}")
    a("v_lshrrev_b32 v3, 1, v2")
    a("v_and_b32 v4, 1, v2")
    a("v_lshl_add_u32 v5, v3, 5, v1")
    a("v_lshlrev_b32 v5, 4, v5")
    a("v_lshl_add_u32 v5, v4, 3, v5")
    a("v_lshl_add_u32 v6, v4, 5, v1")
    a("v_lshlrev_b32 v6, 4, v6")
    a("v_lshl_add_u32 v6, v3, 3, v6")
    a(f"s_lshl_b32 s{sT}, s{WN}, 1")
    a(f"s_add_u32 s{sT}, s{sT}, s{WM}")
    a(f"s_lshl_b32 s{sT}, s{sT}, 13")
    a(f"v_add_u32 v{AD}, s{sT}, v5")
    a(f"v_add_u32 v{AD+1}, s{sT}, v6")
    a(f"s_lshr_b32 s{sT}, s{sT}, 1")
    a(f"s_add_u32 s{sT}, s{sT}, {L_Q}")
    a(f"v_add_u32 v{AD+2}, s{sT}, v5")
    a(f"s_mov_b32 s{sT+1}, {QSCALE:#x}")
    a("s_waitcnt lgkmcnt(10)")
    for tt in range(4):
        a(f"v_mul_f32 v{QR+2*tt+1}, s{sT+1}, v{MR+2*tt+1}")
    n = 0
    def fin(ct, tt):
        nonlocal n
        r = accreg(ct, tt)
        p = PK + 2*(n % 4); n += 1
        for hf in range(2):
            pr = vr(r+2*hf, 2)
            if ct < 4:
                a(f"v_pk_fma_f32 {pr}, {vr(CSQ+4*ct+2*hf,2)}, {vr(MR+2*tt,2)}, {pr} op_sel_hi:[1,0,1] neg_lo:[0,1,0] neg_hi:[0,1,0]")
                sc = QR if ct < 2 else MR
                a(f"v_pk_mul_f32 {pr}, {pr}, {vr(sc+2*tt,2)} op_sel:[0,1] op_sel_hi:[1,1]")
            else:
                sel = "op_sel_hi:[1,0,1]" if ct == 4 else "op_sel:[0,1,0] op_sel_hi:[1,1,1]"
                a(f"v_pk_fma_f32 {pr}, {vr(MV+4*tt+2*hf,2)}, {vr(CSV,2)}, {pr} {sel} neg_lo:[0,1,0] neg_hi:[0,1,0]")
                a(f"v_pk_mul_f32 {pr}, {pr}, {vr(RV+4*tt+2*hf,2)}")
            a(f"v_cvt_pk_bf16_f32 v{p+hf}, v{r+2*hf}, v{r+2*hf+1}")
        if ct < 2:   a(f"ds_write_b64 v{AD+2}, {vr(p,2)} offset:{(tt>>1)*2048 + ct*1024 + (tt&1)*256}")
        elif ct < 4: a(f"ds_write_b64 v{AD}, {vr(p,2)} offset:{(tt>>1)*4096 + (ct-2)*1024 + (tt&1)*256}")
        else:        a(f"ds_write_b64 v{AD+1}, {vr(p,2)} offset:{(tt>>1)*4096 + 2048 + (tt&1)*1024 + (ct-4)*256}")
    a("s_waitcnt lgkmcnt(0)")
    for ct in (2, 3, 4, 5, 0, 1):
        for tt in range(4): fin(ct, tt)
    a("s_waitcnt lgkmcnt(0)")
    return vm

def publish_kv(a, vm, R, opt):
    a(f"v_lshlrev_b32 v{R.VL}, 4, v0")
    a(f"s_lshl_b32 s{sT}, s{W}, 12")
    a(f"v_add_u32 v2, s{sT}, v{R.VL}")
    for q in range(4): a(f"ds_read_b128 {vr(R.S0+4*q,4)}, v2 offset:{q*1024}")
    a(f"s_and_b32 s{sT+1}, s{W}, 1")
    a(f"s_lshl_b32 s{sT+1}, s{sT+1}, 1")
    a(f"s_bfe_u32 s{sT+2}, s{W}, 0x10001")
    a(f"s_add_u32 s{sT+1}, s{sT+1}, s{sT+2}")
    a(f"s_lshl_b32 s{sT+1}, s{sT+1}, 12")
    a(f"s_add_u32 s{sT+1}, s{sT+1}, {L_Q}")
    a(f"v_add_u32 v3, s{sT+1}, v{R.VL}")
    for q in range(4): a(f"ds_read_b128 {vr(R.Q+4*q,4)}, v3 offset:{q*1024}")
    a(f"s_lshl_b32 s{sT+1}, s{sJ}, 1")
    a(f"s_lshr_b32 s{sT+2}, s{W}, 2")
    a(f"s_add_u32 s{sT+1}, s{sT+1}, s{sT+2}")
    a(f"s_lshl_b32 s{sT+1}, s{sT+1}, 6")
    a(f"s_lshl_b32 s{sT+2}, s{sMT}, 2")
    a(f"s_add_u32 s{sT+1}, s{sT+1}, s{sT+2}")
    a(f"s_and_b32 s{sT+2}, s{W}, 3")
    a(f"s_add_u32 s{sT+1}, s{sT+1}, s{sT+2}")
    a(f"s_lshl_b32 s{sT+1}, s{sT+1}, 12")
    a(f"s_add_u32 s{sT+1}, s{sT+1}, {WS_KV}")
    a("s_waitcnt lgkmcnt(4)")
    for q in range(4):
        a(f"buffer_store_dwordx4 {vr(R.S0+4*q,4)}, v{R.VL}, {srd(sWS)}, s{sT+1} offen offset:{q*1024} sc1")
    vm.issue("kvst", 4)
    if opt.get("dbg"):
        a("s_waitcnt lgkmcnt(0)")
        head_of(a, sT+1, sT+2)
        a(f"s_lshl_b32 s{sT+1}, s{sT+1}, 6")
        a(f"s_lshl_b32 s{sT+2}, s{sMT}, 2")
        a(f"s_add_u32 s{sT+1}, s{sT+1}, s{sT+2}")
        a(f"s_and_b32 s{sT+2}, s{W}, 2")
        a(f"s_add_u32 s{sT+1}, s{sT+1}, s{sT+2}")
        a(f"s_lshl_b32 s{sT+1}, s{sT+1}, 11")
        a(f"s_add_u32 s{sT+1}, s{sT+1}, {WS_Q}")
        for q in range(4):
            a(f"buffer_store_dwordx4 {vr(R.Q+4*q,4)}, v{R.VL}, {srd(sWS)}, s{sT+1} offen offset:{q*1024}")
        a(f"v_lshlrev_b32 v2, 2, v0")
        a(f"v_add_u32 v3, {L_IDX}, v2")
        a("s_mov_b64 exec, 0xffff")
        a("ds_read_b32 v131, v3")
        a("s_waitcnt lgkmcnt(0)")
        a(f"s_mov_b32 s{sT+1}, {WS_IDX}")
        a(f"buffer_store_dword v131, v2, {srd(sWS)}, s{sT+1} offen")
        a("s_mov_b64 exec, -1")
        vm.drain()

def gen_fused(name, **opt):
    a = Asm(); cold = []
    R = AT.AttnRegs
    prologue(a, name, opt)
    a(f"s_cmp_ge_u32 s{W}, 4")
    a(f"s_cbranch_scc1 {name}_loader")
    phaseA_consumer(a, name, cold, opt)
    a(f"s_branch {name}_joinA")
    a.label(f"{name}_loader")
    phaseA_loader(a, name, cold, opt)
    a.stamp(2)
    a("s_setprio 0")
    a.label(f"{name}_joinA")
    a("s_barrier")
    a.stamp(3)
    if opt.get("dbgtime"): a("s_memrealtime s[94:95]")
    vm = VM(a)
    publish_kv(a, vm, R, opt)
    if opt.get("stop") != "A":
        import fused_bc
        fused_bc.phaseB(a, name, cold, opt, vm)
        if opt.get("stop") != "B":
            fused_bc.phaseC(a, name, cold, opt, vm)
    a.stamp_dump(0, W)
    if opt.get("dbgtime"):
        a("s_waitcnt vmcnt(0)")
        a("s_memrealtime s[98:99]")
        a("s_waitcnt lgkmcnt(0)")
        a("s_not_b32 s96, s96")
        a("v_mov_b32 v1, 4")
        a("v_mov_b32 v2, s96")
        a("v_mov_b32 v3, s98")
        a("v_mov_b32 v4, s94")
        a(f"s_cmp_lg_u32 s{W}, 0")
        a(f"s_cbranch_scc1 {name}_done")
        a("s_mov_b64 exec, 1")
        a(f"buffer_atomic_umax v2, v1, {srd(sDBG)}, 0 offen sc1")
        a(f"buffer_atomic_umax v3, v1, {srd(sDBG)}, 0 offen offset:4 sc1")
        a(f"buffer_atomic_umax v4, v1, {srd(sDBG)}, 0 offen offset:8 sc1")
        a("s_mov_b64 exec, -1")
    a.label(f"{name}_done")
    a("s_endpgm")
    for c in cold: a.lines += c.lines
    return kernel_header(name) + a.text() + kernel_desc(name, 256, 102)

def xsel_normalise(a, T):
    XR, XST, XF = XSEL_RAW, XSEL_ST, T + 2
    a(f"v_lshrrev_b32 v{T}, 2, v0")
    a(f"v_lshlrev_b32 v{T}, 9, v{T}")
    a(f"v_and_b32 v{T+1}, 3, v0")
    a(f"v_lshl_add_u32 v{T}, v{T+1}, 7, v{T}")
    a(f"s_lshl_b32 s{sT}, s{W}, 5")
    a(f"s_add_u32 s{sT}, s{sT}, {L_XS - 128}")
    a(f"v_add_u32 v{T}, s{sT}, v{T}")
    for i in range(2):
        for p in range(8):
            x = XR + 8*i + p
            f0, f1 = XF + 2*(p & 1), XF + 2*(p & 1) + 1
            a(f"v_lshlrev_b32 v{f0}, 16, v{x}")
            a(f"v_and_b32 v{f1}, 0xffff0000, v{x}")
            a(f"v_sub_f32 v{f0}, v{f0}, v{XST+2*i}")
            a(f"v_sub_f32 v{f1}, v{f1}, v{XST+2*i}")
            a(f"v_cvt_pk_bf16_f32 v{x}, v{f0}, v{f1}")
            a(f"v_lshlrev_b32 v{f0}, 16, v{x}")
            a(f"v_and_b32 v{f1}, 0xffff0000, v{x}")
            a(f"v_mul_f32 v{f0}, v{f0}, v{XST+2*i+1}")
            a(f"v_mul_f32 v{f1}, v{f1}, v{XST+2*i+1}")
            a(f"v_cvt_pk_bf16_f32 v{x}, v{f0}, v{f1}")
        a(f"ds_write_b128 v{T}, {vr(XR+8*i,4)} offset:{16*i}")
        a(f"ds_write_b128 v{T}, {vr(XR+8*i+4,4)} offset:{16*i+8192}")
```

```python
import os
from asmlib import *
from layout import *
from k_top8 import DPPS, make_keys, decode_keys
from k_attn import M32, M16
import k_attn2 as AT
from k_moe import pi_row, silu_bf16, round_bf16

QSCALE = 0x3e8293ee
sX, sWQ, sWS, sWR, sDBG, sWG, sWU, sWD, sWO, sOUT = 4, 8, 12, 16, 20, 24, 28, 32, 36, 40
sJ, sMT, sLI, sXC = 44, 45, 46, 47
sIDX, sWT = 48, 56
sT = 64
W = 3
SLOT, WOFF = 40960, 16384
L_Q, L_XS, L_MISC = 122880, 139264, 159744
L_M, L_RS, L_CS, L_CAND, L_IDX, L_H = L_MISC, L_MISC+512, L_MISC+1024, L_MISC+1792, L_MISC+1920, L_MISC+2048
L_ST, L_CNT = L_MISC+3072, L_MISC+3200
LDS_BYTES = 163840
SPIN_LIMIT = 400000
RKEY = 208

def srd(r): return f"s[{r}:{r+3}]"

def wsum(a, r, sdst, op="add_f32"):
    for ctl in DPPS:
        bc = " bound_ctrl:0" if ctl.startswith("row_shr") and op == "add_f32" else ""
        a("s_nop 1")
        a(f"v_{op}_dpp v{r}, v{r}, v{r} {ctl}{bc}")
    a("s_nop 0")
    a(f"v_readlane_b32 s{sdst}, v{r}, 63")
    a("s_nop 1")

def ln_rows2(a, vm, X, WR, XB, T, voff, dbg):
    R2 = range(2)
    F_ = lambda i, e: XB + 16*i + e
    T_ = lambda i, k: T + 6*i + k
    def wsum2(k, sd):
        for ctl in DPPS:
            bc = " bound_ctrl:0" if ctl.startswith("row_shr") else ""
            a("s_nop 0")
            for i in R2: a(f"v_add_f32_dpp v{T_(i,k)}, v{T_(i,k)}, v{T_(i,k)} {ctl}{bc}")
        a("s_nop 0")
        for i in R2: a(f"v_readlane_b32 s{sT+3*i+sd}, v{T_(i,k)}, 63")
        a("s_nop 0")
    for i in R2:
        for p in range(8):
            a(f"v_lshlrev_b32 v{F_(i,2*p)}, 16, v{X+8*i+p}")
            a(f"v_and_b32 v{F_(i,2*p+1)}, 0xffff0000, v{X+8*i+p}")
    for i in R2:
        a(f"v_add_f32 v{T_(i,0)}, v{F_(i,0)}, v{F_(i,1)}")
    for e in range(2, 16):
        for i in R2: a(f"v_add_f32 v{T_(i,0)}, v{T_(i,0)}, v{F_(i,e)}")
    a("s_nop 0")
    wsum2(0, 0)
    for i in R2:
        a(f"v_mov_b32 v{T_(i,0)}, s{sT+3*i}")
    for i in R2:
        a(f"v_mul_f32 v{T_(i,0)}, 0x3a800000, v{T_(i,0)}")
    for i in R2:
        a(f"v_sub_f32 v{T_(i,2)}, v{F_(i,0)}, v{T_(i,0)}")
        a(f"v_mul_f32 v{T_(i,1)}, v{T_(i,2)}, v{T_(i,2)}")
    for e in range(1, 16):
        for i in R2:
            a(f"v_sub_f32 v{T_(i,2)}, v{F_(i,e)}, v{T_(i,0)}")
            a(f"v_fmac_f32 v{T_(i,1)}, v{T_(i,2)}, v{T_(i,2)}")
    wsum2(1, 0)
    seq = lambda i: [
        f"v_mov_b32 v{T_(i,1)}, s{sT+3*i}",
        f"v_mul_f32 v{T_(i,1)}, 0x3a800000, v{T_(i,1)}",
        f"v_cvt_pk_bf16_f32 v{T_(i,2)}, v{T_(i,0)}, v{T_(i,1)}",
        f"v_lshlrev_b32 v{T_(i,0)}, 16, v{T_(i,2)}",
        f"v_and_b32 v{T_(i,1)}, 0xffff0000, v{T_(i,2)}",
        f"v_add_f32 v{T_(i,1)}, 0x3727c5ac, v{T_(i,1)}",
        f"v_cvt_pk_bf16_f32 v{T_(i,1)}, v{T_(i,1)}, v{T_(i,1)}",
        f"v_and_b32 v{T_(i,1)}, 0xffff0000, v{T_(i,1)}",
        f"v_sqrt_f32 v{T_(i,1)}, v{T_(i,1)}",
        f"v_readfirstlane_b32 s{sT+3*i}, v{T_(i,0)}",
        f"v_cvt_pk_bf16_f32 v{T_(i,1)}, v{T_(i,1)}, v{T_(i,1)}",
        f"v_and_b32 v{T_(i,1)}, 0xffff0000, v{T_(i,1)}",
        f"v_rcp_f32 v{T_(i,1)}, v{T_(i,1)}",
        f"v_mov_b32 v{T_(i,3)}, 0"]
    for x, y in zip(seq(0), seq(1)): a(x, y)
    for p in range(8):
        st = lambda i: [
            f"v_sub_f32 v{F_(i,2*p)}, v{F_(i,2*p)}, v{T_(i,0)}",
            f"v_sub_f32 v{F_(i,2*p+1)}, v{F_(i,2*p+1)}, v{T_(i,0)}",
            f"v_cvt_pk_bf16_f32 v{T_(i,2)}, v{F_(i,2*p)}, v{F_(i,2*p+1)}",
            f"v_lshlrev_b32 v{F_(i,2*p)}, 16, v{T_(i,2)}",
            f"v_and_b32 v{F_(i,2*p+1)}, 0xffff0000, v{T_(i,2)}",
            f"v_mul_f32 v{F_(i,2*p)}, v{F_(i,2*p)}, v{T_(i,1)}",
            f"v_mul_f32 v{F_(i,2*p+1)}, v{F_(i,2*p+1)}, v{T_(i,1)}",
            f"v_cvt_pk_bf16_f32 v{X+8*i+p}, v{F_(i,2*p)}, v{F_(i,2*p+1)}"]
        for x, y in zip(st(0), st(1)): a(x, y)
    for i in R2: a(f"v_readfirstlane_b32 s{sT+3*i+1}, v{T_(i,1)}")
    if dbg:
        for i in R2:
            a(f"buffer_store_dwordx4 {vr(X+8*i,4)}, v{voff}, {srd(sWS)}, 0 offen offset:{2048*i}")
            a(f"buffer_store_dwordx4 {vr(X+8*i+4,4)}, v{voff}, {srd(sWS)}, 0 offen offset:{2048*i+1024}")
    for p in range(8):
        for i in R2: a(f"v_dot2c_f32_bf16 v{T_(i,3)}, v{X+8*i+p}, v{WR+p}")
    a("s_nop 1")
    wsum2(3, 2)
    for i in R2: a(f"v_mov_b32 v{T_(i,0)}, s{sT+3*i+2}")
    for i in R2: a(f"v_cvt_pk_bf16_f32 v{T_(i,0)}, v{T_(i,0)}, v{T_(i,0)}")
    for i in R2: a(f"v_and_b32 v{T_(i,0)}, 0xffff0000, v{T_(i,0)}")
    a(f"v_mov_b32 v{T+1}, s{sT}")
    a(f"v_readfirstlane_b32 s{sT+2}, v{T_(0,0)}")
    a(f"v_readfirstlane_b32 s{sT+5}, v{T_(1,0)}")
    a(f"v_lshlrev_b32 v{T+2}, 5, v0")
    a(f"s_lshl_b32 s{sT+6}, s{W}, 3")
    a(f"s_add_u32 s{sT+6}, s{sT+6}, {L_ST}")
    a(f"v_add_u32 v{T+2}, s{sT+6}, v{T+2}")
    for l in range(1, 6): a(f"v_writelane_b32 v{T+1}, s{sT+l}, {l}")
    for l in range(3):
        a(f"s_add_u32 s{sT+7}, s{sT+6}, {l*32+4}")
        a(f"v_writelane_b32 v{T+2}, s{sT+7}, {3+l}")
    a("s_mov_b64 exec, 63")
    a(f"ds_write_b32 v{T+2}, v{T+1}")
    a("s_mov_b64 exec, -1")

def rec_of(a, d):
    a(f"s_lshl_b32 s{d}, s{sMT}, 4")
    a(f"s_add_u32 s{d}, s{d}, s{sJ}")

def publish_stats(a, vm, T):
    A_, D_, U_ = T, T+1, T+2
    t = sT
    a(f"v_lshlrev_b32 v{U_}, 2, v0")
    a(f"v_add_u32 v{A_}, {L_ST}, v{U_}")
    a(f"ds_read_b32 v{D_}, v{A_}")
    rec_of(a, t)
    a(f"s_lshl_b32 s{t}, s{t}, 7")
    a(f"s_add_u32 s{t}, s{t}, {WS_ST}")
    a(f"v_add_u32 v{A_}, s{t}, v{U_}")
    rec_of(a, t)
    a(f"s_lshl_b32 s{t}, s{t}, 5")
    a(f"s_add_u32 s{t}, s{t}, {WS_R - 64}")
    a(f"v_cmp_le_u32 vcc, 16, v0")
    a(f"v_add_u32 v{U_}, s{t}, v{U_}")
    a("s_nop 0")
    a(f"v_cndmask_b32 v{A_}, v{A_}, v{U_}, vcc")
    a(f"s_lshl_b32 s{t}, s{sJ}, 5")
    a(f"s_add_u32 s{t}, s{t}, s{sMT}")
    a(f"s_lshl_b32 s{t}, s{t}, 7")
    a(f"s_add_u32 s{t}, s{t}, {WS_KVF}")
    a(f"v_bfe_u32 v{U_}, v0, 2, 1")
    a(f"v_lshlrev_b32 v{U_}, 11, v{U_}")
    a(f"v_and_b32 v{U_+1}, 3, v0")
    a(f"v_lshl_add_u32 v{U_}, v{U_+1}, 2, v{U_}")
    a(f"v_add_u32 v{U_}, s{t}, v{U_}")
    a(f"v_cmp_le_u32 vcc, 24, v0")
    a(f"s_lshl_b32 s{t}, s{sMT}, 3")
    a(f"s_lshr_b32 s{t+1}, s{sJ}, 3")
    a(f"v_cndmask_b32 v{A_}, v{A_}, v{U_}, vcc")
    a(f"s_add_u32 s{t}, s{t}, s{t+1}")
    a(f"s_lshl_b32 s{t}, s{t}, 7")
    a(f"s_and_b32 s{t+1}, s{sJ}, 7")
    a(f"s_lshl_b32 s{t+1}, s{t+1}, 3")
    a(f"s_add_u32 s{t}, s{t}, s{t+1}")
    a(f"s_add_u32 s{t}, s{t}, {WS_OF}")
    a(f"v_bfe_u32 v{U_}, v0, 1, 2")
    a(f"v_lshlrev_b32 v{U_}, 8, v{U_}")
    a(f"v_and_b32 v{U_+1}, 1, v0")
    a(f"v_lshl_add_u32 v{U_}, v{U_+1}, 2, v{U_}")
    a(f"v_add_u32 v{U_}, s{t}, v{U_}")
    a(f"v_cmp_le_u32 vcc, 32, v0")
    yf_addr(a, t, t+1)
    a(f"v_cndmask_b32 v{A_}, v{A_}, v{U_}, vcc")
    hf_addr(a, t+1)
    a(f"s_cmp_lt_u32 s{sLI}, 28")
    a(f"s_cselect_b32 s{t+1}, s{t+1}, s{t}")
    a(f"v_writelane_b32 v{A_}, s{t}, 40")
    a(f"v_writelane_b32 v{A_}, s{t+1}, 41")
    csf_addr(a, t, t+1)
    a(f"v_writelane_b32 v{A_}, s{t}, 42")
    a(f"v_cmp_gt_u32 vcc, 24, v0")
    a("s_waitcnt lgkmcnt(0)")
    a(f"s_lshl_b32 s{t}, s2, 7")
    a(f"v_cndmask_b32 v{D_}, 0, v{D_}, vcc")
    a("s_bfm_b64 exec, 43, 0")
    a(f"buffer_store_dword v{D_}, v{A_}, {srd(sWS)}, 0 offen sc1")
    a("s_mov_b64 exec, -1")
    a(f"s_add_u32 s{t}, s{t}, {WS_Y}")
    for r in range(4): a(f"v_mov_b32 v{T+4+r}, 0")
    a("s_mov_b64 exec, 0xff")
    a(f"buffer_store_dwordx4 {vr(T+4,4)}, v94, {srd(sWS)}, s{t} offen sc1")
    a(f"s_mul_i32 s{t}, s2, 896")
    a(f"s_add_u32 s{t}, s{t}, {WS_GU}")
    a("s_bfm_b64 exec, 56, 0")
    a(f"buffer_store_dwordx4 {vr(T+4,4)}, v94, {srd(sWS)}, s{t} offen sc1")
    a("s_mov_b64 exec, -1")
    vm.issue("st", 3, cond=True)

def csf_addr(a, d, t):
    a(f"s_lshl_b32 s{d}, s{sJ}, 5")
    a(f"s_add_u32 s{d}, s{d}, s{sMT}")
    a(f"s_lshl_b32 s{d}, s{d}, 2")
    a(f"s_add_u32 s{d}, s{d}, {WS_CSF}")
def kvf_addr(a, d, t):
    a(f"s_bfe_u32 s{t}, s{W}, 0x10001")
    a(f"s_lshl_b32 s{d}, s{sJ}, 1")
    a(f"s_add_u32 s{d}, s{d}, s{t}")
    a(f"s_lshl_b32 s{d}, s{d}, 4")
    a(f"s_add_u32 s{d}, s{d}, s{sMT}")
    a(f"s_lshl_b32 s{d}, s{d}, 5")
    a(f"s_and_b32 s{t}, s{W}, 1")
    a(f"s_add_u32 s{d}, s{d}, s{t}")
    a(f"s_lshl_b32 s{d}, s{d}, 2")
    a(f"s_add_u32 s{d}, s{d}, {WS_KVF}")
def otile(a, d, t):
    a(f"s_lshl_b32 s{d}, s{sMT}, 2")
    a(f"s_and_b32 s{t}, s{W}, 2")
    a(f"s_add_u32 s{d}, s{d}, s{t}")
    a(f"s_lshr_b32 s{t}, s{W}, 2")
    a(f"s_add_u32 s{d}, s{d}, s{t}")
def head_of(a, d, t):
    a(f"s_lshl_b32 s{d}, s{sJ}, 1")
    a(f"s_and_b32 s{t}, s{W}, 1")
    a(f"s_add_u32 s{d}, s{d}, s{t}")
def of_addr(a, d, t):
    otile(a, d, t)
    a(f"s_lshl_b32 s{d}, s{d}, 1")
    a(f"s_lshr_b32 s{t}, s{sJ}, 3")
    a(f"s_add_u32 s{d}, s{d}, s{t}")
    a(f"s_lshl_b32 s{d}, s{d}, 5")
    a(f"s_and_b32 s{t}, s{sJ}, 7")
    a(f"s_lshl_b32 s{t}, s{t}, 1")
    a(f"s_add_u32 s{d}, s{d}, s{t}")
    a(f"s_and_b32 s{t}, s{W}, 1")
    a(f"s_add_u32 s{d}, s{d}, s{t}")
    a(f"s_lshl_b32 s{d}, s{d}, 2")
    a(f"s_add_u32 s{d}, s{d}, {WS_OF}")
def cg_of(a, d):
    a(f"s_mul_i32 s{d}, s{sXC}, 28")
    a(f"s_add_u32 s{d}, s{d}, s{sLI}")
def hf_addr(a, d):
    cg_of(a, d)
    a(f"s_lshl_b32 s{d}, s{d}, 7")
    a(f"s_add_u32 s{d}, s{d}, {WS_HF}")
def yf_addr(a, d, t):
    a(f"s_and_b32 s{d}, s2, 15")
    a(f"s_lshl_b32 s{d}, s{d}, 4")
    a(f"s_lshr_b32 s{t}, s2, 4")
    a(f"s_add_u32 s{d}, s{d}, s{t}")
    a(f"s_lshl_b32 s{d}, s{d}, 7")
    a(f"s_add_u32 s{d}, s{d}, {WS_YF}")

def poll_check(a, name, vreg, vaddr, s_srd, want, mask, cold):
    lab = a.new_label(name)
    def cmp(o):
        o(f"v_cmp_gt_u32 vcc, {want}, v{vreg}" if want != 1 else f"v_cmp_ne_u32 vcc, 1, v{vreg}")
        if mask != -1:
            o(f"s_and_b32 vcc_lo, vcc_lo, {mask & 0xffffffff:#x}")
            o(f"s_and_b32 vcc_hi, vcc_hi, {(mask >> 32) & 0xffffffff:#x}")
        o("s_cmp_lg_u64 vcc, 0")
    cmp(a)
    a(f"s_cbranch_scc1 {lab}_spin")
    a.label(f"{lab}_ok")
    c = Asm()
    c.label(f"{lab}_spin")
    c(f"s_mov_b32 s{sT+11}, 0")
    c.label(f"{lab}_again")
    c(f"buffer_load_dword v{vreg}, v{vaddr}, {srd(s_srd)}, 0 offen sc1")
    c(f"s_add_u32 s{sT+11}, s{sT+11}, 1")
    c(f"s_cmp_gt_u32 s{sT+11}, {SPIN_LIMIT}")
    c(f"s_cbranch_scc1 {lab}_ok")
    c("s_waitcnt vmcnt(0)")
    cmp(c)
    c(f"s_cbranch_scc1 {lab}_again")
    c(f"s_branch {lab}_ok")
    cold.append(c)

def top8_round(a, keys, T, cand, st, rnd):
    n = len(keys)
    if rnd == 0: a(f"s_mov_b32 s{st}, -1")
    for e in range(n):
        a(f"v_sub_u32 v{T+e}, s{st}, v{keys[e]}")
    e = 1
    while e + 1 < n:
        a(f"v_min3_u32 v{T}, v{T}, v{T+e}, v{T+e+1}")
        e += 2
    if e < n: a(f"v_min_u32 v{T}, v{T}, v{T+e}")
    wsum(a, T, st+1, "min_u32")
    a(f"s_sub_u32 s{st}, s{st}, s{st+1}")
    a(f"v_writelane_b32 v{cand}, s{st}, {rnd}")
    a(f"s_sub_u32 s{st}, s{st}, 1")

def prologue(a, name, opt):
    a("s_cmp_ge_u32 s2, 256")
    a(f"s_cbranch_scc1 {name}_done")
    a.stamp_init(); a.stamp(0)
    if opt.get("dbgtime"): a("s_memrealtime s[96:97]")
    for r, off in ((sX, A_X), (sWQ, A_WQKV), (sWS, A_WS), (sWR, A_WR), (sDBG, A_DBG), (sWG, A_WG), (sWU, A_WU),
                   (sWD, A_WD), (sWO, A_WO), (sOUT, A_OUT)):
        a(f"s_load_dwordx2 s[{r}:{r+1}], s[0:1], {off}")
    a("v_lshrrev_b32 v1, 6, v0")
    a("v_and_b32 v0, 63, v0")
    a(f"v_readfirstlane_b32 s{W}, v1")
    a(f"s_and_b32 s{sXC}, s2, 7")
    a(f"s_lshr_b32 s{sLI}, s2, 3")
    a(f"s_and_b32 s{sMT}, s{sXC}, 1")
    a(f"s_lshl_b32 s{sMT}, s{sMT}, 3")
    a(f"s_and_b32 s{sT}, s{sLI}, 7")
    a(f"s_add_u32 s{sMT}, s{sMT}, s{sT}")
    a(f"s_lshr_b32 s{sJ}, s{sXC}, 1")
    a(f"s_lshl_b32 s{sJ}, s{sJ}, 2")
    a(f"s_lshr_b32 s{sT}, s{sLI}, 3")
    a(f"s_add_u32 s{sJ}, s{sJ}, s{sT}")
    a(f"s_lshl_b32 s{sT+3}, s{sMT}, 4")
    a(f"s_add_u32 s{sT+3}, s{sT+3}, s{sJ}")
    a(f"s_lshl_b32 s{sT+3}, s{sT+3}, 2")
    a(f"s_add_u32 s{sT+3}, s{sT+3}, s{W}")
    a(f"s_lshl_b32 s{sT}, s{sT+3}, 12")
    a("v_lshlrev_b32 v94, 4, v0")
    a(f"v_add_u32 v95, s{sT}, v94")
    for r, n in ((sX, S*D*2), (sWQ, D*3*D*2), (sWS, WS_USED), (sWR, D*2), (sDBG, 256), (sWG, D*F*2), (sWU, D*F*2),
                 (sWD, D*F*2), (sWO, D*D*2), (sOUT, S*D*2)):
        a(f"s_mov_b32 s{r+2}, {n:#x}")
        a(f"s_mov_b32 s{r+3}, 0x00020000")

def phaseA_loader(a, name, cold, opt):
    vm = VM(a)
    LW, XB_, WB_, SX, SW = 48, 49, 50, 51, 52
    a(f"s_sub_u32 s{LW}, s{W}, 4")
    a("v_lshrrev_b32 v16, 3, v0")
    a("v_and_b32 v17, 7, v0")
    a(f"s_lshl_b32 s{sT}, s{sMT}, 7")
    a(f"s_lshl_b32 s{sT+1}, s{LW}, 5")
    a(f"s_add_u32 s{sT}, s{sT}, s{sT+1}")
    a(f"v_add_u32 v18, s{sT}, v16")
    a("v_lshlrev_b32 v18, 11, v18")
    a("v_lshrrev_b32 v19, 1, v16")
    a("v_xor_b32 v20, v19, v17")
    a("v_lshl_add_u32 v1, v20, 4, v18")
    a("v_xor_b32 v20, 4, v20")
    a("v_lshl_add_u32 v2, v20, 4, v18")
    a(f"v_add_u32 v2, {8*2048}, v2")
    a(f"v_add_u32 v3, {16*2048}, v1")
    a(f"v_add_u32 v4, {16*2048}, v2")
    a(f"s_lshl_b32 s{sT}, s{LW}, 4")
    a(f"v_add_u32 v18, s{sT}, v16")
    a("v_mul_u32_u24 v18, 6144, v18")
    a(f"s_lshl_b32 s{sT}, s{sJ}, 7")
    a(f"v_add_u32 v18, s{sT}, v18")
    a("v_bfe_u32 v19, v0, 4, 1")
    a("v_lshlrev_b32 v19, 1, v19")
    a("v_xor_b32 v19, v19, v17")
    a("v_lshl_add_u32 v5, v19, 4, v18")
    a("v_xor_b32 v19, 4, v19")
    a("v_lshl_add_u32 v6, v19, 4, v18")
    a(f"v_add_u32 v6, {8*6144}, v6")
    a(f"s_lshl_b32 s{XB_}, s{LW}, 12")
    a(f"s_lshl_b32 s{WB_}, s{LW}, 11")
    KR = 56
    SH = 57
    a(f"s_and_b32 s{KR}, s{sMT}, 3")
    a(f"s_lshl_b32 s{KR}, s{KR}, 2")
    a(f"s_lshr_b32 s{SH}, s{sMT}, 2")
    nt = lambda k: "nt" if k in opt.get("nt", "m") else ""
    def issue(kt, atoms=()):
        slot = (kt % 3) * SLOT
        atoms = list(atoms)
        a(f"s_and_b32 s{KR}, s{KR}, 15")
        a(f"s_lshl_b32 s{SX}, s{KR}, 7")
        a(f"s_mul_i32 s{SW}, s{KR}, {64*6144}")
        a(f"s_add_u32 s{SW+1}, s{SW}, 2048")
        a(f"s_add_u32 s{SW+2}, s{SW}, 4096")
        a(f"s_add_u32 s{KR}, s{KR}, 1")
        d = [(f"s_add_u32 m0, s{XB_}, {slot + i*1024}", f"buffer_load_dwordx4 v{1+i}, {srd(sX)}, s{SX} offen {nt('x')} lds") for i in range(4)]
        d += [(f"s_add_u32 m0, s{WB_}, {slot + WOFF + seg*8192 + i*1024}", f"buffer_load_dwordx4 v{5+i}, {srd(sWQ)}, s{SW+seg} offen {nt('w')} lds")
              for seg in range(3) for i in range(2)]
        k = 0
        for i, (m, ld) in enumerate(d):
            if not (opt.get("noload") and kt > 2):
                a(m); a("s_nop 0"); a(ld)
                vm.issue(f"T{kt}")
            k2 = (i + 1) * len(atoms) // len(d)
            for at in atoms[k:k2]: at()
            k = k2
    a("s_waitcnt lgkmcnt(0)")
    a.stamp(4)
    issue(0); issue(1)
    a.stamp(5)
    a("v_lshrrev_b32 v16, 4, v0")
    a("v_bfe_u32 v17, v0, 2, 2")
    a("v_lshl_add_u32 v17, v16, 3, v17")
    a("v_lshlrev_b32 v17, 7, v17")
    a("v_and_b32 v18, 3, v0")
    a("v_lshl_add_u32 v17, v18, 3, v17")
    a("v_and_b32 v16, 1, v16")
    a("v_lshlrev_b32 v16, 1, v16")
    a("v_bfe_u32 v18, v0, 3, 1")
    a("v_or_b32 v16, v16, v18")
    a(f"s_and_b32 s{sT}, s{LW}, 1")
    a(f"s_lshl_b32 s{sT}, s{sT}, 1")
    a(f"v_xor_b32 v16, s{sT}, v16")
    a("v_lshl_add_u32 v17, v16, 5, v17")
    a(f"s_lshr_b32 s{sT}, s{LW}, 1")
    a(f"s_lshl_b32 s{sT}, s{sT}, 12")
    a(f"s_add_u32 s{sT}, s{sT}, {WOFF}")
    a(f"s_cmp_eq_u32 s{SH}, 3")
    a(f"s_cselect_b32 s{sT+1}, 0, s{SH}")
    a(f"s_mul_i32 s{sT+1}, s{sT+1}, {SLOT}")
    a(f"s_add_u32 s{sT}, s{sT}, s{sT+1}")
    a(f"v_add_u32 v10, s{sT}, v17")
    a("v_xor_b32 v11, 32, v10")
    for c in range(6): a(f"v_mov_b32 v{60+c}, 0")
    a("v_mov_b32 v16, 0\nv_mov_b32 v17, 0\nv_mov_b32 v18, 0\nv_mov_b32 v19, 0")
    a(f"v_add_u32 v20, {L_CS}, v94")
    a("ds_write_b128 v20, v[16:19]")
    a("ds_write_b128 v20, v[16:19] offset:1024")
    ONES = 55
    a(f"s_mov_b32 s{ONES}, 0x3f803f80")
    if opt.get("lprio", 1): a(f"s_setprio {opt.get('lprio', 1)}")
    KEY, TT, CAND = 28, 36, 44
    ST = sT
    keys = list(range(KEY, KEY+8))
    a("s_waitcnt lgkmcnt(0)")
    vm.wait("T0")
    a("s_barrier")
    a.stamp(1)
    assert opt.get("p0", 8) <= 8
    P0 = opt.get("p0", 7)
    cb = Asm()
    cb.label(f"{name}_colsum")
    for c in range(6):
        for t_ in range(2):
            cb(f"ds_read_b64_tr_b16 {vr(68+4*c+2*t_,2)}, v{10+(c&1)} offset:{(c>>1)*8192+t_*512}")
    for hf in range(2):
        cb(f"s_waitcnt lgkmcnt({6-6*hf})")
        for q in range(4):
            for c in range(3*hf, 3*hf+3):
                cb(f"v_dot2c_f32_bf16 v{60+c}, s{ONES}, v{68+4*c+q}")
    cb("s_nop 2")
    cb("v_permlane32_swap_b32 v60, v62")
    cb("v_permlane32_swap_b32 v61, v63")
    cb("v_permlane16_swap_b32 v64, v65")
    cb("v_add_f32 v60, v60, v62")
    cb("v_add_f32 v61, v61, v63")
    cb("v_add_f32 v64, v64, v65")
    cb("s_nop 0")
    cb("v_mov_b32 v65, v64")
    cb("v_permlane16_swap_b32 v60, v61")
    cb("s_nop 0")
    cb("v_permlane32_swap_b32 v64, v65")
    cb("v_add_f32 v60, v60, v61")
    cb("v_add_f32 v64, v64, v65")
    cb(f"s_lshl_b32 s{sT}, s{sJ}, 4")
    cb(f"s_add_u32 s{sT}, s{sT}, s{sMT}")
    cb(f"s_lshl_b32 s{sT}, s{sT}, 2")
    cb(f"s_add_u32 s{sT}, s{sT}, s{LW}")
    cb(f"s_mul_i32 s{sT}, s{sT}, 384")
    cb(f"s_add_u32 s{sT}, s{sT}, {WS_CSP}")
    cb("v_lshlrev_b32 v47, 2, v0")
    cb(f"buffer_store_dword v60, v47, {srd(sWS)}, s{sT} offen sc1")
    cb("s_bfm_b64 exec, 32, 0")
    cb(f"buffer_store_dword v64, v47, {srd(sWS)}, s{sT} offen offset:256 sc1")
    cb("s_mov_b64 exec, -1")
    cb("s_setpc_b64 s[70:71]")
    cold.append(cb)
    def lines(fn):
        tmp = Asm(); tmp.uid = a.uid; fn(tmp); a.uid = tmp.uid
        out, grp = [], None
        for l in tmp.lines:
            s_ = l.strip()
            if grp is not None:
                grp.append(s_)
                if s_ == "s_mov_b64 exec, -1": out.append(grp); grp = None
            elif ("exec," in s_ and s_ != "s_mov_b64 exec, -1") or "saveexec" in s_: grp = [s_]
            else: out.append([s_])
        assert grp is None
        return [(lambda g=g: a(*g)) for g in out]
    def cs_load(i):
        def f():
            a(f"s_mul_i32 s{sT+2}, s{sJ}, {32*768}")
            a(f"s_mul_i32 s{sT+3}, s{LW}, 192")
            a(f"s_add_u32 s{sT+2}, s{sT+2}, s{sT+3}")
            a(f"s_add_u32 s{sT+2}, s{sT+2}, {WS_CSP + (i//4)*4*768}")
            a(f"buffer_load_dwordx4 {vr(60+4*i,4)}, v51, {srd(sWS)}, s{sT+2} offen offset:{(i%4)*768} sc1")
            vm.issue("csl")
        return f
    for kt in range(16):
        atoms = []
        if kt == 0:
            a(f"s_cmp_lg_u32 s{W}, 4")
            a(f"s_cbranch_scc1 {name}_nopub")
            publish_stats(a, vm, 96)
            a.label(f"{name}_nopub")
        if kt < 4:
            lab = a.new_label(f"{name}_cs")
            a(f"s_cmp_lg_u32 s{SH}, {kt}")
            a(f"s_cbranch_scc1 {lab}")
            a(f"s_call_b64 s[70:71], {name}_colsum")
            a.label(lab)
            vm.issue("cs", 2, cond=True)
        if 2 <= kt < 6:
            lab = a.new_label(f"{name}_cf")
            a(f"s_add_u32 s{sT}, s{SH}, 2")
            a(f"s_cmp_lg_u32 s{sT}, {kt}")
            a(f"s_cbranch_scc1 {lab}")
            a(f"s_cmp_lg_u32 s{W}, 4")
            a(f"s_cbranch_scc1 {lab}")
            csf_addr(a, sT, sT+1)
            a(f"v_mov_b32 v45, s{sT}")
            a("v_mov_b32 v46, 1")
            a("s_mov_b64 exec, 1")
            a(f"buffer_store_dword v46, v45, {srd(sWS)}, 0 offen sc1")
            a("s_mov_b64 exec, -1")
            a.label(lab)
            vm.issue("csf", 1, cond=True)
        if kt == 2:
            a(f"s_cmp_lg_u32 s{W}, 4")
            a(f"s_cbranch_scc1 {name}_nosig")
            a(f"s_lshl_b32 s{sT}, s{sMT}, 4")
            a(f"v_mov_b32 v45, s{sT}")
            a("v_mov_b32 v46, 1")
            a("s_mov_b64 exec, 1")
            a(f"buffer_atomic_add v46, v45, {srd(sDBG)}, 0 offen sc1")
            a("s_mov_b64 exec, -1")
            a.label(f"{name}_nosig")
            vm.issue("sig", 1, cond=True)
        if kt == P0:
            a("v_and_b32 v45, 15, v0")
            a("v_lshlrev_b32 v45, 4, v45")
            a(f"buffer_load_dword v46, v45, {srd(sDBG)}, 0 offen sc1")
            vm.issue("poll")
        if kt == P0 + 1:
            poll_check(a, f"{name}_p1", 46, 45, sDBG, 16, -1, cold)
            a(f"s_lshl_b32 s{sT}, s{LW}, 11")
            a(f"s_add_u32 s{sT}, s{sT}, {WS_R}")
            a(f"buffer_load_dwordx4 {vr(KEY,4)}, v94, {srd(sWS)}, s{sT} offen sc1")
            a(f"buffer_load_dwordx4 {vr(KEY+4,4)}, v94, {srd(sWS)}, s{sT} offen offset:1024 sc1")
            a(f"s_lshl_b32 s{sT}, s{sMT}, 11")
            a(f"s_and_b32 s{sT+1}, s{LW}, 1")
            a(f"s_lshl_b32 s{sT+1}, s{sT+1}, 10")
            a(f"s_add_u32 s{sT}, s{sT}, s{sT+1}")
            a(f"s_add_u32 s{sT}, s{sT}, {WS_ST}")
            a("v_lshrrev_b32 v47, 3, v0")
            a("v_lshlrev_b32 v47, 7, v47")
            a("v_and_b32 v48, 7, v0")
            a("v_lshl_add_u32 v47, v48, 2, v47")
            a(f"buffer_load_dword v48, v47, {srd(sWS)}, s{sT} offen sc1")
            a(f"buffer_load_dword v49, v47, {srd(sWS)}, s{sT} offen offset:32 sc1")
            vm.issue("side", 4)
        if kt == 9:
            a(f"s_lshl_b32 s{sT}, s{sJ}, 7")
            a(f"s_add_u32 s{sT}, s{sT}, {WS_CSF}")
            a("v_and_b32 v52, 15, v0")
            a("v_lshlrev_b32 v52, 2, v52")
            a(f"v_add_u32 v52, s{sT}, v52")
            a(f"buffer_load_dword v53, v52, {srd(sWS)}, 0 offen sc1")
            vm.issue("poll")
            def f(o):
                o("v_and_b32 v51, 15, v0")
                o("v_cmp_gt_u32 vcc, 12, v51")
                o("v_lshlrev_b32 v51, 4, v51")
                o("v_lshrrev_b32 v50, 4, v0")
                o("v_mul_u32_u24 v50, 8*768, v50")
                o("v_add_u32 v51, v51, v50")
                o("v_mov_b32 v50, 0x7fff0000")
                o("v_cndmask_b32 v51, v50, v51, vcc")
            atoms += lines(f)
        if kt == 10: poll_check(a, f"{name}_p2", 53, 52, sWS, 1, -1, cold)
        if 10 <= kt <= 13:
            i0 = 2*(kt - 10)
            atoms += [cs_load(i0), cs_load(i0+1)]
        if kt == P0 + 2:
            def f(o):
                o(f"s_and_b32 s{sT}, s{LW}, 1")
                o(f"s_lshl_b32 s{sT}, s{sT}, 8")
                o(f"s_add_u32 s{sT}, s{sT}, {L_M}")
                o("v_lshlrev_b32 v47, 2, v0")
                o(f"v_add_u32 v47, s{sT}, v47")
                o("ds_write_b32 v47, v48")
                o("ds_write_b32 v47, v49 offset:512")
                o(f"s_lshl_b32 s{sT}, s{LW}, 9")
                o("v_lshlrev_b32 v47, 2, v0")
                o(f"v_add_u32 v47, s{sT}, v47")
                make_keys(o, KEY, TT, 47, [0, 1, 2, 3, 256, 257, 258, 259])
                o(f"v_mov_b32 v{CAND}, 0")
                top8_round(o, keys, TT, CAND, ST, 0)
            atoms += lines(f)
        if kt == P0 + 3: atoms += lines(lambda o: [top8_round(o, keys, TT, CAND, ST, r) for r in (1, 2)])
        if kt == P0 + 4: atoms += lines(lambda o: [top8_round(o, keys, TT, CAND, ST, r) for r in (3, 4, 5)])
        if kt == P0 + 5:
            def f(o):
                for r in (6, 7): top8_round(o, keys, TT, CAND, ST, r)
                o(f"s_lshl_b32 s{sT}, s{LW}, 5")
                o(f"s_add_u32 s{sT}, s{sT}, {L_CAND}")
                o("v_lshlrev_b32 v47, 2, v0")
                o(f"v_add_u32 v47, s{sT}, v47")
                o("s_mov_b64 exec, 0xff")
                o(f"ds_write_b32 v47, v{CAND}")
                o("s_mov_b64 exec, -1")
            atoms += lines(f)
        if kt == P0 + 6:
            def f(o):
                o("v_and_b32 v47, 31, v0")
                o("v_lshlrev_b32 v47, 2, v47")
                o(f"v_add_u32 v47, {L_CAND}, v47")
                o(f"ds_read_b32 v{KEY}, v47")
                o("v_cmp_gt_u32 vcc, 32, v0")
                o("s_waitcnt lgkmcnt(0)")
                o(f"v_cndmask_b32 v{KEY}, 0, v{KEY}, vcc")
                for r in range(4): top8_round(o, [KEY], TT, CAND, ST, r)
            atoms += lines(f)
        if kt == P0 + 7:
            def f(o):
                for r in range(4, 8): top8_round(o, [KEY], TT, CAND, ST, r)
                decode_keys(o, CAND, 48, 49, TT)
                o("v_lshlrev_b32 v47, 2, v0")
                o(f"v_add_u32 v47, {L_IDX}, v47")
                o("s_mov_b64 exec, 0xff")
                o("ds_write_b32 v47, v48")
                o("ds_write_b32 v47, v49 offset:32")
                if opt.get("dbg"):
                    o(f"s_mov_b32 s{sT}, {WS_IDX}")
                    o("v_lshlrev_b32 v47, 2, v0")
                    o(f"buffer_store_dword v48, v47, {srd(sWS)}, s{sT} offen")
                    o(f"buffer_store_dword v49, v47, {srd(sWS)}, s{sT} offen offset:32")
                o("s_mov_b64 exec, -1")
            atoms += lines(f)
            if opt.get("dbg"): vm.issue("dbg", 2)
        if kt == 15:
            vm.wait("csl")
            for i in range(1, 8):
                for r in range(4): a(f"v_add_f32 v{60+r}, v{60+r}, v{60+4*i+r}")
            a("s_nop 1")
            a("v_permlane32_swap_b32 v60, v62")
            a("v_permlane32_swap_b32 v61, v63")
            a("v_add_f32 v60, v60, v62")
            a("v_add_f32 v61, v61, v63")
            a("s_nop 1")
            a("v_permlane16_swap_b32 v60, v61")
            a("v_add_f32 v60, v60, v61")
            a("v_and_b32 v47, 15, v0")
            a("v_cmp_gt_u32 vcc, 12, v47")
            a("v_lshlrev_b32 v47, 4, v47")
            a("v_lshrrev_b32 v50, 4, v0")
            a("v_lshl_add_u32 v47, v50, 2, v47")
            a(f"s_mul_i32 s{sT}, s{LW}, 192")
            a(f"s_add_u32 s{sT}, s{sT}, {L_CS}")
            a(f"v_add_u32 v47, s{sT}, v47")
            a("s_and_saveexec_b64 s[66:67], vcc")
            a("ds_write_b32 v47, v60")
            a("s_mov_b64 exec, -1")
        if kt <= 13: issue(kt+2, atoms)
        else:
            for at in atoms: at()
        a("s_waitcnt lgkmcnt(0)")
        a.trace(3*kt+1)
        if kt < 15: vm.wait(f"T{kt+1}", "poll", "side", *(["st"] if kt == 1 else []))
        a.trace(3*kt+2)
        a("s_barrier")
        a.trace(3*kt+3)
    a(f"s_lshl_b32 s{sT}, s{LW}, 13")
    a(f"v_add_u32 v2, s{sT}, v94")
    a(f"s_lshl_b32 s{sT+1}, s{sJ}, 1")
    a(f"s_lshr_b32 s{sT+2}, s{LW}, 1")
    a(f"s_add_u32 s{sT+1}, s{sT+1}, s{sT+2}")
    a(f"s_lshl_b32 s{sT+1}, s{sT+1}, 5")
    a(f"s_lshl_b32 s{sT+2}, s{sMT}, 1")
    a(f"s_add_u32 s{sT+1}, s{sT+1}, s{sT+2}")
    a(f"s_and_b32 s{sT+2}, s{LW}, 1")
    a(f"s_add_u32 s{sT+1}, s{sT+1}, s{sT+2}")
    a(f"s_lshl_b32 s{sT+1}, s{sT+1}, 13")
    a(f"s_add_u32 s{sT+1}, s{sT+1}, {WS_KV}")
    a(f"s_add_u32 s{sT+2}, s{sT+1}, 4096")
    a("s_barrier")
    for q in range(8): a(f"ds_read_b128 {vr(96+4*q,4)}, v2 offset:{q*1024}")
    for q in range(8):
        a(f"s_waitcnt lgkmcnt({7-q})")
        a(f"buffer_store_dwordx4 {vr(96+4*q,4)}, v94, {srd(sWS)}, s{sT+1+(q>>2)} offen offset:{(q&3)*1024} sc1")
    return vm

ACC, B0 = 96, 8
def accreg(ct, tt): return ACC + 16*ct + 4*tt

def phaseA_consumer(a, name, cold, opt):
    vm = VM(a)
    XA, WA = 1, 3
    a("s_waitcnt lgkmcnt(0)")
    a.stamp(4)
    for q in range(4):
        a(f"buffer_load_dwordx4 {vr(96+4*q,4)}, v95, {srd(sX)}, 0 offen offset:{q*1024} {'nt' if 'l' in opt.get('nt', 'm') else ''}")
    for q in range(2):
        a(f"buffer_load_dwordx4 {vr(112+4*q,4)}, v94, {srd(sWR)}, 0 offen offset:{q*1024}")
    vm.issue("lnld", 6)
    if opt.get("cpf", True):
        a(f"s_cmp_lg_u32 s{W}, 0")
        a(f"s_cbranch_scc1 {name}_nocpf")
        a(f"s_getpc_b64 s[{sT+8}:{sT+9}]")
        a.label(f"{name}_pc")
        a(f"s_sub_u32 s{sT+8}, s{sT+8}, {name}_pc-{name}")
        a(f"s_subb_u32 s{sT+9}, s{sT+9}, 0")
        a(f"s_lshl_b32 s{sT}, s{sLI}, 4")
        a("v_and_b32 v8, 15, v0")
        a(f"v_add_u32 v8, s{sT}, v8")
        a("v_lshlrev_b32 v8, 7, v8")
        a(f"v_min_u32 v8, {name}_end-{name}-4, v8")
        a(f"global_load_dword v250, v8, s[{sT+8}:{sT+9}]")
        a.label(f"{name}_nocpf")
        vm.issue("cpf", 1, cond=True)
    WM, WN = 52, 53
    a(f"s_lshr_b32 s{WM}, s{W}, 1")
    a(f"s_and_b32 s{WN}, s{W}, 1")
    a("v_and_b32 v8, 15, v0")
    a("v_lshrrev_b32 v9, 4, v0")
    a(f"s_lshl_b32 s{sT}, s{WM}, 6")
    a(f"v_add_u32 v10, s{sT}, v8")
    a("v_lshlrev_b32 v10, 7, v10")
    a("v_bfe_u32 v11, v0, 1, 3")
    a("v_xor_b32 v11, v11, v9")
    a(f"v_lshl_add_u32 v{XA}, v11, 4, v10")
    a(f"v_xor_b32 v{XA+1}, 64, v{XA}")
    a("v_bfe_u32 v10, v0, 2, 2")
    a("v_lshl_add_u32 v10, v9, 3, v10")
    a("v_lshlrev_b32 v10, 7, v10")
    a("v_and_b32 v11, 3, v0")
    a("v_lshl_add_u32 v10, v11, 3, v10")
    a("v_and_b32 v11, 1, v9")
    a("v_lshlrev_b32 v11, 1, v11")
    a("v_bfe_u32 v12, v0, 3, 1")
    a("v_or_b32 v11, v11, v12")
    a(f"s_lshl_b32 s{sT}, s{WN}, 1")
    a(f"v_xor_b32 v11, s{sT}, v11")
    a("v_lshl_add_u32 v10, v11, 5, v10")
    a(f"v_add_u32 v{WA}, {WOFF}, v10")
    a(f"v_xor_b32 v{WA+1}, 32, v{WA}")
    a.stamp(5)
    vm.wait("lnld")
    a.stamp(6)
    assert WS_XN == 0
    ln_rows2(a, vm, 96, 112, 120, 152, 95, opt.get("dbg"))
    for r in range(96): a(f"v_mov_b32 v{ACC+r}, 0")
    def reads(buf, ks):
        b = B0 + 40*buf
        xr = [f"ds_read_b128 {vr(b+4*tt,4)}, v{XA+ks} offset:{tt*2048}" for tt in range(4)]
        wr = [f"ds_read_b64_tr_b16 {vr(b+16+4*ct+2*t,2)}, v{WA+(ct&1)} offset:{(ct>>1)*8192+ks*4096+t*512}" for ct in range(6) for t in range(2)]
        return [xr[0]] + wr[0:2] + xr[1:4] + wr[2:]
    def mfmas(buf):
        b = B0 + 40*buf
        o = []
        for ct in range(6):
            for tt in range(4):
                x = vr(b+4*tt, 4); w = vr(b+16+4*ct, 4)
                A, B = (w, x) if ct < 4 else (x, w)
                o.append(f"v_mfma_f32_16x16x32_bf16 {vr(accreg(ct,tt),4)}, {A}, {B}, {vr(accreg(ct,tt),4)}")
        return o
    KT, SI, DL, NEG = 48, 49, 50, 51
    pf = opt.get("pf", False)
    PD, PO, PV = 56, 54, 5
    if pf:
        for q in range(3):
            a(f"s_cmp_eq_u32 s{W}, 0")
            a(f"s_cselect_b32 s{PD+q}, s{sWG+q}, s{sWU+q}")
            a(f"s_cmp_eq_u32 s{W}, 2")
            a(f"s_cselect_b32 s{PD+q}, s{sWD+q}, s{PD+q}")
            a(f"s_cmp_eq_u32 s{W}, 3")
            a(f"s_cselect_b32 s{PD+q}, s{sWO+q}, s{PD+q}")
        a(f"s_mov_b32 s{PD+3}, 0x00020000")
        a(f"s_cselect_b32 s{PO}, 8192, 28672 + 0" if False else f"s_movk_i32 s{PO}, 0x7000")
        a(f"s_cselect_b32 s{PO}, 0x2000, s{PO}")
        a(f"s_mul_i32 s{PO}, s{PO}, s2")
        a(f"s_sub_u32 s{PO}, s{PO}, {opt.get('pf0', 2)*2048}")
        a(f"v_lshlrev_b32 v{PV}, 7, v0")
        a("v_cmp_gt_u32 vcc, 16, v0")
        a("v_mov_b32 v6, 0x7fff0000")
        a("s_nop 0")
        a(f"v_cndmask_b32 v{PV}, v6, v{PV}, vcc")
    a(f"s_mov_b32 s{KT}, 0")
    a(f"s_mov_b32 s{SI}, 0")
    a(f"s_mov_b32 s{NEG}, {(-2*SLOT) & 0xffffffff:#x}")
    a("s_waitcnt lgkmcnt(0)")
    a("s_barrier")
    a.stamp(1); a.cstamp(7)
    a(*reads(0, 0))
    a(".p2align 6")
    a.label(f"{name}_cloop")
    per = opt.get("rpg", 1)
    skip = opt.get("rskip", 0)
    if opt.get("nods"): reads = lambda buf, ks: []
    def weave(m, r, extra):
        i = 0
        for k, x in enumerate(m):
            a(x)
            if k < skip: continue
            a(*r[i:i+per]); i += per
            if i - per >= len(r) and extra: a(extra.pop(0))
    m = mfmas(0); r = reads(1, 1)
    a(f"s_add_u32 s{SI}, s{SI}, 1")
    a(f"s_cmp_eq_u32 s{SI}, 3")
    a(f"s_cselect_b32 s{DL}, s{NEG}, {SLOT}")
    a(f"s_cselect_b32 s{SI}, 0, s{SI}")
    a("s_waitcnt lgkmcnt(0)")
    weave(m, r, [f"v_add_u32 v{q}, s{DL}, v{q}" for q in (1, 2, 3, 4)])
    m = mfmas(1); r = reads(0, 0)
    a("s_waitcnt lgkmcnt(0)")
    a(m[0])
    a("s_barrier")
    if pf:
        a(f"s_cmp_lt_u32 s{KT}, {opt.get('pf0', 2)}")
        a(f"s_cselect_b32 s{sT}, 0x7fff0000, s{PO}")
        a(f"buffer_load_dword v254, v{PV}, {srd(PD)}, s{sT} offen")
        a(f"s_add_u32 s{PO}, s{PO}, 2048")
    weave(m[1:], r, [f"s_add_u32 s{KT}, s{KT}, 1", f"s_cmp_lt_u32 s{KT}, 16"])
    a(f"s_cbranch_scc1 {name}_cloop")
    vm.q = []
    a.stamp(2); a.cstamp(8)
    MR, CSQ, MV, RV, CSV, QR, AD, PK = 8, 16, 32, 48, 64, 66, 74, 78
    a("s_waitcnt lgkmcnt(0)")
    a("v_and_b32 v1, 15, v0")
    a("v_lshrrev_b32 v2, 4, v0")
    a(f"s_lshl_b32 s{sT}, s{WM}, 8")
    a(f"s_add_u32 s{sT}, s{sT}, {L_M}")
    a(f"s_mul_i32 s{sT+1}, s{WN}, 384")
    a(f"s_add_u32 s{sT+1}, s{sT+1}, {L_CS}")
    a("v_lshlrev_b32 v3, 2, v1")
    a(f"v_add_u32 v4, s{sT}, v3")
    for tt in range(4):
        a(f"ds_read_b32 v{MR+2*tt}, v4 offset:{tt*64}")
        a(f"ds_read_b32 v{MR+2*tt+1}, v4 offset:{tt*64+512}")
    a("v_lshlrev_b32 v5, 4, v2")
    a(f"v_add_u32 v6, s{sT+1}, v5")
    for ct in range(4): a(f"ds_read_b128 {vr(CSQ+4*ct,4)}, v6 offset:{ct*64}")
    a(f"v_add_u32 v6, s{sT}, v5")
    a(f"v_add_u32 v3, s{sT+1}, v3")
    a(f"ds_read_b32 v{CSV}, v3 offset:256")
    a(f"ds_read_b32 v{CSV+1}, v3 offset:320")
    for tt in range(4):
        a(f"ds_read_b128 {vr(MV+4*tt,4)}, v6 offset:{tt*64}")
        a(f"ds_read_b128 {vr(RV+4*tt,4)}, v6 offset:{tt*64+512}")
    a("v_lshrrev_b32 v3, 1, v2")
    a("v_and_b32 v4, 1, v2")
    a("v_lshl_add_u32 v5, v3, 5, v1")
    a("v_lshlrev_b32 v5, 4, v5")
    a("v_lshl_add_u32 v5, v4, 3, v5")
    a("v_lshl_add_u32 v6, v4, 5, v1")
    a("v_lshlrev_b32 v6, 4, v6")
    a("v_lshl_add_u32 v6, v3, 3, v6")
    a(f"s_lshl_b32 s{sT}, s{WN}, 1")
    a(f"s_add_u32 s{sT}, s{sT}, s{WM}")
    a(f"s_lshl_b32 s{sT}, s{sT}, 13")
    a(f"v_add_u32 v{AD}, s{sT}, v5")
    a(f"v_add_u32 v{AD+1}, s{sT}, v6")
    a(f"s_lshr_b32 s{sT}, s{sT}, 1")
    a(f"s_add_u32 s{sT}, s{sT}, {L_Q}")
    a(f"v_add_u32 v{AD+2}, s{sT}, v5")
    a(f"s_mov_b32 s{sT+1}, {QSCALE:#x}")
    a("s_waitcnt lgkmcnt(10)")
    for tt in range(4):
        a(f"v_mul_f32 v{QR+2*tt+1}, s{sT+1}, v{MR+2*tt+1}")
    n = 0
    def fin(ct, tt):
        nonlocal n
        r = accreg(ct, tt)
        p = PK + 2*(n % 4); n += 1
        for hf in range(2):
            pr = vr(r+2*hf, 2)
            if ct < 4:
                a(f"v_pk_fma_f32 {pr}, {vr(CSQ+4*ct+2*hf,2)}, {vr(MR+2*tt,2)}, {pr} op_sel_hi:[1,0,1] neg_lo:[0,1,0] neg_hi:[0,1,0]")
                sc = QR if ct < 2 else MR
                a(f"v_pk_mul_f32 {pr}, {pr}, {vr(sc+2*tt,2)} op_sel:[0,1] op_sel_hi:[1,1]")
            else:
                sel = "op_sel_hi:[1,0,1]" if ct == 4 else "op_sel:[0,1,0] op_sel_hi:[1,1,1]"
                a(f"v_pk_fma_f32 {pr}, {vr(MV+4*tt+2*hf,2)}, {vr(CSV,2)}, {pr} {sel} neg_lo:[0,1,0] neg_hi:[0,1,0]")
                a(f"v_pk_mul_f32 {pr}, {pr}, {vr(RV+4*tt+2*hf,2)}")
            a(f"v_cvt_pk_bf16_f32 v{p+hf}, v{r+2*hf}, v{r+2*hf+1}")
        if ct < 2:   a(f"ds_write_b64 v{AD+2}, {vr(p,2)} offset:{(tt>>1)*2048 + ct*1024 + (tt&1)*256}")
        elif ct < 4: a(f"ds_write_b64 v{AD}, {vr(p,2)} offset:{(tt>>1)*4096 + (ct-2)*1024 + (tt&1)*256}")
        else:        a(f"ds_write_b64 v{AD+1}, {vr(p,2)} offset:{(tt>>1)*4096 + 2048 + (tt&1)*1024 + (ct-4)*256}")
    a("s_waitcnt lgkmcnt(0)")
    for ct in (2, 3, 4, 5):
        for tt in range(4): fin(ct, tt)
    a("s_waitcnt lgkmcnt(0)")
    a("s_barrier")
    for ct in (0, 1):
        for tt in range(4): fin(ct, tt)
    a("s_waitcnt lgkmcnt(0)")
    return vm

def publish_kv(a, vm, R, opt):
    a(f"v_lshlrev_b32 v{R.VL}, 4, v0")
    a(f"s_and_b32 s{sT+1}, s{W}, 1")
    a(f"s_lshl_b32 s{sT+1}, s{sT+1}, 1")
    a(f"s_bfe_u32 s{sT+2}, s{W}, 0x10001")
    a(f"s_add_u32 s{sT+1}, s{sT+1}, s{sT+2}")
    a(f"s_lshl_b32 s{sT+1}, s{sT+1}, 12")
    a(f"s_add_u32 s{sT+1}, s{sT+1}, {L_Q}")
    a(f"v_add_u32 v3, s{sT+1}, v{R.VL}")
    for q in range(4): a(f"ds_read_b128 {vr(R.Q+4*q,4)}, v3 offset:{q*1024}")
    if opt.get("dbg"):
        a("s_waitcnt lgkmcnt(0)")
        head_of(a, sT+1, sT+2)
        a(f"s_lshl_b32 s{sT+1}, s{sT+1}, 6")
        a(f"s_lshl_b32 s{sT+2}, s{sMT}, 2")
        a(f"s_add_u32 s{sT+1}, s{sT+1}, s{sT+2}")
        a(f"s_and_b32 s{sT+2}, s{W}, 2")
        a(f"s_add_u32 s{sT+1}, s{sT+1}, s{sT+2}")
        a(f"s_lshl_b32 s{sT+1}, s{sT+1}, 11")
        a(f"s_add_u32 s{sT+1}, s{sT+1}, {WS_Q}")
        for q in range(4):
            a(f"buffer_store_dwordx4 {vr(R.Q+4*q,4)}, v{R.VL}, {srd(sWS)}, s{sT+1} offen offset:{q*1024}")
        vm.drain()

def gen_fused(name, **opt):
    a = Asm(); cold = []
    R = AT.AttnRegs
    prologue(a, name, opt)
    a(f"s_cmp_ge_u32 s{W}, 4")
    a(f"s_cbranch_scc1 {name}_loader")
    phaseA_consumer(a, name, cold, opt)
    a(f"s_branch {name}_joinA")
    a.label(f"{name}_loader")
    phaseA_loader(a, name, cold, opt)
    a.stamp(2)
    a("s_setprio 0")
    a.label(f"{name}_joinA")
    a("s_barrier")
    a.stamp(3)
    if opt.get("dbgtime"): a("s_memrealtime s[94:95]")
    vm = VM(a)
    publish_kv(a, vm, R, opt)
    if opt.get("stop") != "A":
        import fused_bc
        fused_bc.phaseB(a, name, cold, opt, vm)
        if opt.get("stop") != "B":
            fused_bc.phaseC(a, name, cold, opt, vm)
    a.stamp_dump(0, W)
    if opt.get("dbgtime"):
        a("s_waitcnt vmcnt(0)")
        a("s_memrealtime s[98:99]")
        a("s_waitcnt lgkmcnt(0)")
        a("s_not_b32 s96, s96")
        a("v_mov_b32 v1, 4")
        a("v_mov_b32 v2, s96")
        a("v_mov_b32 v3, s98")
        a("v_mov_b32 v4, s94")
        a(f"s_cmp_lg_u32 s{W}, 0")
        a(f"s_cbranch_scc1 {name}_done")
        a("s_mov_b64 exec, 1")
        a(f"buffer_atomic_umax v2, v1, {srd(sDBG)}, 0 offen sc1")
        a(f"buffer_atomic_umax v3, v1, {srd(sDBG)}, 0 offen offset:4 sc1")
        a(f"buffer_atomic_umax v4, v1, {srd(sDBG)}, 0 offen offset:8 sc1")
        a("s_mov_b64 exec, -1")
    a.label(f"{name}_done")
    a("s_endpgm")
    for c in cold: a.lines += c.lines
    a.label(f"{name}_end")
    a("s_endpgm")
    return kernel_header(name) + a.text() + kernel_desc(name, 256, 102)

def xsel_fetch(a, vm, vidx, XR, XST):
    a(f"v_readlane_b32 s{sT}, v{vidx}, s{W}")
    a("s_nop 3")
    a(f"s_lshl_b32 s{sT+1}, s{sT}, 11")
    a(f"buffer_load_dwordx4 {vr(XR,4)}, v1, {srd(sX)}, s{sT+1} offen")
    a(f"buffer_load_dwordx4 {vr(XR+4,4)}, v1, {srd(sX)}, s{sT+1} offen offset:1024")
    a(f"s_lshr_b32 s{sT+1}, s{sT}, 3")
    a(f"s_lshl_b32 s{sT+1}, s{sT+1}, 5")
    a(f"s_and_b32 s{sT}, s{sT}, 7")
    a(f"s_add_u32 s{sT}, s{sT}, s{sT+1}")
    a(f"s_lshl_b32 s{sT}, s{sT}, 2")
    a(f"s_add_u32 s{sT}, s{sT}, {WS_ST}")
    a(f"v_mov_b32 v{XST+1}, s{sT}")
    a(f"buffer_load_dword v{XST}, v{XST+1}, {srd(sWS)}, 0 offen sc1")
    a(f"buffer_load_dword v{XST+1}, v{XST+1}, {srd(sWS)}, 0 offen offset:32 sc1")
    vm.issue("xsel", 4)

def xsel_normalise(a, T, XR, XST):
    XF = T + 2
    a(f"v_lshrrev_b32 v{T}, 2, v0")
    a(f"v_lshlrev_b32 v{T}, 9, v{T}")
    a(f"v_and_b32 v{T+1}, 3, v0")
    a(f"v_lshl_add_u32 v{T}, v{T+1}, 7, v{T}")
    a(f"s_lshl_b32 s{sT}, s{W}, 4")
    a(f"s_add_u32 s{sT}, s{sT}, {L_XS}")
    a(f"v_add_u32 v{T}, s{sT}, v{T}")
    for p in range(8):
        x = XR + p
        f0, f1 = XF + 2*(p & 1), XF + 2*(p & 1) + 1
        a(f"v_lshlrev_b32 v{f0}, 16, v{x}")
        a(f"v_and_b32 v{f1}, 0xffff0000, v{x}")
        a(f"v_sub_f32 v{f0}, v{f0}, v{XST}")
        a(f"v_sub_f32 v{f1}, v{f1}, v{XST}")
        a(f"v_cvt_pk_bf16_f32 v{x}, v{f0}, v{f1}")
        a(f"v_lshlrev_b32 v{f0}, 16, v{x}")
        a(f"v_and_b32 v{f1}, 0xffff0000, v{x}")
        a(f"v_mul_f32 v{f0}, v{f0}, v{XST+1}")
        a(f"v_mul_f32 v{f1}, v{f1}, v{XST+1}")
        a(f"v_cvt_pk_bf16_f32 v{x}, v{f0}, v{f1}")
    a(f"ds_write_b128 v{T}, {vr(XR,4)}")
    a(f"ds_write_b128 v{T}, {vr(XR+4,4)} offset:8192")
```

```python
from asmlib import *
from layout import *
from fused import *
import fused as FU
from k_attn import M32, M16
import k_attn2 as AT
from k_attn2 import SM
from k_attn3 import Regs3
from k_moe import pi_row, round_bf16
from k_top8 import make_keys, decode_keys

L_S1, L_S2, L_EX, L_LX, L_HI = 32768, 98304, 131072, 129024, 133120
KH, HB, KA, KBK, VA, VBK, MASK, NEED, RET, S1O, HASJ, S2O, WOO, WOM = 48, 49, 50, 51, 52, 53, 54, 55, 56, 58, 59, 60, 61, 62
XSF, MACC, VFR, VD1, VD2, VP, VPA, VT = 220, 236, 243, 244, 245, 246, 247, 248
C_MS, C_IX = 206, 210
C_XP, C_VX = 196, 204
WBF = 20

def unit(a, R, t, q, nb, hook=None, noqk=False):
    Sc, Sn = (R.S0, R.S1) if q == 0 else (R.S1, R.S0)
    P, Q, O, L = R.P, R.Q, R.O, R.L
    qn = 1 - q
    kn = t if q == 0 else t + 1
    vp = t - 1 if q == 0 else t
    K = R.KB + 8*(kn % nb); Vp = R.VB + 8*(vp % nb); Vc = R.VB + 8*(t % nb)
    e = lambda i: f"v_exp_f32 v{Sc+i}, v{Sc+i}"
    c = lambda i: f"v_cvt_pk_bf16_f32 v{P+i}, v{Sc+2*i}, v{Sc+2*i+1}"
    h = hook or (lambda pos: None)
    h("Ma")
    if not noqk: a(M32(Sn, K, Q+8*qn, None))
    h("Ma+"); a(e(0), e(1), e(2))
    h("Md"); a(M32(O+16*qn, Vp+4, P+4, O+16*qn)); h("Md+"); a(e(3), e(4), e(5))
    a(SM(L+4*qn, R.ONES, P, R.IDX), c(0), c(1), e(6), e(7))
    h("Mb")
    if not noqk: a(M32(Sn, K+4, Q+8*qn+4, Sn))
    h("Mb+"); a(c(2), c(3), e(8), e(9))
    h("Mc"); a(M32(O+16*q, Vc, P, O+16*q)); h("Mc+")
    a(e(10), e(11), c(4), e(12), c(5), e(13), e(14), e(15), c(6), c(7))

def flag_set(a, vm, saddr, v0_, v1_):
    a(f"v_mov_b32 v{v0_}, s{saddr}")
    a(f"v_mov_b32 v{v1_}, 1")
    a("s_mov_b64 exec, 1")
    a(f"buffer_store_dword v{v1_}, v{v0_}, {srd(sWS)}, 0 offen sc1")
    a("s_mov_b64 exec, -1")

def phaseB(a, name, cold, opt, vm):
    R = Regs3
    VL, Q, P, O, L, T = R.VL, R.Q, R.P, R.O, R.L, R.T
    NB, NT = 4, 32
    BAR = opt.get("bar", 4)
    moe = opt.get("moe", True)
    nt = lambda k: "nt" if k in opt.get("nt", "m") else ""
    a(f"s_lshr_b32 s{KH}, s{W}, 2")
    a(f"s_and_b32 s{sT}, s{W}, 1")
    a(f"s_lshl_b32 s{sT}, s{sT}, 1")
    a(f"s_add_u32 s{sT}, s{sT}, s{KH}")
    a(f"s_lshl_b32 s{sT}, s{sT}, 13")
    a(f"v_add_u32 v2, s{sT}, v{VL}")
    for t in range(2):
        for hf in range(2):
            a(f"ds_read_b128 {vr(R.KB+8*t+4*hf,4)}, v2 offset:{t*4096+hf*1024}")
    for t in range(2):
        for hf in range(2):
            a(f"ds_read_b128 {vr(R.VB+8*t+4*hf,4)}, v2 offset:{t*4096+2048+hf*1024}")
    head_of(a, HB, sT)
    a(f"s_lshl_b32 s{sT+1}, s{HB}, 11")
    a(f"s_lshl_b32 s{HB}, s{HB}, 18")
    a(f"s_add_u32 s{HB}, s{HB}, {WS_KV}")
    a(f"s_mov_b32 s{NEED}, 0xfffe")
    a(f"s_lshl_b32 s{sT}, s{KH}, 13")
    a(f"s_add_u32 s{S1O}, s{HB}, s{sT}")
    KVB = 63
    a(f"s_mov_b32 s{KVB}, s{S1O}")
    a(f"v_add_u32 v{VPA}, s{sMT}, v0")
    a(f"v_and_b32 v{VPA}, 15, v{VPA}")
    a(f"v_lshlrev_b32 v{VPA}, 7, v{VPA}")
    a(f"s_lshl_b32 s{sT}, s{KH}, 2")
    a(f"s_add_u32 s{sT}, s{sT}, s{sT+1}")
    a(f"s_add_u32 s{sT}, s{sT}, {WS_KVF}")
    a(f"v_add_u32 v{VPA}, s{sT}, v{VPA}")
    a(f"s_mov_b32 s{MASK}, 0")
    if moe:
        a(f"s_cmp_lt_u32 s{sLI}, 28")
        a(f"s_cselect_b32 s{HASJ}, 1, 0")
        a(f"v_bfe_u32 v{VD2}, v0, 5, 1")
        a(f"v_lshlrev_b32 v{VD2}, 3, v{VD2}")
        a(f"v_bfe_u32 v{VT}, v0, 3, 2")
        a(f"v_add_u32 v{VD2}, v{VD2}, v{VT}")
        a(f"v_bfe_u32 v{VT}, v0, 4, 2")
        a(f"v_lshlrev_b32 v{VT}, 1, v{VT}")
        a(f"v_and_b32 v{VT+1}, 7, v0")
        a(f"v_xor_b32 v{VT}, v{VT}, v{VT+1}")
        a(f"v_lshlrev_b32 v{VT}, 4, v{VT}")
        a(f"v_mul_u32_u24 v{VD1}, 7168, v{VD2}")
        a(f"v_add_u32 v{VD1}, v{VD1}, v{VT}")
        a(f"v_lshl_add_u32 v{VD2}, v{VD2}, 11, v{VT}")
        a(f"v_lshrrev_b32 v{VFR}, 2, v0")
        a(f"v_lshlrev_b32 v{VFR}, 7, v{VFR}")
        a(f"v_bfe_u32 v{VT}, v0, 3, 2")
        a(f"s_and_b32 s{sT}, s{W}, 3")
        a(f"v_xor_b32 v{VT}, s{sT}, v{VT}")
        a(f"v_lshl_add_u32 v{VFR}, v{VT}, 5, v{VFR}")
        a(f"v_and_b32 v{VT}, 3, v0")
        a(f"v_lshl_add_u32 v{VFR}, v{VT}, 3, v{VFR}")
        cg_of(a, sT)
        a(f"s_and_b32 s{sT+1}, s{sT}, 3")
        a(f"s_lshl_b32 s{sT+1}, s{sT+1}, 3")
        a(f"s_add_u32 s{sT+1}, s{sT+1}, s{W}")
        a(f"s_mul_i32 s{S1O}, s{sT+1}, {32*7168}")
        a(f"s_lshr_b32 s{sT}, s{sT}, 2")
        a(f"s_lshl_b32 s{sT}, s{sT}, 7")
        a(f"s_add_u32 s{S1O}, s{S1O}, s{sT}")
        a(f"s_lshr_b32 s{S2O}, s2, 4")
        a(f"s_mul_i32 s{S2O}, s{S2O}, 224")
        a(f"s_lshl_b32 s{sT}, s{KH}, 5")
        a(f"s_add_u32 s{S2O}, s{S2O}, s{sT}")
        a(f"s_and_b32 s{sT}, s{W}, 1")
        a(f"s_lshl_b32 s{sT}, s{sT}, 4")
        a(f"s_add_u32 s{S2O}, s{S2O}, s{sT}")
        a(f"s_and_b32 s{sT}, s{W}, 2")
        a(f"s_lshl_b32 s{sT}, s{sT}, 1")
        a(f"s_add_u32 s{S2O}, s{S2O}, s{sT}")
        a(f"s_lshl_b32 s{S2O}, s{S2O}, 11")
        a(f"s_and_b32 s{sT}, s2, 15")
        a(f"s_lshl_b32 s{sT}, s{sT}, 7")
        a(f"s_add_u32 s{S2O}, s{S2O}, s{sT}")
    if moe:
        a(f"v_and_b32 v{VT}, 7, v0")
        a(f"v_lshlrev_b32 v{VT}, 2, v{VT}")
        a(f"v_add_u32 v{VT}, {L_IDX}, v{VT}")
        a(f"ds_read_b32 v{VT+1}, v{VT}")
    AT.attn_consts(a, R)
    for r in range(4): a(f"v_mov_b32 v{R.VB+8*3+4+r}, 0")
    a("s_waitcnt lgkmcnt(0)")
    if moe: xsel_fetch(a, vm, VT+1, 228, 236)
    a(M32(R.S0, R.KB, Q, None))
    a(M32(R.S0, R.KB+4, Q+4, R.S0))
    a("s_nop 10")

    c = Asm()
    c.label(f"{name}_kvspin")
    c(f"s_mov_b32 s{sT+11}, 0")
    c.label(f"{name}_kvagain")
    c(f"buffer_load_dword v{VP}, v{VPA}, {srd(sWS)}, 0 offen sc1")
    c(f"s_add_u32 s{sT+11}, s{sT+11}, 1")
    c(f"s_cmp_gt_u32 s{sT+11}, {SPIN_LIMIT}")
    c(f"s_cselect_b32 s{MASK}, s{NEED}, s{MASK}")
    c(f"s_cbranch_scc1 {name}_kvout")
    c("s_waitcnt vmcnt(0)")
    c(f"v_cmp_eq_u32 vcc, 1, v{VP}")
    c(f"s_mov_b32 s{MASK}, vcc_lo")
    c(f"s_and_b32 s{MASK}, s{MASK}, s{NEED}")
    if opt.get("fixed"):
        c(f"s_ff1_i32_b32 s{sT+10}, s{NEED}")
        c(f"s_bitcmp1_b32 s{MASK}, s{sT+10}")
    c(f"s_cbranch_scc0 {name}_kvagain")
    c.label(f"{name}_kvout")
    c(f"s_setpc_b64 s[{RET}:{RET+1}]")
    cold.append(c)
    def next_block():
        lab = a.new_label(f"{name}_nb")
        a(f"s_and_b32 s{MASK}, s{MASK}, s{NEED}")
        if opt.get("fixed"):
            a(f"s_ff1_i32_b32 s{sT+10}, s{NEED}")
            a(f"s_bitcmp1_b32 s{MASK}, s{sT+10}")
        a(f"s_cbranch_scc1 {lab}")
        a(f"s_call_b64 s[{RET}:{RET+1}], {name}_kvspin")
        a.label(lab)
        a(f"s_ff1_i32_b32 s{KBK}, s{MASK}")
        a(f"s_bitset0_b32 s{NEED}, s{KBK}")
        a(f"s_add_u32 s{KBK}, s{KBK}, s{sMT}")
        a(f"s_and_b32 s{KBK}, s{KBK}, 15")
        a(f"s_lshl_b32 s{KBK}, s{KBK}, 14")
        a(f"s_add_u32 s{KBK}, s{KBK}, s{KVB}")
    def adv(sr_, t):
        if t & 1: a(f"s_add_u32 s{sr_}, s{sr_}, 4096")
        else: a(f"s_mov_b32 s{sr_}, s{KBK}")
    def ldK(t, half):
        if half == 0:
            if not (t & 1): next_block()
            adv(KA, t)
        a(f"buffer_load_dwordx4 {vr(R.KB+8*(t%NB)+4*half,4)}, v{VL}, {srd(sWS)}, s{KA} offen offset:{half*1024}")
        vm.issue(f"K{t}_{half}")
    def ldV(t, half):
        if half == 0: adv(VA, t)
        a(f"buffer_load_dwordx4 {vr(R.VB+8*(t%NB)+4*half,4)}, v{VL}, {srd(sWS)}, s{VA} offen offset:{2048+half*1024}")
        vm.issue(f"V{t}_{half}")

    def guarded(fn):
        lab = a.new_label(f"{name}_g")
        a(f"s_cmp_eq_u32 s{HASJ}, 0")
        a(f"s_cbranch_scc1 {lab}")
        fn()
        a.label(lab)
    def s1_dma(i):
        def f():
            m, pc = i >> 2, i & 3
            a(f"s_lshl_b32 s{sT}, s{W}, 12")
            a(f"s_add_u32 m0, s{sT}, {L_S1 + m*32768 + pc*1024}")
            a(f"s_add_u32 s{sT}, s{S1O}, {(16*(pc&1) + 4*(pc>>1))*7168}")
            a(f"buffer_load_dwordx4 v{VD1}, {srd(sWG if m == 0 else sWU)}, s{sT} offen {nt('m')} lds")
            vm.issue("s1w", 1, cond=True)
        guarded(f)
    def s2_dma(jj):
        lab = a.new_label(f"{name}_s2d")
        if jj == 3:
            a(f"s_cmp_lg_u32 s{KH}, 0")
            a(f"s_cbranch_scc1 {lab}")
        a(f"s_lshl_b32 s{sT}, s{W}, 10")
        a(f"s_add_u32 m0, s{sT}, {L_S2 + jj*8192}")
        a(f"s_add_u32 s{sT}, s{S2O}, {jj*64*2048}")
        a(f"buffer_load_dwordx4 v{VD2}, {srd(sWD)}, s{sT} offen {nt('m')} lds")
        vm.issue("s2w", 1, cond=(jj == 3))
        a.label(lab)
    def touch_wd():
        a(f"s_lshl_b32 s{sT}, s2, 3")
        a(f"s_add_u32 s{sT}, s{sT}, s{W}")
        a(f"s_mul_i32 s{sT+1}, s{sT}, 3584")
        a(f"s_lshl_b32 s{sT}, s{sT}, 10")
        a(f"v_lshlrev_b32 v{VT}, 7, v0")
        a("s_bfm_b64 exec, 28, 0")
        a(f"buffer_load_dword v{VT+4}, v{VT}, {srd(sWD)}, s{sT+1} offen")
        a("s_mov_b64 exec, 0xff")
        a(f"buffer_load_dword v{VT+5}, v{VT}, {srd(sWO)}, s{sT} offen")
        a("s_mov_b64 exec, -1")
        vm.issue("tch", 2)
    def afrag_addr(base_s):
        a(f"v_and_b32 v{VT}, 7, v0")
        a(f"v_lshlrev_b32 v{VT}, 4, v{VT}")
        a(f"v_lshrrev_b32 v{VT+1}, 4, v0")
        a(f"v_lshl_add_u32 v{VT}, v{VT+1}, 7, v{VT}")
        a(f"v_add_u32 v{VT}, s{base_s}, v{VT}")
    def chain(n0, n1, first):
        for ks in range(n0, n1):
            a(f"ds_read_b128 {vr(XSF+4*(ks&3),4)}, v{VT} offset:{ks*512}")
            for t_ in range(2):
                a(f"ds_read_b64_tr_b16 {vr(WBF+4*(ks&3)+2*t_,2)}, v{VT+2} offset:{ks*4096+t_*2048}")
        a("s_waitcnt lgkmcnt(0)")
    def mf(ks, first): a(f"v_mfma_f32_16x16x32_bf16 {vr(MACC,4)}, {vr(XSF+4*(ks&3),4)}, {vr(WBF+4*(ks&3),4)}, {'0' if first else vr(MACC,4)}")
    def out_addr(row_bytes):
        a(f"v_mul_u32_u24 v{VT+1}, {4*row_bytes}, v{VT+1}")
        a(f"v_and_b32 v{VT}, 15, v0")
        a(f"v_lshl_add_u32 v{VT}, v{VT}, 2, v{VT+1}")
    def atomics(row_bytes, tag, cond):
        a("s_bfm_b64 exec, 32, 0")
        for r in range(4):
            a(f"s_add_u32 s{sT+1}, s{sT}, {r*row_bytes}")
            a(f"buffer_atomic_add_f32 v{MACC+r}, v{VT}, {srd(sWS)}, s{sT+1} offen")
        a("s_mov_b64 exec, -1")
        vm.issue(tag, 4, cond=cond)
    def s1_compute():
        def f():
            cg_of(a, sT+2)
            a(f"s_and_b32 s{sT}, s{sT+2}, 3")
            a(f"s_lshl_b32 s{sT}, s{sT}, 12")
            a(f"s_add_u32 s{sT}, s{sT}, {L_XS}")
            afrag_addr(sT)
            a(f"s_lshl_b32 s{sT}, s{KH}, 15")
            a(f"s_add_u32 s{sT}, s{sT}, {L_S1}")
            a(f"v_add_u32 v{VT+2}, s{sT}, v{VFR}")
            chain(0, 4, True)
            for ks in range(4): mf(ks, ks == 0)
            chain(4, 8, False)
            for ks in range(4, 8): mf(ks, False)
            out_addr(14336)
            a(f"s_lshr_b32 s{sT}, s{sT+2}, 2")
            a(f"s_lshl_b32 s{sT}, s{sT}, 8")
            a(f"s_and_b32 s{sT+1}, s{W}, 3")
            a(f"s_lshl_b32 s{sT+1}, s{sT+1}, 6")
            a(f"s_add_u32 s{sT}, s{sT}, s{sT+1}")
            a(f"s_mul_i32 s{sT+1}, s{KH}, 114688")
            a(f"s_add_u32 s{sT}, s{sT}, s{sT+1}")
            a(f"s_add_u32 s{sT}, s{sT}, {WS_GU}")
            atomics(14336, "gat", True)
        guarded(f)
    def s1_flag():
        lab = a.new_label(f"{name}_s1g")
        a(f"s_cmp_lg_u32 s{W}, 0")
        a(f"s_cbranch_scc1 {lab}")
        def f():
            hf_addr(a, sT)
            flag_set(a, vm, sT, VT, VT+1)
            vm.issue("hfl", 1, cond=True)
        guarded(f)
        a.label(lab)
    def s2_poll():
        a(f"s_lshr_b32 s{sT}, s2, 4")
        a(f"s_mul_i32 s{sT}, s{sT}, 7")
        a(f"s_lshr_b32 s{sT}, s{sT}, 1")
        a(f"s_lshl_b32 s{sT}, s{sT}, 9")
        a(f"s_add_u32 s{sT}, s{sT}, {WS_HF}")
        a(f"v_and_b32 v{VT+4}, 15, v0")
        a(f"v_lshlrev_b32 v{VT+4}, 7, v{VT+4}")
        a(f"v_add_u32 v{VT+4}, s{sT}, v{VT+4}")
        a(f"buffer_load_dword v{VT+5}, v{VT+4}, {srd(sWS)}, 0 offen sc1")
        vm.issue("hpoll")
    def s2_load():
        vm.wait("hpoll")
        poll_check(a, f"{name}_hp", VT+5, VT+4, sWS, 1, -1, cold)
        a(f"s_lshr_b32 s{sT}, s2, 4")
        a(f"s_mul_i32 s{sT}, s{sT}, 896")
        a(f"s_mul_i32 s{sT+1}, s{W}, 14336")
        a(f"s_add_u32 s{sT}, s{sT}, s{sT+1}")
        a(f"s_add_u32 s{sT}, s{sT}, {WS_GU}")
        a(f"s_add_u32 s{sT+1}, s{sT}, 114688")
        a("s_bfm_b64 exec, 56, 0")
        a(f"buffer_load_dwordx4 {vr(XSF,4)}, v{VL}, {srd(sWS)}, s{sT} offen sc1")
        a(f"buffer_load_dwordx4 {vr(XSF+4,4)}, v{VL}, {srd(sWS)}, s{sT+1} offen sc1")
        a("s_mov_b64 exec, -1")
        vm.issue("hld", 2)
    def s2_h():
        vm.wait("hld")
        Gs, Us, Tm = XSF, XSF+4, XSF+8
        for e in range(0, 4, 2):
            a(f"v_cvt_pk_bf16_f32 v{Tm}, v{Gs+e}, v{Gs+e+1}")
            a(f"v_cvt_pk_bf16_f32 v{Tm+1}, v{Us+e}, v{Us+e+1}")
            a(f"v_lshlrev_b32 v{Gs+e}, 16, v{Tm}")
            a(f"v_and_b32 v{Gs+e+1}, 0xffff0000, v{Tm}")
            a(f"v_lshlrev_b32 v{Us+e}, 16, v{Tm+1}")
            a(f"v_and_b32 v{Us+e+1}, 0xffff0000, v{Tm+1}")
        for e in range(4): a(f"v_mul_f32 v{Tm+e}, 0xbfb8aa3b, v{Gs+e}")
        for e in range(4): a(f"v_exp_f32 v{Tm+e}, v{Tm+e}")
        for e in range(4): a(f"v_add_f32 v{Tm+e}, 1.0, v{Tm+e}")
        for e in range(4): a(f"v_rcp_f32 v{Tm+e}, v{Tm+e}")
        for e in range(4): a(f"v_mul_f32 v{Gs+e}, v{Gs+e}, v{Tm+e}")
        for e in range(0, 4, 2):
            a(f"v_cvt_pk_bf16_f32 v{Tm}, v{Gs+e}, v{Gs+e+1}")
            a(f"v_lshlrev_b32 v{Gs+e}, 16, v{Tm}")
            a(f"v_and_b32 v{Gs+e+1}, 0xffff0000, v{Tm}")
        for e in range(4): a(f"v_mul_f32 v{Gs+e}, v{Gs+e}, v{Us+e}")
        a(f"v_cvt_pk_bf16_f32 v{Tm}, v{Gs}, v{Gs+1}")
        a(f"v_cvt_pk_bf16_f32 v{Tm+1}, v{Gs+2}, v{Gs+3}")
        a(f"v_lshrrev_b32 v{VT}, 1, v0")
        a(f"v_lshlrev_b32 v{VT}, 7, v{VT}")
        a(f"v_and_b32 v{VT+1}, 1, v0")
        a(f"v_lshl_add_u32 v{VT}, v{VT+1}, 3, v{VT}")
        a(f"s_lshl_b32 s{sT}, s{W}, 4")
        a(f"s_add_u32 s{sT}, s{sT}, {L_HI}")
        a(f"v_add_u32 v{VT}, s{sT}, v{VT}")
        a("s_bfm_b64 exec, 56, 0")
        a(f"ds_write_b64 v{VT}, {vr(Tm,2)}")
        a("s_mov_b64 exec, -1")
        if opt.get("dbg"):
            a(f"s_lshr_b32 s{sT}, s2, 4")
            a(f"s_mul_i32 s{sT}, s{sT}, 448")
            a(f"s_mul_i32 s{sT+1}, s{W}, 7168")
            a(f"s_add_u32 s{sT}, s{sT}, s{sT+1}")
            a(f"s_add_u32 s{sT}, s{sT}, {WS_H}")
            a(f"v_lshlrev_b32 v{VT}, 3, v0")
            a("s_bfm_b64 exec, 56, 0")
            a(f"buffer_store_dwordx2 {vr(Tm,2)}, v{VT}, {srd(sWS)}, s{sT} offen")
            a("s_mov_b64 exec, -1")
            vm.issue("dbg")
        a("s_waitcnt lgkmcnt(0)")
    def s2_compute():
        a(f"s_lshl_b32 s{sT}, s{KH}, 11")
        a(f"s_add_u32 s{sT}, s{sT}, {L_HI}")
        afrag_addr(sT)
        a(f"s_lshl_b32 s{sT}, s{KH}, 14")
        a(f"s_add_u32 s{sT}, s{sT}, {L_S2}")
        a(f"v_add_u32 v{VT+2}, s{sT}, v{VFR}")
        chain(0, 4, True)
        a(f"s_cmp_lg_u32 s{KH}, 0")
        lab = a.new_label(f"{name}_s2k")
        for ks in range(4):
            if ks == 3: a(f"s_cbranch_scc1 {lab}")
            mf(ks, ks == 0)
        a.label(lab)
        out_addr(4096)
        a(f"s_and_b32 s{sT}, s2, 15")
        a(f"s_lshl_b32 s{sT}, s{sT}, 8")
        a(f"s_and_b32 s{sT+1}, s{W}, 3")
        a(f"s_lshl_b32 s{sT+1}, s{sT+1}, 6")
        a(f"s_add_u32 s{sT}, s{sT}, s{sT+1}")
        a(f"s_add_u32 s{sT}, s{sT}, {WS_Y}")
        atomics(4096, "yat", False)
    def y_flag():
        lab = a.new_label(f"{name}_yf")
        a(f"s_cmp_lg_u32 s{W}, 0")
        a(f"s_cbranch_scc1 {lab}")
        yf_addr(a, sT, sT+1)
        flag_set(a, vm, sT, VT, VT+1)
        vm.issue("yfl", 1, cond=True)
        a.label(lab)
    def x_load():
        a(f"v_and_b32 v{VT}, 15, v0")
        a(f"s_lshl_b32 s{sT}, s{sMT}, 2")
        a(f"s_and_b32 s{sT+1}, s{W}, 3")
        a(f"s_add_u32 s{sT}, s{sT}, s{sT+1}")
        a(f"s_lshl_b32 s{sT}, s{sT}, 5")
        a(f"v_add_u32 v{VT}, s{sT}, v{VT}")
        a(f"v_lshlrev_b32 v{C_VX}, 11, v{VT}")
        a(f"v_bfe_u32 v{VT}, v0, 4, 1")
        a(f"v_lshl_add_u32 v{C_VX}, v{VT}, 5, v{C_VX}")
        a(f"v_lshrrev_b32 v{VT}, 5, v0")
        a(f"v_lshl_add_u32 v{C_VX}, v{VT}, 4, v{C_VX}")
        a(f"s_lshl_b32 s{sT}, s{sJ}, 7")
        a(f"s_lshl_b32 s{sT+1}, s{KH}, 6")
        a(f"s_add_u32 s{sT}, s{sT}, s{sT+1}")
        a(f"v_add_u32 v{C_VX}, s{sT}, v{C_VX}")
        a(f"s_mov_b32 s{sT}, 32768")
        a(f"buffer_load_dwordx4 {vr(C_XP,4)}, v{C_VX}, {srd(sX)}, 0 offen")
        a(f"buffer_load_dwordx4 {vr(C_XP+4,4)}, v{C_VX}, {srd(sX)}, s{sT} offen")
        vm.issue("xc", 2)
    def wo_setup():
        a(f"v_lshrrev_b32 v{VD1}, 3, v0")
        a(f"v_lshlrev_b32 v{VD1}, 11, v{VD1}")
        a(f"v_bfe_u32 v{VT}, v0, 4, 1")
        a(f"s_bfe_u32 s{sT}, s{W}, 0x10001")
        a(f"s_lshl_b32 s{sT}, s{sT}, 1")
        a(f"v_or_b32 v{VT}, s{sT}, v{VT}")
        a(f"v_lshlrev_b32 v{VT}, 1, v{VT}")
        a(f"v_and_b32 v{VT+1}, 7, v0")
        a(f"v_xor_b32 v{VT}, v{VT}, v{VT+1}")
        a(f"v_lshl_add_u32 v{VD1}, v{VT}, 4, v{VD1}")
        a(f"s_lshl_b32 s{WOO}, s{W}, 14")
        a(f"s_lshl_b32 s{sT}, s{sJ}, 7")
        a(f"s_add_u32 s{WOO}, s{WOO}, s{sT}")
        a(f"s_lshl_b32 s{WOM}, s{W}, 10")
    def wo_dma(i, part=None):
        lab = a.new_label(f"{name}_wo")
        if part:
            a(f"s_cmp_ge_u32 s{W}, 6")
            a(f"s_cbranch_scc{1 if part == 'early' else 0} {lab}")
        a(f"s_add_u32 m0, s{WOM}, {i*8192}")
        a(f"s_add_u32 s{sT}, s{WOO}, {i*64*2048}")
        a(f"buffer_load_dwordx4 v{VD1}, {srd(sWO)}, s{sT} offen {nt('o')} lds")
        vm.issue("wo", 1, cond=bool(part))
        a.label(lab)
    FU.wo_dma = wo_dma

    sched = {}
    def at(t, q, fn): sched.setdefault((t, q), []).append(fn)
    pre = {}
    assert BAR == 4
    if moe:
        S1D = opt.get("s1d", 3)
        if opt.get("touch", False): at(2, 1, touch_wd)
        for i in range(8): at(S1D + i, 1, lambda i=i: s1_dma(i))
        pre[11] = ["s1w"]
        at(12, 0, s1_compute)
        for i in range(4): at(12 + i, 1, lambda i=i: s2_dma(i))
        pre[15] = ["gat"]
        at(16, 0, s1_flag)
        at(20, 0, s2_poll)
        at(21, 0, s2_load)
        at(23, 0, s2_h)
        pre[23] = ["s2w"]
        at(24, 0, s2_compute)
        pre[27] = ["yat"]
        at(28, 0, y_flag)
    at(16, 0, wo_setup)
    for i in range(12): at(16 + i, 1, lambda i=i: wo_dma(i))
    for i in range(12, 15): at(16 + i, 0, lambda i=i: wo_dma(i))
    at(30, 1, lambda: wo_dma(15, 'early'))
    def kv_refresh_issue():
        a(f"buffer_load_dword v{VP}, v{VPA}, {srd(sWS)}, 0 offen sc1")
        vm.issue("kvp")
    def kv_refresh_use():
        vm.wait("kvp")
        a(f"v_cmp_eq_u32 vcc, 1, v{VP}")
        a(f"s_or_b32 s{MASK}, s{MASK}, vcc_lo")
    for t_ in opt.get("kvr", [2, 5]):
        at(t_, 0, kv_refresh_issue)
        at(t_ + 2, 0, kv_refresh_use)
    at(28, 1, x_load)
    def misc_read():
        a(f"v_and_b32 v{VT}, 15, v0")
        a(f"s_and_b32 s{sT}, s{W}, 3")
        a(f"s_lshl_b32 s{sT}, s{sT}, 5")
        a(f"v_add_u32 v{VT}, s{sT}, v{VT}")
        a(f"v_lshlrev_b32 v{VT}, 2, v{VT}")
        a(f"v_add_u32 v{VT}, {L_M}, v{VT}")
        for t16 in range(2):
            a(f"ds_read_b32 v{C_MS+2*t16}, v{VT} offset:{t16*64}")
            a(f"ds_read_b32 v{C_MS+2*t16+1}, v{VT} offset:{t16*64+512}")
        a(f"v_lshlrev_b32 v{VT}, 2, v0")
        a(f"v_add_u32 v{VT}, {L_IDX}, v{VT}")
        a(f"ds_read_b32 v{C_IX}, v{VT}")
        a("s_waitcnt lgkmcnt(0)")
    at(26, 1, misc_read)

    def hooks(t, q):
        def h(pos):
            if t < 2: return
            if q == 0:
                if pos == "Mc": vm.wait(f"V{t}_0")
                if pos == "Ma+" and t + 3 < NT: ldV(t+3, 0)
                if pos == "Mb+" and t + 3 < NT: ldV(t+3, 1)
            else:
                if pos == "Ma": vm.wait(f"K{t+1}_1", f"V{t}_1")
                if pos == "Md+" and t + 4 < NT: ldK(t+4, 0)
                if pos == "Mc+" and t + 4 < NT: ldK(t+4, 1)
        return h
    def prio(t): a(f"s_setprio {3 - (t % BAR) * 4 // BAR}")
    XR, XST = 228, 236
    lab = a.new_label(f"{name}_kvf")
    a(f"s_cmp_eq_u32 s{KH}, 0")
    a(f"s_cselect_b32 s{sT}, 0, 1")
    a(f"s_cbranch_scc1 {lab}")
    a("s_setprio 3")
    a.label(lab)
    unit(a, R, 0, 0, NB); unit(a, R, 0, 1, NB)
    unit(a, R, 1, 0, NB); unit(a, R, 1, 1, NB, noqk=True)
    a(f"s_cmp_eq_u32 s{KH}, 0")
    a(f"s_cbranch_scc1 {lab}_f")
    a(f"s_waitcnt vmcnt({4 if moe else 0})")
    kvf_addr(a, sT, sT+1)
    flag_set(a, vm, sT, VT, VT+1)
    a.label(f"{lab}_f")
    a.stamp(4)
    if moe:
        vm.wait("xsel")
        xsel_normalise(a, VT, XR, XST)
        a("s_waitcnt lgkmcnt(0)")
    a.stamp(5)
    ldK(2, 0)
    a.stamp(6)
    ldK(2, 1); ldV(2, 0); ldV(2, 1); ldK(3, 0); ldK(3, 1); ldV(3, 0); ldV(3, 1)
    ldK(4, 0); ldK(4, 1); ldV(4, 0); ldV(4, 1); ldK(5, 0); ldK(5, 1)
    vm.wait("K2_1")
    a(M32(R.S0, R.KB+16, Q, None))
    a(M32(R.S0, R.KB+20, Q+4, R.S0))
    a("s_nop 10")
    for t in range(2, NT):
        a.trace(t, "b")
        prio(t)
        for q in range(2):
            for fn in sched.get((t, q), []): fn()
            unit(a, R, t, q, NB, hooks(t, q))
        if (t % BAR) == BAR - 1 and t != NT - 1:
            if t in pre: vm.wait(*pre[t])
            a("s_barrier")
    a("s_setprio 0")
    a.stamp(7)
    a(M32(O+16, R.VB+8*((NT-1)%NB)+4, P+4, O+16))
    a(SM(L+4, R.ONES, P, R.IDX))
    a.trace(50)
    a("s_nop 7")
    a("s_nop 7")
    exchange_and_store(a, name, vm, R, opt)
    c = Asm()
    AT.attn_slow_path(c, R, name, KH, sWS, HB, s0=sT)
    cold.append(c)

def exchange_and_store(a, name, vm, R, opt):
    O, L, T, VL, P = R.O, R.L, R.T, R.VL, R.P
    a(f"v_add_f32 v{L}, v{L}, v{L+1}")
    a(f"v_add_f32 v{L+4}, v{L+4}, v{L+5}")
    a(f"s_lshl_b32 s{sT}, s{W}, 12")
    a(f"s_add_u32 s{sT}, s{sT}, {L_EX}")
    a(f"v_add_u32 v{T}, s{sT}, v{VL}")
    a(f"v_xor_b32 v{T+1}, 16384, v{T}")
    a(f"s_lshl_b32 s{sT}, s{W}, 8")
    a(f"s_add_u32 s{sT}, s{sT}, {L_LX}")
    a(f"v_lshrrev_b32 v{T+2}, 2, v{VL}")
    a(f"v_add_u32 v{T+2}, s{sT}, v{T+2}")
    a(f"v_xor_b32 v{T+3}, 1024, v{T+2}")
    a(f"s_cmp_eq_u32 s{KH}, 0")
    a(f"s_cbranch_scc1 {name}_kh0")
    for r in range(4): a(f"ds_write_b128 v{T}, {vr(O+4*r,4)} offset:{r*1024}")
    a(f"ds_write_b32 v{T+2}, v{L}")
    a("s_waitcnt lgkmcnt(0)")
    for r in range(16): a(f"v_mov_b32 v{O+r}, v{O+16+r}")
    a(f"v_mov_b32 v{L}, v{L+4}")
    a(f"s_branch {name}_khj")
    a.label(f"{name}_kh0")
    for r in range(4): a(f"ds_write_b128 v{T}, {vr(O+16+4*r,4)} offset:{r*1024}")
    a(f"ds_write_b32 v{T+2}, v{L+4}")
    a.label(f"{name}_khj")
    a("s_waitcnt lgkmcnt(0)")
    a("s_barrier")
    for r in range(4): a(f"ds_read_b128 {vr(O+16+4*r,4)}, v{T+1} offset:{r*1024}")
    a(f"ds_read_b32 v{L+4}, v{T+3}")
    otile(a, sT, sT+1)
    a(f"s_lshl_b32 s{sT}, s{sT}, 6")
    head_of(a, sT+1, sT+2)
    a(f"s_add_u32 s{sT}, s{sT}, s{sT+1}")
    a(f"s_lshl_b32 s{sT+4}, s{sT}, 10")
    a(f"s_add_u32 s{sT+4}, s{sT+4}, {WS_O}")
    a(f"v_bfe_u32 v{T+4}, v0, 4, 1")
    a(f"v_lshlrev_b32 v{T+4}, 15, v{T+4}")
    a(f"v_lshrrev_b32 v{T+5}, 5, v0")
    a(f"v_lshl_add_u32 v{T+4}, v{T+5}, 9, v{T+4}")
    a(f"v_and_b32 v{T+5}, 15, v0")
    a(f"v_lshl_add_u32 v{T+4}, v{T+5}, 4, v{T+4}")
    a("s_waitcnt lgkmcnt(0)")
    a("s_barrier")
    a.trace(51)
    for r in range(16): a(f"v_add_f32 v{O+r}, v{O+r}, v{O+16+r}")
    a(f"v_add_f32 v{L}, v{L}, v{L+4}")
    a(f"v_mov_b32 v{T+1}, 0")
    for r in range(16): a(f"v_fmac_f32 v{T+1}, 0, v{O+r}")
    a(f"s_mov_b32 s{sT}, 0x2b800000")
    a(f"s_mov_b32 s{sT+1}, 0x5d800000")
    a(f"v_cmp_nle_f32 s[{sT+6}:{sT+7}], s{sT}, v{L}")
    a(f"v_cmp_nge_f32 s[{sT+8}:{sT+9}], s{sT+1}, v{L}")
    a(f"v_cmp_u_f32 vcc, v{T+1}, v{T+1}")
    a(f"s_or_b64 s[{sT+6}:{sT+7}], s[{sT+6}:{sT+7}], s[{sT+8}:{sT+9}]")
    a(f"s_or_b64 s[{sT+6}:{sT+7}], s[{sT+6}:{sT+7}], vcc")
    a(f"s_cmp_lg_u64 s[{sT+6}:{sT+7}], 0")
    a(f"s_cbranch_scc1 {name}_slow")
    a.label(f"{name}_fin")
    a(f"v_rcp_f32 v{T}, v{L}")
    a("s_nop 0")
    for jj in range(2):
        for e_ in range(4):
            r0 = O + 8*jj + 2*e_
            a(f"v_mul_f32 v{r0}, v{r0}, v{T}")
            a(f"v_mul_f32 v{r0+1}, v{r0+1}, v{T}")
            a(f"v_cvt_pk_bf16_f32 v{P+4*jj+e_}, v{r0}, v{r0+1}")
        a(f"buffer_store_dwordx4 {vr(P+4*jj,4)}, v{T+4}, {srd(sWS)}, s{sT+4} offen offset:{jj*256} sc1")
    vm.issue("ost", 2)
    a.trace(52)

def phaseC(a, name, cold, opt, vm):
    ACC, WB, OB, XF, G = 4, 36, 68, 132, 148
    WA, VL2, VPo, VPa, MS, T, WG = 164, 168, 170, 171, C_MS, 180, 172
    XP, VX = C_XP, C_VX
    sTT, sOA, sOB = 49, 50, 51
    moe = opt.get("moe", True)
    a(f"s_and_b32 s{sTT}, s{W}, 3")
    a(f"v_lshlrev_b32 v{VL2}, 4, v0")
    a(f"v_and_b32 v{T}, 15, v0")
    a(f"v_lshrrev_b32 v{T+1}, 4, v0")
    a(f"v_lshrrev_b32 v{T+2}, 11, v{VX}")
    a(f"v_and_b32 v{T+5}, 0x7ff, v{VX}")
    a(f"v_mov_b32 v{T+4}, v{C_IX}")
    ROT = 60
    a(f"s_and_b32 s{ROT}, s{sJ}, 3")
    a(f"s_lshl_b32 s{sT}, s{sMT}, 2")
    a(f"s_add_u32 s{sT}, s{sT}, s{sTT}")
    a(f"s_lshl_b32 s{sOA}, s{sT}, 16")
    a(f"s_lshl_b32 s{sT+1}, s{KH}, 14")
    a(f"s_add_u32 s{sOA}, s{sOA}, s{sT+1}")
    a(f"s_add_u32 s{sOA}, s{sOA}, {WS_O}")
    a(f"s_add_u32 s{sOB}, s{sOA}, 32768")
    a(f"s_lshl_b32 s{sT}, s{sT}, 1")
    a(f"s_add_u32 s{sT}, s{sT}, s{KH}")
    a(f"s_lshl_b32 s{sT}, s{sT}, 7")
    a(f"s_add_u32 s{sT}, s{sT}, {WS_OF}")
    a(f"s_lshl_b32 s{sT+1}, s{ROT}, 2")
    a(f"v_add_u32 v{VPa}, s{sT+1}, v{T}")
    a(f"v_and_b32 v{VPa}, 15, v{VPa}")
    a(f"v_lshlrev_b32 v{VPa}, 2, v{VPa}")
    a(f"v_add_u32 v{VPa}, s{sT}, v{VPa}")
    a(f"v_and_b32 v{T+6}, 1, v{T+1}")
    a(f"v_lshlrev_b32 v{T+7}, 4, v{T+6}")
    a(f"v_lshrrev_b32 v{T+8}, 1, v{T+1}")
    a(f"v_lshl_add_u32 v{T+7}, v{T+8}, 2, v{T+7}")
    a(f"v_bfe_u32 v{T+8}, v0, 2, 2")
    a(f"v_add_u32 v{T+7}, v{T+7}, v{T+8}")
    a(f"v_lshlrev_b32 v{T+7}, 7, v{T+7}")
    a(f"v_and_b32 v{T+8}, 3, v0")
    a(f"v_lshl_add_u32 v{T+7}, v{T+8}, 3, v{T+7}")
    a(f"v_lshlrev_b32 v{T+6}, 1, v{T+6}")
    a(f"v_bfe_u32 v{T+8}, v0, 3, 1")
    a(f"v_or_b32 v{T+6}, v{T+6}, v{T+8}")
    a(f"v_lshl_add_u32 v{T+7}, v{T+6}, 5, v{T+7}")
    a(f"s_lshl_b32 s{sT}, s{KH}, 16")
    a(f"v_add_u32 v{WA}, s{sT}, v{T+7}")
    for ct in range(1, 4): a(f"v_xor_b32 v{WA+ct}, {ct*32}, v{WA}")
    a.trace(53)
    vm.wait("ost")
    a.trace(54)
    of_addr(a, sT, sT+1)
    flag_set(a, vm, sT, T+6, T+7)
    vm.issue("ofl")
    a.stamp(8)
    a(f"buffer_load_dword v{VPo}, v{VPa}, {srd(sWS)}, 0 offen sc1")
    vm.issue("opoll")
    FU.wo_dma(15, 'late')
    a("s_waitcnt lgkmcnt(0)")
    IDXS, WTS = 52, 64
    for i in range(8): a(f"v_readlane_b32 s{IDXS+i}, v{T+4}, {i}")
    for i in range(8): a(f"v_readlane_b32 s{WTS+i}, v{T+4}, {8+i}")
    vm.wait("xc")
    a.trace(55)
    for t16 in range(2):
        for p in range(4):
            x0, x1 = XF + 8*t16 + 2*p, XF + 8*t16 + 2*p + 1
            g0, g1 = G + 8*t16 + 2*p, G + 8*t16 + 2*p + 1
            a(f"v_lshlrev_b32 v{x0}, 16, v{XP+4*t16+p}")
            a(f"v_and_b32 v{x1}, 0xffff0000, v{XP+4*t16+p}")
            a(f"v_sub_f32 v{g0}, v{x0}, v{MS+2*t16}")
            a(f"v_sub_f32 v{g1}, v{x1}, v{MS+2*t16}")
            a(f"v_cvt_pk_bf16_f32 v{T+6}, v{g0}, v{g1}")
            a(f"v_lshlrev_b32 v{g0}, 16, v{T+6}")
            a(f"v_and_b32 v{g1}, 0xffff0000, v{T+6}")
            a(f"v_mul_f32 v{g0}, v{g0}, v{MS+2*t16+1}")
            a(f"v_mul_f32 v{g1}, v{g1}, v{MS+2*t16+1}")
            a(f"v_cvt_pk_bf16_f32 v{T+6}, v{g0}, v{g1}")
            a(f"v_lshlrev_b32 v{g0}, 16, v{T+6}")
            a(f"v_and_b32 v{g1}, 0xffff0000, v{T+6}")
    if moe:
        SL, WT_ = T+8, T+10
        for t16 in range(2):
            a(f"v_mov_b32 v{SL+t16}, -1")
            a(f"v_mov_b32 v{WT_+t16}, 0")
            a(f"v_add_u32 v{T+7}, {16*t16}, v{T+2}")
            for i in range(8):
                a(f"v_cmp_eq_u32 vcc, s{IDXS+i}, v{T+7}")
                a(f"v_mov_b32 v{T+12}, {i}")
                a(f"v_mov_b32 v{T+13}, s{WTS+i}")
                a(f"v_cndmask_b32 v{SL+t16}, v{SL+t16}, v{T+12}, vcc")
                a(f"v_cndmask_b32 v{WT_+t16}, v{WT_+t16}, v{T+13}, vcc")
        a(f"v_max_i32 v{T+7}, v{SL}, v{SL+1}")
        a(f"v_cmp_le_i32 vcc, 0, v{T+7}")
        a("s_cmp_lg_u64 vcc, 0")
        a(f"s_cbranch_scc1 {name}_routed")
        a.label(f"{name}_routed_done")
        c = Asm()
        c.label(f"{name}_routed")
        c(f"s_lshl_b32 s{sT+8}, s{sJ}, 11")
        c(f"s_add_u32 s{sT+8}, s{sT+8}, {WS_YF}")
        c(f"v_lshlrev_b32 v{T+12}, 7, v{T}")
        c(f"v_add_u32 v{T+12}, s{sT+8}, v{T+12}")
        c(f"buffer_load_dword v{T+13}, v{T+12}, {srd(sWS)}, 0 offen sc1")
        c("s_waitcnt vmcnt(0)")
        poll_check(c, f"{name}_yp", T+13, T+12, sWS, 1, -1, cold)
        for t16 in range(2):
            lab = c.new_label(f"{name}_rt")
            c(f"v_cmp_le_i32 vcc, 0, v{SL+t16}")
            c(f"s_and_saveexec_b64 s[{sT+8}:{sT+9}], vcc")
            c(f"s_cbranch_execz {lab}")
            c(f"v_lshlrev_b32 v{T+12}, 1, v{T+5}")
            c(f"v_lshl_add_u32 v{T+12}, v{SL+t16}, 12, v{T+12}")
            c(f"v_add_u32 v{T+12}, {WS_Y}, v{T+12}")
            c(f"buffer_load_dwordx4 {vr(WB,4)}, v{T+12}, {srd(sWS)}, 0 offen sc1")
            c(f"buffer_load_dwordx4 {vr(WB+4,4)}, v{T+12}, {srd(sWS)}, 0 offen offset:16 sc1")
            c("s_waitcnt vmcnt(0)")
            for e in range(8):
                round_bf16(c, WB+e)
                c(f"v_mul_f32 v{WB+e}, v{WB+e}, v{WT_+t16}")
                round_bf16(c, WB+e)
                c(f"v_add_f32 v{G+8*t16+e}, v{G+8*t16+e}, v{WB+e}")
                round_bf16(c, G+8*t16+e)
            c.label(lab)
            c(f"s_mov_b64 exec, s[{sT+8}:{sT+9}]")
        c(f"s_branch {name}_routed_done")
        cold.append(c)
    for b in range(0, 16, 8):
        for e in range(8): a(f"v_mul_f32 v{T+6+e}, 0xbfb8aa3b, v{G+b+e}")
        for e in range(8): a(f"v_exp_f32 v{T+6+e}, v{T+6+e}")
        for e in range(8): a(f"v_add_f32 v{T+6+e}, 1.0, v{T+6+e}")
        for e in range(8): a(f"v_rcp_f32 v{T+6+e}, v{T+6+e}")
        for e in range(8): a(f"v_mul_f32 v{G+b+e}, v{G+b+e}, v{T+6+e}")
    a.trace(56)
    vm.drain()
    a.trace(57)
    a("s_barrier")
    a.trace(59)
    MASKC, NEEDC, RETC, GA, GB = 72, 73, 58, 62, 63
    def ready(o):
        o(f"s_lshr_b32 s{sT+10}, s{MASKC}, 1")
        o(f"s_and_b32 s{MASKC}, s{MASKC}, s{sT+10}")
        o(f"s_lshr_b32 s{sT+10}, s{MASKC}, 2")
        o(f"s_and_b32 s{MASKC}, s{MASKC}, s{sT+10}")
        o(f"s_and_b32 s{MASKC}, s{MASKC}, s{NEEDC}")
    c = Asm()
    c.label(f"{name}_ospin")
    c(f"s_mov_b32 s{sT+11}, 0")
    c.label(f"{name}_oagain")
    c(f"buffer_load_dword v{VPo}, v{VPa}, {srd(sWS)}, 0 offen sc1")
    c(f"s_add_u32 s{sT+11}, s{sT+11}, 1")
    c(f"s_cmp_gt_u32 s{sT+11}, {SPIN_LIMIT}")
    c(f"s_cselect_b32 s{MASKC}, s{NEEDC}, s{MASKC}")
    c(f"s_cbranch_scc1 {name}_oout")
    c("s_waitcnt vmcnt(0)")
    c(f"v_cmp_eq_u32 vcc, 1, v{VPo}")
    c(f"s_mov_b32 s{MASKC}, vcc_lo")
    ready(c)
    c(f"s_cbranch_scc0 {name}_oagain")
    c.label(f"{name}_oout")
    c(f"s_setpc_b64 s[{RETC}:{RETC+1}]")
    cold.append(c)
    a(f"v_cmp_eq_u32 vcc, 1, v{VPo}")
    a(f"s_mov_b32 s{MASKC}, vcc_lo")
    a(f"s_mov_b32 s{NEEDC}, 0x1111")
    ready(a)
    GID = 52
    def ogroup(g):
        lab = a.new_label(f"{name}_og")
        a(f"s_and_b32 s{MASKC}, s{MASKC}, s{NEEDC}")
        a(f"s_cbranch_scc1 {lab}")
        a(f"s_call_b64 s[{RETC}:{RETC+1}], {name}_ospin")
        a.label(lab)
        a(f"s_ff1_i32_b32 s{GA}, s{MASKC}")
        a(f"s_bitset0_b32 s{NEEDC}, s{GA}")
        a(f"s_lshr_b32 s{GA}, s{GA}, 2")
        a(f"s_add_u32 s{GA}, s{GA}, s{ROT}")
        a(f"s_and_b32 s{GID+g}, s{GA}, 3")
        a(f"s_lshl_b32 s{GA}, s{GID+g}, 12")
        a(f"s_add_u32 s{GB}, s{GA}, s{sOB}")
        a(f"s_add_u32 s{GA}, s{GA}, s{sOA}")
    def oload(i):
        if i % 4 == 0: ogroup(i // 4)
        for t16 in range(2):
            a(f"buffer_load_dwordx4 {vr(OB+8*(i%8)+4*t16,4)}, v{VL2}, {srd(sWS)}, s{(GA, GB)[t16]} offen offset:{(i%4)*1024}")
            vm.issue(f"O{i}")
    def wgroup(g):
        a(f"s_lshl_b32 s{sT}, s{GID+g}, 14")
        for ct in range(4): a(f"v_add_u32 v{WG+ct}, s{sT}, v{WA+ct}")
    def wreads(i):
        return [f"ds_read_b64_tr_b16 {vr(WB+16*(i&1)+4*ct+2*t_,2)}, v{WG+ct} offset:{(i%4)*4096+t_*1024}" for ct in range(4) for t_ in range(2)]
    a.trace(60)
    for i in range(4): oload(i)
    wgroup(0)
    a(*wreads(0))
    for i in range(4, 8): oload(i)
    a.trace(58)
    for i in range(16):
        if i < 15 and (i + 1) % 4 == 0: wgroup((i + 1) // 4)
        r = wreads(i+1) if i < 15 else []
        vm.wait(f"O{i}")
        a("s_waitcnt lgkmcnt(0)")
        if i == 0: a.trace(62)
        if i == 8: a.trace(63)
        k = 0
        for ct in range(4):
            for t16 in range(2):
                d = vr(ACC+16*t16+4*ct, 4)
                a(f"v_mfma_f32_16x16x32_bf16 {d}, {vr(WB+16*(i&1)+4*ct,4)}, {vr(OB+8*(i%8)+4*t16,4)}, {d if i else 0}")
                if r: a(r[k])
                k += 1
        if i + 8 < 16: oload(i+8)
    a.trace(61)
    EX = 131072
    a(f"s_lshl_b32 s{sT}, s{W}, 12")
    a(f"s_add_u32 s{sT}, s{sT}, {EX}")
    a(f"s_xor_b32 s{sT+1}, s{sT}, 16384")
    a(f"v_add_u32 v{T}, s{sT}, v{VL2}")
    a(f"v_add_u32 v{T+1}, s{sT+1}, v{VL2}")
    a(f"s_cmp_eq_u32 s{KH}, 0")
    a("s_nop 3")
    a(f"s_cbranch_scc1 {name}_ck0")
    for t16 in range(2):
        for cc in range(2): a(f"ds_write_b128 v{T}, {vr(ACC+16*t16+4*cc,4)} offset:{(2*t16+cc)*1024}")
    a("s_waitcnt lgkmcnt(0)")
    for t16 in range(2):
        for r in range(8): a(f"v_mov_b32 v{ACC+16*t16+r}, v{ACC+16*t16+8+r}")
    a(f"s_branch {name}_ckj")
    a.label(f"{name}_ck0")
    for t16 in range(2):
        for cc in range(2): a(f"ds_write_b128 v{T}, {vr(ACC+16*t16+8+4*cc,4)} offset:{(2*t16+cc)*1024}")
    a.label(f"{name}_ckj")
    a("s_waitcnt lgkmcnt(0)")
    a("s_barrier")
    for t16 in range(2):
        for cc in range(2): a(f"ds_read_b128 {vr(ACC+16*t16+8+4*cc,4)}, v{T+1} offset:{(2*t16+cc)*1024}")
    a(f"s_mov_b32 s{sT}, 32768")
    for t16 in range(2):
        b = ACC + 16*t16
        a(f"s_waitcnt lgkmcnt({2-2*t16})")
        for r in range(8): a(f"v_add_f32 v{b+r}, v{b+r}, v{b+8+r}")
        for r in range(4): a(f"v_permlane16_swap_b32 v{b+r}, v{b+4+r}")
        for e in range(8): a(f"v_fmac_f32 v{XF+8*t16+e}, v{b+e}, v{G+8*t16+e}")
        for p in range(4): a(f"v_cvt_pk_bf16_f32 v{XP+4*t16+p}, v{XF+8*t16+2*p}, v{XF+8*t16+2*p+1}")
        a(f"buffer_store_dwordx4 {vr(XP+4*t16,4)}, v{VX}, {srd(sOUT)}, {'0' if t16 == 0 else f's{sT}'} offen {'nt' if 's' in opt.get('nt', 'm') else ''}")
```

```python
A_X, A_WQKV, A_WO, A_BX, A_WR, A_WG, A_WU, A_WD, A_OUT, A_DBG, A_WS = [8*i for i in range(11)]
S, D, H, DH, F, C = 2048, 1024, 32, 32, 3584, 8
WS_XN  = 0x0000000; XN_BYTES  = S*D*2
WS_Q   = 0x0400000; Q_BYTES   = S*D*2
WS_KV  = 0x0800000; KV_BYTES  = S*D*4
WS_O   = 0x1000000; O_BYTES   = S*D*2
WS_R   = 0x1400000; R_BYTES   = S*4
WS_IDX = 0x1410000; IDX_BYTES = 64
WS_H   = 0x1420000; H_BYTES   = 8*F*2
WS_Y   = 0x1440000; Y_BYTES   = 8*D*4
WS_ST  = 0x1450000
WS_KVF = 0x1460000
WS_OF  = 0x1470000
WS_HF  = 0x1474000
WS_YF  = 0x147C000
WS_CSP = 0x1490000
WS_CSF = 0x14F0000
WS_TK  = 0x14F4000
WS_GU  = 0x1500000
WS_DBG = 0x14F8000
WS_USED = 0x1540000
```

```python
import os
from asmlib import *
from layout import *
from k_top8 import DPPS, make_keys, decode_keys
from k_attn import M32, M16
import k_attn2 as AT
from k_moe import pi_row, silu_bf16, round_bf16

QSCALE = 0x3e8293ee
sX, sWQ, sWS, sWR, sDBG, sWG, sWU, sWD, sWO, sOUT = 4, 8, 12, 16, 20, 24, 28, 32, 36, 40
sJ, sMT, sLI, sXC = 44, 45, 46, 47
sIDX, sWT = 48, 56
sT = 64
W = 3
SLOT, WOFF = 40960, 16384
L_Q, L_XS, L_MISC = 122880, 139264, 159744
L_M, L_RS, L_CS, L_CAND, L_IDX, L_H = L_MISC, L_MISC+512, L_MISC+1024, L_MISC+1792, L_MISC+1920, L_MISC+2048
L_ST, L_CNT = L_MISC+3072, L_MISC+3200
LDS_BYTES = 163840
SPIN_LIMIT = 400000
RKEY = 208

def srd(r): return f"s[{r}:{r+3}]"

def wsum(a, r, sdst, op="add_f32"):
    for ctl in DPPS:
        bc = " bound_ctrl:0" if ctl.startswith("row_shr") and op == "add_f32" else ""
        a("s_nop 1")
        a(f"v_{op}_dpp v{r}, v{r}, v{r} {ctl}{bc}")
    a("s_nop 0")
    a(f"v_readlane_b32 s{sdst}, v{r}, 63")
    a("s_nop 1")

def ln_rows2(a, vm, X, WR, XB, T, voff, dbg):
    R2 = range(2)
    F_ = lambda i, e: XB + 16*i + e
    T_ = lambda i, k: T + 6*i + k
    def wsum2(k, sd):
        for ctl in DPPS:
            bc = " bound_ctrl:0" if ctl.startswith("row_shr") else ""
            a("s_nop 0")
            for i in R2: a(f"v_add_f32_dpp v{T_(i,k)}, v{T_(i,k)}, v{T_(i,k)} {ctl}{bc}")
        a("s_nop 0")
        for i in R2: a(f"v_readlane_b32 s{sT+3*i+sd}, v{T_(i,k)}, 63")
        a("s_nop 0")
    for i in R2:
        for p in range(8):
            a(f"v_lshlrev_b32 v{F_(i,2*p)}, 16, v{X+8*i+p}")
            a(f"v_and_b32 v{F_(i,2*p+1)}, 0xffff0000, v{X+8*i+p}")
    for i in R2:
        a(f"v_add_f32 v{T_(i,0)}, v{F_(i,0)}, v{F_(i,1)}")
    for e in range(2, 16):
        for i in R2: a(f"v_add_f32 v{T_(i,0)}, v{T_(i,0)}, v{F_(i,e)}")
    a("s_nop 0")
    wsum2(0, 0)
    for i in R2:
        a(f"v_mov_b32 v{T_(i,0)}, s{sT+3*i}")
    for i in R2:
        a(f"v_mul_f32 v{T_(i,0)}, 0x3a800000, v{T_(i,0)}")
    for i in R2:
        a(f"v_sub_f32 v{T_(i,2)}, v{F_(i,0)}, v{T_(i,0)}")
        a(f"v_mul_f32 v{T_(i,1)}, v{T_(i,2)}, v{T_(i,2)}")
    for e in range(1, 16):
        for i in R2:
            a(f"v_sub_f32 v{T_(i,2)}, v{F_(i,e)}, v{T_(i,0)}")
            a(f"v_fmac_f32 v{T_(i,1)}, v{T_(i,2)}, v{T_(i,2)}")
    wsum2(1, 0)
    seq = lambda i: [
        f"v_mov_b32 v{T_(i,1)}, s{sT+3*i}",
        f"v_mul_f32 v{T_(i,1)}, 0x3a800000, v{T_(i,1)}",
        f"v_cvt_pk_bf16_f32 v{T_(i,2)}, v{T_(i,0)}, v{T_(i,1)}",
        f"v_lshlrev_b32 v{T_(i,0)}, 16, v{T_(i,2)}",
        f"v_and_b32 v{T_(i,1)}, 0xffff0000, v{T_(i,2)}",
        f"v_add_f32 v{T_(i,1)}, 0x3727c5ac, v{T_(i,1)}",
        f"v_cvt_pk_bf16_f32 v{T_(i,1)}, v{T_(i,1)}, v{T_(i,1)}",
        f"v_and_b32 v{T_(i,1)}, 0xffff0000, v{T_(i,1)}",
        f"v_sqrt_f32 v{T_(i,1)}, v{T_(i,1)}",
        f"v_readfirstlane_b32 s{sT+3*i}, v{T_(i,0)}",
        f"v_cvt_pk_bf16_f32 v{T_(i,1)}, v{T_(i,1)}, v{T_(i,1)}",
        f"v_and_b32 v{T_(i,1)}, 0xffff0000, v{T_(i,1)}",
        f"v_rcp_f32 v{T_(i,1)}, v{T_(i,1)}",
        f"v_mov_b32 v{T_(i,3)}, 0"]
    for x, y in zip(seq(0), seq(1)): a(x, y)
    for p in range(8):
        st = lambda i: [
            f"v_sub_f32 v{F_(i,2*p)}, v{F_(i,2*p)}, v{T_(i,0)}",
            f"v_sub_f32 v{F_(i,2*p+1)}, v{F_(i,2*p+1)}, v{T_(i,0)}",
            f"v_cvt_pk_bf16_f32 v{T_(i,2)}, v{F_(i,2*p)}, v{F_(i,2*p+1)}",
            f"v_lshlrev_b32 v{F_(i,2*p)}, 16, v{T_(i,2)}",
            f"v_and_b32 v{F_(i,2*p+1)}, 0xffff0000, v{T_(i,2)}",
            f"v_mul_f32 v{F_(i,2*p)}, v{F_(i,2*p)}, v{T_(i,1)}",
            f"v_mul_f32 v{F_(i,2*p+1)}, v{F_(i,2*p+1)}, v{T_(i,1)}",
            f"v_cvt_pk_bf16_f32 v{X+8*i+p}, v{F_(i,2*p)}, v{F_(i,2*p+1)}"]
        for x, y in zip(st(0), st(1)): a(x, y)
    for i in R2: a(f"v_readfirstlane_b32 s{sT+3*i+1}, v{T_(i,1)}")
    if dbg:
        for i in R2:
            a(f"buffer_store_dwordx4 {vr(X+8*i,4)}, v{voff}, {srd(sWS)}, 0 offen offset:{2048*i}")
            a(f"buffer_store_dwordx4 {vr(X+8*i+4,4)}, v{voff}, {srd(sWS)}, 0 offen offset:{2048*i+1024}")
    for p in range(8):
        for i in R2: a(f"v_dot2c_f32_bf16 v{T_(i,3)}, v{X+8*i+p}, v{WR+p}")
    a("s_nop 1")
    wsum2(3, 2)
    for i in R2: a(f"v_mov_b32 v{T_(i,0)}, s{sT+3*i+2}")
    for i in R2: a(f"v_cvt_pk_bf16_f32 v{T_(i,0)}, v{T_(i,0)}, v{T_(i,0)}")
    for i in R2: a(f"v_and_b32 v{T_(i,0)}, 0xffff0000, v{T_(i,0)}")
    a(f"v_mov_b32 v{T+1}, s{sT}")
    a(f"v_readfirstlane_b32 s{sT+2}, v{T_(0,0)}")
    a(f"v_readfirstlane_b32 s{sT+5}, v{T_(1,0)}")
    a(f"v_lshlrev_b32 v{T+2}, 5, v0")
    a(f"s_lshl_b32 s{sT+6}, s{W}, 3")
    a(f"s_add_u32 s{sT+6}, s{sT+6}, {L_ST}")
    a(f"v_add_u32 v{T+2}, s{sT+6}, v{T+2}")
    for l in range(1, 6): a(f"v_writelane_b32 v{T+1}, s{sT+l}, {l}")
    for l in range(3):
        a(f"s_add_u32 s{sT+7}, s{sT+6}, {l*32+4}")
        a(f"v_writelane_b32 v{T+2}, s{sT+7}, {3+l}")
    a("s_mov_b64 exec, 63")
    a(f"ds_write_b32 v{T+2}, v{T+1}")
    a("s_mov_b64 exec, -1")

def rec_of(a, d):
    a(f"s_lshl_b32 s{d}, s{sMT}, 4")
    a(f"s_add_u32 s{d}, s{d}, s{sJ}")

def publish_stats(a, vm, T):
    A_, D_, U_ = T, T+1, T+2
    t = sT
    a(f"v_lshlrev_b32 v{U_}, 2, v0")
    a(f"v_add_u32 v{A_}, {L_ST}, v{U_}")
    a(f"ds_read_b32 v{D_}, v{A_}")
    rec_of(a, t)
    a(f"s_lshl_b32 s{t}, s{t}, 7")
    a(f"s_add_u32 s{t}, s{t}, {WS_ST}")
    a(f"v_add_u32 v{A_}, s{t}, v{U_}")
    rec_of(a, t)
    a(f"s_lshl_b32 s{t}, s{t}, 5")
    a(f"s_add_u32 s{t}, s{t}, {WS_R - 64}")
    a(f"v_cmp_le_u32 vcc, 16, v0")
    a(f"v_add_u32 v{U_}, s{t}, v{U_}")
    a("s_nop 0")
    a(f"v_cndmask_b32 v{A_}, v{A_}, v{U_}, vcc")
    a(f"s_lshl_b32 s{t}, s{sJ}, 5")
    a(f"s_add_u32 s{t}, s{t}, s{sMT}")
    a(f"s_lshl_b32 s{t}, s{t}, 7")
    a(f"s_add_u32 s{t}, s{t}, {WS_KVF}")
    a(f"v_bfe_u32 v{U_}, v0, 2, 1")
    a(f"v_lshlrev_b32 v{U_}, 11, v{U_}")
    a(f"v_and_b32 v{U_+1}, 3, v0")
    a(f"v_lshl_add_u32 v{U_}, v{U_+1}, 2, v{U_}")
    a(f"v_add_u32 v{U_}, s{t}, v{U_}")
    a(f"v_cmp_le_u32 vcc, 24, v0")
    a(f"s_lshl_b32 s{t}, s{sMT}, 3")
    a(f"s_lshr_b32 s{t+1}, s{sJ}, 3")
    a(f"v_cndmask_b32 v{A_}, v{A_}, v{U_}, vcc")
    a(f"s_add_u32 s{t}, s{t}, s{t+1}")
    a(f"s_lshl_b32 s{t}, s{t}, 7")
    a(f"s_and_b32 s{t+1}, s{sJ}, 7")
    a(f"s_lshl_b32 s{t+1}, s{t+1}, 3")
    a(f"s_add_u32 s{t}, s{t}, s{t+1}")
    a(f"s_add_u32 s{t}, s{t}, {WS_OF}")
    a(f"v_bfe_u32 v{U_}, v0, 1, 2")
    a(f"v_lshlrev_b32 v{U_}, 8, v{U_}")
    a(f"v_and_b32 v{U_+1}, 1, v0")
    a(f"v_lshl_add_u32 v{U_}, v{U_+1}, 2, v{U_}")
    a(f"v_add_u32 v{U_}, s{t}, v{U_}")
    a(f"v_cmp_le_u32 vcc, 32, v0")
    yf_addr(a, t, t+1)
    a(f"v_cndmask_b32 v{A_}, v{A_}, v{U_}, vcc")
    hf_addr(a, t+1)
    a(f"s_cmp_lt_u32 s{sLI}, 28")
    a(f"s_cselect_b32 s{t+1}, s{t+1}, s{t}")
    a(f"v_writelane_b32 v{A_}, s{t}, 40")
    a(f"v_writelane_b32 v{A_}, s{t+1}, 41")
    csf_addr(a, t, t+1)
    a(f"v_writelane_b32 v{A_}, s{t}, 42")
    a(f"v_cmp_gt_u32 vcc, 24, v0")
    a("s_waitcnt lgkmcnt(0)")
    a(f"s_lshl_b32 s{t}, s2, 7")
    a(f"v_cndmask_b32 v{D_}, 0, v{D_}, vcc")
    a("s_bfm_b64 exec, 43, 0")
    a(f"buffer_store_dword v{D_}, v{A_}, {srd(sWS)}, 0 offen sc1")
    a("s_mov_b64 exec, -1")
    a(f"s_add_u32 s{t}, s{t}, {WS_Y}")
    for r in range(4): a(f"v_mov_b32 v{T+4+r}, 0")
    a("s_mov_b64 exec, 0xff")
    a(f"buffer_store_dwordx4 {vr(T+4,4)}, v94, {srd(sWS)}, s{t} offen sc1")
    a(f"s_mul_i32 s{t}, s2, 896")
    a(f"s_add_u32 s{t}, s{t}, {WS_GU}")
    a("s_bfm_b64 exec, 56, 0")
    a(f"buffer_store_dwordx4 {vr(T+4,4)}, v94, {srd(sWS)}, s{t} offen sc1")
    a("s_mov_b64 exec, -1")
    vm.issue("st", 3, cond=True)

def csf_addr(a, d, t):
    a(f"s_lshl_b32 s{d}, s{sJ}, 5")
    a(f"s_add_u32 s{d}, s{d}, s{sMT}")
    a(f"s_lshl_b32 s{d}, s{d}, 2")
    a(f"s_add_u32 s{d}, s{d}, {WS_CSF}")
def kvf_addr(a, d, t):
    a(f"s_bfe_u32 s{t}, s{W}, 0x10001")
    a(f"s_lshl_b32 s{d}, s{sJ}, 1")
    a(f"s_add_u32 s{d}, s{d}, s{t}")
    a(f"s_lshl_b32 s{d}, s{d}, 4")
    a(f"s_add_u32 s{d}, s{d}, s{sMT}")
    a(f"s_lshl_b32 s{d}, s{d}, 5")
    a(f"s_and_b32 s{t}, s{W}, 1")
    a(f"s_add_u32 s{d}, s{d}, s{t}")
    a(f"s_lshl_b32 s{d}, s{d}, 2")
    a(f"s_add_u32 s{d}, s{d}, {WS_KVF}")
def otile(a, d, t):
    a(f"s_lshl_b32 s{d}, s{sMT}, 2")
    a(f"s_and_b32 s{t}, s{W}, 2")
    a(f"s_add_u32 s{d}, s{d}, s{t}")
    a(f"s_lshr_b32 s{t}, s{W}, 2")
    a(f"s_add_u32 s{d}, s{d}, s{t}")
def head_of(a, d, t):
    a(f"s_lshl_b32 s{d}, s{sJ}, 1")
    a(f"s_and_b32 s{t}, s{W}, 1")
    a(f"s_add_u32 s{d}, s{d}, s{t}")
def of_addr(a, d, t):
    otile(a, d, t)
    a(f"s_lshl_b32 s{d}, s{d}, 1")
    a(f"s_lshr_b32 s{t}, s{sJ}, 3")
    a(f"s_add_u32 s{d}, s{d}, s{t}")
    a(f"s_lshl_b32 s{d}, s{d}, 5")
    a(f"s_and_b32 s{t}, s{sJ}, 7")
    a(f"s_lshl_b32 s{t}, s{t}, 1")
    a(f"s_add_u32 s{d}, s{d}, s{t}")
    a(f"s_and_b32 s{t}, s{W}, 1")
    a(f"s_add_u32 s{d}, s{d}, s{t}")
    a(f"s_lshl_b32 s{d}, s{d}, 2")
    a(f"s_add_u32 s{d}, s{d}, {WS_OF}")
def cg_of(a, d):
    a(f"s_mul_i32 s{d}, s{sXC}, 28")
    a(f"s_add_u32 s{d}, s{d}, s{sLI}")
def hf_addr(a, d):
    cg_of(a, d)
    a(f"s_lshl_b32 s{d}, s{d}, 7")
    a(f"s_add_u32 s{d}, s{d}, {WS_HF}")
def yf_addr(a, d, t):
    a(f"s_and_b32 s{d}, s2, 15")
    a(f"s_lshl_b32 s{d}, s{d}, 4")
    a(f"s_lshr_b32 s{t}, s2, 4")
    a(f"s_add_u32 s{d}, s{d}, s{t}")
    a(f"s_lshl_b32 s{d}, s{d}, 7")
    a(f"s_add_u32 s{d}, s{d}, {WS_YF}")

def poll_check(a, name, vreg, vaddr, s_srd, want, mask, cold):
    lab = a.new_label(name)
    def cmp(o):
        o(f"v_cmp_gt_u32 vcc, {want}, v{vreg}" if want != 1 else f"v_cmp_ne_u32 vcc, 1, v{vreg}")
        if mask != -1:
            o(f"s_and_b32 vcc_lo, vcc_lo, {mask & 0xffffffff:#x}")
            o(f"s_and_b32 vcc_hi, vcc_hi, {(mask >> 32) & 0xffffffff:#x}")
        o("s_cmp_lg_u64 vcc, 0")
    cmp(a)
    a(f"s_cbranch_scc1 {lab}_spin")
    a.label(f"{lab}_ok")
    c = Asm()
    c.label(f"{lab}_spin")
    c(f"s_mov_b32 s{sT+11}, 0")
    c.label(f"{lab}_again")
    c(f"buffer_load_dword v{vreg}, v{vaddr}, {srd(s_srd)}, 0 offen sc1")
    c(f"s_add_u32 s{sT+11}, s{sT+11}, 1")
    c(f"s_cmp_gt_u32 s{sT+11}, {SPIN_LIMIT}")
    c(f"s_cbranch_scc1 {lab}_ok")
    c("s_waitcnt vmcnt(0)")
    cmp(c)
    c(f"s_cbranch_scc1 {lab}_again")
    c(f"s_branch {lab}_ok")
    cold.append(c)

def top8_round(a, keys, T, cand, st, rnd):
    n = len(keys)
    if rnd == 0: a(f"s_mov_b32 s{st}, -1")
    for e in range(n):
        a(f"v_sub_u32 v{T+e}, s{st}, v{keys[e]}")
    e = 1
    while e + 1 < n:
        a(f"v_min3_u32 v{T}, v{T}, v{T+e}, v{T+e+1}")
        e += 2
    if e < n: a(f"v_min_u32 v{T}, v{T}, v{T+e}")
    wsum(a, T, st+1, "min_u32")
    a(f"s_sub_u32 s{st}, s{st}, s{st+1}")
    a(f"v_writelane_b32 v{cand}, s{st}, {rnd}")
    a(f"s_sub_u32 s{st}, s{st}, 1")

def prologue(a, name, opt):
    a("s_cmp_ge_u32 s2, 256")
    a(f"s_cbranch_scc1 {name}_done")
    a.stamp_init(); a.stamp(0)
    if opt.get("dbgtime"): a("s_memrealtime s[96:97]")
    for r, off in ((sX, A_X), (sWQ, A_WQKV), (sWS, A_WS), (sWR, A_WR), (sDBG, A_DBG), (sWG, A_WG), (sWU, A_WU),
                   (sWD, A_WD), (sWO, A_WO), (sOUT, A_OUT)):
        a(f"s_load_dwordx2 s[{r}:{r+1}], s[0:1], {off}")
    a("v_lshrrev_b32 v1, 6, v0")
    a("v_and_b32 v0, 63, v0")
    a(f"v_readfirstlane_b32 s{W}, v1")
    a(f"s_and_b32 s{sXC}, s2, 7")
    a(f"s_lshr_b32 s{sLI}, s2, 3")
    a(f"s_and_b32 s{sMT}, s{sXC}, 1")
    a(f"s_lshl_b32 s{sMT}, s{sMT}, 3")
    a(f"s_and_b32 s{sT}, s{sLI}, 7")
    a(f"s_add_u32 s{sMT}, s{sMT}, s{sT}")
    a(f"s_lshr_b32 s{sJ}, s{sXC}, 1")
    a(f"s_lshl_b32 s{sJ}, s{sJ}, 2")
    a(f"s_lshr_b32 s{sT}, s{sLI}, 3")
    a(f"s_add_u32 s{sJ}, s{sJ}, s{sT}")
    a(f"s_lshl_b32 s{sT+3}, s{sMT}, 4")
    a(f"s_add_u32 s{sT+3}, s{sT+3}, s{sJ}")
    a(f"s_lshl_b32 s{sT+3}, s{sT+3}, 2")
    a(f"s_add_u32 s{sT+3}, s{sT+3}, s{W}")
    a(f"s_lshl_b32 s{sT}, s{sT+3}, 12")
    a("v_lshlrev_b32 v94, 4, v0")
    a(f"v_add_u32 v95, s{sT}, v94")
    for r, n in ((sX, S*D*2), (sWQ, D*3*D*2), (sWS, WS_USED), (sWR, D*2), (sDBG, 256), (sWG, D*F*2), (sWU, D*F*2),
                 (sWD, D*F*2), (sWO, D*D*2), (sOUT, S*D*2)):
        a(f"s_mov_b32 s{r+2}, {n:#x}")
        a(f"s_mov_b32 s{r+3}, 0x00020000")

def phaseA_loader(a, name, cold, opt):
    vm = VM(a)
    LW, XB_, WB_, SX, SW = 48, 49, 50, 51, 52
    a(f"s_sub_u32 s{LW}, s{W}, 4")
    a("v_lshrrev_b32 v16, 3, v0")
    a("v_and_b32 v17, 7, v0")
    a(f"s_lshl_b32 s{sT}, s{sMT}, 7")
    a(f"s_lshl_b32 s{sT+1}, s{LW}, 5")
    a(f"s_add_u32 s{sT}, s{sT}, s{sT+1}")
    a(f"v_add_u32 v18, s{sT}, v16")
    a("v_lshlrev_b32 v18, 11, v18")
    a("v_lshrrev_b32 v19, 1, v16")
    a("v_xor_b32 v20, v19, v17")
    a("v_lshl_add_u32 v1, v20, 4, v18")
    a("v_xor_b32 v20, 4, v20")
    a("v_lshl_add_u32 v2, v20, 4, v18")
    a(f"v_add_u32 v2, {8*2048}, v2")
    a(f"v_add_u32 v3, {16*2048}, v1")
    a(f"v_add_u32 v4, {16*2048}, v2")
    a(f"s_lshl_b32 s{sT}, s{LW}, 4")
    a(f"v_add_u32 v18, s{sT}, v16")
    a("v_mul_u32_u24 v18, 6144, v18")
    a(f"s_lshl_b32 s{sT}, s{sJ}, 7")
    a(f"v_add_u32 v18, s{sT}, v18")
    a("v_bfe_u32 v19, v0, 4, 1")
    a("v_lshlrev_b32 v19, 1, v19")
    a("v_xor_b32 v19, v19, v17")
    a("v_lshl_add_u32 v5, v19, 4, v18")
    a("v_xor_b32 v19, 4, v19")
    a("v_lshl_add_u32 v6, v19, 4, v18")
    a(f"v_add_u32 v6, {8*6144}, v6")
    a(f"s_lshl_b32 s{XB_}, s{LW}, 12")
    a(f"s_lshl_b32 s{WB_}, s{LW}, 11")
    KR = 56
    SH = 57
    a(f"s_and_b32 s{KR}, s{sMT}, 3")
    a(f"s_lshl_b32 s{KR}, s{KR}, 2")
    a(f"s_lshr_b32 s{SH}, s{sMT}, 2")
    nt = lambda k: "nt" if k in opt.get("nt", "m") else ""
    def issue(kt, atoms=()):
        slot = (kt % 3) * SLOT
        atoms = list(atoms)
        a(f"s_and_b32 s{KR}, s{KR}, 15")
        a(f"s_lshl_b32 s{SX}, s{KR}, 7")
        a(f"s_mul_i32 s{SW}, s{KR}, {64*6144}")
        a(f"s_add_u32 s{SW+1}, s{SW}, 2048")
        a(f"s_add_u32 s{SW+2}, s{SW}, 4096")
        a(f"s_add_u32 s{KR}, s{KR}, 1")
        d = [(f"s_add_u32 m0, s{XB_}, {slot + i*1024}", f"buffer_load_dwordx4 v{1+i}, {srd(sX)}, s{SX} offen {nt('x')} lds") for i in range(4)]
        d += [(f"s_add_u32 m0, s{WB_}, {slot + WOFF + seg*8192 + i*1024}", f"buffer_load_dwordx4 v{5+i}, {srd(sWQ)}, s{SW+seg} offen {nt('w')} lds")
              for seg in range(3) for i in range(2)]
        k = 0
        for i, (m, ld) in enumerate(d):
            if not (opt.get("noload") and kt > 2):
                a(m); a("s_nop 0"); a(ld)
                vm.issue(f"T{kt}")
            k2 = (i + 1) * len(atoms) // len(d)
            for at in atoms[k:k2]: at()
            k = k2
    a("s_waitcnt lgkmcnt(0)")
    a.stamp(4)
    issue(0); issue(1)
    a.stamp(5)
    a("v_lshrrev_b32 v16, 4, v0")
    a("v_bfe_u32 v17, v0, 2, 2")
    a("v_lshl_add_u32 v17, v16, 3, v17")
    a("v_lshlrev_b32 v17, 7, v17")
    a("v_and_b32 v18, 3, v0")
    a("v_lshl_add_u32 v17, v18, 3, v17")
    a("v_and_b32 v16, 1, v16")
    a("v_lshlrev_b32 v16, 1, v16")
    a("v_bfe_u32 v18, v0, 3, 1")
    a("v_or_b32 v16, v16, v18")
    a(f"s_and_b32 s{sT}, s{LW}, 1")
    a(f"s_lshl_b32 s{sT}, s{sT}, 1")
    a(f"v_xor_b32 v16, s{sT}, v16")
    a("v_lshl_add_u32 v17, v16, 5, v17")
    a(f"s_lshr_b32 s{sT}, s{LW}, 1")
    a(f"s_lshl_b32 s{sT}, s{sT}, 12")
    a(f"s_add_u32 s{sT}, s{sT}, {WOFF}")
    a(f"s_cmp_eq_u32 s{SH}, 3")
    a(f"s_cselect_b32 s{sT+1}, 0, s{SH}")
    a(f"s_mul_i32 s{sT+1}, s{sT+1}, {SLOT}")
    a(f"s_add_u32 s{sT}, s{sT}, s{sT+1}")
    a(f"v_add_u32 v10, s{sT}, v17")
    a("v_xor_b32 v11, 32, v10")
    for c in range(6): a(f"v_mov_b32 v{60+c}, 0")
    a("v_mov_b32 v16, 0\nv_mov_b32 v17, 0\nv_mov_b32 v18, 0\nv_mov_b32 v19, 0")
    a(f"v_add_u32 v20, {L_CS}, v94")
    a("ds_write_b128 v20, v[16:19]")
    a("ds_write_b128 v20, v[16:19] offset:1024")
    ONES = 55
    a(f"s_mov_b32 s{ONES}, 0x3f803f80")
    if opt.get("lprio", 1): a(f"s_setprio {opt.get('lprio', 1)}")
    KEY, TT, CAND = 28, 36, 44
    ST = sT
    keys = list(range(KEY, KEY+8))
    a("s_waitcnt lgkmcnt(0)")
    vm.wait("T0")
    a("s_barrier")
    a.stamp(1)
    assert opt.get("p0", 8) <= 8
    P0 = opt.get("p0", 7)
    cb = Asm()
    cb.label(f"{name}_colsum")
    for c in range(6):
        for t_ in range(2):
            cb(f"ds_read_b64_tr_b16 {vr(68+4*c+2*t_,2)}, v{10+(c&1)} offset:{(c>>1)*8192+t_*512}")
    for hf in range(2):
        cb(f"s_waitcnt lgkmcnt({6-6*hf})")
        for q in range(4):
            for c in range(3*hf, 3*hf+3):
                cb(f"v_dot2c_f32_bf16 v{60+c}, s{ONES}, v{68+4*c+q}")
    cb("s_nop 2")
    cb("v_permlane32_swap_b32 v60, v62")
    cb("v_permlane32_swap_b32 v61, v63")
    cb("v_permlane16_swap_b32 v64, v65")
    cb("v_add_f32 v60, v60, v62")
    cb("v_add_f32 v61, v61, v63")
    cb("v_add_f32 v64, v64, v65")
    cb("s_nop 0")
    cb("v_mov_b32 v65, v64")
    cb("v_permlane16_swap_b32 v60, v61")
    cb("s_nop 0")
    cb("v_permlane32_swap_b32 v64, v65")
    cb("v_add_f32 v60, v60, v61")
    cb("v_add_f32 v64, v64, v65")
    cb(f"s_lshl_b32 s{sT}, s{sJ}, 4")
    cb(f"s_add_u32 s{sT}, s{sT}, s{sMT}")
    cb(f"s_lshl_b32 s{sT}, s{sT}, 2")
    cb(f"s_add_u32 s{sT}, s{sT}, s{LW}")
    cb(f"s_mul_i32 s{sT}, s{sT}, 384")
    cb(f"s_add_u32 s{sT}, s{sT}, {WS_CSP}")
    cb("v_lshlrev_b32 v47, 2, v0")
    cb(f"buffer_store_dword v60, v47, {srd(sWS)}, s{sT} offen sc1")
    cb("s_bfm_b64 exec, 32, 0")
    cb(f"buffer_store_dword v64, v47, {srd(sWS)}, s{sT} offen offset:256 sc1")
    cb("s_mov_b64 exec, -1")
    cb("s_setpc_b64 s[70:71]")
    cold.append(cb)
    def lines(fn):
        tmp = Asm(); tmp.uid = a.uid; fn(tmp); a.uid = tmp.uid
        out, grp = [], None
        for l in tmp.lines:
            s_ = l.strip()
            if grp is not None:
                grp.append(s_)
                if s_ == "s_mov_b64 exec, -1": out.append(grp); grp = None
            elif ("exec," in s_ and s_ != "s_mov_b64 exec, -1") or "saveexec" in s_: grp = [s_]
            else: out.append([s_])
        assert grp is None
        return [(lambda g=g: a(*g)) for g in out]
    def cs_load(i):
        def f():
            a(f"s_mul_i32 s{sT+2}, s{sJ}, {32*768}")
            a(f"s_mul_i32 s{sT+3}, s{LW}, 192")
            a(f"s_add_u32 s{sT+2}, s{sT+2}, s{sT+3}")
            a(f"s_add_u32 s{sT+2}, s{sT+2}, {WS_CSP + (i//4)*4*768}")
            a(f"buffer_load_dwordx4 {vr(60+4*i,4)}, v51, {srd(sWS)}, s{sT+2} offen offset:{(i%4)*768} sc1")
            vm.issue("csl")
        return f
    for kt in range(16):
        atoms = []
        if kt == 0:
            a(f"s_cmp_lg_u32 s{W}, 4")
            a(f"s_cbranch_scc1 {name}_nopub")
            publish_stats(a, vm, 96)
            a.label(f"{name}_nopub")
        if kt < 4:
            lab = a.new_label(f"{name}_cs")
            a(f"s_cmp_lg_u32 s{SH}, {kt}")
            a(f"s_cbranch_scc1 {lab}")
            a(f"s_call_b64 s[70:71], {name}_colsum")
            a.label(lab)
            vm.issue("cs", 2, cond=True)
        if 2 <= kt < 6:
            lab = a.new_label(f"{name}_cf")
            a(f"s_add_u32 s{sT}, s{SH}, 2")
            a(f"s_cmp_lg_u32 s{sT}, {kt}")
            a(f"s_cbranch_scc1 {lab}")
            a(f"s_cmp_lg_u32 s{W}, 4")
            a(f"s_cbranch_scc1 {lab}")
            csf_addr(a, sT, sT+1)
            a(f"v_mov_b32 v45, s{sT}")
            a("v_mov_b32 v46, 1")
            a("s_mov_b64 exec, 1")
            a(f"buffer_store_dword v46, v45, {srd(sWS)}, 0 offen sc1")
            a("s_mov_b64 exec, -1")
            a.label(lab)
            vm.issue("csf", 1, cond=True)
        if kt == 2:
            a(f"s_cmp_lg_u32 s{W}, 4")
            a(f"s_cbranch_scc1 {name}_nosig")
            a(f"s_lshl_b32 s{sT}, s{sMT}, 4")
            a(f"v_mov_b32 v45, s{sT}")
            a("v_mov_b32 v46, 1")
            a("s_mov_b64 exec, 1")
            a(f"buffer_atomic_add v46, v45, {srd(sDBG)}, 0 offen sc1")
            a("s_mov_b64 exec, -1")
            a.label(f"{name}_nosig")
            vm.issue("sig", 1, cond=True)
        if kt == P0:
            a("v_and_b32 v45, 15, v0")
            a("v_lshlrev_b32 v45, 4, v45")
            a(f"buffer_load_dword v46, v45, {srd(sDBG)}, 0 offen sc1")
            vm.issue("poll")
        if kt == P0 + 1:
            poll_check(a, f"{name}_p1", 46, 45, sDBG, 16, -1, cold)
            a(f"s_lshl_b32 s{sT}, s{LW}, 11")
            a(f"s_add_u32 s{sT}, s{sT}, {WS_R}")
            a(f"buffer_load_dwordx4 {vr(KEY,4)}, v94, {srd(sWS)}, s{sT} offen sc1")
            a(f"buffer_load_dwordx4 {vr(KEY+4,4)}, v94, {srd(sWS)}, s{sT} offen offset:1024 sc1")
            a(f"s_lshl_b32 s{sT}, s{sMT}, 11")
            a(f"s_and_b32 s{sT+1}, s{LW}, 1")
            a(f"s_lshl_b32 s{sT+1}, s{sT+1}, 10")
            a(f"s_add_u32 s{sT}, s{sT}, s{sT+1}")
            a(f"s_add_u32 s{sT}, s{sT}, {WS_ST}")
            a("v_lshrrev_b32 v47, 3, v0")
            a("v_lshlrev_b32 v47, 7, v47")
            a("v_and_b32 v48, 7, v0")
            a("v_lshl_add_u32 v47, v48, 2, v47")
            a(f"buffer_load_dword v48, v47, {srd(sWS)}, s{sT} offen sc1")
            a(f"buffer_load_dword v49, v47, {srd(sWS)}, s{sT} offen offset:32 sc1")
            vm.issue("side", 4)
        if kt == 9:
            a(f"s_lshl_b32 s{sT}, s{sJ}, 7")
            a(f"s_add_u32 s{sT}, s{sT}, {WS_CSF}")
            a("v_and_b32 v52, 15, v0")
            a("v_lshlrev_b32 v52, 2, v52")
            a(f"v_add_u32 v52, s{sT}, v52")
            a(f"buffer_load_dword v53, v52, {srd(sWS)}, 0 offen sc1")
            vm.issue("poll")
            def f(o):
                o("v_and_b32 v51, 15, v0")
                o("v_cmp_gt_u32 vcc, 12, v51")
                o("v_lshlrev_b32 v51, 4, v51")
                o("v_lshrrev_b32 v50, 4, v0")
                o("v_mul_u32_u24 v50, 8*768, v50")
                o("v_add_u32 v51, v51, v50")
                o("v_mov_b32 v50, 0x7fff0000")
                o("v_cndmask_b32 v51, v50, v51, vcc")
            atoms += lines(f)
        if kt == 10: poll_check(a, f"{name}_p2", 53, 52, sWS, 1, -1, cold)
        if 10 <= kt <= 13:
            i0 = 2*(kt - 10)
            atoms += [cs_load(i0), cs_load(i0+1)]
        if kt == P0 + 2:
            def f(o):
                o(f"s_and_b32 s{sT}, s{LW}, 1")
                o(f"s_lshl_b32 s{sT}, s{sT}, 8")
                o(f"s_add_u32 s{sT}, s{sT}, {L_M}")
                o("v_lshlrev_b32 v47, 2, v0")
                o(f"v_add_u32 v47, s{sT}, v47")
                o("ds_write_b32 v47, v48")
                o("ds_write_b32 v47, v49 offset:512")
                o(f"s_lshl_b32 s{sT}, s{LW}, 9")
                o("v_lshlrev_b32 v47, 2, v0")
                o(f"v_add_u32 v47, s{sT}, v47")
                make_keys(o, KEY, TT, 47, [0, 1, 2, 3, 256, 257, 258, 259])
                o(f"v_mov_b32 v{CAND}, 0")
                top8_round(o, keys, TT, CAND, ST, 0)
            atoms += lines(f)
        if kt == P0 + 3: atoms += lines(lambda o: [top8_round(o, keys, TT, CAND, ST, r) for r in (1, 2)])
        if kt == P0 + 4: atoms += lines(lambda o: [top8_round(o, keys, TT, CAND, ST, r) for r in (3, 4, 5)])
        if kt == P0 + 5:
            def f(o):
                for r in (6, 7): top8_round(o, keys, TT, CAND, ST, r)
                o(f"s_lshl_b32 s{sT}, s{LW}, 5")
                o(f"s_add_u32 s{sT}, s{sT}, {L_CAND}")
                o("v_lshlrev_b32 v47, 2, v0")
                o(f"v_add_u32 v47, s{sT}, v47")
                o("s_mov_b64 exec, 0xff")
                o(f"ds_write_b32 v47, v{CAND}")
                o("s_mov_b64 exec, -1")
            atoms += lines(f)
        if kt == P0 + 6:
            def f(o):
                o("v_and_b32 v47, 31, v0")
                o("v_lshlrev_b32 v47, 2, v47")
                o(f"v_add_u32 v47, {L_CAND}, v47")
                o(f"ds_read_b32 v{KEY}, v47")
                o("v_cmp_gt_u32 vcc, 32, v0")
                o("s_waitcnt lgkmcnt(0)")
                o(f"v_cndmask_b32 v{KEY}, 0, v{KEY}, vcc")
                for r in range(4): top8_round(o, [KEY], TT, CAND, ST, r)
            atoms += lines(f)
        if kt == P0 + 7:
            def f(o):
                for r in range(4, 8): top8_round(o, [KEY], TT, CAND, ST, r)
                decode_keys(o, CAND, 48, 49, TT)
                o("v_lshlrev_b32 v47, 2, v0")
                o(f"v_add_u32 v47, {L_IDX}, v47")
                o("s_mov_b64 exec, 0xff")
                o("ds_write_b32 v47, v48")
                o("ds_write_b32 v47, v49 offset:32")
                if opt.get("dbg"):
                    o(f"s_mov_b32 s{sT}, {WS_IDX}")
                    o("v_lshlrev_b32 v47, 2, v0")
                    o(f"buffer_store_dword v48, v47, {srd(sWS)}, s{sT} offen")
                    o(f"buffer_store_dword v49, v47, {srd(sWS)}, s{sT} offen offset:32")
                o("s_mov_b64 exec, -1")
            atoms += lines(f)
            if opt.get("dbg"): vm.issue("dbg", 2)
        if kt == 15:
            vm.wait("csl")
            for i in range(1, 8):
                for r in range(4): a(f"v_add_f32 v{60+r}, v{60+r}, v{60+4*i+r}")
            a("s_nop 1")
            a("v_permlane32_swap_b32 v60, v62")
            a("v_permlane32_swap_b32 v61, v63")
            a("v_add_f32 v60, v60, v62")
            a("v_add_f32 v61, v61, v63")
            a("s_nop 1")
            a("v_permlane16_swap_b32 v60, v61")
            a("v_add_f32 v60, v60, v61")
            a("v_and_b32 v47, 15, v0")
            a("v_cmp_gt_u32 vcc, 12, v47")
            a("v_lshlrev_b32 v47, 4, v47")
            a("v_lshrrev_b32 v50, 4, v0")
            a("v_lshl_add_u32 v47, v50, 2, v47")
            a(f"s_mul_i32 s{sT}, s{LW}, 192")
            a(f"s_add_u32 s{sT}, s{sT}, {L_CS}")
            a(f"v_add_u32 v47, s{sT}, v47")
            a("s_and_saveexec_b64 s[66:67], vcc")
            a("ds_write_b32 v47, v60")
            a("s_mov_b64 exec, -1")
        if kt <= 13: issue(kt+2, atoms)
        else:
            for at in atoms: at()
        a("s_waitcnt lgkmcnt(0)")
        a.trace(3*kt+1)
        if kt < 15: vm.wait(f"T{kt+1}", "poll", "side", *(["st"] if kt == 1 else []))
        a.trace(3*kt+2)
        a("s_barrier")
        a.trace(3*kt+3)
    a(f"s_lshl_b32 s{sT}, s{LW}, 13")
    a(f"v_add_u32 v2, s{sT}, v94")
    a(f"s_lshl_b32 s{sT+1}, s{sJ}, 1")
    a(f"s_lshr_b32 s{sT+2}, s{LW}, 1")
    a(f"s_add_u32 s{sT+1}, s{sT+1}, s{sT+2}")
    a(f"s_lshl_b32 s{sT+1}, s{sT+1}, 5")
    a(f"s_lshl_b32 s{sT+2}, s{sMT}, 1")
    a(f"s_add_u32 s{sT+1}, s{sT+1}, s{sT+2}")
    a(f"s_and_b32 s{sT+2}, s{LW}, 1")
    a(f"s_add_u32 s{sT+1}, s{sT+1}, s{sT+2}")
    a(f"s_lshl_b32 s{sT+1}, s{sT+1}, 13")
    a(f"s_add_u32 s{sT+1}, s{sT+1}, {WS_KV}")
    a(f"s_add_u32 s{sT+2}, s{sT+1}, 4096")
    a("s_barrier")
    for q in range(8): a(f"ds_read_b128 {vr(96+4*q,4)}, v2 offset:{q*1024}")
    for q in range(8):
        a(f"s_waitcnt lgkmcnt({7-q})")
        a(f"buffer_store_dwordx4 {vr(96+4*q,4)}, v94, {srd(sWS)}, s{sT+1+(q>>2)} offen offset:{(q&3)*1024} sc1")
    return vm

ACC, B0 = 96, 8
def accreg(ct, tt): return ACC + 16*ct + 4*tt

def phaseA_consumer(a, name, cold, opt):
    vm = VM(a)
    XA, WA = 1, 3
    a("s_waitcnt lgkmcnt(0)")
    a.stamp(4)
    for q in range(4):
        a(f"buffer_load_dwordx4 {vr(96+4*q,4)}, v95, {srd(sX)}, 0 offen offset:{q*1024} {'nt' if 'l' in opt.get('nt', 'm') else ''}")
    for q in range(2):
        a(f"buffer_load_dwordx4 {vr(112+4*q,4)}, v94, {srd(sWR)}, 0 offen offset:{q*1024}")
    vm.issue("lnld", 6)
    if opt.get("cpf", True):
        a(f"s_cmp_lg_u32 s{W}, 0")
        a(f"s_cbranch_scc1 {name}_nocpf")
        a(f"s_getpc_b64 s[{sT+8}:{sT+9}]")
        a.label(f"{name}_pc")
        a(f"s_sub_u32 s{sT+8}, s{sT+8}, {name}_pc-{name}")
        a(f"s_subb_u32 s{sT+9}, s{sT+9}, 0")
        a(f"s_lshl_b32 s{sT}, s{sLI}, 4")
        a("v_and_b32 v8, 15, v0")
        a(f"v_add_u32 v8, s{sT}, v8")
        a("v_lshlrev_b32 v8, 7, v8")
        a(f"v_min_u32 v8, {name}_end-{name}-4, v8")
        a(f"global_load_dword v250, v8, s[{sT+8}:{sT+9}]")
        a.label(f"{name}_nocpf")
        vm.issue("cpf", 1, cond=True)
    WM, WN = 52, 53
    a(f"s_lshr_b32 s{WM}, s{W}, 1")
    a(f"s_and_b32 s{WN}, s{W}, 1")
    a("v_and_b32 v8, 15, v0")
    a("v_lshrrev_b32 v9, 4, v0")
    a(f"s_lshl_b32 s{sT}, s{WM}, 6")
    a(f"v_add_u32 v10, s{sT}, v8")
    a("v_lshlrev_b32 v10, 7, v10")
    a("v_bfe_u32 v11, v0, 1, 3")
    a("v_xor_b32 v11, v11, v9")
    a(f"v_lshl_add_u32 v{XA}, v11, 4, v10")
    a(f"v_xor_b32 v{XA+1}, 64, v{XA}")
    a("v_bfe_u32 v10, v0, 2, 2")
    a("v_lshl_add_u32 v10, v9, 3, v10")
    a("v_lshlrev_b32 v10, 7, v10")
    a("v_and_b32 v11, 3, v0")
    a("v_lshl_add_u32 v10, v11, 3, v10")
    a("v_and_b32 v11, 1, v9")
    a("v_lshlrev_b32 v11, 1, v11")
    a("v_bfe_u32 v12, v0, 3, 1")
    a("v_or_b32 v11, v11, v12")
    a(f"s_lshl_b32 s{sT}, s{WN}, 1")
    a(f"v_xor_b32 v11, s{sT}, v11")
    a("v_lshl_add_u32 v10, v11, 5, v10")
    a(f"v_add_u32 v{WA}, {WOFF}, v10")
    a(f"v_xor_b32 v{WA+1}, 32, v{WA}")
    a.stamp(5)
    vm.wait("lnld")
    a.stamp(6)
    assert WS_XN == 0
    ln_rows2(a, vm, 96, 112, 120, 152, 95, opt.get("dbg"))
    for r in range(96): a(f"v_mov_b32 v{ACC+r}, 0")
    def reads(buf, ks):
        b = B0 + 40*buf
        xr = [f"ds_read_b128 {vr(b+4*tt,4)}, v{XA+ks} offset:{tt*2048}" for tt in range(4)]
        wr = [f"ds_read_b64_tr_b16 {vr(b+16+4*ct+2*t,2)}, v{WA+(ct&1)} offset:{(ct>>1)*8192+ks*4096+t*512}" for ct in range(6) for t in range(2)]
        return [xr[0]] + wr[0:2] + xr[1:4] + wr[2:]
    def mfmas(buf):
        b = B0 + 40*buf
        o = []
        for ct in range(6):
            for tt in range(4):
                x = vr(b+4*tt, 4); w = vr(b+16+4*ct, 4)
                A, B = (w, x) if ct < 4 else (x, w)
                o.append(f"v_mfma_f32_16x16x32_bf16 {vr(accreg(ct,tt),4)}, {A}, {B}, {vr(accreg(ct,tt),4)}")
        return o
    KT, SI, DL, NEG = 48, 49, 50, 51
    pf = opt.get("pf", False)
    PD, PO, PV = 56, 54, 5
    if pf:
        for q in range(3):
            a(f"s_cmp_eq_u32 s{W}, 0")
            a(f"s_cselect_b32 s{PD+q}, s{sWG+q}, s{sWU+q}")
            a(f"s_cmp_eq_u32 s{W}, 2")
            a(f"s_cselect_b32 s{PD+q}, s{sWD+q}, s{PD+q}")
            a(f"s_cmp_eq_u32 s{W}, 3")
            a(f"s_cselect_b32 s{PD+q}, s{sWO+q}, s{PD+q}")
        a(f"s_mov_b32 s{PD+3}, 0x00020000")
        a(f"s_cselect_b32 s{PO}, 8192, 28672 + 0" if False else f"s_movk_i32 s{PO}, 0x7000")
        a(f"s_cselect_b32 s{PO}, 0x2000, s{PO}")
        a(f"s_mul_i32 s{PO}, s{PO}, s2")
        a(f"s_sub_u32 s{PO}, s{PO}, {opt.get('pf0', 2)*2048}")
        a(f"v_lshlrev_b32 v{PV}, 7, v0")
        a("v_cmp_gt_u32 vcc, 16, v0")
        a("v_mov_b32 v6, 0x7fff0000")
        a("s_nop 0")
        a(f"v_cndmask_b32 v{PV}, v6, v{PV}, vcc")
    a(f"s_mov_b32 s{KT}, 0")
    a(f"s_mov_b32 s{SI}, 0")
    a(f"s_mov_b32 s{NEG}, {(-2*SLOT) & 0xffffffff:#x}")
    a("s_waitcnt lgkmcnt(0)")
    a("s_barrier")
    a.stamp(1); a.cstamp(7)
    a(*reads(0, 0))
    a(".p2align 6")
    a.label(f"{name}_cloop")
    per = opt.get("rpg", 1)
    skip = opt.get("rskip", 0)
    if opt.get("nods"): reads = lambda buf, ks: []
    def weave(m, r, extra):
        i = 0
        for k, x in enumerate(m):
            a(x)
            if k < skip: continue
            a(*r[i:i+per]); i += per
            if i - per >= len(r) and extra: a(extra.pop(0))
    m = mfmas(0); r = reads(1, 1)
    a(f"s_add_u32 s{SI}, s{SI}, 1")
    a(f"s_cmp_eq_u32 s{SI}, 3")
    a(f"s_cselect_b32 s{DL}, s{NEG}, {SLOT}")
    a(f"s_cselect_b32 s{SI}, 0, s{SI}")
    a("s_waitcnt lgkmcnt(0)")
    weave(m, r, [f"v_add_u32 v{q}, s{DL}, v{q}" for q in (1, 2, 3, 4)])
    m = mfmas(1); r = reads(0, 0)
    a("s_waitcnt lgkmcnt(0)")
    a(m[0])
    a("s_barrier")
    if pf:
        a(f"s_cmp_lt_u32 s{KT}, {opt.get('pf0', 2)}")
        a(f"s_cselect_b32 s{sT}, 0x7fff0000, s{PO}")
        a(f"buffer_load_dword v254, v{PV}, {srd(PD)}, s{sT} offen")
        a(f"s_add_u32 s{PO}, s{PO}, 2048")
    weave(m[1:], r, [f"s_add_u32 s{KT}, s{KT}, 1", f"s_cmp_lt_u32 s{KT}, 16"])
    a(f"s_cbranch_scc1 {name}_cloop")
    vm.q = []
    a.stamp(2); a.cstamp(8)
    MR, CSQ, MV, RV, CSV, QR, AD, PK = 8, 16, 32, 48, 64, 66, 74, 78
    a("s_waitcnt lgkmcnt(0)")
    a("v_and_b32 v1, 15, v0")
    a("v_lshrrev_b32 v2, 4, v0")
    a(f"s_lshl_b32 s{sT}, s{WM}, 8")
    a(f"s_add_u32 s{sT}, s{sT}, {L_M}")
    a(f"s_mul_i32 s{sT+1}, s{WN}, 384")
    a(f"s_add_u32 s{sT+1}, s{sT+1}, {L_CS}")
    a("v_lshlrev_b32 v3, 2, v1")
    a(f"v_add_u32 v4, s{sT}, v3")
    for tt in range(4):
        a(f"ds_read_b32 v{MR+2*tt}, v4 offset:{tt*64}")
        a(f"ds_read_b32 v{MR+2*tt+1}, v4 offset:{tt*64+512}")
    a("v_lshlrev_b32 v5, 4, v2")
    a(f"v_add_u32 v6, s{sT+1}, v5")
    for ct in range(4): a(f"ds_read_b128 {vr(CSQ+4*ct,4)}, v6 offset:{ct*64}")
    a(f"v_add_u32 v6, s{sT}, v5")
    a(f"v_add_u32 v3, s{sT+1}, v3")
    a(f"ds_read_b32 v{CSV}, v3 offset:256")
    a(f"ds_read_b32 v{CSV+1}, v3 offset:320")
    for tt in range(4):
        a(f"ds_read_b128 {vr(MV+4*tt,4)}, v6 offset:{tt*64}")
        a(f"ds_read_b128 {vr(RV+4*tt,4)}, v6 offset:{tt*64+512}")
    a("v_lshrrev_b32 v3, 1, v2")
    a("v_and_b32 v4, 1, v2")
    a("v_lshl_add_u32 v5, v3, 5, v1")
    a("v_lshlrev_b32 v5, 4, v5")
    a("v_lshl_add_u32 v5, v4, 3, v5")
    a("v_lshl_add_u32 v6, v4, 5, v1")
    a("v_lshlrev_b32 v6, 4, v6")
    a("v_lshl_add_u32 v6, v3, 3, v6")
    a(f"s_lshl_b32 s{sT}, s{WN}, 1")
    a(f"s_add_u32 s{sT}, s{sT}, s{WM}")
    a(f"s_lshl_b32 s{sT}, s{sT}, 13")
    a(f"v_add_u32 v{AD}, s{sT}, v5")
    a(f"v_add_u32 v{AD+1}, s{sT}, v6")
    a(f"s_lshr_b32 s{sT}, s{sT}, 1")
    a(f"s_add_u32 s{sT}, s{sT}, {L_Q}")
    a(f"v_add_u32 v{AD+2}, s{sT}, v5")
    a(f"s_mov_b32 s{sT+1}, {QSCALE:#x}")
    a("s_waitcnt lgkmcnt(10)")
    for tt in range(4):
        a(f"v_mul_f32 v{QR+2*tt+1}, s{sT+1}, v{MR+2*tt+1}")
    n = 0
    def fin(ct, tt):
        nonlocal n
        r = accreg(ct, tt)
        p = PK + 2*(n % 4); n += 1
        for hf in range(2):
            pr = vr(r+2*hf, 2)
            if ct < 4:
                a(f"v_pk_fma_f32 {pr}, {vr(CSQ+4*ct+2*hf,2)}, {vr(MR+2*tt,2)}, {pr} op_sel_hi:[1,0,1] neg_lo:[0,1,0] neg_hi:[0,1,0]")
                sc = QR if ct < 2 else MR
                a(f"v_pk_mul_f32 {pr}, {pr}, {vr(sc+2*tt,2)} op_sel:[0,1] op_sel_hi:[1,1]")
            else:
                sel = "op_sel_hi:[1,0,1]" if ct == 4 else "op_sel:[0,1,0] op_sel_hi:[1,1,1]"
                a(f"v_pk_fma_f32 {pr}, {vr(MV+4*tt+2*hf,2)}, {vr(CSV,2)}, {pr} {sel} neg_lo:[0,1,0] neg_hi:[0,1,0]")
                a(f"v_pk_mul_f32 {pr}, {pr}, {vr(RV+4*tt+2*hf,2)}")
            a(f"v_cvt_pk_bf16_f32 v{p+hf}, v{r+2*hf}, v{r+2*hf+1}")
        if ct < 2:   a(f"ds_write_b64 v{AD+2}, {vr(p,2)} offset:{(tt>>1)*2048 + ct*1024 + (tt&1)*256}")
        elif ct < 4: a(f"ds_write_b64 v{AD}, {vr(p,2)} offset:{(tt>>1)*4096 + (ct-2)*1024 + (tt&1)*256}")
        else:        a(f"ds_write_b64 v{AD+1}, {vr(p,2)} offset:{(tt>>1)*4096 + 2048 + (tt&1)*1024 + (ct-4)*256}")
    a("s_waitcnt lgkmcnt(0)")
    for ct in (2, 3, 4, 5):
        for tt in range(4): fin(ct, tt)
    a("s_waitcnt lgkmcnt(0)")
    a("s_barrier")
    for ct in (0, 1):
        for tt in range(4): fin(ct, tt)
    a("s_waitcnt lgkmcnt(0)")
    return vm

def publish_kv(a, vm, R, opt):
    a(f"v_lshlrev_b32 v{R.VL}, 4, v0")
    a(f"s_and_b32 s{sT+1}, s{W}, 1")
    a(f"s_lshl_b32 s{sT+1}, s{sT+1}, 1")
    a(f"s_bfe_u32 s{sT+2}, s{W}, 0x10001")
    a(f"s_add_u32 s{sT+1}, s{sT+1}, s{sT+2}")
    a(f"s_lshl_b32 s{sT+1}, s{sT+1}, 12")
    a(f"s_add_u32 s{sT+1}, s{sT+1}, {L_Q}")
    a(f"v_add_u32 v3, s{sT+1}, v{R.VL}")
    for q in range(4): a(f"ds_read_b128 {vr(R.Q+4*q,4)}, v3 offset:{q*1024}")
    if opt.get("dbg"):
        a("s_waitcnt lgkmcnt(0)")
        head_of(a, sT+1, sT+2)
        a(f"s_lshl_b32 s{sT+1}, s{sT+1}, 6")
        a(f"s_lshl_b32 s{sT+2}, s{sMT}, 2")
        a(f"s_add_u32 s{sT+1}, s{sT+1}, s{sT+2}")
        a(f"s_and_b32 s{sT+2}, s{W}, 2")
        a(f"s_add_u32 s{sT+1}, s{sT+1}, s{sT+2}")
        a(f"s_lshl_b32 s{sT+1}, s{sT+1}, 11")
        a(f"s_add_u32 s{sT+1}, s{sT+1}, {WS_Q}")
        for q in range(4):
            a(f"buffer_store_dwordx4 {vr(R.Q+4*q,4)}, v{R.VL}, {srd(sWS)}, s{sT+1} offen offset:{q*1024}")
        vm.drain()

def gen_fused(name, **opt):
    a = Asm(); cold = []
    R = AT.AttnRegs
    prologue(a, name, opt)
    a(f"s_cmp_ge_u32 s{W}, 4")
    a(f"s_cbranch_scc1 {name}_loader")
    phaseA_consumer(a, name, cold, opt)
    a(f"s_branch {name}_joinA")
    a.label(f"{name}_loader")
    phaseA_loader(a, name, cold, opt)
    a.stamp(2)
    a("s_setprio 0")
    a.label(f"{name}_joinA")
    a("s_barrier")
    a.stamp(3)
    if opt.get("dbgtime"): a("s_memrealtime s[94:95]")
    vm = VM(a)
    publish_kv(a, vm, R, opt)
    if opt.get("stop") != "A":
        import fused_bc
        fused_bc.phaseB(a, name, cold, opt, vm)
        if opt.get("stop") != "B":
            fused_bc.phaseC(a, name, cold, opt, vm)
    if opt.get("probe"):
        i_, j_ = opt["probe"]
        a("s_waitcnt vmcnt(0) lgkmcnt(0)")
        a.stamp(9)
        a("s_waitcnt lgkmcnt(0)")
        a(f"s_or_b32 s76, s81, s{W}")
        a(f"s_cmp_lg_u32 s76, 0")
        a(f"s_cbranch_scc1 {name}_done")
        a(f"s_sub_u32 s76, s{82+2*j_}, s{82+2*i_}")
        a("s_lshl_b32 s76, s76, 2")
        a.label(f"{name}_probe")
        a("s_memrealtime s[78:79]")
        a("s_waitcnt lgkmcnt(0)")
        a("s_sub_u32 s78, s78, s100")
        a("s_cmp_lt_u32 s78, s76")
        a(f"s_cbranch_scc1 {name}_probe")
    else:
        a.stamp_dump(0, W)
    if opt.get("dbgtime"):
        a("s_waitcnt vmcnt(0)")
        a("s_memrealtime s[98:99]")
        a("s_waitcnt lgkmcnt(0)")
        a("s_not_b32 s96, s96")
        a("v_mov_b32 v1, 4")
        a("v_mov_b32 v2, s96")
        a("v_mov_b32 v3, s98")
        a("v_mov_b32 v4, s94")
        a(f"s_cmp_lg_u32 s{W}, 0")
        a(f"s_cbranch_scc1 {name}_done")
        a("s_mov_b64 exec, 1")
        a(f"buffer_atomic_umax v2, v1, {srd(sDBG)}, 0 offen sc1")
        a(f"buffer_atomic_umax v3, v1, {srd(sDBG)}, 0 offen offset:4 sc1")
        a(f"buffer_atomic_umax v4, v1, {srd(sDBG)}, 0 offen offset:8 sc1")
        a("s_mov_b64 exec, -1")
    a.label(f"{name}_done")
    a("s_endpgm")
    for c in cold: a.lines += c.lines
    a.label(f"{name}_end")
    a("s_endpgm")
    return kernel_header(name) + a.text() + kernel_desc(name, 256, 102)

def xsel_fetch(a, vm, vidx, XR, XST):
    a(f"v_readlane_b32 s{sT}, v{vidx}, s{W}")
    a("s_nop 3")
    a(f"s_lshl_b32 s{sT+1}, s{sT}, 11")
    a(f"buffer_load_dwordx4 {vr(XR,4)}, v1, {srd(sX)}, s{sT+1} offen")
    a(f"buffer_load_dwordx4 {vr(XR+4,4)}, v1, {srd(sX)}, s{sT+1} offen offset:1024")
    a(f"s_lshr_b32 s{sT+1}, s{sT}, 3")
    a(f"s_lshl_b32 s{sT+1}, s{sT+1}, 5")
    a(f"s_and_b32 s{sT}, s{sT}, 7")
    a(f"s_add_u32 s{sT}, s{sT}, s{sT+1}")
    a(f"s_lshl_b32 s{sT}, s{sT}, 2")
    a(f"s_add_u32 s{sT}, s{sT}, {WS_ST}")
    a(f"v_mov_b32 v{XST+1}, s{sT}")
    a(f"buffer_load_dword v{XST}, v{XST+1}, {srd(sWS)}, 0 offen sc1")
    a(f"buffer_load_dword v{XST+1}, v{XST+1}, {srd(sWS)}, 0 offen offset:32 sc1")
    vm.issue("xsel", 4)

def xsel_normalise(a, T, XR, XST):
    XF = T + 2
    a(f"v_lshrrev_b32 v{T}, 2, v0")
    a(f"v_lshlrev_b32 v{T}, 9, v{T}")
    a(f"v_and_b32 v{T+1}, 3, v0")
    a(f"v_lshl_add_u32 v{T}, v{T+1}, 7, v{T}")
    a(f"s_lshl_b32 s{sT}, s{W}, 4")
    a(f"s_add_u32 s{sT}, s{sT}, {L_XS}")
    a(f"v_add_u32 v{T}, s{sT}, v{T}")
    for p in range(8):
        x = XR + p
        f0, f1 = XF + 2*(p & 1), XF + 2*(p & 1) + 1
        a(f"v_lshlrev_b32 v{f0}, 16, v{x}")
        a(f"v_and_b32 v{f1}, 0xffff0000, v{x}")
        a(f"v_sub_f32 v{f0}, v{f0}, v{XST}")
        a(f"v_sub_f32 v{f1}, v{f1}, v{XST}")
        a(f"v_cvt_pk_bf16_f32 v{x}, v{f0}, v{f1}")
        a(f"v_lshlrev_b32 v{f0}, 16, v{x}")
        a(f"v_and_b32 v{f1}, 0xffff0000, v{x}")
        a(f"v_mul_f32 v{f0}, v{f0}, v{XST+1}")
        a(f"v_mul_f32 v{f1}, v{f1}, v{XST+1}")
        a(f"v_cvt_pk_bf16_f32 v{x}, v{f0}, v{f1}")
    a(f"ds_write_b128 v{T}, {vr(XR,4)}")
    a(f"ds_write_b128 v{T}, {vr(XR+4,4)} offset:8192")
```

```python
import os
from asmlib import *
from layout import *
from k_top8 import DPPS, make_keys, decode_keys
from k_attn import M32, M16
import k_attn2 as AT
from k_moe import pi_row, silu_bf16, round_bf16

QSCALE = 0x3e8293ee
sX, sWQ, sWS, sWR, sDBG, sWG, sWU, sWD, sWO, sOUT = 4, 8, 12, 16, 20, 24, 28, 32, 36, 40
sJ, sMT, sLI, sXC = 44, 45, 46, 47
sIDX, sWT = 48, 56
sT = 64
W = 3
SLOT, WOFF = 40960, 16384
L_Q, L_XS, L_MISC = 122880, 139264, 159744
L_M, L_RS, L_CS, L_CAND, L_IDX, L_H = L_MISC, L_MISC+512, L_MISC+1024, L_MISC+1792, L_MISC+1920, L_MISC+2048
L_ST, L_CNT = L_MISC+3072, L_MISC+3200
LDS_BYTES = 163840
SPIN_LIMIT = 400000
RKEY = 208

def srd(r): return f"s[{r}:{r+3}]"

def wsum(a, r, sdst, op="add_f32"):
    for ctl in DPPS:
        bc = " bound_ctrl:0" if ctl.startswith("row_shr") and op == "add_f32" else ""
        a("s_nop 1")
        a(f"v_{op}_dpp v{r}, v{r}, v{r} {ctl}{bc}")
    a("s_nop 0")
    a(f"v_readlane_b32 s{sdst}, v{r}, 63")
    a("s_nop 1")

def ln_rows2(a, vm, X, WR, XB, T, voff, dbg, n=2):
    R2 = range(n)
    nop = "s_nop 0" if n == 2 else "s_nop 1"
    F_ = lambda i, e: XB + 16*i + e
    T_ = lambda i, k: T + 6*i + k
    def wsum2(k, sd):
        for ctl in DPPS:
            bc = " bound_ctrl:0" if ctl.startswith("row_shr") else ""
            a(nop)
            for i in R2: a(f"v_add_f32_dpp v{T_(i,k)}, v{T_(i,k)}, v{T_(i,k)} {ctl}{bc}")
        a("s_nop 0")
        for i in R2: a(f"v_readlane_b32 s{sT+3*i+sd}, v{T_(i,k)}, 63")
        a(nop)
    for i in R2:
        for p in range(8):
            a(f"v_lshlrev_b32 v{F_(i,2*p)}, 16, v{X+8*i+p}")
            a(f"v_and_b32 v{F_(i,2*p+1)}, 0xffff0000, v{X+8*i+p}")
    for i in R2:
        a(f"v_add_f32 v{T_(i,0)}, v{F_(i,0)}, v{F_(i,1)}")
    for e in range(2, 16):
        for i in R2: a(f"v_add_f32 v{T_(i,0)}, v{T_(i,0)}, v{F_(i,e)}")
    a("s_nop 0")
    wsum2(0, 0)
    for i in R2:
        a(f"v_mov_b32 v{T_(i,0)}, s{sT+3*i}")
    for i in R2:
        a(f"v_mul_f32 v{T_(i,0)}, 0x3a800000, v{T_(i,0)}")
    for i in R2:
        a(f"v_sub_f32 v{T_(i,2)}, v{F_(i,0)}, v{T_(i,0)}")
        a(f"v_mul_f32 v{T_(i,1)}, v{T_(i,2)}, v{T_(i,2)}")
    for e in range(1, 16):
        for i in R2:
            a(f"v_sub_f32 v{T_(i,2)}, v{F_(i,e)}, v{T_(i,0)}")
            a(f"v_fmac_f32 v{T_(i,1)}, v{T_(i,2)}, v{T_(i,2)}")
    wsum2(1, 0)
    seq = lambda i: [
        f"v_mov_b32 v{T_(i,1)}, s{sT+3*i}",
        f"v_mul_f32 v{T_(i,1)}, 0x3a800000, v{T_(i,1)}",
        f"v_cvt_pk_bf16_f32 v{T_(i,2)}, v{T_(i,0)}, v{T_(i,1)}",
        f"v_lshlrev_b32 v{T_(i,0)}, 16, v{T_(i,2)}",
        f"v_and_b32 v{T_(i,1)}, 0xffff0000, v{T_(i,2)}",
        f"v_add_f32 v{T_(i,1)}, 0x3727c5ac, v{T_(i,1)}",
        f"v_cvt_pk_bf16_f32 v{T_(i,1)}, v{T_(i,1)}, v{T_(i,1)}",
        f"v_and_b32 v{T_(i,1)}, 0xffff0000, v{T_(i,1)}",
        f"v_sqrt_f32 v{T_(i,1)}, v{T_(i,1)}",
        f"v_readfirstlane_b32 s{sT+3*i}, v{T_(i,0)}",
        f"v_cvt_pk_bf16_f32 v{T_(i,1)}, v{T_(i,1)}, v{T_(i,1)}",
        f"v_and_b32 v{T_(i,1)}, 0xffff0000, v{T_(i,1)}",
        f"v_rcp_f32 v{T_(i,1)}, v{T_(i,1)}",
        f"v_mov_b32 v{T_(i,3)}, 0"]
    for xs in zip(*[seq(i) for i in R2]): a(*xs)
    if n == 1: a("s_nop 0")
    for p in range(8):
        st = lambda i: [
            f"v_sub_f32 v{F_(i,2*p)}, v{F_(i,2*p)}, v{T_(i,0)}",
            f"v_sub_f32 v{F_(i,2*p+1)}, v{F_(i,2*p+1)}, v{T_(i,0)}",
            f"v_cvt_pk_bf16_f32 v{T_(i,2)}, v{F_(i,2*p)}, v{F_(i,2*p+1)}",
            f"v_lshlrev_b32 v{F_(i,2*p)}, 16, v{T_(i,2)}",
            f"v_and_b32 v{F_(i,2*p+1)}, 0xffff0000, v{T_(i,2)}",
            f"v_mul_f32 v{F_(i,2*p)}, v{F_(i,2*p)}, v{T_(i,1)}",
            f"v_mul_f32 v{F_(i,2*p+1)}, v{F_(i,2*p+1)}, v{T_(i,1)}",
            f"v_cvt_pk_bf16_f32 v{X+8*i+p}, v{F_(i,2*p)}, v{F_(i,2*p+1)}"]
        for xs in zip(*[st(i) for i in R2]): a(*xs)
    for i in R2: a(f"v_readfirstlane_b32 s{sT+3*i+1}, v{T_(i,1)}")
    if dbg:
        for i in R2:
            a(f"buffer_store_dwordx4 {vr(X+8*i,4)}, v{voff}, {srd(sWS)}, 0 offen offset:{2048*i}")
            a(f"buffer_store_dwordx4 {vr(X+8*i+4,4)}, v{voff}, {srd(sWS)}, 0 offen offset:{2048*i+1024}")
    for p in range(8):
        for i in R2: a(f"v_dot2c_f32_bf16 v{T_(i,3)}, v{X+8*i+p}, v{WR+p}")
    a("s_nop 1")
    wsum2(3, 2)
    for i in R2: a(f"v_mov_b32 v{T_(i,0)}, s{sT+3*i+2}")
    for i in R2: a(f"v_cvt_pk_bf16_f32 v{T_(i,0)}, v{T_(i,0)}, v{T_(i,0)}")
    for i in R2: a(f"v_and_b32 v{T_(i,0)}, 0xffff0000, v{T_(i,0)}")
    a(f"v_mov_b32 v{T+1}, s{sT}")
    for i in R2: a(f"v_readfirstlane_b32 s{sT+3*i+2}, v{T_(i,0)}")
    a(f"v_lshlrev_b32 v{T+2}, 5, v0")
    a(f"s_lshl_b32 s{sT+6}, s{W}, {n+1}")
    a(f"s_add_u32 s{sT+6}, s{sT+6}, {L_ST}")
    a(f"v_add_u32 v{T+2}, s{sT+6}, v{T+2}")
    for l in range(1, 3*n): a(f"v_writelane_b32 v{T+1}, s{sT+l}, {l}")
    if n == 2:
        for l in range(3):
            a(f"s_add_u32 s{sT+7}, s{sT+6}, {l*32+4}")
            a(f"v_writelane_b32 v{T+2}, s{sT+7}, {3+l}")
    a(f"s_mov_b64 exec, {(1 << 3*n) - 1}")
    a(f"ds_write_b32 v{T+2}, v{T+1}")
    a("s_mov_b64 exec, -1")

def ln_loads(a, vm, opt):
    n = opt.get("lnrows", 2)
    for q in range(2*n):
        a(f"buffer_load_dwordx4 {vr(96+4*q,4)}, v95, {srd(sX)}, 0 offen offset:{q*1024} {'nt' if 'l' in opt.get('nt', 'ms') else ''}")
    for q in range(2):
        a(f"buffer_load_dwordx4 {vr(112+4*q,4)}, v94, {srd(sWR)}, 0 offen offset:{q*1024}")
    vm.issue("lnld", 2*n + 2)

def rec_of(a, d):
    a(f"s_lshl_b32 s{d}, s{sMT}, 4")
    a(f"s_add_u32 s{d}, s{d}, s{sJ}")

def publish_stats(a, vm, T):
    A_, D_, U_ = T, T+1, T+2
    t = sT
    a(f"v_lshlrev_b32 v{U_}, 2, v0")
    a(f"v_add_u32 v{A_}, {L_ST}, v{U_}")
    a(f"ds_read_b32 v{D_}, v{A_}")
    rec_of(a, t)
    a(f"s_lshl_b32 s{t}, s{t}, 7")
    a(f"s_add_u32 s{t}, s{t}, {WS_ST}")
    a(f"v_add_u32 v{A_}, s{t}, v{U_}")
    rec_of(a, t)
    a(f"s_lshl_b32 s{t}, s{t}, 5")
    a(f"s_add_u32 s{t}, s{t}, {WS_R - 64}")
    a(f"v_cmp_le_u32 vcc, 16, v0")
    a(f"v_add_u32 v{U_}, s{t}, v{U_}")
    a("s_nop 0")
    a(f"v_cndmask_b32 v{A_}, v{A_}, v{U_}, vcc")
    a(f"s_lshl_b32 s{t}, s{sJ}, 5")
    a(f"s_add_u32 s{t}, s{t}, s{sMT}")
    a(f"s_lshl_b32 s{t}, s{t}, 7")
    a(f"s_add_u32 s{t}, s{t}, {WS_KVF}")
    a(f"v_bfe_u32 v{U_}, v0, 2, 1")
    a(f"v_lshlrev_b32 v{U_}, 11, v{U_}")
    a(f"v_and_b32 v{U_+1}, 3, v0")
    a(f"v_lshl_add_u32 v{U_}, v{U_+1}, 2, v{U_}")
    a(f"v_add_u32 v{U_}, s{t}, v{U_}")
    a(f"v_cmp_le_u32 vcc, 24, v0")
    a(f"s_lshl_b32 s{t}, s{sMT}, 3")
    a(f"s_lshr_b32 s{t+1}, s{sJ}, 3")
    a(f"v_cndmask_b32 v{A_}, v{A_}, v{U_}, vcc")
    a(f"s_add_u32 s{t}, s{t}, s{t+1}")
    a(f"s_lshl_b32 s{t}, s{t}, 7")
    a(f"s_and_b32 s{t+1}, s{sJ}, 7")
    a(f"s_lshl_b32 s{t+1}, s{t+1}, 3")
    a(f"s_add_u32 s{t}, s{t}, s{t+1}")
    a(f"s_add_u32 s{t}, s{t}, {WS_OF}")
    a(f"v_bfe_u32 v{U_}, v0, 1, 2")
    a(f"v_lshlrev_b32 v{U_}, 8, v{U_}")
    a(f"v_and_b32 v{U_+1}, 1, v0")
    a(f"v_lshl_add_u32 v{U_}, v{U_+1}, 2, v{U_}")
    a(f"v_add_u32 v{U_}, s{t}, v{U_}")
    a(f"v_cmp_le_u32 vcc, 32, v0")
    yf_addr(a, t, t+1)
    a(f"v_cndmask_b32 v{A_}, v{A_}, v{U_}, vcc")
    hf_addr(a, t+1)
    a(f"s_cmp_lt_u32 s{sLI}, 28")
    a(f"s_cselect_b32 s{t+1}, s{t+1}, s{t}")
    a(f"v_writelane_b32 v{A_}, s{t}, 40")
    a(f"v_writelane_b32 v{A_}, s{t+1}, 41")
    csf_addr(a, t, t+1)
    a(f"v_writelane_b32 v{A_}, s{t}, 42")
    a(f"v_cmp_gt_u32 vcc, 24, v0")
    a("s_waitcnt lgkmcnt(0)")
    a(f"s_lshl_b32 s{t}, s2, 7")
    a(f"v_cndmask_b32 v{D_}, 0, v{D_}, vcc")
    a("s_bfm_b64 exec, 43, 0")
    a(f"buffer_store_dword v{D_}, v{A_}, {srd(sWS)}, 0 offen sc1")
    a("s_mov_b64 exec, -1")
    a(f"s_add_u32 s{t}, s{t}, {WS_Y}")
    for r in range(4): a(f"v_mov_b32 v{T+4+r}, 0")
    a("s_mov_b64 exec, 0xff")
    a(f"buffer_store_dwordx4 {vr(T+4,4)}, v94, {srd(sWS)}, s{t} offen sc1")
    a(f"s_mul_i32 s{t}, s2, 896")
    a(f"s_add_u32 s{t}, s{t}, {WS_GU}")
    a("s_bfm_b64 exec, 56, 0")
    a(f"buffer_store_dwordx4 {vr(T+4,4)}, v94, {srd(sWS)}, s{t} offen sc1")
    a("s_mov_b64 exec, -1")
    vm.issue("st", 3, cond=True)

def csf_addr(a, d, t):
    a(f"s_lshl_b32 s{d}, s{sJ}, 5")
    a(f"s_add_u32 s{d}, s{d}, s{sMT}")
    a(f"s_lshl_b32 s{d}, s{d}, 2")
    a(f"s_add_u32 s{d}, s{d}, {WS_CSF}")
def kvf_addr(a, d, t):
    a(f"s_bfe_u32 s{t}, s{W}, 0x10001")
    a(f"s_lshl_b32 s{d}, s{sJ}, 1")
    a(f"s_add_u32 s{d}, s{d}, s{t}")
    a(f"s_lshl_b32 s{d}, s{d}, 4")
    a(f"s_add_u32 s{d}, s{d}, s{sMT}")
    a(f"s_lshl_b32 s{d}, s{d}, 5")
    a(f"s_and_b32 s{t}, s{W}, 1")
    a(f"s_add_u32 s{d}, s{d}, s{t}")
    a(f"s_lshl_b32 s{d}, s{d}, 2")
    a(f"s_add_u32 s{d}, s{d}, {WS_KVF}")
def otile(a, d, t):
    a(f"s_lshl_b32 s{d}, s{sMT}, 2")
    a(f"s_and_b32 s{t}, s{W}, 2")
    a(f"s_add_u32 s{d}, s{d}, s{t}")
    a(f"s_lshr_b32 s{t}, s{W}, 2")
    a(f"s_add_u32 s{d}, s{d}, s{t}")
def head_of(a, d, t):
    a(f"s_lshl_b32 s{d}, s{sJ}, 1")
    a(f"s_and_b32 s{t}, s{W}, 1")
    a(f"s_add_u32 s{d}, s{d}, s{t}")
def of_addr(a, d, t):
    otile(a, d, t)
    a(f"s_lshl_b32 s{d}, s{d}, 1")
    a(f"s_lshr_b32 s{t}, s{sJ}, 3")
    a(f"s_add_u32 s{d}, s{d}, s{t}")
    a(f"s_lshl_b32 s{d}, s{d}, 5")
    a(f"s_and_b32 s{t}, s{sJ}, 7")
    a(f"s_lshl_b32 s{t}, s{t}, 1")
    a(f"s_add_u32 s{d}, s{d}, s{t}")
    a(f"s_and_b32 s{t}, s{W}, 1")
    a(f"s_add_u32 s{d}, s{d}, s{t}")
    a(f"s_lshl_b32 s{d}, s{d}, 2")
    a(f"s_add_u32 s{d}, s{d}, {WS_OF}")
def cg_of(a, d):
    a(f"s_mul_i32 s{d}, s{sXC}, 28")
    a(f"s_add_u32 s{d}, s{d}, s{sLI}")
def hf_addr(a, d):
    cg_of(a, d)
    a(f"s_lshl_b32 s{d}, s{d}, 7")
    a(f"s_add_u32 s{d}, s{d}, {WS_HF}")
def yf_addr(a, d, t):
    a(f"s_and_b32 s{d}, s2, 15")
    a(f"s_lshl_b32 s{d}, s{d}, 4")
    a(f"s_lshr_b32 s{t}, s2, 4")
    a(f"s_add_u32 s{d}, s{d}, s{t}")
    a(f"s_lshl_b32 s{d}, s{d}, 7")
    a(f"s_add_u32 s{d}, s{d}, {WS_YF}")

def poll_check(a, name, vreg, vaddr, s_srd, want, mask, cold):
    lab = a.new_label(name)
    def cmp(o):
        o(f"v_cmp_gt_u32 vcc, {want}, v{vreg}" if want != 1 else f"v_cmp_ne_u32 vcc, 1, v{vreg}")
        if mask != -1:
            o(f"s_and_b32 vcc_lo, vcc_lo, {mask & 0xffffffff:#x}")
            o(f"s_and_b32 vcc_hi, vcc_hi, {(mask >> 32) & 0xffffffff:#x}")
        o("s_cmp_lg_u64 vcc, 0")
    cmp(a)
    a(f"s_cbranch_scc1 {lab}_spin")
    a.label(f"{lab}_ok")
    c = Asm()
    c.label(f"{lab}_spin")
    c(f"s_mov_b32 s{sT+11}, 0")
    c.label(f"{lab}_again")
    c(f"buffer_load_dword v{vreg}, v{vaddr}, {srd(s_srd)}, 0 offen sc1")
    c(f"s_add_u32 s{sT+11}, s{sT+11}, 1")
    c(f"s_cmp_gt_u32 s{sT+11}, {SPIN_LIMIT}")
    c(f"s_cbranch_scc1 {lab}_ok")
    c("s_waitcnt vmcnt(0)")
    cmp(c)
    c(f"s_cbranch_scc1 {lab}_again")
    c(f"s_branch {lab}_ok")
    cold.append(c)

def top8_round(a, keys, T, cand, st, rnd):
    n = len(keys)
    if rnd == 0: a(f"s_mov_b32 s{st}, -1")
    for e in range(n):
        a(f"v_sub_u32 v{T+e}, s{st}, v{keys[e]}")
    e = 1
    while e + 1 < n:
        a(f"v_min3_u32 v{T}, v{T}, v{T+e}, v{T+e+1}")
        e += 2
    if e < n: a(f"v_min_u32 v{T}, v{T}, v{T+e}")
    wsum(a, T, st+1, "min_u32")
    a(f"s_sub_u32 s{st}, s{st}, s{st+1}")
    a(f"v_writelane_b32 v{cand}, s{st}, {rnd}")
    a(f"s_sub_u32 s{st}, s{st}, 1")

def atomise(a, tmp):
    out, grp = [], None
    for l in tmp.lines:
        s_ = l.strip()
        if grp is not None:
            grp.append(s_)
            if s_ == "s_mov_b64 exec, -1": out.append(grp); grp = None
        elif ("exec," in s_ and s_ != "s_mov_b64 exec, -1") or "saveexec" in s_: grp = [s_]
        else: out.append([s_])
    assert grp is None
    return [(lambda g=g: a(*g)) for g in out]

def ws_base(a, opt):
    off = opt.get("wsoff", 0) << 20
    if off:
        a(f"s_add_u32 s{sWS}, s{sWS}, {off:#x}")
        a(f"s_addc_u32 s{sWS+1}, s{sWS+1}, 0")

def prologue(a, name, opt):
    a("s_cmp_ge_u32 s2, 256")
    a(f"s_cbranch_scc1 {name}_done")
    a.stamp_init(); a.stamp(0)
    if opt.get("dbgtime"): a("s_memrealtime s[96:97]")
    for r, off in ((sX, A_X), (sWQ, A_WQKV), (sWS, A_WS), (sWR, A_WR), (sDBG, A_DBG), (sWG, A_WG), (sWU, A_WU),
                   (sWD, A_WD), (sWO, A_WO), (sOUT, A_OUT)):
        a(f"s_load_dwordx2 s[{r}:{r+1}], s[0:1], {off}")
    a("v_lshrrev_b32 v1, 6, v0")
    a("v_and_b32 v0, 63, v0")
    a(f"v_readfirstlane_b32 s{W}, v1")
    a(f"s_and_b32 s{sXC}, s2, 7")
    a(f"s_lshr_b32 s{sLI}, s2, 3")
    a(f"s_and_b32 s{sMT}, s{sXC}, 1")
    a(f"s_lshl_b32 s{sMT}, s{sMT}, 3")
    a(f"s_and_b32 s{sT}, s{sLI}, 7")
    a(f"s_add_u32 s{sMT}, s{sMT}, s{sT}")
    a(f"s_lshr_b32 s{sJ}, s{sXC}, 1")
    a(f"s_lshl_b32 s{sJ}, s{sJ}, 2")
    a(f"s_lshr_b32 s{sT}, s{sLI}, 3")
    a(f"s_add_u32 s{sJ}, s{sJ}, s{sT}")
    a(f"s_lshl_b32 s{sT+3}, s{sMT}, 4")
    a(f"s_add_u32 s{sT+3}, s{sT+3}, s{sJ}")
    n = opt.get("lnrows", 2)
    a(f"s_lshl_b32 s{sT+3}, s{sT+3}, {4-n}")
    a(f"s_add_u32 s{sT+3}, s{sT+3}, s{W}")
    a(f"s_lshl_b32 s{sT}, s{sT+3}, {10+n}")
    a("v_lshlrev_b32 v94, 4, v0")
    a(f"v_add_u32 v95, s{sT}, v94")
    for r, n in ((sX, S*D*2), (sWQ, D*3*D*2), (sWS, WS_USED), (sWR, D*2), (sDBG, 256), (sWG, D*F*2), (sWU, D*F*2),
                 (sWD, D*F*2), (sWO, D*D*2), (sOUT, S*D*2)):
        a(f"s_mov_b32 s{r+2}, {n:#x}")
        a(f"s_mov_b32 s{r+3}, 0x00020000")

def phaseA_loader(a, name, cold, opt):
    vm = VM(a)
    LW, XB_, WB_, SX, SW = 48, 49, 50, 51, 52
    a(f"s_sub_u32 s{LW}, s{W}, 4")
    a("v_lshrrev_b32 v16, 3, v0")
    a("v_and_b32 v17, 7, v0")
    a(f"s_lshl_b32 s{sT}, s{sMT}, 7")
    a(f"s_lshl_b32 s{sT+1}, s{LW}, 5")
    a(f"s_add_u32 s{sT}, s{sT}, s{sT+1}")
    a(f"v_add_u32 v18, s{sT}, v16")
    a("v_lshlrev_b32 v18, 11, v18")
    a("v_lshrrev_b32 v19, 1, v16")
    a("v_xor_b32 v20, v19, v17")
    a("v_lshl_add_u32 v1, v20, 4, v18")
    a("v_xor_b32 v20, 4, v20")
    a("v_lshl_add_u32 v2, v20, 4, v18")
    a(f"v_add_u32 v2, {8*2048}, v2")
    a(f"v_add_u32 v3, {16*2048}, v1")
    a(f"v_add_u32 v4, {16*2048}, v2")
    a(f"s_lshl_b32 s{sT}, s{LW}, 4")
    a(f"v_add_u32 v18, s{sT}, v16")
    a("v_mul_u32_u24 v18, 6144, v18")
    a(f"s_lshl_b32 s{sT}, s{sJ}, 7")
    a(f"v_add_u32 v18, s{sT}, v18")
    a("v_bfe_u32 v19, v0, 4, 1")
    a("v_lshlrev_b32 v19, 1, v19")
    a("v_xor_b32 v19, v19, v17")
    a("v_lshl_add_u32 v5, v19, 4, v18")
    a("v_xor_b32 v19, 4, v19")
    a("v_lshl_add_u32 v6, v19, 4, v18")
    a(f"v_add_u32 v6, {8*6144}, v6")
    a(f"s_lshl_b32 s{XB_}, s{LW}, 12")
    a(f"s_lshl_b32 s{WB_}, s{LW}, 11")
    KR = 56
    SH = 57
    a(f"s_and_b32 s{KR}, s{sMT}, 3")
    a(f"s_lshl_b32 s{KR}, s{KR}, 2")
    a(f"s_lshr_b32 s{SH}, s{sMT}, 2")
    nt = lambda k: "nt" if k in opt.get("nt", "ms") else ""
    def issue(kt, atoms=()):
        slot = (kt % 3) * SLOT
        atoms = list(atoms)
        a(f"s_and_b32 s{KR}, s{KR}, 15")
        a(f"s_lshl_b32 s{SX}, s{KR}, 7")
        a(f"s_mul_i32 s{SW}, s{KR}, {64*6144}")
        a(f"s_add_u32 s{SW+1}, s{SW}, 2048")
        a(f"s_add_u32 s{SW+2}, s{SW}, 4096")
        a(f"s_add_u32 s{KR}, s{KR}, 1")
        d = [(f"s_add_u32 m0, s{XB_}, {slot + i*1024}", f"buffer_load_dwordx4 v{1+i}, {srd(sX)}, s{SX} offen {nt('x')} lds") for i in range(4)]
        d += [(f"s_add_u32 m0, s{WB_}, {slot + WOFF + seg*8192 + i*1024}", f"buffer_load_dwordx4 v{5+i}, {srd(sWQ)}, s{SW+seg} offen {nt('w')} lds")
              for seg in range(3) for i in range(2)]
        k = 0
        for i, (m, ld) in enumerate(d):
            if not (opt.get("noload") and kt > 2):
                a(m); a("s_nop 0"); a(ld)
                vm.issue(f"T{kt}")
            k2 = (i + 1) * len(atoms) // len(d)
            for at in atoms[k:k2]: at()
            k = k2
    a("s_waitcnt lgkmcnt(0)")
    ws_base(a, opt)
    a.stamp(4)
    if opt.get("lnrows", 2) == 1:
        ln_loads(a, vm, opt)
        issue(0)
        vm.wait("lnld")
        tmp = Asm(); ln_rows2(tmp, vm, 96, 112, 120, 152, 95, opt.get("dbg"), 1)
        if opt.get("dbg"): vm.issue("dbg", 2)
        issue(1, atomise(a, tmp))
    else:
        issue(0); issue(1)
    a.stamp(5)
    a("v_lshrrev_b32 v16, 4, v0")
    a("v_bfe_u32 v17, v0, 2, 2")
    a("v_lshl_add_u32 v17, v16, 3, v17")
    a("v_lshlrev_b32 v17, 7, v17")
    a("v_and_b32 v18, 3, v0")
    a("v_lshl_add_u32 v17, v18, 3, v17")
    a("v_and_b32 v16, 1, v16")
    a("v_lshlrev_b32 v16, 1, v16")
    a("v_bfe_u32 v18, v0, 3, 1")
    a("v_or_b32 v16, v16, v18")
    a(f"s_and_b32 s{sT}, s{LW}, 1")
    a(f"s_lshl_b32 s{sT}, s{sT}, 1")
    a(f"v_xor_b32 v16, s{sT}, v16")
    a("v_lshl_add_u32 v17, v16, 5, v17")
    a(f"s_lshr_b32 s{sT}, s{LW}, 1")
    a(f"s_lshl_b32 s{sT}, s{sT}, 12")
    a(f"s_add_u32 s{sT}, s{sT}, {WOFF}")
    a(f"s_cmp_eq_u32 s{SH}, 3")
    a(f"s_cselect_b32 s{sT+1}, 0, s{SH}")
    a(f"s_mul_i32 s{sT+1}, s{sT+1}, {SLOT}")
    a(f"s_add_u32 s{sT}, s{sT}, s{sT+1}")
    a(f"v_add_u32 v10, s{sT}, v17")
    a("v_xor_b32 v11, 32, v10")
    for c in range(6): a(f"v_mov_b32 v{60+c}, 0")
    a("v_mov_b32 v16, 0\nv_mov_b32 v17, 0\nv_mov_b32 v18, 0\nv_mov_b32 v19, 0")
    a(f"v_add_u32 v20, {L_CS}, v94")
    a("ds_write_b128 v20, v[16:19]")
    a("ds_write_b128 v20, v[16:19] offset:1024")
    ONES = 55
    a(f"s_mov_b32 s{ONES}, 0x3f803f80")
    if opt.get("lprio", 1): a(f"s_setprio {opt.get('lprio', 1)}")
    KEY, TT, CAND = 28, 36, 44
    ST = sT
    keys = list(range(KEY, KEY+8))
    a("s_waitcnt lgkmcnt(0)")
    vm.wait("T0")
    a("s_barrier")
    a.stamp(1)
    assert opt.get("p0", 8) <= 8
    P0 = opt.get("p0", 7)
    cb = Asm()
    cb.label(f"{name}_colsum")
    for c in range(6):
        for t_ in range(2):
            cb(f"ds_read_b64_tr_b16 {vr(68+4*c+2*t_,2)}, v{10+(c&1)} offset:{(c>>1)*8192+t_*512}")
    for hf in range(2):
        cb(f"s_waitcnt lgkmcnt({6-6*hf})")
        for q in range(4):
            for c in range(3*hf, 3*hf+3):
                cb(f"v_dot2c_f32_bf16 v{60+c}, s{ONES}, v{68+4*c+q}")
    cb("s_nop 2")
    cb("v_permlane32_swap_b32 v60, v62")
    cb("v_permlane32_swap_b32 v61, v63")
    cb("v_permlane16_swap_b32 v64, v65")
    cb("v_add_f32 v60, v60, v62")
    cb("v_add_f32 v61, v61, v63")
    cb("v_add_f32 v64, v64, v65")
    cb("s_nop 0")
    cb("v_mov_b32 v65, v64")
    cb("v_permlane16_swap_b32 v60, v61")
    cb("s_nop 0")
    cb("v_permlane32_swap_b32 v64, v65")
    cb("v_add_f32 v60, v60, v61")
    cb("v_add_f32 v64, v64, v65")
    cb(f"s_lshl_b32 s{sT}, s{sJ}, 4")
    cb(f"s_add_u32 s{sT}, s{sT}, s{sMT}")
    cb(f"s_lshl_b32 s{sT}, s{sT}, 2")
    cb(f"s_add_u32 s{sT}, s{sT}, s{LW}")
    cb(f"s_mul_i32 s{sT}, s{sT}, 384")
    cb(f"s_add_u32 s{sT}, s{sT}, {WS_CSP}")
    cb("v_lshlrev_b32 v47, 2, v0")
    cb(f"buffer_store_dword v60, v47, {srd(sWS)}, s{sT} offen sc1")
    cb("s_bfm_b64 exec, 32, 0")
    cb(f"buffer_store_dword v64, v47, {srd(sWS)}, s{sT} offen offset:256 sc1")
    cb("s_mov_b64 exec, -1")
    cb("s_setpc_b64 s[70:71]")
    cold.append(cb)
    def lines(fn):
        tmp = Asm(); tmp.uid = a.uid; fn(tmp); a.uid = tmp.uid
        out, grp = [], None
        for l in tmp.lines:
            s_ = l.strip()
            if grp is not None:
                grp.append(s_)
                if s_ == "s_mov_b64 exec, -1": out.append(grp); grp = None
            elif ("exec," in s_ and s_ != "s_mov_b64 exec, -1") or "saveexec" in s_: grp = [s_]
            else: out.append([s_])
        assert grp is None
        return [(lambda g=g: a(*g)) for g in out]
    def cs_load(i):
        def f():
            a(f"s_mul_i32 s{sT+2}, s{sJ}, {32*768}")
            a(f"s_mul_i32 s{sT+3}, s{LW}, 192")
            a(f"s_add_u32 s{sT+2}, s{sT+2}, s{sT+3}")
            a(f"s_add_u32 s{sT+2}, s{sT+2}, {WS_CSP + (i//4)*4*768}")
            a(f"buffer_load_dwordx4 {vr(60+4*i,4)}, v51, {srd(sWS)}, s{sT+2} offen offset:{(i%4)*768} sc1")
            vm.issue("csl")
        return f
    for kt in range(16):
        atoms = []
        if kt == 0:
            a(f"s_cmp_lg_u32 s{W}, 4")
            a(f"s_cbranch_scc1 {name}_nopub")
            publish_stats(a, vm, 96)
            a.label(f"{name}_nopub")
        if kt < 4:
            lab = a.new_label(f"{name}_cs")
            a(f"s_cmp_lg_u32 s{SH}, {kt}")
            a(f"s_cbranch_scc1 {lab}")
            a(f"s_call_b64 s[70:71], {name}_colsum")
            a.label(lab)
            vm.issue("cs", 2, cond=True)
        if 2 <= kt < 6:
            lab = a.new_label(f"{name}_cf")
            a(f"s_add_u32 s{sT}, s{SH}, 2")
            a(f"s_cmp_lg_u32 s{sT}, {kt}")
            a(f"s_cbranch_scc1 {lab}")
            a(f"s_cmp_lg_u32 s{W}, 4")
            a(f"s_cbranch_scc1 {lab}")
            csf_addr(a, sT, sT+1)
            a(f"v_mov_b32 v45, s{sT}")
            a("v_mov_b32 v46, 1")
            a("s_mov_b64 exec, 1")
            a(f"buffer_store_dword v46, v45, {srd(sWS)}, 0 offen sc1")
            a("s_mov_b64 exec, -1")
            a.label(lab)
            vm.issue("csf", 1, cond=True)
        if kt == 2:
            a(f"s_cmp_lg_u32 s{W}, 4")
            a(f"s_cbranch_scc1 {name}_nosig")
            a(f"s_lshl_b32 s{sT}, s{sMT}, 4")
            a(f"v_mov_b32 v45, s{sT}")
            a("v_mov_b32 v46, 1")
            a("s_mov_b64 exec, 1")
            a(f"buffer_atomic_add v46, v45, {srd(sDBG)}, 0 offen sc1")
            a("s_mov_b64 exec, -1")
            a.label(f"{name}_nosig")
            vm.issue("sig", 1, cond=True)
        if kt == P0:
            a("v_and_b32 v45, 15, v0")
            a("v_lshlrev_b32 v45, 4, v45")
            a(f"buffer_load_dword v46, v45, {srd(sDBG)}, 0 offen sc1")
            vm.issue("poll")
        if kt == P0 + 1:
            poll_check(a, f"{name}_p1", 46, 45, sDBG, 16, -1, cold)
            a(f"s_lshl_b32 s{sT}, s{LW}, 11")
            a(f"s_add_u32 s{sT}, s{sT}, {WS_R}")
            a(f"buffer_load_dwordx4 {vr(KEY,4)}, v94, {srd(sWS)}, s{sT} offen sc1")
            a(f"buffer_load_dwordx4 {vr(KEY+4,4)}, v94, {srd(sWS)}, s{sT} offen offset:1024 sc1")
            a(f"s_lshl_b32 s{sT}, s{sMT}, 11")
            a(f"s_and_b32 s{sT+1}, s{LW}, 1")
            a(f"s_lshl_b32 s{sT+1}, s{sT+1}, 10")
            a(f"s_add_u32 s{sT}, s{sT}, s{sT+1}")
            a(f"s_add_u32 s{sT}, s{sT}, {WS_ST}")
            a("v_lshrrev_b32 v47, 3, v0")
            a("v_lshlrev_b32 v47, 7, v47")
            a("v_and_b32 v48, 7, v0")
            a("v_lshl_add_u32 v47, v48, 2, v47")
            a(f"buffer_load_dword v48, v47, {srd(sWS)}, s{sT} offen sc1")
            a(f"buffer_load_dword v49, v47, {srd(sWS)}, s{sT} offen offset:32 sc1")
            vm.issue("side", 4)
        if kt == 9:
            a(f"s_lshl_b32 s{sT}, s{sJ}, 7")
            a(f"s_add_u32 s{sT}, s{sT}, {WS_CSF}")
            a("v_and_b32 v52, 15, v0")
            a("v_lshlrev_b32 v52, 2, v52")
            a(f"v_add_u32 v52, s{sT}, v52")
            a(f"buffer_load_dword v53, v52, {srd(sWS)}, 0 offen sc1")
            vm.issue("poll")
            def f(o):
                o("v_and_b32 v51, 15, v0")
                o("v_cmp_gt_u32 vcc, 12, v51")
                o("v_lshlrev_b32 v51, 4, v51")
                o("v_lshrrev_b32 v50, 4, v0")
                o("v_mul_u32_u24 v50, 8*768, v50")
                o("v_add_u32 v51, v51, v50")
                o("v_mov_b32 v50, 0x7fff0000")
                o("v_cndmask_b32 v51, v50, v51, vcc")
            atoms += lines(f)
        if kt == 10: poll_check(a, f"{name}_p2", 53, 52, sWS, 1, -1, cold)
        if 10 <= kt <= 13:
            i0 = 2*(kt - 10)
            atoms += [cs_load(i0), cs_load(i0+1)]
        if kt == P0 + 2:
            def f(o):
                o(f"s_and_b32 s{sT}, s{LW}, 1")
                o(f"s_lshl_b32 s{sT}, s{sT}, 8")
                o(f"s_add_u32 s{sT}, s{sT}, {L_M}")
                o("v_lshlrev_b32 v47, 2, v0")
                o(f"v_add_u32 v47, s{sT}, v47")
                o("ds_write_b32 v47, v48")
                o("ds_write_b32 v47, v49 offset:512")
                o(f"s_lshl_b32 s{sT}, s{LW}, 9")
                o("v_lshlrev_b32 v47, 2, v0")
                o(f"v_add_u32 v47, s{sT}, v47")
                make_keys(o, KEY, TT, 47, [0, 1, 2, 3, 256, 257, 258, 259])
                o(f"v_mov_b32 v{CAND}, 0")
                top8_round(o, keys, TT, CAND, ST, 0)
            atoms += lines(f)
        if kt == P0 + 3: atoms += lines(lambda o: [top8_round(o, keys, TT, CAND, ST, r) for r in (1, 2)])
        if kt == P0 + 4: atoms += lines(lambda o: [top8_round(o, keys, TT, CAND, ST, r) for r in (3, 4, 5)])
        if kt == P0 + 5:
            def f(o):
                for r in (6, 7): top8_round(o, keys, TT, CAND, ST, r)
                o(f"s_lshl_b32 s{sT}, s{LW}, 5")
                o(f"s_add_u32 s{sT}, s{sT}, {L_CAND}")
                o("v_lshlrev_b32 v47, 2, v0")
                o(f"v_add_u32 v47, s{sT}, v47")
                o("s_mov_b64 exec, 0xff")
                o(f"ds_write_b32 v47, v{CAND}")
                o("s_mov_b64 exec, -1")
            atoms += lines(f)
        if kt == P0 + 6:
            def f(o):
                o("v_and_b32 v47, 31, v0")
                o("v_lshlrev_b32 v47, 2, v47")
                o(f"v_add_u32 v47, {L_CAND}, v47")
                o(f"ds_read_b32 v{KEY}, v47")
                o("v_cmp_gt_u32 vcc, 32, v0")
                o("s_waitcnt lgkmcnt(0)")
                o(f"v_cndmask_b32 v{KEY}, 0, v{KEY}, vcc")
                for r in range(4): top8_round(o, [KEY], TT, CAND, ST, r)
            atoms += lines(f)
        if kt == P0 + 7:
            def f(o):
                for r in range(4, 8): top8_round(o, [KEY], TT, CAND, ST, r)
                decode_keys(o, CAND, 48, 49, TT)
                o("v_lshlrev_b32 v47, 2, v0")
                o(f"v_add_u32 v47, {L_IDX}, v47")
                o("s_mov_b64 exec, 0xff")
                o("ds_write_b32 v47, v48")
                o("ds_write_b32 v47, v49 offset:32")
                if opt.get("dbg"):
                    o(f"s_mov_b32 s{sT}, {WS_IDX}")
                    o("v_lshlrev_b32 v47, 2, v0")
                    o(f"buffer_store_dword v48, v47, {srd(sWS)}, s{sT} offen")
                    o(f"buffer_store_dword v49, v47, {srd(sWS)}, s{sT} offen offset:32")
                o("s_mov_b64 exec, -1")
            atoms += lines(f)
            if opt.get("dbg"): vm.issue("dbg", 2)
        if kt == 15:
            vm.wait("csl")
            for i in range(1, 8):
                for r in range(4): a(f"v_add_f32 v{60+r}, v{60+r}, v{60+4*i+r}")
            a("s_nop 1")
            a("v_permlane32_swap_b32 v60, v62")
            a("v_permlane32_swap_b32 v61, v63")
            a("v_add_f32 v60, v60, v62")
            a("v_add_f32 v61, v61, v63")
            a("s_nop 1")
            a("v_permlane16_swap_b32 v60, v61")
            a("v_add_f32 v60, v60, v61")
            a("v_and_b32 v47, 15, v0")
            a("v_cmp_gt_u32 vcc, 12, v47")
            a("v_lshlrev_b32 v47, 4, v47")
            a("v_lshrrev_b32 v50, 4, v0")
            a("v_lshl_add_u32 v47, v50, 2, v47")
            a(f"s_mul_i32 s{sT}, s{LW}, 192")
            a(f"s_add_u32 s{sT}, s{sT}, {L_CS}")
            a(f"v_add_u32 v47, s{sT}, v47")
            a("s_and_saveexec_b64 s[66:67], vcc")
            a("ds_write_b32 v47, v60")
            a("s_mov_b64 exec, -1")
        if kt <= 13: issue(kt+2, atoms)
        else:
            for at in atoms: at()
        a("s_waitcnt lgkmcnt(0)")
        a.trace(3*kt+1)
        if kt < 15: vm.wait(f"T{kt+1}", "poll", "side", *(["st"] if kt == 1 else []))
        a.trace(3*kt+2)
        a("s_barrier")
        a.trace(3*kt+3)
    a(f"s_lshl_b32 s{sT}, s{LW}, 13")
    a(f"v_add_u32 v2, s{sT}, v94")
    a(f"s_lshl_b32 s{sT+1}, s{sJ}, 1")
    a(f"s_lshr_b32 s{sT+2}, s{LW}, 1")
    a(f"s_add_u32 s{sT+1}, s{sT+1}, s{sT+2}")
    a(f"s_lshl_b32 s{sT+1}, s{sT+1}, 5")
    a(f"s_lshl_b32 s{sT+2}, s{sMT}, 1")
    a(f"s_add_u32 s{sT+1}, s{sT+1}, s{sT+2}")
    a(f"s_and_b32 s{sT+2}, s{LW}, 1")
    a(f"s_add_u32 s{sT+1}, s{sT+1}, s{sT+2}")
    a(f"s_lshl_b32 s{sT+1}, s{sT+1}, 13")
    a(f"s_add_u32 s{sT+1}, s{sT+1}, {WS_KV}")
    a(f"s_add_u32 s{sT+2}, s{sT+1}, 4096")
    a("s_barrier")
    for q in range(8): a(f"ds_read_b128 {vr(96+4*q,4)}, v2 offset:{q*1024}")
    for q in range(8):
        a(f"s_waitcnt lgkmcnt({7-q})")
        a(f"buffer_store_dwordx4 {vr(96+4*q,4)}, v94, {srd(sWS)}, s{sT+1+(q>>2)} offen offset:{(q&3)*1024} sc1")
    return vm

ACC, B0 = 96, 8
def accreg(ct, tt): return ACC + 16*ct + 4*tt

def phaseA_consumer(a, name, cold, opt):
    vm = VM(a)
    XA, WA = 1, 3
    a("s_waitcnt lgkmcnt(0)")
    ws_base(a, opt)
    a.stamp(4)
    ln_loads(a, vm, opt)
    if opt.get("cpf", True):
        a(f"s_cmp_lg_u32 s{W}, 0")
        a(f"s_cbranch_scc1 {name}_nocpf")
        a(f"s_getpc_b64 s[{sT+8}:{sT+9}]")
        a.label(f"{name}_pc")
        a(f"s_sub_u32 s{sT+8}, s{sT+8}, {name}_pc-{name}")
        a(f"s_subb_u32 s{sT+9}, s{sT+9}, 0")
        a(f"s_lshl_b32 s{sT}, s{sLI}, 4")
        a("v_and_b32 v8, 15, v0")
        a(f"v_add_u32 v8, s{sT}, v8")
        a("v_lshlrev_b32 v8, 7, v8")
        a(f"v_min_u32 v8, {name}_end-{name}-4, v8")
        a(f"global_load_dword v250, v8, s[{sT+8}:{sT+9}]")
        a.label(f"{name}_nocpf")
        vm.issue("cpf", 1, cond=True)
    WM, WN = 52, 53
    a(f"s_lshr_b32 s{WM}, s{W}, 1")
    a(f"s_and_b32 s{WN}, s{W}, 1")
    a("v_and_b32 v8, 15, v0")
    a("v_lshrrev_b32 v9, 4, v0")
    a(f"s_lshl_b32 s{sT}, s{WM}, 6")
    a(f"v_add_u32 v10, s{sT}, v8")
    a("v_lshlrev_b32 v10, 7, v10")
    a("v_bfe_u32 v11, v0, 1, 3")
    a("v_xor_b32 v11, v11, v9")
    a(f"v_lshl_add_u32 v{XA}, v11, 4, v10")
    a(f"v_xor_b32 v{XA+1}, 64, v{XA}")
    a("v_bfe_u32 v10, v0, 2, 2")
    a("v_lshl_add_u32 v10, v9, 3, v10")
    a("v_lshlrev_b32 v10, 7, v10")
    a("v_and_b32 v11, 3, v0")
    a("v_lshl_add_u32 v10, v11, 3, v10")
    a("v_and_b32 v11, 1, v9")
    a("v_lshlrev_b32 v11, 1, v11")
    a("v_bfe_u32 v12, v0, 3, 1")
    a("v_or_b32 v11, v11, v12")
    a(f"s_lshl_b32 s{sT}, s{WN}, 1")
    a(f"v_xor_b32 v11, s{sT}, v11")
    a("v_lshl_add_u32 v10, v11, 5, v10")
    a(f"v_add_u32 v{WA}, {WOFF}, v10")
    a(f"v_xor_b32 v{WA+1}, 32, v{WA}")
    a.stamp(5)
    vm.wait("lnld")
    a.stamp(6)
    assert WS_XN == 0
    ln_rows2(a, vm, 96, 112, 120, 152, 95, opt.get("dbg"), opt.get("lnrows", 2))
    for r in range(96): a(f"v_mov_b32 v{ACC+r}, 0")
    def reads(buf, ks):
        b = B0 + 40*buf
        xr = [f"ds_read_b128 {vr(b+4*tt,4)}, v{XA+ks} offset:{tt*2048}" for tt in range(4)]
        wr = [f"ds_read_b64_tr_b16 {vr(b+16+4*ct+2*t,2)}, v{WA+(ct&1)} offset:{(ct>>1)*8192+ks*4096+t*512}" for ct in range(6) for t in range(2)]
        return [xr[0]] + wr[0:2] + xr[1:4] + wr[2:]
    def mfmas(buf):
        b = B0 + 40*buf
        o = []
        for ct in range(6):
            for tt in range(4):
                x = vr(b+4*tt, 4); w = vr(b+16+4*ct, 4)
                A, B = (w, x) if ct < 4 else (x, w)
                o.append(f"v_mfma_f32_16x16x32_bf16 {vr(accreg(ct,tt),4)}, {A}, {B}, {vr(accreg(ct,tt),4)}")
        return o
    KT, SI, DL, NEG = 48, 49, 50, 51
    pf = opt.get("pf", False)
    PD, PO, PV = 56, 54, 5
    if pf:
        for q in range(3):
            a(f"s_cmp_eq_u32 s{W}, 0")
            a(f"s_cselect_b32 s{PD+q}, s{sWG+q}, s{sWU+q}")
            a(f"s_cmp_eq_u32 s{W}, 2")
            a(f"s_cselect_b32 s{PD+q}, s{sWD+q}, s{PD+q}")
            a(f"s_cmp_eq_u32 s{W}, 3")
            a(f"s_cselect_b32 s{PD+q}, s{sWO+q}, s{PD+q}")
        a(f"s_mov_b32 s{PD+3}, 0x00020000")
        a(f"s_cselect_b32 s{PO}, 8192, 28672 + 0" if False else f"s_movk_i32 s{PO}, 0x7000")
        a(f"s_cselect_b32 s{PO}, 0x2000, s{PO}")
        a(f"s_mul_i32 s{PO}, s{PO}, s2")
        a(f"s_sub_u32 s{PO}, s{PO}, {opt.get('pf0', 2)*2048}")
        a(f"v_lshlrev_b32 v{PV}, 7, v0")
        a("v_cmp_gt_u32 vcc, 16, v0")
        a("v_mov_b32 v6, 0x7fff0000")
        a("s_nop 0")
        a(f"v_cndmask_b32 v{PV}, v6, v{PV}, vcc")
    a(f"s_mov_b32 s{KT}, 0")
    a(f"s_mov_b32 s{SI}, 0")
    a(f"s_mov_b32 s{NEG}, {(-2*SLOT) & 0xffffffff:#x}")
    a("s_waitcnt lgkmcnt(0)")
    if opt.get("cprio"): a(f"s_setprio {opt['cprio']}")
    a("s_barrier")
    a.stamp(1); a.cstamp(7)
    a(*reads(0, 0))
    a(".p2align 6")
    a.label(f"{name}_cloop")
    per = opt.get("rpg", 1)
    skip = opt.get("rskip", 0)
    if opt.get("nods"): reads = lambda buf, ks: []
    def weave(m, r, extra):
        i = 0
        for k, x in enumerate(m):
            a(x)
            if k < skip: continue
            a(*r[i:i+per]); i += per
            if i - per >= len(r) and extra: a(extra.pop(0))
    m = mfmas(0); r = reads(1, 1)
    a(f"s_add_u32 s{SI}, s{SI}, 1")
    a(f"s_cmp_eq_u32 s{SI}, 3")
    a(f"s_cselect_b32 s{DL}, s{NEG}, {SLOT}")
    a(f"s_cselect_b32 s{SI}, 0, s{SI}")
    a("s_waitcnt lgkmcnt(0)")
    weave(m, r, [f"v_add_u32 v{q}, s{DL}, v{q}" for q in (1, 2, 3, 4)])
    m = mfmas(1); r = reads(0, 0)
    a("s_waitcnt lgkmcnt(0)")
    a(m[0])
    a("s_barrier")
    if pf:
        a(f"s_cmp_lt_u32 s{KT}, {opt.get('pf0', 2)}")
        a(f"s_cselect_b32 s{sT}, 0x7fff0000, s{PO}")
        a(f"buffer_load_dword v254, v{PV}, {srd(PD)}, s{sT} offen")
        a(f"s_add_u32 s{PO}, s{PO}, 2048")
    weave(m[1:], r, [f"s_add_u32 s{KT}, s{KT}, 1", f"s_cmp_lt_u32 s{KT}, 16"])
    a(f"s_cbranch_scc1 {name}_cloop")
    vm.q = []
    if opt.get("cprio"): a("s_setprio 0")
    a.stamp(2); a.cstamp(8)
    MR, CSQ, MV, RV, CSV, QR, AD, PK = 8, 16, 32, 48, 64, 66, 74, 78
    a("s_waitcnt lgkmcnt(0)")
    a("v_and_b32 v1, 15, v0")
    a("v_lshrrev_b32 v2, 4, v0")
    a(f"s_lshl_b32 s{sT}, s{WM}, 8")
    a(f"s_add_u32 s{sT}, s{sT}, {L_M}")
    a(f"s_mul_i32 s{sT+1}, s{WN}, 384")
    a(f"s_add_u32 s{sT+1}, s{sT+1}, {L_CS}")
    a("v_lshlrev_b32 v3, 2, v1")
    a(f"v_add_u32 v4, s{sT}, v3")
    for tt in range(4):
        a(f"ds_read_b32 v{MR+2*tt}, v4 offset:{tt*64}")
        a(f"ds_read_b32 v{MR+2*tt+1}, v4 offset:{tt*64+512}")
    a("v_lshlrev_b32 v5, 4, v2")
    a(f"v_add_u32 v6, s{sT+1}, v5")
    for ct in range(4): a(f"ds_read_b128 {vr(CSQ+4*ct,4)}, v6 offset:{ct*64}")
    a(f"v_add_u32 v6, s{sT}, v5")
    a(f"v_add_u32 v3, s{sT+1}, v3")
    a(f"ds_read_b32 v{CSV}, v3 offset:256")
    a(f"ds_read_b32 v{CSV+1}, v3 offset:320")
    for tt in range(4):
        a(f"ds_read_b128 {vr(MV+4*tt,4)}, v6 offset:{tt*64}")
        a(f"ds_read_b128 {vr(RV+4*tt,4)}, v6 offset:{tt*64+512}")
    a("v_lshrrev_b32 v3, 1, v2")
    a("v_and_b32 v4, 1, v2")
    a("v_lshl_add_u32 v5, v3, 5, v1")
    a("v_lshlrev_b32 v5, 4, v5")
    a("v_lshl_add_u32 v5, v4, 3, v5")
    a("v_lshl_add_u32 v6, v4, 5, v1")
    a("v_lshlrev_b32 v6, 4, v6")
    a("v_lshl_add_u32 v6, v3, 3, v6")
    a(f"s_lshl_b32 s{sT}, s{WN}, 1")
    a(f"s_add_u32 s{sT}, s{sT}, s{WM}")
    a(f"s_lshl_b32 s{sT}, s{sT}, 13")
    a(f"v_add_u32 v{AD}, s{sT}, v5")
    a(f"v_add_u32 v{AD+1}, s{sT}, v6")
    a(f"s_lshr_b32 s{sT}, s{sT}, 1")
    a(f"s_add_u32 s{sT}, s{sT}, {L_Q}")
    a(f"v_add_u32 v{AD+2}, s{sT}, v5")
    a(f"s_mov_b32 s{sT+1}, {QSCALE:#x}")
    a("s_waitcnt lgkmcnt(10)")
    for tt in range(4):
        a(f"v_mul_f32 v{QR+2*tt+1}, s{sT+1}, v{MR+2*tt+1}")
    n = 0
    def fin(ct, tt):
        nonlocal n
        r = accreg(ct, tt)
        p = PK + 2*(n % 4); n += 1
        for hf in range(2):
            pr = vr(r+2*hf, 2)
            if ct < 4:
                a(f"v_pk_fma_f32 {pr}, {vr(CSQ+4*ct+2*hf,2)}, {vr(MR+2*tt,2)}, {pr} op_sel_hi:[1,0,1] neg_lo:[0,1,0] neg_hi:[0,1,0]")
                sc = QR if ct < 2 else MR
                a(f"v_pk_mul_f32 {pr}, {pr}, {vr(sc+2*tt,2)} op_sel:[0,1] op_sel_hi:[1,1]")
            else:
                sel = "op_sel_hi:[1,0,1]" if ct == 4 else "op_sel:[0,1,0] op_sel_hi:[1,1,1]"
                a(f"v_pk_fma_f32 {pr}, {vr(MV+4*tt+2*hf,2)}, {vr(CSV,2)}, {pr} {sel} neg_lo:[0,1,0] neg_hi:[0,1,0]")
                a(f"v_pk_mul_f32 {pr}, {pr}, {vr(RV+4*tt+2*hf,2)}")
            a(f"v_cvt_pk_bf16_f32 v{p+hf}, v{r+2*hf}, v{r+2*hf+1}")
        if ct < 2:   a(f"ds_write_b64 v{AD+2}, {vr(p,2)} offset:{(tt>>1)*2048 + ct*1024 + (tt&1)*256}")
        elif ct < 4: a(f"ds_write_b64 v{AD}, {vr(p,2)} offset:{(tt>>1)*4096 + (ct-2)*1024 + (tt&1)*256}")
        else:        a(f"ds_write_b64 v{AD+1}, {vr(p,2)} offset:{(tt>>1)*4096 + 2048 + (tt&1)*1024 + (ct-4)*256}")
    a("s_waitcnt lgkmcnt(0)")
    for ct in (2, 3, 4, 5):
        for tt in range(4): fin(ct, tt)
    a("s_waitcnt lgkmcnt(0)")
    a("s_barrier")
    for ct in (0, 1):
        for tt in range(4): fin(ct, tt)
    a("s_waitcnt lgkmcnt(0)")
    return vm

def publish_kv(a, vm, R, opt):
    a(f"v_lshlrev_b32 v{R.VL}, 4, v0")
    a(f"s_and_b32 s{sT+1}, s{W}, 1")
    a(f"s_lshl_b32 s{sT+1}, s{sT+1}, 1")
    a(f"s_bfe_u32 s{sT+2}, s{W}, 0x10001")
    a(f"s_add_u32 s{sT+1}, s{sT+1}, s{sT+2}")
    a(f"s_lshl_b32 s{sT+1}, s{sT+1}, 12")
    a(f"s_add_u32 s{sT+1}, s{sT+1}, {L_Q}")
    a(f"v_add_u32 v3, s{sT+1}, v{R.VL}")
    for q in range(4): a(f"ds_read_b128 {vr(R.Q+4*q,4)}, v3 offset:{q*1024}")
    if opt.get("dbg"):
        a("s_waitcnt lgkmcnt(0)")
        head_of(a, sT+1, sT+2)
        a(f"s_lshl_b32 s{sT+1}, s{sT+1}, 6")
        a(f"s_lshl_b32 s{sT+2}, s{sMT}, 2")
        a(f"s_add_u32 s{sT+1}, s{sT+1}, s{sT+2}")
        a(f"s_and_b32 s{sT+2}, s{W}, 2")
        a(f"s_add_u32 s{sT+1}, s{sT+1}, s{sT+2}")
        a(f"s_lshl_b32 s{sT+1}, s{sT+1}, 11")
        a(f"s_add_u32 s{sT+1}, s{sT+1}, {WS_Q}")
        for q in range(4):
            a(f"buffer_store_dwordx4 {vr(R.Q+4*q,4)}, v{R.VL}, {srd(sWS)}, s{sT+1} offen offset:{q*1024}")
        vm.drain()

def gen_fused(name, **opt):
    a = Asm(); cold = []
    R = AT.AttnRegs
    prologue(a, name, opt)
    a(f"s_cmp_ge_u32 s{W}, 4")
    a(f"s_cbranch_scc1 {name}_loader")
    phaseA_consumer(a, name, cold, opt)
    a(f"s_branch {name}_joinA")
    a.label(f"{name}_loader")
    phaseA_loader(a, name, cold, opt)
    a.stamp(2)
    a("s_setprio 0")
    a.label(f"{name}_joinA")
    a("s_barrier")
    a.stamp(3)
    if opt.get("dbgtime"): a("s_memrealtime s[94:95]")
    vm = VM(a)
    publish_kv(a, vm, R, opt)
    if opt.get("stop") != "A":
        import fused_bc
        fused_bc.phaseB(a, name, cold, opt, vm)
        if opt.get("stop") != "B":
            fused_bc.phaseC(a, name, cold, opt, vm)
    if opt.get("probe"):
        i_, j_ = opt["probe"]
        a("s_waitcnt vmcnt(0) lgkmcnt(0)")
        a.stamp(9)
        a("s_waitcnt lgkmcnt(0)")
        a(f"s_or_b32 s76, s81, s{W}")
        a(f"s_cmp_lg_u32 s76, 0")
        a(f"s_cbranch_scc1 {name}_done")
        a(f"s_sub_u32 s76, s{82+2*j_}, s{82+2*i_}")
        a("s_lshl_b32 s76, s76, 2")
        a.label(f"{name}_probe")
        a("s_memrealtime s[78:79]")
        a("s_waitcnt lgkmcnt(0)")
        a("s_sub_u32 s78, s78, s100")
        a("s_cmp_lt_u32 s78, s76")
        a(f"s_cbranch_scc1 {name}_probe")
    else:
        a.stamp_dump(0, W)
    if opt.get("dbgtime"):
        a("s_waitcnt vmcnt(0)")
        a("s_memrealtime s[98:99]")
        a("s_waitcnt lgkmcnt(0)")
        a("s_not_b32 s96, s96")
        a("v_mov_b32 v1, 4")
        a("v_mov_b32 v2, s96")
        a("v_mov_b32 v3, s98")
        a("v_mov_b32 v4, s94")
        a(f"s_cmp_lg_u32 s{W}, 0")
        a(f"s_cbranch_scc1 {name}_done")
        a("s_mov_b64 exec, 1")
        a(f"buffer_atomic_umax v2, v1, {srd(sDBG)}, 0 offen sc1")
        a(f"buffer_atomic_umax v3, v1, {srd(sDBG)}, 0 offen offset:4 sc1")
        a(f"buffer_atomic_umax v4, v1, {srd(sDBG)}, 0 offen offset:8 sc1")
        a("s_mov_b64 exec, -1")
    a.label(f"{name}_done")
    a("s_endpgm")
    for c in cold: a.lines += c.lines
    a.label(f"{name}_end")
    a("s_endpgm")
    return kernel_header(name) + a.text() + kernel_desc(name, 256, 102)

def xsel_fetch(a, vm, vidx, XR, XST):
    a(f"v_readlane_b32 s{sT}, v{vidx}, s{W}")
    a("s_nop 3")
    a(f"s_lshl_b32 s{sT+1}, s{sT}, 11")
    a(f"buffer_load_dwordx4 {vr(XR,4)}, v1, {srd(sX)}, s{sT+1} offen")
    a(f"buffer_load_dwordx4 {vr(XR+4,4)}, v1, {srd(sX)}, s{sT+1} offen offset:1024")
    a(f"s_lshr_b32 s{sT+1}, s{sT}, 3")
    a(f"s_lshl_b32 s{sT+1}, s{sT+1}, 5")
    a(f"s_and_b32 s{sT}, s{sT}, 7")
    a(f"s_add_u32 s{sT}, s{sT}, s{sT+1}")
    a(f"s_lshl_b32 s{sT}, s{sT}, 2")
    a(f"s_add_u32 s{sT}, s{sT}, {WS_ST}")
    a(f"v_mov_b32 v{XST+1}, s{sT}")
    a(f"buffer_load_dword v{XST}, v{XST+1}, {srd(sWS)}, 0 offen sc1")
    a(f"buffer_load_dword v{XST+1}, v{XST+1}, {srd(sWS)}, 0 offen offset:32 sc1")
    vm.issue("xsel", 4)

def xsel_normalise(a, T, XR, XST):
    XF = T + 2
    a(f"v_lshrrev_b32 v{T}, 2, v0")
    a(f"v_lshlrev_b32 v{T}, 9, v{T}")
    a(f"v_and_b32 v{T+1}, 3, v0")
    a(f"v_lshl_add_u32 v{T}, v{T+1}, 7, v{T}")
    a(f"s_lshl_b32 s{sT}, s{W}, 4")
    a(f"s_add_u32 s{sT}, s{sT}, {L_XS}")
    a(f"v_add_u32 v{T}, s{sT}, v{T}")
    for p in range(8):
        x = XR + p
        f0, f1 = XF + 2*(p & 1), XF + 2*(p & 1) + 1
        a(f"v_lshlrev_b32 v{f0}, 16, v{x}")
        a(f"v_and_b32 v{f1}, 0xffff0000, v{x}")
        a(f"v_sub_f32 v{f0}, v{f0}, v{XST}")
        a(f"v_sub_f32 v{f1}, v{f1}, v{XST}")
        a(f"v_cvt_pk_bf16_f32 v{x}, v{f0}, v{f1}")
        a(f"v_lshlrev_b32 v{f0}, 16, v{x}")
        a(f"v_and_b32 v{f1}, 0xffff0000, v{x}")
        a(f"v_mul_f32 v{f0}, v{f0}, v{XST+1}")
        a(f"v_mul_f32 v{f1}, v{f1}, v{XST+1}")
        a(f"v_cvt_pk_bf16_f32 v{x}, v{f0}, v{f1}")
    a(f"ds_write_b128 v{T}, {vr(XR,4)}")
    a(f"ds_write_b128 v{T}, {vr(XR+4,4)} offset:8192")
```

```python
from asmlib import *
from layout import *
from fused import *
import fused as FU
from k_attn import M32, M16
import k_attn2 as AT
from k_attn2 import SM
from k_attn3 import Regs3
from k_moe import pi_row, round_bf16
from k_top8 import make_keys, decode_keys

L_S1, L_S2, L_EX, L_LX, L_HI = 32768, 98304, 131072, 129024, 133120
KH, HB, KA, KBK, VA, VBK, MASK, NEED, RET, S1O, HASJ, S2O, WOO, WOM = 48, 49, 50, 51, 52, 53, 54, 55, 56, 58, 59, 60, 61, 62
XSF, MACC, VFR, VD1, VD2, VP, VPA, VT = 220, 236, 243, 244, 245, 246, 247, 248
C_MS, C_IX, C_G, C_WT, C_AY = 206, 210, 212, 238, 250
C_XP, C_VX = 196, 204
WBF = 20

def unit(a, R, t, q, nb, hook=None, noqk=False):
    Sc, Sn = (R.S0, R.S1) if q == 0 else (R.S1, R.S0)
    P, Q, O, L = R.P, R.Q, R.O, R.L
    qn = 1 - q
    kn = t if q == 0 else t + 1
    vp = t - 1 if q == 0 else t
    K = R.KB + 8*(kn % nb); Vp = R.VB + 8*(vp % nb); Vc = R.VB + 8*(t % nb)
    e = lambda i: f"v_exp_f32 v{Sc+i}, v{Sc+i}"
    c = lambda i: f"v_cvt_pk_bf16_f32 v{P+i}, v{Sc+2*i}, v{Sc+2*i+1}"
    h = hook or (lambda pos: None)
    h("Ma")
    if not noqk: a(M32(Sn, K, Q+8*qn, None))
    h("Ma+"); a(e(0), e(1), e(2))
    h("Md"); a(M32(O+16*qn, Vp+4, P+4, O+16*qn)); h("Md+"); a(e(3), e(4), e(5))
    a(SM(L+4*qn, R.ONES, P, R.IDX), c(0), c(1), e(6), e(7))
    h("Mb")
    if not noqk: a(M32(Sn, K+4, Q+8*qn+4, Sn))
    h("Mb+"); a(c(2), c(3), e(8), e(9))
    h("Mc"); a(M32(O+16*q, Vc, P, O+16*q)); h("Mc+")
    a(e(10), e(11), c(4), e(12), c(5), e(13), e(14), e(15), c(6), c(7))

def flag_set(a, vm, saddr, v0_, v1_):
    a(f"v_mov_b32 v{v0_}, s{saddr}")
    a(f"v_mov_b32 v{v1_}, 1")
    a("s_mov_b64 exec, 1")
    a(f"buffer_store_dword v{v1_}, v{v0_}, {srd(sWS)}, 0 offen sc1")
    a("s_mov_b64 exec, -1")

def phaseB(a, name, cold, opt, vm):
    R = Regs3
    VL, Q, P, O, L, T = R.VL, R.Q, R.P, R.O, R.L, R.T
    NB, NT = 4, 32
    BAR = opt.get("bar", 4)
    moe = opt.get("moe", True)
    nt = lambda k: "nt" if k in opt.get("nt", "ms") else ""
    a(f"s_lshr_b32 s{KH}, s{W}, 2")
    a(f"s_and_b32 s{sT}, s{W}, 1")
    a(f"s_lshl_b32 s{sT}, s{sT}, 1")
    a(f"s_add_u32 s{sT}, s{sT}, s{KH}")
    a(f"s_lshl_b32 s{sT}, s{sT}, 13")
    a(f"v_add_u32 v2, s{sT}, v{VL}")
    for t in range(2):
        for hf in range(2):
            a(f"ds_read_b128 {vr(R.KB+8*t+4*hf,4)}, v2 offset:{t*4096+hf*1024}")
    for t in range(2):
        for hf in range(2):
            a(f"ds_read_b128 {vr(R.VB+8*t+4*hf,4)}, v2 offset:{t*4096+2048+hf*1024}")
    head_of(a, HB, sT)
    a(f"s_lshl_b32 s{sT+1}, s{HB}, 11")
    a(f"s_lshl_b32 s{HB}, s{HB}, 18")
    a(f"s_add_u32 s{HB}, s{HB}, {WS_KV}")
    a(f"s_mov_b32 s{NEED}, 0xfffe")
    a(f"s_lshl_b32 s{sT}, s{KH}, 13")
    a(f"s_add_u32 s{S1O}, s{HB}, s{sT}")
    KVB = 63
    a(f"s_mov_b32 s{KVB}, s{S1O}")
    a(f"v_add_u32 v{VPA}, s{sMT}, v0")
    a(f"v_and_b32 v{VPA}, 15, v{VPA}")
    a(f"v_lshlrev_b32 v{VPA}, 7, v{VPA}")
    a(f"s_lshl_b32 s{sT}, s{KH}, 2")
    a(f"s_add_u32 s{sT}, s{sT}, s{sT+1}")
    a(f"s_add_u32 s{sT}, s{sT}, {WS_KVF}")
    a(f"v_add_u32 v{VPA}, s{sT}, v{VPA}")
    a(f"s_mov_b32 s{MASK}, 0")
    if moe:
        a(f"s_cmp_lt_u32 s{sLI}, 28")
        a(f"s_cselect_b32 s{HASJ}, 1, 0")
        a(f"v_bfe_u32 v{VD2}, v0, 5, 1")
        a(f"v_lshlrev_b32 v{VD2}, 3, v{VD2}")
        a(f"v_bfe_u32 v{VT}, v0, 3, 2")
        a(f"v_add_u32 v{VD2}, v{VD2}, v{VT}")
        a(f"v_bfe_u32 v{VT}, v0, 4, 2")
        a(f"v_lshlrev_b32 v{VT}, 1, v{VT}")
        a(f"v_and_b32 v{VT+1}, 7, v0")
        a(f"v_xor_b32 v{VT}, v{VT}, v{VT+1}")
        a(f"v_lshlrev_b32 v{VT}, 4, v{VT}")
        a(f"v_mul_u32_u24 v{VD1}, 7168, v{VD2}")
        a(f"v_add_u32 v{VD1}, v{VD1}, v{VT}")
        a(f"v_lshl_add_u32 v{VD2}, v{VD2}, 11, v{VT}")
        a(f"v_lshrrev_b32 v{VFR}, 2, v0")
        a(f"v_lshlrev_b32 v{VFR}, 7, v{VFR}")
        a(f"v_bfe_u32 v{VT}, v0, 3, 2")
        a(f"s_and_b32 s{sT}, s{W}, 3")
        a(f"v_xor_b32 v{VT}, s{sT}, v{VT}")
        a(f"v_lshl_add_u32 v{VFR}, v{VT}, 5, v{VFR}")
        a(f"v_and_b32 v{VT}, 3, v0")
        a(f"v_lshl_add_u32 v{VFR}, v{VT}, 3, v{VFR}")
        cg_of(a, sT)
        a(f"s_and_b32 s{sT+1}, s{sT}, 3")
        a(f"s_lshl_b32 s{sT+1}, s{sT+1}, 3")
        a(f"s_add_u32 s{sT+1}, s{sT+1}, s{W}")
        a(f"s_mul_i32 s{S1O}, s{sT+1}, {32*7168}")
        a(f"s_lshr_b32 s{sT}, s{sT}, 2")
        a(f"s_lshl_b32 s{sT}, s{sT}, 7")
        a(f"s_add_u32 s{S1O}, s{S1O}, s{sT}")
        a(f"s_lshr_b32 s{S2O}, s2, 4")
        a(f"s_mul_i32 s{S2O}, s{S2O}, 224")
        a(f"s_lshl_b32 s{sT}, s{KH}, 5")
        a(f"s_add_u32 s{S2O}, s{S2O}, s{sT}")
        a(f"s_and_b32 s{sT}, s{W}, 1")
        a(f"s_lshl_b32 s{sT}, s{sT}, 4")
        a(f"s_add_u32 s{S2O}, s{S2O}, s{sT}")
        a(f"s_and_b32 s{sT}, s{W}, 2")
        a(f"s_lshl_b32 s{sT}, s{sT}, 1")
        a(f"s_add_u32 s{S2O}, s{S2O}, s{sT}")
        a(f"s_lshl_b32 s{S2O}, s{S2O}, 11")
        a(f"s_and_b32 s{sT}, s2, 15")
        a(f"s_lshl_b32 s{sT}, s{sT}, 7")
        a(f"s_add_u32 s{S2O}, s{S2O}, s{sT}")
    if moe:
        a(f"v_and_b32 v{VT}, 7, v0")
        a(f"v_lshlrev_b32 v{VT}, 2, v{VT}")
        a(f"v_add_u32 v{VT}, {L_IDX}, v{VT}")
        a(f"ds_read_b32 v{VT+1}, v{VT}")
    AT.attn_consts(a, R, sparse=opt.get('sparse', 1))
    for r in range(4): a(f"v_mov_b32 v{R.VB+8*3+4+r}, 0")
    a("s_waitcnt lgkmcnt(0)")
    if moe: xsel_fetch(a, vm, VT+1, 228, 236)
    a(M32(R.S0, R.KB, Q, None))
    a(M32(R.S0, R.KB+4, Q+4, R.S0))
    a("s_nop 10")

    c = Asm()
    c.label(f"{name}_kvspin")
    c(f"s_mov_b32 s{sT+11}, 0")
    c.label(f"{name}_kvagain")
    c(f"buffer_load_dword v{VP}, v{VPA}, {srd(sWS)}, 0 offen sc1")
    c(f"s_add_u32 s{sT+11}, s{sT+11}, 1")
    c(f"s_cmp_gt_u32 s{sT+11}, {SPIN_LIMIT}")
    c(f"s_cselect_b32 s{MASK}, s{NEED}, s{MASK}")
    c(f"s_cbranch_scc1 {name}_kvout")
    c("s_waitcnt vmcnt(0)")
    c(f"v_cmp_eq_u32 vcc, 1, v{VP}")
    c(f"s_mov_b32 s{MASK}, vcc_lo")
    c(f"s_and_b32 s{MASK}, s{MASK}, s{NEED}")
    if opt.get("fixed"):
        c(f"s_ff1_i32_b32 s{sT+10}, s{NEED}")
        c(f"s_bitcmp1_b32 s{MASK}, s{sT+10}")
    c(f"s_cbranch_scc0 {name}_kvagain")
    c.label(f"{name}_kvout")
    c(f"s_setpc_b64 s[{RET}:{RET+1}]")
    cold.append(c)
    def next_block():
        lab = a.new_label(f"{name}_nb")
        a(f"s_and_b32 s{MASK}, s{MASK}, s{NEED}")
        if opt.get("fixed"):
            a(f"s_ff1_i32_b32 s{sT+10}, s{NEED}")
            a(f"s_bitcmp1_b32 s{MASK}, s{sT+10}")
        a(f"s_cbranch_scc1 {lab}")
        a(f"s_call_b64 s[{RET}:{RET+1}], {name}_kvspin")
        a.label(lab)
        a(f"s_ff1_i32_b32 s{KBK}, s{MASK}")
        a(f"s_bitset0_b32 s{NEED}, s{KBK}")
        a(f"s_add_u32 s{KBK}, s{KBK}, s{sMT}")
        a(f"s_and_b32 s{KBK}, s{KBK}, 15")
        a(f"s_lshl_b32 s{KBK}, s{KBK}, 14")
        a(f"s_add_u32 s{KBK}, s{KBK}, s{KVB}")
    def adv(sr_, t):
        if t & 1: a(f"s_add_u32 s{sr_}, s{sr_}, 4096")
        else: a(f"s_mov_b32 s{sr_}, s{KBK}")
    def ldK(t, half):
        if half == 0:
            if not (t & 1): next_block()
            adv(KA, t)
        a(f"buffer_load_dwordx4 {vr(R.KB+8*(t%NB)+4*half,4)}, v{VL}, {srd(sWS)}, s{KA} offen offset:{half*1024}")
        vm.issue(f"K{t}_{half}")
    def ldV(t, half):
        if half == 0: adv(VA, t)
        a(f"buffer_load_dwordx4 {vr(R.VB+8*(t%NB)+4*half,4)}, v{VL}, {srd(sWS)}, s{VA} offen offset:{2048+half*1024}")
        vm.issue(f"V{t}_{half}")

    def guarded(fn):
        lab = a.new_label(f"{name}_g")
        a(f"s_cmp_eq_u32 s{HASJ}, 0")
        a(f"s_cbranch_scc1 {lab}")
        fn()
        a.label(lab)
    def s1_dma(i):
        def f():
            m, pc = i >> 2, i & 3
            a(f"s_lshl_b32 s{sT}, s{W}, 12")
            a(f"s_add_u32 m0, s{sT}, {L_S1 + m*32768 + pc*1024}")
            a(f"s_add_u32 s{sT}, s{S1O}, {(16*(pc&1) + 4*(pc>>1))*7168}")
            a(f"buffer_load_dwordx4 v{VD1}, {srd(sWG if m == 0 else sWU)}, s{sT} offen {nt('m')} lds")
            vm.issue("s1w", 1, cond=True)
        guarded(f)
    def s2_dma(jj):
        lab = a.new_label(f"{name}_s2d")
        if jj == 3:
            a(f"s_cmp_lg_u32 s{KH}, 0")
            a(f"s_cbranch_scc1 {lab}")
        a(f"s_lshl_b32 s{sT}, s{W}, 10")
        a(f"s_add_u32 m0, s{sT}, {L_S2 + jj*8192}")
        a(f"s_add_u32 s{sT}, s{S2O}, {jj*64*2048}")
        a(f"buffer_load_dwordx4 v{VD2}, {srd(sWD)}, s{sT} offen {nt('m')} lds")
        vm.issue("s2w", 1, cond=(jj == 3))
        a.label(lab)
    def touch_wd():
        a(f"s_lshl_b32 s{sT}, s2, 3")
        a(f"s_add_u32 s{sT}, s{sT}, s{W}")
        a(f"s_mul_i32 s{sT+1}, s{sT}, 3584")
        a(f"s_lshl_b32 s{sT}, s{sT}, 10")
        a(f"v_lshlrev_b32 v{VT}, 7, v0")
        a("s_bfm_b64 exec, 28, 0")
        a(f"buffer_load_dword v{VT+4}, v{VT}, {srd(sWD)}, s{sT+1} offen")
        a("s_mov_b64 exec, 0xff")
        a(f"buffer_load_dword v{VT+5}, v{VT}, {srd(sWO)}, s{sT} offen")
        a("s_mov_b64 exec, -1")
        vm.issue("tch", 2)
    def afrag_addr(base_s):
        a(f"v_and_b32 v{VT}, 7, v0")
        a(f"v_lshlrev_b32 v{VT}, 4, v{VT}")
        a(f"v_lshrrev_b32 v{VT+1}, 4, v0")
        a(f"v_lshl_add_u32 v{VT}, v{VT+1}, 7, v{VT}")
        a(f"v_add_u32 v{VT}, s{base_s}, v{VT}")
    def chain(n0, n1, first):
        for ks in range(n0, n1):
            a(f"ds_read_b128 {vr(XSF+4*(ks&3),4)}, v{VT} offset:{ks*512}")
            for t_ in range(2):
                a(f"ds_read_b64_tr_b16 {vr(WBF+4*(ks&3)+2*t_,2)}, v{VT+2} offset:{ks*4096+t_*2048}")
        a("s_waitcnt lgkmcnt(0)")
    def mf(ks, first): a(f"v_mfma_f32_16x16x32_bf16 {vr(MACC,4)}, {vr(XSF+4*(ks&3),4)}, {vr(WBF+4*(ks&3),4)}, {'0' if first else vr(MACC,4)}")
    def out_addr(row_bytes):
        a(f"v_mul_u32_u24 v{VT+1}, {4*row_bytes}, v{VT+1}")
        a(f"v_and_b32 v{VT}, 15, v0")
        a(f"v_lshl_add_u32 v{VT}, v{VT}, 2, v{VT+1}")
    def atomics(row_bytes, tag, cond):
        a("s_bfm_b64 exec, 32, 0")
        for r in range(4):
            a(f"s_add_u32 s{sT+1}, s{sT}, {r*row_bytes}")
            a(f"buffer_atomic_add_f32 v{MACC+r}, v{VT}, {srd(sWS)}, s{sT+1} offen")
        a("s_mov_b64 exec, -1")
        vm.issue(tag, 4, cond=cond)
    def s1_compute():
        def f():
            cg_of(a, sT+2)
            a(f"s_and_b32 s{sT}, s{sT+2}, 3")
            a(f"s_lshl_b32 s{sT}, s{sT}, 12")
            a(f"s_add_u32 s{sT}, s{sT}, {L_XS}")
            afrag_addr(sT)
            a(f"s_lshl_b32 s{sT}, s{KH}, 15")
            a(f"s_add_u32 s{sT}, s{sT}, {L_S1}")
            a(f"v_add_u32 v{VT+2}, s{sT}, v{VFR}")
            chain(0, 4, True)
            for ks in range(4): mf(ks, ks == 0)
            chain(4, 8, False)
            for ks in range(4, 8): mf(ks, False)
            out_addr(14336)
            a(f"s_lshr_b32 s{sT}, s{sT+2}, 2")
            a(f"s_lshl_b32 s{sT}, s{sT}, 8")
            a(f"s_and_b32 s{sT+1}, s{W}, 3")
            a(f"s_lshl_b32 s{sT+1}, s{sT+1}, 6")
            a(f"s_add_u32 s{sT}, s{sT}, s{sT+1}")
            a(f"s_mul_i32 s{sT+1}, s{KH}, 114688")
            a(f"s_add_u32 s{sT}, s{sT}, s{sT+1}")
            a(f"s_add_u32 s{sT}, s{sT}, {WS_GU}")
            atomics(14336, "gat", True)
        guarded(f)
    def s1_flag():
        lab = a.new_label(f"{name}_s1g")
        a(f"s_cmp_lg_u32 s{W}, 0")
        a(f"s_cbranch_scc1 {lab}")
        def f():
            hf_addr(a, sT)
            flag_set(a, vm, sT, VT, VT+1)
            vm.issue("hfl", 1, cond=True)
        guarded(f)
        a.label(lab)
    def s2_poll():
        a(f"s_lshr_b32 s{sT}, s2, 4")
        a(f"s_mul_i32 s{sT}, s{sT}, 7")
        a(f"s_lshr_b32 s{sT}, s{sT}, 1")
        a(f"s_lshl_b32 s{sT}, s{sT}, 9")
        a(f"s_add_u32 s{sT}, s{sT}, {WS_HF}")
        a(f"v_and_b32 v{VT+4}, 15, v0")
        a(f"v_lshlrev_b32 v{VT+4}, 7, v{VT+4}")
        a(f"v_add_u32 v{VT+4}, s{sT}, v{VT+4}")
        a(f"buffer_load_dword v{VT+5}, v{VT+4}, {srd(sWS)}, 0 offen sc1")
        vm.issue("hpoll")
    def s2_load():
        vm.wait("hpoll")
        poll_check(a, f"{name}_hp", VT+5, VT+4, sWS, 1, -1, cold)
        a(f"s_lshr_b32 s{sT}, s2, 4")
        a(f"s_mul_i32 s{sT}, s{sT}, 896")
        a(f"s_mul_i32 s{sT+1}, s{W}, 14336")
        a(f"s_add_u32 s{sT}, s{sT}, s{sT+1}")
        a(f"s_add_u32 s{sT}, s{sT}, {WS_GU}")
        a(f"s_add_u32 s{sT+1}, s{sT}, 114688")
        a("s_bfm_b64 exec, 56, 0")
        a(f"buffer_load_dwordx4 {vr(XSF,4)}, v{VL}, {srd(sWS)}, s{sT} offen sc1")
        a(f"buffer_load_dwordx4 {vr(XSF+4,4)}, v{VL}, {srd(sWS)}, s{sT+1} offen sc1")
        a("s_mov_b64 exec, -1")
        vm.issue("hld", 2)
    def s2_h():
        vm.wait("hld")
        Gs, Us, Tm = XSF, XSF+4, XSF+8
        for e in range(0, 4, 2):
            a(f"v_cvt_pk_bf16_f32 v{Tm}, v{Gs+e}, v{Gs+e+1}")
            a(f"v_cvt_pk_bf16_f32 v{Tm+1}, v{Us+e}, v{Us+e+1}")
            a(f"v_lshlrev_b32 v{Gs+e}, 16, v{Tm}")
            a(f"v_and_b32 v{Gs+e+1}, 0xffff0000, v{Tm}")
            a(f"v_lshlrev_b32 v{Us+e}, 16, v{Tm+1}")
            a(f"v_and_b32 v{Us+e+1}, 0xffff0000, v{Tm+1}")
        for e in range(4): a(f"v_mul_f32 v{Tm+e}, 0xbfb8aa3b, v{Gs+e}")
        for e in range(4): a(f"v_exp_f32 v{Tm+e}, v{Tm+e}")
        for e in range(4): a(f"v_add_f32 v{Tm+e}, 1.0, v{Tm+e}")
        for e in range(4): a(f"v_rcp_f32 v{Tm+e}, v{Tm+e}")
        for e in range(4): a(f"v_mul_f32 v{Gs+e}, v{Gs+e}, v{Tm+e}")
        for e in range(0, 4, 2):
            a(f"v_cvt_pk_bf16_f32 v{Tm}, v{Gs+e}, v{Gs+e+1}")
            a(f"v_lshlrev_b32 v{Gs+e}, 16, v{Tm}")
            a(f"v_and_b32 v{Gs+e+1}, 0xffff0000, v{Tm}")
        for e in range(4): a(f"v_mul_f32 v{Gs+e}, v{Gs+e}, v{Us+e}")
        a(f"v_cvt_pk_bf16_f32 v{Tm}, v{Gs}, v{Gs+1}")
        a(f"v_cvt_pk_bf16_f32 v{Tm+1}, v{Gs+2}, v{Gs+3}")
        a(f"v_lshrrev_b32 v{VT}, 1, v0")
        a(f"v_lshlrev_b32 v{VT}, 7, v{VT}")
        a(f"v_and_b32 v{VT+1}, 1, v0")
        a(f"v_lshl_add_u32 v{VT}, v{VT+1}, 3, v{VT}")
        a(f"s_lshl_b32 s{sT}, s{W}, 4")
        a(f"s_add_u32 s{sT}, s{sT}, {L_HI}")
        a(f"v_add_u32 v{VT}, s{sT}, v{VT}")
        a("s_bfm_b64 exec, 56, 0")
        a(f"ds_write_b64 v{VT}, {vr(Tm,2)}")
        a("s_mov_b64 exec, -1")
        if opt.get("dbg"):
            a(f"s_lshr_b32 s{sT}, s2, 4")
            a(f"s_mul_i32 s{sT}, s{sT}, 448")
            a(f"s_mul_i32 s{sT+1}, s{W}, 7168")
            a(f"s_add_u32 s{sT}, s{sT}, s{sT+1}")
            a(f"s_add_u32 s{sT}, s{sT}, {WS_H}")
            a(f"v_lshlrev_b32 v{VT}, 3, v0")
            a("s_bfm_b64 exec, 56, 0")
            a(f"buffer_store_dwordx2 {vr(Tm,2)}, v{VT}, {srd(sWS)}, s{sT} offen")
            a("s_mov_b64 exec, -1")
            vm.issue("dbg")
        a("s_waitcnt lgkmcnt(0)")
    def s2_compute():
        a(f"s_lshl_b32 s{sT}, s{KH}, 11")
        a(f"s_add_u32 s{sT}, s{sT}, {L_HI}")
        afrag_addr(sT)
        a(f"s_lshl_b32 s{sT}, s{KH}, 14")
        a(f"s_add_u32 s{sT}, s{sT}, {L_S2}")
        a(f"v_add_u32 v{VT+2}, s{sT}, v{VFR}")
        chain(0, 4, True)
        a(f"s_cmp_lg_u32 s{KH}, 0")
        lab = a.new_label(f"{name}_s2k")
        for ks in range(4):
            if ks == 3: a(f"s_cbranch_scc1 {lab}")
            mf(ks, ks == 0)
        a.label(lab)
        out_addr(4096)
        a(f"s_and_b32 s{sT}, s2, 15")
        a(f"s_lshl_b32 s{sT}, s{sT}, 8")
        a(f"s_and_b32 s{sT+1}, s{W}, 3")
        a(f"s_lshl_b32 s{sT+1}, s{sT+1}, 6")
        a(f"s_add_u32 s{sT}, s{sT}, s{sT+1}")
        a(f"s_add_u32 s{sT}, s{sT}, {WS_Y}")
        atomics(4096, "yat", False)
    def y_flag():
        lab = a.new_label(f"{name}_yf")
        a(f"s_cmp_lg_u32 s{W}, 0")
        a(f"s_cbranch_scc1 {lab}")
        yf_addr(a, sT, sT+1)
        flag_set(a, vm, sT, VT, VT+1)
        vm.issue("yfl", 1, cond=True)
        a.label(lab)
    def x_load():
        a(f"v_and_b32 v{VT}, 15, v0")
        a(f"s_lshl_b32 s{sT}, s{sMT}, 2")
        a(f"s_and_b32 s{sT+1}, s{W}, 3")
        a(f"s_add_u32 s{sT}, s{sT}, s{sT+1}")
        a(f"s_lshl_b32 s{sT}, s{sT}, 5")
        a(f"v_add_u32 v{VT}, s{sT}, v{VT}")
        a(f"v_lshlrev_b32 v{C_VX}, 11, v{VT}")
        a(f"v_bfe_u32 v{VT}, v0, 4, 1")
        a(f"v_lshl_add_u32 v{C_VX}, v{VT}, 5, v{C_VX}")
        a(f"v_lshrrev_b32 v{VT}, 5, v0")
        a(f"v_lshl_add_u32 v{C_VX}, v{VT}, 4, v{C_VX}")
        a(f"s_lshl_b32 s{sT}, s{sJ}, 7")
        a(f"s_lshl_b32 s{sT+1}, s{KH}, 6")
        a(f"s_add_u32 s{sT}, s{sT}, s{sT+1}")
        a(f"v_add_u32 v{C_VX}, s{sT}, v{C_VX}")
        a(f"s_mov_b32 s{sT}, 32768")
        a(f"buffer_load_dwordx4 {vr(C_XP,4)}, v{C_VX}, {srd(sX)}, 0 offen")
        a(f"buffer_load_dwordx4 {vr(C_XP+4,4)}, v{C_VX}, {srd(sX)}, s{sT} offen")
        vm.issue("xc", 2)
    RT = 58
    def route_detect():
        for i in range(8): a(f"v_readlane_b32 s{sT+i}, v{C_IX}, {i}")
        a(f"s_lshl_b32 s{sT+8}, s{sMT}, 2")
        a(f"s_and_b32 s{sT+9}, s{W}, 3")
        a(f"s_add_u32 s{sT+8}, s{sT+8}, s{sT+9}")
        a(f"s_mov_b32 s{RT}, 0")
        for i in range(8):
            a(f"s_lshr_b32 s{sT+9}, s{sT+i}, 5")
            a(f"s_cmp_eq_u32 s{sT+9}, s{sT+8}")
            a(f"s_cselect_b32 s{RT}, 1, s{RT}")
        a(f"s_cmp_lg_u32 s{RT}, 0")
        a(f"s_cbranch_scc1 {name}_rdet")
        a.label(f"{name}_rdet_done")
        vm.issue("ypoll", 1, cond=True)
        c = Asm()
        c.label(f"{name}_rdet")
        for t16 in range(2):
            c(f"v_lshrrev_b32 v{VT}, 11, v{C_VX}")
            c(f"v_add_u32 v{VT}, {16*t16}, v{VT}")
            c(f"v_mov_b32 v{C_AY+t16}, 0x7fff0000")
            c(f"v_mov_b32 v{C_WT+t16}, 0")
            c(f"v_and_b32 v{VT+1}, 0x7ff, v{C_VX}")
            c(f"v_lshlrev_b32 v{VT+1}, 1, v{VT+1}")
            c(f"v_add_u32 v{VT+1}, {WS_Y}, v{VT+1}")
            for i in range(8):
                c(f"v_readlane_b32 s{sT+8}, v{C_IX}, {8+i}")
                c(f"v_cmp_eq_u32 vcc, s{sT+i}, v{VT}")
                c(f"v_add_u32 v{VT+4}, {i*4096}, v{VT+1}")
                c(f"v_mov_b32 v{VT+5}, s{sT+8}")
                c(f"v_cndmask_b32 v{C_AY+t16}, v{C_AY+t16}, v{VT+4}, vcc")
                c(f"v_cndmask_b32 v{C_WT+t16}, v{C_WT+t16}, v{VT+5}, vcc")
        c(f"s_lshl_b32 s{sT+8}, s{sJ}, 11")
        c(f"s_add_u32 s{sT+8}, s{sT+8}, {WS_YF}")
        c(f"v_and_b32 v{VT+4}, 15, v0")
        c(f"v_lshlrev_b32 v{VT+4}, 7, v{VT+4}")
        c(f"v_add_u32 v{VT+4}, s{sT+8}, v{VT+4}")
        c(f"buffer_load_dword v{VT+5}, v{VT+4}, {srd(sWS)}, 0 offen sc1")
        c(f"s_branch {name}_rdet_done")
        cold.append(c)
    def route_fetch():
        a(f"s_cmp_lg_u32 s{RT}, 0")
        a(f"s_cbranch_scc1 {name}_rfet")
        a.label(f"{name}_rfet_done")
        vm.issue("yld", 4, cond=True)
        c = Asm()
        c.label(f"{name}_rfet")
        c("s_waitcnt vmcnt(0)")
        poll_check(c, f"{name}_yp", VT+5, VT+4, sWS, 1, -1, cold)
        for t16 in range(2):
            for hf in range(2):
                c(f"buffer_load_dwordx4 {vr(C_G+8*t16+4*hf,4)}, v{C_AY+t16}, {srd(sWS)}, 0 offen offset:{16*hf} sc1")
        c(f"s_branch {name}_rfet_done")
        cold.append(c)
    def wo_setup():
        a(f"v_lshrrev_b32 v{VD1}, 3, v0")
        a(f"v_lshlrev_b32 v{VD1}, 11, v{VD1}")
        a(f"v_bfe_u32 v{VT}, v0, 4, 1")
        a(f"s_bfe_u32 s{sT}, s{W}, 0x10001")
        a(f"s_lshl_b32 s{sT}, s{sT}, 1")
        a(f"v_or_b32 v{VT}, s{sT}, v{VT}")
        a(f"v_lshlrev_b32 v{VT}, 1, v{VT}")
        a(f"v_and_b32 v{VT+1}, 7, v0")
        a(f"v_xor_b32 v{VT}, v{VT}, v{VT+1}")
        a(f"v_lshl_add_u32 v{VD1}, v{VT}, 4, v{VD1}")
        a(f"s_lshl_b32 s{WOO}, s{W}, 14")
        a(f"s_lshl_b32 s{sT}, s{sJ}, 7")
        a(f"s_add_u32 s{WOO}, s{WOO}, s{sT}")
        a(f"s_lshl_b32 s{WOM}, s{W}, 10")
    def wo_dma(i, part=None):
        lab = a.new_label(f"{name}_wo")
        if part:
            a(f"s_cmp_ge_u32 s{W}, 6")
            a(f"s_cbranch_scc{1 if part == 'early' else 0} {lab}")
        a(f"s_add_u32 m0, s{WOM}, {i*8192}")
        a(f"s_add_u32 s{sT}, s{WOO}, {i*64*2048}")
        a(f"buffer_load_dwordx4 v{VD1}, {srd(sWO)}, s{sT} offen {nt('o')} lds")
        vm.issue("wo", 1, cond=bool(part))
        a.label(lab)
    FU.wo_dma = wo_dma

    sched = {}
    def at(t, q, fn): sched.setdefault((t, q), []).append(fn)
    def stag(t0, t1, fn, nm):
        if not opt.get("stag", True):
            at(*t0, fn); return
        sub = Asm(); sub.uid = a.uid + 1000*(len(cold) + 1)
        box = {}
        def emit(first):
            lab = a.new_label(f"{name}_st")
            a(f"s_cmp_{'lg' if first else 'eq'}_u32 s{KH}, 0")
            a(f"s_cbranch_scc1 {lab}")
            a(f"s_call_b64 s[{sT+6}:{sT+7}], {name}_{nm}")
            a.label(lab)
            if first:
                q0 = list(vm.q)
                keep = a.lines; a.lines = sub.lines
                a.label(f"{name}_{nm}")
                fn()
                a(f"s_setpc_b64 s[{sT+6}:{sT+7}]")
                a.lines = keep
                box["ops"] = [x for x in vm.q if x not in q0 or vm.q.count(x) > q0.count(x)]
                new = vm.q[len([x for x in vm.q if True]) - 0:]
                n_new = box_count(q0, vm.q)
                box["new"] = [(tg, True) for tg, _ in vm.q[len(vm.q) - n_new:]]
                vm.q = q0 + box["new"]
                cold.append(sub)
            else:
                vm.q += box["new"]
        at(*t0, lambda: emit(True)); at(*t1, lambda: emit(False))
    def box_count(q0, q1):
        n = 0
        ids0 = [x[0] for x in q0]
        for tg, _ in reversed(q1):
            if tg in ids0: break
            n += 1
        return n
    pre = {}
    assert BAR == 4
    if moe:
        E = opt.get("early", 0)
        if E:
            for i in range(8): at(2 + i // 2, i & 1, lambda i=i: s1_dma(i))
        else:
            for i in range(8): at(3 + i, 1, lambda i=i: s1_dma(i))
        pre[11-E] = ["s1w"]
        stag((12-E, 0), (13-E, 0), s1_compute, "s1c")
        for i in range(4): at(12 - E + i, 1, lambda i=i: s2_dma(i))
        pre[15-E] = ["gat"]
        at(16-E, 0, s1_flag)
        at(19-E, 1, s2_poll)
        at(20-E, 1, s2_load)
        stag((22-E, 0), (23-E, 0), s2_h, "s2h")
        pre[23-E] = ["s2w"]
        stag((24-E, 0), (25-E, 1), s2_compute, "s2c")
        pre[27-E] = ["yat"]
        at(28-E, 0, y_flag)
        at(29, 0, route_detect)
        at(30, 0, route_fetch)
    at(16, 0, wo_setup)
    for i in range(12): at(16 + i, 1, lambda i=i: wo_dma(i))
    for i in range(12, 15): at(16 + i, 0, lambda i=i: wo_dma(i))
    at(30, 1, lambda: wo_dma(15, 'early'))
    def kv_refresh_issue():
        a(f"buffer_load_dword v{VP}, v{VPA}, {srd(sWS)}, 0 offen sc1")
        vm.issue("kvp")
    def kv_refresh_use():
        vm.wait("kvp")
        a(f"v_cmp_eq_u32 vcc, 1, v{VP}")
        a(f"s_or_b32 s{MASK}, s{MASK}, vcc_lo")
    for t_ in opt.get("kvr", [2, 5]):
        at(t_, 0, kv_refresh_issue)
        at(t_ + 2, 0, kv_refresh_use)
    at(27, 1, x_load)
    def misc_read():
        a(f"v_and_b32 v{VT}, 15, v0")
        a(f"s_and_b32 s{sT}, s{W}, 3")
        a(f"s_lshl_b32 s{sT}, s{sT}, 5")
        a(f"v_add_u32 v{VT}, s{sT}, v{VT}")
        a(f"v_lshlrev_b32 v{VT}, 2, v{VT}")
        a(f"v_add_u32 v{VT}, {L_M}, v{VT}")
        for t16 in range(2):
            a(f"ds_read_b32 v{C_MS+2*t16}, v{VT} offset:{t16*64}")
            a(f"ds_read_b32 v{C_MS+2*t16+1}, v{VT} offset:{t16*64+512}")
        a(f"v_lshlrev_b32 v{VT}, 2, v0")
        a(f"v_add_u32 v{VT}, {L_IDX}, v{VT}")
        a(f"ds_read_b32 v{C_IX}, v{VT}")
        a("s_waitcnt lgkmcnt(0)")
    at(26, 1, misc_read)

    def hooks(t, q):
        def h(pos):
            if t < 2: return
            if q == 0:
                if pos == "Mc": vm.wait(f"V{t}_0")
                if pos == "Ma+" and t + 3 < NT: ldV(t+3, 0)
                if pos == "Mb+" and t + 3 < NT: ldV(t+3, 1)
            else:
                if pos == "Ma": vm.wait(f"K{t+1}_1", f"V{t}_1")
                if pos == "Md+" and t + 4 < NT: ldK(t+4, 0)
                if pos == "Mc+" and t + 4 < NT: ldK(t+4, 1)
        return h
    def prio(t): a(f"s_setprio {3 - (t % BAR) * 4 // BAR}")
    XR, XST = 228, 236
    lab = a.new_label(f"{name}_kvf")
    a(f"s_cmp_eq_u32 s{KH}, 0")
    a(f"s_cselect_b32 s{sT}, 0, 1")
    a(f"s_cbranch_scc1 {lab}")
    a("s_setprio 3")
    a.label(lab)
    unit(a, R, 0, 0, NB); unit(a, R, 0, 1, NB)
    unit(a, R, 1, 0, NB); unit(a, R, 1, 1, NB, noqk=True)
    vm.drain()
    a(f"s_cmp_eq_u32 s{KH}, 0")
    a(f"s_cbranch_scc1 {lab}_f")
    kvf_addr(a, sT, sT+1)
    flag_set(a, vm, sT, VT, VT+1)
    a.label(f"{lab}_f")
    a.stamp(4)
    if moe:
        xsel_normalise(a, VT, XR, XST)
        a("s_waitcnt lgkmcnt(0)")
    a.stamp(5)
    ldK(2, 0)
    a.stamp(6)
    ldK(2, 1); ldV(2, 0); ldV(2, 1); ldK(3, 0); ldK(3, 1); ldV(3, 0); ldV(3, 1)
    if opt.get("burst", 2) == 2:
        ldK(4, 0); ldK(4, 1); ldV(4, 0); ldV(4, 1); ldK(5, 0); ldK(5, 1)
    vm.wait("K2_1")
    a(M32(R.S0, R.KB+16, Q, None))
    a(M32(R.S0, R.KB+20, Q+4, R.S0))
    if opt.get("burst", 2) == 1:
        ldK(4, 0); ldK(4, 1); ldV(4, 0); ldV(4, 1); ldK(5, 0); ldK(5, 1)
    a("s_nop 10")
    for t in range(2, NT):
        a.trace(t, "b")
        prio(t)
        for q in range(2):
            for fn in sched.get((t, q), []): fn()
            unit(a, R, t, q, NB, hooks(t, q))
        if (t % BAR) == BAR - 1 and t != NT - 1:
            if t in pre: vm.wait(*pre[t])
            a("s_barrier")
    a("s_setprio 0")
    a.stamp(7)
    a(M32(O+16, R.VB+8*((NT-1)%NB)+4, P+4, O+16))
    a(SM(L+4, R.ONES, P, R.IDX))
    a.trace(50)
    a("s_nop 7")
    a("s_nop 7")
    exchange_and_store(a, name, vm, R, opt)
    c = Asm()
    AT.attn_slow_path(c, R, name, KH, sWS, HB, s0=sT)
    cold.append(c)

def exchange_and_store(a, name, vm, R, opt):
    O, L, T, VL, P = R.O, R.L, R.T, R.VL, R.P
    a(f"v_add_f32 v{L}, v{L}, v{L+1}")
    a(f"v_add_f32 v{L+4}, v{L+4}, v{L+5}")
    a(f"s_lshl_b32 s{sT}, s{W}, 12")
    a(f"s_add_u32 s{sT}, s{sT}, {L_EX}")
    a(f"v_add_u32 v{T}, s{sT}, v{VL}")
    a(f"v_xor_b32 v{T+1}, 16384, v{T}")
    a(f"s_lshl_b32 s{sT}, s{W}, 8")
    a(f"s_add_u32 s{sT}, s{sT}, {L_LX}")
    a(f"v_lshrrev_b32 v{T+2}, 2, v{VL}")
    a(f"v_add_u32 v{T+2}, s{sT}, v{T+2}")
    a(f"v_xor_b32 v{T+3}, 1024, v{T+2}")
    a(f"s_cmp_eq_u32 s{KH}, 0")
    a(f"s_cbranch_scc1 {name}_kh0")
    for r in range(4): a(f"ds_write_b128 v{T}, {vr(O+4*r,4)} offset:{r*1024}")
    a(f"ds_write_b32 v{T+2}, v{L}")
    a("s_waitcnt lgkmcnt(0)")
    for r in range(16): a(f"v_mov_b32 v{O+r}, v{O+16+r}")
    a(f"v_mov_b32 v{L}, v{L+4}")
    a(f"s_branch {name}_khj")
    a.label(f"{name}_kh0")
    for r in range(4): a(f"ds_write_b128 v{T}, {vr(O+16+4*r,4)} offset:{r*1024}")
    a(f"ds_write_b32 v{T+2}, v{L+4}")
    a.label(f"{name}_khj")
    a("s_waitcnt lgkmcnt(0)")
    a("s_barrier")
    for r in range(4): a(f"ds_read_b128 {vr(O+16+4*r,4)}, v{T+1} offset:{r*1024}")
    a(f"ds_read_b32 v{L+4}, v{T+3}")
    otile(a, sT, sT+1)
    a(f"s_lshl_b32 s{sT}, s{sT}, 6")
    head_of(a, sT+1, sT+2)
    a(f"s_add_u32 s{sT}, s{sT}, s{sT+1}")
    a(f"s_lshl_b32 s{sT+4}, s{sT}, 10")
    a(f"s_add_u32 s{sT+4}, s{sT+4}, {WS_O}")
    a(f"v_bfe_u32 v{T+4}, v0, 4, 1")
    a(f"v_lshlrev_b32 v{T+4}, 15, v{T+4}")
    a(f"v_lshrrev_b32 v{T+5}, 5, v0")
    a(f"v_lshl_add_u32 v{T+4}, v{T+5}, 9, v{T+4}")
    a(f"v_and_b32 v{T+5}, 15, v0")
    a(f"v_lshl_add_u32 v{T+4}, v{T+5}, 4, v{T+4}")
    a("s_waitcnt lgkmcnt(0)")
    a("s_barrier")
    a.trace(51)
    for r in range(16): a(f"v_add_f32 v{O+r}, v{O+r}, v{O+16+r}")
    a(f"v_add_f32 v{L}, v{L}, v{L+4}")
    a(f"v_mov_b32 v{T+1}, 0")
    for r in range(16): a(f"v_fmac_f32 v{T+1}, 0, v{O+r}")
    a(f"s_mov_b32 s{sT}, 0x2b800000")
    a(f"s_mov_b32 s{sT+1}, 0x5d800000")
    a(f"v_cmp_nle_f32 s[{sT+6}:{sT+7}], s{sT}, v{L}")
    a(f"v_cmp_nge_f32 s[{sT+8}:{sT+9}], s{sT+1}, v{L}")
    a(f"v_cmp_u_f32 vcc, v{T+1}, v{T+1}")
    a(f"s_or_b64 s[{sT+6}:{sT+7}], s[{sT+6}:{sT+7}], s[{sT+8}:{sT+9}]")
    a(f"s_or_b64 s[{sT+6}:{sT+7}], s[{sT+6}:{sT+7}], vcc")
    a(f"s_cmp_lg_u64 s[{sT+6}:{sT+7}], 0")
    a(f"s_cbranch_scc1 {name}_slow")
    a.label(f"{name}_fin")
    a(f"v_rcp_f32 v{T}, v{L}")
    a("s_nop 0")
    for jj in range(2):
        for e_ in range(4):
            r0 = O + 8*jj + 2*e_
            a(f"v_mul_f32 v{r0}, v{r0}, v{T}")
            a(f"v_mul_f32 v{r0+1}, v{r0+1}, v{T}")
            a(f"v_cvt_pk_bf16_f32 v{P+4*jj+e_}, v{r0}, v{r0+1}")
        a(f"buffer_store_dwordx4 {vr(P+4*jj,4)}, v{T+4}, {srd(sWS)}, s{sT+4} offen offset:{jj*256} sc1")
    vm.issue("ost", 2)
    a.trace(52)

def phaseC(a, name, cold, opt, vm):
    ACC, WB, OB = 4, 36, 68
    XP, VX, MS = C_XP, C_VX, C_MS
    VL2, G, WA, WG, VPo, VPa, T = 211, C_G, 228, 232, 236, 237, 240
    sTT, sOA, sOB = 49, 50, 51
    moe = opt.get("moe", True)
    FU.wo_dma(15, 'late')
    a(f"s_and_b32 s{sTT}, s{W}, 3")
    a(f"v_lshlrev_b32 v{VL2}, 4, v0")
    a(f"v_and_b32 v{T}, 15, v0")
    a(f"v_lshrrev_b32 v{T+1}, 4, v0")
    ROT = 60
    a(f"s_and_b32 s{ROT}, s{sJ}, 3")
    a(f"s_lshl_b32 s{sT}, s{sMT}, 2")
    a(f"s_add_u32 s{sT}, s{sT}, s{sTT}")
    a(f"s_lshl_b32 s{sOA}, s{sT}, 16")
    a(f"s_lshl_b32 s{sT+1}, s{KH}, 14")
    a(f"s_add_u32 s{sOA}, s{sOA}, s{sT+1}")
    a(f"s_add_u32 s{sOA}, s{sOA}, {WS_O}")
    a(f"s_add_u32 s{sOB}, s{sOA}, 32768")
    a(f"s_lshl_b32 s{sT}, s{sT}, 1")
    a(f"s_add_u32 s{sT}, s{sT}, s{KH}")
    a(f"s_lshl_b32 s{sT}, s{sT}, 7")
    a(f"s_add_u32 s{sT}, s{sT}, {WS_OF}")
    a(f"s_lshl_b32 s{sT+1}, s{ROT}, 2")
    a(f"v_add_u32 v{VPa}, s{sT+1}, v{T}")
    a(f"v_and_b32 v{VPa}, 15, v{VPa}")
    a(f"v_lshlrev_b32 v{VPa}, 2, v{VPa}")
    a(f"v_add_u32 v{VPa}, s{sT}, v{VPa}")
    a(f"v_and_b32 v{T+6}, 1, v{T+1}")
    a(f"v_lshlrev_b32 v{T+7}, 4, v{T+6}")
    a(f"v_lshrrev_b32 v{T+8}, 1, v{T+1}")
    a(f"v_lshl_add_u32 v{T+7}, v{T+8}, 2, v{T+7}")
    a(f"v_bfe_u32 v{T+8}, v0, 2, 2")
    a(f"v_add_u32 v{T+7}, v{T+7}, v{T+8}")
    a(f"v_lshlrev_b32 v{T+7}, 7, v{T+7}")
    a(f"v_and_b32 v{T+8}, 3, v0")
    a(f"v_lshl_add_u32 v{T+7}, v{T+8}, 3, v{T+7}")
    a(f"v_lshlrev_b32 v{T+6}, 1, v{T+6}")
    a(f"v_bfe_u32 v{T+8}, v0, 3, 1")
    a(f"v_or_b32 v{T+6}, v{T+6}, v{T+8}")
    a(f"v_lshl_add_u32 v{T+7}, v{T+6}, 5, v{T+7}")
    a(f"s_lshl_b32 s{sT}, s{KH}, 16")
    a(f"v_add_u32 v{WA}, s{sT}, v{T+7}")
    for ct in range(1, 4): a(f"v_xor_b32 v{WA+ct}, {ct*32}, v{WA}")
    of_addr(a, sT, sT+1)
    a.trace(53)
    vm.drain()
    a.trace(54)
    flag_set(a, vm, sT, T+6, T+7)
    a.stamp(8)
    a("s_barrier")
    gfirst = opt.get("gfirst", True)
    def opoll():
        a(f"buffer_load_dword v{VPo}, v{VPa}, {srd(sWS)}, 0 offen sc1")
        vm.issue("opoll")
    if not gfirst: opoll()
    MASKC, NEEDC, RETC, GA, GB = 72, 73, 44, 62, 63
    GIDS = [46, 47, 49, 61]
    def ready(o):
        o(f"s_lshr_b32 s{sT+10}, s{MASKC}, 1")
        o(f"s_and_b32 s{MASKC}, s{MASKC}, s{sT+10}")
        o(f"s_lshr_b32 s{sT+10}, s{MASKC}, 2")
        o(f"s_and_b32 s{MASKC}, s{MASKC}, s{sT+10}")
        o(f"s_and_b32 s{MASKC}, s{MASKC}, s{NEEDC}")
    c = Asm()
    c.label(f"{name}_ospin")
    c(f"s_mov_b32 s{sT+11}, 0")
    c.label(f"{name}_oagain")
    c(f"buffer_load_dword v{VPo}, v{VPa}, {srd(sWS)}, 0 offen sc1")
    c(f"s_add_u32 s{sT+11}, s{sT+11}, 1")
    c(f"s_cmp_gt_u32 s{sT+11}, {SPIN_LIMIT}")
    c(f"s_cselect_b32 s{MASKC}, s{NEEDC}, s{MASKC}")
    c(f"s_cbranch_scc1 {name}_oout")
    c("s_waitcnt vmcnt(0)")
    c(f"v_cmp_eq_u32 vcc, 1, v{VPo}")
    c(f"s_mov_b32 s{MASKC}, vcc_lo")
    ready(c)
    c(f"s_cbranch_scc0 {name}_oagain")
    c.label(f"{name}_oout")
    c(f"s_setpc_b64 s[{RETC}:{RETC+1}]")
    cold.append(c)
    def ogroup(g):
        lab = a.new_label(f"{name}_og")
        a(f"s_and_b32 s{MASKC}, s{MASKC}, s{NEEDC}")
        a(f"s_cbranch_scc1 {lab}")
        a(f"s_call_b64 s[{RETC}:{RETC+1}], {name}_ospin")
        a.label(lab)
        a(f"s_ff1_i32_b32 s{GA}, s{MASKC}")
        a(f"s_bitset0_b32 s{NEEDC}, s{GA}")
        a(f"s_lshr_b32 s{GA}, s{GA}, 2")
        a(f"s_add_u32 s{GA}, s{GA}, s{ROT}")
        a(f"s_and_b32 s{GIDS[g]}, s{GA}, 3")
        a(f"s_lshl_b32 s{GA}, s{GIDS[g]}, 12")
        a(f"s_add_u32 s{GB}, s{GA}, s{sOB}")
        a(f"s_add_u32 s{GA}, s{GA}, s{sOA}")
        for i in range(4*g, 4*g+4):
            for t16 in range(2):
                a(f"buffer_load_dwordx4 {vr(OB+8*i+4*t16,4)}, v{VL2}, {srd(sWS)}, s{(GA, GB)[t16]} offen offset:{(i%4)*1024}")
                vm.issue(f"O{i}")
    a.trace(55)
    def first_look():
        vm.wait("opoll")
        a(f"v_cmp_eq_u32 vcc, 1, v{VPo}")
        a(f"s_mov_b32 s{MASKC}, vcc_lo")
        a(f"s_mov_b32 s{NEEDC}, 0x1111")
        ready(a)
        ogroup(0)
        a.trace(56)
    if not gfirst: first_look()
    def xn(o, t16, p, g0, g1):
        o(f"v_lshlrev_b32 v{g0}, 16, v{XP+4*t16+p}")
        o(f"v_and_b32 v{g1}, 0xffff0000, v{XP+4*t16+p}")
        o(f"v_sub_f32 v{g0}, v{g0}, v{MS+2*t16}")
        o(f"v_sub_f32 v{g1}, v{g1}, v{MS+2*t16}")
        o(f"v_cvt_pk_bf16_f32 v{T+6}, v{g0}, v{g1}")
        o(f"v_lshlrev_b32 v{g0}, 16, v{T+6}")
        o(f"v_and_b32 v{g1}, 0xffff0000, v{T+6}")
        o(f"v_mul_f32 v{g0}, v{g0}, v{MS+2*t16+1}")
        o(f"v_mul_f32 v{g1}, v{g1}, v{MS+2*t16+1}")
        o(f"v_cvt_pk_bf16_f32 v{T+6}, v{g0}, v{g1}")
        o(f"v_lshlrev_b32 v{g0}, 16, v{T+6}")
        o(f"v_and_b32 v{g1}, 0xffff0000, v{T+6}")
    if moe:
        a("s_cmp_lg_u32 s58, 0")
        a(f"s_cbranch_scc1 {name}_routed")
    for t16 in range(2):
        for p in range(4): xn(a, t16, p, G + 8*t16 + 2*p, G + 8*t16 + 2*p + 1)
    if moe:
        a.label(f"{name}_routed_done")
        c = Asm()
        c.label(f"{name}_routed")
        for t16 in range(2):
            for p in range(4):
                g0, g1 = G + 8*t16 + 2*p, G + 8*t16 + 2*p + 1
                c(f"v_cvt_pk_bf16_f32 v{T+7}, v{g0}, v{g1}")
                c(f"v_lshlrev_b32 v{g0}, 16, v{T+7}")
                c(f"v_and_b32 v{g1}, 0xffff0000, v{T+7}")
                c(f"v_mul_f32 v{g0}, v{g0}, v{C_WT+t16}")
                c(f"v_mul_f32 v{g1}, v{g1}, v{C_WT+t16}")
                c(f"v_cvt_pk_bf16_f32 v{T+7}, v{g0}, v{g1}")
                xn(c, t16, p, T+8, T+9)
                c(f"v_lshlrev_b32 v{g0}, 16, v{T+7}")
                c(f"v_and_b32 v{g1}, 0xffff0000, v{T+7}")
                c(f"v_add_f32 v{g0}, v{g0}, v{T+8}")
                c(f"v_add_f32 v{g1}, v{g1}, v{T+9}")
                c(f"v_cvt_pk_bf16_f32 v{T+7}, v{g0}, v{g1}")
                c(f"v_lshlrev_b32 v{g0}, 16, v{T+7}")
                c(f"v_and_b32 v{g1}, 0xffff0000, v{T+7}")
        c(f"s_branch {name}_routed_done")
        cold.append(c)
    if gfirst: opoll()
    else: ogroup(1)
    for b in range(0, 16, 8):
        for e in range(8): a(f"v_mul_f32 v{T+6+e}, 0xbfb8aa3b, v{G+b+e}")
        for e in range(8): a(f"v_exp_f32 v{T+6+e}, v{T+6+e}")
        for e in range(8): a(f"v_add_f32 v{T+6+e}, 1.0, v{T+6+e}")
        for e in range(8): a(f"v_rcp_f32 v{T+6+e}, v{T+6+e}")
        for e in range(8): a(f"v_mul_f32 v{G+b+e}, v{G+b+e}, v{T+6+e}")
    a.trace(57)
    if gfirst: first_look(); ogroup(1)
    def wgroup(g):
        a(f"s_lshl_b32 s{sT}, s{GIDS[g]}, 14")
        for ct in range(4): a(f"v_add_u32 v{WG+ct}, s{sT}, v{WA+ct}")
    def wreads(i):
        return [f"ds_read_b64_tr_b16 {vr(WB+16*(i&1)+4*ct+2*t_,2)}, v{WG+ct} offset:{(i%4)*4096+t_*1024}" for ct in range(4) for t_ in range(2)]
    wgroup(0)
    a(*wreads(0))
    ogroup(2)
    a.trace(58)
    for i in range(16):
        if i == 3: ogroup(3)
        if i < 15 and (i + 1) % 4 == 0: wgroup((i + 1) // 4)
        r = wreads(i+1) if i < 15 else []
        vm.wait(f"O{i}")
        a("s_waitcnt lgkmcnt(0)")
        if i == 0: a.trace(62)
        if i == 8: a.trace(63)
        k = 0
        for ct in range(4):
            for t16 in range(2):
                d = vr(ACC+16*t16+4*ct, 4)
                a(f"v_mfma_f32_16x16x32_bf16 {d}, {vr(WB+16*(i&1)+4*ct,4)}, {vr(OB+8*i+4*t16,4)}, {d if i else 0}")
                if r: a(r[k])
                k += 1
    a.trace(61)
    EX = 131072
    a(f"s_lshl_b32 s{sT}, s{W}, 12")
    a(f"s_add_u32 s{sT}, s{sT}, {EX}")
    a(f"s_xor_b32 s{sT+1}, s{sT}, 16384")
    a(f"v_add_u32 v{T}, s{sT}, v{VL2}")
    a(f"v_add_u32 v{T+1}, s{sT+1}, v{VL2}")
    a(f"s_cmp_eq_u32 s{KH}, 0")
    a("s_nop 3")
    a(f"s_cbranch_scc1 {name}_ck0")
    for t16 in range(2):
        for cc in range(2): a(f"ds_write_b128 v{T}, {vr(ACC+16*t16+4*cc,4)} offset:{(2*t16+cc)*1024}")
    a("s_waitcnt lgkmcnt(0)")
    for t16 in range(2):
        for r in range(8): a(f"v_mov_b32 v{ACC+16*t16+r}, v{ACC+16*t16+8+r}")
    a(f"s_branch {name}_ckj")
    a.label(f"{name}_ck0")
    for t16 in range(2):
        for cc in range(2): a(f"ds_write_b128 v{T}, {vr(ACC+16*t16+8+4*cc,4)} offset:{(2*t16+cc)*1024}")
    a.label(f"{name}_ckj")
    XF = OB
    for t16 in range(2):
        for p in range(4):
            a(f"v_lshlrev_b32 v{XF+8*t16+2*p}, 16, v{XP+4*t16+p}")
            a(f"v_and_b32 v{XF+8*t16+2*p+1}, 0xffff0000, v{XP+4*t16+p}")
    a("s_waitcnt lgkmcnt(0)")
    a("s_barrier")
    for t16 in range(2):
        for cc in range(2): a(f"ds_read_b128 {vr(ACC+16*t16+8+4*cc,4)}, v{T+1} offset:{(2*t16+cc)*1024}")
    a(f"s_mov_b32 s{sT}, 32768")
    for t16 in range(2):
        b = ACC + 16*t16
        a(f"s_waitcnt lgkmcnt({2-2*t16})")
        for r in range(8): a(f"v_add_f32 v{b+r}, v{b+r}, v{b+8+r}")
        for r in range(4): a(f"v_permlane16_swap_b32 v{b+r}, v{b+4+r}")
        for e in range(8): a(f"v_fmac_f32 v{XF+8*t16+e}, v{b+e}, v{G+8*t16+e}")
        for p in range(4): a(f"v_cvt_pk_bf16_f32 v{XP+4*t16+p}, v{XF+8*t16+2*p}, v{XF+8*t16+2*p+1}")
        a(f"buffer_store_dwordx4 {vr(XP+4*t16,4)}, v{VX}, {srd(sOUT)}, {'0' if t16 == 0 else f's{sT}'} offen {'nt' if 's' in opt.get('nt', 'ms') else ''}")
```

```python
from asmlib import *
from layout import *
from k_attn import M32, M16

class AttnRegs:
    VL, CUR, PRV = 1, 2, 3
    Q, K, V, P = 4, 20, 28, 36
    ONES, IDX, L = 44, 48, 52
    O, S0, S1 = 60, 92, 108
    T = 124
    END = 132

def SM(d, A, B, idx): return f"v_smfmac_f32_16x16x64_bf16 {vr(d,4)}, {vr(A,4)}, {vr(B,8)}, v{idx}"

def attn_consts(a, R, lane=0, sparse=0):
    T = R.T
    a(f"v_bfe_u32 v{T}, v{lane}, 2, 1")
    a(f"v_cmp_eq_u32 vcc, 0, v{T}")
    a(f"v_mov_b32 v{T+1}, 0x3f803f80")
    a(f"v_and_b32 v{T}, 1, v{lane}")
    a(f"v_cndmask_b32 v{R.ONES}, 0, v{T+1}, vcc")
    a(f"v_cndmask_b32 v{R.ONES+1}, 0, v{T+1}, vcc")
    a(f"v_cndmask_b32 v{R.ONES+2}, v{T+1}, 0, vcc")
    a(f"v_cndmask_b32 v{R.ONES+3}, v{T+1}, 0, vcc")
    if sparse:
        a(f"v_bfe_u32 v{T+2}, v{lane}, 1, 1")
        a(f"v_cmp_eq_u32 vcc, 0, v{T+2}")
        a("s_nop 1")
        for r in range(4): a(f"v_cndmask_b32 v{R.ONES+r}, 0, v{R.ONES+r}, vcc")
    a(f"v_mul_u32_u24 v{T}, 0xaaaa, v{T}")
    a(f"v_add_u32 v{R.IDX}, 0x4444, v{T}")
    for r in range(32): a(f"v_mov_b32 v{R.O+r}, 0")
    for r in range(8):
        a(f"v_mov_b32 v{R.L+r}, 0")
        a(f"v_mov_b32 v{R.P+r}, 0")
    for r in range(4): a(f"v_mov_b32 v{R.V+4+r}, 0")

def attn_phase(a, R, p, mode="smf", exp=True):
    q = p & 1
    Sc, Sn = (R.S0, R.S1) if q == 0 else (R.S1, R.S0)
    K, V, P, Q, O, L = R.K, R.V, R.P, R.Q, R.O, R.L
    qn, qp = 1 - q, 1 - q
    e = lambda i: f"v_exp_f32 v{Sc+i}, v{Sc+i}"
    c = lambda i: f"v_cvt_pk_bf16_f32 v{P+i}, v{Sc+2*i}, v{Sc+2*i+1}"
    def rd(dst, base, tile, part): return f"ds_read_b128 {vr(dst,4)}, v{base} offset:{tile*4096+part*1024}"
    if q == 0:
        kt = 0 if p == 0 else 1
        vb, vt = (R.PRV, 1) if p == 0 else (R.CUR, 0)
        rK0, rK1, rV1, rV0 = [rd(K, R.CUR, kt, 0)], [rd(K+4, R.CUR, kt, 1)], [rd(V+4, vb, vt, 3)], []
        w0, w1 = [], ["s_waitcnt lgkmcnt(3)"]
    else:
        rK0, rK1, rV1, rV0 = [], [], [], [rd(V, R.CUR, 0 if p == 1 else 1, 2)]
        w0, w1 = ["s_waitcnt lgkmcnt(0)"], []
    Ma = M32(Sn, K, Q+8*qn, None)
    Mb = M32(Sn, K+4, Q+8*qn+4, Sn)
    Mc = M32(O+16*q, V, P, O+16*q)
    Md = M32(O+16*qp, V+4, P+4, O+16*qp)
    if mode == "smf":
        a(*w0, Ma, *rK0, e(0), e(1), e(2))
        a(Md, *rV1, e(3), e(4), e(5))
        a(SM(L+4*qp, R.ONES, P, R.IDX), c(0), c(1), e(6), e(7))
        a(Mb, *rK1, c(2), c(3), e(8), e(9))
        a(*w1, Mc, *rV0, e(10), e(11), c(4), e(12), c(5), e(13), e(14), e(15), c(6), c(7))
    elif mode == "m16":
        a(*w0, Ma, *rK0, e(0), e(1), e(2))
        a(Md, *rV1, e(3), c(0), e(4), c(1))
        a(M16(L+4*qp, R.ONES, P+4, L+4*qp), e(5))
        a(Mb, *rK1, e(6), c(2), e(7), e(8), c(3), e(9), e(10))
        a(*w1, Mc, *rV0, e(11), c(4), e(12), c(5))
        a(M16(L+4*q, R.ONES, P, L+4*q), e(13), e(14), e(15), c(6), c(7))
    elif mode == "nosum":
        a(*w0, Ma, *rK0, e(0), e(1), e(2))
        a(Md, *rV1, e(3), e(4), e(5))
        a(c(0), c(1), e(6), e(7))
        a(Mb, *rK1, c(2), c(3), e(8), e(9))
        a(*w1, Mc, *rV0, e(10), e(11), c(4), e(12), c(5), e(13), e(14), e(15), c(6), c(7))

def attn_check_and_pair_reduce(a, R, name, skh, swave, xbase):
    O, L, T, VL = R.O, R.L, R.T, R.VL
    a(f"v_add_f32 v{L}, v{L}, v{L+1}")
    a(f"v_add_f32 v{L+4}, v{L+4}, v{L+5}")
    a(f"s_mul_i32 s31, s{swave}, 4352")
    a(f"s_add_u32 s31, s31, {xbase}")
    a(f"v_add_u32 v{T}, s31, v{VL}")
    a(f"s_xor_b32 s31, s{swave}, 4")
    a(f"s_mul_i32 s31, s31, 4352")
    a(f"s_add_u32 s31, s31, {xbase}")
    a(f"v_add_u32 v{T+1}, s31, v{VL}")
    a(f"v_lshrrev_b32 v{T+2}, 2, v{VL}")
    a(f"v_add_u32 v{T+3}, s31, v{T+2}")
    a(f"s_mul_i32 s31, s{swave}, 4352")
    a(f"s_add_u32 s31, s31, {xbase}")
    a(f"v_add_u32 v{T+2}, s31, v{T+2}")
    a(f"s_cmp_eq_u32 s{skh}, 0")
    a(f"s_cbranch_scc1 {name}_kh0")
    for r in range(4): a(f"ds_write_b128 v{T}, {vr(O+4*r,4)} offset:{r*1024}")
    a(f"ds_write_b32 v{T+2}, v{L} offset:4096")
    a("s_waitcnt lgkmcnt(0)")
    for r in range(16): a(f"v_mov_b32 v{O+r}, v{O+16+r}")
    a(f"v_mov_b32 v{L}, v{L+4}")
    a(f"s_branch {name}_khj")
    a.label(f"{name}_kh0")
    for r in range(4): a(f"ds_write_b128 v{T}, {vr(O+16+4*r,4)} offset:{r*1024}")
    a(f"ds_write_b32 v{T+2}, v{L+4} offset:4096")
    a.label(f"{name}_khj")
    a("s_waitcnt lgkmcnt(0)")
    a("s_barrier")
    for r in range(4): a(f"ds_read_b128 {vr(O+16+4*r,4)}, v{T+1} offset:{r*1024}")
    a(f"ds_read_b32 v{L+4}, v{T+3} offset:4096")
    a("s_waitcnt lgkmcnt(0)")
    for r in range(16): a(f"v_add_f32 v{O+r}, v{O+r}, v{O+16+r}")
    a(f"v_add_f32 v{L}, v{L}, v{L+4}")
    a(f"v_mov_b32 v{T+1}, 0")
    for r in range(16): a(f"v_fmac_f32 v{T+1}, 0, v{O+r}")
    a("s_mov_b32 s32, 0x2b800000")
    a("s_mov_b32 s33, 0x5d800000")
    a(f"v_cmp_nle_f32 s[34:35], s32, v{L}")
    a(f"v_cmp_nge_f32 s[36:37], s33, v{L}")
    a(f"v_cmp_u_f32 vcc, v{T+1}, v{T+1}")
    a("s_or_b64 s[34:35], s[34:35], s[36:37]")
    a("s_or_b64 s[34:35], s[34:35], vcc")
    a("s_cmp_lg_u64 s[34:35], 0")
    a(f"s_cbranch_scc1 {name}_slow")
    a.label(f"{name}_fin")

def attn_slow_path(a, R, name, skh, srd_kv, shead, ld_flags="", s0=30):
    K, V, P, Q, O, L, T, VL, S0, S1 = R.K, R.V, R.P, R.Q, R.O, R.L, R.T, R.VL, R.S0, R.S1
    a.label(f"{name}_slow")
    a("s_waitcnt vmcnt(0)")
    a(f"s_cmp_eq_u32 s{skh}, 0")
    a(f"s_cbranch_scc1 {name}_slow0")
    for r in range(8): a(f"v_mov_b32 v{Q+r}, v{Q+8+r}")
    a.label(f"{name}_slow0")
    a(f"v_mov_b32 v{T}, 0xff800000")
    a(f"s_mov_b32 s{s0}, 0")
    a.label(f"{name}_slow1")
    a(f"s_lshl_b32 s{s0+1}, s{s0}, 12")
    a(f"s_add_u32 s{s0+1}, s{s0+1}, s{shead}")
    a(f"buffer_load_dwordx4 {vr(K,4)}, v{VL}, {sr(srd_kv,4)}, s{s0+1} offen {ld_flags}")
    a(f"buffer_load_dwordx4 {vr(K+4,4)}, v{VL}, {sr(srd_kv,4)}, s{s0+1} offen offset:1024 {ld_flags}")
    a("s_waitcnt vmcnt(0)")
    a(M32(S0, K, Q, None))
    a(M32(S0, K+4, Q+4, S0))
    a("s_nop 15")
    for r in range(0, 16, 2):
        a(f"v_max3_f32 v{T}, v{T}, v{S0+r}, v{S0+r+1}")
    a(f"s_add_u32 s{s0}, s{s0}, 1")
    a(f"s_cmp_lt_u32 s{s0}, 64")
    a(f"s_cbranch_scc1 {name}_slow1")
    a(f"v_mov_b32 v{T+1}, v{T}")
    a("s_nop 1")
    a(f"v_permlane32_swap_b32 v{T}, v{T+1}")
    a("s_nop 1")
    a(f"v_max_f32 v{T}, v{T}, v{T+1}")
    for r in range(16):
        a(f"v_sub_f32 v{S1+r}, 0, v{T}")
        a(f"v_mov_b32 v{O+r}, 0")
    for r in range(4): a(f"v_mov_b32 v{L+r}, 0")
    a(f"s_mov_b32 s{s0}, 0")
    a.label(f"{name}_slow2")
    a(f"s_lshl_b32 s{s0+1}, s{s0}, 12")
    a(f"s_add_u32 s{s0+1}, s{s0+1}, s{shead}")
    for q in range(4):
        a(f"buffer_load_dwordx4 {vr(K+4*q,4)}, v{VL}, {sr(srd_kv,4)}, s{s0+1} offen offset:{q*1024} {ld_flags}")
    a("s_waitcnt vmcnt(0)")
    a(M32(S0, K, Q, S1))
    a(M32(S0, K+4, Q+4, S0))
    a("s_nop 15")
    for r in range(16): a(f"v_exp_f32 v{S0+r}, v{S0+r}")
    a("s_nop 0")
    for r in range(8): a(f"v_cvt_pk_bf16_f32 v{P+r}, v{S0+2*r}, v{S0+2*r+1}")
    a("s_nop 1")
    a(M32(O, V, P, O))
    a(M32(O, V+4, P+4, O))
    a(SM(L, R.ONES, P, R.IDX))
    a(f"s_add_u32 s{s0}, s{s0}, 1")
    a(f"s_cmp_lt_u32 s{s0}, 64")
    a(f"s_cbranch_scc1 {name}_slow2")
    a("s_nop 15")
    a(f"v_add_f32 v{L}, v{L}, v{L+1}")
    a(f"s_branch {name}_fin")

def gen_attn2(name, kid=5, mode="smf", prio=False, spread=False):
    a = Asm()
    R = AttnRegs
    VL, CUR, PRV, Q, K, V, P, O, L, T = R.VL, R.CUR, R.PRV, R.Q, R.K, R.V, R.P, R.O, R.L, R.T
    a("s_cmp_ge_u32 s2, 256")
    a(f"s_cbranch_scc1 {name}_done")
    a.stamp_init(); a.stamp(0)
    a(f"s_load_dwordx2 s[8:9], s[0:1], {A_WS}")
    a("v_lshrrev_b32 v4, 6, v0")
    a("v_and_b32 v0, 63, v0")
    a("v_readfirstlane_b32 s3, v4")
    a(f"v_lshlrev_b32 v{VL}, 4, v0")
    a("s_and_b32 s10, s2, 7")
    a("s_lshl_b32 s10, s10, 2")
    a("s_lshr_b32 s11, s2, 6")
    a("s_add_u32 s10, s10, s11")
    a("s_bfe_u32 s11, s2, 0x30003")
    a("s_lshr_b32 s38, s3, 2")
    a("s_and_b32 s39, s3, 3")
    a("s_lshl_b32 s11, s11, 3")
    a("s_lshl_b32 s24, s39, 1")
    a("s_add_u32 s11, s11, s24")
    a("s_lshl_b32 s24, s3, 11")
    a("s_lshl_b32 s25, s10, 18")
    a("s_add_u32 s26, s25, s24")
    a("s_mov_b32 s27, s24")
    a("s_lshl_b32 s28, s10, 17")
    a("s_lshl_b32 s29, s11, 11")
    a("s_add_u32 s28, s28, s29")
    a("s_waitcnt lgkmcnt(0)")
    a.srd(12, 8, WS_KV, KV_BYTES)
    a.srd(16, 8, WS_Q, Q_BYTES)
    a.srd(20, 8, WS_O, O_BYTES)
    def dma():
        a("s_mov_b32 m0, s27")
        a("s_add_u32 s27, s27, 16384")
        a(f"buffer_load_dwordx4 v{VL}, s[12:15], s26 offen lds")
        a(f"buffer_load_dwordx4 v{VL}, s[12:15], s26 offen offset:1024 lds")
        a("s_and_b32 s27, s27, 0xffff")
        a("s_add_u32 s26, s26, 16384")
    for q in range(4):
        a(f"buffer_load_dwordx4 {vr(Q+4*q,4)}, v{VL}, s[16:19], s28 offen offset:{q*1024}")
    dma(); dma()
    a("s_lshl_b32 s31, s38, 13")
    a(f"v_add_u32 v{CUR}, s31, v{VL}")
    attn_consts(a, R)
    a("s_mov_b32 s30, 0")
    a.stamp(1)
    a("s_waitcnt vmcnt(2)")
    a("s_barrier")
    a.stamp(2); a.cstamp(5)
    a(f"ds_read_b128 {vr(K,4)}, v{CUR}")
    a(f"ds_read_b128 {vr(K+4,4)}, v{CUR} offset:1024")
    a(f"ds_read_b128 {vr(V,4)}, v{CUR} offset:2048")
    dma()
    a("s_waitcnt lgkmcnt(0)")
    a(M32(R.S0, K, Q, None))
    a(M32(R.S0, K+4, Q+4, R.S0))
    a("s_nop 10")
    a(f"s_branch {name}_p2")
    def sp(p):
        if prio: a(f"s_setprio {3-p}")
    def dma1(i):
        a("s_cmp_ge_u32 s30, 14")
        a(f"s_cbranch_scc1 {name}_nd{i}")
        if i == 0:
            a("s_mov_b32 m0, s27")
            a("s_add_u32 s27, s27, 16384")
            a(f"buffer_load_dwordx4 v{VL}, s[12:15], s26 offen lds")
            a("s_and_b32 s27, s27, 0xffff")
        else:
            a(f"buffer_load_dwordx4 v{VL}, s[12:15], s26 offen offset:1024 lds")
            a("s_add_u32 s26, s26, 16384")
        a.label(f"{name}_nd{i}")
    a(".p2align 6")
    a.label(f"{name}_loop")
    sp(1)
    if spread: dma1(0)
    attn_phase(a, R, 1, mode)
    a("s_cmp_eq_u32 s30, 16")
    a(f"s_cbranch_scc1 {name}_exit")
    sp(2)
    if spread: dma1(1)
    a.label(f"{name}_p2")
    attn_phase(a, R, 2, mode)
    a("s_add_u32 s30, s30, 1")
    sp(3); attn_phase(a, R, 3, mode)
    a("s_cmp_ge_u32 s30, 15")
    a(f"s_cbranch_scc1 {name}_tail")
    a("s_waitcnt vmcnt(2)")
    a("s_barrier")
    if prio: a("s_setprio 3")
    if not spread:
        a("s_cmp_ge_u32 s30, 14")
        a(f"s_cbranch_scc1 {name}_rej")
        dma()
    a.label(f"{name}_rej")
    a(f"v_mov_b32 v{PRV}, v{CUR}")
    a(f"v_add_u32 v{CUR}, 16384, v{CUR}")
    a(f"v_and_b32 v{CUR}, 0xffff, v{CUR}")
    attn_phase(a, R, 0, mode)
    a(f"s_branch {name}_loop")
    a.label(f"{name}_tail")
    a("s_waitcnt vmcnt(0)")
    a("s_barrier")
    if prio: a("s_setprio 3")
    a(f"s_branch {name}_rej")
    a.label(f"{name}_exit")
    a.stamp(3); a.cstamp(6)
    a("s_waitcnt lgkmcnt(0)")
    a("s_nop 0")
    a(M32(O+16, V+4, P+4, O+16))
    a(SM(L+4, R.ONES, P, R.IDX))
    a("s_add_u32 s28, s11, s38")
    a("s_lshl_b32 s28, s28, 16")
    a("s_lshl_b32 s29, s10, 11")
    a("s_add_u32 s28, s28, s29")
    a("s_nop 7")
    a("s_nop 7")
    attn_check_and_pair_reduce(a, R, name, 38, 3, 65536)
    a(f"v_rcp_f32 v{T}, v{L}")
    a("s_nop 0")
    for jj in range(2):
        for e_ in range(4):
            r0 = O + 8*jj + 2*e_
            a(f"v_mul_f32 v{r0}, v{r0}, v{T}")
            a(f"v_mul_f32 v{r0+1}, v{r0+1}, v{T}")
            a(f"v_cvt_pk_bf16_f32 v{P+4*jj+e_}, v{r0}, v{r0+1}")
        a(f"buffer_store_dwordx4 {vr(P+4*jj,4)}, v{VL}, s[20:23], s28 offen offset:{jj*1024}")
    a.stamp(4)
    a.stamp_dump(kid, 3)
    a("s_endpgm")
    attn_slow_path(a, R, name, 38, 12, 25)
    a.label(f"{name}_done")
    a("s_endpgm")
    return kernel_header(name) + a.text() + kernel_desc(name, R.END, 48)
```

```python
import os
from asmlib import *
from layout import *
from k_top8 import DPPS, make_keys, decode_keys
from k_attn import M32, M16
import k_attn2 as AT
from k_moe import pi_row, silu_bf16, round_bf16

QSCALE = 0x3e8293ee
sX, sWQ, sWS, sWR, sDBG, sWG, sWU, sWD, sWO, sOUT = 4, 8, 12, 16, 20, 24, 28, 32, 36, 40
sJ, sMT, sLI, sXC = 44, 45, 46, 47
sIDX, sWT = 48, 56
sT = 64
W = 3
SLOT, WOFF = 40960, 16384
L_Q, L_XS, L_MISC = 122880, 139264, 159744
L_M, L_RS, L_CS, L_CAND, L_IDX, L_H = L_MISC, L_MISC+512, L_MISC+1024, L_MISC+1792, L_MISC+1920, L_MISC+2048
L_ST, L_CNT = L_MISC+3072, L_MISC+3200
LDS_BYTES = 163840
SPIN_LIMIT = 400000
RKEY = 208

def srd(r): return f"s[{r}:{r+3}]"

def wsum(a, r, sdst, op="add_f32"):
    for ctl in DPPS:
        bc = " bound_ctrl:0" if ctl.startswith("row_shr") and op == "add_f32" else ""
        a("s_nop 1")
        a(f"v_{op}_dpp v{r}, v{r}, v{r} {ctl}{bc}")
    a("s_nop 0")
    a(f"v_readlane_b32 s{sdst}, v{r}, 63")
    a("s_nop 1")

def ln_rows2(a, vm, X, WR, XB, T, voff, dbg, n=2):
    R2 = range(n)
    nop = "s_nop 0" if n == 2 else "s_nop 1"
    F_ = lambda i, e: XB + 16*i + e
    T_ = lambda i, k: T + 6*i + k
    def wsum2(k, sd):
        for ctl in DPPS:
            bc = " bound_ctrl:0" if ctl.startswith("row_shr") else ""
            a(nop)
            for i in R2: a(f"v_add_f32_dpp v{T_(i,k)}, v{T_(i,k)}, v{T_(i,k)} {ctl}{bc}")
        a("s_nop 0")
        for i in R2: a(f"v_readlane_b32 s{sT+3*i+sd}, v{T_(i,k)}, 63")
        a(nop)
    for i in R2:
        for p in range(8):
            a(f"v_lshlrev_b32 v{F_(i,2*p)}, 16, v{X+8*i+p}")
            a(f"v_and_b32 v{F_(i,2*p+1)}, 0xffff0000, v{X+8*i+p}")
    for i in R2:
        a(f"v_add_f32 v{T_(i,0)}, v{F_(i,0)}, v{F_(i,1)}")
    for e in range(2, 16):
        for i in R2: a(f"v_add_f32 v{T_(i,0)}, v{T_(i,0)}, v{F_(i,e)}")
    a("s_nop 0")
    wsum2(0, 0)
    for i in R2:
        a(f"v_mov_b32 v{T_(i,0)}, s{sT+3*i}")
    for i in R2:
        a(f"v_mul_f32 v{T_(i,0)}, 0x3a800000, v{T_(i,0)}")
    for i in R2:
        a(f"v_sub_f32 v{T_(i,2)}, v{F_(i,0)}, v{T_(i,0)}")
        a(f"v_mul_f32 v{T_(i,1)}, v{T_(i,2)}, v{T_(i,2)}")
    for e in range(1, 16):
        for i in R2:
            a(f"v_sub_f32 v{T_(i,2)}, v{F_(i,e)}, v{T_(i,0)}")
            a(f"v_fmac_f32 v{T_(i,1)}, v{T_(i,2)}, v{T_(i,2)}")
    wsum2(1, 0)
    seq = lambda i: [
        f"v_mov_b32 v{T_(i,1)}, s{sT+3*i}",
        f"v_mul_f32 v{T_(i,1)}, 0x3a800000, v{T_(i,1)}",
        f"v_cvt_pk_bf16_f32 v{T_(i,2)}, v{T_(i,0)}, v{T_(i,1)}",
        f"v_lshlrev_b32 v{T_(i,0)}, 16, v{T_(i,2)}",
        f"v_and_b32 v{T_(i,1)}, 0xffff0000, v{T_(i,2)}",
        f"v_add_f32 v{T_(i,1)}, 0x3727c5ac, v{T_(i,1)}",
        f"v_cvt_pk_bf16_f32 v{T_(i,1)}, v{T_(i,1)}, v{T_(i,1)}",
        f"v_and_b32 v{T_(i,1)}, 0xffff0000, v{T_(i,1)}",
        f"v_sqrt_f32 v{T_(i,1)}, v{T_(i,1)}",
        f"v_readfirstlane_b32 s{sT+3*i}, v{T_(i,0)}",
        f"v_cvt_pk_bf16_f32 v{T_(i,1)}, v{T_(i,1)}, v{T_(i,1)}",
        f"v_and_b32 v{T_(i,1)}, 0xffff0000, v{T_(i,1)}",
        f"v_rcp_f32 v{T_(i,1)}, v{T_(i,1)}",
        f"v_mov_b32 v{T_(i,3)}, 0"]
    for xs in zip(*[seq(i) for i in R2]): a(*xs)
    if n == 1: a("s_nop 0")
    for p in range(8):
        st = lambda i: [
            f"v_sub_f32 v{F_(i,2*p)}, v{F_(i,2*p)}, v{T_(i,0)}",
            f"v_sub_f32 v{F_(i,2*p+1)}, v{F_(i,2*p+1)}, v{T_(i,0)}",
            f"v_cvt_pk_bf16_f32 v{T_(i,2)}, v{F_(i,2*p)}, v{F_(i,2*p+1)}",
            f"v_lshlrev_b32 v{F_(i,2*p)}, 16, v{T_(i,2)}",
            f"v_and_b32 v{F_(i,2*p+1)}, 0xffff0000, v{T_(i,2)}",
            f"v_mul_f32 v{F_(i,2*p)}, v{F_(i,2*p)}, v{T_(i,1)}",
            f"v_mul_f32 v{F_(i,2*p+1)}, v{F_(i,2*p+1)}, v{T_(i,1)}",
            f"v_cvt_pk_bf16_f32 v{X+8*i+p}, v{F_(i,2*p)}, v{F_(i,2*p+1)}"]
        for xs in zip(*[st(i) for i in R2]): a(*xs)
    for i in R2: a(f"v_readfirstlane_b32 s{sT+3*i+1}, v{T_(i,1)}")
    if dbg:
        for i in R2:
            a(f"buffer_store_dwordx4 {vr(X+8*i,4)}, v{voff}, {srd(sWS)}, 0 offen offset:{2048*i}")
            a(f"buffer_store_dwordx4 {vr(X+8*i+4,4)}, v{voff}, {srd(sWS)}, 0 offen offset:{2048*i+1024}")
    for p in range(8):
        for i in R2: a(f"v_dot2c_f32_bf16 v{T_(i,3)}, v{X+8*i+p}, v{WR+p}")
    a("s_nop 1")
    wsum2(3, 2)
    for i in R2: a(f"v_mov_b32 v{T_(i,0)}, s{sT+3*i+2}")
    for i in R2: a(f"v_cvt_pk_bf16_f32 v{T_(i,0)}, v{T_(i,0)}, v{T_(i,0)}")
    for i in R2: a(f"v_and_b32 v{T_(i,0)}, 0xffff0000, v{T_(i,0)}")
    a(f"v_mov_b32 v{T+1}, s{sT}")
    for i in R2: a(f"v_readfirstlane_b32 s{sT+3*i+2}, v{T_(i,0)}")
    a(f"v_lshlrev_b32 v{T+2}, 5, v0")
    a(f"s_lshl_b32 s{sT+6}, s{W}, {n+1}")
    a(f"s_add_u32 s{sT+6}, s{sT+6}, {L_ST}")
    a(f"v_add_u32 v{T+2}, s{sT+6}, v{T+2}")
    for l in range(1, 3*n): a(f"v_writelane_b32 v{T+1}, s{sT+l}, {l}")
    if n == 2:
        for l in range(3):
            a(f"s_add_u32 s{sT+7}, s{sT+6}, {l*32+4}")
            a(f"v_writelane_b32 v{T+2}, s{sT+7}, {3+l}")
    a(f"s_mov_b64 exec, {(1 << 3*n) - 1}")
    a(f"ds_write_b32 v{T+2}, v{T+1}")
    a("s_mov_b64 exec, -1")

def ln_loads(a, vm, opt):
    n = opt.get("lnrows", 2)
    for q in range(2*n):
        a(f"buffer_load_dwordx4 {vr(96+4*q,4)}, v95, {srd(sX)}, 0 offen offset:{q*1024} {'nt' if 'l' in opt.get('nt', 'ms') else ''}")
    for q in range(2):
        a(f"buffer_load_dwordx4 {vr(112+4*q,4)}, v94, {srd(sWR)}, 0 offen offset:{q*1024}")
    vm.issue("lnld", 2*n + 2)

def rec_of(a, d):
    a(f"s_lshl_b32 s{d}, s{sMT}, 4")
    a(f"s_add_u32 s{d}, s{d}, s{sJ}")

def publish_stats(a, vm, T):
    t = sT
    a(f"v_mov_b32 v{T+1}, 0")
    a("s_mov_b64 exec, 0xffffff")
    a(f"ds_read_b32 v{T+1}, v{T+2}")
    a(f"s_lshl_b32 s{t}, s2, 7")
    a(f"s_add_u32 s{t}, s{t}, {WS_Y}")
    a("s_mov_b64 exec, 0xff")
    a(f"buffer_store_dwordx4 {vr(T+4,4)}, v94, {srd(sWS)}, s{t} offen sc1")
    a(f"s_mul_i32 s{t}, s2, 896")
    a(f"s_add_u32 s{t}, s{t}, {WS_GU}")
    a("s_bfm_b64 exec, 56, 0")
    a(f"buffer_store_dwordx4 {vr(T+4,4)}, v94, {srd(sWS)}, s{t} offen sc1")
    a("s_bfm_b64 exec, 43, 0")
    a("s_waitcnt lgkmcnt(0)")
    a(f"buffer_store_dword v{T+1}, v{T}, {srd(sWS)}, 0 offen sc1")
    a("s_mov_b64 exec, -1")
    vm.issue("st", 3, cond=True)

def publish_zeros(a, vm, T):
    A_, D_, U_ = T, T+1, T+2
    t = sT
    a(f"v_lshlrev_b32 v{U_}, 2, v0")
    rec_of(a, t)
    a(f"s_lshl_b32 s{t}, s{t}, 7")
    a(f"s_add_u32 s{t}, s{t}, {WS_ST}")
    a(f"v_add_u32 v{A_}, s{t}, v{U_}")
    rec_of(a, t)
    a(f"s_lshl_b32 s{t}, s{t}, 5")
    a(f"s_add_u32 s{t}, s{t}, {WS_R - 64}")
    a(f"v_cmp_le_u32 vcc, 16, v0")
    a(f"v_add_u32 v{U_}, s{t}, v{U_}")
    a("s_nop 0")
    a(f"v_cndmask_b32 v{A_}, v{A_}, v{U_}, vcc")
    rec_of(a, t+2)
    a(f"s_lshl_b32 s{t+2}, s{t+2}, 7")
    a(f"s_add_u32 s{t+2}, s{t+2}, {WS_ST + 96}")
    a(f"s_lshl_b32 s{t}, s{sJ}, 9")
    a(f"s_add_u32 s{t}, s{t}, {WS_KVF}")
    a(f"v_and_b32 v{U_}, 3, v0")
    a(f"v_lshlrev_b32 v{U_}, 7, v{U_}")
    a(f"v_add_u32 v{U_}, s{t}, v{U_}")
    a(f"v_mov_b32 v{U_+1}, s{t+2}")
    a(f"s_cmp_eq_u32 s{sMT}, 0")
    a(f"s_cselect_b64 vcc, -1, 0")
    a(f"v_cndmask_b32 v{U_}, v{U_+1}, v{U_}, vcc")
    a(f"v_cmp_le_u32 vcc, 24, v0")
    a(f"s_lshl_b32 s{t}, s{sMT}, 10")
    a(f"s_add_u32 s{t}, s{t}, {WS_OF}")
    a(f"v_cndmask_b32 v{A_}, v{A_}, v{U_}, vcc")
    a(f"v_and_b32 v{U_}, 7, v0")
    a(f"v_lshlrev_b32 v{U_}, 7, v{U_}")
    a(f"v_add_u32 v{U_}, s{t}, v{U_}")
    a(f"s_cmp_eq_u32 s{sJ}, 0")
    a(f"s_cselect_b64 vcc, -1, 0")
    a(f"v_cndmask_b32 v{U_}, v{U_+1}, v{U_}, vcc")
    a(f"v_cmp_le_u32 vcc, 32, v0")
    a(f"s_lshl_b32 s{t}, s2, 7")
    a(f"s_add_u32 s{t+1}, s{t}, {WS_HF}")
    a(f"v_cndmask_b32 v{A_}, v{A_}, v{U_}, vcc")
    a(f"s_cmp_lt_u32 s2, 56")
    a(f"s_cselect_b32 s{t+1}, s{t+1}, s{t+2}")
    a(f"v_writelane_b32 v{A_}, s{t+1}, 40")
    a(f"s_add_u32 s{t+1}, s{t}, {WS_YF}")
    a(f"s_cmp_lt_u32 s2, 16")
    a(f"s_cselect_b32 s{t+1}, s{t+1}, s{t+2}")
    a(f"v_writelane_b32 v{A_}, s{t+1}, 41")
    csf_addr(a, t, t+1)
    a(f"s_cmp_eq_u32 s{sMT}, 0")
    a(f"s_cselect_b32 s{t}, s{t}, s{t+2}")
    a(f"v_writelane_b32 v{A_}, s{t}, 42")
    for r in range(4): a(f"v_mov_b32 v{T+4+r}, 0")
    a(f"v_lshlrev_b32 v{U_}, 2, v0")
    a(f"v_add_u32 v{U_}, {L_ST}, v{U_}")

def csf_addr(a, d, t):
    a(f"s_lshl_b32 s{d}, s{sJ}, 7")
    a(f"s_add_u32 s{d}, s{d}, {WS_CSF}")
def kvf_addr(a, d, t):
    a(f"s_lshl_b32 s{d}, s{sJ}, 2")
    a(f"s_and_b32 s{t}, s{W}, 3")
    a(f"s_add_u32 s{d}, s{d}, s{t}")
    a(f"s_lshl_b32 s{d}, s{d}, 7")
    a(f"s_add_u32 s{d}, s{d}, {WS_KVF}")
def otile(a, d, t):
    a(f"s_lshl_b32 s{d}, s{sMT}, 2")
    a(f"s_and_b32 s{t}, s{W}, 2")
    a(f"s_add_u32 s{d}, s{d}, s{t}")
    a(f"s_lshr_b32 s{t}, s{W}, 2")
    a(f"s_add_u32 s{d}, s{d}, s{t}")
def head_of(a, d, t):
    a(f"s_lshl_b32 s{d}, s{sJ}, 1")
    a(f"s_and_b32 s{t}, s{W}, 1")
    a(f"s_add_u32 s{d}, s{d}, s{t}")
def of_addr(a, d, t):
    otile(a, d, t)
    a(f"s_lshl_b32 s{d}, s{d}, 1")
    a(f"s_lshr_b32 s{t}, s{sJ}, 3")
    a(f"s_add_u32 s{d}, s{d}, s{t}")
    a(f"s_lshl_b32 s{d}, s{d}, 7")
    a(f"s_add_u32 s{d}, s{d}, {WS_OF}")
    a(f"s_and_b32 s{t}, s{sJ}, 7")
    a(f"s_lshl_b32 s{t}, s{t}, 1")
    a(f"s_and_b32 s{t+1}, s{W}, 1")
    a(f"s_add_u32 s{t}, s{t}, s{t+1}")
    a(f"s_lshl_b32 s{t}, 1, s{t}")
def cg_of(a, d):
    a(f"s_mul_i32 s{d}, s{sXC}, 28")
    a(f"s_add_u32 s{d}, s{d}, s{sLI}")
def hf_addr(a, d):
    cg_of(a, d)
    a(f"s_lshr_b32 s{d}, s{d}, 2")
    a(f"s_lshl_b32 s{d}, s{d}, 7")
    a(f"s_add_u32 s{d}, s{d}, {WS_HF}")
def yf_addr(a, d, t):
    a(f"s_and_b32 s{d}, s2, 15")
    a(f"s_lshl_b32 s{d}, s{d}, 7")
    a(f"s_add_u32 s{d}, s{d}, {WS_YF}")

def signal(a, saddr, val, v0_, v1_, op="add"):
    a(f"v_mov_b32 v{v0_}, s{saddr}")
    a(f"v_mov_b32 v{v1_}, {val}")
    a("s_mov_b64 exec, 1")
    a(f"buffer_atomic_{op} v{v1_}, v{v0_}, {srd(sWS)}, 0 offen sc1")
    a("s_mov_b64 exec, -1")

def apoll(o, vreg, vaddr, lanes=1):
    o(f"v_mov_b32 v{vreg}, 0")
    o(f"s_mov_b64 exec, {(1 << lanes) - 1}")
    o(f"buffer_atomic_or v{vreg}, v{vaddr}, {srd(sWS)}, 0 offen sc0 sc1")
    o("s_mov_b64 exec, -1")

def acheck(a, name, vreg, vaddr, want, lanes, cold):
    lab = a.new_label(name)
    def cmp(o):
        o(f"v_cmp_gt_u32 vcc, {want}, v{vreg}")
        o(f"s_and_b32 vcc_lo, vcc_lo, {(1 << lanes) - 1}")
    cmp(a)
    a(f"s_cbranch_scc1 {lab}_spin")
    a.label(f"{lab}_ok")
    c = Asm()
    c.label(f"{lab}_spin")
    c(f"s_mov_b32 s{sT+11}, 0")
    c.label(f"{lab}_again")
    apoll(c, vreg, vaddr, lanes)
    c(f"s_add_u32 s{sT+11}, s{sT+11}, 1")
    c(f"s_cmp_gt_u32 s{sT+11}, {SPIN_LIMIT}")
    c(f"s_cbranch_scc1 {lab}_ok")
    c("s_waitcnt vmcnt(0)")
    cmp(c)
    c(f"s_cbranch_scc1 {lab}_again")
    c(f"s_branch {lab}_ok")
    cold.append(c)

def poll_check(a, name, vreg, vaddr, s_srd, want, mask, cold):
    lab = a.new_label(name)
    def cmp(o):
        o(f"v_cmp_gt_u32 vcc, {want}, v{vreg}" if want != 1 else f"v_cmp_ne_u32 vcc, 1, v{vreg}")
        if mask != -1:
            o(f"s_and_b32 vcc_lo, vcc_lo, {mask & 0xffffffff:#x}")
            o(f"s_and_b32 vcc_hi, vcc_hi, {(mask >> 32) & 0xffffffff:#x}")
        o("s_cmp_lg_u64 vcc, 0")
    cmp(a)
    a(f"s_cbranch_scc1 {lab}_spin")
    a.label(f"{lab}_ok")
    c = Asm()
    c.label(f"{lab}_spin")
    c(f"s_mov_b32 s{sT+11}, 0")
    c.label(f"{lab}_again")
    c(f"buffer_load_dword v{vreg}, v{vaddr}, {srd(s_srd)}, 0 offen sc1")
    c(f"s_add_u32 s{sT+11}, s{sT+11}, 1")
    c(f"s_cmp_gt_u32 s{sT+11}, {SPIN_LIMIT}")
    c(f"s_cbranch_scc1 {lab}_ok")
    c("s_waitcnt vmcnt(0)")
    cmp(c)
    c(f"s_cbranch_scc1 {lab}_again")
    c(f"s_branch {lab}_ok")
    cold.append(c)

def top8_round(a, keys, T, cand, st, rnd):
    n = len(keys)
    if rnd == 0: a(f"s_mov_b32 s{st}, -1")
    for e in range(n):
        a(f"v_sub_u32 v{T+e}, s{st}, v{keys[e]}")
    e = 1
    while e + 1 < n:
        a(f"v_min3_u32 v{T}, v{T}, v{T+e}, v{T+e+1}")
        e += 2
    if e < n: a(f"v_min_u32 v{T}, v{T}, v{T+e}")
    wsum(a, T, st+1, "min_u32")
    a(f"s_sub_u32 s{st}, s{st}, s{st+1}")
    a(f"v_writelane_b32 v{cand}, s{st}, {rnd}")
    a(f"s_sub_u32 s{st}, s{st}, 1")

def atomise(a, tmp):
    out, grp = [], None
    for l in tmp.lines:
        s_ = l.strip()
        if grp is not None:
            grp.append(s_)
            if s_ == "s_mov_b64 exec, -1": out.append(grp); grp = None
        elif ("exec," in s_ and s_ != "s_mov_b64 exec, -1") or "saveexec" in s_: grp = [s_]
        else: out.append([s_])
    assert grp is None
    return [(lambda g=g: a(*g)) for g in out]

def ws_base(a, opt):
    off = opt.get("wsoff", 0) << 20
    if off:
        a(f"s_add_u32 s{sWS}, s{sWS}, {off:#x}")
        a(f"s_addc_u32 s{sWS+1}, s{sWS+1}, 0")

def prologue(a, name, opt):
    a("s_cmp_ge_u32 s2, 256")
    a(f"s_cbranch_scc1 {name}_done")
    a.stamp_init(); a.stamp(0)
    if opt.get("dbgtime"): a("s_memrealtime s[96:97]")
    for r, off in ((sX, A_X), (sWQ, A_WQKV), (sWS, A_WS), (sWR, A_WR), (sDBG, A_DBG), (sWG, A_WG), (sWU, A_WU),
                   (sWD, A_WD), (sWO, A_WO), (sOUT, A_OUT)):
        a(f"s_load_dwordx2 s[{r}:{r+1}], s[0:1], {off}")
    a("v_lshrrev_b32 v1, 6, v0")
    a("v_and_b32 v0, 63, v0")
    a(f"v_readfirstlane_b32 s{W}, v1")
    a(f"s_and_b32 s{sXC}, s2, 7")
    a(f"s_lshr_b32 s{sLI}, s2, 3")
    a(f"s_and_b32 s{sMT}, s{sXC}, 1")
    a(f"s_lshl_b32 s{sMT}, s{sMT}, 3")
    a(f"s_and_b32 s{sT}, s{sLI}, 7")
    a(f"s_add_u32 s{sMT}, s{sMT}, s{sT}")
    a(f"s_lshr_b32 s{sJ}, s{sXC}, 1")
    a(f"s_lshl_b32 s{sJ}, s{sJ}, 2")
    a(f"s_lshr_b32 s{sT}, s{sLI}, 3")
    a(f"s_add_u32 s{sJ}, s{sJ}, s{sT}")
    a(f"s_lshl_b32 s{sT+3}, s{sMT}, 4")
    a(f"s_add_u32 s{sT+3}, s{sT+3}, s{sJ}")
    n = opt.get("lnrows", 2)
    a(f"s_lshl_b32 s{sT+3}, s{sT+3}, {4-n}")
    a(f"s_add_u32 s{sT+3}, s{sT+3}, s{W}")
    a(f"s_lshl_b32 s{sT}, s{sT+3}, {10+n}")
    a("v_lshlrev_b32 v94, 4, v0")
    a(f"v_add_u32 v95, s{sT}, v94")
    for r, n in ((sX, S*D*2), (sWQ, D*3*D*2), (sWS, WS_USED), (sWR, D*2), (sDBG, 256), (sWG, D*F*2), (sWU, D*F*2),
                 (sWD, D*F*2), (sWO, D*D*2), (sOUT, S*D*2)):
        a(f"s_mov_b32 s{r+2}, {n:#x}")
        a(f"s_mov_b32 s{r+3}, 0x00020000")

def phaseA_loader(a, name, cold, opt):
    vm = VM(a)
    LW, XB_, WB_, SX, SW = 48, 49, 50, 51, 52
    a(f"s_sub_u32 s{LW}, s{W}, 4")
    a("v_lshrrev_b32 v16, 3, v0")
    a("v_and_b32 v17, 7, v0")
    a(f"s_lshl_b32 s{sT}, s{sMT}, 7")
    a(f"s_lshl_b32 s{sT+1}, s{LW}, 5")
    a(f"s_add_u32 s{sT}, s{sT}, s{sT+1}")
    a(f"v_add_u32 v18, s{sT}, v16")
    a("v_lshlrev_b32 v18, 11, v18")
    a("v_lshrrev_b32 v19, 1, v16")
    a("v_xor_b32 v20, v19, v17")
    a("v_lshl_add_u32 v1, v20, 4, v18")
    a("v_xor_b32 v20, 4, v20")
    a("v_lshl_add_u32 v2, v20, 4, v18")
    a(f"v_add_u32 v2, {8*2048}, v2")
    a(f"v_add_u32 v3, {16*2048}, v1")
    a(f"v_add_u32 v4, {16*2048}, v2")
    a(f"s_lshl_b32 s{sT}, s{LW}, 4")
    a(f"v_add_u32 v18, s{sT}, v16")
    a("v_mul_u32_u24 v18, 6144, v18")
    a(f"s_lshl_b32 s{sT}, s{sJ}, 7")
    a(f"v_add_u32 v18, s{sT}, v18")
    a("v_bfe_u32 v19, v0, 4, 1")
    a("v_lshlrev_b32 v19, 1, v19")
    a("v_xor_b32 v19, v19, v17")
    a("v_lshl_add_u32 v5, v19, 4, v18")
    a("v_xor_b32 v19, 4, v19")
    a("v_lshl_add_u32 v6, v19, 4, v18")
    a(f"v_add_u32 v6, {8*6144}, v6")
    a(f"s_lshl_b32 s{XB_}, s{LW}, 12")
    a(f"s_lshl_b32 s{WB_}, s{LW}, 11")
    KR = 56
    SH = 57
    NS = opt.get("starts", 2)
    if opt.get("rotj", False): a(f"s_add_u32 s{KR}, s{sMT}, s{sJ}")
    else: a(f"s_mov_b32 s{KR}, s{sMT}")
    a(f"s_and_b32 s{KR}, s{KR}, {NS-1}")
    a(f"s_lshl_b32 s{KR}, s{KR}, {2 if NS == 4 else 3}")
    a(f"s_lshr_b32 s{SH}, s{sMT}, {2 if NS == 4 else 1}")
    NSH = 16 // NS
    nt = lambda k: "nt" if k in opt.get("nt", "ms") else ""
    def offsets():
        a(f"s_and_b32 s{KR}, s{KR}, 15")
        a(f"s_lshl_b32 s{SX}, s{KR}, 7")
        a(f"s_mul_i32 s{SW}, s{KR}, {64*6144}")
        a(f"s_add_u32 s{SW+1}, s{SW}, 2048")
        a(f"s_add_u32 s{SW+2}, s{SW}, 4096")
        a(f"s_add_u32 s{KR}, s{KR}, 1")
    hoist = opt.get("hoist", True)
    def issue(kt, atoms=()):
        slot = (kt % 3) * SLOT
        atoms = list(atoms)
        if not (hoist and kt >= 2): offsets()
        d = [(f"s_add_u32 m0, s{XB_}, {slot + i*1024}", f"buffer_load_dwordx4 v{1+i}, {srd(sX)}, s{SX} offen {nt('x')} lds") for i in range(4)]
        d += [(f"s_add_u32 m0, s{WB_}, {slot + WOFF + seg*8192 + i*1024}", f"buffer_load_dwordx4 v{5+i}, {srd(sWQ)}, s{SW+seg} offen {nt('w')} lds")
              for seg in range(3) for i in range(2)]
        k = 0
        for i, (m, ld) in enumerate(d):
            if not (opt.get("noload") and kt > 2):
                a(m); a("s_nop 0"); a(ld)
                vm.issue(f"T{kt}")
            k2 = (i + 1) * len(atoms) // len(d)
            for at in atoms[k:k2]: at()
            k = k2
    a("s_waitcnt lgkmcnt(0)")
    ws_base(a, opt)
    a.stamp(4)
    if opt.get("lnrows", 2) == 1:
        ln_loads(a, vm, opt)
        issue(0)
        vm.wait("lnld")
        tmp = Asm(); ln_rows2(tmp, vm, 96, 112, 120, 152, 95, opt.get("dbg"), 1)
        if opt.get("dbg"): vm.issue("dbg", 2)
        issue(1, atomise(a, tmp))
    else:
        issue(0); issue(1)
    a.stamp(5)
    a("v_lshrrev_b32 v16, 4, v0")
    a("v_bfe_u32 v17, v0, 2, 2")
    a("v_lshl_add_u32 v17, v16, 3, v17")
    a("v_lshlrev_b32 v17, 7, v17")
    a("v_and_b32 v18, 3, v0")
    a("v_lshl_add_u32 v17, v18, 3, v17")
    a("v_and_b32 v16, 1, v16")
    a("v_lshlrev_b32 v16, 1, v16")
    a("v_bfe_u32 v18, v0, 3, 1")
    a("v_or_b32 v16, v16, v18")
    a(f"s_mul_i32 s{sT+3}, s{SH}, 43")
    a(f"s_lshr_b32 s{sT+3}, s{sT+3}, 7")
    a(f"s_mul_i32 s{sT+3}, s{sT+3}, 3")
    a(f"s_sub_u32 s{sT+3}, s{SH}, s{sT+3}")
    a(f"s_mul_i32 s{sT+3}, s{sT+3}, {SLOT}")
    a(f"s_add_u32 s{sT+3}, s{sT+3}, {WOFF}")
    for i in range(3):
        a(f"s_and_b32 s{sT}, s{LW}, 1")
        a(f"s_mul_i32 s{sT}, s{sT}, 3")
        a(f"s_add_u32 s{sT}, s{sT}, {i}")
        a(f"s_and_b32 s{sT+1}, s{sT}, 1")
        a(f"s_and_b32 s{sT+2}, s{LW}, 2")
        a(f"s_or_b32 s{sT+1}, s{sT+1}, s{sT+2}")
        a(f"v_xor_b32 v18, s{sT+1}, v16")
        a(f"v_lshl_add_u32 v{10+i}, v18, 5, v17")
        a(f"s_lshr_b32 s{sT}, s{sT}, 1")
        a(f"s_lshl_b32 s{sT}, s{sT}, 13")
        a(f"s_add_u32 s{sT}, s{sT}, s{sT+3}")
        a(f"v_add_u32 v{10+i}, s{sT}, v{10+i}")
    for r in range(4): a(f"v_mov_b32 v{56+r}, 0x3f803f80")
    a(f"s_cmp_lg_u32 s{W}, 4")
    a(f"s_cbranch_scc1 {name}_nozero")
    publish_zeros(a, vm, 13 + 3)
    a.label(f"{name}_nozero")
    if opt.get("lprio", 0): a(f"s_setprio {opt.get('lprio', 0)}")
    KEY, TT, CAND = 28, 36, 44
    ST = sT + 8
    keys = list(range(KEY, KEY+8))
    a("s_waitcnt lgkmcnt(0)")
    if hoist: offsets()
    vm.wait("T0")
    a("s_barrier")
    a.stamp(1)
    assert opt.get("p0", 7) <= 7
    t8a = opt.get("t8a", True)
    P0 = opt.get("p0", 7)
    cb = Asm()
    cb.label(f"{name}_colsum")
    for i in range(3):
        for ks in range(2):
            for t_ in range(2):
                cb(f"ds_read_b64_tr_b16 {vr(68+8*i+4*ks+2*t_,2)}, v{10+i} offset:{ks*4096+t_*512}")
    cb(f"s_lshl_b32 s{sT}, s{sJ}, 4")
    cb(f"s_add_u32 s{sT}, s{sT}, s{sMT}")
    cb(f"s_lshl_b32 s{sT}, s{sT}, 2")
    cb(f"s_add_u32 s{sT}, s{sT}, s{LW}")
    cb(f"s_mul_i32 s{sT}, s{sT}, 192")
    cb(f"s_add_u32 s{sT}, s{sT}, {WS_CSP}")
    cb("v_lshlrev_b32 v47, 2, v0")
    cb("s_waitcnt lgkmcnt(0)")
    for ks in range(2):
        for i in range(3):
            cb(f"v_mfma_f32_16x16x32_bf16 {vr(28+4*i,4)}, v[56:59], {vr(68+8*i+4*ks,4)}, {vr(28+4*i,4) if ks else 0}")
    cb("s_nop 7")
    cb("s_mov_b64 exec, 0xffff0000")
    cb("v_mov_b32 v28, v32")
    cb("s_bfm_b64 exec, 16, 32")
    cb("v_mov_b32 v28, v36")
    cb("s_bfm_b64 exec, 48, 0")
    cb(f"buffer_store_dword v28, v47, {srd(sWS)}, s{sT} offen sc1")
    cb("s_mov_b64 exec, -1")
    cb("s_setpc_b64 s[70:71]")
    cold.append(cb)
    def lines(fn):
        tmp = Asm(); tmp.uid = a.uid; fn(tmp); a.uid = tmp.uid
        out, grp = [], None
        for l in tmp.lines:
            s_ = l.strip()
            if grp is not None:
                grp.append(s_)
                if s_ == "s_mov_b64 exec, -1": out.append(grp); grp = None
            elif ("exec," in s_ and s_ != "s_mov_b64 exec, -1") or "saveexec" in s_: grp = [s_]
            else: out.append([s_])
        assert grp is None
        return [(lambda g=g: a(*g)) for g in out]
    def cs_load(i):
        def f():
            a(f"s_mul_i32 s{sT+2}, s{sJ}, {16*768}")
            a(f"s_mul_i32 s{sT+3}, s{LW}, 192")
            a(f"s_add_u32 s{sT+2}, s{sT+2}, s{sT+3}")
            a(f"s_add_u32 s{sT+2}, s{sT+2}, {WS_CSP}")
            a(f"buffer_load_dwordx4 {vr(60+4*i,4)}, v51, {srd(sWS)}, s{sT+2} offen offset:{i*768} sc1")
            vm.issue("csl")
        return f
    for kt in range(16):
        atoms = []
        def after_issue(kt=kt):
            if kt == 0:
                a(f"s_cmp_lg_u32 s{W}, 4")
                a(f"s_cbranch_scc1 {name}_nopub")
                publish_stats(a, vm, 16)
                a.label(f"{name}_nopub")
            if kt < NSH:
                lab = a.new_label(f"{name}_cs")
                a(f"s_cmp_lg_u32 s{SH}, {kt}")
                a(f"s_cbranch_scc1 {lab}")
                a(f"s_call_b64 s[70:71], {name}_colsum")
                a.label(lab)
                vm.issue("cs", 1, cond=True)
        if kt == 2:
            a(f"s_cmp_lg_u32 s{W}, 4")
            a(f"s_cbranch_scc1 {name}_nosig")
            a(f"s_lshl_b32 s{sT}, s{sMT}, 4")
            a(f"v_mov_b32 v45, s{sT}")
            a("v_mov_b32 v46, 1")
            a("s_mov_b64 exec, 1")
            a(f"buffer_atomic_add v46, v45, {srd(sDBG)}, 0 offen sc1")
            a("s_mov_b64 exec, -1")
            a.label(f"{name}_nosig")
            vm.issue("sig", 1, cond=True)
        if kt == P0:
            a("v_and_b32 v45, 15, v0")
            a("v_lshlrev_b32 v45, 4, v45")
            a(f"buffer_load_dword v46, v45, {srd(sDBG)}, 0 offen sc1")
            vm.issue("poll")
        if kt == P0 + 1:
            poll_check(a, f"{name}_p1", 46, 45, sDBG, 16, -1, cold)
            if t8a:
                a(f"s_lshl_b32 s{sT}, s{LW}, 11")
                a(f"s_add_u32 s{sT}, s{sT}, {WS_R}")
                a(f"buffer_load_dwordx4 {vr(KEY,4)}, v94, {srd(sWS)}, s{sT} offen sc1")
                a(f"buffer_load_dwordx4 {vr(KEY+4,4)}, v94, {srd(sWS)}, s{sT} offen offset:1024 sc1")
            a(f"s_lshl_b32 s{sT}, s{sMT}, 11")
            a(f"s_and_b32 s{sT+1}, s{LW}, 1")
            a(f"s_lshl_b32 s{sT+1}, s{sT+1}, 10")
            a(f"s_add_u32 s{sT}, s{sT}, s{sT+1}")
            a(f"s_add_u32 s{sT}, s{sT}, {WS_ST}")
            a("v_lshrrev_b32 v47, 3, v0")
            a("v_lshlrev_b32 v47, 7, v47")
            a("v_and_b32 v48, 7, v0")
            a("v_lshl_add_u32 v47, v48, 2, v47")
            a(f"buffer_load_dword v54, v47, {srd(sWS)}, s{sT} offen sc1")
            a(f"buffer_load_dword v55, v47, {srd(sWS)}, s{sT} offen offset:32 sc1")
            vm.issue("side", 4 if t8a else 2)
        CS0 = max(P0 + 1, NSH + 2)
        if kt == CS0:
            lab = a.new_label(f"{name}_cf")
            a(f"s_cmp_lg_u32 s{W}, 4")
            a(f"s_cbranch_scc1 {lab}")
            csf_addr(a, sT, sT+1)
            signal(a, sT, 1, 52, 53)
            a.label(lab)
            vm.issue("csf", 1, cond=True)
        if kt == CS0 + 1 + (CS0 < 10):
            csf_addr(a, sT, sT+1)
            a(f"v_mov_b32 v52, s{sT}")
            apoll(a, 53, 52)
            vm.issue("poll")
            def f(o):
                o("v_and_b32 v51, 15, v0")
                o("v_cmp_gt_u32 vcc, 12, v51")
                o("v_lshlrev_b32 v51, 4, v51")
                o("v_lshrrev_b32 v50, 4, v0")
                o("v_mul_u32_u24 v50, 4*768, v50")
                o("v_add_u32 v51, v51, v50")
                o("v_mov_b32 v50, 0x7fff0000")
                o("v_cndmask_b32 v51, v50, v51, vcc")
            atoms += lines(f)
        CS1 = CS0 + 2 + (CS0 < 10)
        if kt == CS1: acheck(a, f"{name}_p2", 53, 52, 16, 1, cold)
        if CS1 <= kt <= CS1 + 1:
            atoms += [cs_load(i) for i in ((0, 1), (2, 3))[kt - CS1]]
        if kt == 15:
            a(f"s_and_b32 s{sT}, s{LW}, 1")
            a(f"s_lshl_b32 s{sT}, s{sT}, 8")
            a(f"s_add_u32 s{sT}, s{sT}, {L_M}")
            a("v_lshlrev_b32 v47, 2, v0")
            a(f"v_add_u32 v47, s{sT}, v47")
            a("ds_write_b32 v47, v54")
            a("ds_write_b32 v47, v55 offset:512")
        if kt == P0 + 2:
            def f(o):
                if t8a:
                    o(f"s_lshl_b32 s{sT}, s{LW}, 9")
                    o("v_lshlrev_b32 v47, 2, v0")
                    o(f"v_add_u32 v47, s{sT}, v47")
                    make_keys(o, KEY, TT, 47, [0, 1, 2, 3, 256, 257, 258, 259])
                    o(f"v_mov_b32 v{CAND}, 0")
                    top8_round(o, keys, TT, CAND, ST, 0)
            atoms += lines(f)
        if t8a and P0 + 3 <= kt <= P0 + 6:
            rr = ((1, 2), (3, 4), (5, 6), (7,))[kt - P0 - 3]
            atoms += lines(lambda o: [top8_round(o, keys, TT, CAND, ST, r) for r in rr])
        def late_top8(kt=kt):
            if t8a and kt == 14:
                a(f"s_lshl_b32 s{sT}, s{LW}, 5")
                a(f"s_add_u32 s{sT}, s{sT}, {L_CAND}")
                a("v_lshlrev_b32 v47, 2, v0")
                a(f"v_add_u32 v47, s{sT}, v47")
                a("s_mov_b64 exec, 0xff")
                a(f"ds_write_b32 v47, v{CAND}")
                a("s_mov_b64 exec, -1")
                a("s_waitcnt lgkmcnt(0)")
        if t8a and kt == 15:
            a("v_and_b32 v46, 31, v0")
            a("v_lshlrev_b32 v46, 2, v46")
            a(f"v_add_u32 v46, {L_CAND}, v46")
            a(f"ds_read_b32 v{KEY}, v46")
        if kt == 15:
            vm.wait("csl")
            for i in range(1, 4):
                for r in range(4): a(f"v_add_f32 v{60+r}, v{60+r}, v{60+4*i+r}")
            a("s_nop 1")
            a("v_permlane32_swap_b32 v60, v62")
            a("v_permlane32_swap_b32 v61, v63")
            a("v_add_f32 v60, v60, v62")
            a("v_add_f32 v61, v61, v63")
            a("s_nop 1")
            a("v_permlane16_swap_b32 v60, v61")
            a("v_add_f32 v60, v60, v61")
            a("v_and_b32 v47, 15, v0")
            a("v_cmp_gt_u32 vcc, 12, v47")
            a("v_lshlrev_b32 v47, 4, v47")
            a("v_lshrrev_b32 v50, 4, v0")
            a("v_lshl_add_u32 v47, v50, 2, v47")
            a(f"s_mul_i32 s{sT}, s{LW}, 192")
            a(f"s_add_u32 s{sT}, s{sT}, {L_CS}")
            a(f"v_add_u32 v47, s{sT}, v47")
            a("s_and_saveexec_b64 s[66:67], vcc")
            a("ds_write_b32 v47, v60")
            a("s_mov_b64 exec, -1")
        if kt <= 13: issue(kt+2, atoms)
        else:
            for at in atoms: at()
        after_issue()
        if hoist and kt < 13: offsets()
        a("s_waitcnt lgkmcnt(0)")
        a.trace(3*kt+1)
        if kt < 15: vm.wait(f"T{kt+1}", "poll", "side", *(["st"] if kt == 1 else []), *(["cs"] if kt == NSH + 1 else []))
        late_top8()
        a.trace(3*kt+2)
        a("s_barrier")
        a.trace(3*kt+3)
    if t8a:
        a("v_cmp_gt_u32 vcc, 32, v0")
        a("s_nop 1")
        a(f"v_cndmask_b32 v{KEY}, 0, v{KEY}, vcc")
        for r in range(8): top8_round(a, [KEY], TT, CAND, ST, r)
        decode_keys(a, CAND, 48, 49, TT)
        a("v_lshlrev_b32 v47, 2, v0")
        a(f"v_add_u32 v47, {L_IDX}, v47")
        a("s_mov_b64 exec, 0xff")
        a("ds_write_b32 v47, v48")
        a("ds_write_b32 v47, v49 offset:32")
        if opt.get("dbg"):
            a(f"s_mov_b32 s{sT}, {WS_IDX}")
            a("v_lshlrev_b32 v47, 2, v0")
            a(f"buffer_store_dword v48, v47, {srd(sWS)}, s{sT} offen")
            a(f"buffer_store_dword v49, v47, {srd(sWS)}, s{sT} offen offset:32")
        a("s_mov_b64 exec, -1")
    a(f"s_lshl_b32 s{sT}, s{LW}, 13")
    a(f"v_add_u32 v2, s{sT}, v94")
    a(f"s_lshl_b32 s{sT+1}, s{sJ}, 1")
    a(f"s_lshr_b32 s{sT+2}, s{LW}, 1")
    a(f"s_add_u32 s{sT+1}, s{sT+1}, s{sT+2}")
    a(f"s_lshl_b32 s{sT+1}, s{sT+1}, 5")
    a(f"s_lshl_b32 s{sT+2}, s{sMT}, 1")
    a(f"s_add_u32 s{sT+1}, s{sT+1}, s{sT+2}")
    a(f"s_and_b32 s{sT+2}, s{LW}, 1")
    a(f"s_add_u32 s{sT+1}, s{sT+1}, s{sT+2}")
    a(f"s_lshl_b32 s{sT+1}, s{sT+1}, 13")
    a(f"s_add_u32 s{sT+1}, s{sT+1}, {WS_KV}")
    a(f"s_add_u32 s{sT+2}, s{sT+1}, 4096")
    a("s_barrier")
    for q in range(8): a(f"ds_read_b128 {vr(96+4*q,4)}, v2 offset:{q*1024}")
    for q in range(8):
        a(f"s_waitcnt lgkmcnt({7-q})")
        a(f"buffer_store_dwordx4 {vr(96+4*q,4)}, v94, {srd(sWS)}, s{sT+1+(q>>2)} offen offset:{(q&3)*1024} sc1")
    return vm

ACC, B0 = 96, 8
def accreg(ct, tt): return ACC + 16*ct + 4*tt

def phaseA_consumer(a, name, cold, opt):
    vm = VM(a)
    XA, WA = 1, 3
    a("s_waitcnt lgkmcnt(0)")
    ws_base(a, opt)
    a.stamp(4)
    ln_loads(a, vm, opt)
    if opt.get("cpf", True):
        a(f"s_cmp_lg_u32 s{W}, 0")
        a(f"s_cbranch_scc1 {name}_nocpf")
        a(f"s_getpc_b64 s[{sT+8}:{sT+9}]")
        a.label(f"{name}_pc")
        a(f"s_sub_u32 s{sT+8}, s{sT+8}, {name}_pc-{name}")
        a(f"s_subb_u32 s{sT+9}, s{sT+9}, 0")
        a(f"s_lshl_b32 s{sT}, s{sLI}, 4")
        a("v_and_b32 v8, 15, v0")
        a(f"v_add_u32 v8, s{sT}, v8")
        a("v_lshlrev_b32 v8, 7, v8")
        a(f"v_min_u32 v8, {name}_end-{name}-4, v8")
        a(f"global_load_dword v250, v8, s[{sT+8}:{sT+9}]")
        a.label(f"{name}_nocpf")
        vm.issue("cpf", 1, cond=True)
    WM, WN = 52, 53
    a(f"s_lshr_b32 s{WM}, s{W}, 1")
    a(f"s_and_b32 s{WN}, s{W}, 1")
    a("v_and_b32 v8, 15, v0")
    a("v_lshrrev_b32 v9, 4, v0")
    a(f"s_lshl_b32 s{sT}, s{WM}, 6")
    a(f"v_add_u32 v10, s{sT}, v8")
    a("v_lshlrev_b32 v10, 7, v10")
    a("v_bfe_u32 v11, v0, 1, 3")
    a("v_xor_b32 v11, v11, v9")
    a(f"v_lshl_add_u32 v{XA}, v11, 4, v10")
    a(f"v_xor_b32 v{XA+1}, 64, v{XA}")
    a("v_bfe_u32 v10, v0, 2, 2")
    a("v_lshl_add_u32 v10, v9, 3, v10")
    a("v_lshlrev_b32 v10, 7, v10")
    a("v_and_b32 v11, 3, v0")
    a("v_lshl_add_u32 v10, v11, 3, v10")
    a("v_and_b32 v11, 1, v9")
    a("v_lshlrev_b32 v11, 1, v11")
    a("v_bfe_u32 v12, v0, 3, 1")
    a("v_or_b32 v11, v11, v12")
    a(f"s_lshl_b32 s{sT}, s{WN}, 1")
    a(f"v_xor_b32 v11, s{sT}, v11")
    a("v_lshl_add_u32 v10, v11, 5, v10")
    a(f"v_add_u32 v{WA}, {WOFF}, v10")
    a(f"v_xor_b32 v{WA+1}, 32, v{WA}")
    a.stamp(5)
    vm.wait("lnld")
    a.stamp(6)
    assert WS_XN == 0
    ln_rows2(a, vm, 96, 112, 120, 152, 95, opt.get("dbg"), opt.get("lnrows", 2))
    for r in range(96): a(f"v_mov_b32 v{ACC+r}, 0")
    def reads(buf, ks):
        b = B0 + 40*buf
        xr = [f"ds_read_b128 {vr(b+4*tt,4)}, v{XA+ks} offset:{tt*2048}" for tt in range(4)]
        wr = [f"ds_read_b64_tr_b16 {vr(b+16+4*ct+2*t,2)}, v{WA+(ct&1)} offset:{(ct>>1)*8192+ks*4096+t*512}" for ct in range(6) for t in range(2)]
        return [xr[0]] + wr[0:2] + xr[1:4] + wr[2:]
    def mfmas(buf):
        b = B0 + 40*buf
        o = []
        for ct in range(6):
            for tt in range(4):
                x = vr(b+4*tt, 4); w = vr(b+16+4*ct, 4)
                A, B = (w, x) if ct < 4 else (x, w)
                o.append(f"v_mfma_f32_16x16x32_bf16 {vr(accreg(ct,tt),4)}, {A}, {B}, {vr(accreg(ct,tt),4)}")
        return o
    KT, SI, DL, NEG = 48, 49, 50, 51
    pf = opt.get("pf", False)
    PD, PO, PV = 56, 54, 5
    if pf:
        for q in range(3):
            a(f"s_cmp_eq_u32 s{W}, 0")
            a(f"s_cselect_b32 s{PD+q}, s{sWG+q}, s{sWU+q}")
            a(f"s_cmp_eq_u32 s{W}, 2")
            a(f"s_cselect_b32 s{PD+q}, s{sWD+q}, s{PD+q}")
            a(f"s_cmp_eq_u32 s{W}, 3")
            a(f"s_cselect_b32 s{PD+q}, s{sWO+q}, s{PD+q}")
        a(f"s_mov_b32 s{PD+3}, 0x00020000")
        a(f"s_cselect_b32 s{PO}, 8192, 28672 + 0" if False else f"s_movk_i32 s{PO}, 0x7000")
        a(f"s_cselect_b32 s{PO}, 0x2000, s{PO}")
        a(f"s_mul_i32 s{PO}, s{PO}, s2")
        a(f"s_sub_u32 s{PO}, s{PO}, {opt.get('pf0', 2)*2048}")
        a(f"v_lshlrev_b32 v{PV}, 7, v0")
        a("v_cmp_gt_u32 vcc, 16, v0")
        a("v_mov_b32 v6, 0x7fff0000")
        a("s_nop 0")
        a(f"v_cndmask_b32 v{PV}, v6, v{PV}, vcc")
    a(f"s_mov_b32 s{KT}, 0")
    a(f"s_mov_b32 s{SI}, 0")
    a(f"s_mov_b32 s{NEG}, {(-2*SLOT) & 0xffffffff:#x}")
    a("s_waitcnt lgkmcnt(0)")
    if opt.get("cprio"): a(f"s_setprio {opt['cprio']}")
    a("s_barrier")
    a.stamp(1); a.cstamp(7)
    a(*reads(0, 0))
    a(".p2align 6")
    a.label(f"{name}_cloop")
    per = opt.get("rpg", 1)
    skip = opt.get("rskip", 0)
    if opt.get("nods"): reads = lambda buf, ks: []
    fine = opt.get("fine", False)
    def weave(m, r, extra, first=0, pend=16):
        i = 0
        for k, x in enumerate(m):
            kk = k + first
            if fine and kk % 4 == 0 and kk > 0:
                need = 6 + 2*(kk // 4)
                a(f"s_waitcnt lgkmcnt({min(15, pend - need + i)})")
            a(x)
            if k < skip: continue
            a(*r[i:i+per]); i = min(len(r), i + per)
            if i >= len(r) and k >= len(r) // per and extra: a(extra.pop(0))
    U = opt.get("cunroll", 2)
    barpos = opt.get("barpos", 2)
    for u in range(U):
        m = mfmas(0); r = reads(1, 1)
        a(f"s_add_u32 s{SI}, s{SI}, 1")
        a(f"s_cmp_eq_u32 s{SI}, 3")
        a(f"s_cselect_b32 s{DL}, s{NEG}, {SLOT}")
        a(f"s_cselect_b32 s{SI}, 0, s{SI}")
        ctr = opt.get("ctrace")
        if ctr: a("s_memtime s[76:77]")
        a(f"s_waitcnt lgkmcnt({10 if fine else 0})")
        ex = [f"v_add_u32 v{q}, s{DL}, v{q}" for q in (1, 2, 3, 4)]
        if ctr: ex = [f"s_lshl_b32 m0, s{KT}, 2", "v_writelane_b32 v255, s76, m0"] + ex
        weave(m, r, ex)
        m = mfmas(1); r = reads(0, 0)
        if ctr: a("s_memtime s[76:77]")
        a("s_waitcnt lgkmcnt(0)")
        a(*m[:barpos])
        if ctr:
            a("s_add_u32 m0, m0, 1")
            a("v_writelane_b32 v255, s76, m0")
            a("s_memtime s[78:79]")
        a("s_barrier")
        if ctr:
            a("s_memtime s[76:77]")
            a("s_waitcnt lgkmcnt(0)")
            a("s_add_u32 m0, m0, 1")
            a("v_writelane_b32 v255, s78, m0")
            a("s_add_u32 m0, m0, 1")
            a("v_writelane_b32 v255, s76, m0")
        if pf:
            a(f"s_cmp_lt_u32 s{KT}, {opt.get('pf0', 2)}")
            a(f"s_cselect_b32 s{sT}, 0x7fff0000, s{PO}")
            a(f"buffer_load_dword v254, v{PV}, {srd(PD)}, s{sT} offen")
            a(f"s_add_u32 s{PO}, s{PO}, 2048")
        fine_, fine = fine, False
        weave(m[barpos:], r, [f"s_add_u32 s{KT}, s{KT}, 1", f"s_cmp_lt_u32 s{KT}, 16"])
        fine = fine_
    a(f"s_cbranch_scc1 {name}_cloop")
    vm.q = []
    if opt.get("cprio"): a("s_setprio 0")
    a.stamp(2); a.cstamp(8)
    MR, CSQ, MV, RV, CSV, QR, AD, PK = 8, 16, 32, 48, 64, 66, 74, 78
    if not opt.get("t8a", True):
        a(f"s_lshl_b32 s{sT}, s{W}, 11")
        a(f"s_add_u32 s{sT}, s{sT}, {WS_R}")
        a(f"buffer_load_dwordx4 {vr(RKEY,4)}, v94, {srd(sWS)}, s{sT} offen sc1")
        a(f"buffer_load_dwordx4 {vr(RKEY+4,4)}, v94, {srd(sWS)}, s{sT} offen offset:1024 sc1")
    a("s_waitcnt lgkmcnt(0)")
    a("v_and_b32 v1, 15, v0")
    a("v_lshrrev_b32 v2, 4, v0")
    a(f"s_lshl_b32 s{sT}, s{WM}, 8")
    a(f"s_add_u32 s{sT}, s{sT}, {L_M}")
    a(f"s_mul_i32 s{sT+1}, s{WN}, 384")
    a(f"s_add_u32 s{sT+1}, s{sT+1}, {L_CS}")
    a("v_lshlrev_b32 v3, 2, v1")
    a(f"v_add_u32 v4, s{sT}, v3")
    for tt in range(4):
        a(f"ds_read_b32 v{MR+2*tt}, v4 offset:{tt*64}")
        a(f"ds_read_b32 v{MR+2*tt+1}, v4 offset:{tt*64+512}")
    a("v_lshlrev_b32 v5, 4, v2")
    a(f"v_add_u32 v6, s{sT+1}, v5")
    for ct in range(4): a(f"ds_read_b128 {vr(CSQ+4*ct,4)}, v6 offset:{ct*64}")
    a(f"v_add_u32 v6, s{sT}, v5")
    a(f"v_add_u32 v3, s{sT+1}, v3")
    a(f"ds_read_b32 v{CSV}, v3 offset:256")
    a(f"ds_read_b32 v{CSV+1}, v3 offset:320")
    for tt in range(4):
        a(f"ds_read_b128 {vr(MV+4*tt,4)}, v6 offset:{tt*64}")
        a(f"ds_read_b128 {vr(RV+4*tt,4)}, v6 offset:{tt*64+512}")
    a("v_lshrrev_b32 v3, 1, v2")
    a("v_and_b32 v4, 1, v2")
    a("v_lshl_add_u32 v5, v3, 5, v1")
    a("v_lshlrev_b32 v5, 4, v5")
    a("v_lshl_add_u32 v5, v4, 3, v5")
    a("v_lshl_add_u32 v6, v4, 5, v1")
    a("v_lshlrev_b32 v6, 4, v6")
    a("v_lshl_add_u32 v6, v3, 3, v6")
    a(f"s_lshl_b32 s{sT}, s{WN}, 1")
    a(f"s_add_u32 s{sT}, s{sT}, s{WM}")
    a(f"s_lshl_b32 s{sT}, s{sT}, 13")
    a(f"v_add_u32 v{AD}, s{sT}, v5")
    a(f"v_add_u32 v{AD+1}, s{sT}, v6")
    a(f"s_lshr_b32 s{sT}, s{sT}, 1")
    a(f"s_add_u32 s{sT}, s{sT}, {L_Q}")
    a(f"v_add_u32 v{AD+2}, s{sT}, v5")
    a(f"s_mov_b32 s{sT+1}, {QSCALE:#x}")
    a("s_waitcnt lgkmcnt(10)")
    for tt in range(4):
        a(f"v_mul_f32 v{QR+2*tt+1}, s{sT+1}, v{MR+2*tt+1}")
    n = 0
    def fin(ct, tt):
        nonlocal n
        r = accreg(ct, tt)
        p = PK + 2*(n % 4); n += 1
        for hf in range(2):
            pr = vr(r+2*hf, 2)
            if ct < 4:
                a(f"v_pk_fma_f32 {pr}, {vr(CSQ+4*ct+2*hf,2)}, {vr(MR+2*tt,2)}, {pr} op_sel_hi:[1,0,1] neg_lo:[0,1,0] neg_hi:[0,1,0]")
                sc = QR if ct < 2 else MR
                a(f"v_pk_mul_f32 {pr}, {pr}, {vr(sc+2*tt,2)} op_sel:[0,1] op_sel_hi:[1,1]")
            else:
                sel = "op_sel_hi:[1,0,1]" if ct == 4 else "op_sel:[0,1,0] op_sel_hi:[1,1,1]"
                a(f"v_pk_fma_f32 {pr}, {vr(MV+4*tt+2*hf,2)}, {vr(CSV,2)}, {pr} {sel} neg_lo:[0,1,0] neg_hi:[0,1,0]")
                a(f"v_pk_mul_f32 {pr}, {pr}, {vr(RV+4*tt+2*hf,2)}")
            a(f"v_cvt_pk_bf16_f32 v{p+hf}, v{r+2*hf}, v{r+2*hf+1}")
        if ct < 2:   a(f"ds_write_b64 v{AD+2}, {vr(p,2)} offset:{(tt>>1)*2048 + ct*1024 + (tt&1)*256}")
        elif ct < 4: a(f"ds_write_b64 v{AD}, {vr(p,2)} offset:{(tt>>1)*4096 + (ct-2)*1024 + (tt&1)*256}")
        else:        a(f"ds_write_b64 v{AD+1}, {vr(p,2)} offset:{(tt>>1)*4096 + 2048 + (tt&1)*1024 + (ct-4)*256}")
    a("s_waitcnt lgkmcnt(0)")
    for ct in (2, 3, 4, 5):
        for tt in range(4): fin(ct, tt)
    a("s_waitcnt lgkmcnt(0)")
    a("s_barrier")
    for ct in (0, 1):
        for tt in range(4): fin(ct, tt)
    a("s_waitcnt lgkmcnt(0)")
    return vm

def publish_kv(a, vm, R, opt):
    a(f"v_lshlrev_b32 v{R.VL}, 4, v0")
    a(f"s_and_b32 s{sT+1}, s{W}, 1")
    a(f"s_lshl_b32 s{sT+1}, s{sT+1}, 1")
    a(f"s_bfe_u32 s{sT+2}, s{W}, 0x10001")
    a(f"s_add_u32 s{sT+1}, s{sT+1}, s{sT+2}")
    a(f"s_lshl_b32 s{sT+1}, s{sT+1}, 12")
    a(f"s_add_u32 s{sT+1}, s{sT+1}, {L_Q}")
    a(f"v_add_u32 v3, s{sT+1}, v{R.VL}")
    for q in range(4): a(f"ds_read_b128 {vr(R.Q+4*q,4)}, v3 offset:{q*1024}")
    if opt.get("dbg"):
        a("s_waitcnt lgkmcnt(0)")
        head_of(a, sT+1, sT+2)
        a(f"s_lshl_b32 s{sT+1}, s{sT+1}, 6")
        a(f"s_lshl_b32 s{sT+2}, s{sMT}, 2")
        a(f"s_add_u32 s{sT+1}, s{sT+1}, s{sT+2}")
        a(f"s_and_b32 s{sT+2}, s{W}, 2")
        a(f"s_add_u32 s{sT+1}, s{sT+1}, s{sT+2}")
        a(f"s_lshl_b32 s{sT+1}, s{sT+1}, 11")
        a(f"s_add_u32 s{sT+1}, s{sT+1}, {WS_Q}")
        for q in range(4):
            a(f"buffer_store_dwordx4 {vr(R.Q+4*q,4)}, v{R.VL}, {srd(sWS)}, s{sT+1} offen offset:{q*1024}")
        vm.drain()

def gen_fused(name, **opt):
    a = Asm(); cold = []
    R = AT.AttnRegs
    prologue(a, name, opt)
    a(f"s_cmp_ge_u32 s{W}, 4")
    a(f"s_cbranch_scc1 {name}_loader")
    phaseA_consumer(a, name, cold, opt)
    a(f"s_branch {name}_joinA")
    a.label(f"{name}_loader")
    phaseA_loader(a, name, cold, opt)
    a.stamp(2)
    a("s_setprio 0")
    a.label(f"{name}_joinA")
    a("s_barrier")
    a.stamp(3)
    if opt.get("dbgtime"): a("s_memrealtime s[94:95]")
    vm = VM(a)
    publish_kv(a, vm, R, opt)
    if opt.get("stop") != "A":
        import fused_bc
        fused_bc.phaseB(a, name, cold, opt, vm)
        if opt.get("stop") != "B":
            fused_bc.phaseC(a, name, cold, opt, vm)
    if opt.get("probe"):
        i_, j_ = opt["probe"]
        a("s_waitcnt vmcnt(0) lgkmcnt(0)")
        a.stamp(9)
        a("s_waitcnt lgkmcnt(0)")
        a(f"s_or_b32 s76, s81, s{W}")
        a(f"s_cmp_lg_u32 s76, 0")
        a(f"s_cbranch_scc1 {name}_done")
        a(f"s_sub_u32 s76, s{82+2*j_}, s{82+2*i_}")
        a("s_lshl_b32 s76, s76, 2")
        a.label(f"{name}_probe")
        a("s_memrealtime s[78:79]")
        a("s_waitcnt lgkmcnt(0)")
        a("s_sub_u32 s78, s78, s100")
        a("s_cmp_lt_u32 s78, s76")
        a(f"s_cbranch_scc1 {name}_probe")
    else:
        a.stamp_dump(opt.get("kid", 0), W)
    if opt.get("dbgtime"):
        a("s_waitcnt vmcnt(0)")
        a("s_memrealtime s[98:99]")
        a("s_waitcnt lgkmcnt(0)")
        a("s_not_b32 s96, s96")
        a("v_mov_b32 v1, 4")
        a("v_mov_b32 v2, s96")
        a("v_mov_b32 v3, s98")
        a("v_mov_b32 v4, s94")
        a(f"s_cmp_lg_u32 s{W}, 0")
        a(f"s_cbranch_scc1 {name}_done")
        a("s_mov_b64 exec, 1")
        a(f"buffer_atomic_umax v2, v1, {srd(sDBG)}, 0 offen sc1")
        a(f"buffer_atomic_umax v3, v1, {srd(sDBG)}, 0 offen offset:4 sc1")
        a(f"buffer_atomic_umax v4, v1, {srd(sDBG)}, 0 offen offset:8 sc1")
        a("s_mov_b64 exec, -1")
    a.label(f"{name}_done")
    a("s_endpgm")
    for c in cold: a.lines += c.lines
    a.label(f"{name}_end")
    a("s_endpgm")
    return kernel_header(name) + a.text() + kernel_desc(name, 256, 102)

def xsel_fetch(a, vm, vidx, XR, XST, n=1):
    for i in range(n):
        a(f"s_mul_i32 s{sT+2}, s{W}, {n}")
        a(f"s_add_u32 s{sT+2}, s{sT+2}, {i}")
        a(f"v_readlane_b32 s{sT}, v{vidx}, s{sT+2}")
        a("s_nop 3")
        a(f"s_lshl_b32 s{sT+1}, s{sT}, 11")
        a(f"buffer_load_dwordx4 {vr(XR+8*i,4)}, v1, {srd(sX)}, s{sT+1} offen")
        a(f"buffer_load_dwordx4 {vr(XR+8*i+4,4)}, v1, {srd(sX)}, s{sT+1} offen offset:1024")
        a(f"s_lshr_b32 s{sT+1}, s{sT}, 3")
        a(f"s_lshl_b32 s{sT+1}, s{sT+1}, 5")
        a(f"s_and_b32 s{sT}, s{sT}, 7")
        a(f"s_add_u32 s{sT}, s{sT}, s{sT+1}")
        a(f"s_lshl_b32 s{sT}, s{sT}, 2")
        a(f"s_add_u32 s{sT}, s{sT}, {WS_ST}")
        a(f"v_mov_b32 v{XST+2*i+1}, s{sT}")
        a(f"buffer_load_dword v{XST+2*i}, v{XST+2*i+1}, {srd(sWS)}, 0 offen sc1")
        a(f"buffer_load_dword v{XST+2*i+1}, v{XST+2*i+1}, {srd(sWS)}, 0 offen offset:32 sc1")
    vm.issue("xsel", 4*n)

def xsel_normalise(a, T, XR, XST, n=1):
    XF = T + 2
    a(f"v_lshrrev_b32 v{T}, 2, v0")
    a(f"v_lshlrev_b32 v{T}, 9, v{T}")
    a(f"v_and_b32 v{T+1}, 3, v0")
    a(f"v_lshl_add_u32 v{T}, v{T+1}, 7, v{T}")
    a(f"s_lshl_b32 s{sT}, s{W}, {3+n}")
    a(f"s_add_u32 s{sT}, s{sT}, {L_XS}")
    a(f"v_add_u32 v{T}, s{sT}, v{T}")
    for i in range(n):
        for p in range(8):
            x = XR + 8*i + p
            f0, f1 = XF + 2*(p & 1), XF + 2*(p & 1) + 1
            a(f"v_lshlrev_b32 v{f0}, 16, v{x}")
            a(f"v_and_b32 v{f1}, 0xffff0000, v{x}")
            a(f"v_sub_f32 v{f0}, v{f0}, v{XST+2*i}")
            a(f"v_sub_f32 v{f1}, v{f1}, v{XST+2*i}")
            a(f"v_cvt_pk_bf16_f32 v{x}, v{f0}, v{f1}")
            a(f"v_lshlrev_b32 v{f0}, 16, v{x}")
            a(f"v_and_b32 v{f1}, 0xffff0000, v{x}")
            a(f"v_mul_f32 v{f0}, v{f0}, v{XST+2*i+1}")
            a(f"v_mul_f32 v{f1}, v{f1}, v{XST+2*i+1}")
            a(f"v_cvt_pk_bf16_f32 v{x}, v{f0}, v{f1}")
        a(f"ds_write_b128 v{T}, {vr(XR+8*i,4)} offset:{16*i}")
        a(f"ds_write_b128 v{T}, {vr(XR+8*i+4,4)} offset:{16*i+8192}")
```

```python
from asmlib import *
from asmlib import DIAG, TRACE
from layout import *
from fused import *
import fused as FU
from k_attn import M32, M16
import k_attn2 as AT
from k_attn2 import SM
from k_attn3 import Regs3
from k_moe import pi_row, round_bf16
from k_top8 import make_keys, decode_keys

L_S1, L_S2, L_EX, L_LX, L_HI = 32768, 98304, 131072, 129024, 133120
KH, HB, KA, KBK, VA, VBK, MASK, NEED, RET, S1O, HASJ, S2O, WOO, WOM = 48, 49, 50, 51, 52, 53, 54, 55, 56, 58, 59, 60, 61, 62
XSF, MACC, VFR, VD1, VD2, VP, VPA, VT = 220, 236, 243, 244, 245, 246, 247, 248
C_MS, C_IX, C_G, C_WT, C_AY = 206, 210, 212, 238, 240
C_XP, C_VX = 196, 204
WBF = 20

def unit(a, R, t, q, nb, hook=None, noqk=False):
    Sc, Sn = (R.S0, R.S1) if q == 0 else (R.S1, R.S0)
    P, Q, O, L = R.P, R.Q, R.O, R.L
    qn = 1 - q
    kn = t if q == 0 else t + 1
    vp = t - 1 if q == 0 else t
    K = R.KB + 8*(kn % nb); Vp = R.VB + 8*(vp % nb); Vc = R.VB + 8*(t % nb)
    e = lambda i: f"v_exp_f32 v{Sc+i}, v{Sc+i}"
    c = lambda i: f"v_cvt_pk_bf16_f32 v{P+i}, v{Sc+2*i}, v{Sc+2*i+1}"
    h = hook or (lambda pos: None)
    h("Ma")
    if not noqk: a(M32(Sn, K, Q+8*qn, None))
    h("Ma+"); a(e(0), e(1), e(2))
    h("Md"); a(M32(O+16*qn, Vp+4, P+4, O+16*qn)); h("Md+"); a(e(3), e(4), e(5))
    a(SM(L+4*qn, R.ONES, P, R.IDX), c(0), c(1), e(6), e(7))
    h("Mb")
    if not noqk: a(M32(Sn, K+4, Q+8*qn+4, Sn))
    h("Mb+"); a(c(2), c(3), e(8), e(9))
    h("Mc"); a(M32(O+16*q, Vc, P, O+16*q)); h("Mc+")
    a(e(10), e(11), c(4), e(12), c(5), e(13), e(14), e(15), c(6), c(7))

class OH:
    sOA, sOB, ROT, RAW, MASK, NEED, RET, GA, GB, ND = 50, 51, 60, 52, 72, 73, 44, 53, 54, 63
    GIDS = [55, 56, 57, 59]
    VPo, VPa = 236, 237
    SLOT = [132, 164, 68, 100]
def oh_setup(a, T):
    H = OH
    a(f"s_and_b32 s{H.ROT}, s{sJ}, 3")
    a(f"s_lshl_b32 s{sT}, s{sMT}, 2")
    a(f"s_and_b32 s{sT+1}, s{W}, 3")
    a(f"s_add_u32 s{sT}, s{sT}, s{sT+1}")
    a(f"s_lshl_b32 s{H.sOA}, s{sT}, 16")
    a(f"s_lshl_b32 s{sT+1}, s{KH}, 14")
    a(f"s_add_u32 s{H.sOA}, s{H.sOA}, s{sT+1}")
    a(f"s_add_u32 s{H.sOA}, s{H.sOA}, {WS_O}")
    a(f"s_add_u32 s{H.sOB}, s{H.sOA}, 32768")
    a(f"s_lshl_b32 s{sT}, s{sT}, 1")
    a(f"s_add_u32 s{sT}, s{sT}, s{KH}")
    a(f"s_lshl_b32 s{sT}, s{sT}, 7")
    a(f"s_add_u32 s{sT}, s{sT}, {WS_OF}")
    a(f"v_mov_b32 v{H.VPa}, s{sT}")
    a(f"s_mov_b32 s{H.RAW}, 0")
    a(f"s_mov_b32 s{H.NEED}, 0x1111")
def oh_poll(a, vm):
    apoll(a, OH.VPo, OH.VPa)
    vm.issue("opoll")
def oh_ready(o):
    H = OH
    o(f"v_readfirstlane_b32 s{H.RAW}, v{H.VPo}")
    o(f"s_lshl_b32 s{sT+10}, s{H.ROT}, 2")
    o(f"s_mul_i32 s{H.RAW}, s{H.RAW}, 0x10001")
    o(f"s_lshr_b32 s{H.RAW}, s{H.RAW}, s{sT+10}")
    o(f"s_lshr_b32 s{sT+10}, s{H.RAW}, 1")
    o(f"s_and_b32 s{H.MASK}, s{H.RAW}, s{sT+10}")
    o(f"s_lshr_b32 s{sT+10}, s{H.MASK}, 2")
    o(f"s_and_b32 s{H.MASK}, s{H.MASK}, s{sT+10}")
    o(f"s_and_b32 s{H.MASK}, s{H.MASK}, s{H.NEED}")
def oh_take(a, g):
    H = OH
    a(f"s_ff1_i32_b32 s{H.GA}, s{H.MASK}")
    a(f"s_bitset0_b32 s{H.NEED}, s{H.GA}")
    a(f"s_bitset0_b32 s{H.MASK}, s{H.GA}")
    a(f"s_lshr_b32 s{H.GA}, s{H.GA}, 2")
    a(f"s_add_u32 s{H.GA}, s{H.GA}, s{H.ROT}")
    a(f"s_and_b32 s{H.GIDS[g]}, s{H.GA}, 3")
    a(f"s_lshl_b32 s{H.GA}, s{H.GIDS[g]}, 12")
    a(f"s_add_u32 s{H.GB}, s{H.GA}, s{H.sOB}")
    a(f"s_add_u32 s{H.GA}, s{H.GA}, s{H.sOA}")
    for i in range(4):
        for t16 in range(2):
            a(f"buffer_load_dwordx4 {vr(H.SLOT[g]+8*i+4*t16,4)}, v1, {srd(sWS)}, s{(H.GA, H.GB)[t16]} offen offset:{i*1024}")

def phaseB(a, name, cold, opt, vm):
    R = Regs3
    VL, Q, P, O, L, T = R.VL, R.Q, R.P, R.O, R.L, R.T
    NB, NT = 4, 32
    BAR = opt.get("bar", 4)
    moe = opt.get("moe", True)
    nt = lambda k: "nt" if k in opt.get("nt", "ms") else ""
    a(f"s_lshr_b32 s{KH}, s{W}, 2")
    a(f"s_and_b32 s{sT}, s{W}, 1")
    a(f"s_lshl_b32 s{sT}, s{sT}, 1")
    a(f"s_add_u32 s{sT}, s{sT}, s{KH}")
    a(f"s_lshl_b32 s{sT}, s{sT}, 13")
    a(f"v_add_u32 v2, s{sT}, v{VL}")
    for t in range(2):
        for hf in range(2):
            a(f"ds_read_b128 {vr(R.KB+8*t+4*hf,4)}, v2 offset:{t*4096+hf*1024}")
    for t in range(2):
        for hf in range(2):
            a(f"ds_read_b128 {vr(R.VB+8*t+4*hf,4)}, v2 offset:{t*4096+2048+hf*1024}")
    head_of(a, HB, sT)
    a(f"s_lshl_b32 s{sT+1}, s{HB}, 8")
    a(f"s_lshl_b32 s{HB}, s{HB}, 18")
    a(f"s_add_u32 s{HB}, s{HB}, {WS_KV}")
    a(f"s_mov_b32 s{NEED}, 0xfffe")
    a(f"s_lshl_b32 s{sT}, s{KH}, 13")
    a(f"s_add_u32 s{S1O}, s{HB}, s{sT}")
    KVB = 63
    a(f"s_mov_b32 s{KVB}, s{S1O}")
    a(f"s_lshl_b32 s{sT}, s{KH}, 7")
    a(f"s_add_u32 s{sT}, s{sT}, s{sT+1}")
    a(f"s_add_u32 s{sT}, s{sT}, {WS_KVF}")
    a(f"v_mov_b32 v{VPA}, s{sT}")
    a(f"s_mov_b32 s{MASK}, 0")
    if moe:
        a(f"s_cmp_lt_u32 s{sLI}, 28")
        a(f"s_cselect_b32 s{HASJ}, 1, 0")
        a(f"v_bfe_u32 v{VD2}, v0, 5, 1")
        a(f"v_lshlrev_b32 v{VD2}, 3, v{VD2}")
        a(f"v_bfe_u32 v{VT}, v0, 3, 2")
        a(f"v_add_u32 v{VD2}, v{VD2}, v{VT}")
        a(f"v_bfe_u32 v{VT}, v0, 4, 2")
        a(f"v_lshlrev_b32 v{VT}, 1, v{VT}")
        a(f"v_and_b32 v{VT+1}, 7, v0")
        a(f"v_xor_b32 v{VT}, v{VT}, v{VT+1}")
        a(f"v_lshlrev_b32 v{VT}, 4, v{VT}")
        a(f"v_mul_u32_u24 v{VD1}, 7168, v{VD2}")
        a(f"v_add_u32 v{VD1}, v{VD1}, v{VT}")
        a(f"v_lshl_add_u32 v{VD2}, v{VD2}, 11, v{VT}")
        a(f"v_lshrrev_b32 v{VFR}, 2, v0")
        a(f"v_lshlrev_b32 v{VFR}, 7, v{VFR}")
        a(f"v_bfe_u32 v{VT}, v0, 3, 2")
        a(f"s_and_b32 s{sT}, s{W}, 3")
        a(f"v_xor_b32 v{VT}, s{sT}, v{VT}")
        a(f"v_lshl_add_u32 v{VFR}, v{VT}, 5, v{VFR}")
        a(f"v_and_b32 v{VT}, 3, v0")
        a(f"v_lshl_add_u32 v{VFR}, v{VT}, 3, v{VFR}")
        cg_of(a, sT)
        a(f"s_and_b32 s{sT+1}, s{sT}, 3")
        a(f"s_lshl_b32 s{sT+1}, s{sT+1}, 3")
        a(f"s_add_u32 s{sT+1}, s{sT+1}, s{W}")
        a(f"s_mul_i32 s{S1O}, s{sT+1}, {32*7168}")
        a(f"s_lshr_b32 s{sT}, s{sT}, 2")
        a(f"s_lshl_b32 s{sT}, s{sT}, 7")
        a(f"s_add_u32 s{S1O}, s{S1O}, s{sT}")
        a(f"s_lshr_b32 s{S2O}, s2, 4")
        a(f"s_mul_i32 s{S2O}, s{S2O}, 224")
        a(f"s_lshl_b32 s{sT}, s{KH}, 5")
        a(f"s_add_u32 s{S2O}, s{S2O}, s{sT}")
        a(f"s_and_b32 s{sT}, s{W}, 1")
        a(f"s_lshl_b32 s{sT}, s{sT}, 4")
        a(f"s_add_u32 s{S2O}, s{S2O}, s{sT}")
        a(f"s_and_b32 s{sT}, s{W}, 2")
        a(f"s_lshl_b32 s{sT}, s{sT}, 1")
        a(f"s_add_u32 s{S2O}, s{S2O}, s{sT}")
        a(f"s_lshl_b32 s{S2O}, s{S2O}, 11")
        a(f"s_and_b32 s{sT}, s2, 15")
        a(f"s_lshl_b32 s{sT}, s{sT}, 7")
        a(f"s_add_u32 s{S2O}, s{S2O}, s{sT}")
    a(f"v_mov_b32 v{C_AY}, 0x7fff0000")
    a(f"v_mov_b32 v{C_AY+1}, 0x7fff0000")
    t8a = opt.get("t8a", True)
    if moe and t8a:
        a(f"v_and_b32 v{VT}, 7, v0")
        a(f"v_lshlrev_b32 v{VT}, 2, v{VT}")
        a(f"v_add_u32 v{VT}, {L_IDX}, v{VT}")
        a(f"ds_read_b32 v{VT+1}, v{VT}")
    AT.attn_consts(a, R, sparse=opt.get('sparse', 1))
    for r in range(4): a(f"v_mov_b32 v{R.VB+8*3+4+r}, 0")
    a("s_waitcnt lgkmcnt(0)")
    if moe and t8a: xsel_fetch(a, vm, VT+1, 228, 236)
    a(M32(R.S0, R.KB, Q, None))
    a(M32(R.S0, R.KB+4, Q+4, R.S0))
    a("s_nop 10")

    def kv_mask(o):
        o(f"v_readfirstlane_b32 s{MASK}, v{VP}")
        o("s_nop 0")
        o(f"s_mul_i32 s{MASK}, s{MASK}, 0x10001")
        o(f"s_lshr_b32 s{MASK}, s{MASK}, s{sMT}")
    c = Asm()
    c.label(f"{name}_kvspin")
    c(f"s_mov_b32 s{sT+11}, 0")
    c.label(f"{name}_kvagain")
    apoll(c, VP, VPA)
    c(f"s_add_u32 s{sT+11}, s{sT+11}, 1")
    c(f"s_cmp_gt_u32 s{sT+11}, {SPIN_LIMIT}")
    c(f"s_cselect_b32 s{MASK}, s{NEED}, s{MASK}")
    c(f"s_cbranch_scc1 {name}_kvout")
    c("s_waitcnt vmcnt(0)")
    kv_mask(c)
    c(f"s_and_b32 s{MASK}, s{MASK}, s{NEED}")
    if opt.get("fixed"):
        c(f"s_ff1_i32_b32 s{sT+10}, s{NEED}")
        c(f"s_bitcmp1_b32 s{MASK}, s{sT+10}")
    c(f"s_cbranch_scc0 {name}_kvagain")
    c.label(f"{name}_kvout")
    c(f"s_setpc_b64 s[{RET}:{RET+1}]")
    cold.append(c)
    def next_block():
        lab = a.new_label(f"{name}_nb")
        a(f"s_and_b32 s{MASK}, s{MASK}, s{NEED}")
        if opt.get("fixed"):
            a(f"s_ff1_i32_b32 s{sT+10}, s{NEED}")
            a(f"s_bitcmp1_b32 s{MASK}, s{sT+10}")
        a(f"s_cbranch_scc1 {lab}")
        a(f"s_call_b64 s[{RET}:{RET+1}], {name}_kvspin")
        a.label(lab)
        a(f"s_ff1_i32_b32 s{KBK}, s{MASK}")
        a(f"s_bitset0_b32 s{NEED}, s{KBK}")
        a(f"s_add_u32 s{KBK}, s{KBK}, s{sMT}")
        a(f"s_and_b32 s{KBK}, s{KBK}, 15")
        a(f"s_lshl_b32 s{KBK}, s{KBK}, 14")
        a(f"s_add_u32 s{KBK}, s{KBK}, s{KVB}")
    def adv(sr_, t):
        if t & 1: a(f"s_add_u32 s{sr_}, s{sr_}, 4096")
        else: a(f"s_mov_b32 s{sr_}, s{KBK}")
    def ldK(t, half):
        if half == 0:
            if not (t & 1): next_block()
            adv(KA, t)
        a(f"buffer_load_dwordx4 {vr(R.KB+8*(t%NB)+4*half,4)}, v{VL}, {srd(sWS)}, s{KA} offen offset:{half*1024}")
        vm.issue(f"K{t}_{half}")
    def ldV(t, half):
        if half == 0: adv(VA, t)
        a(f"buffer_load_dwordx4 {vr(R.VB+8*(t%NB)+4*half,4)}, v{VL}, {srd(sWS)}, s{VA} offen offset:{2048+half*1024}")
        vm.issue(f"V{t}_{half}")

    def guarded(fn):
        lab = a.new_label(f"{name}_g")
        a(f"s_cmp_eq_u32 s{HASJ}, 0")
        a(f"s_cbranch_scc1 {lab}")
        fn()
        a.label(lab)
    def s1_dma(i):
        def f():
            m, pc = i >> 2, i & 3
            a(f"s_lshl_b32 s{sT}, s{W}, 12")
            a(f"s_add_u32 m0, s{sT}, {L_S1 + m*32768 + pc*1024}")
            a(f"s_add_u32 s{sT}, s{S1O}, {(16*(pc&1) + 4*(pc>>1))*7168}")
            a(f"buffer_load_dwordx4 v{VD1}, {srd(sWG if m == 0 else sWU)}, s{sT} offen {nt('m')} lds")
            vm.issue("s1w", 1, cond=True)
        guarded(f)
    def s2_dma(jj):
        lab = a.new_label(f"{name}_s2d")
        if jj == 3:
            a(f"s_cmp_lg_u32 s{KH}, 0")
            a(f"s_cbranch_scc1 {lab}")
        a(f"s_lshl_b32 s{sT}, s{W}, 10")
        a(f"s_add_u32 m0, s{sT}, {L_S2 + jj*8192}")
        a(f"s_add_u32 s{sT}, s{S2O}, {jj*64*2048}")
        a(f"buffer_load_dwordx4 v{VD2}, {srd(sWD)}, s{sT} offen {nt('m')} lds")
        vm.issue("s2w", 1, cond=(jj == 3))
        a.label(lab)
    def touch_wd():
        a(f"s_lshl_b32 s{sT}, s2, 3")
        a(f"s_add_u32 s{sT}, s{sT}, s{W}")
        a(f"s_mul_i32 s{sT+1}, s{sT}, 3584")
        a(f"s_lshl_b32 s{sT}, s{sT}, 10")
        a(f"v_lshlrev_b32 v{VT}, 7, v0")
        a("s_bfm_b64 exec, 28, 0")
        a(f"buffer_load_dword v{VT+4}, v{VT}, {srd(sWD)}, s{sT+1} offen")
        a("s_mov_b64 exec, 0xff")
        a(f"buffer_load_dword v{VT+5}, v{VT}, {srd(sWO)}, s{sT} offen")
        a("s_mov_b64 exec, -1")
        vm.issue("tch", 2)
    def afrag_addr(base_s):
        a(f"v_and_b32 v{VT}, 7, v0")
        a(f"v_lshlrev_b32 v{VT}, 4, v{VT}")
        a(f"v_lshrrev_b32 v{VT+1}, 4, v0")
        a(f"v_lshl_add_u32 v{VT}, v{VT+1}, 7, v{VT}")
        a(f"v_add_u32 v{VT}, s{base_s}, v{VT}")
    def chain(n0, n1, first):
        for ks in range(n0, n1):
            a(f"ds_read_b128 {vr(XSF+4*(ks&3),4)}, v{VT} offset:{ks*512}")
            for t_ in range(2):
                a(f"ds_read_b64_tr_b16 {vr(WBF+4*(ks&3)+2*t_,2)}, v{VT+2} offset:{ks*4096+t_*2048}")
        a("s_waitcnt lgkmcnt(0)")
    def mf(ks, first): a(f"v_mfma_f32_16x16x32_bf16 {vr(MACC,4)}, {vr(XSF+4*(ks&3),4)}, {vr(WBF+4*(ks&3),4)}, {'0' if first else vr(MACC,4)}")
    def out_addr(row_bytes):
        a(f"v_mul_u32_u24 v{VT+1}, {4*row_bytes}, v{VT+1}")
        a(f"v_and_b32 v{VT}, 15, v0")
        a(f"v_lshl_add_u32 v{VT}, v{VT}, 2, v{VT+1}")
    def atomics(row_bytes, tag, cond):
        a("s_bfm_b64 exec, 32, 0")
        for r in range(4):
            a(f"s_add_u32 s{sT+1}, s{sT}, {r*row_bytes}")
            a(f"buffer_atomic_add_f32 v{MACC+r}, v{VT}, {srd(sWS)}, s{sT+1} offen")
        a("s_mov_b64 exec, -1")
        vm.issue(tag, 4, cond=cond)
    def s1_compute():
        def f():
            cg_of(a, sT+2)
            a(f"s_and_b32 s{sT}, s{sT+2}, 3")
            a(f"s_lshl_b32 s{sT}, s{sT}, 12")
            a(f"s_add_u32 s{sT}, s{sT}, {L_XS}")
            afrag_addr(sT)
            a(f"s_lshl_b32 s{sT}, s{KH}, 15")
            a(f"s_add_u32 s{sT}, s{sT}, {L_S1}")
            a(f"v_add_u32 v{VT+2}, s{sT}, v{VFR}")
            chain(0, 4, True)
            for ks in range(4): mf(ks, ks == 0)
            chain(4, 8, False)
            for ks in range(4, 8): mf(ks, False)
            out_addr(14336)
            a(f"s_lshr_b32 s{sT}, s{sT+2}, 2")
            a(f"s_lshl_b32 s{sT}, s{sT}, 8")
            a(f"s_and_b32 s{sT+1}, s{W}, 3")
            a(f"s_lshl_b32 s{sT+1}, s{sT+1}, 6")
            a(f"s_add_u32 s{sT}, s{sT}, s{sT+1}")
            a(f"s_mul_i32 s{sT+1}, s{KH}, 114688")
            a(f"s_add_u32 s{sT}, s{sT}, s{sT+1}")
            a(f"s_add_u32 s{sT}, s{sT}, {WS_GU}")
            atomics(14336, "gat", True)
        guarded(f)
    def s1_flag():
        lab = a.new_label(f"{name}_s1g")
        a(f"s_cmp_lg_u32 s{W}, 0")
        a(f"s_cbranch_scc1 {lab}")
        def f():
            hf_addr(a, sT)
            signal(a, sT, 1, VT, VT+1)
            vm.issue("hfl", 1, cond=True)
        guarded(f)
        a.label(lab)
    def s2_poll():
        a(f"s_lshr_b32 s{sT}, s2, 4")
        a(f"s_mul_i32 s{sT}, s{sT}, 7")
        a(f"s_lshr_b32 s{sT}, s{sT}, 1")
        a(f"s_lshl_b32 s{sT}, s{sT}, 7")
        a(f"s_add_u32 s{sT}, s{sT}, {WS_HF}")
        a(f"v_lshlrev_b32 v{VT+4}, 7, v0")
        a(f"v_add_u32 v{VT+4}, s{sT}, v{VT+4}")
        apoll(a, VT+5, VT+4, 4)
        vm.issue("hpoll")
    def s2_load():
        vm.wait("hpoll")
        acheck(a, f"{name}_hp", VT+5, VT+4, 4, 4, cold)
        a(f"s_lshr_b32 s{sT}, s2, 4")
        a(f"s_mul_i32 s{sT}, s{sT}, 896")
        a(f"s_mul_i32 s{sT+1}, s{W}, 14336")
        a(f"s_add_u32 s{sT}, s{sT}, s{sT+1}")
        a(f"s_add_u32 s{sT}, s{sT}, {WS_GU}")
        a(f"s_add_u32 s{sT+1}, s{sT}, 114688")
        a("s_bfm_b64 exec, 56, 0")
        a(f"buffer_load_dwordx4 {vr(XSF,4)}, v{VL}, {srd(sWS)}, s{sT} offen sc1")
        a(f"buffer_load_dwordx4 {vr(XSF+4,4)}, v{VL}, {srd(sWS)}, s{sT+1} offen sc1")
        a("s_mov_b64 exec, -1")
        vm.issue("hld", 2)
    def s2_h():
        vm.wait("hld")
        Gs, Us, Tm = XSF, XSF+4, XSF+8
        for e in range(0, 4, 2):
            a(f"v_cvt_pk_bf16_f32 v{Tm}, v{Gs+e}, v{Gs+e+1}")
            a(f"v_cvt_pk_bf16_f32 v{Tm+1}, v{Us+e}, v{Us+e+1}")
            a(f"v_lshlrev_b32 v{Gs+e}, 16, v{Tm}")
            a(f"v_and_b32 v{Gs+e+1}, 0xffff0000, v{Tm}")
            a(f"v_lshlrev_b32 v{Us+e}, 16, v{Tm+1}")
            a(f"v_and_b32 v{Us+e+1}, 0xffff0000, v{Tm+1}")
        for e in range(4): a(f"v_mul_f32 v{Tm+e}, 0xbfb8aa3b, v{Gs+e}")
        for e in range(4): a(f"v_exp_f32 v{Tm+e}, v{Tm+e}")
        for e in range(4): a(f"v_add_f32 v{Tm+e}, 1.0, v{Tm+e}")
        for e in range(4): a(f"v_rcp_f32 v{Tm+e}, v{Tm+e}")
        for e in range(4): a(f"v_mul_f32 v{Gs+e}, v{Gs+e}, v{Tm+e}")
        for e in range(0, 4, 2):
            a(f"v_cvt_pk_bf16_f32 v{Tm}, v{Gs+e}, v{Gs+e+1}")
            a(f"v_lshlrev_b32 v{Gs+e}, 16, v{Tm}")
            a(f"v_and_b32 v{Gs+e+1}, 0xffff0000, v{Tm}")
        for e in range(4): a(f"v_mul_f32 v{Gs+e}, v{Gs+e}, v{Us+e}")
        a(f"v_cvt_pk_bf16_f32 v{Tm}, v{Gs}, v{Gs+1}")
        a(f"v_cvt_pk_bf16_f32 v{Tm+1}, v{Gs+2}, v{Gs+3}")
        a(f"v_lshrrev_b32 v{VT}, 1, v0")
        a(f"v_lshlrev_b32 v{VT}, 7, v{VT}")
        a(f"v_and_b32 v{VT+1}, 1, v0")
        a(f"v_lshl_add_u32 v{VT}, v{VT+1}, 3, v{VT}")
        a(f"s_lshl_b32 s{sT}, s{W}, 4")
        a(f"s_add_u32 s{sT}, s{sT}, {L_HI}")
        a(f"v_add_u32 v{VT}, s{sT}, v{VT}")
        a("s_bfm_b64 exec, 56, 0")
        a(f"ds_write_b64 v{VT}, {vr(Tm,2)}")
        a("s_mov_b64 exec, -1")
        if opt.get("dbg"):
            a(f"s_lshr_b32 s{sT}, s2, 4")
            a(f"s_mul_i32 s{sT}, s{sT}, 448")
            a(f"s_mul_i32 s{sT+1}, s{W}, 7168")
            a(f"s_add_u32 s{sT}, s{sT}, s{sT+1}")
            a(f"s_add_u32 s{sT}, s{sT}, {WS_H}")
            a(f"v_lshlrev_b32 v{VT}, 3, v0")
            a("s_bfm_b64 exec, 56, 0")
            a(f"buffer_store_dwordx2 {vr(Tm,2)}, v{VT}, {srd(sWS)}, s{sT} offen")
            a("s_mov_b64 exec, -1")
            vm.issue("dbg")
        a("s_waitcnt lgkmcnt(0)")
    def s2_compute():
        a(f"s_lshl_b32 s{sT}, s{KH}, 11")
        a(f"s_add_u32 s{sT}, s{sT}, {L_HI}")
        afrag_addr(sT)
        a(f"s_lshl_b32 s{sT}, s{KH}, 14")
        a(f"s_add_u32 s{sT}, s{sT}, {L_S2}")
        a(f"v_add_u32 v{VT+2}, s{sT}, v{VFR}")
        chain(0, 4, True)
        a(f"s_cmp_lg_u32 s{KH}, 0")
        lab = a.new_label(f"{name}_s2k")
        for ks in range(4):
            if ks == 3: a(f"s_cbranch_scc1 {lab}")
            mf(ks, ks == 0)
        a.label(lab)
        out_addr(4096)
        a(f"s_and_b32 s{sT}, s2, 15")
        a(f"s_lshl_b32 s{sT}, s{sT}, 8")
        a(f"s_and_b32 s{sT+1}, s{W}, 3")
        a(f"s_lshl_b32 s{sT+1}, s{sT+1}, 6")
        a(f"s_add_u32 s{sT}, s{sT}, s{sT+1}")
        a(f"s_add_u32 s{sT}, s{sT}, {WS_Y}")
        atomics(4096, "yat", False)
    def y_flag():
        lab = a.new_label(f"{name}_yf")
        a(f"s_cmp_lg_u32 s{W}, 0")
        a(f"s_cbranch_scc1 {lab}")
        yf_addr(a, sT, sT+1)
        signal(a, sT, 1, VT, VT+1)
        vm.issue("yfl", 1, cond=True)
        a.label(lab)
    def x_load():
        a(f"v_and_b32 v{VT}, 15, v0")
        a(f"s_lshl_b32 s{sT}, s{sMT}, 2")
        a(f"s_and_b32 s{sT+1}, s{W}, 3")
        a(f"s_add_u32 s{sT}, s{sT}, s{sT+1}")
        a(f"s_lshl_b32 s{sT}, s{sT}, 5")
        a(f"v_add_u32 v{VT}, s{sT}, v{VT}")
        a(f"v_lshlrev_b32 v{C_VX}, 11, v{VT}")
        a(f"v_bfe_u32 v{VT}, v0, 4, 1")
        a(f"v_lshl_add_u32 v{C_VX}, v{VT}, 5, v{C_VX}")
        a(f"v_lshrrev_b32 v{VT}, 5, v0")
        a(f"v_lshl_add_u32 v{C_VX}, v{VT}, 4, v{C_VX}")
        a(f"s_lshl_b32 s{sT}, s{sJ}, 7")
        a(f"s_lshl_b32 s{sT+1}, s{KH}, 6")
        a(f"s_add_u32 s{sT}, s{sT}, s{sT+1}")
        a(f"v_add_u32 v{C_VX}, s{sT}, v{C_VX}")
        a(f"s_mov_b32 s{sT}, 32768")
        a(f"buffer_load_dwordx4 {vr(C_XP,4)}, v{C_VX}, {srd(sX)}, 0 offen")
        a(f"buffer_load_dwordx4 {vr(C_XP+4,4)}, v{C_VX}, {srd(sX)}, s{sT} offen")
        vm.issue("xc", 2)
    RT = 58
    def route_detect():
        for i in range(8): a(f"v_readlane_b32 s{sT+i}, v{C_IX}, {i}")
        a(f"s_lshl_b32 s{sT+8}, s{sMT}, 2")
        a(f"s_and_b32 s{sT+9}, s{W}, 3")
        a(f"s_add_u32 s{sT+8}, s{sT+8}, s{sT+9}")
        a(f"s_mov_b32 s{RT}, 0")
        for i in range(8):
            a(f"s_lshr_b32 s{sT+9}, s{sT+i}, 5")
            a(f"s_cmp_eq_u32 s{sT+9}, s{sT+8}")
            a(f"s_cselect_b32 s{RT}, 1, s{RT}")
        a(f"s_cmp_lg_u32 s{RT}, 0")
        a(f"s_cbranch_scc1 {name}_rdet")
        a.label(f"{name}_rdet_done")
        vm.issue("ypoll", 1, cond=True)
        c = Asm()
        c.label(f"{name}_rdet")
        for t16 in range(2):
            c(f"v_lshrrev_b32 v{VT}, 11, v{C_VX}")
            c(f"v_add_u32 v{VT}, {16*t16}, v{VT}")
            c(f"v_mov_b32 v{C_AY+t16}, 0x7fff0000")
            c(f"v_mov_b32 v{C_WT+t16}, 0")
            c(f"v_and_b32 v{VT+1}, 0x7ff, v{C_VX}")
            c(f"v_lshlrev_b32 v{VT+1}, 1, v{VT+1}")
            c(f"v_add_u32 v{VT+1}, {WS_Y}, v{VT+1}")
            for i in range(8):
                c(f"v_readlane_b32 s{sT+8}, v{C_IX}, {8+i}")
                c(f"v_cmp_eq_u32 vcc, s{sT+i}, v{VT}")
                c(f"v_add_u32 v{VT+4}, {i*4096}, v{VT+1}")
                c(f"v_mov_b32 v{VT+5}, s{sT+8}")
                c(f"v_cndmask_b32 v{C_AY+t16}, v{C_AY+t16}, v{VT+4}, vcc")
                c(f"v_cndmask_b32 v{C_WT+t16}, v{C_WT+t16}, v{VT+5}, vcc")
        c(f"s_lshl_b32 s{sT+8}, s{sJ}, 7")
        c(f"s_add_u32 s{sT+8}, s{sT+8}, {WS_YF}")
        c(f"v_mov_b32 v{VT+4}, s{sT+8}")
        apoll(c, VT+5, VT+4)
        c(f"s_branch {name}_rdet_done")
        cold.append(c)
    def route_fetch():
        a(f"s_cmp_lg_u32 s{RT}, 0")
        a(f"s_cbranch_scc1 {name}_rfet")
        a.label(f"{name}_rfet_done")
        vm.issue("yld", 4, cond=True)
        c = Asm()
        c.label(f"{name}_rfet")
        c("s_waitcnt vmcnt(0)")
        acheck(c, f"{name}_yp", VT+5, VT+4, 16, 1, cold)
        for t16 in range(2):
            for hf in range(2):
                c(f"buffer_load_dwordx4 {vr(C_G+8*t16+4*hf,4)}, v{C_AY+t16}, {srd(sWS)}, 0 offen offset:{16*hf} sc1")
        c(f"s_branch {name}_rfet_done")
        cold.append(c)
    def wo_setup():
        a(f"v_lshrrev_b32 v{VD1}, 3, v0")
        a(f"v_lshlrev_b32 v{VD1}, 11, v{VD1}")
        a(f"v_bfe_u32 v{VT}, v0, 4, 1")
        a(f"s_bfe_u32 s{sT}, s{W}, 0x10001")
        a(f"s_lshl_b32 s{sT}, s{sT}, 1")
        a(f"v_or_b32 v{VT}, s{sT}, v{VT}")
        a(f"v_lshlrev_b32 v{VT}, 1, v{VT}")
        a(f"v_and_b32 v{VT+1}, 7, v0")
        a(f"v_xor_b32 v{VT}, v{VT}, v{VT+1}")
        a(f"v_lshl_add_u32 v{VD1}, v{VT}, 4, v{VD1}")
        a(f"s_lshl_b32 s{WOO}, s{W}, 14")
        a(f"s_lshl_b32 s{sT}, s{sJ}, 7")
        a(f"s_add_u32 s{WOO}, s{WOO}, s{sT}")
        a(f"s_lshl_b32 s{WOM}, s{W}, 10")
    def wo_dma(i, part=None):
        lab = a.new_label(f"{name}_wo")
        if part:
            a(f"s_cmp_ge_u32 s{W}, 6")
            a(f"s_cbranch_scc{1 if part == 'early' else 0} {lab}")
        a(f"s_add_u32 m0, s{WOM}, {i*8192}")
        a(f"s_add_u32 s{sT}, s{WOO}, {i*64*2048}")
        a(f"buffer_load_dwordx4 v{VD1}, {srd(sWO)}, s{sT} offen {nt('o')} lds")
        vm.issue("wo", 1, cond=bool(part))
        a.label(lab)
    FU.wo_dma = wo_dma

    sched = {}
    skip = opt.get("skip", [])
    def at(t, q, fn, tag=None):
        if tag in skip: return
        sched.setdefault((t, q), []).append(fn)
    def stag(t0, t1, fn, nm):
        if nm in skip: return
        if not opt.get("stag", True):
            at(*t0, fn); return
        sub = Asm(); sub.uid = a.uid + 1000*(len(cold) + 1)
        box = {}
        def emit(first):
            lab = a.new_label(f"{name}_st")
            a(f"s_cmp_{'lg' if first else 'eq'}_u32 s{KH}, 0")
            a(f"s_cbranch_scc1 {lab}")
            a(f"s_call_b64 s[{sT+6}:{sT+7}], {name}_{nm}")
            a.label(lab)
            if first:
                q0 = list(vm.q)
                keep = a.lines; a.lines = sub.lines
                a.label(f"{name}_{nm}")
                fn()
                a(f"s_setpc_b64 s[{sT+6}:{sT+7}]")
                a.lines = keep
                box["ops"] = [x for x in vm.q if x not in q0 or vm.q.count(x) > q0.count(x)]
                new = vm.q[len([x for x in vm.q if True]) - 0:]
                n_new = box_count(q0, vm.q)
                box["new"] = [(tg, True) for tg, _ in vm.q[len(vm.q) - n_new:]]
                vm.q = q0 + box["new"]
                cold.append(sub)
            else:
                vm.q += box["new"]
        at(*t0, lambda: emit(True)); at(*t1, lambda: emit(False))
    def box_count(q0, q1):
        n = 0
        ids0 = [x[0] for x in q0]
        for tg, _ in reversed(q1):
            if tg in ids0: break
            n += 1
        return n
    pre = {}
    assert BAR == 4
    if moe:
        E = opt.get("early", 0)
        if E:
            for i in range(8): at(2 + i // 2, i & 1, lambda i=i: s1_dma(i), 'mdma')
        else:
            for i in range(8): at(3 + i, 1, lambda i=i: s1_dma(i), 'mdma')
        pre[11-E] = ["s1w"]
        stag((12-E, 0), (13-E, 0), s1_compute, "s1c")
        for i in range(4): at(12 - E + i, 1, lambda i=i: s2_dma(i), 'mdma')
        pre[15-E] = ["gat"]
        at(16-E, 0, s1_flag)
        at(19-E, 1, s2_poll, 'hp')
        at(20-E, 1, s2_load, 'hp')
        stag((22-E, 0), (23-E, 0), s2_h, "s2h")
        pre[23-E] = ["s2w"]
        stag((24-E, 0), (25-E, 1), s2_compute, "s2c")
        pre[27-E] = ["yat"]
        at(28-E, 0, y_flag)
        at(29, 0, route_detect)
        at(30, 0, route_fetch)
    at(16, 0, wo_setup)
    for i in range(12): at(16 + i, 1, lambda i=i: wo_dma(i), 'wo')
    for i in range(12, 15): at(16 + i, 0, lambda i=i: wo_dma(i), 'wo')
    at(30, 1, lambda: wo_dma(15, 'early'))
    def kv_refresh_issue():
        apoll(a, VP, VPA)
        vm.issue("kvp")
    def kv_refresh_use():
        vm.wait("kvp")
        kv_mask(a)
    for t_ in opt.get("kvr", [2, 5]):
        at(t_, 0, kv_refresh_issue)
        at(t_ + 2, 0, kv_refresh_use)
    at(27, 1, x_load)
    at(30, 0, lambda: oh_setup(a, VT))
    def misc_read():
        a(f"v_and_b32 v{VT}, 15, v0")
        a(f"s_and_b32 s{sT}, s{W}, 3")
        a(f"s_lshl_b32 s{sT}, s{sT}, 5")
        a(f"v_add_u32 v{VT}, s{sT}, v{VT}")
        a(f"v_lshlrev_b32 v{VT}, 2, v{VT}")
        a(f"v_add_u32 v{VT}, {L_M}, v{VT}")
        for t16 in range(2):
            a(f"ds_read_b32 v{C_MS+2*t16}, v{VT} offset:{t16*64}")
            a(f"ds_read_b32 v{C_MS+2*t16+1}, v{VT} offset:{t16*64+512}")
        a(f"v_lshlrev_b32 v{VT}, 2, v0")
        a(f"v_add_u32 v{VT}, {L_IDX}, v{VT}")
        a(f"ds_read_b32 v{C_IX}, v{VT}")
        a("s_waitcnt lgkmcnt(0)")
    at(26, 1, misc_read)

    def hooks(t, q):
        def h(pos):
            if t < 2: return
            if q == 0:
                if pos == "Mc": vm.wait(f"V{t}_0")
                if pos == "Ma+" and t + 3 < NT: ldV(t+3, 0)
                if pos == "Mb+" and t + 3 < NT: ldV(t+3, 1)
            else:
                if pos == "Ma": vm.wait(f"K{t+1}_1", f"V{t}_1")
                if pos == "Md+" and t + 4 < NT: ldK(t+4, 0)
                if pos == "Mc+" and t + 4 < NT: ldK(t+4, 1)
        return h
    def prio(t): a(f"s_setprio {3 - (t % BAR) * 4 // BAR}")
    XR, XST = 228, 236
    lab = a.new_label(f"{name}_kvf")
    a(f"s_cmp_eq_u32 s{KH}, 0")
    a(f"s_cselect_b32 s{sT}, 0, 1")
    a(f"s_cbranch_scc1 {lab}")
    a("s_setprio 3")
    a.label(lab)
    unit(a, R, 0, 0, NB); unit(a, R, 0, 1, NB)
    unit(a, R, 1, 0, NB); unit(a, R, 1, 1, NB, noqk=True)
    vm.drain()
    a(f"s_cmp_eq_u32 s{KH}, 0")
    a(f"s_cbranch_scc1 {lab}_f")
    kvf_addr(a, sT, sT+1)
    a(f"s_lshl_b32 s{sT+1}, 1, s{sMT}")
    signal(a, sT, f"s{sT+1}", VT, VT+1, "or")
    if moe and not t8a: a(f"s_branch {lab}_g")
    a.label(f"{lab}_f")
    win = moe and not t8a
    KEY, TT, CAND, XR2, XST2 = RKEY, 216, 224, 228, 244 - 0
    if win:
        a(f"s_lshl_b32 s{sT}, s{W}, 9")
        a(f"v_lshlrev_b32 v{CAND+1}, 2, v0")
        a(f"v_add_u32 v{CAND+1}, s{sT}, v{CAND+1}")
        make_keys(a, KEY, TT, CAND+1, [0, 1, 2, 3, 256, 257, 258, 259])
        a(f"v_mov_b32 v{CAND}, 0")
        for r in range(8): top8_round(a, list(range(KEY, KEY+8)), TT, CAND, sT, r)
        a(f"s_lshl_b32 s{sT}, s{W}, 5")
        a(f"s_add_u32 s{sT}, s{sT}, {L_CAND}")
        a(f"v_lshlrev_b32 v{CAND+1}, 2, v0")
        a(f"v_add_u32 v{CAND+1}, s{sT}, v{CAND+1}")
        a("s_mov_b64 exec, 0xff")
        a(f"ds_write_b32 v{CAND+1}, v{CAND}")
        a("s_mov_b64 exec, -1")
        a("s_waitcnt lgkmcnt(0)")
        a.label(f"{lab}_g")
        a.stamp(4)
        a("s_barrier")
        a(f"s_cmp_lg_u32 s{KH}, 0")
        a(f"s_cbranch_scc1 {lab}_h")
        a(f"v_and_b32 v{CAND+1}, 31, v0")
        a(f"v_lshlrev_b32 v{CAND+1}, 2, v{CAND+1}")
        a(f"v_add_u32 v{CAND+1}, {L_CAND}, v{CAND+1}")
        a(f"ds_read_b32 v{KEY}, v{CAND+1}")
        a("v_cmp_gt_u32 vcc, 32, v0")
        a("s_waitcnt lgkmcnt(0)")
        a(f"v_cndmask_b32 v{KEY}, 0, v{KEY}, vcc")
        for r in range(8): top8_round(a, [KEY], TT, CAND, sT, r)
        decode_keys(a, CAND, TT+1, TT+2, TT)
        a(f"v_lshlrev_b32 v{CAND+1}, 2, v0")
        a(f"v_add_u32 v{CAND+2}, {L_IDX}, v{CAND+1}")
        a("s_mov_b64 exec, 0xff")
        a(f"ds_write_b32 v{CAND+2}, v{TT+1}")
        a(f"ds_write_b32 v{CAND+2}, v{TT+2} offset:32")
        if opt.get("dbg"):
            a(f"s_mov_b32 s{sT}, {WS_IDX}")
            a(f"buffer_store_dword v{TT+1}, v{CAND+1}, {srd(sWS)}, s{sT} offen")
            a(f"buffer_store_dword v{TT+2}, v{CAND+1}, {srd(sWS)}, s{sT} offen offset:32")
        a("s_mov_b64 exec, -1")
        xsel_fetch(a, vm, TT+1, 196, 212, 2)
        vm.q = []
        a.label(f"{lab}_h")
    else:
        a.stamp(4)
        if moe:
            xsel_normalise(a, VT, XR, XST)
            a("s_waitcnt lgkmcnt(0)")
    a.stamp(5)
    ldK(2, 0)
    a.stamp(6)
    ldK(2, 1); ldV(2, 0); ldV(2, 1); ldK(3, 0); ldK(3, 1); ldV(3, 0); ldV(3, 1)
    ldK(4, 0); ldK(4, 1); ldV(4, 0); ldV(4, 1); ldK(5, 0); ldK(5, 1)
    if win:
        a(f"s_cmp_lg_u32 s{KH}, 0")
        a(f"s_cbranch_scc1 {lab}_i")
        a("s_waitcnt vmcnt(14)")
        xsel_normalise(a, VT, 196, 212, 2)
        a("s_waitcnt lgkmcnt(0)")
        a.label(f"{lab}_i")
    vm.wait("K2_1")
    a(M32(R.S0, R.KB+16, Q, None))
    a(M32(R.S0, R.KB+20, Q+4, R.S0))
    a("s_nop 10")
    for t in range(2, NT):
        a.trace(t, "b")
        prio(t)
        for q in range(2):
            for fn in sched.get((t, q), []): fn()
            unit(a, R, t, q, NB, hooks(t, q))
        if (t % BAR) == BAR - 1 and t != NT - 1:
            if t in pre: vm.wait(*pre[t])
            a("s_barrier")
    a("s_setprio 0")
    a.stamp(7)
    a(M32(O+16, R.VB+8*((NT-1)%NB)+4, P+4, O+16))
    a(SM(L+4, R.ONES, P, R.IDX))
    a.trace(50, "c")
    a("s_nop 7")
    a("s_nop 7")
    exchange_and_store(a, name, vm, R, opt)
    c = Asm()
    AT.attn_slow_path(c, R, name, KH, sWS, HB, s0=sT)
    cold.append(c)

def exchange_and_store(a, name, vm, R, opt):
    O, L, T, VL, P = R.O, R.L, R.T, R.VL, R.P
    a(f"v_add_f32 v{L}, v{L}, v{L+1}")
    a(f"v_add_f32 v{L+4}, v{L+4}, v{L+5}")
    a(f"s_lshl_b32 s{sT}, s{W}, 12")
    a(f"s_add_u32 s{sT}, s{sT}, {L_EX}")
    a(f"v_add_u32 v{T}, s{sT}, v{VL}")
    a(f"v_xor_b32 v{T+1}, 16384, v{T}")
    a(f"s_lshl_b32 s{sT}, s{W}, 8")
    a(f"s_add_u32 s{sT}, s{sT}, {L_LX}")
    a(f"v_lshrrev_b32 v{T+2}, 2, v{VL}")
    a(f"v_add_u32 v{T+2}, s{sT}, v{T+2}")
    a(f"v_xor_b32 v{T+3}, 1024, v{T+2}")
    a(f"s_cmp_eq_u32 s{KH}, 0")
    a(f"s_cbranch_scc1 {name}_kh0")
    for r in range(4): a(f"ds_write_b128 v{T}, {vr(O+4*r,4)} offset:{r*1024}")
    a(f"ds_write_b32 v{T+2}, v{L}")
    a("s_waitcnt lgkmcnt(0)")
    for r in range(16): a(f"v_mov_b32 v{O+r}, v{O+16+r}")
    a(f"v_mov_b32 v{L}, v{L+4}")
    a(f"s_branch {name}_khj")
    a.label(f"{name}_kh0")
    for r in range(4): a(f"ds_write_b128 v{T}, {vr(O+16+4*r,4)} offset:{r*1024}")
    a(f"ds_write_b32 v{T+2}, v{L+4}")
    a.label(f"{name}_khj")
    a("s_waitcnt lgkmcnt(0)")
    a("s_barrier")
    for r in range(4): a(f"ds_read_b128 {vr(O+16+4*r,4)}, v{T+1} offset:{r*1024}")
    a(f"ds_read_b32 v{L+4}, v{T+3}")
    otile(a, sT, sT+1)
    a(f"s_lshl_b32 s{sT}, s{sT}, 6")
    head_of(a, sT+1, sT+2)
    a(f"s_add_u32 s{sT}, s{sT}, s{sT+1}")
    a(f"s_lshl_b32 s{sT+4}, s{sT}, 10")
    a(f"s_add_u32 s{sT+4}, s{sT+4}, {WS_O}")
    a(f"v_bfe_u32 v{T+4}, v0, 4, 1")
    a(f"v_lshlrev_b32 v{T+4}, 15, v{T+4}")
    a(f"v_lshrrev_b32 v{T+5}, 5, v0")
    a(f"v_lshl_add_u32 v{T+4}, v{T+5}, 9, v{T+4}")
    a(f"v_and_b32 v{T+5}, 15, v0")
    a(f"v_lshl_add_u32 v{T+4}, v{T+5}, 4, v{T+4}")
    a("s_waitcnt lgkmcnt(0)")
    a("s_barrier")
    a.trace(51, "c")
    for r in range(16): a(f"v_add_f32 v{O+r}, v{O+r}, v{O+16+r}")
    a(f"v_add_f32 v{L}, v{L}, v{L+4}")
    a(f"v_mov_b32 v{T+1}, 0")
    for r in range(16): a(f"v_fmac_f32 v{T+1}, 0, v{O+r}")
    a(f"s_mov_b32 s{sT}, 0x2b800000")
    a(f"s_mov_b32 s{sT+1}, 0x5d800000")
    a(f"v_cmp_nle_f32 s[{sT+6}:{sT+7}], s{sT}, v{L}")
    a(f"v_cmp_nge_f32 s[{sT+2}:{sT+3}], s{sT+1}, v{L}")
    a(f"v_cmp_u_f32 vcc, v{T+1}, v{T+1}")
    a(f"s_or_b64 s[{sT+6}:{sT+7}], s[{sT+6}:{sT+7}], s[{sT+2}:{sT+3}]")
    a(f"s_or_b64 s[{sT+6}:{sT+7}], s[{sT+6}:{sT+7}], vcc")
    a(f"s_cmp_lg_u64 s[{sT+6}:{sT+7}], 0")
    a(f"s_cbranch_scc1 {name}_slow")
    a.label(f"{name}_fin")
    a(f"v_rcp_f32 v{T}, v{L}")
    a("s_nop 0")
    for jj in range(2):
        for e_ in range(4):
            r0 = O + 8*jj + 2*e_
            a(f"v_mul_f32 v{r0}, v{r0}, v{T}")
            a(f"v_mul_f32 v{r0+1}, v{r0+1}, v{T}")
            a(f"v_cvt_pk_bf16_f32 v{P+4*jj+e_}, v{r0}, v{r0+1}")
        a(f"buffer_store_dwordx4 {vr(P+4*jj,4)}, v{T+4}, {srd(sWS)}, s{sT+4} offen offset:{jj*256} sc1")
    vm.issue("ost", 2)
    a.trace(52, "c")

def phaseC(a, name, cold, opt, vm):
    H = OH
    ACC, WB = 4, 36
    XP, VX, MS = C_XP, C_VX, C_MS
    VL2, G, WA, WG, T = 1, C_G, 228, 232, 240
    moe = opt.get("moe", True)
    a(f"v_lshrrev_b32 v{T+1}, 4, v0")
    a(f"v_and_b32 v{T+6}, 1, v{T+1}")
    a(f"v_lshlrev_b32 v{T+7}, 4, v{T+6}")
    a(f"v_lshrrev_b32 v{T+8}, 1, v{T+1}")
    a(f"v_lshl_add_u32 v{T+7}, v{T+8}, 2, v{T+7}")
    a(f"v_bfe_u32 v{T+8}, v0, 2, 2")
    a(f"v_add_u32 v{T+7}, v{T+7}, v{T+8}")
    a(f"v_lshlrev_b32 v{T+7}, 7, v{T+7}")
    a(f"v_and_b32 v{T+8}, 3, v0")
    a(f"v_lshl_add_u32 v{T+7}, v{T+8}, 3, v{T+7}")
    a(f"v_lshlrev_b32 v{T+6}, 1, v{T+6}")
    a(f"v_bfe_u32 v{T+8}, v0, 3, 1")
    a(f"v_or_b32 v{T+6}, v{T+6}, v{T+8}")
    a(f"v_lshl_add_u32 v{T+7}, v{T+6}, 5, v{T+7}")
    a(f"s_lshl_b32 s{sT}, s{KH}, 16")
    a(f"v_add_u32 v{WA}, s{sT}, v{T+7}")
    for ct in range(1, 4): a(f"v_xor_b32 v{WA+ct}, {ct*32}, v{WA}")
    of_addr(a, sT, sT+1)
    a.trace(53, "c")
    vm.drain()
    a.trace(54, "c")
    signal(a, sT, f"s{sT+1}", T+6, T+7, "or")
    a.stamp(8)
    FU.wo_dma(15, 'late')
    oh_poll(a, vm)
    c = Asm()
    c.label(f"{name}_ospin")
    c(f"s_mov_b32 s{sT+11}, 0")
    c.label(f"{name}_oagain")
    apoll(c, H.VPo, H.VPa)
    c(f"s_add_u32 s{sT+11}, s{sT+11}, 1")
    c(f"s_cmp_gt_u32 s{sT+11}, {SPIN_LIMIT}")
    c(f"s_cselect_b32 s{H.MASK}, s{H.NEED}, s{H.MASK}")
    c(f"s_cbranch_scc1 {name}_oout")
    c("s_waitcnt vmcnt(0)")
    oh_ready(c)
    c(f"s_cbranch_scc0 {name}_oagain")
    c.label(f"{name}_oout")
    c(f"s_setpc_b64 s[{H.RET}:{H.RET+1}]")
    cold.append(c)
    def ogroup(g):
        lab = a.new_label(f"{name}_og")
        a(f"s_cmp_lg_u32 s{H.MASK}, 0")
        a(f"s_cbranch_scc1 {lab}")
        a(f"s_call_b64 s[{H.RET}:{H.RET+1}], {name}_ospin")
        a.label(lab)
        oh_take(a, g)
        for i in range(4*g, 4*g+4): vm.issue(f"O{i}", 2)
    def xn(o, t16, p, g0, g1):
        o(f"v_lshlrev_b32 v{g0}, 16, v{XP+4*t16+p}")
        o(f"v_and_b32 v{g1}, 0xffff0000, v{XP+4*t16+p}")
        o(f"v_sub_f32 v{g0}, v{g0}, v{MS+2*t16}")
        o(f"v_sub_f32 v{g1}, v{g1}, v{MS+2*t16}")
        o(f"v_cvt_pk_bf16_f32 v{T+6}, v{g0}, v{g1}")
        o(f"v_lshlrev_b32 v{g0}, 16, v{T+6}")
        o(f"v_and_b32 v{g1}, 0xffff0000, v{T+6}")
        o(f"v_mul_f32 v{g0}, v{g0}, v{MS+2*t16+1}")
        o(f"v_mul_f32 v{g1}, v{g1}, v{MS+2*t16+1}")
        o(f"v_cvt_pk_bf16_f32 v{T+6}, v{g0}, v{g1}")
        o(f"v_lshlrev_b32 v{g0}, 16, v{T+6}")
        o(f"v_and_b32 v{g1}, 0xffff0000, v{T+6}")
    if moe:
        a("s_cmp_lg_u32 s58, 0")
        a(f"s_cbranch_scc1 {name}_routed")
    for t16 in range(2):
        for p in range(4): xn(a, t16, p, G + 8*t16 + 2*p, G + 8*t16 + 2*p + 1)
    if moe:
        a.label(f"{name}_routed_done")
        c = Asm()
        c.label(f"{name}_routed")
        for t16 in range(2):
            for p in range(4):
                g0, g1 = G + 8*t16 + 2*p, G + 8*t16 + 2*p + 1
                c(f"v_cvt_pk_bf16_f32 v{T+7}, v{g0}, v{g1}")
                c(f"v_lshlrev_b32 v{g0}, 16, v{T+7}")
                c(f"v_and_b32 v{g1}, 0xffff0000, v{T+7}")
                c(f"v_mul_f32 v{g0}, v{g0}, v{C_WT+t16}")
                c(f"v_mul_f32 v{g1}, v{g1}, v{C_WT+t16}")
                c(f"v_cvt_pk_bf16_f32 v{T+7}, v{g0}, v{g1}")
                xn(c, t16, p, T+8, T+9)
                c(f"v_lshlrev_b32 v{g0}, 16, v{T+7}")
                c(f"v_and_b32 v{g1}, 0xffff0000, v{T+7}")
                c(f"v_add_f32 v{g0}, v{g0}, v{T+8}")
                c(f"v_add_f32 v{g1}, v{g1}, v{T+9}")
                c(f"v_cvt_pk_bf16_f32 v{T+7}, v{g0}, v{g1}")
                c(f"v_lshlrev_b32 v{g0}, 16, v{T+7}")
                c(f"v_and_b32 v{g1}, 0xffff0000, v{T+7}")
        c(f"s_branch {name}_routed_done")
        cold.append(c)
    a.trace(55, "c")
    pipe = opt.get("pipe", False)
    def look(more):
        if not any(tg == "opoll" for tg, _ in vm.q): return
        vm.wait("opoll")
        oh_ready(a)
        if more and pipe: oh_poll(a, vm)
    def silu(b):
        for e in range(8): a(f"v_mul_f32 v{T+6+e}, 0xbfb8aa3b, v{G+b+e}")
        for e in range(8): a(f"v_exp_f32 v{T+6+e}, v{T+6+e}")
        for e in range(8): a(f"v_add_f32 v{T+6+e}, 1.0, v{T+6+e}")
        for e in range(8): a(f"v_rcp_f32 v{T+6+e}, v{T+6+e}")
        for e in range(8): a(f"v_mul_f32 v{G+b+e}, v{G+b+e}, v{T+6+e}")
    look(True)
    if opt.get("bar1", True): a("s_barrier")
    if DIAG and TRACE: a(f"v_writelane_b32 v255, s{H.RAW}, 2")
    ogroup(0)
    a.trace(56, "c")
    silu(0); silu(8)
    look(True)
    ogroup(1)
    a.trace(40, "c")
    if not opt.get("bar1", True): a("s_barrier")
    a.trace(42, "c")
    def wgroup(g):
        a(f"s_lshl_b32 s{sT}, s{H.GIDS[g]}, 14")
        for ct in range(4): a(f"v_add_u32 v{WG+ct}, s{sT}, v{WA+ct}")
    def wreads(i):
        return [f"ds_read_b64_tr_b16 {vr(WB+16*(i&1)+4*ct+2*t_,2)}, v{WG+ct} offset:{(i%4)*4096+t_*1024}" for ct in range(4) for t_ in range(2)]
    wgroup(0)
    a(*wreads(0))
    a.trace(58, "c")
    G2, G3 = opt.get("g23", [1, 4])
    for i in range(16):
        if i == G2: look(True); ogroup(2)
        if i == G3: look(False); ogroup(3)
        if i < 15 and (i + 1) % 4 == 0: wgroup((i + 1) // 4)
        r = wreads(i+1) if i < 15 else []
        vm.wait(f"O{i}")
        a("s_waitcnt lgkmcnt(0)")
        if i == 0: a.trace(62, "c")
        if i == 8: a.trace(63, "c")
        k = 0
        for ct in range(4):
            for t16 in range(2):
                d = vr(ACC+16*t16+4*ct, 4)
                a(f"v_mfma_f32_16x16x32_bf16 {d}, {vr(WB+16*(i&1)+4*ct,4)}, {vr(H.SLOT[i//4]+8*(i%4)+4*t16,4)}, {d if i else 0}")
                if r: a(r[k])
                k += 1
    a.trace(61, "c")
    EX = 131072
    a(f"s_lshl_b32 s{sT}, s{W}, 12")
    a(f"s_add_u32 s{sT}, s{sT}, {EX}")
    a(f"s_xor_b32 s{sT+1}, s{sT}, 16384")
    a(f"v_add_u32 v{T}, s{sT}, v{VL2}")
    a(f"v_add_u32 v{T+1}, s{sT+1}, v{VL2}")
    a(f"s_cmp_eq_u32 s{KH}, 0")
    a("s_nop 3")
    a(f"s_cbranch_scc1 {name}_ck0")
    for t16 in range(2):
        for cc in range(2): a(f"ds_write_b128 v{T}, {vr(ACC+16*t16+4*cc,4)} offset:{(2*t16+cc)*1024}")
    a("s_waitcnt lgkmcnt(0)")
    for t16 in range(2):
        for r in range(8): a(f"v_mov_b32 v{ACC+16*t16+r}, v{ACC+16*t16+8+r}")
    a(f"s_branch {name}_ckj")
    a.label(f"{name}_ck0")
    for t16 in range(2):
        for cc in range(2): a(f"ds_write_b128 v{T}, {vr(ACC+16*t16+8+4*cc,4)} offset:{(2*t16+cc)*1024}")
    a.label(f"{name}_ckj")
    XF = 68
    for t16 in range(2):
        for p in range(4):
            a(f"v_lshlrev_b32 v{XF+8*t16+2*p}, 16, v{XP+4*t16+p}")
            a(f"v_and_b32 v{XF+8*t16+2*p+1}, 0xffff0000, v{XP+4*t16+p}")
    a("s_waitcnt lgkmcnt(0)")
    a("s_barrier")
    for t16 in range(2):
        for cc in range(2): a(f"ds_read_b128 {vr(ACC+16*t16+8+4*cc,4)}, v{T+1} offset:{(2*t16+cc)*1024}")
    a(f"s_mov_b32 s{sT}, 32768")
    for t16 in range(2):
        b = ACC + 16*t16
        a(f"s_waitcnt lgkmcnt({2-2*t16})")
        for r in range(8): a(f"v_add_f32 v{b+r}, v{b+r}, v{b+8+r}")
        for r in range(4): a(f"v_permlane16_swap_b32 v{b+r}, v{b+4+r}")
        for e in range(8): a(f"v_fmac_f32 v{XF+8*t16+e}, v{b+e}, v{G+8*t16+e}")
        for p in range(4): a(f"v_cvt_pk_bf16_f32 v{XP+4*t16+p}, v{XF+8*t16+2*p}, v{XF+8*t16+2*p+1}")
        a(f"buffer_store_dwordx4 {vr(XP+4*t16,4)}, v{VX}, {srd(sOUT)}, {'0' if t16 == 0 else f's{sT}'} offen {'nt' if 's' in opt.get('nt', 'ms') else ''}")
```

```python
import os
from asmlib import *
from layout import *
from k_top8 import DPPS, make_keys, decode_keys
from k_attn import M32, M16
import k_attn2 as AT
from k_moe import pi_row, silu_bf16, round_bf16

QSCALE = 0x3e8293ee
sX, sWQ, sWS, sWR, sDBG, sWG, sWU, sWD, sWO, sOUT = 4, 8, 12, 16, 20, 24, 28, 32, 36, 40
sJ, sMT, sLI, sXC = 44, 45, 46, 47
sIDX, sWT = 48, 56
sT = 64
W = 3
SLOT, WOFF = 40960, 16384
L_Q, L_XS, L_MISC = 122880, 139264, 159744
L_M, L_RS, L_CS, L_CAND, L_IDX, L_H = L_MISC, L_MISC+512, L_MISC+1024, L_MISC+1792, L_MISC+1920, L_MISC+2048
L_ST, L_CNT = L_MISC+3072, L_MISC+3200
LDS_BYTES = 163840
SPIN_LIMIT = 400000
RKEY = 208

def srd(r): return f"s[{r}:{r+3}]"

def wsum(a, r, sdst, op="add_f32"):
    for ctl in DPPS:
        bc = " bound_ctrl:0" if ctl.startswith("row_shr") and op == "add_f32" else ""
        a("s_nop 1")
        a(f"v_{op}_dpp v{r}, v{r}, v{r} {ctl}{bc}")
    a("s_nop 0")
    a(f"v_readlane_b32 s{sdst}, v{r}, 63")
    a("s_nop 1")

def ln_rows2(a, vm, X, WR, XB, T, voff, dbg, n=2):
    R2 = range(n)
    nop = "s_nop 0" if n == 2 else "s_nop 1"
    F_ = lambda i, e: XB + 16*i + e
    T_ = lambda i, k: T + 6*i + k
    def wsum2(k, sd):
        for ctl in DPPS:
            bc = " bound_ctrl:0" if ctl.startswith("row_shr") else ""
            a(nop)
            for i in R2: a(f"v_add_f32_dpp v{T_(i,k)}, v{T_(i,k)}, v{T_(i,k)} {ctl}{bc}")
        a("s_nop 0")
        for i in R2: a(f"v_readlane_b32 s{sT+3*i+sd}, v{T_(i,k)}, 63")
        a(nop)
    for i in R2:
        for p in range(8):
            a(f"v_lshlrev_b32 v{F_(i,2*p)}, 16, v{X+8*i+p}")
            a(f"v_and_b32 v{F_(i,2*p+1)}, 0xffff0000, v{X+8*i+p}")
    for i in R2:
        a(f"v_add_f32 v{T_(i,0)}, v{F_(i,0)}, v{F_(i,1)}")
    for e in range(2, 16):
        for i in R2: a(f"v_add_f32 v{T_(i,0)}, v{T_(i,0)}, v{F_(i,e)}")
    a("s_nop 0")
    wsum2(0, 0)
    for i in R2:
        a(f"v_mov_b32 v{T_(i,0)}, s{sT+3*i}")
    for i in R2:
        a(f"v_mul_f32 v{T_(i,0)}, 0x3a800000, v{T_(i,0)}")
    for i in R2:
        a(f"v_sub_f32 v{T_(i,2)}, v{F_(i,0)}, v{T_(i,0)}")
        a(f"v_mul_f32 v{T_(i,1)}, v{T_(i,2)}, v{T_(i,2)}")
    for e in range(1, 16):
        for i in R2:
            a(f"v_sub_f32 v{T_(i,2)}, v{F_(i,e)}, v{T_(i,0)}")
            a(f"v_fmac_f32 v{T_(i,1)}, v{T_(i,2)}, v{T_(i,2)}")
    wsum2(1, 0)
    seq = lambda i: [
        f"v_mov_b32 v{T_(i,1)}, s{sT+3*i}",
        f"v_mul_f32 v{T_(i,1)}, 0x3a800000, v{T_(i,1)}",
        f"v_cvt_pk_bf16_f32 v{T_(i,2)}, v{T_(i,0)}, v{T_(i,1)}",
        f"v_lshlrev_b32 v{T_(i,0)}, 16, v{T_(i,2)}",
        f"v_and_b32 v{T_(i,1)}, 0xffff0000, v{T_(i,2)}",
        f"v_add_f32 v{T_(i,1)}, 0x3727c5ac, v{T_(i,1)}",
        f"v_cvt_pk_bf16_f32 v{T_(i,1)}, v{T_(i,1)}, v{T_(i,1)}",
        f"v_and_b32 v{T_(i,1)}, 0xffff0000, v{T_(i,1)}",
        f"v_sqrt_f32 v{T_(i,1)}, v{T_(i,1)}",
        f"v_readfirstlane_b32 s{sT+3*i}, v{T_(i,0)}",
        f"v_cvt_pk_bf16_f32 v{T_(i,1)}, v{T_(i,1)}, v{T_(i,1)}",
        f"v_and_b32 v{T_(i,1)}, 0xffff0000, v{T_(i,1)}",
        f"v_rcp_f32 v{T_(i,1)}, v{T_(i,1)}",
        f"v_mov_b32 v{T_(i,3)}, 0"]
    for xs in zip(*[seq(i) for i in R2]): a(*xs)
    if n == 1: a("s_nop 0")
    for p in range(8):
        st = lambda i: [
            f"v_sub_f32 v{F_(i,2*p)}, v{F_(i,2*p)}, v{T_(i,0)}",
            f"v_sub_f32 v{F_(i,2*p+1)}, v{F_(i,2*p+1)}, v{T_(i,0)}",
            f"v_cvt_pk_bf16_f32 v{T_(i,2)}, v{F_(i,2*p)}, v{F_(i,2*p+1)}",
            f"v_lshlrev_b32 v{F_(i,2*p)}, 16, v{T_(i,2)}",
            f"v_and_b32 v{F_(i,2*p+1)}, 0xffff0000, v{T_(i,2)}",
            f"v_mul_f32 v{F_(i,2*p)}, v{F_(i,2*p)}, v{T_(i,1)}",
            f"v_mul_f32 v{F_(i,2*p+1)}, v{F_(i,2*p+1)}, v{T_(i,1)}",
            f"v_cvt_pk_bf16_f32 v{X+8*i+p}, v{F_(i,2*p)}, v{F_(i,2*p+1)}"]
        for xs in zip(*[st(i) for i in R2]): a(*xs)
    for i in R2: a(f"v_readfirstlane_b32 s{sT+3*i+1}, v{T_(i,1)}")
    if dbg:
        for i in R2:
            a(f"buffer_store_dwordx4 {vr(X+8*i,4)}, v{voff}, {srd(sWS)}, 0 offen offset:{2048*i}")
            a(f"buffer_store_dwordx4 {vr(X+8*i+4,4)}, v{voff}, {srd(sWS)}, 0 offen offset:{2048*i+1024}")
    for p in range(8):
        for i in R2: a(f"v_dot2c_f32_bf16 v{T_(i,3)}, v{X+8*i+p}, v{WR+p}")
    a("s_nop 1")
    wsum2(3, 2)
    for i in R2: a(f"v_mov_b32 v{T_(i,0)}, s{sT+3*i+2}")
    for i in R2: a(f"v_cvt_pk_bf16_f32 v{T_(i,0)}, v{T_(i,0)}, v{T_(i,0)}")
    for i in R2: a(f"v_and_b32 v{T_(i,0)}, 0xffff0000, v{T_(i,0)}")
    a(f"v_mov_b32 v{T+1}, s{sT}")
    for i in R2: a(f"v_readfirstlane_b32 s{sT+3*i+2}, v{T_(i,0)}")
    a(f"v_lshlrev_b32 v{T+2}, 5, v0")
    a(f"s_lshl_b32 s{sT+6}, s{W}, {n+1}")
    a(f"s_add_u32 s{sT+6}, s{sT+6}, {L_ST}")
    a(f"v_add_u32 v{T+2}, s{sT+6}, v{T+2}")
    for l in range(1, 3*n): a(f"v_writelane_b32 v{T+1}, s{sT+l}, {l}")
    if n == 2:
        for l in range(3):
            a(f"s_add_u32 s{sT+7}, s{sT+6}, {l*32+4}")
            a(f"v_writelane_b32 v{T+2}, s{sT+7}, {3+l}")
    a(f"s_mov_b64 exec, {(1 << 3*n) - 1}")
    a(f"ds_write_b32 v{T+2}, v{T+1}")
    a("s_mov_b64 exec, -1")

def ln_loads(a, vm, opt):
    n = opt.get("lnrows", 2)
    for q in range(2*n):
        a(f"buffer_load_dwordx4 {vr(96+4*q,4)}, v95, {srd(sX)}, 0 offen offset:{q*1024} {'nt' if 'l' in opt.get('nt', 'msl') else ''}")
    for q in range(2):
        a(f"buffer_load_dwordx4 {vr(112+4*q,4)}, v94, {srd(sWR)}, 0 offen offset:{q*1024}")
    vm.issue("lnld", 2*n + 2)

def rec_of(a, d):
    a(f"s_lshl_b32 s{d}, s{sMT}, 4")
    a(f"s_add_u32 s{d}, s{d}, s{sJ}")

def publish_stats(a, vm, T):
    t = sT
    a(f"v_mov_b32 v{T+1}, 0")
    a("s_mov_b64 exec, 0xffffff")
    a(f"ds_read_b32 v{T+1}, v{T+2}")
    a(f"s_lshl_b32 s{t}, s2, 7")
    a(f"s_add_u32 s{t}, s{t}, {WS_Y}")
    a("s_mov_b64 exec, 0xff")
    a(f"buffer_store_dwordx4 {vr(T+4,4)}, v94, {srd(sWS)}, s{t} offen sc1")
    a(f"s_mul_i32 s{t}, s2, 896")
    a(f"s_add_u32 s{t}, s{t}, {WS_GU}")
    a("s_bfm_b64 exec, 56, 0")
    a(f"buffer_store_dwordx4 {vr(T+4,4)}, v94, {srd(sWS)}, s{t} offen sc1")
    a("s_bfm_b64 exec, 43, 0")
    a("s_waitcnt lgkmcnt(0)")
    a(f"buffer_store_dword v{T+1}, v{T}, {srd(sWS)}, 0 offen sc1")
    a("s_mov_b64 exec, -1")
    vm.issue("st", 3, cond=True)

def publish_zeros(a, vm, T):
    A_, D_, U_ = T, T+1, T+2
    t = sT
    a(f"v_lshlrev_b32 v{U_}, 2, v0")
    rec_of(a, t)
    a(f"s_lshl_b32 s{t}, s{t}, 7")
    a(f"s_add_u32 s{t}, s{t}, {WS_ST}")
    a(f"v_add_u32 v{A_}, s{t}, v{U_}")
    rec_of(a, t)
    a(f"s_lshl_b32 s{t}, s{t}, 5")
    a(f"s_add_u32 s{t}, s{t}, {WS_R - 64}")
    a(f"v_cmp_le_u32 vcc, 16, v0")
    a(f"v_add_u32 v{U_}, s{t}, v{U_}")
    a("s_nop 0")
    a(f"v_cndmask_b32 v{A_}, v{A_}, v{U_}, vcc")
    rec_of(a, t+2)
    a(f"s_lshl_b32 s{t+2}, s{t+2}, 7")
    a(f"s_add_u32 s{t+2}, s{t+2}, {WS_ST + 96}")
    a(f"s_lshl_b32 s{t}, s{sJ}, 9")
    a(f"s_add_u32 s{t}, s{t}, {WS_KVF}")
    a(f"v_and_b32 v{U_}, 3, v0")
    a(f"v_lshlrev_b32 v{U_}, 7, v{U_}")
    a(f"v_add_u32 v{U_}, s{t}, v{U_}")
    a(f"v_mov_b32 v{U_+1}, s{t+2}")
    a(f"s_cmp_eq_u32 s{sMT}, 0")
    a(f"s_cselect_b64 vcc, -1, 0")
    a(f"v_cndmask_b32 v{U_}, v{U_+1}, v{U_}, vcc")
    a(f"v_cmp_le_u32 vcc, 24, v0")
    a(f"s_lshl_b32 s{t}, s{sMT}, 10")
    a(f"s_add_u32 s{t}, s{t}, {WS_OF}")
    a(f"v_cndmask_b32 v{A_}, v{A_}, v{U_}, vcc")
    a(f"v_and_b32 v{U_}, 7, v0")
    a(f"v_lshlrev_b32 v{U_}, 7, v{U_}")
    a(f"v_add_u32 v{U_}, s{t}, v{U_}")
    a(f"s_cmp_eq_u32 s{sJ}, 0")
    a(f"s_cselect_b64 vcc, -1, 0")
    a(f"v_cndmask_b32 v{U_}, v{U_+1}, v{U_}, vcc")
    a(f"v_cmp_le_u32 vcc, 32, v0")
    a(f"s_lshl_b32 s{t}, s2, 7")
    a(f"s_add_u32 s{t+1}, s{t}, {WS_HF}")
    a(f"v_cndmask_b32 v{A_}, v{A_}, v{U_}, vcc")
    a(f"s_cmp_lt_u32 s2, 56")
    a(f"s_cselect_b32 s{t+1}, s{t+1}, s{t+2}")
    a(f"v_writelane_b32 v{A_}, s{t+1}, 40")
    a(f"s_add_u32 s{t+1}, s{t}, {WS_YF}")
    a(f"s_cmp_lt_u32 s2, 16")
    a(f"s_cselect_b32 s{t+1}, s{t+1}, s{t+2}")
    a(f"v_writelane_b32 v{A_}, s{t+1}, 41")
    csf_addr(a, t, t+1)
    a(f"s_cmp_eq_u32 s{sMT}, 0")
    a(f"s_cselect_b32 s{t}, s{t}, s{t+2}")
    a(f"v_writelane_b32 v{A_}, s{t}, 42")
    for r in range(4): a(f"v_mov_b32 v{T+4+r}, 0")
    a(f"v_lshlrev_b32 v{U_}, 2, v0")
    a(f"v_add_u32 v{U_}, {L_ST}, v{U_}")

def csf_addr(a, d, t):
    a(f"s_lshl_b32 s{d}, s{sJ}, 7")
    a(f"s_add_u32 s{d}, s{d}, {WS_CSF}")
def kvf_addr(a, d, t):
    a(f"s_lshl_b32 s{d}, s{sJ}, 2")
    a(f"s_and_b32 s{t}, s{W}, 3")
    a(f"s_add_u32 s{d}, s{d}, s{t}")
    a(f"s_lshl_b32 s{d}, s{d}, 7")
    a(f"s_add_u32 s{d}, s{d}, {WS_KVF}")
def otile(a, d, t):
    a(f"s_lshl_b32 s{d}, s{sMT}, 2")
    a(f"s_and_b32 s{t}, s{W}, 2")
    a(f"s_add_u32 s{d}, s{d}, s{t}")
    a(f"s_lshr_b32 s{t}, s{W}, 2")
    a(f"s_add_u32 s{d}, s{d}, s{t}")
def head_of(a, d, t):
    a(f"s_lshl_b32 s{d}, s{sJ}, 1")
    a(f"s_and_b32 s{t}, s{W}, 1")
    a(f"s_add_u32 s{d}, s{d}, s{t}")
def of_addr(a, d, t):
    otile(a, d, t)
    a(f"s_lshl_b32 s{d}, s{d}, 1")
    a(f"s_lshr_b32 s{t}, s{sJ}, 3")
    a(f"s_add_u32 s{d}, s{d}, s{t}")
    a(f"s_lshl_b32 s{d}, s{d}, 7")
    a(f"s_add_u32 s{d}, s{d}, {WS_OF}")
    a(f"s_and_b32 s{t}, s{sJ}, 7")
    a(f"s_lshl_b32 s{t}, s{t}, 1")
    a(f"s_and_b32 s{t+1}, s{W}, 1")
    a(f"s_add_u32 s{t}, s{t}, s{t+1}")
    a(f"s_lshl_b32 s{t}, 1, s{t}")
def cg_of(a, d):
    a(f"s_mul_i32 s{d}, s{sXC}, 28")
    a(f"s_add_u32 s{d}, s{d}, s{sLI}")
def hf_addr(a, d):
    cg_of(a, d)
    a(f"s_lshr_b32 s{d}, s{d}, 2")
    a(f"s_lshl_b32 s{d}, s{d}, 7")
    a(f"s_add_u32 s{d}, s{d}, {WS_HF}")
def yf_addr(a, d, t):
    a(f"s_and_b32 s{d}, s2, 15")
    a(f"s_lshl_b32 s{d}, s{d}, 7")
    a(f"s_add_u32 s{d}, s{d}, {WS_YF}")

def signal(a, saddr, val, v0_, v1_, op="add"):
    a(f"v_mov_b32 v{v0_}, s{saddr}")
    a(f"v_mov_b32 v{v1_}, {val}")
    a("s_mov_b64 exec, 1")
    a(f"buffer_atomic_{op} v{v1_}, v{v0_}, {srd(sWS)}, 0 offen sc1")
    a("s_mov_b64 exec, -1")

def apoll(o, vreg, vaddr, lanes=1):
    o(f"v_mov_b32 v{vreg}, 0")
    o(f"s_mov_b64 exec, {(1 << lanes) - 1}")
    o(f"buffer_atomic_or v{vreg}, v{vaddr}, {srd(sWS)}, 0 offen sc0 sc1")
    o("s_mov_b64 exec, -1")

def acheck(a, name, vreg, vaddr, want, lanes, cold):
    lab = a.new_label(name)
    def cmp(o):
        o(f"v_cmp_gt_u32 vcc, {want}, v{vreg}")
        o(f"s_and_b32 vcc_lo, vcc_lo, {(1 << lanes) - 1}")
    cmp(a)
    a(f"s_cbranch_scc1 {lab}_spin")
    a.label(f"{lab}_ok")
    c = Asm()
    c.label(f"{lab}_spin")
    c(f"s_mov_b32 s{sT+11}, 0")
    c.label(f"{lab}_again")
    apoll(c, vreg, vaddr, lanes)
    c(f"s_add_u32 s{sT+11}, s{sT+11}, 1")
    c(f"s_cmp_gt_u32 s{sT+11}, {SPIN_LIMIT}")
    c(f"s_cbranch_scc1 {lab}_ok")
    c("s_waitcnt vmcnt(0)")
    cmp(c)
    c(f"s_cbranch_scc1 {lab}_again")
    c(f"s_branch {lab}_ok")
    cold.append(c)

def poll_check(a, name, vreg, vaddr, s_srd, want, mask, cold):
    lab = a.new_label(name)
    def cmp(o):
        o(f"v_cmp_gt_u32 vcc, {want}, v{vreg}" if want != 1 else f"v_cmp_ne_u32 vcc, 1, v{vreg}")
        if mask != -1:
            o(f"s_and_b32 vcc_lo, vcc_lo, {mask & 0xffffffff:#x}")
            o(f"s_and_b32 vcc_hi, vcc_hi, {(mask >> 32) & 0xffffffff:#x}")
        o("s_cmp_lg_u64 vcc, 0")
    cmp(a)
    a(f"s_cbranch_scc1 {lab}_spin")
    a.label(f"{lab}_ok")
    c = Asm()
    c.label(f"{lab}_spin")
    c(f"s_mov_b32 s{sT+11}, 0")
    c.label(f"{lab}_again")
    c(f"buffer_load_dword v{vreg}, v{vaddr}, {srd(s_srd)}, 0 offen sc1")
    c(f"s_add_u32 s{sT+11}, s{sT+11}, 1")
    c(f"s_cmp_gt_u32 s{sT+11}, {SPIN_LIMIT}")
    c(f"s_cbranch_scc1 {lab}_ok")
    c("s_waitcnt vmcnt(0)")
    cmp(c)
    c(f"s_cbranch_scc1 {lab}_again")
    c(f"s_branch {lab}_ok")
    cold.append(c)

def top8_round(a, keys, T, cand, st, rnd):
    n = len(keys)
    if rnd == 0: a(f"s_mov_b32 s{st}, -1")
    for e in range(n):
        a(f"v_sub_u32 v{T+e}, s{st}, v{keys[e]}")
    e = 1
    while e + 1 < n:
        a(f"v_min3_u32 v{T}, v{T}, v{T+e}, v{T+e+1}")
        e += 2
    if e < n: a(f"v_min_u32 v{T}, v{T}, v{T+e}")
    wsum(a, T, st+1, "min_u32")
    a(f"s_sub_u32 s{st}, s{st}, s{st+1}")
    a(f"v_writelane_b32 v{cand}, s{st}, {rnd}")
    a(f"s_sub_u32 s{st}, s{st}, 1")

def atomise(a, tmp):
    out, grp = [], None
    for l in tmp.lines:
        s_ = l.strip()
        if grp is not None:
            grp.append(s_)
            if s_ == "s_mov_b64 exec, -1": out.append(grp); grp = None
        elif ("exec," in s_ and s_ != "s_mov_b64 exec, -1") or "saveexec" in s_: grp = [s_]
        else: out.append([s_])
    assert grp is None
    return [(lambda g=g: a(*g)) for g in out]

def ws_base(a, opt):
    off = opt.get("wsoff", 0) << 20
    if off:
        a(f"s_add_u32 s{sWS}, s{sWS}, {off:#x}")
        a(f"s_addc_u32 s{sWS+1}, s{sWS+1}, 0")

def prologue(a, name, opt):
    a("s_cmp_ge_u32 s2, 256")
    a(f"s_cbranch_scc1 {name}_done")
    a.stamp_init(); a.stamp(0)
    if opt.get("dbgtime"): a("s_memrealtime s[96:97]")
    for r, off in ((sX, A_X), (sWQ, A_WQKV), (sWS, A_WS), (sWR, A_WR), (sDBG, A_DBG), (sWG, A_WG), (sWU, A_WU),
                   (sWD, A_WD), (sWO, A_WO), (sOUT, A_OUT)):
        a(f"s_load_dwordx2 s[{r}:{r+1}], s[0:1], {off}")
    a("v_lshrrev_b32 v1, 6, v0")
    a("v_and_b32 v0, 63, v0")
    a(f"v_readfirstlane_b32 s{W}, v1")
    a(f"s_and_b32 s{sXC}, s2, 7")
    a(f"s_lshr_b32 s{sLI}, s2, 3")
    a(f"s_and_b32 s{sMT}, s{sXC}, 1")
    a(f"s_lshl_b32 s{sMT}, s{sMT}, 3")
    a(f"s_and_b32 s{sT}, s{sLI}, 7")
    a(f"s_add_u32 s{sMT}, s{sMT}, s{sT}")
    a(f"s_lshr_b32 s{sJ}, s{sXC}, 1")
    a(f"s_lshl_b32 s{sJ}, s{sJ}, 2")
    a(f"s_lshr_b32 s{sT}, s{sLI}, 3")
    a(f"s_add_u32 s{sJ}, s{sJ}, s{sT}")
    a(f"s_lshl_b32 s{sT+3}, s{sMT}, 4")
    a(f"s_add_u32 s{sT+3}, s{sT+3}, s{sJ}")
    n = opt.get("lnrows", 2)
    a(f"s_lshl_b32 s{sT+3}, s{sT+3}, {4-n}")
    a(f"s_add_u32 s{sT+3}, s{sT+3}, s{W}")
    a(f"s_lshl_b32 s{sT}, s{sT+3}, {10+n}")
    a("v_lshlrev_b32 v94, 4, v0")
    a(f"v_add_u32 v95, s{sT}, v94")
    for r, n in ((sX, S*D*2), (sWQ, D*3*D*2), (sWS, WS_USED), (sWR, D*2), (sDBG, 256), (sWG, D*F*2), (sWU, D*F*2),
                 (sWD, D*F*2), (sWO, D*D*2), (sOUT, S*D*2)):
        a(f"s_mov_b32 s{r+2}, {n:#x}")
        a(f"s_mov_b32 s{r+3}, 0x00020000")

def phaseA_loader(a, name, cold, opt):
    vm = VM(a)
    LW, XB_, WB_, SX, SW = 48, 49, 50, 51, 52
    a(f"s_sub_u32 s{LW}, s{W}, 4")
    a("v_lshrrev_b32 v16, 3, v0")
    a("v_and_b32 v17, 7, v0")
    a(f"s_lshl_b32 s{sT}, s{sMT}, 7")
    a(f"s_lshl_b32 s{sT+1}, s{LW}, 5")
    a(f"s_add_u32 s{sT}, s{sT}, s{sT+1}")
    a(f"v_add_u32 v18, s{sT}, v16")
    a("v_lshlrev_b32 v18, 11, v18")
    a("v_lshrrev_b32 v19, 1, v16")
    a("v_xor_b32 v20, v19, v17")
    a("v_lshl_add_u32 v1, v20, 4, v18")
    a("v_xor_b32 v20, 4, v20")
    a("v_lshl_add_u32 v2, v20, 4, v18")
    a(f"v_add_u32 v2, {8*2048}, v2")
    a(f"v_add_u32 v3, {16*2048}, v1")
    a(f"v_add_u32 v4, {16*2048}, v2")
    a(f"s_lshl_b32 s{sT}, s{LW}, 4")
    a(f"v_add_u32 v18, s{sT}, v16")
    a("v_mul_u32_u24 v18, 6144, v18")
    a(f"s_lshl_b32 s{sT}, s{sJ}, 7")
    a(f"v_add_u32 v18, s{sT}, v18")
    a("v_bfe_u32 v19, v0, 4, 1")
    a("v_lshlrev_b32 v19, 1, v19")
    a("v_xor_b32 v19, v19, v17")
    a("v_lshl_add_u32 v5, v19, 4, v18")
    a("v_xor_b32 v19, 4, v19")
    a("v_lshl_add_u32 v6, v19, 4, v18")
    a(f"v_add_u32 v6, {8*6144}, v6")
    a(f"s_lshl_b32 s{XB_}, s{LW}, 12")
    a(f"s_lshl_b32 s{WB_}, s{LW}, 11")
    KR = 56
    SH = 57
    NS = opt.get("starts", 2)
    if opt.get("rotj", False): a(f"s_add_u32 s{KR}, s{sMT}, s{sJ}")
    else: a(f"s_mov_b32 s{KR}, s{sMT}")
    a(f"s_and_b32 s{KR}, s{KR}, {NS-1}")
    a(f"s_lshl_b32 s{KR}, s{KR}, {2 if NS == 4 else 3}")
    a(f"s_lshr_b32 s{SH}, s{sMT}, {2 if NS == 4 else 1}")
    NSH = 16 // NS
    nt = lambda k: "nt" if k in opt.get("nt", "msl") else ""
    def offsets():
        a(f"s_and_b32 s{KR}, s{KR}, 15")
        a(f"s_lshl_b32 s{SX}, s{KR}, 7")
        a(f"s_mul_i32 s{SW}, s{KR}, {64*6144}")
        a(f"s_add_u32 s{SW+1}, s{SW}, 2048")
        a(f"s_add_u32 s{SW+2}, s{SW}, 4096")
        a(f"s_add_u32 s{KR}, s{KR}, 1")
    hoist = opt.get("hoist", True)
    def issue(kt, atoms=()):
        slot = (kt % 3) * SLOT
        atoms = list(atoms)
        if not (hoist and kt >= 2): offsets()
        d = [(f"s_add_u32 m0, s{XB_}, {slot + i*1024}", f"buffer_load_dwordx4 v{1+i}, {srd(sX)}, s{SX} offen {nt('x')} lds") for i in range(4)]
        d += [(f"s_add_u32 m0, s{WB_}, {slot + WOFF + seg*8192 + i*1024}", f"buffer_load_dwordx4 v{5+i}, {srd(sWQ)}, s{SW+seg} offen {nt('w')} lds")
              for seg in range(3) for i in range(2)]
        k = 0
        for i, (m, ld) in enumerate(d):
            if not (opt.get("noload") and kt > 2):
                a(m); a("s_nop 0"); a(ld)
                vm.issue(f"T{kt}")
            k2 = (i + 1) * len(atoms) // len(d)
            for at in atoms[k:k2]: at()
            k = k2
    a("s_waitcnt lgkmcnt(0)")
    ws_base(a, opt)
    a.stamp(4)
    if opt.get("lnrows", 2) == 1:
        ln_loads(a, vm, opt)
        issue(0)
        vm.wait("lnld")
        tmp = Asm(); ln_rows2(tmp, vm, 96, 112, 120, 152, 95, opt.get("dbg"), 1)
        if opt.get("dbg"): vm.issue("dbg", 2)
        issue(1, atomise(a, tmp))
    else:
        issue(0); issue(1)
    a.stamp(5)
    a("v_lshrrev_b32 v16, 4, v0")
    a("v_bfe_u32 v17, v0, 2, 2")
    a("v_lshl_add_u32 v17, v16, 3, v17")
    a("v_lshlrev_b32 v17, 7, v17")
    a("v_and_b32 v18, 3, v0")
    a("v_lshl_add_u32 v17, v18, 3, v17")
    a("v_and_b32 v16, 1, v16")
    a("v_lshlrev_b32 v16, 1, v16")
    a("v_bfe_u32 v18, v0, 3, 1")
    a("v_or_b32 v16, v16, v18")
    a(f"s_mul_i32 s{sT+3}, s{SH}, 43")
    a(f"s_lshr_b32 s{sT+3}, s{sT+3}, 7")
    a(f"s_mul_i32 s{sT+3}, s{sT+3}, 3")
    a(f"s_sub_u32 s{sT+3}, s{SH}, s{sT+3}")
    a(f"s_mul_i32 s{sT+3}, s{sT+3}, {SLOT}")
    a(f"s_add_u32 s{sT+3}, s{sT+3}, {WOFF}")
    for i in range(3):
        a(f"s_and_b32 s{sT}, s{LW}, 1")
        a(f"s_mul_i32 s{sT}, s{sT}, 3")
        a(f"s_add_u32 s{sT}, s{sT}, {i}")
        a(f"s_and_b32 s{sT+1}, s{sT}, 1")
        a(f"s_and_b32 s{sT+2}, s{LW}, 2")
        a(f"s_or_b32 s{sT+1}, s{sT+1}, s{sT+2}")
        a(f"v_xor_b32 v18, s{sT+1}, v16")
        a(f"v_lshl_add_u32 v{10+i}, v18, 5, v17")
        a(f"s_lshr_b32 s{sT}, s{sT}, 1")
        a(f"s_lshl_b32 s{sT}, s{sT}, 13")
        a(f"s_add_u32 s{sT}, s{sT}, s{sT+3}")
        a(f"v_add_u32 v{10+i}, s{sT}, v{10+i}")
    for r in range(4): a(f"v_mov_b32 v{56+r}, 0x3f803f80")
    a(f"s_cmp_lg_u32 s{W}, 4")
    a(f"s_cbranch_scc1 {name}_nozero")
    publish_zeros(a, vm, 13 + 3)
    a.label(f"{name}_nozero")
    if opt.get("lprio", 0): a(f"s_setprio {opt.get('lprio', 0)}")
    KEY, TT, CAND = 28, 36, 44
    ST = sT + 8
    keys = list(range(KEY, KEY+8))
    a("s_waitcnt lgkmcnt(0)")
    if hoist: offsets()
    vm.wait("T0")
    a("s_barrier")
    a.stamp(1)
    assert opt.get("p0", 7) <= 7
    t8a = opt.get("t8a", True)
    P0 = opt.get("p0", 7)
    cb = Asm()
    cb.label(f"{name}_colsum")
    for i in range(3):
        for ks in range(2):
            for t_ in range(2):
                cb(f"ds_read_b64_tr_b16 {vr(68+8*i+4*ks+2*t_,2)}, v{10+i} offset:{ks*4096+t_*512}")
    cb(f"s_lshl_b32 s{sT}, s{sJ}, 4")
    cb(f"s_add_u32 s{sT}, s{sT}, s{sMT}")
    cb(f"s_lshl_b32 s{sT}, s{sT}, 2")
    cb(f"s_add_u32 s{sT}, s{sT}, s{LW}")
    cb(f"s_mul_i32 s{sT}, s{sT}, 192")
    cb(f"s_add_u32 s{sT}, s{sT}, {WS_CSP}")
    cb("v_lshlrev_b32 v47, 2, v0")
    cb("s_waitcnt lgkmcnt(0)")
    for ks in range(2):
        for i in range(3):
            cb(f"v_mfma_f32_16x16x32_bf16 {vr(28+4*i,4)}, v[56:59], {vr(68+8*i+4*ks,4)}, {vr(28+4*i,4) if ks else 0}")
    cb("s_nop 7")
    cb("s_mov_b64 exec, 0xffff0000")
    cb("v_mov_b32 v28, v32")
    cb("s_bfm_b64 exec, 16, 32")
    cb("v_mov_b32 v28, v36")
    cb("s_bfm_b64 exec, 48, 0")
    cb(f"buffer_store_dword v28, v47, {srd(sWS)}, s{sT} offen sc1")
    cb("s_mov_b64 exec, -1")
    cb("s_setpc_b64 s[70:71]")
    cold.append(cb)
    def lines(fn):
        tmp = Asm(); tmp.uid = a.uid; fn(tmp); a.uid = tmp.uid
        out, grp = [], None
        for l in tmp.lines:
            s_ = l.strip()
            if grp is not None:
                grp.append(s_)
                if s_ == "s_mov_b64 exec, -1": out.append(grp); grp = None
            elif ("exec," in s_ and s_ != "s_mov_b64 exec, -1") or "saveexec" in s_: grp = [s_]
            else: out.append([s_])
        assert grp is None
        return [(lambda g=g: a(*g)) for g in out]
    def cs_load(i):
        def f():
            a(f"s_mul_i32 s{sT+2}, s{sJ}, {16*768}")
            a(f"s_mul_i32 s{sT+3}, s{LW}, 192")
            a(f"s_add_u32 s{sT+2}, s{sT+2}, s{sT+3}")
            a(f"s_add_u32 s{sT+2}, s{sT+2}, {WS_CSP}")
            a(f"buffer_load_dwordx4 {vr(60+4*i,4)}, v51, {srd(sWS)}, s{sT+2} offen offset:{i*768} sc1")
            vm.issue("csl")
        return f
    for kt in range(16):
        atoms = []
        def after_issue(kt=kt):
            if kt == 0:
                a(f"s_cmp_lg_u32 s{W}, 4")
                a(f"s_cbranch_scc1 {name}_nopub")
                publish_stats(a, vm, 16)
                a.label(f"{name}_nopub")
            if kt < NSH:
                lab = a.new_label(f"{name}_cs")
                a(f"s_cmp_lg_u32 s{SH}, {kt}")
                a(f"s_cbranch_scc1 {lab}")
                a(f"s_call_b64 s[70:71], {name}_colsum")
                a.label(lab)
                vm.issue("cs", 1, cond=True)
        if kt == 2:
            a(f"s_cmp_lg_u32 s{W}, 4")
            a(f"s_cbranch_scc1 {name}_nosig")
            a(f"s_lshl_b32 s{sT}, s{sMT}, 4")
            a(f"v_mov_b32 v45, s{sT}")
            a("v_mov_b32 v46, 1")
            a("s_mov_b64 exec, 1")
            a(f"buffer_atomic_add v46, v45, {srd(sDBG)}, 0 offen sc1")
            a("s_mov_b64 exec, -1")
            a.label(f"{name}_nosig")
            vm.issue("sig", 1, cond=True)
        if kt == P0:
            a("v_and_b32 v45, 15, v0")
            a("v_lshlrev_b32 v45, 4, v45")
            a(f"buffer_load_dword v46, v45, {srd(sDBG)}, 0 offen sc1")
            vm.issue("poll")
        if kt == P0 + 1:
            poll_check(a, f"{name}_p1", 46, 45, sDBG, 16, -1, cold)
            if t8a:
                a(f"s_lshl_b32 s{sT}, s{LW}, 11")
                a(f"s_add_u32 s{sT}, s{sT}, {WS_R}")
                a(f"buffer_load_dwordx4 {vr(KEY,4)}, v94, {srd(sWS)}, s{sT} offen sc1")
                a(f"buffer_load_dwordx4 {vr(KEY+4,4)}, v94, {srd(sWS)}, s{sT} offen offset:1024 sc1")
            a(f"s_lshl_b32 s{sT}, s{sMT}, 11")
            a(f"s_and_b32 s{sT+1}, s{LW}, 1")
            a(f"s_lshl_b32 s{sT+1}, s{sT+1}, 10")
            a(f"s_add_u32 s{sT}, s{sT}, s{sT+1}")
            a(f"s_add_u32 s{sT}, s{sT}, {WS_ST}")
            a("v_lshrrev_b32 v47, 3, v0")
            a("v_lshlrev_b32 v47, 7, v47")
            a("v_and_b32 v48, 7, v0")
            a("v_lshl_add_u32 v47, v48, 2, v47")
            a(f"buffer_load_dword v54, v47, {srd(sWS)}, s{sT} offen sc1")
            a(f"buffer_load_dword v55, v47, {srd(sWS)}, s{sT} offen offset:32 sc1")
            vm.issue("side", 4 if t8a else 2)
        CS0 = max(P0 + 1, NSH + 2)
        if kt == CS0:
            lab = a.new_label(f"{name}_cf")
            a(f"s_cmp_lg_u32 s{W}, 4")
            a(f"s_cbranch_scc1 {lab}")
            csf_addr(a, sT, sT+1)
            signal(a, sT, 1, 52, 53)
            a.label(lab)
            vm.issue("csf", 1, cond=True)
        if kt == CS0 + 1 + (CS0 < 10):
            csf_addr(a, sT, sT+1)
            a(f"v_mov_b32 v52, s{sT}")
            apoll(a, 53, 52)
            vm.issue("poll")
            def f(o):
                o("v_and_b32 v51, 15, v0")
                o("v_cmp_gt_u32 vcc, 12, v51")
                o("v_lshlrev_b32 v51, 4, v51")
                o("v_lshrrev_b32 v50, 4, v0")
                o("v_mul_u32_u24 v50, 4*768, v50")
                o("v_add_u32 v51, v51, v50")
                o("v_mov_b32 v50, 0x7fff0000")
                o("v_cndmask_b32 v51, v50, v51, vcc")
            atoms += lines(f)
        CS1 = CS0 + 2 + (CS0 < 10)
        if kt == CS1: acheck(a, f"{name}_p2", 53, 52, 16, 1, cold)
        if CS1 <= kt <= CS1 + 1:
            atoms += [cs_load(i) for i in ((0, 1), (2, 3))[kt - CS1]]
        if kt == 15:
            a(f"s_and_b32 s{sT}, s{LW}, 1")
            a(f"s_lshl_b32 s{sT}, s{sT}, 8")
            a(f"s_add_u32 s{sT}, s{sT}, {L_M}")
            a("v_lshlrev_b32 v47, 2, v0")
            a(f"v_add_u32 v47, s{sT}, v47")
            a("ds_write_b32 v47, v54")
            a("ds_write_b32 v47, v55 offset:512")
        if kt == P0 + 2:
            def f(o):
                if t8a:
                    o(f"s_lshl_b32 s{sT}, s{LW}, 9")
                    o("v_lshlrev_b32 v47, 2, v0")
                    o(f"v_add_u32 v47, s{sT}, v47")
                    make_keys(o, KEY, TT, 47, [0, 1, 2, 3, 256, 257, 258, 259])
                    o(f"v_mov_b32 v{CAND}, 0")
                    top8_round(o, keys, TT, CAND, ST, 0)
            atoms += lines(f)
        if t8a and P0 + 3 <= kt <= P0 + 6:
            rr = ((1, 2), (3, 4), (5, 6), (7,))[kt - P0 - 3]
            atoms += lines(lambda o: [top8_round(o, keys, TT, CAND, ST, r) for r in rr])
        def late_top8(kt=kt):
            if t8a and kt == 14:
                a(f"s_lshl_b32 s{sT}, s{LW}, 5")
                a(f"s_add_u32 s{sT}, s{sT}, {L_CAND}")
                a("v_lshlrev_b32 v47, 2, v0")
                a(f"v_add_u32 v47, s{sT}, v47")
                a("s_mov_b64 exec, 0xff")
                a(f"ds_write_b32 v47, v{CAND}")
                a("s_mov_b64 exec, -1")
                a("s_waitcnt lgkmcnt(0)")
        if t8a and kt == 15:
            a("v_and_b32 v46, 31, v0")
            a("v_lshlrev_b32 v46, 2, v46")
            a(f"v_add_u32 v46, {L_CAND}, v46")
            a(f"ds_read_b32 v{KEY}, v46")
        if kt == 15:
            vm.wait("csl")
            for i in range(1, 4):
                for r in range(4): a(f"v_add_f32 v{60+r}, v{60+r}, v{60+4*i+r}")
            a("s_nop 1")
            a("v_permlane32_swap_b32 v60, v62")
            a("v_permlane32_swap_b32 v61, v63")
            a("v_add_f32 v60, v60, v62")
            a("v_add_f32 v61, v61, v63")
            a("s_nop 1")
            a("v_permlane16_swap_b32 v60, v61")
            a("v_add_f32 v60, v60, v61")
            a("v_and_b32 v47, 15, v0")
            a("v_cmp_gt_u32 vcc, 12, v47")
            a("v_lshlrev_b32 v47, 4, v47")
            a("v_lshrrev_b32 v50, 4, v0")
            a("v_lshl_add_u32 v47, v50, 2, v47")
            a(f"s_mul_i32 s{sT}, s{LW}, 192")
            a(f"s_add_u32 s{sT}, s{sT}, {L_CS}")
            a(f"v_add_u32 v47, s{sT}, v47")
            a("s_and_saveexec_b64 s[66:67], vcc")
            a("ds_write_b32 v47, v60")
            a("s_mov_b64 exec, -1")
        if kt <= 13: issue(kt+2, atoms)
        else:
            for at in atoms: at()
        after_issue()
        if hoist and kt < 13: offsets()
        a("s_waitcnt lgkmcnt(0)")
        a.trace(3*kt+1)
        if kt < 15: vm.wait(f"T{kt+1}", "poll", "side", *(["st"] if kt == 1 else []), *(["cs"] if kt == NSH + 1 else []))
        late_top8()
        a.trace(3*kt+2)
        a("s_barrier")
        a.trace(3*kt+3)
    if t8a:
        a("v_cmp_gt_u32 vcc, 32, v0")
        a("s_nop 1")
        a(f"v_cndmask_b32 v{KEY}, 0, v{KEY}, vcc")
        for r in range(8): top8_round(a, [KEY], TT, CAND, ST, r)
        decode_keys(a, CAND, 48, 49, TT)
        a("v_lshlrev_b32 v47, 2, v0")
        a(f"v_add_u32 v47, {L_IDX}, v47")
        a("s_mov_b64 exec, 0xff")
        a("ds_write_b32 v47, v48")
        a("ds_write_b32 v47, v49 offset:32")
        if opt.get("dbg"):
            a(f"s_mov_b32 s{sT}, {WS_IDX}")
            a("v_lshlrev_b32 v47, 2, v0")
            a(f"buffer_store_dword v48, v47, {srd(sWS)}, s{sT} offen")
            a(f"buffer_store_dword v49, v47, {srd(sWS)}, s{sT} offen offset:32")
        a("s_mov_b64 exec, -1")
    a(f"s_lshl_b32 s{sT}, s{LW}, 13")
    a(f"v_add_u32 v2, s{sT}, v94")
    a(f"s_lshl_b32 s{sT+1}, s{sJ}, 1")
    a(f"s_lshr_b32 s{sT+2}, s{LW}, 1")
    a(f"s_add_u32 s{sT+1}, s{sT+1}, s{sT+2}")
    a(f"s_lshl_b32 s{sT+1}, s{sT+1}, 5")
    a(f"s_lshl_b32 s{sT+2}, s{sMT}, 1")
    a(f"s_add_u32 s{sT+1}, s{sT+1}, s{sT+2}")
    a(f"s_and_b32 s{sT+2}, s{LW}, 1")
    a(f"s_add_u32 s{sT+1}, s{sT+1}, s{sT+2}")
    a(f"s_lshl_b32 s{sT+1}, s{sT+1}, 13")
    a(f"s_add_u32 s{sT+1}, s{sT+1}, {WS_KV}")
    a(f"s_add_u32 s{sT+2}, s{sT+1}, 4096")
    a("s_barrier")
    for q in range(8): a(f"ds_read_b128 {vr(96+4*q,4)}, v2 offset:{q*1024}")
    for q in range(8):
        a(f"s_waitcnt lgkmcnt({7-q})")
        a(f"buffer_store_dwordx4 {vr(96+4*q,4)}, v94, {srd(sWS)}, s{sT+1+(q>>2)} offen offset:{(q&3)*1024} sc1")
    return vm

ACC, B0 = 96, 8
def accreg(ct, tt): return ACC + 16*ct + 4*tt

def phaseA_consumer(a, name, cold, opt):
    vm = VM(a)
    XA, WA = 1, 3
    a("s_waitcnt lgkmcnt(0)")
    ws_base(a, opt)
    a.stamp(4)
    ln_loads(a, vm, opt)
    if opt.get("cpf", True):
        a(f"s_cmp_lg_u32 s{W}, 0")
        a(f"s_cbranch_scc1 {name}_nocpf")
        a(f"s_getpc_b64 s[{sT+8}:{sT+9}]")
        a.label(f"{name}_pc")
        a(f"s_sub_u32 s{sT+8}, s{sT+8}, {name}_pc-{name}")
        a(f"s_subb_u32 s{sT+9}, s{sT+9}, 0")
        a(f"s_lshl_b32 s{sT}, s{sLI}, 4")
        a("v_and_b32 v8, 15, v0")
        a(f"v_add_u32 v8, s{sT}, v8")
        a("v_lshlrev_b32 v8, 7, v8")
        a(f"v_min_u32 v8, {name}_end-{name}-4, v8")
        a(f"global_load_dword v250, v8, s[{sT+8}:{sT+9}]")
        a.label(f"{name}_nocpf")
        vm.issue("cpf", 1, cond=True)
    WM, WN = 52, 53
    a(f"s_lshr_b32 s{WM}, s{W}, 1")
    a(f"s_and_b32 s{WN}, s{W}, 1")
    a("v_and_b32 v8, 15, v0")
    a("v_lshrrev_b32 v9, 4, v0")
    a(f"s_lshl_b32 s{sT}, s{WM}, 6")
    a(f"v_add_u32 v10, s{sT}, v8")
    a("v_lshlrev_b32 v10, 7, v10")
    a("v_bfe_u32 v11, v0, 1, 3")
    a("v_xor_b32 v11, v11, v9")
    a(f"v_lshl_add_u32 v{XA}, v11, 4, v10")
    a(f"v_xor_b32 v{XA+1}, 64, v{XA}")
    a("v_bfe_u32 v10, v0, 2, 2")
    a("v_lshl_add_u32 v10, v9, 3, v10")
    a("v_lshlrev_b32 v10, 7, v10")
    a("v_and_b32 v11, 3, v0")
    a("v_lshl_add_u32 v10, v11, 3, v10")
    a("v_and_b32 v11, 1, v9")
    a("v_lshlrev_b32 v11, 1, v11")
    a("v_bfe_u32 v12, v0, 3, 1")
    a("v_or_b32 v11, v11, v12")
    a(f"s_lshl_b32 s{sT}, s{WN}, 1")
    a(f"v_xor_b32 v11, s{sT}, v11")
    a("v_lshl_add_u32 v10, v11, 5, v10")
    a(f"v_add_u32 v{WA}, {WOFF}, v10")
    a(f"v_xor_b32 v{WA+1}, 32, v{WA}")
    a.stamp(5)
    vm.wait("lnld")
    a.stamp(6)
    assert WS_XN == 0
    ln_rows2(a, vm, 96, 112, 120, 152, 95, opt.get("dbg"), opt.get("lnrows", 2))
    for r in range(96): a(f"v_mov_b32 v{ACC+r}, 0")
    def reads(buf, ks):
        b = B0 + 40*buf
        xr = [f"ds_read_b128 {vr(b+4*tt,4)}, v{XA+ks} offset:{tt*2048}" for tt in range(4)]
        wr = [f"ds_read_b64_tr_b16 {vr(b+16+4*ct+2*t,2)}, v{WA+(ct&1)} offset:{(ct>>1)*8192+ks*4096+t*512}" for ct in range(6) for t in range(2)]
        return [xr[0]] + wr[0:2] + xr[1:4] + wr[2:]
    def mfmas(buf):
        b = B0 + 40*buf
        o = []
        for ct in range(6):
            for tt in range(4):
                x = vr(b+4*tt, 4); w = vr(b+16+4*ct, 4)
                A, B = (w, x) if ct < 4 else (x, w)
                o.append(f"v_mfma_f32_16x16x32_bf16 {vr(accreg(ct,tt),4)}, {A}, {B}, {vr(accreg(ct,tt),4)}")
        return o
    KT, SI, DL, NEG = 48, 49, 50, 51
    pf = opt.get("pf", False)
    PD, PO, PV = 56, 54, 5
    if pf:
        for q in range(3):
            a(f"s_cmp_eq_u32 s{W}, 0")
            a(f"s_cselect_b32 s{PD+q}, s{sWG+q}, s{sWU+q}")
            a(f"s_cmp_eq_u32 s{W}, 2")
            a(f"s_cselect_b32 s{PD+q}, s{sWD+q}, s{PD+q}")
            a(f"s_cmp_eq_u32 s{W}, 3")
            a(f"s_cselect_b32 s{PD+q}, s{sWO+q}, s{PD+q}")
        a(f"s_mov_b32 s{PD+3}, 0x00020000")
        a(f"s_cselect_b32 s{PO}, 8192, 28672 + 0" if False else f"s_movk_i32 s{PO}, 0x7000")
        a(f"s_cselect_b32 s{PO}, 0x2000, s{PO}")
        a(f"s_mul_i32 s{PO}, s{PO}, s2")
        a(f"s_sub_u32 s{PO}, s{PO}, {opt.get('pf0', 2)*2048}")
        a(f"v_lshlrev_b32 v{PV}, 7, v0")
        a("v_cmp_gt_u32 vcc, 16, v0")
        a("v_mov_b32 v6, 0x7fff0000")
        a("s_nop 0")
        a(f"v_cndmask_b32 v{PV}, v6, v{PV}, vcc")
    a(f"s_mov_b32 s{KT}, 0")
    a(f"s_mov_b32 s{SI}, 0")
    a(f"s_mov_b32 s{NEG}, {(-2*SLOT) & 0xffffffff:#x}")
    a("s_waitcnt lgkmcnt(0)")
    if opt.get("cprio"): a(f"s_setprio {opt['cprio']}")
    a("s_barrier")
    a.stamp(1); a.cstamp(7)
    a(*reads(0, 0))
    a(".p2align 6")
    a.label(f"{name}_cloop")
    per = opt.get("rpg", 1)
    skip = opt.get("rskip", 0)
    if opt.get("nods"): reads = lambda buf, ks: []
    fine = opt.get("fine", False)
    def weave(m, r, extra, first=0, pend=16):
        i = 0
        for k, x in enumerate(m):
            kk = k + first
            if fine and kk % 4 == 0 and kk > 0:
                need = 6 + 2*(kk // 4)
                a(f"s_waitcnt lgkmcnt({min(15, pend - need + i)})")
            a(x)
            if k < skip: continue
            a(*r[i:i+per]); i = min(len(r), i + per)
            if i >= len(r) and k >= len(r) // per and extra: a(extra.pop(0))
    U = opt.get("cunroll", 2)
    barpos = opt.get("barpos", 2)
    for u in range(U):
        m = mfmas(0); r = reads(1, 1)
        a(f"s_add_u32 s{SI}, s{SI}, 1")
        a(f"s_cmp_eq_u32 s{SI}, 3")
        a(f"s_cselect_b32 s{DL}, s{NEG}, {SLOT}")
        a(f"s_cselect_b32 s{SI}, 0, s{SI}")
        ctr = opt.get("ctrace")
        if ctr: a("s_memtime s[76:77]")
        a(f"s_waitcnt lgkmcnt({10 if fine else 0})")
        ex = [f"v_add_u32 v{q}, s{DL}, v{q}" for q in (1, 2, 3, 4)]
        if ctr: ex = [f"s_lshl_b32 m0, s{KT}, 2", "v_writelane_b32 v255, s76, m0"] + ex
        weave(m, r, ex)
        m = mfmas(1); r = reads(0, 0)
        if ctr: a("s_memtime s[76:77]")
        a("s_waitcnt lgkmcnt(0)")
        a(*m[:barpos])
        if ctr:
            a("s_add_u32 m0, m0, 1")
            a("v_writelane_b32 v255, s76, m0")
            a("s_memtime s[78:79]")
        a("s_barrier")
        if ctr:
            a("s_memtime s[76:77]")
            a("s_waitcnt lgkmcnt(0)")
            a("s_add_u32 m0, m0, 1")
            a("v_writelane_b32 v255, s78, m0")
            a("s_add_u32 m0, m0, 1")
            a("v_writelane_b32 v255, s76, m0")
        if pf:
            a(f"s_cmp_lt_u32 s{KT}, {opt.get('pf0', 2)}")
            a(f"s_cselect_b32 s{sT}, 0x7fff0000, s{PO}")
            a(f"buffer_load_dword v254, v{PV}, {srd(PD)}, s{sT} offen")
            a(f"s_add_u32 s{PO}, s{PO}, 2048")
        fine_, fine = fine, False
        weave(m[barpos:], r, [f"s_add_u32 s{KT}, s{KT}, 1", f"s_cmp_lt_u32 s{KT}, 16"])
        fine = fine_
    a(f"s_cbranch_scc1 {name}_cloop")
    vm.q = []
    if opt.get("cprio"): a("s_setprio 0")
    a.stamp(2); a.cstamp(8)
    MR, CSQ, MV, RV, CSV, QR, AD, PK = 8, 16, 32, 48, 64, 66, 74, 78
    if not opt.get("t8a", True):
        a(f"s_lshl_b32 s{sT}, s{W}, 11")
        a(f"s_add_u32 s{sT}, s{sT}, {WS_R}")
        a(f"buffer_load_dwordx4 {vr(RKEY,4)}, v94, {srd(sWS)}, s{sT} offen sc1")
        a(f"buffer_load_dwordx4 {vr(RKEY+4,4)}, v94, {srd(sWS)}, s{sT} offen offset:1024 sc1")
    a("s_waitcnt lgkmcnt(0)")
    a("v_and_b32 v1, 15, v0")
    a("v_lshrrev_b32 v2, 4, v0")
    a(f"s_lshl_b32 s{sT}, s{WM}, 8")
    a(f"s_add_u32 s{sT}, s{sT}, {L_M}")
    a(f"s_mul_i32 s{sT+1}, s{WN}, 384")
    a(f"s_add_u32 s{sT+1}, s{sT+1}, {L_CS}")
    a("v_lshlrev_b32 v3, 2, v1")
    a(f"v_add_u32 v4, s{sT}, v3")
    for tt in range(4):
        a(f"ds_read_b32 v{MR+2*tt}, v4 offset:{tt*64}")
        a(f"ds_read_b32 v{MR+2*tt+1}, v4 offset:{tt*64+512}")
    a("v_lshlrev_b32 v5, 4, v2")
    a(f"v_add_u32 v6, s{sT+1}, v5")
    for ct in range(4): a(f"ds_read_b128 {vr(CSQ+4*ct,4)}, v6 offset:{ct*64}")
    a(f"v_add_u32 v6, s{sT}, v5")
    a(f"v_add_u32 v3, s{sT+1}, v3")
    a(f"ds_read_b32 v{CSV}, v3 offset:256")
    a(f"ds_read_b32 v{CSV+1}, v3 offset:320")
    for tt in range(4):
        a(f"ds_read_b128 {vr(MV+4*tt,4)}, v6 offset:{tt*64}")
        a(f"ds_read_b128 {vr(RV+4*tt,4)}, v6 offset:{tt*64+512}")
    a("v_lshrrev_b32 v3, 1, v2")
    a("v_and_b32 v4, 1, v2")
    a("v_lshl_add_u32 v5, v3, 5, v1")
    a("v_lshlrev_b32 v5, 4, v5")
    a("v_lshl_add_u32 v5, v4, 3, v5")
    a("v_lshl_add_u32 v6, v4, 5, v1")
    a("v_lshlrev_b32 v6, 4, v6")
    a("v_lshl_add_u32 v6, v3, 3, v6")
    a(f"s_lshl_b32 s{sT}, s{WN}, 1")
    a(f"s_add_u32 s{sT}, s{sT}, s{WM}")
    a(f"s_lshl_b32 s{sT}, s{sT}, 13")
    a(f"v_add_u32 v{AD}, s{sT}, v5")
    a(f"v_add_u32 v{AD+1}, s{sT}, v6")
    a(f"s_lshr_b32 s{sT}, s{sT}, 1")
    a(f"s_add_u32 s{sT}, s{sT}, {L_Q}")
    a(f"v_add_u32 v{AD+2}, s{sT}, v5")
    a(f"s_mov_b32 s{sT+1}, {QSCALE:#x}")
    a("s_waitcnt lgkmcnt(10)")
    for tt in range(4):
        a(f"v_mul_f32 v{QR+2*tt+1}, s{sT+1}, v{MR+2*tt+1}")
    n = 0
    def fin(ct, tt):
        nonlocal n
        r = accreg(ct, tt)
        p = PK + 2*(n % 4); n += 1
        for hf in range(2):
            pr = vr(r+2*hf, 2)
            if ct < 4:
                a(f"v_pk_fma_f32 {pr}, {vr(CSQ+4*ct+2*hf,2)}, {vr(MR+2*tt,2)}, {pr} op_sel_hi:[1,0,1] neg_lo:[0,1,0] neg_hi:[0,1,0]")
                sc = QR if ct < 2 else MR
                a(f"v_pk_mul_f32 {pr}, {pr}, {vr(sc+2*tt,2)} op_sel:[0,1] op_sel_hi:[1,1]")
            else:
                sel = "op_sel_hi:[1,0,1]" if ct == 4 else "op_sel:[0,1,0] op_sel_hi:[1,1,1]"
                a(f"v_pk_fma_f32 {pr}, {vr(MV+4*tt+2*hf,2)}, {vr(CSV,2)}, {pr} {sel} neg_lo:[0,1,0] neg_hi:[0,1,0]")
                a(f"v_pk_mul_f32 {pr}, {pr}, {vr(RV+4*tt+2*hf,2)}")
            a(f"v_cvt_pk_bf16_f32 v{p+hf}, v{r+2*hf}, v{r+2*hf+1}")
        if ct < 2:   a(f"ds_write_b64 v{AD+2}, {vr(p,2)} offset:{(tt>>1)*2048 + ct*1024 + (tt&1)*256}")
        elif ct < 4: a(f"ds_write_b64 v{AD}, {vr(p,2)} offset:{(tt>>1)*4096 + (ct-2)*1024 + (tt&1)*256}")
        else:        a(f"ds_write_b64 v{AD+1}, {vr(p,2)} offset:{(tt>>1)*4096 + 2048 + (tt&1)*1024 + (ct-4)*256}")
    a("s_waitcnt lgkmcnt(0)")
    for ct in (2, 3, 4, 5):
        for tt in range(4): fin(ct, tt)
    a("s_waitcnt lgkmcnt(0)")
    a("s_barrier")
    for ct in (0, 1):
        for tt in range(4): fin(ct, tt)
    a("s_waitcnt lgkmcnt(0)")
    return vm

def publish_kv(a, vm, R, opt):
    a(f"v_lshlrev_b32 v{R.VL}, 4, v0")
    a(f"s_and_b32 s{sT+1}, s{W}, 1")
    a(f"s_lshl_b32 s{sT+1}, s{sT+1}, 1")
    a(f"s_bfe_u32 s{sT+2}, s{W}, 0x10001")
    a(f"s_add_u32 s{sT+1}, s{sT+1}, s{sT+2}")
    a(f"s_lshl_b32 s{sT+1}, s{sT+1}, 12")
    a(f"s_add_u32 s{sT+1}, s{sT+1}, {L_Q}")
    a(f"v_add_u32 v3, s{sT+1}, v{R.VL}")
    for q in range(4): a(f"ds_read_b128 {vr(R.Q+4*q,4)}, v3 offset:{q*1024}")
    if opt.get("dbg"):
        a("s_waitcnt lgkmcnt(0)")
        head_of(a, sT+1, sT+2)
        a(f"s_lshl_b32 s{sT+1}, s{sT+1}, 6")
        a(f"s_lshl_b32 s{sT+2}, s{sMT}, 2")
        a(f"s_add_u32 s{sT+1}, s{sT+1}, s{sT+2}")
        a(f"s_and_b32 s{sT+2}, s{W}, 2")
        a(f"s_add_u32 s{sT+1}, s{sT+1}, s{sT+2}")
        a(f"s_lshl_b32 s{sT+1}, s{sT+1}, 11")
        a(f"s_add_u32 s{sT+1}, s{sT+1}, {WS_Q}")
        for q in range(4):
            a(f"buffer_store_dwordx4 {vr(R.Q+4*q,4)}, v{R.VL}, {srd(sWS)}, s{sT+1} offen offset:{q*1024}")
        vm.drain()

def gen_fused(name, **opt):
    a = Asm(); cold = []
    R = AT.AttnRegs
    prologue(a, name, opt)
    a(f"s_cmp_ge_u32 s{W}, 4")
    a(f"s_cbranch_scc1 {name}_loader")
    phaseA_consumer(a, name, cold, opt)
    a(f"s_branch {name}_joinA")
    a.label(f"{name}_loader")
    phaseA_loader(a, name, cold, opt)
    a.stamp(2)
    a("s_setprio 0")
    a.label(f"{name}_joinA")
    a("s_barrier")
    a.stamp(3)
    if opt.get("dbgtime"): a("s_memrealtime s[94:95]")
    vm = VM(a)
    publish_kv(a, vm, R, opt)
    if opt.get("stop") != "A":
        import fused_bc
        fused_bc.phaseB(a, name, cold, opt, vm)
        if opt.get("stop") != "B":
            fused_bc.phaseC(a, name, cold, opt, vm)
    if opt.get("xprobe"):
        a("s_waitcnt vmcnt(0) lgkmcnt(0)")
        a(f"s_cmp_lg_u32 s{W}, 0")
        a(f"s_cbranch_scc1 {name}_done")
        a("s_getreg_b32 s76, hwreg(HW_REG_XCC_ID, 0, 4)")
        a("s_add_u32 s76, s76, 1")
        a("v_mov_b32 v1, 4")
        a("v_mov_b32 v2, s76")
        a("s_mov_b64 exec, 1")
        a(f"s_cmp_lg_u32 s2, {opt['xprobe']}")
        a(f"s_cbranch_scc1 {name}_xp0")
        a(f"buffer_atomic_add v2, v1, {srd(sDBG)}, 0 offen sc1")
        a("s_waitcnt vmcnt(0)")
        a("s_endpgm")
        a.label(f"{name}_xp0")
        a("s_cmp_lg_u32 s2, 0")
        a(f"s_cbranch_scc1 {name}_done")
        a("s_mov_b32 s78, 0")
        a.label(f"{name}_xp1")
        a("v_mov_b32 v2, 0")
        a(f"buffer_atomic_add v2, v1, {srd(sDBG)}, 0 offen sc0 sc1")
        a("s_add_u32 s78, s78, 1")
        a("s_cmp_gt_u32 s78, 100000")
        a(f"s_cbranch_scc1 {name}_done")
        a("s_waitcnt vmcnt(0)")
        a("v_readfirstlane_b32 s77, v2")
        a("s_nop 3")
        a("s_cmp_eq_u32 s77, 0")
        a(f"s_cbranch_scc1 {name}_xp1")
        a("s_cmp_eq_u32 s77, s76")
        a(f"s_cbranch_scc1 {name}_done")
        a("s_memrealtime s[80:81]")
        a("s_waitcnt lgkmcnt(0)")
        a.label(f"{name}_xp2")
        a("s_memrealtime s[78:79]")
        a("s_waitcnt lgkmcnt(0)")
        a("s_sub_u32 s78, s78, s80")
        a("s_cmp_lt_u32 s78, 4000")
        a(f"s_cbranch_scc1 {name}_xp2")
    if opt.get("probe"):
        i_, j_ = opt["probe"]
        a("s_waitcnt vmcnt(0) lgkmcnt(0)")
        a.stamp(9)
        a("s_waitcnt lgkmcnt(0)")
        a(f"s_or_b32 s76, s81, s{W}")
        a(f"s_cmp_lg_u32 s76, 0")
        a(f"s_cbranch_scc1 {name}_done")
        a(f"s_sub_u32 s76, s{82+2*j_}, s{82+2*i_}")
        a("s_lshl_b32 s76, s76, 2")
        a.label(f"{name}_probe")
        a("s_memrealtime s[78:79]")
        a("s_waitcnt lgkmcnt(0)")
        a("s_sub_u32 s78, s78, s100")
        a("s_cmp_lt_u32 s78, s76")
        a(f"s_cbranch_scc1 {name}_probe")
    else:
        a.stamp_dump(opt.get("kid", 0), W)
    if opt.get("dbgtime"):
        a("s_waitcnt vmcnt(0)")
        a("s_memrealtime s[98:99]")
        a("s_waitcnt lgkmcnt(0)")
        a("s_not_b32 s96, s96")
        a("v_mov_b32 v1, 4")
        a("v_mov_b32 v2, s96")
        a("v_mov_b32 v3, s98")
        a("v_mov_b32 v4, s94")
        a(f"s_cmp_lg_u32 s{W}, 0")
        a(f"s_cbranch_scc1 {name}_done")
        a("s_mov_b64 exec, 1")
        a(f"buffer_atomic_umax v2, v1, {srd(sDBG)}, 0 offen sc1")
        a(f"buffer_atomic_umax v3, v1, {srd(sDBG)}, 0 offen offset:4 sc1")
        a(f"buffer_atomic_umax v4, v1, {srd(sDBG)}, 0 offen offset:8 sc1")
        a("s_mov_b64 exec, -1")
    a.label(f"{name}_done")
    a("s_endpgm")
    for c in cold: a.lines += c.lines
    a.label(f"{name}_end")
    a("s_endpgm")
    return kernel_header(name) + a.text() + kernel_desc(name, 256, 102)

def xsel_fetch(a, vm, vidx, XR, XST, n=1):
    for i in range(n):
        a(f"s_mul_i32 s{sT+2}, s{W}, {n}")
        a(f"s_add_u32 s{sT+2}, s{sT+2}, {i}")
        a(f"v_readlane_b32 s{sT}, v{vidx}, s{sT+2}")
        a("s_nop 3")
        a(f"s_lshl_b32 s{sT+1}, s{sT}, 11")
        a(f"buffer_load_dwordx4 {vr(XR+8*i,4)}, v1, {srd(sX)}, s{sT+1} offen")
        a(f"buffer_load_dwordx4 {vr(XR+8*i+4,4)}, v1, {srd(sX)}, s{sT+1} offen offset:1024")
        a(f"s_lshr_b32 s{sT+1}, s{sT}, 3")
        a(f"s_lshl_b32 s{sT+1}, s{sT+1}, 5")
        a(f"s_and_b32 s{sT}, s{sT}, 7")
        a(f"s_add_u32 s{sT}, s{sT}, s{sT+1}")
        a(f"s_lshl_b32 s{sT}, s{sT}, 2")
        a(f"s_add_u32 s{sT}, s{sT}, {WS_ST}")
        a(f"v_mov_b32 v{XST+2*i+1}, s{sT}")
        a(f"buffer_load_dword v{XST+2*i}, v{XST+2*i+1}, {srd(sWS)}, 0 offen sc1")
        a(f"buffer_load_dword v{XST+2*i+1}, v{XST+2*i+1}, {srd(sWS)}, 0 offen offset:32 sc1")
    vm.issue("xsel", 4*n)

def xsel_normalise(a, T, XR, XST, n=1):
    XF = T + 2
    a(f"v_lshrrev_b32 v{T}, 2, v0")
    a(f"v_lshlrev_b32 v{T}, 9, v{T}")
    a(f"v_and_b32 v{T+1}, 3, v0")
    a(f"v_lshl_add_u32 v{T}, v{T+1}, 7, v{T}")
    a(f"s_lshl_b32 s{sT}, s{W}, {3+n}")
    a(f"s_add_u32 s{sT}, s{sT}, {L_XS}")
    a(f"v_add_u32 v{T}, s{sT}, v{T}")
    for i in range(n):
        for p in range(8):
            x = XR + 8*i + p
            f0, f1 = XF + 2*(p & 1), XF + 2*(p & 1) + 1
            a(f"v_lshlrev_b32 v{f0}, 16, v{x}")
            a(f"v_and_b32 v{f1}, 0xffff0000, v{x}")
            a(f"v_sub_f32 v{f0}, v{f0}, v{XST+2*i}")
            a(f"v_sub_f32 v{f1}, v{f1}, v{XST+2*i}")
            a(f"v_cvt_pk_bf16_f32 v{x}, v{f0}, v{f1}")
            a(f"v_lshlrev_b32 v{f0}, 16, v{x}")
            a(f"v_and_b32 v{f1}, 0xffff0000, v{x}")
            a(f"v_mul_f32 v{f0}, v{f0}, v{XST+2*i+1}")
            a(f"v_mul_f32 v{f1}, v{f1}, v{XST+2*i+1}")
            a(f"v_cvt_pk_bf16_f32 v{x}, v{f0}, v{f1}")
        a(f"ds_write_b128 v{T}, {vr(XR+8*i,4)} offset:{16*i}")
        a(f"ds_write_b128 v{T}, {vr(XR+8*i+4,4)} offset:{16*i+8192}")
```

```python
from asmlib import *
from asmlib import DIAG, TRACE
from layout import *
from fused import *
import fused as FU
from k_attn import M32, M16
import k_attn2 as AT
from k_attn2 import SM
from k_attn3 import Regs3
from k_moe import pi_row, round_bf16
from k_top8 import make_keys, decode_keys

L_S1, L_S2, L_EX, L_LX, L_HI = 32768, 131072, 131072, 129024, 159744
KH, HB, KA, KBK, VA, VBK, MASK, NEED, RET, S1O, HASJ, S2O, WOO, WOM = 48, 49, 50, 51, 52, 53, 54, 55, 56, 58, 59, 60, 61, 62
XSF, MACC, VFR, VD1, VD2, VP, VPA, VT = 220, 236, 243, 244, 245, 246, 247, 248
C_MS, C_IX, C_G, C_WT, C_AY = 206, 210, 212, 238, 240
C_XP, C_VX = 196, 204
WBF = 20

def unit(a, R, t, q, nb, hook=None, noqk=False):
    Sc, Sn = (R.S0, R.S1) if q == 0 else (R.S1, R.S0)
    P, Q, O, L = R.P, R.Q, R.O, R.L
    qn = 1 - q
    kn = t if q == 0 else t + 1
    vp = t - 1 if q == 0 else t
    K = R.KB + 8*(kn % nb); Vp = R.VB + 8*(vp % nb); Vc = R.VB + 8*(t % nb)
    e = lambda i: f"v_exp_f32 v{Sc+i}, v{Sc+i}"
    c = lambda i: f"v_cvt_pk_bf16_f32 v{P+i}, v{Sc+2*i}, v{Sc+2*i+1}"
    h = hook or (lambda pos: None)
    h("Ma")
    if not noqk: a(M32(Sn, K, Q+8*qn, None))
    h("Ma+"); a(e(0), e(1), e(2))
    h("Md"); a(M32(O+16*qn, Vp+4, P+4, O+16*qn)); h("Md+"); a(e(3), e(4), e(5))
    a(SM(L+4*qn, R.ONES, P, R.IDX), c(0), c(1), e(6), e(7))
    h("Mb")
    if not noqk: a(M32(Sn, K+4, Q+8*qn+4, Sn))
    h("Mb+"); a(c(2), c(3), e(8), e(9))
    h("Mc"); a(M32(O+16*q, Vc, P, O+16*q)); h("Mc+")
    a(e(10), e(11), c(4), e(12), c(5), e(13), e(14), e(15), c(6), c(7))

class OH:
    sOA, sOB, ROT, RAW, MASK, NEED, RET, GA, GB, ND = 50, 51, 60, 52, 72, 73, 44, 53, 54, 63
    GIDS = [55, 56, 57, 59]
    VPo, VPa = 236, 237
    SLOT = [132, 164, 68, 100]
def oh_setup(a, T):
    H = OH
    a(f"s_and_b32 s{H.ROT}, s{sJ}, 3")
    a(f"s_lshl_b32 s{sT}, s{sMT}, 2")
    a(f"s_and_b32 s{sT+1}, s{W}, 3")
    a(f"s_add_u32 s{sT}, s{sT}, s{sT+1}")
    a(f"s_lshl_b32 s{H.sOA}, s{sT}, 16")
    a(f"s_lshl_b32 s{sT+1}, s{KH}, 14")
    a(f"s_add_u32 s{H.sOA}, s{H.sOA}, s{sT+1}")
    a(f"s_add_u32 s{H.sOA}, s{H.sOA}, {WS_O}")
    a(f"s_add_u32 s{H.sOB}, s{H.sOA}, 32768")
    a(f"s_lshl_b32 s{sT}, s{sT}, 1")
    a(f"s_add_u32 s{sT}, s{sT}, s{KH}")
    a(f"s_lshl_b32 s{sT}, s{sT}, 7")
    a(f"s_add_u32 s{sT}, s{sT}, {WS_OF}")
    a(f"v_mov_b32 v{H.VPa}, s{sT}")
    a(f"s_mov_b32 s{H.RAW}, 0")
    a(f"s_mov_b32 s{H.NEED}, 0x1111")
def oh_poll(a, vm):
    apoll(a, OH.VPo, OH.VPa)
    vm.issue("opoll")
def oh_ready(o):
    H = OH
    o(f"v_readfirstlane_b32 s{H.RAW}, v{H.VPo}")
    o(f"s_lshl_b32 s{sT+10}, s{H.ROT}, 2")
    o(f"s_mul_i32 s{H.RAW}, s{H.RAW}, 0x10001")
    o(f"s_lshr_b32 s{H.RAW}, s{H.RAW}, s{sT+10}")
    o(f"s_lshr_b32 s{sT+10}, s{H.RAW}, 1")
    o(f"s_and_b32 s{H.MASK}, s{H.RAW}, s{sT+10}")
    o(f"s_lshr_b32 s{sT+10}, s{H.MASK}, 2")
    o(f"s_and_b32 s{H.MASK}, s{H.MASK}, s{sT+10}")
    o(f"s_and_b32 s{H.MASK}, s{H.MASK}, s{H.NEED}")
def oh_take(a, g):
    H = OH
    a(f"s_ff1_i32_b32 s{H.GA}, s{H.MASK}")
    a(f"s_bitset0_b32 s{H.NEED}, s{H.GA}")
    a(f"s_bitset0_b32 s{H.MASK}, s{H.GA}")
    a(f"s_lshr_b32 s{H.GA}, s{H.GA}, 2")
    a(f"s_add_u32 s{H.GA}, s{H.GA}, s{H.ROT}")
    a(f"s_and_b32 s{H.GIDS[g]}, s{H.GA}, 3")
    a(f"s_lshl_b32 s{H.GA}, s{H.GIDS[g]}, 12")
    a(f"s_add_u32 s{H.GB}, s{H.GA}, s{H.sOB}")
    a(f"s_add_u32 s{H.GA}, s{H.GA}, s{H.sOA}")
    for i in range(4):
        for t16 in range(2):
            a(f"buffer_load_dwordx4 {vr(H.SLOT[g]+8*i+4*t16,4)}, v1, {srd(sWS)}, s{(H.GA, H.GB)[t16]} offen offset:{i*1024}")

def phaseB(a, name, cold, opt, vm):
    R = Regs3
    VL, Q, P, O, L, T = R.VL, R.Q, R.P, R.O, R.L, R.T
    NB, NT = 4, 32
    BAR = opt.get("bar", 4)
    moe = opt.get("moe", True)
    nt = lambda k: "nt" if k in opt.get("nt", "msl") else ""
    a(f"s_lshr_b32 s{KH}, s{W}, 2")
    a(f"s_and_b32 s{sT}, s{W}, 1")
    a(f"s_lshl_b32 s{sT}, s{sT}, 1")
    a(f"s_add_u32 s{sT}, s{sT}, s{KH}")
    a(f"s_lshl_b32 s{sT}, s{sT}, 13")
    a(f"v_add_u32 v2, s{sT}, v{VL}")
    for t in range(2):
        for hf in range(2):
            a(f"ds_read_b128 {vr(R.KB+8*t+4*hf,4)}, v2 offset:{t*4096+hf*1024}")
    for t in range(2):
        for hf in range(2):
            a(f"ds_read_b128 {vr(R.VB+8*t+4*hf,4)}, v2 offset:{t*4096+2048+hf*1024}")
    head_of(a, HB, sT)
    a(f"s_lshl_b32 s{sT+1}, s{HB}, 8")
    a(f"s_lshl_b32 s{HB}, s{HB}, 18")
    a(f"s_add_u32 s{HB}, s{HB}, {WS_KV}")
    a(f"s_mov_b32 s{NEED}, 0xfffe")
    a(f"s_lshl_b32 s{sT}, s{KH}, 13")
    a(f"s_add_u32 s{S1O}, s{HB}, s{sT}")
    KVB = 63
    a(f"s_mov_b32 s{KVB}, s{S1O}")
    a(f"s_lshl_b32 s{sT}, s{KH}, 7")
    a(f"s_add_u32 s{sT}, s{sT}, s{sT+1}")
    a(f"s_add_u32 s{sT}, s{sT}, {WS_KVF}")
    a(f"v_mov_b32 v{VPA}, s{sT}")
    a(f"s_mov_b32 s{MASK}, 0")
    if moe:
        a(f"s_cmp_lt_u32 s{sLI}, 28")
        a(f"s_cselect_b32 s{HASJ}, 1, 0")
        a(f"v_bfe_u32 v{VD2}, v0, 5, 1")
        a(f"v_lshlrev_b32 v{VD2}, 3, v{VD2}")
        a(f"v_bfe_u32 v{VT}, v0, 3, 2")
        a(f"v_add_u32 v{VD2}, v{VD2}, v{VT}")
        a(f"v_bfe_u32 v{VT}, v0, 4, 2")
        a(f"v_lshlrev_b32 v{VT}, 1, v{VT}")
        a(f"v_and_b32 v{VT+1}, 7, v0")
        a(f"v_xor_b32 v{VT}, v{VT}, v{VT+1}")
        a(f"v_lshlrev_b32 v{VT}, 4, v{VT}")
        a(f"v_mul_u32_u24 v{VD1}, 7168, v{VD2}")
        a(f"v_add_u32 v{VD1}, v{VD1}, v{VT}")
        a(f"v_lshl_add_u32 v{VD2}, v{VD2}, 11, v{VT}")
        a(f"v_lshrrev_b32 v{VFR}, 2, v0")
        a(f"v_lshlrev_b32 v{VFR}, 7, v{VFR}")
        a(f"v_bfe_u32 v{VT}, v0, 3, 2")
        a(f"s_and_b32 s{sT}, s{W}, 3")
        a(f"v_xor_b32 v{VT}, s{sT}, v{VT}")
        a(f"v_lshl_add_u32 v{VFR}, v{VT}, 5, v{VFR}")
        a(f"v_and_b32 v{VT}, 3, v0")
        a(f"v_lshl_add_u32 v{VFR}, v{VT}, 3, v{VFR}")
        cg_of(a, sT)
        a(f"s_and_b32 s{sT+1}, s{sT}, 3")
        a(f"s_lshl_b32 s{sT+1}, s{sT+1}, 3")
        a(f"s_add_u32 s{sT+1}, s{sT+1}, s{W}")
        a(f"s_mul_i32 s{S1O}, s{sT+1}, {32*7168}")
        a(f"s_lshr_b32 s{sT}, s{sT}, 2")
        a(f"s_lshl_b32 s{sT}, s{sT}, 7")
        a(f"s_add_u32 s{S1O}, s{S1O}, s{sT}")
        a(f"s_lshr_b32 s{S2O}, s2, 4")
        a(f"s_mul_i32 s{S2O}, s{S2O}, 224")
        a(f"s_lshl_b32 s{sT}, s{KH}, 5")
        a(f"s_add_u32 s{S2O}, s{S2O}, s{sT}")
        a(f"s_and_b32 s{sT}, s{W}, 1")
        a(f"s_lshl_b32 s{sT}, s{sT}, 4")
        a(f"s_add_u32 s{S2O}, s{S2O}, s{sT}")
        a(f"s_and_b32 s{sT}, s{W}, 2")
        a(f"s_lshl_b32 s{sT}, s{sT}, 1")
        a(f"s_add_u32 s{S2O}, s{S2O}, s{sT}")
        a(f"s_lshl_b32 s{S2O}, s{S2O}, 11")
        a(f"s_and_b32 s{sT}, s2, 15")
        a(f"s_lshl_b32 s{sT}, s{sT}, 7")
        a(f"s_add_u32 s{S2O}, s{S2O}, s{sT}")
    a(f"v_mov_b32 v{C_AY}, 0x7fff0000")
    a(f"v_mov_b32 v{C_AY+1}, 0x7fff0000")
    t8a = opt.get("t8a", True)
    if moe and t8a:
        a(f"v_and_b32 v{VT}, 7, v0")
        a(f"v_lshlrev_b32 v{VT}, 2, v{VT}")
        a(f"v_add_u32 v{VT}, {L_IDX}, v{VT}")
        a(f"ds_read_b32 v{VT+1}, v{VT}")
    AT.attn_consts(a, R, sparse=opt.get('sparse', 1))
    for r in range(4): a(f"v_mov_b32 v{R.VB+8*3+4+r}, 0")
    a("s_waitcnt lgkmcnt(0)")
    if moe and t8a: xsel_fetch(a, vm, VT+1, 228, 236)
    a(M32(R.S0, R.KB, Q, None))
    a(M32(R.S0, R.KB+4, Q+4, R.S0))
    a("s_nop 10")

    def kv_mask(o):
        o(f"v_readfirstlane_b32 s{MASK}, v{VP}")
        o("s_nop 0")
        o(f"s_mul_i32 s{MASK}, s{MASK}, 0x10001")
        o(f"s_lshr_b32 s{MASK}, s{MASK}, s{sMT}")
    c = Asm()
    c.label(f"{name}_kvspin")
    c(f"s_mov_b32 s{sT+11}, 0")
    c.label(f"{name}_kvagain")
    apoll(c, VP, VPA)
    c(f"s_add_u32 s{sT+11}, s{sT+11}, 1")
    c(f"s_cmp_gt_u32 s{sT+11}, {SPIN_LIMIT}")
    c(f"s_cselect_b32 s{MASK}, s{NEED}, s{MASK}")
    c(f"s_cbranch_scc1 {name}_kvout")
    c("s_waitcnt vmcnt(0)")
    kv_mask(c)
    c(f"s_and_b32 s{MASK}, s{MASK}, s{NEED}")
    if opt.get("fixed"):
        c(f"s_ff1_i32_b32 s{sT+10}, s{NEED}")
        c(f"s_bitcmp1_b32 s{MASK}, s{sT+10}")
    c(f"s_cbranch_scc0 {name}_kvagain")
    c.label(f"{name}_kvout")
    c(f"s_setpc_b64 s[{RET}:{RET+1}]")
    cold.append(c)
    def next_block():
        lab = a.new_label(f"{name}_nb")
        a(f"s_and_b32 s{MASK}, s{MASK}, s{NEED}")
        if opt.get("fixed"):
            a(f"s_ff1_i32_b32 s{sT+10}, s{NEED}")
            a(f"s_bitcmp1_b32 s{MASK}, s{sT+10}")
        a(f"s_cbranch_scc1 {lab}")
        a(f"s_call_b64 s[{RET}:{RET+1}], {name}_kvspin")
        a.label(lab)
        a(f"s_ff1_i32_b32 s{KBK}, s{MASK}")
        a(f"s_bitset0_b32 s{NEED}, s{KBK}")
        a(f"s_add_u32 s{KBK}, s{KBK}, s{sMT}")
        a(f"s_and_b32 s{KBK}, s{KBK}, 15")
        a(f"s_lshl_b32 s{KBK}, s{KBK}, 14")
        a(f"s_add_u32 s{KBK}, s{KBK}, s{KVB}")
    def adv(sr_, t):
        if t & 1: a(f"s_add_u32 s{sr_}, s{sr_}, 4096")
        else: a(f"s_mov_b32 s{sr_}, s{KBK}")
    def ldK(t, half):
        if half == 0:
            if not (t & 1): next_block()
            adv(KA, t)
        a(f"buffer_load_dwordx4 {vr(R.KB+8*(t%NB)+4*half,4)}, v{VL}, {srd(sWS)}, s{KA} offen offset:{half*1024}")
        vm.issue(f"K{t}_{half}")
    def ldV(t, half):
        if half == 0: adv(VA, t)
        a(f"buffer_load_dwordx4 {vr(R.VB+8*(t%NB)+4*half,4)}, v{VL}, {srd(sWS)}, s{VA} offen offset:{2048+half*1024}")
        vm.issue(f"V{t}_{half}")

    def guarded(fn):
        lab = a.new_label(f"{name}_g")
        a(f"s_cmp_eq_u32 s{HASJ}, 0")
        a(f"s_cbranch_scc1 {lab}")
        fn()
        a.label(lab)
    def s1_dma(i):
        def f():
            m, pc = i >> 2, i & 3
            a(f"s_lshl_b32 s{sT}, s{W}, 12")
            a(f"s_add_u32 m0, s{sT}, {L_S1 + m*32768 + pc*1024}")
            a(f"s_add_u32 s{sT}, s{S1O}, {(16*(pc&1) + 4*(pc>>1))*7168}")
            a(f"buffer_load_dwordx4 v{VD1}, {srd(sWG if m == 0 else sWU)}, s{sT} offen {nt('m')} lds")
            vm.issue("s1w", 1, cond=True)
        guarded(f)
    def s2_dma(jj):
        lab = a.new_label(f"{name}_s2d")
        if jj == 3:
            a(f"s_cmp_lg_u32 s{KH}, 0")
            a(f"s_cbranch_scc1 {lab}")
        a(f"s_lshl_b32 s{sT}, s{W}, 10")
        a(f"s_add_u32 m0, s{sT}, {L_S2 + jj*8192}")
        a(f"s_add_u32 s{sT}, s{S2O}, {jj*64*2048}")
        a(f"buffer_load_dwordx4 v{VD2}, {srd(sWD)}, s{sT} offen {nt('m')} lds")
        vm.issue("s2w", 1, cond=(jj == 3))
        a.label(lab)
    def touch_wd():
        a(f"s_lshl_b32 s{sT}, s2, 3")
        a(f"s_add_u32 s{sT}, s{sT}, s{W}")
        a(f"s_mul_i32 s{sT+1}, s{sT}, 3584")
        a(f"s_lshl_b32 s{sT}, s{sT}, 10")
        a(f"v_lshlrev_b32 v{VT}, 7, v0")
        a("s_bfm_b64 exec, 28, 0")
        a(f"buffer_load_dword v{VT+4}, v{VT}, {srd(sWD)}, s{sT+1} offen")
        a("s_mov_b64 exec, 0xff")
        a(f"buffer_load_dword v{VT+5}, v{VT}, {srd(sWO)}, s{sT} offen")
        a("s_mov_b64 exec, -1")
        vm.issue("tch", 2)
    def afrag_addr(base_s):
        a(f"v_and_b32 v{VT}, 7, v0")
        a(f"v_lshlrev_b32 v{VT}, 4, v{VT}")
        a(f"v_lshrrev_b32 v{VT+1}, 4, v0")
        a(f"v_lshl_add_u32 v{VT}, v{VT+1}, 7, v{VT}")
        a(f"v_add_u32 v{VT}, s{base_s}, v{VT}")
    def chain(n0, n1, first):
        for ks in range(n0, n1):
            a(f"ds_read_b128 {vr(XSF+4*(ks&3),4)}, v{VT} offset:{ks*512}")
            for t_ in range(2):
                a(f"ds_read_b64_tr_b16 {vr(WBF+4*(ks&3)+2*t_,2)}, v{VT+2} offset:{ks*4096+t_*2048}")
        a("s_waitcnt lgkmcnt(0)")
    def mf(ks, first): a(f"v_mfma_f32_16x16x32_bf16 {vr(MACC,4)}, {vr(XSF+4*(ks&3),4)}, {vr(WBF+4*(ks&3),4)}, {'0' if first else vr(MACC,4)}")
    def out_addr(row_bytes):
        a(f"v_mul_u32_u24 v{VT+1}, {4*row_bytes}, v{VT+1}")
        a(f"v_and_b32 v{VT}, 15, v0")
        a(f"v_lshl_add_u32 v{VT}, v{VT}, 2, v{VT+1}")
    def atomics(row_bytes, tag, cond):
        a("s_bfm_b64 exec, 32, 0")
        for r in range(4):
            a(f"s_add_u32 s{sT+1}, s{sT}, {r*row_bytes}")
            a(f"buffer_atomic_add_f32 v{MACC+r}, v{VT}, {srd(sWS)}, s{sT+1} offen")
        a("s_mov_b64 exec, -1")
        vm.issue(tag, 4, cond=cond)
    def s1_compute():
        def f():
            cg_of(a, sT+2)
            a(f"s_and_b32 s{sT}, s{sT+2}, 3")
            a(f"s_lshl_b32 s{sT}, s{sT}, 12")
            a(f"s_add_u32 s{sT}, s{sT}, {L_XS}")
            afrag_addr(sT)
            a(f"s_lshl_b32 s{sT}, s{KH}, 15")
            a(f"s_add_u32 s{sT}, s{sT}, {L_S1}")
            a(f"v_add_u32 v{VT+2}, s{sT}, v{VFR}")
            chain(0, 4, True)
            for ks in range(4): mf(ks, ks == 0)
            chain(4, 8, False)
            for ks in range(4, 8): mf(ks, False)
            out_addr(14336)
            a(f"s_lshr_b32 s{sT}, s{sT+2}, 2")
            a(f"s_lshl_b32 s{sT}, s{sT}, 8")
            a(f"s_and_b32 s{sT+1}, s{W}, 3")
            a(f"s_lshl_b32 s{sT+1}, s{sT+1}, 6")
            a(f"s_add_u32 s{sT}, s{sT}, s{sT+1}")
            a(f"s_mul_i32 s{sT+1}, s{KH}, 114688")
            a(f"s_add_u32 s{sT}, s{sT}, s{sT+1}")
            a(f"s_add_u32 s{sT}, s{sT}, {WS_GU}")
            atomics(14336, "gat", True)
        guarded(f)
    def s1_flag():
        vm.wait("gat")
        def f():
            hf_addr(a, sT)
            signal(a, sT, 1, VT, VT+1)
            vm.issue("hfl", 1, cond=True)
        guarded(f)
    def one_wave(fn, tag):
        lab = a.new_label(f"{name}_w0")
        a(f"s_cmp_lg_u32 s{W}, 0")
        a(f"s_cbranch_scc1 {lab}")
        fn()
        a.label(lab)
    def s2_poll():
        def f():
            a(f"s_lshr_b32 s{sT}, s2, 4")
            a(f"s_mul_i32 s{sT}, s{sT}, 7")
            a(f"s_lshr_b32 s{sT}, s{sT}, 1")
            a(f"s_lshl_b32 s{sT}, s{sT}, 7")
            a(f"s_add_u32 s{sT}, s{sT}, {WS_HF}")
            a(f"v_lshlrev_b32 v{VT+4}, 7, v0")
            a(f"v_add_u32 v{VT+4}, s{sT}, v{VT+4}")
            apoll(a, VT+5, VT+4, 4)
        one_wave(f, "hp")
        vm.issue("hpoll", 1, cond=True)
    def s2_check():
        def f():
            vm.copy().wait("hpoll")
            acheck(a, f"{name}_hp", VT+5, VT+4, 32, 4, cold)
        one_wave(f, "hc")
    def s2_load():
        a(f"s_lshr_b32 s{sT}, s2, 4")
        a(f"s_mul_i32 s{sT}, s{sT}, 896")
        a(f"s_mul_i32 s{sT+1}, s{W}, 14336")
        a(f"s_add_u32 s{sT}, s{sT}, s{sT+1}")
        a(f"s_add_u32 s{sT}, s{sT}, {WS_GU}")
        a(f"s_add_u32 s{sT+1}, s{sT}, 114688")
        a("s_bfm_b64 exec, 56, 0")
        a(f"buffer_load_dwordx4 {vr(XSF,4)}, v{VL}, {srd(sWS)}, s{sT} offen sc1")
        a(f"buffer_load_dwordx4 {vr(XSF+4,4)}, v{VL}, {srd(sWS)}, s{sT+1} offen sc1")
        a("s_mov_b64 exec, -1")
        vm.issue("hld", 2)
    def s2_h():
        vm.wait("hld")
        Gs, Us, Tm = XSF, XSF+4, XSF+8
        for e in range(0, 4, 2):
            a(f"v_cvt_pk_bf16_f32 v{Tm}, v{Gs+e}, v{Gs+e+1}")
            a(f"v_cvt_pk_bf16_f32 v{Tm+1}, v{Us+e}, v{Us+e+1}")
            a(f"v_lshlrev_b32 v{Gs+e}, 16, v{Tm}")
            a(f"v_and_b32 v{Gs+e+1}, 0xffff0000, v{Tm}")
            a(f"v_lshlrev_b32 v{Us+e}, 16, v{Tm+1}")
            a(f"v_and_b32 v{Us+e+1}, 0xffff0000, v{Tm+1}")
        for e in range(4): a(f"v_mul_f32 v{Tm+e}, 0xbfb8aa3b, v{Gs+e}")
        for e in range(4): a(f"v_exp_f32 v{Tm+e}, v{Tm+e}")
        for e in range(4): a(f"v_add_f32 v{Tm+e}, 1.0, v{Tm+e}")
        for e in range(4): a(f"v_rcp_f32 v{Tm+e}, v{Tm+e}")
        for e in range(4): a(f"v_mul_f32 v{Gs+e}, v{Gs+e}, v{Tm+e}")
        for e in range(0, 4, 2):
            a(f"v_cvt_pk_bf16_f32 v{Tm}, v{Gs+e}, v{Gs+e+1}")
            a(f"v_lshlrev_b32 v{Gs+e}, 16, v{Tm}")
            a(f"v_and_b32 v{Gs+e+1}, 0xffff0000, v{Tm}")
        for e in range(4): a(f"v_mul_f32 v{Gs+e}, v{Gs+e}, v{Us+e}")
        a(f"v_cvt_pk_bf16_f32 v{Tm}, v{Gs}, v{Gs+1}")
        a(f"v_cvt_pk_bf16_f32 v{Tm+1}, v{Gs+2}, v{Gs+3}")
        a(f"v_lshrrev_b32 v{VT}, 1, v0")
        a(f"v_lshlrev_b32 v{VT}, 7, v{VT}")
        a(f"v_and_b32 v{VT+1}, 1, v0")
        a(f"v_lshl_add_u32 v{VT}, v{VT+1}, 3, v{VT}")
        a(f"s_lshl_b32 s{sT}, s{W}, 4")
        a(f"s_add_u32 s{sT}, s{sT}, {L_HI}")
        a(f"v_add_u32 v{VT}, s{sT}, v{VT}")
        a("s_bfm_b64 exec, 56, 0")
        a(f"ds_write_b64 v{VT}, {vr(Tm,2)}")
        a("s_mov_b64 exec, -1")
        if opt.get("dbg"):
            a(f"s_lshr_b32 s{sT}, s2, 4")
            a(f"s_mul_i32 s{sT}, s{sT}, 448")
            a(f"s_mul_i32 s{sT+1}, s{W}, 7168")
            a(f"s_add_u32 s{sT}, s{sT}, s{sT+1}")
            a(f"s_add_u32 s{sT}, s{sT}, {WS_H}")
            a(f"v_lshlrev_b32 v{VT}, 3, v0")
            a("s_bfm_b64 exec, 56, 0")
            a(f"buffer_store_dwordx2 {vr(Tm,2)}, v{VT}, {srd(sWS)}, s{sT} offen")
            a("s_mov_b64 exec, -1")
            vm.issue("dbg")
        a("s_waitcnt lgkmcnt(0)")
    def s2_compute():
        a(f"s_lshl_b32 s{sT}, s{KH}, 11")
        a(f"s_add_u32 s{sT}, s{sT}, {L_HI}")
        afrag_addr(sT)
        a(f"s_lshl_b32 s{sT}, s{KH}, 14")
        a(f"s_add_u32 s{sT}, s{sT}, {L_S2}")
        a(f"v_add_u32 v{VT+2}, s{sT}, v{VFR}")
        chain(0, 4, True)
        a(f"s_cmp_lg_u32 s{KH}, 0")
        lab = a.new_label(f"{name}_s2k")
        for ks in range(4):
            if ks == 3: a(f"s_cbranch_scc1 {lab}")
            mf(ks, ks == 0)
        a.label(lab)
        out_addr(4096)
        a(f"s_and_b32 s{sT}, s2, 15")
        a(f"s_lshl_b32 s{sT}, s{sT}, 8")
        a(f"s_and_b32 s{sT+1}, s{W}, 3")
        a(f"s_lshl_b32 s{sT+1}, s{sT+1}, 6")
        a(f"s_add_u32 s{sT}, s{sT}, s{sT+1}")
        a(f"s_add_u32 s{sT}, s{sT}, {WS_Y}")
        atomics(4096, "yat", False)
    def y_flag():
        vm.wait("yat")
        yf_addr(a, sT, sT+1)
        signal(a, sT, 1, VT, VT+1)
        vm.issue("yfl")
    def x_load():
        a(f"v_and_b32 v{VT}, 15, v0")
        a(f"s_lshl_b32 s{sT}, s{sMT}, 2")
        a(f"s_and_b32 s{sT+1}, s{W}, 3")
        a(f"s_add_u32 s{sT}, s{sT}, s{sT+1}")
        a(f"s_lshl_b32 s{sT}, s{sT}, 5")
        a(f"v_add_u32 v{VT}, s{sT}, v{VT}")
        a(f"v_lshlrev_b32 v{C_VX}, 11, v{VT}")
        a(f"v_bfe_u32 v{VT}, v0, 4, 1")
        a(f"v_lshl_add_u32 v{C_VX}, v{VT}, 5, v{C_VX}")
        a(f"v_lshrrev_b32 v{VT}, 5, v0")
        a(f"v_lshl_add_u32 v{C_VX}, v{VT}, 4, v{C_VX}")
        a(f"s_lshl_b32 s{sT}, s{sJ}, 7")
        a(f"s_lshl_b32 s{sT+1}, s{KH}, 6")
        a(f"s_add_u32 s{sT}, s{sT}, s{sT+1}")
        a(f"v_add_u32 v{C_VX}, s{sT}, v{C_VX}")
        a(f"s_mov_b32 s{sT}, 32768")
        a(f"buffer_load_dwordx4 {vr(C_XP,4)}, v{C_VX}, {srd(sX)}, 0 offen")
        a(f"buffer_load_dwordx4 {vr(C_XP+4,4)}, v{C_VX}, {srd(sX)}, s{sT} offen")
        vm.issue("xc", 2)
    RT = 58
    def route_detect():
        for i in range(8): a(f"v_readlane_b32 s{sT+i}, v{C_IX}, {i}")
        a(f"s_lshl_b32 s{sT+8}, s{sMT}, 2")
        a(f"s_and_b32 s{sT+9}, s{W}, 3")
        a(f"s_add_u32 s{sT+8}, s{sT+8}, s{sT+9}")
        a(f"s_mov_b32 s{RT}, 0")
        for i in range(8):
            a(f"s_lshr_b32 s{sT+9}, s{sT+i}, 5")
            a(f"s_cmp_eq_u32 s{sT+9}, s{sT+8}")
            a(f"s_cselect_b32 s{RT}, 1, s{RT}")
        a(f"s_cmp_lg_u32 s{RT}, 0")
        a(f"s_cbranch_scc1 {name}_rdet")
        a.label(f"{name}_rdet_done")
        vm.issue("ypoll", 1, cond=True)
        c = Asm()
        c.label(f"{name}_rdet")
        for t16 in range(2):
            c(f"v_lshrrev_b32 v{VT}, 11, v{C_VX}")
            c(f"v_add_u32 v{VT}, {16*t16}, v{VT}")
            c(f"v_mov_b32 v{C_AY+t16}, 0x7fff0000")
            c(f"v_mov_b32 v{C_WT+t16}, 0")
            c(f"v_and_b32 v{VT+1}, 0x7ff, v{C_VX}")
            c(f"v_lshlrev_b32 v{VT+1}, 1, v{VT+1}")
            c(f"v_add_u32 v{VT+1}, {WS_Y}, v{VT+1}")
            for i in range(8):
                c(f"v_readlane_b32 s{sT+8}, v{C_IX}, {8+i}")
                c(f"v_cmp_eq_u32 vcc, s{sT+i}, v{VT}")
                c(f"v_add_u32 v{VT+4}, {i*4096}, v{VT+1}")
                c(f"v_mov_b32 v{VT+5}, s{sT+8}")
                c(f"v_cndmask_b32 v{C_AY+t16}, v{C_AY+t16}, v{VT+4}, vcc")
                c(f"v_cndmask_b32 v{C_WT+t16}, v{C_WT+t16}, v{VT+5}, vcc")
        c(f"s_lshl_b32 s{sT+8}, s{sJ}, 7")
        c(f"s_add_u32 s{sT+8}, s{sT+8}, {WS_YF}")
        c(f"v_mov_b32 v{VT+4}, s{sT+8}")
        apoll(c, VT+5, VT+4)
        c(f"s_branch {name}_rdet_done")
        cold.append(c)
    def route_fetch():
        a(f"s_cmp_lg_u32 s{RT}, 0")
        a(f"s_cbranch_scc1 {name}_rfet")
        a.label(f"{name}_rfet_done")
        vm.issue("yld", 4, cond=True)
        c = Asm()
        c.label(f"{name}_rfet")
        c("s_waitcnt vmcnt(0)")
        acheck(c, f"{name}_yp", VT+5, VT+4, 128, 1, cold)
        for t16 in range(2):
            for hf in range(2):
                c(f"buffer_load_dwordx4 {vr(C_G+8*t16+4*hf,4)}, v{C_AY+t16}, {srd(sWS)}, 0 offen offset:{16*hf} sc1")
        c(f"s_branch {name}_rfet_done")
        cold.append(c)
    def wo_setup():
        a(f"v_lshrrev_b32 v{VD1}, 3, v0")
        a(f"v_lshlrev_b32 v{VD1}, 11, v{VD1}")
        a(f"v_bfe_u32 v{VT}, v0, 4, 1")
        a(f"s_bfe_u32 s{sT}, s{W}, 0x10001")
        a(f"s_lshl_b32 s{sT}, s{sT}, 1")
        a(f"v_or_b32 v{VT}, s{sT}, v{VT}")
        a(f"v_lshlrev_b32 v{VT}, 1, v{VT}")
        a(f"v_and_b32 v{VT+1}, 7, v0")
        a(f"v_xor_b32 v{VT}, v{VT}, v{VT+1}")
        a(f"v_lshl_add_u32 v{VD1}, v{VT}, 4, v{VD1}")
        a(f"s_lshl_b32 s{WOO}, s{W}, 14")
        a(f"s_lshl_b32 s{sT}, s{sJ}, 7")
        a(f"s_add_u32 s{WOO}, s{WOO}, s{sT}")
        a(f"s_lshl_b32 s{WOM}, s{W}, 10")
    def wo_dma(i, part=None):
        lab = a.new_label(f"{name}_wo")
        if part:
            a(f"s_cmp_ge_u32 s{W}, 6")
            a(f"s_cbranch_scc{1 if part == 'early' else 0} {lab}")
        a(f"s_add_u32 m0, s{WOM}, {i*8192}")
        a(f"s_add_u32 s{sT}, s{WOO}, {i*64*2048}")
        a(f"buffer_load_dwordx4 v{VD1}, {srd(sWO)}, s{sT} offen {nt('o')} lds")
        vm.issue("wo", 1, cond=bool(part))
        a.label(lab)
    FU.wo_dma = wo_dma

    sched = {}
    skip = opt.get("skip", [])
    def at(t, q, fn, tag=None):
        if tag in skip: return
        sched.setdefault((t, q), []).append(fn)
    def stag(t0, t1, fn, nm):
        if nm in skip: return
        if not opt.get("stag", True):
            at(*t0, fn); return
        sub = Asm(); sub.uid = a.uid + 1000*(len(cold) + 1)
        box = {}
        def emit(first):
            lab = a.new_label(f"{name}_st")
            a(f"s_cmp_{'lg' if first else 'eq'}_u32 s{KH}, 0")
            a(f"s_cbranch_scc1 {lab}")
            a(f"s_call_b64 s[{sT+6}:{sT+7}], {name}_{nm}")
            a.label(lab)
            if first:
                q0 = list(vm.q)
                keep = a.lines; a.lines = sub.lines
                a.label(f"{name}_{nm}")
                fn()
                a(f"s_setpc_b64 s[{sT+6}:{sT+7}]")
                a.lines = keep
                box["ops"] = [x for x in vm.q if x not in q0 or vm.q.count(x) > q0.count(x)]
                new = vm.q[len([x for x in vm.q if True]) - 0:]
                n_new = box_count(q0, vm.q)
                box["new"] = [(tg, True) for tg, _ in vm.q[len(vm.q) - n_new:]]
                vm.q = q0 + box["new"]
                cold.append(sub)
            else:
                vm.q += box["new"]
        at(*t0, lambda: emit(True)); at(*t1, lambda: emit(False))
    def box_count(q0, q1):
        n = 0
        ids0 = [x[0] for x in q0]
        for tg, _ in reversed(q1):
            if tg in ids0: break
            n += 1
        return n
    pre = {}
    chk = {}
    assert BAR == 4
    if moe:
        E = opt.get("early", 0)
        if E:
            for i in range(8): at(2 + i // 2, i & 1, lambda i=i: s1_dma(i), 'mdma')
        else:
            for i in range(8): at(3 + i, 1, lambda i=i: s1_dma(i), 'mdma')
        pre[11-E] = ["s1w"]
        stag((12-E, 0), (13-E, 0), s1_compute, "s1c")
        for i in range(4): at(16 - E + i, 0, lambda i=i: s2_dma(i), 'mdma')
        at(15-E, 0, s1_flag)
        at(18-E, 0, s2_poll, 'hp')
        chk[19-E] = s2_check
        at(20-E, 0, s2_load, 'hp')
        stag((22-E, 0), (23-E, 0), s2_h, "s2h")
        pre[23-E] = ["s2w"]
        stag((24-E, 0), (25-E, 1), s2_compute, "s2c")
        at(27-E, 1, y_flag)
        at(29, 0, route_detect)
        at(30, 0, route_fetch)
    at(opt.get("wo0", 20), 0, wo_setup)
    W0 = opt.get("wo0", 20)
    for i in range(15): at(W0 + (i*opt.get("won", 10))//15, 1, lambda i=i: wo_dma(i), 'wo')
    at(W0 + opt.get("won", 10), 1, lambda: wo_dma(15, 'early'))
    def kv_refresh_issue():
        apoll(a, VP, VPA)
        vm.issue("kvp")
    def kv_refresh_use():
        vm.wait("kvp")
        kv_mask(a)
    for t_ in opt.get("kvr", [2, 5]):
        at(t_, 0, kv_refresh_issue)
        at(t_ + 2, 0, kv_refresh_use)
    at(22, 1, x_load)
    at(30, 0, lambda: oh_setup(a, VT))
    def misc_read():
        a(f"v_and_b32 v{VT}, 15, v0")
        a(f"s_and_b32 s{sT}, s{W}, 3")
        a(f"s_lshl_b32 s{sT}, s{sT}, 5")
        a(f"v_add_u32 v{VT}, s{sT}, v{VT}")
        a(f"v_lshlrev_b32 v{VT}, 2, v{VT}")
        a(f"v_add_u32 v{VT}, {L_M}, v{VT}")
        for t16 in range(2):
            a(f"ds_read_b32 v{C_MS+2*t16}, v{VT} offset:{t16*64}")
            a(f"ds_read_b32 v{C_MS+2*t16+1}, v{VT} offset:{t16*64+512}")
        a(f"v_lshlrev_b32 v{VT}, 2, v0")
        a(f"v_add_u32 v{VT}, {L_IDX}, v{VT}")
        a(f"ds_read_b32 v{C_IX}, v{VT}")
        a("s_waitcnt lgkmcnt(0)")
    at(17 - opt.get("early", 0), 1, misc_read)

    def hooks(t, q):
        def h(pos):
            if t < 2: return
            if q == 0:
                if pos == "Mc": vm.wait(f"V{t}_0")
                if pos == "Ma+" and t + 3 < NT: ldV(t+3, 0)
                if pos == "Mb+" and t + 3 < NT: ldV(t+3, 1)
            else:
                if pos == "Ma": vm.wait(f"K{t+1}_1", f"V{t}_1")
                if pos == "Md+" and t + 4 < NT: ldK(t+4, 0)
                if pos == "Mc+" and t + 4 < NT: ldK(t+4, 1)
        return h
    def prio(t): a(f"s_setprio {3 - (t % BAR) * 4 // BAR}")
    XR, XST = 228, 236
    lab = a.new_label(f"{name}_kvf")
    a(f"s_cmp_eq_u32 s{KH}, 0")
    a(f"s_cselect_b32 s{sT}, 0, 1")
    a(f"s_cbranch_scc1 {lab}")
    a("s_setprio 3")
    a.label(lab)
    unit(a, R, 0, 0, NB); unit(a, R, 0, 1, NB)
    unit(a, R, 1, 0, NB); unit(a, R, 1, 1, NB, noqk=True)
    vm.drain()
    a(f"s_cmp_eq_u32 s{KH}, 0")
    a(f"s_cbranch_scc1 {lab}_f")
    kvf_addr(a, sT, sT+1)
    a(f"s_lshl_b32 s{sT+1}, 1, s{sMT}")
    signal(a, sT, f"s{sT+1}", VT, VT+1, "or")
    if moe and not t8a: a(f"s_branch {lab}_g")
    a.label(f"{lab}_f")
    win = moe and not t8a
    KEY, TT, CAND, XR2, XST2 = RKEY, 216, 224, 228, 244 - 0
    if win:
        a(f"s_lshl_b32 s{sT}, s{W}, 9")
        a(f"v_lshlrev_b32 v{CAND+1}, 2, v0")
        a(f"v_add_u32 v{CAND+1}, s{sT}, v{CAND+1}")
        make_keys(a, KEY, TT, CAND+1, [0, 1, 2, 3, 256, 257, 258, 259])
        a(f"v_mov_b32 v{CAND}, 0")
        for r in range(8): top8_round(a, list(range(KEY, KEY+8)), TT, CAND, sT, r)
        a(f"s_lshl_b32 s{sT}, s{W}, 5")
        a(f"s_add_u32 s{sT}, s{sT}, {L_CAND}")
        a(f"v_lshlrev_b32 v{CAND+1}, 2, v0")
        a(f"v_add_u32 v{CAND+1}, s{sT}, v{CAND+1}")
        a("s_mov_b64 exec, 0xff")
        a(f"ds_write_b32 v{CAND+1}, v{CAND}")
        a("s_mov_b64 exec, -1")
        a("s_waitcnt lgkmcnt(0)")
        a.label(f"{lab}_g")
        a.stamp(4)
        a("s_barrier")
        a(f"s_cmp_lg_u32 s{KH}, 0")
        a(f"s_cbranch_scc1 {lab}_h")
        a(f"v_and_b32 v{CAND+1}, 31, v0")
        a(f"v_lshlrev_b32 v{CAND+1}, 2, v{CAND+1}")
        a(f"v_add_u32 v{CAND+1}, {L_CAND}, v{CAND+1}")
        a(f"ds_read_b32 v{KEY}, v{CAND+1}")
        a("v_cmp_gt_u32 vcc, 32, v0")
        a("s_waitcnt lgkmcnt(0)")
        a(f"v_cndmask_b32 v{KEY}, 0, v{KEY}, vcc")
        for r in range(8): top8_round(a, [KEY], TT, CAND, sT, r)
        decode_keys(a, CAND, TT+1, TT+2, TT)
        a(f"v_lshlrev_b32 v{CAND+1}, 2, v0")
        a(f"v_add_u32 v{CAND+2}, {L_IDX}, v{CAND+1}")
        a("s_mov_b64 exec, 0xff")
        a(f"ds_write_b32 v{CAND+2}, v{TT+1}")
        a(f"ds_write_b32 v{CAND+2}, v{TT+2} offset:32")
        if opt.get("dbg"):
            a(f"s_mov_b32 s{sT}, {WS_IDX}")
            a(f"buffer_store_dword v{TT+1}, v{CAND+1}, {srd(sWS)}, s{sT} offen")
            a(f"buffer_store_dword v{TT+2}, v{CAND+1}, {srd(sWS)}, s{sT} offen offset:32")
        a("s_mov_b64 exec, -1")
        xsel_fetch(a, vm, TT+1, 196, 212, 2)
        vm.q = []
        a.label(f"{lab}_h")
    else:
        a.stamp(4)
        if moe:
            xsel_normalise(a, VT, XR, XST)
            a("s_waitcnt lgkmcnt(0)")
    a.stamp(5)
    ldK(2, 0)
    a.stamp(6)
    ldK(2, 1); ldV(2, 0); ldV(2, 1); ldK(3, 0); ldK(3, 1); ldV(3, 0); ldV(3, 1)
    ldK(4, 0); ldK(4, 1); ldV(4, 0); ldV(4, 1); ldK(5, 0); ldK(5, 1)
    if win:
        a(f"s_cmp_lg_u32 s{KH}, 0")
        a(f"s_cbranch_scc1 {lab}_i")
        a("s_waitcnt vmcnt(14)")
        xsel_normalise(a, VT, 196, 212, 2)
        a("s_waitcnt lgkmcnt(0)")
        a.label(f"{lab}_i")
    vm.wait("K2_1")
    a(M32(R.S0, R.KB+16, Q, None))
    a(M32(R.S0, R.KB+20, Q+4, R.S0))
    a("s_nop 10")
    for t in range(2, NT):
        a.trace(t, "b")
        prio(t)
        for q in range(2):
            for fn in sched.get((t, q), []): fn()
            unit(a, R, t, q, NB, hooks(t, q))
        if (t % BAR) == BAR - 1 and t != NT - 1:
            if t in pre: vm.wait(*pre[t])
            if t in chk and 'hp' not in skip: chk[t]()
            a("s_barrier")
    a("s_setprio 0")
    a.stamp(7)
    a(M32(O+16, R.VB+8*((NT-1)%NB)+4, P+4, O+16))
    a(SM(L+4, R.ONES, P, R.IDX))
    a.trace(50, "c")
    a("s_nop 7")
    a("s_nop 7")
    exchange_and_store(a, name, vm, R, opt)
    c = Asm()
    AT.attn_slow_path(c, R, name, KH, sWS, HB, s0=sT)
    cold.append(c)

def exchange_and_store(a, name, vm, R, opt):
    O, L, T, VL, P = R.O, R.L, R.T, R.VL, R.P
    a(f"v_add_f32 v{L}, v{L}, v{L+1}")
    a(f"v_add_f32 v{L+4}, v{L+4}, v{L+5}")
    a(f"s_lshl_b32 s{sT}, s{W}, 12")
    a(f"s_add_u32 s{sT}, s{sT}, {L_EX}")
    a(f"v_add_u32 v{T}, s{sT}, v{VL}")
    a(f"v_xor_b32 v{T+1}, 16384, v{T}")
    a(f"s_lshl_b32 s{sT}, s{W}, 8")
    a(f"s_add_u32 s{sT}, s{sT}, {L_LX}")
    a(f"v_lshrrev_b32 v{T+2}, 2, v{VL}")
    a(f"v_add_u32 v{T+2}, s{sT}, v{T+2}")
    a(f"v_xor_b32 v{T+3}, 1024, v{T+2}")
    a(f"s_cmp_eq_u32 s{KH}, 0")
    a(f"s_cbranch_scc1 {name}_kh0")
    for r in range(4): a(f"ds_write_b128 v{T}, {vr(O+4*r,4)} offset:{r*1024}")
    a(f"ds_write_b32 v{T+2}, v{L}")
    a("s_waitcnt lgkmcnt(0)")
    for r in range(16): a(f"v_mov_b32 v{O+r}, v{O+16+r}")
    a(f"v_mov_b32 v{L}, v{L+4}")
    a(f"s_branch {name}_khj")
    a.label(f"{name}_kh0")
    for r in range(4): a(f"ds_write_b128 v{T}, {vr(O+16+4*r,4)} offset:{r*1024}")
    a(f"ds_write_b32 v{T+2}, v{L+4}")
    a.label(f"{name}_khj")
    a("s_waitcnt lgkmcnt(0)")
    a("s_barrier")
    for r in range(4): a(f"ds_read_b128 {vr(O+16+4*r,4)}, v{T+1} offset:{r*1024}")
    a(f"ds_read_b32 v{L+4}, v{T+3}")
    otile(a, sT, sT+1)
    a(f"s_lshl_b32 s{sT}, s{sT}, 6")
    head_of(a, sT+1, sT+2)
    a(f"s_add_u32 s{sT}, s{sT}, s{sT+1}")
    a(f"s_lshl_b32 s{sT+4}, s{sT}, 10")
    a(f"s_add_u32 s{sT+4}, s{sT+4}, {WS_O}")
    a(f"v_bfe_u32 v{T+4}, v0, 4, 1")
    a(f"v_lshlrev_b32 v{T+4}, 15, v{T+4}")
    a(f"v_lshrrev_b32 v{T+5}, 5, v0")
    a(f"v_lshl_add_u32 v{T+4}, v{T+5}, 9, v{T+4}")
    a(f"v_and_b32 v{T+5}, 15, v0")
    a(f"v_lshl_add_u32 v{T+4}, v{T+5}, 4, v{T+4}")
    a("s_waitcnt lgkmcnt(0)")
    a("s_barrier")
    a.trace(51, "c")
    for r in range(16): a(f"v_add_f32 v{O+r}, v{O+r}, v{O+16+r}")
    a(f"v_add_f32 v{L}, v{L}, v{L+4}")
    a(f"v_mov_b32 v{T+1}, 0")
    for r in range(16): a(f"v_fmac_f32 v{T+1}, 0, v{O+r}")
    a(f"s_mov_b32 s{sT}, 0x2b800000")
    a(f"s_mov_b32 s{sT+1}, 0x5d800000")
    a(f"v_cmp_nle_f32 s[{sT+6}:{sT+7}], s{sT}, v{L}")
    a(f"v_cmp_nge_f32 s[{sT+2}:{sT+3}], s{sT+1}, v{L}")
    a(f"v_cmp_u_f32 vcc, v{T+1}, v{T+1}")
    a(f"s_or_b64 s[{sT+6}:{sT+7}], s[{sT+6}:{sT+7}], s[{sT+2}:{sT+3}]")
    a(f"s_or_b64 s[{sT+6}:{sT+7}], s[{sT+6}:{sT+7}], vcc")
    a(f"s_cmp_lg_u64 s[{sT+6}:{sT+7}], 0")
    a(f"s_cbranch_scc1 {name}_slow")
    a.label(f"{name}_fin")
    a(f"v_rcp_f32 v{T}, v{L}")
    a("s_nop 0")
    for jj in range(2):
        for e_ in range(4):
            r0 = O + 8*jj + 2*e_
            a(f"v_mul_f32 v{r0}, v{r0}, v{T}")
            a(f"v_mul_f32 v{r0+1}, v{r0+1}, v{T}")
            a(f"v_cvt_pk_bf16_f32 v{P+4*jj+e_}, v{r0}, v{r0+1}")
        a(f"buffer_store_dwordx4 {vr(P+4*jj,4)}, v{T+4}, {srd(sWS)}, s{sT+4} offen offset:{jj*256} sc1")
    vm.issue("ost", 2)
    a.trace(52, "c")

def phaseC(a, name, cold, opt, vm):
    H = OH
    ACC, WB = 4, 36
    XP, VX, MS = C_XP, C_VX, C_MS
    VL2, G, WA, WG, T = 1, C_G, 228, 232, 240
    moe = opt.get("moe", True)
    a(f"v_lshrrev_b32 v{T+1}, 4, v0")
    a(f"v_and_b32 v{T+6}, 1, v{T+1}")
    a(f"v_lshlrev_b32 v{T+7}, 4, v{T+6}")
    a(f"v_lshrrev_b32 v{T+8}, 1, v{T+1}")
    a(f"v_lshl_add_u32 v{T+7}, v{T+8}, 2, v{T+7}")
    a(f"v_bfe_u32 v{T+8}, v0, 2, 2")
    a(f"v_add_u32 v{T+7}, v{T+7}, v{T+8}")
    a(f"v_lshlrev_b32 v{T+7}, 7, v{T+7}")
    a(f"v_and_b32 v{T+8}, 3, v0")
    a(f"v_lshl_add_u32 v{T+7}, v{T+8}, 3, v{T+7}")
    a(f"v_lshlrev_b32 v{T+6}, 1, v{T+6}")
    a(f"v_bfe_u32 v{T+8}, v0, 3, 1")
    a(f"v_or_b32 v{T+6}, v{T+6}, v{T+8}")
    a(f"v_lshl_add_u32 v{T+7}, v{T+6}, 5, v{T+7}")
    a(f"s_lshl_b32 s{sT}, s{KH}, 16")
    a(f"v_add_u32 v{WA}, s{sT}, v{T+7}")
    for ct in range(1, 4): a(f"v_xor_b32 v{WA+ct}, {ct*32}, v{WA}")
    of_addr(a, sT, sT+1)
    a.trace(53, "c")
    vm.drain()
    a.trace(54, "c")
    signal(a, sT, f"s{sT+1}", T+6, T+7, "or")
    a.stamp(8)
    FU.wo_dma(15, 'late')
    oh_poll(a, vm)
    c = Asm()
    c.label(f"{name}_ospin")
    c(f"s_mov_b32 s{sT+11}, 0")
    c.label(f"{name}_oagain")
    apoll(c, H.VPo, H.VPa)
    c(f"s_add_u32 s{sT+11}, s{sT+11}, 1")
    c(f"s_cmp_gt_u32 s{sT+11}, {SPIN_LIMIT}")
    c(f"s_cselect_b32 s{H.MASK}, s{H.NEED}, s{H.MASK}")
    c(f"s_cbranch_scc1 {name}_oout")
    c("s_waitcnt vmcnt(0)")
    oh_ready(c)
    c(f"s_cbranch_scc0 {name}_oagain")
    c.label(f"{name}_oout")
    c(f"s_setpc_b64 s[{H.RET}:{H.RET+1}]")
    cold.append(c)
    def ogroup(g):
        lab = a.new_label(f"{name}_og")
        a(f"s_cmp_lg_u32 s{H.MASK}, 0")
        a(f"s_cbranch_scc1 {lab}")
        a(f"s_call_b64 s[{H.RET}:{H.RET+1}], {name}_ospin")
        a.label(lab)
        oh_take(a, g)
        for i in range(4*g, 4*g+4): vm.issue(f"O{i}", 2)
    def xn(o, t16, p, g0, g1):
        o(f"v_lshlrev_b32 v{g0}, 16, v{XP+4*t16+p}")
        o(f"v_and_b32 v{g1}, 0xffff0000, v{XP+4*t16+p}")
        o(f"v_sub_f32 v{g0}, v{g0}, v{MS+2*t16}")
        o(f"v_sub_f32 v{g1}, v{g1}, v{MS+2*t16}")
        o(f"v_cvt_pk_bf16_f32 v{T+6}, v{g0}, v{g1}")
        o(f"v_lshlrev_b32 v{g0}, 16, v{T+6}")
        o(f"v_and_b32 v{g1}, 0xffff0000, v{T+6}")
        o(f"v_mul_f32 v{g0}, v{g0}, v{MS+2*t16+1}")
        o(f"v_mul_f32 v{g1}, v{g1}, v{MS+2*t16+1}")
        o(f"v_cvt_pk_bf16_f32 v{T+6}, v{g0}, v{g1}")
        o(f"v_lshlrev_b32 v{g0}, 16, v{T+6}")
        o(f"v_and_b32 v{g1}, 0xffff0000, v{T+6}")
    if moe:
        a("s_cmp_lg_u32 s58, 0")
        a(f"s_cbranch_scc1 {name}_routed")
    for t16 in range(2):
        for p in range(4): xn(a, t16, p, G + 8*t16 + 2*p, G + 8*t16 + 2*p + 1)
    if moe:
        a.label(f"{name}_routed_done")
        c = Asm()
        c.label(f"{name}_routed")
        for t16 in range(2):
            for p in range(4):
                g0, g1 = G + 8*t16 + 2*p, G + 8*t16 + 2*p + 1
                c(f"v_cvt_pk_bf16_f32 v{T+7}, v{g0}, v{g1}")
                c(f"v_lshlrev_b32 v{g0}, 16, v{T+7}")
                c(f"v_and_b32 v{g1}, 0xffff0000, v{T+7}")
                c(f"v_mul_f32 v{g0}, v{g0}, v{C_WT+t16}")
                c(f"v_mul_f32 v{g1}, v{g1}, v{C_WT+t16}")
                c(f"v_cvt_pk_bf16_f32 v{T+7}, v{g0}, v{g1}")
                xn(c, t16, p, T+8, T+9)
                c(f"v_lshlrev_b32 v{g0}, 16, v{T+7}")
                c(f"v_and_b32 v{g1}, 0xffff0000, v{T+7}")
                c(f"v_add_f32 v{g0}, v{g0}, v{T+8}")
                c(f"v_add_f32 v{g1}, v{g1}, v{T+9}")
                c(f"v_cvt_pk_bf16_f32 v{T+7}, v{g0}, v{g1}")
                c(f"v_lshlrev_b32 v{g0}, 16, v{T+7}")
                c(f"v_and_b32 v{g1}, 0xffff0000, v{T+7}")
        c(f"s_branch {name}_routed_done")
        cold.append(c)
    a.trace(55, "c")
    pipe = opt.get("pipe", False)
    def look(more):
        if not any(tg == "opoll" for tg, _ in vm.q): return
        vm.wait("opoll")
        oh_ready(a)
        if more and pipe: oh_poll(a, vm)
    def silu(b):
        for e in range(8): a(f"v_mul_f32 v{T+6+e}, 0xbfb8aa3b, v{G+b+e}")
        for e in range(8): a(f"v_exp_f32 v{T+6+e}, v{T+6+e}")
        for e in range(8): a(f"v_add_f32 v{T+6+e}, 1.0, v{T+6+e}")
        for e in range(8): a(f"v_rcp_f32 v{T+6+e}, v{T+6+e}")
        for e in range(8): a(f"v_mul_f32 v{G+b+e}, v{G+b+e}, v{T+6+e}")
    look(True)
    if opt.get("bar1", True): a("s_barrier")
    if DIAG and TRACE: a(f"v_writelane_b32 v255, s{H.RAW}, 2")
    ogroup(0)
    a.trace(56, "c")
    silu(0); silu(8)
    look(True)
    ogroup(1)
    a.trace(40, "c")
    if not opt.get("bar1", True): a("s_barrier")
    a.trace(42, "c")
    def wgroup(g):
        a(f"s_lshl_b32 s{sT}, s{H.GIDS[g]}, 14")
        for ct in range(4): a(f"v_add_u32 v{WG+ct}, s{sT}, v{WA+ct}")
    def wreads(i):
        return [f"ds_read_b64_tr_b16 {vr(WB+16*(i&1)+4*ct+2*t_,2)}, v{WG+ct} offset:{(i%4)*4096+t_*1024}" for ct in range(4) for t_ in range(2)]
    wgroup(0)
    a(*wreads(0))
    a.trace(58, "c")
    G2, G3 = opt.get("g23", [1, 4])
    for i in range(16):
        if i == G2: look(True); ogroup(2)
        if i == G3: look(False); ogroup(3)
        if i < 15 and (i + 1) % 4 == 0: wgroup((i + 1) // 4)
        r = wreads(i+1) if i < 15 else []
        vm.wait(f"O{i}")
        a("s_waitcnt lgkmcnt(0)")
        if i == 0: a.trace(62, "c")
        if i == 8: a.trace(63, "c")
        k = 0
        for ct in range(4):
            for t16 in range(2):
                d = vr(ACC+16*t16+4*ct, 4)
                a(f"v_mfma_f32_16x16x32_bf16 {d}, {vr(WB+16*(i&1)+4*ct,4)}, {vr(H.SLOT[i//4]+8*(i%4)+4*t16,4)}, {d if i else 0}")
                if r: a(r[k])
                k += 1
    a.trace(61, "c")
    EX = 131072
    a(f"s_lshl_b32 s{sT}, s{W}, 12")
    a(f"s_add_u32 s{sT}, s{sT}, {EX}")
    a(f"s_xor_b32 s{sT+1}, s{sT}, 16384")
    a(f"v_add_u32 v{T}, s{sT}, v{VL2}")
    a(f"v_add_u32 v{T+1}, s{sT+1}, v{VL2}")
    a(f"s_cmp_eq_u32 s{KH}, 0")
    a("s_nop 3")
    a(f"s_cbranch_scc1 {name}_ck0")
    for t16 in range(2):
        for cc in range(2): a(f"ds_write_b128 v{T}, {vr(ACC+16*t16+4*cc,4)} offset:{(2*t16+cc)*1024}")
    a("s_waitcnt lgkmcnt(0)")
    for t16 in range(2):
        for r in range(8): a(f"v_mov_b32 v{ACC+16*t16+r}, v{ACC+16*t16+8+r}")
    a(f"s_branch {name}_ckj")
    a.label(f"{name}_ck0")
    for t16 in range(2):
        for cc in range(2): a(f"ds_write_b128 v{T}, {vr(ACC+16*t16+8+4*cc,4)} offset:{(2*t16+cc)*1024}")
    a.label(f"{name}_ckj")
    XF = 68
    for t16 in range(2):
        for p in range(4):
            a(f"v_lshlrev_b32 v{XF+8*t16+2*p}, 16, v{XP+4*t16+p}")
            a(f"v_and_b32 v{XF+8*t16+2*p+1}, 0xffff0000, v{XP+4*t16+p}")
    a("s_waitcnt lgkmcnt(0)")
    a("s_barrier")
    for t16 in range(2):
        for cc in range(2): a(f"ds_read_b128 {vr(ACC+16*t16+8+4*cc,4)}, v{T+1} offset:{(2*t16+cc)*1024}")
    a(f"s_mov_b32 s{sT}, 32768")
    for t16 in range(2):
        b = ACC + 16*t16
        a(f"s_waitcnt lgkmcnt({2-2*t16})")
        for r in range(8): a(f"v_add_f32 v{b+r}, v{b+r}, v{b+8+r}")
        for r in range(4): a(f"v_permlane16_swap_b32 v{b+r}, v{b+4+r}")
        for e in range(8): a(f"v_fmac_f32 v{XF+8*t16+e}, v{b+e}, v{G+8*t16+e}")
        for p in range(4): a(f"v_cvt_pk_bf16_f32 v{XP+4*t16+p}, v{XF+8*t16+2*p}, v{XF+8*t16+2*p+1}")
        a(f"buffer_store_dwordx4 {vr(XP+4*t16,4)}, v{VX}, {srd(sOUT)}, {'0' if t16 == 0 else f's{sT}'} offen {'nt' if 's' in opt.get('nt', 'msl') else ''}")
```

```python
import os
from asmlib import *
from layout import *
from k_top8 import DPPS, make_keys, decode_keys
from k_attn import M32, M16
import k_attn2 as AT
from k_moe import pi_row, silu_bf16, round_bf16

QSCALE = 0x3e8293ee
sX, sWQ, sWS, sWR, sDBG, sWG, sWU, sWD, sWO, sOUT = 4, 8, 12, 16, 20, 24, 28, 32, 36, 40
sJ, sMT, sLI, sXC = 44, 45, 46, 47
sIDX, sWT = 48, 56
sT = 64
W = 3
SLOT, WOFF = 40960, 16384
L_Q, L_XS, L_MISC = 122880, 139264, 159744
L_M, L_RS, L_CS, L_CAND, L_IDX, L_H = L_MISC, L_MISC+512, L_MISC+1024, L_MISC+1792, L_MISC+1920, L_MISC+2048
L_ST, L_TK = L_MISC+3072, L_MISC+3200
LDS_BYTES = 163840
SPIN_LIMIT = 400000
RKEY = 208

def srd(r): return f"s[{r}:{r+3}]"

def wsum(a, r, sdst, op="add_f32"):
    for ctl in DPPS:
        bc = " bound_ctrl:0" if ctl.startswith("row_shr") and op == "add_f32" else ""
        a("s_nop 1")
        a(f"v_{op}_dpp v{r}, v{r}, v{r} {ctl}{bc}")
    a("s_nop 0")
    a(f"v_readlane_b32 s{sdst}, v{r}, 63")
    a("s_nop 1")

def ln_rows2(a, vm, X, WR, XB, T, voff, dbg, n=2):
    R2 = range(n)
    nop = "s_nop 0" if n == 2 else "s_nop 1"
    F_ = lambda i, e: XB + 16*i + e
    T_ = lambda i, k: T + 6*i + k
    def wsum2(k, sd):
        for ctl in DPPS:
            bc = " bound_ctrl:0" if ctl.startswith("row_shr") else ""
            a(nop)
            for i in R2: a(f"v_add_f32_dpp v{T_(i,k)}, v{T_(i,k)}, v{T_(i,k)} {ctl}{bc}")
        a("s_nop 0")
        for i in R2: a(f"v_readlane_b32 s{sT+3*i+sd}, v{T_(i,k)}, 63")
        a(nop)
    for i in R2:
        for p in range(8):
            a(f"v_lshlrev_b32 v{F_(i,2*p)}, 16, v{X+8*i+p}")
            a(f"v_and_b32 v{F_(i,2*p+1)}, 0xffff0000, v{X+8*i+p}")
    P2 = lambda r: vr(r, 2)
    for i in R2: a(f"v_pk_add_f32 {P2(T_(i,4))}, {P2(F_(i,0))}, {P2(F_(i,2))}")
    for e in range(4, 16, 2):
        for i in R2: a(f"v_pk_add_f32 {P2(T_(i,4))}, {P2(T_(i,4))}, {P2(F_(i,e))}")
    for i in R2: a(f"v_add_f32 v{T_(i,0)}, v{T_(i,4)}, v{T_(i,5)}")
    a("s_nop 0")
    wsum2(0, 0)
    for i in R2:
        a(f"v_mov_b32 v{T_(i,0)}, s{sT+3*i}")
    for i in R2:
        a(f"v_mul_f32 v{T_(i,0)}, 0x3a800000, v{T_(i,0)}")
    BC = "op_sel_hi:[1,0] neg_lo:[0,1] neg_hi:[0,1]"
    for e in range(0, 16, 2):
        for i in R2: a(f"v_pk_add_f32 {P2(T_(i,2))}, {P2(F_(i,e))}, {P2(T_(i,0))} {BC}")
        for i in R2:
            if e == 0: a(f"v_pk_mul_f32 {P2(T_(i,4))}, {P2(T_(i,2))}, {P2(T_(i,2))}")
            else: a(f"v_pk_fma_f32 {P2(T_(i,4))}, {P2(T_(i,2))}, {P2(T_(i,2))}, {P2(T_(i,4))}")
    for i in R2: a(f"v_add_f32 v{T_(i,1)}, v{T_(i,4)}, v{T_(i,5)}")
    a("s_nop 0")
    wsum2(1, 0)
    seq = lambda i: [
        f"v_mov_b32 v{T_(i,1)}, s{sT+3*i}",
        f"v_mul_f32 v{T_(i,1)}, 0x3a800000, v{T_(i,1)}",
        f"v_cvt_pk_bf16_f32 v{T_(i,2)}, v{T_(i,0)}, v{T_(i,1)}",
        f"v_lshlrev_b32 v{T_(i,0)}, 16, v{T_(i,2)}",
        f"v_and_b32 v{T_(i,1)}, 0xffff0000, v{T_(i,2)}",
        f"v_add_f32 v{T_(i,1)}, 0x3727c5ac, v{T_(i,1)}",
        f"v_cvt_pk_bf16_f32 v{T_(i,1)}, v{T_(i,1)}, v{T_(i,1)}",
        f"v_and_b32 v{T_(i,1)}, 0xffff0000, v{T_(i,1)}",
        f"v_sqrt_f32 v{T_(i,1)}, v{T_(i,1)}",
        f"v_readfirstlane_b32 s{sT+3*i}, v{T_(i,0)}",
        f"v_cvt_pk_bf16_f32 v{T_(i,1)}, v{T_(i,1)}, v{T_(i,1)}",
        f"v_and_b32 v{T_(i,1)}, 0xffff0000, v{T_(i,1)}",
        f"v_rcp_f32 v{T_(i,1)}, v{T_(i,1)}",
        f"v_mov_b32 v{T_(i,3)}, 0"]
    for xs in zip(*[seq(i) for i in R2]): a(*xs)
    if n == 1: a("s_nop 0")
    for p in range(8):
        st = lambda i: [
            f"v_pk_add_f32 {P2(F_(i,2*p))}, {P2(F_(i,2*p))}, {P2(T_(i,0))} {BC}",
            f"v_cvt_pk_bf16_f32 v{T_(i,2)}, v{F_(i,2*p)}, v{F_(i,2*p+1)}",
            f"v_lshlrev_b32 v{F_(i,2*p)}, 16, v{T_(i,2)}",
            f"v_and_b32 v{F_(i,2*p+1)}, 0xffff0000, v{T_(i,2)}",
            f"v_pk_mul_f32 {P2(F_(i,2*p))}, {P2(F_(i,2*p))}, {P2(T_(i,0))} op_sel:[0,1] op_sel_hi:[1,1]",
            f"v_cvt_pk_bf16_f32 v{X+8*i+p}, v{F_(i,2*p)}, v{F_(i,2*p+1)}"]
        for xs in zip(*[st(i) for i in R2]): a(*xs)
    for i in R2: a(f"v_readfirstlane_b32 s{sT+3*i+1}, v{T_(i,1)}")
    if dbg:
        for i in R2:
            a(f"buffer_store_dwordx4 {vr(X+8*i,4)}, v{voff}, {srd(sWS)}, 0 offen offset:{2048*i}")
            a(f"buffer_store_dwordx4 {vr(X+8*i+4,4)}, v{voff}, {srd(sWS)}, 0 offen offset:{2048*i+1024}")
    for p in range(8):
        for i in R2: a(f"v_dot2c_f32_bf16 v{T_(i,3)}, v{X+8*i+p}, v{WR+p}")
    a("s_nop 1")
    wsum2(3, 2)
    for i in R2: a(f"v_mov_b32 v{T_(i,0)}, s{sT+3*i+2}")
    for i in R2: a(f"v_cvt_pk_bf16_f32 v{T_(i,0)}, v{T_(i,0)}, v{T_(i,0)}")
    for i in R2: a(f"v_and_b32 v{T_(i,0)}, 0xffff0000, v{T_(i,0)}")
    a(f"v_mov_b32 v{T+1}, s{sT}")
    for i in R2: a(f"v_readfirstlane_b32 s{sT+3*i+2}, v{T_(i,0)}")
    a(f"v_lshlrev_b32 v{T+2}, 5, v0")
    a(f"s_lshl_b32 s{sT+6}, s{W}, {n+1}")
    a(f"s_add_u32 s{sT+6}, s{sT+6}, {L_ST}")
    a(f"v_add_u32 v{T+2}, s{sT+6}, v{T+2}")
    for l in range(1, 3*n): a(f"v_writelane_b32 v{T+1}, s{sT+l}, {l}")
    if n == 2:
        for l in range(3):
            a(f"s_add_u32 s{sT+7}, s{sT+6}, {l*32+4}")
            a(f"v_writelane_b32 v{T+2}, s{sT+7}, {3+l}")
    a(f"s_mov_b64 exec, {(1 << 3*n) - 1}")
    a(f"ds_write_b32 v{T+2}, v{T+1}")
    a("s_mov_b64 exec, -1")

def ln_loads(a, vm, opt, X=96, WR=112):
    n = opt.get("lnrows", 2)
    for q in range(2*n):
        a(f"buffer_load_dwordx4 {vr(X+4*q,4)}, v95, {srd(sX)}, 0 offen offset:{q*1024} {'nt' if 'l' in opt.get('nt', 'ms') else ''}")
    for q in range(2):
        a(f"buffer_load_dwordx4 {vr(WR+4*q,4)}, v94, {srd(sWR)}, 0 offen offset:{q*1024}")
    vm.issue("lnld", 2*n + 2)

def rec_of(a, d):
    a(f"s_lshl_b32 s{d}, s{sMT}, 4")
    a(f"s_add_u32 s{d}, s{d}, s{sJ}")

def publish_stats(a, vm, T):
    t = sT
    a(f"v_mov_b32 v{T+1}, 0")
    a("s_mov_b64 exec, 0xffffff")
    a(f"ds_read_b32 v{T+1}, v{T+2}")
    a(f"s_lshl_b32 s{t}, s2, 7")
    a(f"s_add_u32 s{t}, s{t}, {WS_Y}")
    a("s_mov_b64 exec, 0xff")
    a(f"buffer_store_dwordx4 {vr(T+4,4)}, v94, {srd(sWS)}, s{t} offen sc1")
    a(f"s_mul_i32 s{t}, s2, 896")
    a(f"s_add_u32 s{t}, s{t}, {WS_GU}")
    a("s_bfm_b64 exec, 56, 0")
    a(f"buffer_store_dwordx4 {vr(T+4,4)}, v94, {srd(sWS)}, s{t} offen sc1")
    a("s_bfm_b64 exec, 44, 0")
    a("s_waitcnt lgkmcnt(0)")
    a(f"buffer_store_dword v{T+1}, v{T}, {srd(sWS)}, 0 offen sc1")
    a("s_mov_b64 exec, -1")
    vm.issue("st", 3, cond=True)

def publish_zeros(a, vm, T):
    A_, D_, U_ = T, T+1, T+2
    t = sT
    a(f"v_lshlrev_b32 v{U_}, 2, v0")
    rec_of(a, t)
    a(f"s_lshl_b32 s{t}, s{t}, 7")
    a(f"s_add_u32 s{t}, s{t}, {WS_ST}")
    a(f"v_add_u32 v{A_}, s{t}, v{U_}")
    rec_of(a, t)
    a(f"s_lshl_b32 s{t}, s{t}, 5")
    a(f"s_add_u32 s{t}, s{t}, {WS_R - 64}")
    a(f"v_cmp_le_u32 vcc, 16, v0")
    a(f"v_add_u32 v{U_}, s{t}, v{U_}")
    a("s_nop 0")
    a(f"v_cndmask_b32 v{A_}, v{A_}, v{U_}, vcc")
    rec_of(a, t+2)
    a(f"s_lshl_b32 s{t+2}, s{t+2}, 7")
    a(f"s_add_u32 s{t+2}, s{t+2}, {WS_ST + 96}")
    a(f"s_lshl_b32 s{t}, s{sJ}, 9")
    a(f"s_add_u32 s{t}, s{t}, {WS_KVF}")
    a(f"v_and_b32 v{U_}, 3, v0")
    a(f"v_lshlrev_b32 v{U_}, 7, v{U_}")
    a(f"v_add_u32 v{U_}, s{t}, v{U_}")
    a(f"v_mov_b32 v{U_+1}, s{t+2}")
    a(f"s_cmp_eq_u32 s{sMT}, 0")
    a(f"s_cselect_b64 vcc, -1, 0")
    a(f"v_cndmask_b32 v{U_}, v{U_+1}, v{U_}, vcc")
    a(f"v_cmp_le_u32 vcc, 24, v0")
    a(f"s_lshl_b32 s{t}, s{sMT}, 10")
    a(f"s_add_u32 s{t}, s{t}, {WS_OF}")
    a(f"v_cndmask_b32 v{A_}, v{A_}, v{U_}, vcc")
    a(f"v_and_b32 v{U_}, 7, v0")
    a(f"v_lshlrev_b32 v{U_}, 7, v{U_}")
    a(f"v_add_u32 v{U_}, s{t}, v{U_}")
    a(f"s_cmp_eq_u32 s{sJ}, 0")
    a(f"s_cselect_b64 vcc, -1, 0")
    a(f"v_cndmask_b32 v{U_}, v{U_+1}, v{U_}, vcc")
    a(f"v_cmp_le_u32 vcc, 32, v0")
    a(f"s_lshl_b32 s{t}, s2, 7")
    a(f"s_add_u32 s{t+1}, s{t}, {WS_HF}")
    a(f"v_cndmask_b32 v{A_}, v{A_}, v{U_}, vcc")
    a(f"s_cmp_lt_u32 s2, 56")
    a(f"s_cselect_b32 s{t+1}, s{t+1}, s{t+2}")
    a(f"v_writelane_b32 v{A_}, s{t+1}, 40")
    a(f"s_add_u32 s{t+1}, s{t}, {WS_YF}")
    a(f"s_cmp_lt_u32 s2, 16")
    a(f"s_cselect_b32 s{t+1}, s{t+1}, s{t+2}")
    a(f"v_writelane_b32 v{A_}, s{t+1}, 41")
    csf_addr(a, t, t+1)
    a(f"s_cmp_eq_u32 s{sMT}, 0")
    a(f"s_cselect_b32 s{t}, s{t}, s{t+2}")
    a(f"v_writelane_b32 v{A_}, s{t}, 42")
    a(f"s_cmp_eq_u32 s2, 0")
    a(f"s_cselect_b32 s{t}, {WS_TK}, s{t+2}")
    a(f"v_writelane_b32 v{A_}, s{t}, 43")
    for r in range(4): a(f"v_mov_b32 v{T+4+r}, 0")
    a(f"v_lshlrev_b32 v{U_}, 2, v0")
    a(f"v_add_u32 v{U_}, {L_ST}, v{U_}")

def csf_addr(a, d, t):
    a(f"s_lshl_b32 s{d}, s{sJ}, 7")
    a(f"s_add_u32 s{d}, s{d}, {WS_CSF}")
def kvf_addr(a, d, t):
    a(f"s_lshl_b32 s{d}, s{sJ}, 2")
    a(f"s_and_b32 s{t}, s{W}, 3")
    a(f"s_add_u32 s{d}, s{d}, s{t}")
    a(f"s_lshl_b32 s{d}, s{d}, 7")
    a(f"s_add_u32 s{d}, s{d}, {WS_KVF}")
def otile(a, d, t):
    a(f"s_lshl_b32 s{d}, s{sMT}, 2")
    a(f"s_and_b32 s{t}, s{W}, 2")
    a(f"s_add_u32 s{d}, s{d}, s{t}")
    a(f"s_lshr_b32 s{t}, s{W}, 2")
    a(f"s_add_u32 s{d}, s{d}, s{t}")
def head_of(a, d, t):
    a(f"s_lshl_b32 s{d}, s{sJ}, 1")
    a(f"s_and_b32 s{t}, s{W}, 1")
    a(f"s_add_u32 s{d}, s{d}, s{t}")
def of_addr(a, d, t):
    otile(a, d, t)
    a(f"s_lshl_b32 s{d}, s{d}, 1")
    a(f"s_lshr_b32 s{t}, s{sJ}, 3")
    a(f"s_add_u32 s{d}, s{d}, s{t}")
    a(f"s_lshl_b32 s{d}, s{d}, 7")
    a(f"s_add_u32 s{d}, s{d}, {WS_OF}")
    a(f"s_and_b32 s{t}, s{sJ}, 7")
    a(f"s_lshl_b32 s{t}, s{t}, 1")
    a(f"s_and_b32 s{t+1}, s{W}, 1")
    a(f"s_add_u32 s{t}, s{t}, s{t+1}")
    a(f"s_lshl_b32 s{t}, 1, s{t}")
TICKET = [False]
def cg_of(a, d):
    if TICKET[0]:
        a(f"s_mov_b32 s{d}, s{sXC}")
        return
    a(f"s_mul_i32 s{d}, s{sXC}, 28")
    a(f"s_add_u32 s{d}, s{d}, s{sLI}")
def hf_addr(a, d):
    cg_of(a, d)
    a(f"s_lshr_b32 s{d}, s{d}, 2")
    a(f"s_lshl_b32 s{d}, s{d}, 7")
    a(f"s_add_u32 s{d}, s{d}, {WS_HF}")
def yf_addr(a, d, t):
    a(f"s_and_b32 s{d}, s2, 15")
    a(f"s_lshl_b32 s{d}, s{d}, 7")
    a(f"s_add_u32 s{d}, s{d}, {WS_YF}")

def signal(a, saddr, val, v0_, v1_, op="add"):
    a(f"v_mov_b32 v{v0_}, s{saddr}")
    a(f"v_mov_b32 v{v1_}, {val}")
    a("s_mov_b64 exec, 1")
    a(f"buffer_atomic_{op} v{v1_}, v{v0_}, {srd(sWS)}, 0 offen sc1")
    a("s_mov_b64 exec, -1")

def apoll(o, vreg, vaddr, lanes=1):
    o(f"v_mov_b32 v{vreg}, 0")
    o(f"s_mov_b64 exec, {(1 << lanes) - 1}")
    o(f"buffer_atomic_or v{vreg}, v{vaddr}, {srd(sWS)}, 0 offen sc0 sc1")
    o("s_mov_b64 exec, -1")

def acheck(a, name, vreg, vaddr, want, lanes, cold):
    lab = a.new_label(name)
    def cmp(o):
        o(f"v_cmp_gt_u32 vcc, {want}, v{vreg}")
        o(f"s_and_b32 vcc_lo, vcc_lo, {(1 << lanes) - 1}")
    cmp(a)
    a(f"s_cbranch_scc1 {lab}_spin")
    a.label(f"{lab}_ok")
    c = Asm()
    c.label(f"{lab}_spin")
    c(f"s_mov_b32 s{sT+11}, 0")
    c.label(f"{lab}_again")
    apoll(c, vreg, vaddr, lanes)
    c(f"s_add_u32 s{sT+11}, s{sT+11}, 1")
    c(f"s_cmp_gt_u32 s{sT+11}, {SPIN_LIMIT}")
    c(f"s_cbranch_scc1 {lab}_ok")
    c("s_waitcnt vmcnt(0)")
    cmp(c)
    c(f"s_cbranch_scc1 {lab}_again")
    c(f"s_branch {lab}_ok")
    cold.append(c)

def poll_check(a, name, vreg, vaddr, s_srd, want, mask, cold):
    lab = a.new_label(name)
    def cmp(o):
        o(f"v_cmp_gt_u32 vcc, {want}, v{vreg}" if want != 1 else f"v_cmp_ne_u32 vcc, 1, v{vreg}")
        if mask != -1:
            o(f"s_and_b32 vcc_lo, vcc_lo, {mask & 0xffffffff:#x}")
            o(f"s_and_b32 vcc_hi, vcc_hi, {(mask >> 32) & 0xffffffff:#x}")
        o("s_cmp_lg_u64 vcc, 0")
    cmp(a)
    a(f"s_cbranch_scc1 {lab}_spin")
    a.label(f"{lab}_ok")
    c = Asm()
    c.label(f"{lab}_spin")
    c(f"s_mov_b32 s{sT+11}, 0")
    c.label(f"{lab}_again")
    c(f"buffer_load_dword v{vreg}, v{vaddr}, {srd(s_srd)}, 0 offen sc1")
    c(f"s_add_u32 s{sT+11}, s{sT+11}, 1")
    c(f"s_cmp_gt_u32 s{sT+11}, {SPIN_LIMIT}")
    c(f"s_cbranch_scc1 {lab}_ok")
    c("s_waitcnt vmcnt(0)")
    cmp(c)
    c(f"s_cbranch_scc1 {lab}_again")
    c(f"s_branch {lab}_ok")
    cold.append(c)

def top8_round(a, keys, T, cand, st, rnd):
    n = len(keys)
    if rnd == 0: a(f"s_mov_b32 s{st}, -1")
    for e in range(n):
        a(f"v_sub_u32 v{T+e}, s{st}, v{keys[e]}")
    e = 1
    while e + 1 < n:
        a(f"v_min3_u32 v{T}, v{T}, v{T+e}, v{T+e+1}")
        e += 2
    if e < n: a(f"v_min_u32 v{T}, v{T}, v{T+e}")
    wsum(a, T, st+1, "min_u32")
    a(f"s_sub_u32 s{st}, s{st}, s{st+1}")
    a(f"v_writelane_b32 v{cand}, s{st}, {rnd}")
    a(f"s_sub_u32 s{st}, s{st}, 1")

def atomise(a, tmp):
    out, grp = [], None
    for l in tmp.lines:
        s_ = l.strip()
        if grp is not None:
            grp.append(s_)
            if s_ == "s_mov_b64 exec, -1": out.append(grp); grp = None
        elif ("exec," in s_ and s_ != "s_mov_b64 exec, -1") or "saveexec" in s_: grp = [s_]
        else: out.append([s_])
    assert grp is None
    return [(lambda g=g: a(*g)) for g in out]

def ws_base(a, opt):
    off = opt.get("wsoff", 0) << 20
    if off:
        a(f"s_add_u32 s{sWS}, s{sWS}, {off:#x}")
        a(f"s_addc_u32 s{sWS+1}, s{sWS+1}, 0")

def prologue(a, name, opt):
    a("s_cmp_ge_u32 s2, 256")
    a(f"s_cbranch_scc1 {name}_done")
    a.stamp_init(); a.stamp(0)
    if opt.get("dbgtime"): a("s_memrealtime s[96:97]")
    for r, off in ((sX, A_X), (sWQ, A_WQKV), (sWS, A_WS), (sWR, A_WR), (sDBG, A_DBG), (sWG, A_WG), (sWU, A_WU),
                   (sWD, A_WD), (sWO, A_WO), (sOUT, A_OUT)):
        a(f"s_load_dwordx2 s[{r}:{r+1}], s[0:1], {off}")
    a("v_lshrrev_b32 v1, 6, v0")
    a("v_and_b32 v0, 63, v0")
    a(f"v_readfirstlane_b32 s{W}, v1")
    a(f"s_and_b32 s{sXC}, s2, 7")
    a(f"s_lshr_b32 s{sLI}, s2, 3")
    a(f"s_and_b32 s{sMT}, s{sXC}, 1")
    a(f"s_lshl_b32 s{sMT}, s{sMT}, 3")
    a(f"s_and_b32 s{sT}, s{sLI}, 7")
    a(f"s_add_u32 s{sMT}, s{sMT}, s{sT}")
    a(f"s_lshr_b32 s{sJ}, s{sXC}, 1")
    a(f"s_lshl_b32 s{sJ}, s{sJ}, 2")
    a(f"s_lshr_b32 s{sT}, s{sLI}, 3")
    a(f"s_add_u32 s{sJ}, s{sJ}, s{sT}")
    a(f"s_lshl_b32 s{sT+3}, s{sMT}, 4")
    a(f"s_add_u32 s{sT+3}, s{sT+3}, s{sJ}")
    n = opt.get("lnrows", 2)
    a(f"s_lshl_b32 s{sT+3}, s{sT+3}, {4-n}")
    a(f"s_add_u32 s{sT+3}, s{sT+3}, s{W}")
    a(f"s_lshl_b32 s{sT}, s{sT+3}, {10+n}")
    a("v_lshlrev_b32 v94, 4, v0")
    a(f"v_add_u32 v95, s{sT}, v94")
    for r, n in ((sX, S*D*2), (sWQ, D*3*D*2), (sWS, WS_USED), (sWR, D*2), (sDBG, 256), (sWG, D*F*2), (sWU, D*F*2),
                 (sWD, D*F*2), (sWO, D*D*2), (sOUT, S*D*2)):
        a(f"s_mov_b32 s{r+2}, {n:#x}")
        a(f"s_mov_b32 s{r+3}, 0x00020000")

def phaseA_loader(a, name, cold, opt):
    vm = VM(a)
    LW, XB_, WB_, SX, SW = 48, 49, 50, 51, 52
    a(f"s_sub_u32 s{LW}, s{W}, 4")
    a("v_lshrrev_b32 v16, 3, v0")
    a("v_and_b32 v17, 7, v0")
    a(f"s_lshl_b32 s{sT}, s{sMT}, 7")
    a(f"s_lshl_b32 s{sT+1}, s{LW}, 5")
    a(f"s_add_u32 s{sT}, s{sT}, s{sT+1}")
    a(f"v_add_u32 v18, s{sT}, v16")
    a("v_lshlrev_b32 v18, 11, v18")
    a("v_lshrrev_b32 v19, 1, v16")
    a("v_xor_b32 v20, v19, v17")
    a("v_lshl_add_u32 v1, v20, 4, v18")
    a("v_xor_b32 v20, 4, v20")
    a("v_lshl_add_u32 v2, v20, 4, v18")
    a(f"v_add_u32 v2, {8*2048}, v2")
    a(f"v_add_u32 v3, {16*2048}, v1")
    a(f"v_add_u32 v4, {16*2048}, v2")
    a(f"s_lshl_b32 s{sT}, s{LW}, 4")
    a(f"v_add_u32 v18, s{sT}, v16")
    a("v_mul_u32_u24 v18, 6144, v18")
    a(f"s_lshl_b32 s{sT}, s{sJ}, 7")
    a(f"v_add_u32 v18, s{sT}, v18")
    a("v_bfe_u32 v19, v0, 4, 1")
    a("v_lshlrev_b32 v19, 1, v19")
    a("v_xor_b32 v19, v19, v17")
    a("v_lshl_add_u32 v5, v19, 4, v18")
    a("v_xor_b32 v19, 4, v19")
    a("v_lshl_add_u32 v6, v19, 4, v18")
    a(f"v_add_u32 v6, {8*6144}, v6")
    a(f"s_lshl_b32 s{XB_}, s{LW}, 12")
    a(f"s_lshl_b32 s{WB_}, s{LW}, 11")
    KR = 56
    SH = 57
    NS = opt.get("starts", 2)
    if opt.get("rotj", False): a(f"s_add_u32 s{KR}, s{sMT}, s{sJ}")
    else: a(f"s_mov_b32 s{KR}, s{sMT}")
    a(f"s_and_b32 s{KR}, s{KR}, {NS-1}")
    a(f"s_lshl_b32 s{KR}, s{KR}, {2 if NS == 4 else 3}")
    a(f"s_lshr_b32 s{SH}, s{sMT}, {2 if NS == 4 else 1}")
    NSH = 16 // NS
    nt = lambda k: "nt" if k in opt.get("nt", "ms") else ""
    def offsets():
        a(f"s_and_b32 s{KR}, s{KR}, 15")
        a(f"s_lshl_b32 s{SX}, s{KR}, 7")
        a(f"s_mul_i32 s{SW}, s{KR}, {64*6144}")
        a(f"s_add_u32 s{SW+1}, s{SW}, 2048")
        a(f"s_add_u32 s{SW+2}, s{SW}, 4096")
        a(f"s_add_u32 s{KR}, s{KR}, 1")
    hoist = opt.get("hoist", True)
    def issue(kt, atoms=()):
        slot = (kt % 3) * SLOT
        atoms = list(atoms)
        if not (hoist and kt >= 2): offsets()
        d = [(f"s_add_u32 m0, s{XB_}, {slot + i*1024}", f"buffer_load_dwordx4 v{1+i}, {srd(sX)}, s{SX} offen {nt('x')} lds") for i in range(4)]
        d += [(f"s_add_u32 m0, s{WB_}, {slot + WOFF + seg*8192 + i*1024}", f"buffer_load_dwordx4 v{5+i}, {srd(sWQ)}, s{SW+seg} offen {nt('w')} lds")
              for seg in range(3) for i in range(2)]
        k = 0
        for i, (m, ld) in enumerate(d):
            if not (opt.get("noload") and kt > 2):
                a(m); a("s_nop 0"); a(ld)
                vm.issue(f"T{kt}")
            k2 = (i + 1) * len(atoms) // len(d)
            for at in atoms[k:k2]: at()
            k = k2
    a("s_waitcnt lgkmcnt(0)")
    ws_base(a, opt)
    a.stamp(4)
    if opt.get("lnrows", 2) == 1:
        ln_loads(a, vm, opt)
        issue(0)
        vm.wait("lnld")
        tmp = Asm(); ln_rows2(tmp, vm, 96, 112, 120, 152, 95, opt.get("dbg"), 1)
        if opt.get("dbg"): vm.issue("dbg", 2)
        issue(1, atomise(a, tmp))
    else:
        issue(0); issue(1)
    a.stamp(5)
    a("v_lshrrev_b32 v16, 4, v0")
    a("v_bfe_u32 v17, v0, 2, 2")
    a("v_lshl_add_u32 v17, v16, 3, v17")
    a("v_lshlrev_b32 v17, 7, v17")
    a("v_and_b32 v18, 3, v0")
    a("v_lshl_add_u32 v17, v18, 3, v17")
    a("v_and_b32 v16, 1, v16")
    a("v_lshlrev_b32 v16, 1, v16")
    a("v_bfe_u32 v18, v0, 3, 1")
    a("v_or_b32 v16, v16, v18")
    a(f"s_mul_i32 s{sT+3}, s{SH}, 43")
    a(f"s_lshr_b32 s{sT+3}, s{sT+3}, 7")
    a(f"s_mul_i32 s{sT+3}, s{sT+3}, 3")
    a(f"s_sub_u32 s{sT+3}, s{SH}, s{sT+3}")
    a(f"s_mul_i32 s{sT+3}, s{sT+3}, {SLOT}")
    a(f"s_add_u32 s{sT+3}, s{sT+3}, {WOFF}")
    for i in range(3):
        a(f"s_and_b32 s{sT}, s{LW}, 1")
        a(f"s_mul_i32 s{sT}, s{sT}, 3")
        a(f"s_add_u32 s{sT}, s{sT}, {i}")
        a(f"s_and_b32 s{sT+1}, s{sT}, 1")
        a(f"s_and_b32 s{sT+2}, s{LW}, 2")
        a(f"s_or_b32 s{sT+1}, s{sT+1}, s{sT+2}")
        a(f"v_xor_b32 v18, s{sT+1}, v16")
        a(f"v_lshl_add_u32 v{10+i}, v18, 5, v17")
        a(f"s_lshr_b32 s{sT}, s{sT}, 1")
        a(f"s_lshl_b32 s{sT}, s{sT}, 13")
        a(f"s_add_u32 s{sT}, s{sT}, s{sT+3}")
        a(f"v_add_u32 v{10+i}, s{sT}, v{10+i}")
    for r in range(4): a(f"v_mov_b32 v{56+r}, 0x3f803f80")
    a(f"s_cmp_lg_u32 s{W}, 4")
    a(f"s_cbranch_scc1 {name}_nozero")
    publish_zeros(a, vm, 13 + 3)
    a.label(f"{name}_nozero")
    if opt.get("lprio", 0): a(f"s_setprio {opt.get('lprio', 0)}")
    KEY, TT, CAND = 28, 36, 44
    ST = sT + 8
    keys = list(range(KEY, KEY+8))
    a("s_waitcnt lgkmcnt(0)")
    if hoist: offsets()
    vm.wait("T0")
    a("s_barrier")
    a.stamp(1)
    assert opt.get("p0", 7) <= 7
    t8a = opt.get("t8a", True)
    P0 = opt.get("p0", 7)
    cb = Asm()
    cb.label(f"{name}_colsum")
    for i in range(3):
        for ks in range(2):
            for t_ in range(2):
                cb(f"ds_read_b64_tr_b16 {vr(68+8*i+4*ks+2*t_,2)}, v{10+i} offset:{ks*4096+t_*512}")
    cb(f"s_lshl_b32 s{sT}, s{sJ}, 4")
    cb(f"s_add_u32 s{sT}, s{sT}, s{sMT}")
    cb(f"s_lshl_b32 s{sT}, s{sT}, 2")
    cb(f"s_add_u32 s{sT}, s{sT}, s{LW}")
    cb(f"s_mul_i32 s{sT}, s{sT}, 192")
    cb(f"s_add_u32 s{sT}, s{sT}, {WS_CSP}")
    cb("v_lshlrev_b32 v47, 2, v0")
    cb("s_waitcnt lgkmcnt(0)")
    for ks in range(2):
        for i in range(3):
            cb(f"v_mfma_f32_16x16x32_bf16 {vr(28+4*i,4)}, v[56:59], {vr(68+8*i+4*ks,4)}, {vr(28+4*i,4) if ks else 0}")
    cb("s_nop 7")
    cb("s_mov_b64 exec, 0xffff0000")
    cb("v_mov_b32 v28, v32")
    cb("s_bfm_b64 exec, 16, 32")
    cb("v_mov_b32 v28, v36")
    cb("s_bfm_b64 exec, 48, 0")
    cb(f"buffer_store_dword v28, v47, {srd(sWS)}, s{sT} offen sc1")
    cb("s_mov_b64 exec, -1")
    cb("s_setpc_b64 s[70:71]")
    cold.append(cb)
    def lines(fn):
        tmp = Asm(); tmp.uid = a.uid; fn(tmp); a.uid = tmp.uid
        out, grp = [], None
        for l in tmp.lines:
            s_ = l.strip()
            if grp is not None:
                grp.append(s_)
                if s_ == "s_mov_b64 exec, -1": out.append(grp); grp = None
            elif ("exec," in s_ and s_ != "s_mov_b64 exec, -1") or "saveexec" in s_: grp = [s_]
            else: out.append([s_])
        assert grp is None
        return [(lambda g=g: a(*g)) for g in out]
    def cs_load(i):
        def f():
            a(f"s_mul_i32 s{sT+2}, s{sJ}, {16*768}")
            a(f"s_mul_i32 s{sT+3}, s{LW}, 192")
            a(f"s_add_u32 s{sT+2}, s{sT+2}, s{sT+3}")
            a(f"s_add_u32 s{sT+2}, s{sT+2}, {WS_CSP}")
            a(f"buffer_load_dwordx4 {vr(60+4*i,4)}, v51, {srd(sWS)}, s{sT+2} offen offset:{i*768} sc1")
            vm.issue("csl")
        return f
    for kt in range(16):
        atoms = []
        def after_issue(kt=kt):
            if kt == 0:
                a(f"s_cmp_lg_u32 s{W}, 4")
                a(f"s_cbranch_scc1 {name}_nopub")
                publish_stats(a, vm, 16)
                a.label(f"{name}_nopub")
            if kt < NSH:
                lab = a.new_label(f"{name}_cs")
                a(f"s_cmp_lg_u32 s{SH}, {kt}")
                a(f"s_cbranch_scc1 {lab}")
                a(f"s_call_b64 s[70:71], {name}_colsum")
                a.label(lab)
                vm.issue("cs", 1, cond=True)
        if kt == 2:
            a(f"s_cmp_lg_u32 s{W}, 4")
            a(f"s_cbranch_scc1 {name}_nosig")
            a(f"s_lshl_b32 s{sT}, s{sMT}, 4")
            a(f"v_mov_b32 v45, s{sT}")
            a("v_mov_b32 v46, 1")
            a("s_mov_b64 exec, 1")
            a(f"buffer_atomic_add v46, v45, {srd(sDBG)}, 0 offen sc1")
            a("s_mov_b64 exec, -1")
            a.label(f"{name}_nosig")
            vm.issue("sig", 1, cond=True)
        if kt == P0:
            a("v_and_b32 v45, 15, v0")
            a("v_lshlrev_b32 v45, 4, v45")
            a(f"buffer_load_dword v46, v45, {srd(sDBG)}, 0 offen sc1")
            vm.issue("poll")
        if kt == P0 + 1:
            poll_check(a, f"{name}_p1", 46, 45, sDBG, 16, -1, cold)
            if t8a:
                a(f"s_lshl_b32 s{sT}, s{LW}, 11")
                a(f"s_add_u32 s{sT}, s{sT}, {WS_R}")
                a(f"buffer_load_dwordx4 {vr(KEY,4)}, v94, {srd(sWS)}, s{sT} offen sc1")
                a(f"buffer_load_dwordx4 {vr(KEY+4,4)}, v94, {srd(sWS)}, s{sT} offen offset:1024 sc1")
            a(f"s_lshl_b32 s{sT}, s{sMT}, 11")
            a(f"s_and_b32 s{sT+1}, s{LW}, 1")
            a(f"s_lshl_b32 s{sT+1}, s{sT+1}, 10")
            a(f"s_add_u32 s{sT}, s{sT}, s{sT+1}")
            a(f"s_add_u32 s{sT}, s{sT}, {WS_ST}")
            a("v_lshrrev_b32 v47, 3, v0")
            a("v_lshlrev_b32 v47, 7, v47")
            a("v_and_b32 v48, 7, v0")
            a("v_lshl_add_u32 v47, v48, 2, v47")
            a(f"buffer_load_dword v54, v47, {srd(sWS)}, s{sT} offen sc1")
            a(f"buffer_load_dword v55, v47, {srd(sWS)}, s{sT} offen offset:32 sc1")
            vm.issue("side", 4 if t8a else 2)
        CS0 = max(P0 + 1, NSH + 2)
        if kt == CS0:
            lab = a.new_label(f"{name}_cf")
            a(f"s_cmp_lg_u32 s{W}, 4")
            a(f"s_cbranch_scc1 {lab}")
            csf_addr(a, sT, sT+1)
            signal(a, sT, 1, 52, 53)
            a.label(lab)
            vm.issue("csf", 1, cond=True)
        if kt == CS0 + 1 + (CS0 < 10):
            csf_addr(a, sT, sT+1)
            a(f"v_mov_b32 v52, s{sT}")
            apoll(a, 53, 52)
            vm.issue("poll")
            def f(o):
                o("v_and_b32 v51, 15, v0")
                o("v_cmp_gt_u32 vcc, 12, v51")
                o("v_lshlrev_b32 v51, 4, v51")
                o("v_lshrrev_b32 v50, 4, v0")
                o("v_mul_u32_u24 v50, 4*768, v50")
                o("v_add_u32 v51, v51, v50")
                o("v_mov_b32 v50, 0x7fff0000")
                o("v_cndmask_b32 v51, v50, v51, vcc")
            atoms += lines(f)
        CS1 = CS0 + 2 + (CS0 < 10)
        if kt == CS1: acheck(a, f"{name}_p2", 53, 52, 16, 1, cold)
        if CS1 <= kt <= CS1 + 1:
            atoms += [cs_load(i) for i in ((0, 1), (2, 3))[kt - CS1]]
        if opt.get("ticket", False) and kt == 13:
            lab = a.new_label(f"{name}_tk")
            a(f"s_cmp_lg_u32 s{W}, 4")
            a(f"s_cbranch_scc1 {lab}")
            a(f"v_mov_b32 v24, {WS_TK}")
            a("v_mov_b32 v25, 1")
            a("s_mov_b64 exec, 1")
            a(f"buffer_atomic_add v25, v24, {srd(sWS)}, 0 offen sc0 sc1")
            a("s_mov_b64 exec, -1")
            a.label(lab)
            vm.issue("tk", 1, cond=True)
        if opt.get("ticket", False) and kt == 15:
            lab = a.new_label(f"{name}_tw")
            a(f"s_cmp_lg_u32 s{W}, 4")
            a(f"s_cbranch_scc1 {lab}")
            a(f"v_mov_b32 v24, {L_TK}")
            a("s_mov_b64 exec, 1")
            a("ds_write_b32 v24, v25")
            a("s_mov_b64 exec, -1")
            a.label(lab)
        if kt == 15:
            a(f"s_and_b32 s{sT}, s{LW}, 1")
            a(f"s_lshl_b32 s{sT}, s{sT}, 8")
            a(f"s_add_u32 s{sT}, s{sT}, {L_M}")
            a("v_lshlrev_b32 v47, 2, v0")
            a(f"v_add_u32 v47, s{sT}, v47")
            a("ds_write_b32 v47, v54")
            a("ds_write_b32 v47, v55 offset:512")
        if kt == P0 + 2:
            def f(o):
                if t8a:
                    o(f"s_lshl_b32 s{sT}, s{LW}, 9")
                    o("v_lshlrev_b32 v47, 2, v0")
                    o(f"v_add_u32 v47, s{sT}, v47")
                    make_keys(o, KEY, TT, 47, [0, 1, 2, 3, 256, 257, 258, 259])
                    o(f"v_mov_b32 v{CAND}, 0")
                    top8_round(o, keys, TT, CAND, ST, 0)
            atoms += lines(f)
        if t8a and P0 + 3 <= kt <= P0 + 6:
            rr = ((1, 2), (3, 4), (5, 6), (7,))[kt - P0 - 3]
            atoms += lines(lambda o: [top8_round(o, keys, TT, CAND, ST, r) for r in rr])
        def late_top8(kt=kt):
            if t8a and kt == 14:
                a(f"s_lshl_b32 s{sT}, s{LW}, 5")
                a(f"s_add_u32 s{sT}, s{sT}, {L_CAND}")
                a("v_lshlrev_b32 v47, 2, v0")
                a(f"v_add_u32 v47, s{sT}, v47")
                a("s_mov_b64 exec, 0xff")
                a(f"ds_write_b32 v47, v{CAND}")
                a("s_mov_b64 exec, -1")
                a("s_waitcnt lgkmcnt(0)")
        if t8a and kt == 15:
            a("v_and_b32 v46, 31, v0")
            a("v_lshlrev_b32 v46, 2, v46")
            a(f"v_add_u32 v46, {L_CAND}, v46")
            a(f"ds_read_b32 v{KEY}, v46")
        if kt == 15:
            vm.wait("csl")
            for i in range(1, 4):
                for r in range(4): a(f"v_add_f32 v{60+r}, v{60+r}, v{60+4*i+r}")
            a("s_nop 1")
            a("v_permlane32_swap_b32 v60, v62")
            a("v_permlane32_swap_b32 v61, v63")
            a("v_add_f32 v60, v60, v62")
            a("v_add_f32 v61, v61, v63")
            a("s_nop 1")
            a("v_permlane16_swap_b32 v60, v61")
            a("v_add_f32 v60, v60, v61")
            a("v_and_b32 v47, 15, v0")
            a("v_cmp_gt_u32 vcc, 12, v47")
            a("v_lshlrev_b32 v47, 4, v47")
            a("v_lshrrev_b32 v50, 4, v0")
            a("v_lshl_add_u32 v47, v50, 2, v47")
            a(f"s_mul_i32 s{sT}, s{LW}, 192")
            a(f"s_add_u32 s{sT}, s{sT}, {L_CS}")
            a(f"v_add_u32 v47, s{sT}, v47")
            a("s_and_saveexec_b64 s[66:67], vcc")
            a("ds_write_b32 v47, v60")
            a("s_mov_b64 exec, -1")
        if kt <= 13: issue(kt+2, atoms)
        else:
            for at in atoms: at()
        after_issue()
        if hoist and kt < 13: offsets()
        a("s_waitcnt lgkmcnt(0)")
        a.trace(3*kt+1)
        if kt < 15: vm.wait(f"T{kt+1}", "poll", "side", *(["st"] if kt == 1 else []), *(["cs"] if kt == NSH + 1 else []))
        late_top8()
        a.trace(3*kt+2)
        a("s_barrier")
        a.trace(3*kt+3)
    if t8a:
        a("v_cmp_gt_u32 vcc, 32, v0")
        a("s_nop 1")
        a(f"v_cndmask_b32 v{KEY}, 0, v{KEY}, vcc")
        for r in range(8): top8_round(a, [KEY], TT, CAND, ST, r)
        decode_keys(a, CAND, 48, 49, TT)
        a("v_lshlrev_b32 v47, 2, v0")
        a(f"v_add_u32 v47, {L_IDX}, v47")
        a("s_mov_b64 exec, 0xff")
        a("ds_write_b32 v47, v48")
        a("ds_write_b32 v47, v49 offset:32")
        if opt.get("dbg"):
            a(f"s_mov_b32 s{sT}, {WS_IDX}")
            a("v_lshlrev_b32 v47, 2, v0")
            a(f"buffer_store_dword v48, v47, {srd(sWS)}, s{sT} offen")
            a(f"buffer_store_dword v49, v47, {srd(sWS)}, s{sT} offen offset:32")
        a("s_mov_b64 exec, -1")
    a(f"s_lshl_b32 s{sT}, s{LW}, 13")
    a(f"v_add_u32 v2, s{sT}, v94")
    a(f"s_lshl_b32 s{sT+1}, s{sJ}, 1")
    a(f"s_lshr_b32 s{sT+2}, s{LW}, 1")
    a(f"s_add_u32 s{sT+1}, s{sT+1}, s{sT+2}")
    a(f"s_lshl_b32 s{sT+1}, s{sT+1}, 5")
    a(f"s_lshl_b32 s{sT+2}, s{sMT}, 1")
    a(f"s_add_u32 s{sT+1}, s{sT+1}, s{sT+2}")
    a(f"s_and_b32 s{sT+2}, s{LW}, 1")
    a(f"s_add_u32 s{sT+1}, s{sT+1}, s{sT+2}")
    a(f"s_lshl_b32 s{sT+1}, s{sT+1}, 13")
    a(f"s_add_u32 s{sT+1}, s{sT+1}, {WS_KV}")
    a(f"s_add_u32 s{sT+2}, s{sT+1}, 4096")
    for part in (((0, 1, 4, 5), (2, 3, 6, 7)) if opt.get("ksplit", True) else (tuple(range(8)),)):
        a("s_waitcnt lgkmcnt(0)")
        a("s_barrier")
        for q in part: a(f"ds_read_b128 {vr(96+4*q,4)}, v2 offset:{q*1024}")
        for k_, q in enumerate(part):
            a(f"s_waitcnt lgkmcnt({len(part)-1-k_})")
            a(f"buffer_store_dwordx4 {vr(96+4*q,4)}, v94, {srd(sWS)}, s{sT+1+(q>>2)} offen offset:{(q&3)*1024} sc1")
    return vm

ACC, B0 = 96, 8
def accreg(ct, tt): return ACC + 16*ct + 4*tt

def phaseA_consumer(a, name, cold, opt):
    vm = VM(a)
    XA, WA = 1, 3
    a("s_waitcnt lgkmcnt(0)")
    ws_base(a, opt)
    a.stamp(4)
    ln_loads(a, vm, opt, 16, 32)
    if opt.get("cpf", True):
        a(f"s_cmp_lg_u32 s{W}, 0")
        a(f"s_cbranch_scc1 {name}_nocpf")
        a(f"s_getpc_b64 s[{sT+8}:{sT+9}]")
        a.label(f"{name}_pc")
        a(f"s_sub_u32 s{sT+8}, s{sT+8}, {name}_pc-{name}")
        a(f"s_subb_u32 s{sT+9}, s{sT+9}, 0")
        a(f"s_lshl_b32 s{sT}, s{sLI}, 4")
        a("v_and_b32 v8, 15, v0")
        a(f"v_add_u32 v8, s{sT}, v8")
        a("v_lshlrev_b32 v8, 7, v8")
        a(f"v_min_u32 v8, {name}_end-{name}-4, v8")
        a(f"global_load_dword v250, v8, s[{sT+8}:{sT+9}]")
        a.label(f"{name}_nocpf")
        vm.issue("cpf", 1, cond=True)
    WM, WN = 52, 53
    a(f"s_lshr_b32 s{WM}, s{W}, 1")
    a(f"s_and_b32 s{WN}, s{W}, 1")
    a("v_and_b32 v8, 15, v0")
    a("v_lshrrev_b32 v9, 4, v0")
    a(f"s_lshl_b32 s{sT}, s{WM}, 6")
    a(f"v_add_u32 v10, s{sT}, v8")
    a("v_lshlrev_b32 v10, 7, v10")
    a("v_bfe_u32 v11, v0, 1, 3")
    a("v_xor_b32 v11, v11, v9")
    a(f"v_lshl_add_u32 v{XA}, v11, 4, v10")
    a(f"v_xor_b32 v{XA+1}, 64, v{XA}")
    a("v_bfe_u32 v10, v0, 2, 2")
    a("v_lshl_add_u32 v10, v9, 3, v10")
    a("v_lshlrev_b32 v10, 7, v10")
    a("v_and_b32 v11, 3, v0")
    a("v_lshl_add_u32 v10, v11, 3, v10")
    a("v_and_b32 v11, 1, v9")
    a("v_lshlrev_b32 v11, 1, v11")
    a("v_bfe_u32 v12, v0, 3, 1")
    a("v_or_b32 v11, v11, v12")
    a(f"s_lshl_b32 s{sT}, s{WN}, 1")
    a(f"v_xor_b32 v11, s{sT}, v11")
    a("v_lshl_add_u32 v10, v11, 5, v10")
    a(f"v_add_u32 v{WA}, {WOFF}, v10")
    a(f"v_xor_b32 v{WA+1}, 32, v{WA}")
    for r in range(96): a(f"v_mov_b32 v{ACC+r}, 0")
    a.stamp(5)
    vm.wait("lnld")
    a.stamp(6)
    assert WS_XN == 0
    ln_rows2(a, vm, 16, 32, 40, 72, 95, opt.get("dbg"), opt.get("lnrows", 2))
    def reads(buf, ks):
        b = B0 + 40*buf
        xr = [f"ds_read_b128 {vr(b+4*tt,4)}, v{XA+ks} offset:{tt*2048}" for tt in range(4)]
        wr = [f"ds_read_b64_tr_b16 {vr(b+16+4*ct+2*t,2)}, v{WA+(ct&1)} offset:{(ct>>1)*8192+ks*4096+t*512}" for ct in range(6) for t in range(2)]
        return [xr[0]] + wr[0:2] + xr[1:4] + wr[2:]
    def mfmas(buf):
        b = B0 + 40*buf
        o = []
        for ct in range(6):
            for tt in range(4):
                x = vr(b+4*tt, 4); w = vr(b+16+4*ct, 4)
                A, B = (w, x) if ct < 4 else (x, w)
                o.append(f"v_mfma_f32_16x16x32_bf16 {vr(accreg(ct,tt),4)}, {A}, {B}, {vr(accreg(ct,tt),4)}")
        return o
    KT, SI, DL, NEG = 48, 49, 50, 51
    pf = opt.get("pf", False)
    PD, PO, PV = 56, 54, 5
    if pf:
        for q in range(3):
            a(f"s_cmp_eq_u32 s{W}, 0")
            a(f"s_cselect_b32 s{PD+q}, s{sWG+q}, s{sWU+q}")
            a(f"s_cmp_eq_u32 s{W}, 2")
            a(f"s_cselect_b32 s{PD+q}, s{sWD+q}, s{PD+q}")
            a(f"s_cmp_eq_u32 s{W}, 3")
            a(f"s_cselect_b32 s{PD+q}, s{sWO+q}, s{PD+q}")
        a(f"s_mov_b32 s{PD+3}, 0x00020000")
        a(f"s_cselect_b32 s{PO}, 8192, 28672 + 0" if False else f"s_movk_i32 s{PO}, 0x7000")
        a(f"s_cselect_b32 s{PO}, 0x2000, s{PO}")
        a(f"s_mul_i32 s{PO}, s{PO}, s2")
        a(f"s_sub_u32 s{PO}, s{PO}, {opt.get('pf0', 2)*2048}")
        a(f"v_lshlrev_b32 v{PV}, 7, v0")
        a("v_cmp_gt_u32 vcc, 16, v0")
        a("v_mov_b32 v6, 0x7fff0000")
        a("s_nop 0")
        a(f"v_cndmask_b32 v{PV}, v6, v{PV}, vcc")
    a(f"s_mov_b32 s{KT}, 0")
    a(f"s_mov_b32 s{SI}, 0")
    a(f"s_mov_b32 s{NEG}, {(-2*SLOT) & 0xffffffff:#x}")
    a("s_waitcnt lgkmcnt(0)")
    if opt.get("cprio"): a(f"s_setprio {opt['cprio']}")
    a("s_barrier")
    a.stamp(1); a.cstamp(7)
    a(*reads(0, 0))
    a(".p2align 6")
    a.label(f"{name}_cloop")
    per = opt.get("rpg", 1)
    skip = opt.get("rskip", 0)
    if opt.get("nods"): reads = lambda buf, ks: []
    fine = opt.get("fine", False)
    def weave(m, r, extra, first=0, pend=16):
        i = 0
        for k, x in enumerate(m):
            kk = k + first
            if fine and kk % 4 == 0 and kk > 0:
                need = 6 + 2*(kk // 4)
                a(f"s_waitcnt lgkmcnt({min(15, pend - need + i)})")
            a(x)
            if k < skip: continue
            a(*r[i:i+per]); i = min(len(r), i + per)
            if i >= len(r) and k >= len(r) // per and extra: a(extra.pop(0))
    U = opt.get("cunroll", 2)
    barpos = opt.get("barpos", 2)
    for u in range(U):
        m = mfmas(0); r = reads(1, 1)
        a(f"s_add_u32 s{SI}, s{SI}, 1")
        a(f"s_cmp_eq_u32 s{SI}, 3")
        a(f"s_cselect_b32 s{DL}, s{NEG}, {SLOT}")
        a(f"s_cselect_b32 s{SI}, 0, s{SI}")
        ctr = opt.get("ctrace")
        if ctr: a("s_memtime s[76:77]")
        a(f"s_waitcnt lgkmcnt({10 if fine else 0})")
        ex = [f"v_add_u32 v{q}, s{DL}, v{q}" for q in (1, 2, 3, 4)]
        if ctr: ex = [f"s_lshl_b32 m0, s{KT}, 2", "v_writelane_b32 v255, s76, m0"] + ex
        weave(m, r, ex)
        m = mfmas(1); r = reads(0, 0)
        if ctr: a("s_memtime s[76:77]")
        a("s_waitcnt lgkmcnt(0)")
        a(*m[:barpos])
        if ctr:
            a("s_add_u32 m0, m0, 1")
            a("v_writelane_b32 v255, s76, m0")
            a("s_memtime s[78:79]")
        a("s_barrier")
        if ctr:
            a("s_memtime s[76:77]")
            a("s_waitcnt lgkmcnt(0)")
            a("s_add_u32 m0, m0, 1")
            a("v_writelane_b32 v255, s78, m0")
            a("s_add_u32 m0, m0, 1")
            a("v_writelane_b32 v255, s76, m0")
        if pf:
            a(f"s_cmp_lt_u32 s{KT}, {opt.get('pf0', 2)}")
            a(f"s_cselect_b32 s{sT}, 0x7fff0000, s{PO}")
            a(f"buffer_load_dword v254, v{PV}, {srd(PD)}, s{sT} offen")
            a(f"s_add_u32 s{PO}, s{PO}, 2048")
        fine_, fine = fine, False
        weave(m[barpos:], r, [f"s_add_u32 s{KT}, s{KT}, 1", f"s_cmp_lt_u32 s{KT}, 16"])
        fine = fine_
    a(f"s_cbranch_scc1 {name}_cloop")
    vm.q = []
    if opt.get("cprio"): a("s_setprio 0")
    a.stamp(2); a.cstamp(8)
    MR, CSQ, MV, RV, CSV, QR, AD, PK = 8, 16, 32, 48, 64, 66, 74, 78
    if not opt.get("t8a", True):
        a(f"s_lshl_b32 s{sT}, s{W}, 11")
        a(f"s_add_u32 s{sT}, s{sT}, {WS_R}")
        a(f"buffer_load_dwordx4 {vr(RKEY,4)}, v94, {srd(sWS)}, s{sT} offen sc1")
        a(f"buffer_load_dwordx4 {vr(RKEY+4,4)}, v94, {srd(sWS)}, s{sT} offen offset:1024 sc1")
    a("s_waitcnt lgkmcnt(0)")
    a("v_and_b32 v1, 15, v0")
    a("v_lshrrev_b32 v2, 4, v0")
    a(f"s_lshl_b32 s{sT}, s{WM}, 8")
    a(f"s_add_u32 s{sT}, s{sT}, {L_M}")
    a(f"s_mul_i32 s{sT+1}, s{WN}, 384")
    a(f"s_add_u32 s{sT+1}, s{sT+1}, {L_CS}")
    a("v_lshlrev_b32 v3, 2, v1")
    a(f"v_add_u32 v4, s{sT}, v3")
    for tt in range(4):
        a(f"ds_read_b32 v{MR+2*tt}, v4 offset:{tt*64}")
        a(f"ds_read_b32 v{MR+2*tt+1}, v4 offset:{tt*64+512}")
    a("v_lshlrev_b32 v5, 4, v2")
    a(f"v_add_u32 v6, s{sT+1}, v5")
    for ct in range(4): a(f"ds_read_b128 {vr(CSQ+4*ct,4)}, v6 offset:{ct*64}")
    a(f"v_add_u32 v6, s{sT}, v5")
    a(f"v_add_u32 v3, s{sT+1}, v3")
    a(f"ds_read_b32 v{CSV}, v3 offset:256")
    a(f"ds_read_b32 v{CSV+1}, v3 offset:320")
    for tt in range(4):
        a(f"ds_read_b128 {vr(MV+4*tt,4)}, v6 offset:{tt*64}")
        a(f"ds_read_b128 {vr(RV+4*tt,4)}, v6 offset:{tt*64+512}")
    a("v_lshrrev_b32 v3, 1, v2")
    a("v_and_b32 v4, 1, v2")
    a("v_lshl_add_u32 v5, v3, 5, v1")
    a("v_lshlrev_b32 v5, 4, v5")
    a("v_lshl_add_u32 v5, v4, 3, v5")
    a("v_lshl_add_u32 v6, v4, 5, v1")
    a("v_lshlrev_b32 v6, 4, v6")
    a("v_lshl_add_u32 v6, v3, 3, v6")
    a(f"s_lshl_b32 s{sT}, s{WN}, 1")
    a(f"s_add_u32 s{sT}, s{sT}, s{WM}")
    a(f"s_lshl_b32 s{sT}, s{sT}, 13")
    a(f"v_add_u32 v{AD}, s{sT}, v5")
    a(f"v_add_u32 v{AD+1}, s{sT}, v6")
    a(f"s_lshr_b32 s{sT}, s{sT}, 1")
    a(f"s_add_u32 s{sT}, s{sT}, {L_Q}")
    a(f"v_add_u32 v{AD+2}, s{sT}, v5")
    a(f"s_mov_b32 s{sT+1}, {QSCALE:#x}")
    a("s_waitcnt lgkmcnt(10)")
    for tt in range(4):
        a(f"v_mul_f32 v{QR+2*tt+1}, s{sT+1}, v{MR+2*tt+1}")
    n = 0
    def fin(ct, tt):
        nonlocal n
        r = accreg(ct, tt)
        p = PK + 2*(n % 4); n += 1
        for hf in range(2):
            pr = vr(r+2*hf, 2)
            if ct < 4:
                a(f"v_pk_fma_f32 {pr}, {vr(CSQ+4*ct+2*hf,2)}, {vr(MR+2*tt,2)}, {pr} op_sel_hi:[1,0,1] neg_lo:[0,1,0] neg_hi:[0,1,0]")
                sc = QR if ct < 2 else MR
                a(f"v_pk_mul_f32 {pr}, {pr}, {vr(sc+2*tt,2)} op_sel:[0,1] op_sel_hi:[1,1]")
            else:
                sel = "op_sel_hi:[1,0,1]" if ct == 4 else "op_sel:[0,1,0] op_sel_hi:[1,1,1]"
                a(f"v_pk_fma_f32 {pr}, {vr(MV+4*tt+2*hf,2)}, {vr(CSV,2)}, {pr} {sel} neg_lo:[0,1,0] neg_hi:[0,1,0]")
                a(f"v_pk_mul_f32 {pr}, {pr}, {vr(RV+4*tt+2*hf,2)}")
            a(f"v_cvt_pk_bf16_f32 v{p+hf}, v{r+2*hf}, v{r+2*hf+1}")
        if ct < 2:   a(f"ds_write_b64 v{AD+2}, {vr(p,2)} offset:{(tt>>1)*2048 + ct*1024 + (tt&1)*256}")
        elif ct < 4: a(f"ds_write_b64 v{AD}, {vr(p,2)} offset:{(tt>>1)*4096 + (ct-2)*1024 + (tt&1)*256}")
        else:        a(f"ds_write_b64 v{AD+1}, {vr(p,2)} offset:{(tt>>1)*4096 + 2048 + (tt&1)*1024 + (ct-4)*256}")
    a("s_waitcnt lgkmcnt(0)")
    for ct in (2, 3):
        for tt in range(4): fin(ct, tt)
    if opt.get("ksplit", True):
        a("s_waitcnt lgkmcnt(0)")
        a("s_barrier")
    for ct in (4, 5):
        for tt in range(4): fin(ct, tt)
    a("s_waitcnt lgkmcnt(0)")
    a("s_barrier")
    for ct in (0, 1):
        for tt in range(4): fin(ct, tt)
    a("s_waitcnt lgkmcnt(0)")
    return vm

def publish_kv(a, vm, R, opt):
    a(f"v_lshlrev_b32 v{R.VL}, 4, v0")
    a(f"s_and_b32 s{sT+1}, s{W}, 1")
    a(f"s_lshl_b32 s{sT+1}, s{sT+1}, 1")
    a(f"s_bfe_u32 s{sT+2}, s{W}, 0x10001")
    a(f"s_add_u32 s{sT+1}, s{sT+1}, s{sT+2}")
    a(f"s_lshl_b32 s{sT+1}, s{sT+1}, 12")
    a(f"s_add_u32 s{sT+1}, s{sT+1}, {L_Q}")
    a(f"v_add_u32 v3, s{sT+1}, v{R.VL}")
    for q in range(4): a(f"ds_read_b128 {vr(R.Q+4*q,4)}, v3 offset:{q*1024}")
    if opt.get("dbg"):
        a("s_waitcnt lgkmcnt(0)")
        head_of(a, sT+1, sT+2)
        a(f"s_lshl_b32 s{sT+1}, s{sT+1}, 6")
        a(f"s_lshl_b32 s{sT+2}, s{sMT}, 2")
        a(f"s_add_u32 s{sT+1}, s{sT+1}, s{sT+2}")
        a(f"s_and_b32 s{sT+2}, s{W}, 2")
        a(f"s_add_u32 s{sT+1}, s{sT+1}, s{sT+2}")
        a(f"s_lshl_b32 s{sT+1}, s{sT+1}, 11")
        a(f"s_add_u32 s{sT+1}, s{sT+1}, {WS_Q}")
        for q in range(4):
            a(f"buffer_store_dwordx4 {vr(R.Q+4*q,4)}, v{R.VL}, {srd(sWS)}, s{sT+1} offen offset:{q*1024}")
        vm.drain()

def gen_fused(name, **opt):
    a = Asm(); cold = []
    TICKET[0] = False
    R = AT.AttnRegs
    prologue(a, name, opt)
    a(f"s_cmp_ge_u32 s{W}, 4")
    a(f"s_cbranch_scc1 {name}_loader")
    phaseA_consumer(a, name, cold, opt)
    a(f"s_branch {name}_joinA")
    a.label(f"{name}_loader")
    phaseA_loader(a, name, cold, opt)
    a.stamp(2)
    a("s_setprio 0")
    a.label(f"{name}_joinA")
    a("s_barrier")
    a.stamp(3)
    if opt.get("dbgtime"): a("s_memrealtime s[94:95]")
    vm = VM(a)
    publish_kv(a, vm, R, opt)
    if opt.get("stop") != "A":
        import fused_bc
        fused_bc.phaseB(a, name, cold, opt, vm)
        if opt.get("stop") != "B":
            fused_bc.phaseC(a, name, cold, opt, vm)
    if opt.get("xprobe"):
        a("s_waitcnt vmcnt(0) lgkmcnt(0)")
        a(f"s_cmp_lg_u32 s{W}, 0")
        a(f"s_cbranch_scc1 {name}_done")
        a("s_getreg_b32 s76, hwreg(HW_REG_XCC_ID, 0, 4)")
        a("s_add_u32 s76, s76, 1")
        a("v_mov_b32 v1, 4")
        a("v_mov_b32 v2, s76")
        a("s_mov_b64 exec, 1")
        a(f"s_cmp_lg_u32 s2, {opt['xprobe']}")
        a(f"s_cbranch_scc1 {name}_xp0")
        a(f"buffer_atomic_add v2, v1, {srd(sDBG)}, 0 offen sc1")
        a("s_waitcnt vmcnt(0)")
        a("s_endpgm")
        a.label(f"{name}_xp0")
        a("s_cmp_lg_u32 s2, 0")
        a(f"s_cbranch_scc1 {name}_done")
        a("s_mov_b32 s78, 0")
        a.label(f"{name}_xp1")
        a("v_mov_b32 v2, 0")
        a(f"buffer_atomic_add v2, v1, {srd(sDBG)}, 0 offen sc0 sc1")
        a("s_add_u32 s78, s78, 1")
        a("s_cmp_gt_u32 s78, 100000")
        a(f"s_cbranch_scc1 {name}_done")
        a("s_waitcnt vmcnt(0)")
        a("v_readfirstlane_b32 s77, v2")
        a("s_nop 3")
        a("s_cmp_eq_u32 s77, 0")
        a(f"s_cbranch_scc1 {name}_xp1")
        a("s_cmp_eq_u32 s77, s76")
        a(f"s_cbranch_scc1 {name}_done")
        a("s_memrealtime s[80:81]")
        a("s_waitcnt lgkmcnt(0)")
        a.label(f"{name}_xp2")
        a("s_memrealtime s[78:79]")
        a("s_waitcnt lgkmcnt(0)")
        a("s_sub_u32 s78, s78, s80")
        a("s_cmp_lt_u32 s78, 4000")
        a(f"s_cbranch_scc1 {name}_xp2")
    if opt.get("probe"):
        i_, j_ = opt["probe"]
        a("s_waitcnt vmcnt(0) lgkmcnt(0)")
        a.stamp(9)
        a("s_waitcnt lgkmcnt(0)")
        a(f"s_or_b32 s76, s81, s{W}")
        a(f"s_cmp_lg_u32 s76, 0")
        a(f"s_cbranch_scc1 {name}_done")
        a(f"s_sub_u32 s76, s{82+2*j_}, s{82+2*i_}")
        a("s_lshl_b32 s76, s76, 2")
        a.label(f"{name}_probe")
        a("s_memrealtime s[78:79]")
        a("s_waitcnt lgkmcnt(0)")
        a("s_sub_u32 s78, s78, s100")
        a("s_cmp_lt_u32 s78, s76")
        a(f"s_cbranch_scc1 {name}_probe")
    else:
        a.stamp_dump(opt.get("kid", 0), W)
    if opt.get("dbgtime"):
        a("s_waitcnt vmcnt(0)")
        a("s_memrealtime s[98:99]")
        a("s_waitcnt lgkmcnt(0)")
        a("s_not_b32 s96, s96")
        a("v_mov_b32 v1, 4")
        a("v_mov_b32 v2, s96")
        a("v_mov_b32 v3, s98")
        a("v_mov_b32 v4, s94")
        a(f"s_cmp_lg_u32 s{W}, 0")
        a(f"s_cbranch_scc1 {name}_done")
        a("s_mov_b64 exec, 1")
        a(f"buffer_atomic_umax v2, v1, {srd(sDBG)}, 0 offen sc1")
        a(f"buffer_atomic_umax v3, v1, {srd(sDBG)}, 0 offen offset:4 sc1")
        a(f"buffer_atomic_umax v4, v1, {srd(sDBG)}, 0 offen offset:8 sc1")
        a("s_mov_b64 exec, -1")
    a.label(f"{name}_done")
    a("s_endpgm")
    for c in cold: a.lines += c.lines
    a.label(f"{name}_end")
    a("s_endpgm")
    return kernel_header(name) + a.text() + kernel_desc(name, 256, 102)

def xsel_fetch(a, vm, vidx, XR, XST, n=1):
    for i in range(n):
        a(f"s_mul_i32 s{sT+2}, s{W}, {n}")
        a(f"s_add_u32 s{sT+2}, s{sT+2}, {i}")
        a(f"v_readlane_b32 s{sT}, v{vidx}, s{sT+2}")
        a("s_nop 3")
        a(f"s_lshl_b32 s{sT+1}, s{sT}, 11")
        a(f"buffer_load_dwordx4 {vr(XR+8*i,4)}, v1, {srd(sX)}, s{sT+1} offen")
        a(f"buffer_load_dwordx4 {vr(XR+8*i+4,4)}, v1, {srd(sX)}, s{sT+1} offen offset:1024")
        a(f"s_lshr_b32 s{sT+1}, s{sT}, 3")
        a(f"s_lshl_b32 s{sT+1}, s{sT+1}, 5")
        a(f"s_and_b32 s{sT}, s{sT}, 7")
        a(f"s_add_u32 s{sT}, s{sT}, s{sT+1}")
        a(f"s_lshl_b32 s{sT}, s{sT}, 2")
        a(f"s_add_u32 s{sT}, s{sT}, {WS_ST}")
        a(f"v_mov_b32 v{XST+2*i+1}, s{sT}")
        a(f"buffer_load_dword v{XST+2*i}, v{XST+2*i+1}, {srd(sWS)}, 0 offen sc1")
        a(f"buffer_load_dword v{XST+2*i+1}, v{XST+2*i+1}, {srd(sWS)}, 0 offen offset:32 sc1")
    vm.issue("xsel", 4*n)

def xsel_normalise(a, T, XR, XST, n=1):
    XF = T + 2
    a(f"v_lshrrev_b32 v{T}, 2, v0")
    a(f"v_lshlrev_b32 v{T}, 9, v{T}")
    a(f"v_and_b32 v{T+1}, 3, v0")
    a(f"v_lshl_add_u32 v{T}, v{T+1}, 7, v{T}")
    a(f"s_lshl_b32 s{sT}, s{W}, {3+n}")
    a(f"s_add_u32 s{sT}, s{sT}, {L_XS}")
    a(f"v_add_u32 v{T}, s{sT}, v{T}")
    for i in range(n):
        for p in range(8):
            x = XR + 8*i + p
            f0, f1 = XF + 2*(p & 1), XF + 2*(p & 1) + 1
            a(f"v_lshlrev_b32 v{f0}, 16, v{x}")
            a(f"v_and_b32 v{f1}, 0xffff0000, v{x}")
            a(f"v_sub_f32 v{f0}, v{f0}, v{XST+2*i}")
            a(f"v_sub_f32 v{f1}, v{f1}, v{XST+2*i}")
            a(f"v_cvt_pk_bf16_f32 v{x}, v{f0}, v{f1}")
            a(f"v_lshlrev_b32 v{f0}, 16, v{x}")
            a(f"v_and_b32 v{f1}, 0xffff0000, v{x}")
            a(f"v_mul_f32 v{f0}, v{f0}, v{XST+2*i+1}")
            a(f"v_mul_f32 v{f1}, v{f1}, v{XST+2*i+1}")
            a(f"v_cvt_pk_bf16_f32 v{x}, v{f0}, v{f1}")
        a(f"ds_write_b128 v{T}, {vr(XR+8*i,4)} offset:{16*i}")
        a(f"ds_write_b128 v{T}, {vr(XR+8*i+4,4)} offset:{16*i+8192}")
```

```python
from asmlib import *
from asmlib import DIAG, TRACE
from layout import *
from fused import *
import fused as FU
from k_attn import M32, M16
import k_attn2 as AT
from k_attn2 import SM
from k_attn3 import Regs3
from k_moe import pi_row, round_bf16
from k_top8 import make_keys, decode_keys

L_S1, L_S2, L_EX, L_LX, L_HI = 32768, 131072, 131072, 129024, 159744
KH, HB, KA, KBK, VA, VBK, MASK, NEED, RET, S1O, HASJ, S2O, WOO, WOM = 48, 49, 50, 51, 52, 53, 54, 55, 56, 58, 59, 60, 61, 62
XSF, MACC, VFR, VD1, VD2, VP, VPA, VT = 220, 236, 243, 244, 245, 246, 247, 248
C_MS, C_IX, C_G, C_WT, C_AY = 206, 210, 212, 238, 240
C_XP, C_VX = 196, 204
WBF = 20

def unit(a, R, t, q, nb, hook=None, noqk=False):
    Sc, Sn = (R.S0, R.S1) if q == 0 else (R.S1, R.S0)
    P, Q, O, L = R.P, R.Q, R.O, R.L
    qn = 1 - q
    kn = t if q == 0 else t + 1
    vp = t - 1 if q == 0 else t
    K = R.KB + 8*(kn % nb); Vp = R.VB + 8*(vp % nb); Vc = R.VB + 8*(t % nb)
    e = lambda i: f"v_exp_f32 v{Sc+i}, v{Sc+i}"
    c = lambda i: f"v_cvt_pk_bf16_f32 v{P+i}, v{Sc+2*i}, v{Sc+2*i+1}"
    h = hook or (lambda pos: None)
    h("Ma")
    if not noqk: a(M32(Sn, K, Q+8*qn, None))
    h("Ma+"); a(e(0), e(1), e(2))
    h("Md"); a(M32(O+16*qn, Vp+4, P+4, O+16*qn)); h("Md+"); a(e(3), e(4), e(5))
    a(SM(L+4*qn, R.ONES, P, R.IDX), c(0), c(1), e(6), e(7))
    h("Mb")
    if not noqk: a(M32(Sn, K+4, Q+8*qn+4, Sn))
    h("Mb+"); a(c(2), c(3), e(8), e(9))
    h("Mc"); a(M32(O+16*q, Vc, P, O+16*q)); h("Mc+")
    a(e(10), e(11), c(4), e(12), c(5), e(13), e(14), e(15), c(6), c(7))

def xn_pair(o, t16, p, g0, g1, tmp):
    XP, MS = C_XP, C_MS
    o(f"v_lshlrev_b32 v{g0}, 16, v{XP+4*t16+p}")
    o(f"v_and_b32 v{g1}, 0xffff0000, v{XP+4*t16+p}")
    o(f"v_sub_f32 v{g0}, v{g0}, v{MS+2*t16}")
    o(f"v_sub_f32 v{g1}, v{g1}, v{MS+2*t16}")
    o(f"v_cvt_pk_bf16_f32 v{tmp}, v{g0}, v{g1}")
    o(f"v_lshlrev_b32 v{g0}, 16, v{tmp}")
    o(f"v_and_b32 v{g1}, 0xffff0000, v{tmp}")
    o(f"v_mul_f32 v{g0}, v{g0}, v{MS+2*t16+1}")
    o(f"v_mul_f32 v{g1}, v{g1}, v{MS+2*t16+1}")
    o(f"v_cvt_pk_bf16_f32 v{tmp}, v{g0}, v{g1}")
    o(f"v_lshlrev_b32 v{g0}, 16, v{tmp}")
    o(f"v_and_b32 v{g1}, 0xffff0000, v{tmp}")
def silu16(G, T):
    o = []
    for b in range(0, 16, 8):
        for e in range(8): o.append(f"v_mul_f32 v{T+e}, 0xbfb8aa3b, v{G+b+e}")
        for e in range(8): o.append(f"v_exp_f32 v{T+e}, v{T+e}")
        for e in range(8): o.append(f"v_add_f32 v{T+e}, 1.0, v{T+e}")
        for e in range(8): o.append(f"v_rcp_f32 v{T+e}, v{T+e}")
        for e in range(8): o.append(f"v_mul_f32 v{G+b+e}, v{G+b+e}, v{T+e}")
    return o

class OH:
    sOA, sOB, ROT, RAW, MASK, NEED, RET, GA, GB, ND = 50, 51, 60, 52, 72, 73, 44, 53, 54, 63
    GIDS = [55, 56, 57, 59]
    VPo, VPa = 236, 237
    SLOT = [132, 164, 68, 100]
def oh_setup(a, T):
    H = OH
    a(f"s_and_b32 s{H.ROT}, s{sJ}, 3")
    a(f"s_lshl_b32 s{sT}, s{sMT}, 2")
    a(f"s_and_b32 s{sT+1}, s{W}, 3")
    a(f"s_add_u32 s{sT}, s{sT}, s{sT+1}")
    a(f"s_lshl_b32 s{H.sOA}, s{sT}, 16")
    a(f"s_lshl_b32 s{sT+1}, s{KH}, 14")
    a(f"s_add_u32 s{H.sOA}, s{H.sOA}, s{sT+1}")
    a(f"s_add_u32 s{H.sOA}, s{H.sOA}, {WS_O}")
    a(f"s_add_u32 s{H.sOB}, s{H.sOA}, 32768")
    a(f"s_lshl_b32 s{sT}, s{sT}, 1")
    a(f"s_add_u32 s{sT}, s{sT}, s{KH}")
    a(f"s_lshl_b32 s{sT}, s{sT}, 7")
    a(f"s_add_u32 s{sT}, s{sT}, {WS_OF}")
    a(f"v_mov_b32 v{H.VPa}, s{sT}")
    a(f"s_mov_b32 s{H.RAW}, 0")
    a(f"s_mov_b32 s{H.NEED}, 0x1111")
def oh_poll(a, vm):
    apoll(a, OH.VPo, OH.VPa)
    vm.issue("opoll")
def oh_ready(o):
    H = OH
    o(f"v_readfirstlane_b32 s{H.RAW}, v{H.VPo}")
    o(f"s_lshl_b32 s{sT+10}, s{H.ROT}, 2")
    o(f"s_mul_i32 s{H.RAW}, s{H.RAW}, 0x10001")
    o(f"s_lshr_b32 s{H.RAW}, s{H.RAW}, s{sT+10}")
    o(f"s_lshr_b32 s{sT+10}, s{H.RAW}, 1")
    o(f"s_and_b32 s{H.MASK}, s{H.RAW}, s{sT+10}")
    o(f"s_lshr_b32 s{sT+10}, s{H.MASK}, 2")
    o(f"s_and_b32 s{H.MASK}, s{H.MASK}, s{sT+10}")
    o(f"s_and_b32 s{H.MASK}, s{H.MASK}, s{H.NEED}")
def oh_take(a, g):
    H = OH
    a(f"s_ff1_i32_b32 s{H.GA}, s{H.MASK}")
    a(f"s_bitset0_b32 s{H.NEED}, s{H.GA}")
    a(f"s_bitset0_b32 s{H.MASK}, s{H.GA}")
    a(f"s_lshr_b32 s{H.GA}, s{H.GA}, 2")
    a(f"s_add_u32 s{H.GA}, s{H.GA}, s{H.ROT}")
    a(f"s_and_b32 s{H.GIDS[g]}, s{H.GA}, 3")
    a(f"s_lshl_b32 s{H.GA}, s{H.GIDS[g]}, 12")
    a(f"s_add_u32 s{H.GB}, s{H.GA}, s{H.sOB}")
    a(f"s_add_u32 s{H.GA}, s{H.GA}, s{H.sOA}")
    for i in range(4):
        for t16 in range(2):
            a(f"buffer_load_dwordx4 {vr(H.SLOT[g]+8*i+4*t16,4)}, v1, {srd(sWS)}, s{(H.GA, H.GB)[t16]} offen offset:{i*1024}")

def phaseB(a, name, cold, opt, vm):
    R = Regs3
    VL, Q, P, O, L, T = R.VL, R.Q, R.P, R.O, R.L, R.T
    NB, NT = 4, 32
    BAR = opt.get("bar", 4)
    moe = opt.get("moe", True)
    nt = lambda k: "nt" if k in opt.get("nt", "ms") else ""
    a(f"s_lshr_b32 s{KH}, s{W}, 2")
    a(f"s_and_b32 s{sT}, s{W}, 1")
    a(f"s_lshl_b32 s{sT}, s{sT}, 1")
    a(f"s_add_u32 s{sT}, s{sT}, s{KH}")
    a(f"s_lshl_b32 s{sT}, s{sT}, 13")
    a(f"v_add_u32 v2, s{sT}, v{VL}")
    for t in range(2):
        for hf in range(2):
            a(f"ds_read_b128 {vr(R.KB+8*t+4*hf,4)}, v2 offset:{t*4096+hf*1024}")
    for t in range(2):
        for hf in range(2):
            a(f"ds_read_b128 {vr(R.VB+8*t+4*hf,4)}, v2 offset:{t*4096+2048+hf*1024}")
    head_of(a, HB, sT)
    a(f"s_lshl_b32 s{sT+1}, s{HB}, 8")
    a(f"s_lshl_b32 s{HB}, s{HB}, 18")
    a(f"s_add_u32 s{HB}, s{HB}, {WS_KV}")
    a(f"s_mov_b32 s{NEED}, 0xfffe")
    a(f"s_lshl_b32 s{sT}, s{KH}, 13")
    a(f"s_add_u32 s{S1O}, s{HB}, s{sT}")
    KVB = 63
    a(f"s_mov_b32 s{KVB}, s{S1O}")
    a(f"s_lshl_b32 s{sT}, s{KH}, 7")
    a(f"s_add_u32 s{sT}, s{sT}, s{sT+1}")
    a(f"s_add_u32 s{sT}, s{sT}, {WS_KVF}")
    a(f"v_mov_b32 v{VPA}, s{sT}")
    a(f"s_mov_b32 s{MASK}, 0")
    if moe and opt.get("ticket", False):
        a(f"v_mov_b32 v{VT}, {L_TK}")
        a(f"ds_read_b32 v{VT+1}, v{VT}")
        a("s_waitcnt lgkmcnt(0)")
        a(f"v_readfirstlane_b32 s{sXC}, v{VT+1}")
        FU.TICKET[0] = True
        a("s_nop 3")
        a(f"s_cmp_lt_u32 s{sXC}, 224")
        a(f"s_cselect_b32 s{HASJ}, 1, 0")
    elif moe:
        a(f"s_cmp_lt_u32 s{sLI}, 28")
        a(f"s_cselect_b32 s{HASJ}, 1, 0")
    if moe:
        a(f"v_bfe_u32 v{VD2}, v0, 5, 1")
        a(f"v_lshlrev_b32 v{VD2}, 3, v{VD2}")
        a(f"v_bfe_u32 v{VT}, v0, 3, 2")
        a(f"v_add_u32 v{VD2}, v{VD2}, v{VT}")
        a(f"v_bfe_u32 v{VT}, v0, 4, 2")
        a(f"v_lshlrev_b32 v{VT}, 1, v{VT}")
        a(f"v_and_b32 v{VT+1}, 7, v0")
        a(f"v_xor_b32 v{VT}, v{VT}, v{VT+1}")
        a(f"v_lshlrev_b32 v{VT}, 4, v{VT}")
        a(f"v_mul_u32_u24 v{VD1}, 7168, v{VD2}")
        a(f"v_add_u32 v{VD1}, v{VD1}, v{VT}")
        a(f"v_lshl_add_u32 v{VD2}, v{VD2}, 11, v{VT}")
        a(f"v_lshrrev_b32 v{VFR}, 2, v0")
        a(f"v_lshlrev_b32 v{VFR}, 7, v{VFR}")
        a(f"v_bfe_u32 v{VT}, v0, 3, 2")
        a(f"s_and_b32 s{sT}, s{W}, 3")
        a(f"v_xor_b32 v{VT}, s{sT}, v{VT}")
        a(f"v_lshl_add_u32 v{VFR}, v{VT}, 5, v{VFR}")
        a(f"v_and_b32 v{VT}, 3, v0")
        a(f"v_lshl_add_u32 v{VFR}, v{VT}, 3, v{VFR}")
        cg_of(a, sT)
        a(f"s_and_b32 s{sT+1}, s{sT}, 3")
        a(f"s_lshl_b32 s{sT+1}, s{sT+1}, 3")
        a(f"s_add_u32 s{sT+1}, s{sT+1}, s{W}")
        a(f"s_mul_i32 s{S1O}, s{sT+1}, {32*7168}")
        a(f"s_lshr_b32 s{sT}, s{sT}, 2")
        a(f"s_lshl_b32 s{sT}, s{sT}, 7")
        a(f"s_add_u32 s{S1O}, s{S1O}, s{sT}")
        a(f"s_lshr_b32 s{S2O}, s2, 4")
        a(f"s_mul_i32 s{S2O}, s{S2O}, 224")
        a(f"s_lshl_b32 s{sT}, s{KH}, 5")
        a(f"s_add_u32 s{S2O}, s{S2O}, s{sT}")
        a(f"s_and_b32 s{sT}, s{W}, 1")
        a(f"s_lshl_b32 s{sT}, s{sT}, 4")
        a(f"s_add_u32 s{S2O}, s{S2O}, s{sT}")
        a(f"s_and_b32 s{sT}, s{W}, 2")
        a(f"s_lshl_b32 s{sT}, s{sT}, 1")
        a(f"s_add_u32 s{S2O}, s{S2O}, s{sT}")
        a(f"s_lshl_b32 s{S2O}, s{S2O}, 11")
        a(f"s_and_b32 s{sT}, s2, 15")
        a(f"s_lshl_b32 s{sT}, s{sT}, 7")
        a(f"s_add_u32 s{S2O}, s{S2O}, s{sT}")
    def x_load():
        a(f"v_and_b32 v{VT}, 15, v0")
        a(f"s_lshl_b32 s{sT}, s{sMT}, 2")
        a(f"s_and_b32 s{sT+1}, s{W}, 3")
        a(f"s_add_u32 s{sT}, s{sT}, s{sT+1}")
        a(f"s_lshl_b32 s{sT}, s{sT}, 5")
        a(f"v_add_u32 v{VT}, s{sT}, v{VT}")
        a(f"v_lshlrev_b32 v{C_VX}, 11, v{VT}")
        a(f"v_bfe_u32 v{VT}, v0, 4, 1")
        a(f"v_lshl_add_u32 v{C_VX}, v{VT}, 5, v{C_VX}")
        a(f"v_lshrrev_b32 v{VT}, 5, v0")
        a(f"v_lshl_add_u32 v{C_VX}, v{VT}, 4, v{C_VX}")
        a(f"s_lshl_b32 s{sT}, s{sJ}, 7")
        a(f"s_lshl_b32 s{sT+1}, s{KH}, 6")
        a(f"s_add_u32 s{sT}, s{sT}, s{sT+1}")
        a(f"v_add_u32 v{C_VX}, s{sT}, v{C_VX}")
        a(f"s_mov_b32 s{sT}, 32768")
        a(f"buffer_load_dwordx4 {vr(C_XP,4)}, v{C_VX}, {srd(sX)}, 0 offen")
        a(f"buffer_load_dwordx4 {vr(C_XP+4,4)}, v{C_VX}, {srd(sX)}, s{sT} offen")
        vm.issue("xc", 2)
    def misc_read():
        a(f"v_and_b32 v{VT}, 15, v0")
        a(f"s_and_b32 s{sT}, s{W}, 3")
        a(f"s_lshl_b32 s{sT}, s{sT}, 5")
        a(f"v_add_u32 v{VT}, s{sT}, v{VT}")
        a(f"v_lshlrev_b32 v{VT}, 2, v{VT}")
        a(f"v_add_u32 v{VT}, {L_M}, v{VT}")
        for t16 in range(2):
            a(f"ds_read_b32 v{C_MS+2*t16}, v{VT} offset:{t16*64}")
            a(f"ds_read_b32 v{C_MS+2*t16+1}, v{VT} offset:{t16*64+512}")
        a(f"v_lshlrev_b32 v{VT}, 2, v0")
        a(f"v_add_u32 v{VT}, {L_IDX}, v{VT}")
        a(f"ds_read_b32 v{C_IX}, v{VT}")
    gwin = opt.get("gwin", False) and opt.get("t8a", True)
    if gwin: x_load(); misc_read()
    a(f"v_mov_b32 v{C_AY}, 0x7fff0000")
    a(f"v_mov_b32 v{C_AY+1}, 0x7fff0000")
    t8a = opt.get("t8a", True)
    if moe and t8a:
        a(f"v_and_b32 v{VT}, 7, v0")
        a(f"v_lshlrev_b32 v{VT}, 2, v{VT}")
        a(f"v_add_u32 v{VT}, {L_IDX}, v{VT}")
        a(f"ds_read_b32 v{VT+1}, v{VT}")
    AT.attn_consts(a, R, sparse=opt.get('sparse', 1))
    for r in range(4): a(f"v_mov_b32 v{R.VB+8*3+4+r}, 0")
    a("s_waitcnt lgkmcnt(0)")
    if moe and t8a: xsel_fetch(a, vm, VT+1, 228, 236)
    a(M32(R.S0, R.KB, Q, None))
    a(M32(R.S0, R.KB+4, Q+4, R.S0))
    a("s_nop 10")

    def kv_mask(o):
        o(f"v_readfirstlane_b32 s{MASK}, v{VP}")
        o("s_nop 0")
        o(f"s_mul_i32 s{MASK}, s{MASK}, 0x10001")
        o(f"s_lshr_b32 s{MASK}, s{MASK}, s{sMT}")
    c = Asm()
    c.label(f"{name}_kvspin")
    c(f"s_mov_b32 s{sT+11}, 0")
    c.label(f"{name}_kvagain")
    apoll(c, VP, VPA)
    c(f"s_add_u32 s{sT+11}, s{sT+11}, 1")
    c(f"s_cmp_gt_u32 s{sT+11}, {SPIN_LIMIT}")
    c(f"s_cselect_b32 s{MASK}, s{NEED}, s{MASK}")
    c(f"s_cbranch_scc1 {name}_kvout")
    c("s_waitcnt vmcnt(0)")
    kv_mask(c)
    c(f"s_and_b32 s{MASK}, s{MASK}, s{NEED}")
    if opt.get("fixed"):
        c(f"s_ff1_i32_b32 s{sT+10}, s{NEED}")
        c(f"s_bitcmp1_b32 s{MASK}, s{sT+10}")
    c(f"s_cbranch_scc0 {name}_kvagain")
    c.label(f"{name}_kvout")
    c(f"s_setpc_b64 s[{RET}:{RET+1}]")
    cold.append(c)
    def next_block():
        lab = a.new_label(f"{name}_nb")
        a(f"s_and_b32 s{MASK}, s{MASK}, s{NEED}")
        if opt.get("fixed"):
            a(f"s_ff1_i32_b32 s{sT+10}, s{NEED}")
            a(f"s_bitcmp1_b32 s{MASK}, s{sT+10}")
        a(f"s_cbranch_scc1 {lab}")
        a(f"s_call_b64 s[{RET}:{RET+1}], {name}_kvspin")
        a.label(lab)
        a(f"s_ff1_i32_b32 s{KBK}, s{MASK}")
        a(f"s_bitset0_b32 s{NEED}, s{KBK}")
        a(f"s_add_u32 s{KBK}, s{KBK}, s{sMT}")
        a(f"s_and_b32 s{KBK}, s{KBK}, 15")
        a(f"s_lshl_b32 s{KBK}, s{KBK}, 14")
        a(f"s_add_u32 s{KBK}, s{KBK}, s{KVB}")
    def adv(sr_, t):
        if t & 1: a(f"s_add_u32 s{sr_}, s{sr_}, 4096")
        else: a(f"s_mov_b32 s{sr_}, s{KBK}")
    def ldK(t, half):
        if half == 0:
            if not (t & 1): next_block()
            adv(KA, t)
        a(f"buffer_load_dwordx4 {vr(R.KB+8*(t%NB)+4*half,4)}, v{VL}, {srd(sWS)}, s{KA} offen offset:{half*1024}")
        vm.issue(f"K{t}_{half}")
    def ldV(t, half):
        if half == 0: adv(VA, t)
        a(f"buffer_load_dwordx4 {vr(R.VB+8*(t%NB)+4*half,4)}, v{VL}, {srd(sWS)}, s{VA} offen offset:{2048+half*1024}")
        vm.issue(f"V{t}_{half}")

    def guarded(fn):
        lab = a.new_label(f"{name}_g")
        a(f"s_cmp_eq_u32 s{HASJ}, 0")
        a(f"s_cbranch_scc1 {lab}")
        fn()
        a.label(lab)
    def s1_dma(i):
        def f():
            m, pc = i >> 2, i & 3
            a(f"s_lshl_b32 s{sT}, s{W}, 12")
            a(f"s_add_u32 m0, s{sT}, {L_S1 + m*32768 + pc*1024}")
            a(f"s_add_u32 s{sT}, s{S1O}, {(16*(pc&1) + 4*(pc>>1))*7168}")
            a(f"buffer_load_dwordx4 v{VD1}, {srd(sWG if m == 0 else sWU)}, s{sT} offen {nt('m')} lds")
            vm.issue("s1w", 1, cond=True)
        guarded(f)
    def s2_dma(jj):
        lab = a.new_label(f"{name}_s2d")
        if jj == 3:
            a(f"s_cmp_lg_u32 s{KH}, 0")
            a(f"s_cbranch_scc1 {lab}")
        a(f"s_lshl_b32 s{sT}, s{W}, 10")
        a(f"s_add_u32 m0, s{sT}, {L_S2 + jj*8192}")
        a(f"s_add_u32 s{sT}, s{S2O}, {jj*64*2048}")
        a(f"buffer_load_dwordx4 v{VD2}, {srd(sWD)}, s{sT} offen {nt('m')} lds")
        vm.issue("s2w", 1, cond=(jj == 3))
        a.label(lab)
    def touch_wd():
        a(f"s_lshl_b32 s{sT}, s2, 3")
        a(f"s_add_u32 s{sT}, s{sT}, s{W}")
        a(f"s_mul_i32 s{sT+1}, s{sT}, 3584")
        a(f"s_lshl_b32 s{sT}, s{sT}, 10")
        a(f"v_lshlrev_b32 v{VT}, 7, v0")
        a("s_bfm_b64 exec, 28, 0")
        a(f"buffer_load_dword v{VT+4}, v{VT}, {srd(sWD)}, s{sT+1} offen")
        a("s_mov_b64 exec, 0xff")
        a(f"buffer_load_dword v{VT+5}, v{VT}, {srd(sWO)}, s{sT} offen")
        a("s_mov_b64 exec, -1")
        vm.issue("tch", 2)
    def afrag_addr(base_s):
        a(f"v_and_b32 v{VT}, 7, v0")
        a(f"v_lshlrev_b32 v{VT}, 4, v{VT}")
        a(f"v_lshrrev_b32 v{VT+1}, 4, v0")
        a(f"v_lshl_add_u32 v{VT}, v{VT+1}, 7, v{VT}")
        a(f"v_add_u32 v{VT}, s{base_s}, v{VT}")
    def chain(n0, n1, first, wait=True):
        for ks in range(n0, n1):
            a(f"ds_read_b128 {vr(XSF+4*(ks&3),4)}, v{VT} offset:{ks*512}")
            for t_ in range(2):
                a(f"ds_read_b64_tr_b16 {vr(WBF+4*(ks&3)+2*t_,2)}, v{VT+2} offset:{ks*4096+t_*2048}")
        if wait: a("s_waitcnt lgkmcnt(0)")
    def mf(ks, first): a(f"v_mfma_f32_16x16x32_bf16 {vr(MACC,4)}, {vr(XSF+4*(ks&3),4)}, {vr(WBF+4*(ks&3),4)}, {'0' if first else vr(MACC,4)}")
    def out_addr(row_bytes):
        a(f"v_mul_u32_u24 v{VT+1}, {4*row_bytes}, v{VT+1}")
        a(f"v_and_b32 v{VT}, 15, v0")
        a(f"v_lshl_add_u32 v{VT}, v{VT}, 2, v{VT+1}")
    def atomics(row_bytes, tag, cond):
        a("s_bfm_b64 exec, 32, 0")
        for r in range(4):
            a(f"s_add_u32 s{sT+1}, s{sT}, {r*row_bytes}")
            a(f"buffer_atomic_add_f32 v{MACC+r}, v{VT}, {srd(sWS)}, s{sT+1} offen")
        a("s_mov_b64 exec, -1")
        vm.issue(tag, 4, cond=cond)
    def s1c_a():
        cg_of(a, sT+2)
        a(f"s_and_b32 s{sT}, s{sT+2}, 3")
        a(f"s_lshl_b32 s{sT}, s{sT}, 12")
        a(f"s_add_u32 s{sT}, s{sT}, {L_XS}")
        afrag_addr(sT)
        a(f"s_lshl_b32 s{sT}, s{KH}, 15")
        a(f"s_add_u32 s{sT}, s{sT}, {L_S1}")
        a(f"v_add_u32 v{VT+2}, s{sT}, v{VFR}")
        chain(0, 4, True, False)
    def s1c_b():
        a("s_waitcnt lgkmcnt(0)")
        for ks in range(4): mf(ks, ks == 0)
        chain(4, 8, False, False)
    def s1c_c():
        a("s_waitcnt lgkmcnt(0)")
        for ks in range(4, 8): mf(ks, False)
        out_addr(14336)
    def s1c_d():
        cg_of(a, sT+2)
        a(f"s_lshr_b32 s{sT}, s{sT+2}, 2")
        a(f"s_lshl_b32 s{sT}, s{sT}, 8")
        a(f"s_and_b32 s{sT+1}, s{W}, 3")
        a(f"s_lshl_b32 s{sT+1}, s{sT+1}, 6")
        a(f"s_add_u32 s{sT}, s{sT}, s{sT+1}")
        a(f"s_mul_i32 s{sT+1}, s{KH}, 114688")
        a(f"s_add_u32 s{sT}, s{sT}, s{sT+1}")
        a(f"s_add_u32 s{sT}, s{sT}, {WS_GU}")
        atomics(14336, "gat", True)
    def s1_compute():
        def f(): s1c_a(); s1c_b(); s1c_c(); s1c_d()
        guarded(f)
    def s1_flag():
        vm.wait("gat")
        def f():
            hf_addr(a, sT)
            signal(a, sT, 1, VT, VT+1)
            vm.issue("hfl", 1, cond=True)
        guarded(f)
    def one_wave(fn, tag):
        lab = a.new_label(f"{name}_w0")
        a(f"s_cmp_lg_u32 s{W}, 0")
        a(f"s_cbranch_scc1 {lab}")
        fn()
        a.label(lab)
    def s2_poll():
        def f():
            a(f"s_lshr_b32 s{sT}, s2, 4")
            a(f"s_mul_i32 s{sT}, s{sT}, 7")
            a(f"s_lshr_b32 s{sT}, s{sT}, 1")
            a(f"s_lshl_b32 s{sT}, s{sT}, 7")
            a(f"s_add_u32 s{sT}, s{sT}, {WS_HF}")
            a(f"v_lshlrev_b32 v{VT+4}, 7, v0")
            a(f"v_add_u32 v{VT+4}, s{sT}, v{VT+4}")
            apoll(a, VT+5, VT+4, 4)
        one_wave(f, "hp")
        vm.issue("hpoll", 1, cond=True)
    def s2_check():
        def f():
            vm.copy().wait("hpoll")
            acheck(a, f"{name}_hp", VT+5, VT+4, 32, 4, cold)
        one_wave(f, "hc")
    def s2_load():
        a(f"s_lshr_b32 s{sT}, s2, 4")
        a(f"s_mul_i32 s{sT}, s{sT}, 896")
        a(f"s_mul_i32 s{sT+1}, s{W}, 14336")
        a(f"s_add_u32 s{sT}, s{sT}, s{sT+1}")
        a(f"s_add_u32 s{sT}, s{sT}, {WS_GU}")
        a(f"s_add_u32 s{sT+1}, s{sT}, 114688")
        a("s_bfm_b64 exec, 56, 0")
        a(f"buffer_load_dwordx4 {vr(XSF,4)}, v{VL}, {srd(sWS)}, s{sT} offen sc1")
        a(f"buffer_load_dwordx4 {vr(XSF+4,4)}, v{VL}, {srd(sWS)}, s{sT+1} offen sc1")
        a("s_mov_b64 exec, -1")
        vm.issue("hld", 2)
    def s2_h():
        vm.wait("hld")
        Gs, Us, Tm = XSF, XSF+4, XSF+8
        for e in range(0, 4, 2):
            a(f"v_cvt_pk_bf16_f32 v{Tm}, v{Gs+e}, v{Gs+e+1}")
            a(f"v_cvt_pk_bf16_f32 v{Tm+1}, v{Us+e}, v{Us+e+1}")
            a(f"v_lshlrev_b32 v{Gs+e}, 16, v{Tm}")
            a(f"v_and_b32 v{Gs+e+1}, 0xffff0000, v{Tm}")
            a(f"v_lshlrev_b32 v{Us+e}, 16, v{Tm+1}")
            a(f"v_and_b32 v{Us+e+1}, 0xffff0000, v{Tm+1}")
        for e in range(4): a(f"v_mul_f32 v{Tm+e}, 0xbfb8aa3b, v{Gs+e}")
        for e in range(4): a(f"v_exp_f32 v{Tm+e}, v{Tm+e}")
        for e in range(4): a(f"v_add_f32 v{Tm+e}, 1.0, v{Tm+e}")
        for e in range(4): a(f"v_rcp_f32 v{Tm+e}, v{Tm+e}")
        for e in range(4): a(f"v_mul_f32 v{Gs+e}, v{Gs+e}, v{Tm+e}")
        for e in range(0, 4, 2):
            a(f"v_cvt_pk_bf16_f32 v{Tm}, v{Gs+e}, v{Gs+e+1}")
            a(f"v_lshlrev_b32 v{Gs+e}, 16, v{Tm}")
            a(f"v_and_b32 v{Gs+e+1}, 0xffff0000, v{Tm}")
        for e in range(4): a(f"v_mul_f32 v{Gs+e}, v{Gs+e}, v{Us+e}")
        a(f"v_cvt_pk_bf16_f32 v{Tm}, v{Gs}, v{Gs+1}")
        a(f"v_cvt_pk_bf16_f32 v{Tm+1}, v{Gs+2}, v{Gs+3}")
        a(f"v_lshrrev_b32 v{VT}, 1, v0")
        a(f"v_lshlrev_b32 v{VT}, 7, v{VT}")
        a(f"v_and_b32 v{VT+1}, 1, v0")
        a(f"v_lshl_add_u32 v{VT}, v{VT+1}, 3, v{VT}")
        a(f"s_lshl_b32 s{sT}, s{W}, 4")
        a(f"s_add_u32 s{sT}, s{sT}, {L_HI}")
        a(f"v_add_u32 v{VT}, s{sT}, v{VT}")
        a("s_bfm_b64 exec, 56, 0")
        a(f"ds_write_b64 v{VT}, {vr(Tm,2)}")
        a("s_mov_b64 exec, -1")
        if opt.get("dbg"):
            a(f"s_lshr_b32 s{sT}, s2, 4")
            a(f"s_mul_i32 s{sT}, s{sT}, 448")
            a(f"s_mul_i32 s{sT+1}, s{W}, 7168")
            a(f"s_add_u32 s{sT}, s{sT}, s{sT+1}")
            a(f"s_add_u32 s{sT}, s{sT}, {WS_H}")
            a(f"v_lshlrev_b32 v{VT}, 3, v0")
            a("s_bfm_b64 exec, 56, 0")
            a(f"buffer_store_dwordx2 {vr(Tm,2)}, v{VT}, {srd(sWS)}, s{sT} offen")
            a("s_mov_b64 exec, -1")
            vm.issue("dbg")
    def s2c_a():
        a(f"s_lshl_b32 s{sT}, s{KH}, 11")
        a(f"s_add_u32 s{sT}, s{sT}, {L_HI}")
        afrag_addr(sT)
        a(f"s_lshl_b32 s{sT}, s{KH}, 14")
        a(f"s_add_u32 s{sT}, s{sT}, {L_S2}")
        a(f"v_add_u32 v{VT+2}, s{sT}, v{VFR}")
        chain(0, 4, True, False)
    def s2c_b():
        a("s_waitcnt lgkmcnt(0)")
        a(f"s_cmp_lg_u32 s{KH}, 0")
        lab = a.new_label(f"{name}_s2k")
        for ks in range(4):
            if ks == 3: a(f"s_cbranch_scc1 {lab}")
            mf(ks, ks == 0)
        a.label(lab)
        out_addr(4096)
    def s2c_c():
        a(f"s_and_b32 s{sT}, s2, 15")
        a(f"s_lshl_b32 s{sT}, s{sT}, 8")
        a(f"s_and_b32 s{sT+1}, s{W}, 3")
        a(f"s_lshl_b32 s{sT+1}, s{sT+1}, 6")
        a(f"s_add_u32 s{sT}, s{sT}, s{sT+1}")
        a(f"s_add_u32 s{sT}, s{sT}, {WS_Y}")
        atomics(4096, "yat", False)
    def s2_compute(): s2c_a(); s2c_b(); s2c_c()
    def y_flag():
        vm.wait("yat")
        yf_addr(a, sT, sT+1)
        signal(a, sT, 1, VT, VT+1)
        vm.issue("yfl")
    RT = 58
    def route_detect():
        for i in range(8): a(f"v_readlane_b32 s{sT+i}, v{C_IX}, {i}")
        a(f"s_lshl_b32 s{sT+8}, s{sMT}, 2")
        a(f"s_and_b32 s{sT+9}, s{W}, 3")
        a(f"s_add_u32 s{sT+8}, s{sT+8}, s{sT+9}")
        a(f"s_mov_b32 s{RT}, 0")
        for i in range(8):
            a(f"s_lshr_b32 s{sT+9}, s{sT+i}, 5")
            a(f"s_cmp_eq_u32 s{sT+9}, s{sT+8}")
            a(f"s_cselect_b32 s{RT}, 1, s{RT}")
        a(f"s_cmp_lg_u32 s{RT}, 0")
        a(f"s_cbranch_scc1 {name}_rdet")
        a.label(f"{name}_rdet_done")
        vm.issue("ypoll", 1, cond=True)
        c = Asm()
        c.label(f"{name}_rdet")
        for t16 in range(2):
            c(f"v_lshrrev_b32 v{VT}, 11, v{C_VX}")
            c(f"v_add_u32 v{VT}, {16*t16}, v{VT}")
            c(f"v_mov_b32 v{C_AY+t16}, 0x7fff0000")
            c(f"v_mov_b32 v{C_WT+t16}, 0")
            c(f"v_and_b32 v{VT+1}, 0x7ff, v{C_VX}")
            c(f"v_lshlrev_b32 v{VT+1}, 1, v{VT+1}")
            c(f"v_add_u32 v{VT+1}, {WS_Y}, v{VT+1}")
            for i in range(8):
                c(f"v_readlane_b32 s{sT+8}, v{C_IX}, {8+i}")
                c(f"v_cmp_eq_u32 vcc, s{sT+i}, v{VT}")
                c(f"v_add_u32 v{VT+4}, {i*4096}, v{VT+1}")
                c(f"v_mov_b32 v{VT+5}, s{sT+8}")
                c(f"v_cndmask_b32 v{C_AY+t16}, v{C_AY+t16}, v{VT+4}, vcc")
                c(f"v_cndmask_b32 v{C_WT+t16}, v{C_WT+t16}, v{VT+5}, vcc")
        c(f"s_lshl_b32 s{sT+8}, s{sJ}, 7")
        c(f"s_add_u32 s{sT+8}, s{sT+8}, {WS_YF}")
        c(f"v_mov_b32 v{VT+4}, s{sT+8}")
        apoll(c, VT+5, VT+4)
        c(f"s_branch {name}_rdet_done")
        cold.append(c)
    def route_fetch():
        a(f"s_cmp_lg_u32 s{RT}, 0")
        a(f"s_cbranch_scc1 {name}_rfet")
        a.label(f"{name}_rfet_done")
        vm.issue("yld", 4, cond=True)
        c = Asm()
        c.label(f"{name}_rfet")
        c("s_waitcnt vmcnt(0)")
        acheck(c, f"{name}_yp", VT+5, VT+4, 128, 1, cold)
        for t16 in range(2):
            for hf in range(2):
                c(f"buffer_load_dwordx4 {vr(C_G+8*t16+4*hf,4)}, v{C_AY+t16}, {srd(sWS)}, 0 offen offset:{16*hf} sc1")
        c(f"s_branch {name}_rfet_done")
        cold.append(c)
    def wo_setup():
        a(f"v_lshrrev_b32 v{VD1}, 3, v0")
        a(f"v_lshlrev_b32 v{VD1}, 11, v{VD1}")
        a(f"v_bfe_u32 v{VT}, v0, 4, 1")
        a(f"s_bfe_u32 s{sT}, s{W}, 0x10001")
        a(f"s_lshl_b32 s{sT}, s{sT}, 1")
        a(f"v_or_b32 v{VT}, s{sT}, v{VT}")
        a(f"v_lshlrev_b32 v{VT}, 1, v{VT}")
        a(f"v_and_b32 v{VT+1}, 7, v0")
        a(f"v_xor_b32 v{VT}, v{VT}, v{VT+1}")
        a(f"v_lshl_add_u32 v{VD1}, v{VT}, 4, v{VD1}")
        a(f"s_lshl_b32 s{WOO}, s{W}, 14")
        a(f"s_lshl_b32 s{sT}, s{sJ}, 7")
        a(f"s_add_u32 s{WOO}, s{WOO}, s{sT}")
        a(f"s_lshl_b32 s{WOM}, s{W}, 10")
    def wo_dma(i, part=None):
        lab = a.new_label(f"{name}_wo")
        if part:
            a(f"s_cmp_ge_u32 s{W}, 6")
            a(f"s_cbranch_scc{1 if part == 'early' else 0} {lab}")
        a(f"s_add_u32 m0, s{WOM}, {i*8192}")
        a(f"s_add_u32 s{sT}, s{WOO}, {i*64*2048}")
        a(f"buffer_load_dwordx4 v{VD1}, {srd(sWO)}, s{sT} offen {nt('o')} lds")
        vm.issue("wo", 1, cond=bool(part))
        a.label(lab)
    FU.wo_dma = wo_dma

    sched = {}
    skip = opt.get("skip", [])
    def at(t, q, fn, tag=None):
        if tag in skip: return
        sched.setdefault((t, q), []).append(fn)
    def stag(t0, t1, fn, nm):
        if nm in skip: return
        if not opt.get("stag", True):
            at(*t0, fn); return
        sub = Asm(); sub.uid = a.uid + 1000*(len(cold) + 1)
        box = {}
        def emit(first):
            lab = a.new_label(f"{name}_st")
            a(f"s_cmp_{'lg' if first else 'eq'}_u32 s{KH}, 0")
            a(f"s_cbranch_scc1 {lab}")
            a(f"s_call_b64 s[{sT+6}:{sT+7}], {name}_{nm}")
            a.label(lab)
            if first:
                q0 = list(vm.q)
                keep = a.lines; a.lines = sub.lines
                a.label(f"{name}_{nm}")
                fn()
                a(f"s_setpc_b64 s[{sT+6}:{sT+7}]")
                a.lines = keep
                box["ops"] = [x for x in vm.q if x not in q0 or vm.q.count(x) > q0.count(x)]
                new = vm.q[len([x for x in vm.q if True]) - 0:]
                n_new = box_count(q0, vm.q)
                box["new"] = [(tg, True) for tg, _ in vm.q[len(vm.q) - n_new:]]
                vm.q = q0 + box["new"]
                cold.append(sub)
            else:
                vm.q += box["new"]
        at(*t0, lambda: emit(True)); at(*t1, lambda: emit(False))
    def box_count(q0, q1):
        n = 0
        ids0 = [x[0] for x in q0]
        for tg, _ in reversed(q1):
            if tg in ids0: break
            n += 1
        return n
    pre = {}
    chk = {}
    ldsw = set()
    assert BAR == 4
    if moe:
        E = opt.get("early", 0)
        if E and not opt.get("s1win"):
            for i in range(8): at(2 + i // 2, i & 1, lambda i=i: s1_dma(i), 'mdma')
        elif not opt.get("s1win"):
            for i in range(8): at(3 + i, 1, lambda i=i: s1_dma(i), 'mdma')
        pre[11-E] = ["s1w"]
        nb = opt.get("nb", True)
        if nb and "s1c" not in skip:
            for k_, fn in enumerate((s1c_a, s1c_b, s1c_c, s1c_d)): at(12 - E + k_//2, k_ & 1, lambda fn=fn: guarded(fn))
        elif not nb: stag((12-E, 0), (13-E, 0), s1_compute, "s1c")
        for i in range(4): at(16 - E + i, 0, lambda i=i: s2_dma(i), 'mdma')
        at(15-E, 0, s1_flag)
        at(18-E, 0, s2_poll, 'hp')
        chk[19-E] = s2_check
        at(20-E, 0, s2_load, 'hp')
        if nb and "s2h" not in skip: at(22-E, 0, s2_h)
        elif not nb: stag((22-E, 0), (23-E, 0), s2_h, "s2h")
        ldsw.add(23-E)
        pre[23-E] = ["s2w"]
        if nb and "s2c" not in skip:
            for k_, fn in enumerate((s2c_a, s2c_b, s2c_c)): at(24 - E + k_//2, k_ & 1, fn)
        elif not nb: stag((24-E, 0), (25-E, 1), s2_compute, "s2c")
        at(27-E, 1, y_flag)
        at(29, 0, route_detect)
        at(30, 0, route_fetch)
    at(16, 0, wo_setup)
    W0 = opt.get("wo0", 20)
    wsched = opt.get("wsched")
    if not wsched: wsched = [(W0 + (i*opt.get("won", 10))//15, 1) for i in range(15)] + [(W0 + opt.get("won", 10), 1)]
    for i in range(15): at(*wsched[i], lambda i=i: wo_dma(i), 'wo')
    at(*wsched[15], lambda: wo_dma(15, 'early'))
    def kv_refresh_issue():
        apoll(a, VP, VPA)
        vm.issue("kvp")
    def kv_refresh_use():
        vm.wait("kvp")
        kv_mask(a)
    for t_ in opt.get("kvr", [2, 5]):
        at(t_, 0, kv_refresh_issue)
        at(t_ + 2, 0, kv_refresh_use)
    if not gwin: at(21, 0, x_load)
    at(30, 0, lambda: oh_setup(a, VT))
    ldsw.add(19 - opt.get("early", 0))
    if not gwin: at(17 - opt.get("early", 0), 1, misc_read)

    def hooks(t, q):
        def h(pos):
            if t < 2: return
            if q == 0:
                if pos == "Mc": vm.wait(f"V{t}_0")
                if pos == "Ma+" and t + 3 < NT: ldV(t+3, 0)
                if pos == "Mb+" and t + 3 < NT: ldV(t+3, 1)
            else:
                if pos == "Ma": vm.wait(f"K{t+1}_1", f"V{t}_1")
                if pos == "Md+" and t + 4 < NT: ldK(t+4, 0)
                if pos == "Mc+" and t + 4 < NT: ldK(t+4, 1)
        return h
    pm = opt.get("pmode", 1)
    def prio(t):
        if pm == 1: a(f"s_setprio {3 - (t % BAR) * 4 // BAR}")
        if pm == 2 and t % 2 == 0: a(f"s_setprio {3 - (t % BAR)}")
        if pm == 0 and t == 2: a("s_setprio 0")
    def prio2(t):
        if pm == 3:
            if t % BAR == 0 or t == 2:
                lab = a.new_label(f"{name}_pr")
                a("s_setprio 0")
                a(f"s_cmp_eq_u32 s{KH}, 0")
                a(f"s_cbranch_scc1 {lab}")
                a("s_setprio 1")
                a.label(lab)
            if t % BAR == 2 and t != 2: a("s_setprio 0")
    XR, XST = 228, 236
    lab = a.new_label(f"{name}_kvf")
    a(f"s_cmp_eq_u32 s{KH}, 0")
    a(f"s_cselect_b32 s{sT}, 0, 1")
    a(f"s_cbranch_scc1 {lab}")
    a("s_setprio 3")
    a.label(lab)
    unit(a, R, 0, 0, NB); unit(a, R, 0, 1, NB)
    unit(a, R, 1, 0, NB); unit(a, R, 1, 1, NB, noqk=True)
    vm.drain()
    a(f"s_cmp_eq_u32 s{KH}, 0")
    a(f"s_cbranch_scc1 {lab}_f")
    kvf_addr(a, sT, sT+1)
    a(f"s_lshl_b32 s{sT+1}, 1, s{sMT}")
    signal(a, sT, f"s{sT+1}", VT, VT+1, "or")
    if moe and not t8a: a(f"s_branch {lab}_g")
    a.label(f"{lab}_f")
    win = moe and not t8a
    KEY, TT, CAND, XR2, XST2 = RKEY, 216, 224, 228, 244 - 0
    if win:
        a(f"s_lshl_b32 s{sT}, s{W}, 9")
        a(f"v_lshlrev_b32 v{CAND+1}, 2, v0")
        a(f"v_add_u32 v{CAND+1}, s{sT}, v{CAND+1}")
        make_keys(a, KEY, TT, CAND+1, [0, 1, 2, 3, 256, 257, 258, 259])
        a(f"v_mov_b32 v{CAND}, 0")
        for r in range(8): top8_round(a, list(range(KEY, KEY+8)), TT, CAND, sT, r)
        a(f"s_lshl_b32 s{sT}, s{W}, 5")
        a(f"s_add_u32 s{sT}, s{sT}, {L_CAND}")
        a(f"v_lshlrev_b32 v{CAND+1}, 2, v0")
        a(f"v_add_u32 v{CAND+1}, s{sT}, v{CAND+1}")
        a("s_mov_b64 exec, 0xff")
        a(f"ds_write_b32 v{CAND+1}, v{CAND}")
        a("s_mov_b64 exec, -1")
        a("s_waitcnt lgkmcnt(0)")
        a.label(f"{lab}_g")
        a.stamp(4)
        a("s_barrier")
        a(f"s_cmp_lg_u32 s{KH}, 0")
        a(f"s_cbranch_scc1 {lab}_h")
        a(f"v_and_b32 v{CAND+1}, 31, v0")
        a(f"v_lshlrev_b32 v{CAND+1}, 2, v{CAND+1}")
        a(f"v_add_u32 v{CAND+1}, {L_CAND}, v{CAND+1}")
        a(f"ds_read_b32 v{KEY}, v{CAND+1}")
        a("v_cmp_gt_u32 vcc, 32, v0")
        a("s_waitcnt lgkmcnt(0)")
        a(f"v_cndmask_b32 v{KEY}, 0, v{KEY}, vcc")
        for r in range(8): top8_round(a, [KEY], TT, CAND, sT, r)
        decode_keys(a, CAND, TT+1, TT+2, TT)
        a(f"v_lshlrev_b32 v{CAND+1}, 2, v0")
        a(f"v_add_u32 v{CAND+2}, {L_IDX}, v{CAND+1}")
        a("s_mov_b64 exec, 0xff")
        a(f"ds_write_b32 v{CAND+2}, v{TT+1}")
        a(f"ds_write_b32 v{CAND+2}, v{TT+2} offset:32")
        if opt.get("dbg"):
            a(f"s_mov_b32 s{sT}, {WS_IDX}")
            a(f"buffer_store_dword v{TT+1}, v{CAND+1}, {srd(sWS)}, s{sT} offen")
            a(f"buffer_store_dword v{TT+2}, v{CAND+1}, {srd(sWS)}, s{sT} offen offset:32")
        a("s_mov_b64 exec, -1")
        xsel_fetch(a, vm, TT+1, 196, 212, 2)
        vm.q = []
        a.label(f"{lab}_h")
    else:
        a.stamp(4)
        if moe:
            xsel_normalise(a, VT, XR, XST)
            a("s_waitcnt lgkmcnt(0)")
            if opt.get("s1win"):
                lab2 = a.new_label(f"{name}_s1w")
                a(f"s_cmp_lg_u32 s{KH}, 0")
                a(f"s_cbranch_scc1 {lab2}")
                a(f"s_cmp_eq_u32 s{HASJ}, 0")
                a(f"s_cbranch_scc1 {lab2}")
                a(f"s_mul_i32 s{sT+1}, s{W}, {32*7168}")
                a(f"s_add_u32 s{sT+1}, s{sT+1}, s{S1O}")
                a(f"s_lshl_b32 s{sT+2}, s{W}, 13")
                for h2 in range(2):
                    for i in range(8):
                        m, pc = i >> 2, i & 3
                        a(f"s_add_u32 m0, s{sT+2}, {L_S1 + m*32768 + h2*4096 + pc*1024}")
                        a(f"s_add_u32 s{sT}, s{sT+1}, {(32*h2 + 16*(pc&1) + 4*(pc>>1))*7168}")
                        a(f"buffer_load_dwordx4 v{VD1}, {srd(sWG if m == 0 else sWU)}, s{sT} offen {nt('m')} lds")
                a.label(lab2)
                vm.issue("s1w", 16, cond=True)
    if gwin:
        for t16 in range(2):
            for p in range(4): xn_pair(a, t16, p, R.S1 + 8*t16 + 2*p, R.S1 + 8*t16 + 2*p + 1, R.T)
    a.stamp(5)
    ldK(2, 0)
    a.stamp(6)
    ldK(2, 1); ldV(2, 0); ldV(2, 1); ldK(3, 0); ldK(3, 1); ldV(3, 0); ldV(3, 1)
    ldK(4, 0); ldK(4, 1); ldV(4, 0); ldV(4, 1); ldK(5, 0); ldK(5, 1)
    if gwin:
        a(*silu16(R.S1, R.T))
        for p in range(8): a(f"v_cvt_pk_bf16_f32 v{C_G+p}, v{R.S1+2*p}, v{R.S1+2*p+1}")
    if win:
        a(f"s_cmp_lg_u32 s{KH}, 0")
        a(f"s_cbranch_scc1 {lab}_i")
        a("s_waitcnt vmcnt(14)")
        xsel_normalise(a, VT, 196, 212, 2)
        a("s_waitcnt lgkmcnt(0)")
        a.label(f"{lab}_i")
    vm.wait("K2_1")
    a(M32(R.S0, R.KB+16, Q, None))
    a(M32(R.S0, R.KB+20, Q+4, R.S0))
    a("s_nop 10")
    for t in range(2, NT):
        a.trace(t, "b")
        prio(t); prio2(t)
        for q in range(2):
            a.trace(2*t + q, "u")
            for fn in sched.get((t, q), []): fn()
            unit(a, R, t, q, NB, hooks(t, q))
        if (t % BAR) == BAR - 1 and t != NT - 1:
            if t in ldsw: a("s_waitcnt lgkmcnt(0)")
            if t in pre: vm.wait(*pre[t])
            if t in chk and 'hp' not in skip: chk[t]()
            a("s_barrier")
    a("s_setprio 0")
    a.stamp(7)
    a(M32(O+16, R.VB+8*((NT-1)%NB)+4, P+4, O+16))
    a(SM(L+4, R.ONES, P, R.IDX))
    a.trace(50, "c")
    a("s_nop 7")
    a("s_nop 7")
    exchange_and_store(a, name, vm, R, opt, cold)
    c = Asm()
    AT.attn_slow_path(c, R, name, KH, sWS, HB, s0=sT)
    cold.append(c)

SLOWD = 74
def exchange_and_store(a, name, vm, R, opt, cold):
    O, L, T, VL, P = R.O, R.L, R.T, R.VL, R.P
    a(f"s_mov_b64 s[{SLOWD}:{SLOWD+1}], 0")
    a(f"v_add_f32 v{L}, v{L}, v{L+1}")
    a(f"v_add_f32 v{L+4}, v{L+4}, v{L+5}")
    a(f"s_lshl_b32 s{sT}, s{W}, 12")
    a(f"s_add_u32 s{sT}, s{sT}, {L_EX}")
    a(f"v_add_u32 v{T}, s{sT}, v{VL}")
    a(f"v_xor_b32 v{T+1}, 16384, v{T}")
    a(f"s_lshl_b32 s{sT}, s{W}, 8")
    a(f"s_add_u32 s{sT}, s{sT}, {L_LX}")
    a(f"v_lshrrev_b32 v{T+2}, 2, v{VL}")
    a(f"v_add_u32 v{T+2}, s{sT}, v{T+2}")
    a(f"v_xor_b32 v{T+3}, 1024, v{T+2}")
    a(f"s_cmp_eq_u32 s{KH}, 0")
    a(f"s_cbranch_scc1 {name}_kh0")
    for r in range(4): a(f"ds_write_b128 v{T}, {vr(O+4*r,4)} offset:{r*1024}")
    a(f"ds_write_b32 v{T+2}, v{L}")
    a("s_waitcnt lgkmcnt(0)")
    for r in range(16): a(f"v_mov_b32 v{O+r}, v{O+16+r}")
    a(f"v_mov_b32 v{L}, v{L+4}")
    a(f"s_branch {name}_khj")
    a.label(f"{name}_kh0")
    for r in range(4): a(f"ds_write_b128 v{T}, {vr(O+16+4*r,4)} offset:{r*1024}")
    a(f"ds_write_b32 v{T+2}, v{L+4}")
    a.label(f"{name}_khj")
    a("s_waitcnt lgkmcnt(0)")
    a("s_barrier")
    for r in range(4): a(f"ds_read_b128 {vr(O+16+4*r,4)}, v{T+1} offset:{r*1024}")
    a(f"ds_read_b32 v{L+4}, v{T+3}")
    otile(a, sT, sT+1)
    a(f"s_lshl_b32 s{sT}, s{sT}, 6")
    head_of(a, sT+1, sT+2)
    a(f"s_add_u32 s{sT}, s{sT}, s{sT+1}")
    a(f"s_lshl_b32 s{sT+4}, s{sT}, 10")
    a(f"s_add_u32 s{sT+4}, s{sT+4}, {WS_O}")
    a(f"v_bfe_u32 v{T+4}, v0, 4, 1")
    a(f"v_lshlrev_b32 v{T+4}, 15, v{T+4}")
    a(f"v_lshrrev_b32 v{T+5}, 5, v0")
    a(f"v_lshl_add_u32 v{T+4}, v{T+5}, 9, v{T+4}")
    a(f"v_and_b32 v{T+5}, 15, v0")
    a(f"v_lshl_add_u32 v{T+4}, v{T+5}, 4, v{T+4}")
    a("s_waitcnt lgkmcnt(0)")
    a.trace(51, "c")
    for r in range(16): a(f"v_add_f32 v{O+r}, v{O+r}, v{O+16+r}")
    a(f"v_add_f32 v{L}, v{L}, v{L+4}")
    a(f"v_mov_b32 v{T+1}, 0")
    a.label(f"{name}_fin")
    a(f"v_rcp_f32 v{T}, v{L}")
    a(f"s_mov_b32 s{sT}, 0x2b800000")
    for jj in range(2):
        for e_ in range(4):
            r0 = O + 8*jj + 2*e_
            a(f"v_pk_mul_f32 {vr(O+16+8*jj+2*e_,2)}, {vr(r0,2)}, {vr(T,2)} op_sel_hi:[1,0]")
            a(f"v_cvt_pk_bf16_f32 v{P+4*jj+e_}, v{O+16+8*jj+2*e_}, v{O+16+8*jj+2*e_+1}")
        a(f"buffer_store_dwordx4 {vr(P+4*jj,4)}, v{T+4}, {srd(sWS)}, s{sT+4} offen offset:{jj*256} sc1")
    vm.issue("ost", 2)
    a(f"v_mov_b32 v{T+1}, 0")
    for r in range(16): a(f"v_fmac_f32 v{T+1}, 0, v{O+r}")
    a(f"s_mov_b32 s{sT+1}, 0x5d800000")
    a(f"v_cmp_nle_f32 s[{sT+6}:{sT+7}], s{sT}, v{L}")
    a(f"v_cmp_nge_f32 s[{sT+2}:{sT+3}], s{sT+1}, v{L}")
    a(f"v_cmp_u_f32 vcc, v{T+1}, v{T+1}")
    a(f"s_or_b64 s[{sT+6}:{sT+7}], s[{sT+6}:{sT+7}], s[{sT+2}:{sT+3}]")
    a(f"s_or_b64 s[{sT+6}:{sT+7}], s[{sT+6}:{sT+7}], vcc")
    a(f"s_andn2_b64 s[{sT+6}:{sT+7}], s[{sT+6}:{sT+7}], s[{SLOWD}:{SLOWD+1}]")
    a(f"s_cmp_lg_u64 s[{sT+6}:{sT+7}], 0")
    a(f"s_cbranch_scc1 {name}_slow0_")
    c = Asm()
    c.label(f"{name}_slow0_")
    c(f"s_mov_b64 s[{SLOWD}:{SLOWD+1}], -1")
    c(f"s_branch {name}_slow")
    cold.append(c)
    a.trace(52, "c")

def phaseC(a, name, cold, opt, vm):
    H = OH
    ACC, WB = 4, 36
    XP, VX, MS = C_XP, C_VX, C_MS
    VL2, G, WA, WG, T = 1, C_G, 228, 232, 240
    moe = opt.get("moe", True)
    a(f"v_lshrrev_b32 v{T+1}, 4, v0")
    a(f"v_and_b32 v{T+6}, 1, v{T+1}")
    a(f"v_lshlrev_b32 v{T+7}, 4, v{T+6}")
    a(f"v_lshrrev_b32 v{T+8}, 1, v{T+1}")
    a(f"v_lshl_add_u32 v{T+7}, v{T+8}, 2, v{T+7}")
    a(f"v_bfe_u32 v{T+8}, v0, 2, 2")
    a(f"v_add_u32 v{T+7}, v{T+7}, v{T+8}")
    a(f"v_lshlrev_b32 v{T+7}, 7, v{T+7}")
    a(f"v_and_b32 v{T+8}, 3, v0")
    a(f"v_lshl_add_u32 v{T+7}, v{T+8}, 3, v{T+7}")
    a(f"v_lshlrev_b32 v{T+6}, 1, v{T+6}")
    a(f"v_bfe_u32 v{T+8}, v0, 3, 1")
    a(f"v_or_b32 v{T+6}, v{T+6}, v{T+8}")
    a(f"v_lshl_add_u32 v{T+7}, v{T+6}, 5, v{T+7}")
    a(f"s_lshl_b32 s{sT}, s{KH}, 16")
    a(f"v_add_u32 v{WA}, s{sT}, v{T+7}")
    for ct in range(1, 4): a(f"v_xor_b32 v{WA+ct}, {ct*32}, v{WA}")
    of_addr(a, sT, sT+1)
    a.trace(53, "c")
    vm.drain()
    a.trace(54, "c")
    signal(a, sT, f"s{sT+1}", T+6, T+7, "or")
    a.stamp(8)
    a("s_barrier")
    FU.wo_dma(15, 'late')
    oh_poll(a, vm)
    c = Asm()
    c.label(f"{name}_ospin")
    c(f"s_mov_b32 s{sT+11}, 0")
    c.label(f"{name}_oagain")
    apoll(c, H.VPo, H.VPa)
    c(f"s_add_u32 s{sT+11}, s{sT+11}, 1")
    c(f"s_cmp_gt_u32 s{sT+11}, {SPIN_LIMIT}")
    c(f"s_cselect_b32 s{H.MASK}, s{H.NEED}, s{H.MASK}")
    c(f"s_cbranch_scc1 {name}_oout")
    c("s_waitcnt vmcnt(0)")
    oh_ready(c)
    c(f"s_cbranch_scc0 {name}_oagain")
    c.label(f"{name}_oout")
    c(f"s_setpc_b64 s[{H.RET}:{H.RET+1}]")
    cold.append(c)
    def ogroup(g):
        lab = a.new_label(f"{name}_og")
        a(f"s_cmp_lg_u32 s{H.MASK}, 0")
        a(f"s_cbranch_scc1 {lab}")
        a(f"s_call_b64 s[{H.RET}:{H.RET+1}], {name}_ospin")
        a.label(lab)
        oh_take(a, g)
        for i in range(4*g, 4*g+4): vm.issue(f"O{i}", 2)
    xn = lambda o, t16, p, g0, g1: xn_pair(o, t16, p, g0, g1, T+6)
    gwin = opt.get("gwin", False) and opt.get("t8a", True)
    if moe:
        a("s_cmp_lg_u32 s58, 0")
        a(f"s_cbranch_scc1 {name}_routed")
    if gwin:
        for p in range(7, -1, -1):
            a(f"v_and_b32 v{G+2*p+1}, 0xffff0000, v{G+p}")
            a(f"v_lshlrev_b32 v{G+2*p}, 16, v{G+p}")
    else:
        for t16 in range(2):
            for p in range(4): xn(a, t16, p, G + 8*t16 + 2*p, G + 8*t16 + 2*p + 1)
    if moe:
        a.label(f"{name}_routed_done")
        c = Asm()
        c.label(f"{name}_routed")
        for t16 in range(2):
            for p in range(4):
                g0, g1 = G + 8*t16 + 2*p, G + 8*t16 + 2*p + 1
                c(f"v_cvt_pk_bf16_f32 v{T+7}, v{g0}, v{g1}")
                c(f"v_lshlrev_b32 v{g0}, 16, v{T+7}")
                c(f"v_and_b32 v{g1}, 0xffff0000, v{T+7}")
                c(f"v_mul_f32 v{g0}, v{g0}, v{C_WT+t16}")
                c(f"v_mul_f32 v{g1}, v{g1}, v{C_WT+t16}")
                c(f"v_cvt_pk_bf16_f32 v{T+7}, v{g0}, v{g1}")
                xn(c, t16, p, T+8, T+9)
                c(f"v_lshlrev_b32 v{g0}, 16, v{T+7}")
                c(f"v_and_b32 v{g1}, 0xffff0000, v{T+7}")
                c(f"v_add_f32 v{g0}, v{g0}, v{T+8}")
                c(f"v_add_f32 v{g1}, v{g1}, v{T+9}")
                c(f"v_cvt_pk_bf16_f32 v{T+7}, v{g0}, v{g1}")
                c(f"v_lshlrev_b32 v{g0}, 16, v{T+7}")
                c(f"v_and_b32 v{g1}, 0xffff0000, v{T+7}")
        if gwin: c(*silu16(G, T+6))
        c(f"s_branch {name}_routed_done")
        cold.append(c)
    a.trace(55, "c")
    pipe = opt.get("pipe", False)
    def look(more):
        if not any(tg == "opoll" for tg, _ in vm.q): return
        vm.wait("opoll")
        oh_ready(a)
        if more and pipe: oh_poll(a, vm)
    silu_ops = lambda: [] if gwin else silu16(G, T+6)
    weave = opt.get("sweave", False)
    fill = silu_ops() if weave else []
    look(True)
    if opt.get("bar1", True): a("s_barrier")
    if DIAG and TRACE: a(f"v_writelane_b32 v255, s{H.RAW}, 2")
    ogroup(0)
    a.trace(56, "c")
    if not weave: a(*silu_ops())
    look(True)
    ogroup(1)
    a.trace(40, "c")
    if not opt.get("bar1", True): a("s_barrier")
    a.trace(42, "c")
    def wgroup(g):
        a(f"s_lshl_b32 s{sT}, s{H.GIDS[g]}, 14")
        for ct in range(4): a(f"v_add_u32 v{WG+ct}, s{sT}, v{WA+ct}")
    def wreads(i):
        return [f"ds_read_b64_tr_b16 {vr(WB+16*(i&1)+4*ct+2*t_,2)}, v{WG+ct} offset:{(i%4)*4096+t_*1024}" for ct in range(4) for t_ in range(2)]
    wgroup(0)
    a(*wreads(0))
    a.trace(58, "c")
    G2, G3 = opt.get("g23", [1, 4])
    for i in range(16):
        if i == G2: look(True); ogroup(2)
        if i == G3: look(False); ogroup(3)
        if i < 15 and (i + 1) % 4 == 0: wgroup((i + 1) // 4)
        r = wreads(i+1) if i < 15 else []
        vm.wait(f"O{i}")
        a("s_waitcnt lgkmcnt(0)")
        if i == 0: a.trace(62, "c")
        if i == 8: a.trace(63, "c")
        k = 0
        for ct in range(4):
            for t16 in range(2):
                d = vr(ACC+16*t16+4*ct, 4)
                a(f"v_mfma_f32_16x16x32_bf16 {d}, {vr(WB+16*(i&1)+4*ct,4)}, {vr(H.SLOT[i//4]+8*(i%4)+4*t16,4)}, {d if i else 0}")
                if r: a(r[k])
                if fill and i >= opt.get("sw0", 4): a(fill.pop(0))
                k += 1
    a(*fill)
    a.trace(61, "c")
    EX = 131072
    a(f"s_lshl_b32 s{sT}, s{W}, 12")
    a(f"s_add_u32 s{sT}, s{sT}, {EX}")
    a(f"s_xor_b32 s{sT+1}, s{sT}, 16384")
    a(f"v_add_u32 v{T}, s{sT}, v{VL2}")
    a(f"v_add_u32 v{T+1}, s{sT+1}, v{VL2}")
    a(f"s_cmp_eq_u32 s{KH}, 0")
    a("s_nop 3")
    a(f"s_cbranch_scc1 {name}_ck0")
    for t16 in range(2):
        for cc in range(2): a(f"ds_write_b128 v{T}, {vr(ACC+16*t16+4*cc,4)} offset:{(2*t16+cc)*1024}")
    a("s_waitcnt lgkmcnt(0)")
    for t16 in range(2):
        for r in range(8): a(f"v_mov_b32 v{ACC+16*t16+r}, v{ACC+16*t16+8+r}")
    a(f"s_branch {name}_ckj")
    a.label(f"{name}_ck0")
    for t16 in range(2):
        for cc in range(2): a(f"ds_write_b128 v{T}, {vr(ACC+16*t16+8+4*cc,4)} offset:{(2*t16+cc)*1024}")
    a.label(f"{name}_ckj")
    XF = 68
    for t16 in range(2):
        for p in range(4):
            a(f"v_lshlrev_b32 v{XF+8*t16+2*p}, 16, v{XP+4*t16+p}")
            a(f"v_and_b32 v{XF+8*t16+2*p+1}, 0xffff0000, v{XP+4*t16+p}")
    a("s_waitcnt lgkmcnt(0)")
    a("s_barrier")
    for t16 in range(2):
        for cc in range(2): a(f"ds_read_b128 {vr(ACC+16*t16+8+4*cc,4)}, v{T+1} offset:{(2*t16+cc)*1024}")
    a(f"s_mov_b32 s{sT}, 32768")
    for t16 in range(2):
        b = ACC + 16*t16
        a(f"s_waitcnt lgkmcnt({2-2*t16})")
        for r in range(8): a(f"v_add_f32 v{b+r}, v{b+r}, v{b+8+r}")
        for r in range(4): a(f"v_permlane16_swap_b32 v{b+r}, v{b+4+r}")
        for e in range(8): a(f"v_fmac_f32 v{XF+8*t16+e}, v{b+e}, v{G+8*t16+e}")
        for p in range(4): a(f"v_cvt_pk_bf16_f32 v{XP+4*t16+p}, v{XF+8*t16+2*p}, v{XF+8*t16+2*p+1}")
        a(f"buffer_store_dwordx4 {vr(XP+4*t16,4)}, v{VX}, {srd(sOUT)}, {'0' if t16 == 0 else f's{sT}'} offen {opt.get('outf', 'nt')}")
```

```python
import os
from asmlib import *
from layout import *
from k_top8 import DPPS, make_keys, decode_keys
from k_attn import M32, M16
import k_attn2 as AT
from k_moe import pi_row, silu_bf16, round_bf16

QSCALE = 0x3e8293ee
sX, sWQ, sWS, sWR, sDBG, sWG, sWU, sWD, sWO, sOUT = 4, 8, 12, 16, 20, 24, 28, 32, 36, 40
sJ, sMT, sLI, sXC = 44, 45, 46, 47
sIDX, sWT = 48, 56
sT = 64
W = 3
SLOT, WOFF = 40960, 16384
L_Q, L_XS, L_MISC = 122880, 139264, 159744
L_M, L_RS, L_CS, L_CAND, L_IDX, L_H = L_MISC, L_MISC+512, L_MISC+1024, L_MISC+1792, L_MISC+1920, L_MISC+2048
L_ST, L_TK = L_MISC+3072, L_MISC+3200
LDS_BYTES = 163840
SPIN_LIMIT = 400000
RKEY = 208

def srd(r): return f"s[{r}:{r+3}]"

def wsum(a, r, sdst, op="add_f32"):
    for ctl in DPPS:
        bc = " bound_ctrl:0" if ctl.startswith("row_shr") and op == "add_f32" else ""
        a("s_nop 1")
        a(f"v_{op}_dpp v{r}, v{r}, v{r} {ctl}{bc}")
    a("s_nop 0")
    a(f"v_readlane_b32 s{sdst}, v{r}, 63")
    a("s_nop 1")

def ln_rows2(a, vm, X, WR, XB, T, voff, dbg, n=2):
    R2 = range(n)
    nop = "s_nop 0" if n == 2 else "s_nop 1"
    F_ = lambda i, e: XB + 16*i + e
    T_ = lambda i, k: T + 6*i + k
    def wsum2(k, sd):
        for ctl in DPPS:
            bc = " bound_ctrl:0" if ctl.startswith("row_shr") else ""
            a(nop)
            for i in R2: a(f"v_add_f32_dpp v{T_(i,k)}, v{T_(i,k)}, v{T_(i,k)} {ctl}{bc}")
        a("s_nop 0")
        for i in R2: a(f"v_readlane_b32 s{sT+3*i+sd}, v{T_(i,k)}, 63")
        a(nop)
    for i in R2:
        for p in range(8):
            a(f"v_lshlrev_b32 v{F_(i,2*p)}, 16, v{X+8*i+p}")
            a(f"v_and_b32 v{F_(i,2*p+1)}, 0xffff0000, v{X+8*i+p}")
    P2 = lambda r: vr(r, 2)
    for i in R2: a(f"v_pk_add_f32 {P2(T_(i,4))}, {P2(F_(i,0))}, {P2(F_(i,2))}")
    for e in range(4, 16, 2):
        for i in R2: a(f"v_pk_add_f32 {P2(T_(i,4))}, {P2(T_(i,4))}, {P2(F_(i,e))}")
    for i in R2: a(f"v_add_f32 v{T_(i,0)}, v{T_(i,4)}, v{T_(i,5)}")
    a("s_nop 0")
    wsum2(0, 0)
    for i in R2:
        a(f"v_mov_b32 v{T_(i,0)}, s{sT+3*i}")
    for i in R2:
        a(f"v_mul_f32 v{T_(i,0)}, 0x3a800000, v{T_(i,0)}")
    BC = "op_sel_hi:[1,0] neg_lo:[0,1] neg_hi:[0,1]"
    for e in range(0, 16, 2):
        for i in R2: a(f"v_pk_add_f32 {P2(T_(i,2))}, {P2(F_(i,e))}, {P2(T_(i,0))} {BC}")
        for i in R2:
            if e == 0: a(f"v_pk_mul_f32 {P2(T_(i,4))}, {P2(T_(i,2))}, {P2(T_(i,2))}")
            else: a(f"v_pk_fma_f32 {P2(T_(i,4))}, {P2(T_(i,2))}, {P2(T_(i,2))}, {P2(T_(i,4))}")
    for i in R2: a(f"v_add_f32 v{T_(i,1)}, v{T_(i,4)}, v{T_(i,5)}")
    a("s_nop 0")
    wsum2(1, 0)
    seq = lambda i: [
        f"v_mov_b32 v{T_(i,1)}, s{sT+3*i}",
        f"v_mul_f32 v{T_(i,1)}, 0x3a800000, v{T_(i,1)}",
        f"v_cvt_pk_bf16_f32 v{T_(i,2)}, v{T_(i,0)}, v{T_(i,1)}",
        f"v_lshlrev_b32 v{T_(i,0)}, 16, v{T_(i,2)}",
        f"v_and_b32 v{T_(i,1)}, 0xffff0000, v{T_(i,2)}",
        f"v_add_f32 v{T_(i,1)}, 0x3727c5ac, v{T_(i,1)}",
        f"v_cvt_pk_bf16_f32 v{T_(i,1)}, v{T_(i,1)}, v{T_(i,1)}",
        f"v_and_b32 v{T_(i,1)}, 0xffff0000, v{T_(i,1)}",
        f"v_sqrt_f32 v{T_(i,1)}, v{T_(i,1)}",
        f"v_readfirstlane_b32 s{sT+3*i}, v{T_(i,0)}",
        f"v_cvt_pk_bf16_f32 v{T_(i,1)}, v{T_(i,1)}, v{T_(i,1)}",
        f"v_and_b32 v{T_(i,1)}, 0xffff0000, v{T_(i,1)}",
        f"v_rcp_f32 v{T_(i,1)}, v{T_(i,1)}",
        f"v_mov_b32 v{T_(i,3)}, 0"]
    for xs in zip(*[seq(i) for i in R2]): a(*xs)
    if n == 1: a("s_nop 0")
    for p in range(8):
        st = lambda i: [
            f"v_pk_add_f32 {P2(F_(i,2*p))}, {P2(F_(i,2*p))}, {P2(T_(i,0))} {BC}",
            f"v_cvt_pk_bf16_f32 v{T_(i,2)}, v{F_(i,2*p)}, v{F_(i,2*p+1)}",
            f"v_lshlrev_b32 v{F_(i,2*p)}, 16, v{T_(i,2)}",
            f"v_and_b32 v{F_(i,2*p+1)}, 0xffff0000, v{T_(i,2)}",
            f"v_pk_mul_f32 {P2(F_(i,2*p))}, {P2(F_(i,2*p))}, {P2(T_(i,0))} op_sel:[0,1] op_sel_hi:[1,1]",
            f"v_cvt_pk_bf16_f32 v{X+8*i+p}, v{F_(i,2*p)}, v{F_(i,2*p+1)}"]
        for xs in zip(*[st(i) for i in R2]): a(*xs)
    for i in R2: a(f"v_readfirstlane_b32 s{sT+3*i+1}, v{T_(i,1)}")
    if dbg:
        for i in R2:
            a(f"buffer_store_dwordx4 {vr(X+8*i,4)}, v{voff}, {srd(sWS)}, 0 offen offset:{2048*i}")
            a(f"buffer_store_dwordx4 {vr(X+8*i+4,4)}, v{voff}, {srd(sWS)}, 0 offen offset:{2048*i+1024}")
    for p in range(8):
        for i in R2: a(f"v_dot2c_f32_bf16 v{T_(i,3)}, v{X+8*i+p}, v{WR+p}")
    a("s_nop 1")
    wsum2(3, 2)
    for i in R2: a(f"v_mov_b32 v{T_(i,0)}, s{sT+3*i+2}")
    for i in R2: a(f"v_cvt_pk_bf16_f32 v{T_(i,0)}, v{T_(i,0)}, v{T_(i,0)}")
    for i in R2: a(f"v_and_b32 v{T_(i,0)}, 0xffff0000, v{T_(i,0)}")
    a(f"v_mov_b32 v{T+1}, s{sT}")
    for i in R2: a(f"v_readfirstlane_b32 s{sT+3*i+2}, v{T_(i,0)}")
    a(f"v_lshlrev_b32 v{T+2}, 5, v0")
    a(f"s_lshl_b32 s{sT+6}, s{W}, {n+1}")
    a(f"s_add_u32 s{sT+6}, s{sT+6}, {L_ST}")
    a(f"v_add_u32 v{T+2}, s{sT+6}, v{T+2}")
    for l in range(1, 3*n): a(f"v_writelane_b32 v{T+1}, s{sT+l}, {l}")
    if n == 2:
        for l in range(3):
            a(f"s_add_u32 s{sT+7}, s{sT+6}, {l*32+4}")
            a(f"v_writelane_b32 v{T+2}, s{sT+7}, {3+l}")
    a(f"s_mov_b64 exec, {(1 << 3*n) - 1}")
    a(f"ds_write_b32 v{T+2}, v{T+1}")
    a("s_mov_b64 exec, -1")

def ln_loads(a, vm, opt, X=96, WR=112):
    n = opt.get("lnrows", 2)
    for q in range(2*n):
        a(f"buffer_load_dwordx4 {vr(X+4*q,4)}, v95, {srd(sX)}, 0 offen offset:{q*1024} {'nt' if 'l' in opt.get('nt', 'ms') else ''}")
    for q in range(2):
        a(f"buffer_load_dwordx4 {vr(WR+4*q,4)}, v94, {srd(sWR)}, 0 offen offset:{q*1024}")
    vm.issue("lnld", 2*n + 2)

def rec_of(a, d):
    a(f"s_lshl_b32 s{d}, s{sMT}, 4")
    a(f"s_add_u32 s{d}, s{d}, s{sJ}")

def publish_stats(a, vm, T):
    t = sT
    a(f"v_mov_b32 v{T+1}, 0")
    a("s_mov_b64 exec, 0xffffff")
    a(f"ds_read_b32 v{T+1}, v{T+2}")
    a(f"s_lshl_b32 s{t}, s2, 7")
    a(f"s_add_u32 s{t}, s{t}, {WS_Y}")
    a("s_mov_b64 exec, 0xff")
    a(f"buffer_store_dwordx4 {vr(T+4,4)}, v94, {srd(sWS)}, s{t} offen sc1")
    a(f"s_mul_i32 s{t}, s2, 896")
    a(f"s_add_u32 s{t}, s{t}, {WS_GU}")
    a("s_bfm_b64 exec, 56, 0")
    a(f"buffer_store_dwordx4 {vr(T+4,4)}, v94, {srd(sWS)}, s{t} offen sc1")
    a("s_bfm_b64 exec, 44, 0")
    a("s_waitcnt lgkmcnt(0)")
    a(f"buffer_store_dword v{T+1}, v{T}, {srd(sWS)}, 0 offen sc1")
    a("s_mov_b64 exec, -1")
    vm.issue("st", 3, cond=True)

def publish_zeros(a, vm, T):
    A_, D_, U_ = T, T+1, T+2
    t = sT
    a(f"v_lshlrev_b32 v{U_}, 2, v0")
    rec_of(a, t)
    a(f"s_lshl_b32 s{t}, s{t}, 7")
    a(f"s_add_u32 s{t}, s{t}, {WS_ST}")
    a(f"v_add_u32 v{A_}, s{t}, v{U_}")
    rec_of(a, t)
    a(f"s_lshl_b32 s{t}, s{t}, 5")
    a(f"s_add_u32 s{t}, s{t}, {WS_R - 64}")
    a(f"v_cmp_le_u32 vcc, 16, v0")
    a(f"v_add_u32 v{U_}, s{t}, v{U_}")
    a("s_nop 0")
    a(f"v_cndmask_b32 v{A_}, v{A_}, v{U_}, vcc")
    rec_of(a, t+2)
    a(f"s_lshl_b32 s{t+2}, s{t+2}, 7")
    a(f"s_add_u32 s{t+2}, s{t+2}, {WS_ST + 96}")
    a(f"s_lshl_b32 s{t}, s{sJ}, 9")
    a(f"s_add_u32 s{t}, s{t}, {WS_KVF}")
    a(f"v_and_b32 v{U_}, 3, v0")
    a(f"v_lshlrev_b32 v{U_}, 7, v{U_}")
    a(f"v_add_u32 v{U_}, s{t}, v{U_}")
    a(f"v_mov_b32 v{U_+1}, s{t+2}")
    a(f"s_cmp_eq_u32 s{sMT}, 0")
    a(f"s_cselect_b64 vcc, -1, 0")
    a(f"v_cndmask_b32 v{U_}, v{U_+1}, v{U_}, vcc")
    a(f"v_cmp_le_u32 vcc, 24, v0")
    a(f"s_lshl_b32 s{t}, s{sMT}, 10")
    a(f"s_add_u32 s{t}, s{t}, {WS_OF}")
    a(f"v_cndmask_b32 v{A_}, v{A_}, v{U_}, vcc")
    a(f"v_and_b32 v{U_}, 7, v0")
    a(f"v_lshlrev_b32 v{U_}, 7, v{U_}")
    a(f"v_add_u32 v{U_}, s{t}, v{U_}")
    a(f"s_cmp_eq_u32 s{sJ}, 0")
    a(f"s_cselect_b64 vcc, -1, 0")
    a(f"v_cndmask_b32 v{U_}, v{U_+1}, v{U_}, vcc")
    a(f"v_cmp_le_u32 vcc, 32, v0")
    a(f"s_lshl_b32 s{t}, s2, 7")
    a(f"s_add_u32 s{t+1}, s{t}, {WS_HF}")
    a(f"v_cndmask_b32 v{A_}, v{A_}, v{U_}, vcc")
    a(f"s_cmp_lt_u32 s2, 56")
    a(f"s_cselect_b32 s{t+1}, s{t+1}, s{t+2}")
    a(f"v_writelane_b32 v{A_}, s{t+1}, 40")
    a(f"s_add_u32 s{t+1}, s{t}, {WS_YF}")
    a(f"s_cmp_lt_u32 s2, 16")
    a(f"s_cselect_b32 s{t+1}, s{t+1}, s{t+2}")
    a(f"v_writelane_b32 v{A_}, s{t+1}, 41")
    csf_addr(a, t, t+1)
    a(f"s_cmp_eq_u32 s{sMT}, 0")
    a(f"s_cselect_b32 s{t}, s{t}, s{t+2}")
    a(f"v_writelane_b32 v{A_}, s{t}, 42")
    a(f"s_cmp_eq_u32 s2, 0")
    a(f"s_cselect_b32 s{t}, {WS_TK}, s{t+2}")
    a(f"v_writelane_b32 v{A_}, s{t}, 43")
    for r in range(4): a(f"v_mov_b32 v{T+4+r}, 0")
    a(f"v_lshlrev_b32 v{U_}, 2, v0")
    a(f"v_add_u32 v{U_}, {L_ST}, v{U_}")

def csf_addr(a, d, t):
    a(f"s_lshl_b32 s{d}, s{sJ}, 7")
    a(f"s_add_u32 s{d}, s{d}, {WS_CSF}")
def kvf_addr(a, d, t):
    a(f"s_lshl_b32 s{d}, s{sJ}, 2")
    a(f"s_and_b32 s{t}, s{W}, 3")
    a(f"s_add_u32 s{d}, s{d}, s{t}")
    a(f"s_lshl_b32 s{d}, s{d}, 7")
    a(f"s_add_u32 s{d}, s{d}, {WS_KVF}")
def otile(a, d, t):
    a(f"s_lshl_b32 s{d}, s{sMT}, 2")
    a(f"s_and_b32 s{t}, s{W}, 2")
    a(f"s_add_u32 s{d}, s{d}, s{t}")
    a(f"s_lshr_b32 s{t}, s{W}, 2")
    a(f"s_add_u32 s{d}, s{d}, s{t}")
def head_of(a, d, t):
    a(f"s_lshl_b32 s{d}, s{sJ}, 1")
    a(f"s_and_b32 s{t}, s{W}, 1")
    a(f"s_add_u32 s{d}, s{d}, s{t}")
def of_addr(a, d, t):
    otile(a, d, t)
    a(f"s_lshl_b32 s{d}, s{d}, 1")
    a(f"s_lshr_b32 s{t}, s{sJ}, 3")
    a(f"s_add_u32 s{d}, s{d}, s{t}")
    a(f"s_lshl_b32 s{d}, s{d}, 7")
    a(f"s_add_u32 s{d}, s{d}, {WS_OF}")
    a(f"s_and_b32 s{t}, s{sJ}, 7")
    a(f"s_lshl_b32 s{t}, s{t}, 1")
    a(f"s_and_b32 s{t+1}, s{W}, 1")
    a(f"s_add_u32 s{t}, s{t}, s{t+1}")
    a(f"s_lshl_b32 s{t}, 1, s{t}")
TICKET = [False]
def cg_of(a, d):
    if TICKET[0]:
        a(f"s_mov_b32 s{d}, s{sXC}")
        return
    a(f"s_mul_i32 s{d}, s{sXC}, 28")
    a(f"s_add_u32 s{d}, s{d}, s{sLI}")
def hf_addr(a, d):
    cg_of(a, d)
    a(f"s_lshr_b32 s{d}, s{d}, 2")
    a(f"s_lshl_b32 s{d}, s{d}, 7")
    a(f"s_add_u32 s{d}, s{d}, {WS_HF}")
def yf_addr(a, d, t):
    a(f"s_and_b32 s{d}, s2, 15")
    a(f"s_lshl_b32 s{d}, s{d}, 7")
    a(f"s_add_u32 s{d}, s{d}, {WS_YF}")

def signal(a, saddr, val, v0_, v1_, op="add"):
    a(f"v_mov_b32 v{v0_}, s{saddr}")
    a(f"v_mov_b32 v{v1_}, {val}")
    a("s_mov_b64 exec, 1")
    a(f"buffer_atomic_{op} v{v1_}, v{v0_}, {srd(sWS)}, 0 offen sc1")
    a("s_mov_b64 exec, -1")

def apoll(o, vreg, vaddr, lanes=1):
    o(f"v_mov_b32 v{vreg}, 0")
    o(f"s_mov_b64 exec, {(1 << lanes) - 1}")
    o(f"buffer_atomic_or v{vreg}, v{vaddr}, {srd(sWS)}, 0 offen sc0 sc1")
    o("s_mov_b64 exec, -1")

def acheck(a, name, vreg, vaddr, want, lanes, cold):
    lab = a.new_label(name)
    def cmp(o):
        o(f"v_cmp_gt_u32 vcc, {want}, v{vreg}")
        o(f"s_and_b32 vcc_lo, vcc_lo, {(1 << lanes) - 1}")
    cmp(a)
    a(f"s_cbranch_scc1 {lab}_spin")
    a.label(f"{lab}_ok")
    c = Asm()
    c.label(f"{lab}_spin")
    c(f"s_mov_b32 s{sT+11}, 0")
    c.label(f"{lab}_again")
    apoll(c, vreg, vaddr, lanes)
    c(f"s_add_u32 s{sT+11}, s{sT+11}, 1")
    c(f"s_cmp_gt_u32 s{sT+11}, {SPIN_LIMIT}")
    c(f"s_cbranch_scc1 {lab}_ok")
    c("s_waitcnt vmcnt(0)")
    cmp(c)
    c(f"s_cbranch_scc1 {lab}_again")
    c(f"s_branch {lab}_ok")
    cold.append(c)

def poll_check(a, name, vreg, vaddr, s_srd, want, mask, cold):
    lab = a.new_label(name)
    def cmp(o):
        o(f"v_cmp_gt_u32 vcc, {want}, v{vreg}" if want != 1 else f"v_cmp_ne_u32 vcc, 1, v{vreg}")
        if mask != -1:
            o(f"s_and_b32 vcc_lo, vcc_lo, {mask & 0xffffffff:#x}")
            o(f"s_and_b32 vcc_hi, vcc_hi, {(mask >> 32) & 0xffffffff:#x}")
        o("s_cmp_lg_u64 vcc, 0")
    cmp(a)
    a(f"s_cbranch_scc1 {lab}_spin")
    a.label(f"{lab}_ok")
    c = Asm()
    c.label(f"{lab}_spin")
    c(f"s_mov_b32 s{sT+11}, 0")
    c.label(f"{lab}_again")
    c(f"buffer_load_dword v{vreg}, v{vaddr}, {srd(s_srd)}, 0 offen sc1")
    c(f"s_add_u32 s{sT+11}, s{sT+11}, 1")
    c(f"s_cmp_gt_u32 s{sT+11}, {SPIN_LIMIT}")
    c(f"s_cbranch_scc1 {lab}_ok")
    c("s_waitcnt vmcnt(0)")
    cmp(c)
    c(f"s_cbranch_scc1 {lab}_again")
    c(f"s_branch {lab}_ok")
    cold.append(c)

def top8_round(a, keys, T, cand, st, rnd):
    n = len(keys)
    if rnd == 0: a(f"s_mov_b32 s{st}, -1")
    for e in range(n):
        a(f"v_sub_u32 v{T+e}, s{st}, v{keys[e]}")
    e = 1
    while e + 1 < n:
        a(f"v_min3_u32 v{T}, v{T}, v{T+e}, v{T+e+1}")
        e += 2
    if e < n: a(f"v_min_u32 v{T}, v{T}, v{T+e}")
    wsum(a, T, st+1, "min_u32")
    a(f"s_sub_u32 s{st}, s{st}, s{st+1}")
    a(f"v_writelane_b32 v{cand}, s{st}, {rnd}")
    a(f"s_sub_u32 s{st}, s{st}, 1")

def atomise(a, tmp):
    out, grp = [], None
    for l in tmp.lines:
        s_ = l.strip()
        if grp is not None:
            grp.append(s_)
            if s_ == "s_mov_b64 exec, -1": out.append(grp); grp = None
        elif ("exec," in s_ and s_ != "s_mov_b64 exec, -1") or "saveexec" in s_: grp = [s_]
        else: out.append([s_])
    assert grp is None
    return [(lambda g=g: a(*g)) for g in out]

def ws_base(a, opt):
    off = opt.get("wsoff", 0) << 20
    if off:
        a(f"s_add_u32 s{sWS}, s{sWS}, {off:#x}")
        a(f"s_addc_u32 s{sWS+1}, s{sWS+1}, 0")

def prologue(a, name, opt):
    a("s_cmp_ge_u32 s2, 256")
    a(f"s_cbranch_scc1 {name}_done")
    a.stamp_init(); a.stamp(0)
    if opt.get("dbgtime"): a("s_memrealtime s[96:97]")
    for r, off in ((sX, A_X), (sWQ, A_WQKV), (sWS, A_WS), (sWR, A_WR), (sDBG, A_DBG), (sWG, A_WG), (sWU, A_WU),
                   (sWD, A_WD), (sWO, A_WO), (sOUT, A_OUT)):
        a(f"s_load_dwordx2 s[{r}:{r+1}], s[0:1], {off}")
    a("v_lshrrev_b32 v1, 6, v0")
    a("v_and_b32 v0, 63, v0")
    a(f"v_readfirstlane_b32 s{W}, v1")
    a(f"s_and_b32 s{sXC}, s2, 7")
    a(f"s_lshr_b32 s{sLI}, s2, 3")
    a(f"s_and_b32 s{sMT}, s{sXC}, 1")
    a(f"s_lshl_b32 s{sMT}, s{sMT}, 3")
    a(f"s_and_b32 s{sT}, s{sLI}, 7")
    a(f"s_add_u32 s{sMT}, s{sMT}, s{sT}")
    a(f"s_lshr_b32 s{sJ}, s{sXC}, 1")
    a(f"s_lshl_b32 s{sJ}, s{sJ}, 2")
    a(f"s_lshr_b32 s{sT}, s{sLI}, 3")
    a(f"s_add_u32 s{sJ}, s{sJ}, s{sT}")
    a(f"s_lshl_b32 s{sT+3}, s{sMT}, 4")
    a(f"s_add_u32 s{sT+3}, s{sT+3}, s{sJ}")
    n = opt.get("lnrows", 2)
    a(f"s_lshl_b32 s{sT+3}, s{sT+3}, {4-n}")
    a(f"s_add_u32 s{sT+3}, s{sT+3}, s{W}")
    a(f"s_lshl_b32 s{sT}, s{sT+3}, {10+n}")
    a("v_lshlrev_b32 v94, 4, v0")
    a(f"v_add_u32 v95, s{sT}, v94")
    for r, n in ((sX, S*D*2), (sWQ, D*3*D*2), (sWS, WS_USED), (sWR, D*2), (sDBG, 256), (sWG, D*F*2), (sWU, D*F*2),
                 (sWD, D*F*2), (sWO, D*D*2), (sOUT, S*D*2)):
        a(f"s_mov_b32 s{r+2}, {n:#x}")
        a(f"s_mov_b32 s{r+3}, 0x00020000")

def phaseA_loader(a, name, cold, opt):
    vm = VM(a)
    LW, XB_, WB_, SX, SW = 48, 49, 50, 51, 52
    a(f"s_sub_u32 s{LW}, s{W}, 4")
    a("v_lshrrev_b32 v16, 3, v0")
    a("v_and_b32 v17, 7, v0")
    a(f"s_lshl_b32 s{sT}, s{sMT}, 7")
    a(f"s_lshl_b32 s{sT+1}, s{LW}, 5")
    a(f"s_add_u32 s{sT}, s{sT}, s{sT+1}")
    a(f"v_add_u32 v18, s{sT}, v16")
    a("v_lshlrev_b32 v18, 11, v18")
    a("v_lshrrev_b32 v19, 1, v16")
    a("v_xor_b32 v20, v19, v17")
    a("v_lshl_add_u32 v1, v20, 4, v18")
    a("v_xor_b32 v20, 4, v20")
    a("v_lshl_add_u32 v2, v20, 4, v18")
    a(f"v_add_u32 v2, {8*2048}, v2")
    a(f"v_add_u32 v3, {16*2048}, v1")
    a(f"v_add_u32 v4, {16*2048}, v2")
    a(f"s_lshl_b32 s{sT}, s{LW}, 4")
    a(f"v_add_u32 v18, s{sT}, v16")
    a("v_mul_u32_u24 v18, 6144, v18")
    a(f"s_lshl_b32 s{sT}, s{sJ}, 7")
    a(f"v_add_u32 v18, s{sT}, v18")
    a("v_bfe_u32 v19, v0, 4, 1")
    a("v_lshlrev_b32 v19, 1, v19")
    a("v_xor_b32 v19, v19, v17")
    a("v_lshl_add_u32 v5, v19, 4, v18")
    a("v_xor_b32 v19, 4, v19")
    a("v_lshl_add_u32 v6, v19, 4, v18")
    a(f"v_add_u32 v6, {8*6144}, v6")
    a(f"s_lshl_b32 s{XB_}, s{LW}, 12")
    a(f"s_lshl_b32 s{WB_}, s{LW}, 11")
    KR = 56
    SH = 57
    NS = opt.get("starts", 2)
    if opt.get("rotj", False): a(f"s_add_u32 s{KR}, s{sMT}, s{sJ}")
    else: a(f"s_mov_b32 s{KR}, s{sMT}")
    a(f"s_and_b32 s{KR}, s{KR}, {NS-1}")
    a(f"s_lshl_b32 s{KR}, s{KR}, {2 if NS == 4 else 3}")
    a(f"s_lshr_b32 s{SH}, s{sMT}, {2 if NS == 4 else 1}")
    NSH = 16 // NS
    nt = lambda k: "nt" if k in opt.get("nt", "ms") else ""
    def offsets():
        a(f"s_and_b32 s{KR}, s{KR}, 15")
        a(f"s_lshl_b32 s{SX}, s{KR}, 7")
        a(f"s_mul_i32 s{SW}, s{KR}, {64*6144}")
        a(f"s_add_u32 s{SW+1}, s{SW}, 2048")
        a(f"s_add_u32 s{SW+2}, s{SW}, 4096")
        a(f"s_add_u32 s{KR}, s{KR}, 1")
    hoist = opt.get("hoist", True)
    def issue(kt, atoms=(), part=None):
        slot = (kt % 3) * SLOT
        atoms = list(atoms)
        if not (hoist and kt >= (1 if opt.get("t1late") else 2)) and (part is None or part[0] == 0): offsets()
        d = [(f"s_add_u32 m0, s{XB_}, {slot + i*1024}", f"buffer_load_dwordx4 v{1+i}, {srd(sX)}, s{SX} offen {nt('x')} lds") for i in range(4)]
        d += [(f"s_add_u32 m0, s{WB_}, {slot + WOFF + seg*8192 + i*1024}", f"buffer_load_dwordx4 v{5+i}, {srd(sWQ)}, s{SW+seg} offen {nt('w')} lds")
              for seg in range(3) for i in range(2)]
        if part: d = d[part[0]:part[1]]
        k = 0
        for i, (m, ld) in enumerate(d):
            if not (opt.get("noload") and kt > 2):
                a(m); a("s_nop 0"); a(ld)
                vm.issue(f"T{kt}")
            k2 = (i + 1) * len(atoms) // len(d)
            for at in atoms[k:k2]: at()
            k = k2
    a("s_waitcnt lgkmcnt(0)")
    ws_base(a, opt)
    a.stamp(4)
    if opt.get("lnrows", 2) == 1:
        ln_loads(a, vm, opt)
        issue(0)
        vm.wait("lnld")
        tmp = Asm(); ln_rows2(tmp, vm, 96, 112, 120, 152, 95, opt.get("dbg"), 1)
        if opt.get("dbg"): vm.issue("dbg", 2)
        issue(1, atomise(a, tmp))
    elif opt.get("t1late"):
        issue(0)
    elif opt.get("t1n"):
        issue(0); issue(1, part=(0, opt["t1n"]))
    else:
        issue(0); issue(1)
    a.stamp(5)
    a("v_lshrrev_b32 v16, 4, v0")
    a("v_bfe_u32 v17, v0, 2, 2")
    a("v_lshl_add_u32 v17, v16, 3, v17")
    a("v_lshlrev_b32 v17, 7, v17")
    a("v_and_b32 v18, 3, v0")
    a("v_lshl_add_u32 v17, v18, 3, v17")
    a("v_and_b32 v16, 1, v16")
    a("v_lshlrev_b32 v16, 1, v16")
    a("v_bfe_u32 v18, v0, 3, 1")
    a("v_or_b32 v16, v16, v18")
    a(f"s_mul_i32 s{sT+3}, s{SH}, 43")
    a(f"s_lshr_b32 s{sT+3}, s{sT+3}, 7")
    a(f"s_mul_i32 s{sT+3}, s{sT+3}, 3")
    a(f"s_sub_u32 s{sT+3}, s{SH}, s{sT+3}")
    a(f"s_mul_i32 s{sT+3}, s{sT+3}, {SLOT}")
    a(f"s_add_u32 s{sT+3}, s{sT+3}, {WOFF}")
    for i in range(3):
        a(f"s_and_b32 s{sT}, s{LW}, 1")
        a(f"s_mul_i32 s{sT}, s{sT}, 3")
        a(f"s_add_u32 s{sT}, s{sT}, {i}")
        a(f"s_and_b32 s{sT+1}, s{sT}, 1")
        a(f"s_and_b32 s{sT+2}, s{LW}, 2")
        a(f"s_or_b32 s{sT+1}, s{sT+1}, s{sT+2}")
        a(f"v_xor_b32 v18, s{sT+1}, v16")
        a(f"v_lshl_add_u32 v{10+i}, v18, 5, v17")
        a(f"s_lshr_b32 s{sT}, s{sT}, 1")
        a(f"s_lshl_b32 s{sT}, s{sT}, 13")
        a(f"s_add_u32 s{sT}, s{sT}, s{sT+3}")
        a(f"v_add_u32 v{10+i}, s{sT}, v{10+i}")
    for r in range(4): a(f"v_mov_b32 v{56+r}, 0x3f803f80")
    a(f"s_cmp_lg_u32 s{W}, 4")
    a(f"s_cbranch_scc1 {name}_nozero")
    publish_zeros(a, vm, 13 + 3)
    a.label(f"{name}_nozero")
    if opt.get("lprio", 0): a(f"s_setprio {opt.get('lprio', 0)}")
    KEY, TT, CAND = 28, 36, 44
    ST = sT + 8
    keys = list(range(KEY, KEY+8))
    a("s_waitcnt lgkmcnt(0)")
    if hoist and not opt.get("t1n"): offsets()
    vm.wait("T0")
    a("s_barrier")
    a.stamp(1)
    assert opt.get("p0", 7) <= 7
    t8a = opt.get("t8a", True)
    P0 = opt.get("p0", 7)
    cb = Asm()
    cb.label(f"{name}_colsum")
    for i in range(3):
        for ks in range(2):
            for t_ in range(2):
                cb(f"ds_read_b64_tr_b16 {vr(68+8*i+4*ks+2*t_,2)}, v{10+i} offset:{ks*4096+t_*512}")
    cb(f"s_lshl_b32 s{sT}, s{sJ}, 4")
    cb(f"s_add_u32 s{sT}, s{sT}, s{sMT}")
    cb(f"s_lshl_b32 s{sT}, s{sT}, 2")
    cb(f"s_add_u32 s{sT}, s{sT}, s{LW}")
    cb(f"s_mul_i32 s{sT}, s{sT}, 192")
    cb(f"s_add_u32 s{sT}, s{sT}, {WS_CSP}")
    cb("v_lshlrev_b32 v47, 2, v0")
    cb("s_waitcnt lgkmcnt(0)")
    for ks in range(2):
        for i in range(3):
            cb(f"v_mfma_f32_16x16x32_bf16 {vr(28+4*i,4)}, v[56:59], {vr(68+8*i+4*ks,4)}, {vr(28+4*i,4) if ks else 0}")
    cb("s_nop 7")
    cb("s_mov_b64 exec, 0xffff0000")
    cb("v_mov_b32 v28, v32")
    cb("s_bfm_b64 exec, 16, 32")
    cb("v_mov_b32 v28, v36")
    cb("s_bfm_b64 exec, 48, 0")
    cb(f"buffer_store_dword v28, v47, {srd(sWS)}, s{sT} offen sc1")
    cb("s_mov_b64 exec, -1")
    cb("s_setpc_b64 s[70:71]")
    cold.append(cb)
    def lines(fn):
        tmp = Asm(); tmp.uid = a.uid; fn(tmp); a.uid = tmp.uid
        out, grp = [], None
        for l in tmp.lines:
            s_ = l.strip()
            if grp is not None:
                grp.append(s_)
                if s_ == "s_mov_b64 exec, -1": out.append(grp); grp = None
            elif ("exec," in s_ and s_ != "s_mov_b64 exec, -1") or "saveexec" in s_: grp = [s_]
            else: out.append([s_])
        assert grp is None
        return [(lambda g=g: a(*g)) for g in out]
    def cs_load(i):
        def f():
            a(f"s_mul_i32 s{sT+2}, s{sJ}, {16*768}")
            a(f"s_mul_i32 s{sT+3}, s{LW}, 192")
            a(f"s_add_u32 s{sT+2}, s{sT+2}, s{sT+3}")
            a(f"s_add_u32 s{sT+2}, s{sT+2}, {WS_CSP}")
            a(f"buffer_load_dwordx4 {vr(60+4*i,4)}, v51, {srd(sWS)}, s{sT+2} offen offset:{i*768} sc1")
            vm.issue("csl")
        return f
    for kt in range(16):
        atoms = []
        def after_issue(kt=kt):
            if kt == 0:
                a(f"s_cmp_lg_u32 s{W}, 4")
                a(f"s_cbranch_scc1 {name}_nopub")
                publish_stats(a, vm, 16)
                a.label(f"{name}_nopub")
            if kt < NSH:
                lab = a.new_label(f"{name}_cs")
                a(f"s_cmp_lg_u32 s{SH}, {kt}")
                a(f"s_cbranch_scc1 {lab}")
                a(f"s_call_b64 s[70:71], {name}_colsum")
                a.label(lab)
                vm.issue("cs", 1, cond=True)
        if kt == 2:
            a(f"s_cmp_lg_u32 s{W}, 4")
            a(f"s_cbranch_scc1 {name}_nosig")
            a(f"s_lshl_b32 s{sT}, s{sMT}, 4")
            a(f"v_mov_b32 v45, s{sT}")
            a("v_mov_b32 v46, 1")
            a("s_mov_b64 exec, 1")
            a(f"buffer_atomic_add v46, v45, {srd(sDBG)}, 0 offen sc1")
            a("s_mov_b64 exec, -1")
            a.label(f"{name}_nosig")
            vm.issue("sig", 1, cond=True)
        if kt == P0:
            a("v_and_b32 v45, 15, v0")
            a("v_lshlrev_b32 v45, 4, v45")
            a(f"buffer_load_dword v46, v45, {srd(sDBG)}, 0 offen sc1")
            vm.issue("poll")
        if kt == P0 + 1:
            poll_check(a, f"{name}_p1", 46, 45, sDBG, 16, -1, cold)
            if t8a:
                a(f"s_lshl_b32 s{sT}, s{LW}, 11")
                a(f"s_add_u32 s{sT}, s{sT}, {WS_R}")
                a(f"buffer_load_dwordx4 {vr(KEY,4)}, v94, {srd(sWS)}, s{sT} offen sc1")
                a(f"buffer_load_dwordx4 {vr(KEY+4,4)}, v94, {srd(sWS)}, s{sT} offen offset:1024 sc1")
            a(f"s_lshl_b32 s{sT}, s{sMT}, 11")
            a(f"s_and_b32 s{sT+1}, s{LW}, 1")
            a(f"s_lshl_b32 s{sT+1}, s{sT+1}, 10")
            a(f"s_add_u32 s{sT}, s{sT}, s{sT+1}")
            a(f"s_add_u32 s{sT}, s{sT}, {WS_ST}")
            a("v_lshrrev_b32 v47, 3, v0")
            a("v_lshlrev_b32 v47, 7, v47")
            a("v_and_b32 v48, 7, v0")
            a("v_lshl_add_u32 v47, v48, 2, v47")
            a(f"buffer_load_dword v54, v47, {srd(sWS)}, s{sT} offen sc1")
            a(f"buffer_load_dword v55, v47, {srd(sWS)}, s{sT} offen offset:32 sc1")
            vm.issue("side", 4 if t8a else 2)
        CS0 = max(P0 + 1, NSH + 2)
        if kt == CS0:
            lab = a.new_label(f"{name}_cf")
            a(f"s_cmp_lg_u32 s{W}, 4")
            a(f"s_cbranch_scc1 {lab}")
            csf_addr(a, sT, sT+1)
            signal(a, sT, 1, 52, 53)
            a.label(lab)
            vm.issue("csf", 1, cond=True)
        if kt == CS0 + 1 + (CS0 < 10):
            csf_addr(a, sT, sT+1)
            a(f"v_mov_b32 v52, s{sT}")
            apoll(a, 53, 52)
            vm.issue("poll")
            def f(o):
                o("v_and_b32 v51, 15, v0")
                o("v_cmp_gt_u32 vcc, 12, v51")
                o("v_lshlrev_b32 v51, 4, v51")
                o("v_lshrrev_b32 v50, 4, v0")
                o("v_mul_u32_u24 v50, 4*768, v50")
                o("v_add_u32 v51, v51, v50")
                o("v_mov_b32 v50, 0x7fff0000")
                o("v_cndmask_b32 v51, v50, v51, vcc")
            atoms += lines(f)
        CS1 = CS0 + 2 + (CS0 < 10)
        if kt == CS1: acheck(a, f"{name}_p2", 53, 52, 16, 1, cold)
        if CS1 <= kt <= CS1 + 1:
            atoms += [cs_load(i) for i in ((0, 1), (2, 3))[kt - CS1]]
        if opt.get("ticket", False) and kt == 13:
            lab = a.new_label(f"{name}_tk")
            a(f"s_cmp_lg_u32 s{W}, 4")
            a(f"s_cbranch_scc1 {lab}")
            a(f"v_mov_b32 v24, {WS_TK}")
            a("v_mov_b32 v25, 1")
            a("s_mov_b64 exec, 1")
            a(f"buffer_atomic_add v25, v24, {srd(sWS)}, 0 offen sc0 sc1")
            a("s_mov_b64 exec, -1")
            a.label(lab)
            vm.issue("tk", 1, cond=True)
        if opt.get("ticket", False) and kt == 15:
            lab = a.new_label(f"{name}_tw")
            a(f"s_cmp_lg_u32 s{W}, 4")
            a(f"s_cbranch_scc1 {lab}")
            a(f"v_mov_b32 v24, {L_TK}")
            a("s_mov_b64 exec, 1")
            a("ds_write_b32 v24, v25")
            a("s_mov_b64 exec, -1")
            a.label(lab)
        if kt == 15:
            a(f"s_and_b32 s{sT}, s{LW}, 1")
            a(f"s_lshl_b32 s{sT}, s{sT}, 8")
            a(f"s_add_u32 s{sT}, s{sT}, {L_M}")
            a("v_lshlrev_b32 v47, 2, v0")
            a(f"v_add_u32 v47, s{sT}, v47")
            a("ds_write_b32 v47, v54")
            a("ds_write_b32 v47, v55 offset:512")
        if kt == P0 + 2:
            def f(o):
                if t8a:
                    o(f"s_lshl_b32 s{sT}, s{LW}, 9")
                    o("v_lshlrev_b32 v47, 2, v0")
                    o(f"v_add_u32 v47, s{sT}, v47")
                    make_keys(o, KEY, TT, 47, [0, 1, 2, 3, 256, 257, 258, 259])
                    o(f"v_mov_b32 v{CAND}, 0")
                    top8_round(o, keys, TT, CAND, ST, 0)
            atoms += lines(f)
        if t8a and P0 + 3 <= kt <= P0 + 6:
            rr = ((1, 2), (3, 4), (5, 6), (7,))[kt - P0 - 3]
            atoms += lines(lambda o: [top8_round(o, keys, TT, CAND, ST, r) for r in rr])
        def late_top8(kt=kt):
            if t8a and kt == 14:
                a(f"s_lshl_b32 s{sT}, s{LW}, 5")
                a(f"s_add_u32 s{sT}, s{sT}, {L_CAND}")
                a("v_lshlrev_b32 v47, 2, v0")
                a(f"v_add_u32 v47, s{sT}, v47")
                a("s_mov_b64 exec, 0xff")
                a(f"ds_write_b32 v47, v{CAND}")
                a("s_mov_b64 exec, -1")
                a("s_waitcnt lgkmcnt(0)")
        if t8a and kt == 15:
            a("v_and_b32 v46, 31, v0")
            a("v_lshlrev_b32 v46, 2, v46")
            a(f"v_add_u32 v46, {L_CAND}, v46")
            a(f"ds_read_b32 v{KEY}, v46")
        if kt == 15:
            vm.wait("csl")
            for i in range(1, 4):
                for r in range(4): a(f"v_add_f32 v{60+r}, v{60+r}, v{60+4*i+r}")
            a("s_nop 1")
            a("v_permlane32_swap_b32 v60, v62")
            a("v_permlane32_swap_b32 v61, v63")
            a("v_add_f32 v60, v60, v62")
            a("v_add_f32 v61, v61, v63")
            a("s_nop 1")
            a("v_permlane16_swap_b32 v60, v61")
            a("v_add_f32 v60, v60, v61")
            a("v_and_b32 v47, 15, v0")
            a("v_cmp_gt_u32 vcc, 12, v47")
            a("v_lshlrev_b32 v47, 4, v47")
            a("v_lshrrev_b32 v50, 4, v0")
            a("v_lshl_add_u32 v47, v50, 2, v47")
            a(f"s_mul_i32 s{sT}, s{LW}, 192")
            a(f"s_add_u32 s{sT}, s{sT}, {L_CS}")
            a(f"v_add_u32 v47, s{sT}, v47")
            a("s_and_saveexec_b64 s[66:67], vcc")
            a("ds_write_b32 v47, v60")
            a("s_mov_b64 exec, -1")
        if kt == 0 and opt.get("t1n"):
            issue(1, part=(opt["t1n"], 10)); offsets()
        if kt == 0 and opt.get("t1late"):
            issue(1); offsets()
        if kt <= 13: issue(kt+2, atoms)
        else:
            for at in atoms: at()
        after_issue()
        if hoist and kt < 13: offsets()
        a("s_waitcnt lgkmcnt(0)")
        a.trace(3*kt+1)
        if kt < 15: vm.wait(f"T{kt+1}", "poll", "side", *(["st"] if kt == 1 else []), *(["cs"] if kt == NSH + 1 else []))
        late_top8()
        a.trace(3*kt+2)
        a("s_barrier")
        a.trace(3*kt+3)
    def merge8():
        if t8a:
            a("v_cmp_gt_u32 vcc, 32, v0")
            a("s_nop 1")
            a(f"v_cndmask_b32 v{KEY}, 0, v{KEY}, vcc")
            for r in range(8): top8_round(a, [KEY], TT, CAND, ST, r)
            decode_keys(a, CAND, 48, 49, TT)
            a("v_lshlrev_b32 v47, 2, v0")
            a(f"v_add_u32 v47, {L_IDX}, v47")
            a("s_mov_b64 exec, 0xff")
            a("ds_write_b32 v47, v48")
            a("ds_write_b32 v47, v49 offset:32")
            if opt.get("dbg"):
                a(f"s_mov_b32 s{sT}, {WS_IDX}")
                a("v_lshlrev_b32 v47, 2, v0")
                a(f"buffer_store_dword v48, v47, {srd(sWS)}, s{sT} offen")
                a(f"buffer_store_dword v49, v47, {srd(sWS)}, s{sT} offen offset:32")
            a("s_mov_b64 exec, -1")
    mlate = opt.get("mlate", False)
    if not mlate: merge8()
    a(f"s_lshl_b32 s{sT}, s{LW}, 13")
    a(f"v_add_u32 v2, s{sT}, v94")
    a(f"s_lshl_b32 s{sT+1}, s{sJ}, 1")
    a(f"s_lshr_b32 s{sT+2}, s{LW}, 1")
    a(f"s_add_u32 s{sT+1}, s{sT+1}, s{sT+2}")
    a(f"s_lshl_b32 s{sT+1}, s{sT+1}, 5")
    a(f"s_lshl_b32 s{sT+2}, s{sMT}, 1")
    a(f"s_add_u32 s{sT+1}, s{sT+1}, s{sT+2}")
    a(f"s_and_b32 s{sT+2}, s{LW}, 1")
    a(f"s_add_u32 s{sT+1}, s{sT+1}, s{sT+2}")
    a(f"s_lshl_b32 s{sT+1}, s{sT+1}, 13")
    a(f"s_add_u32 s{sT+1}, s{sT+1}, {WS_KV}")
    a(f"s_add_u32 s{sT+2}, s{sT+1}, 4096")
    for part in (((0, 1, 4, 5), (2, 3, 6, 7)) if opt.get("ksplit", True) else (tuple(range(8)),)):
        a("s_waitcnt lgkmcnt(0)")
        a("s_barrier")
        for q in part: a(f"ds_read_b128 {vr(96+4*q,4)}, v2 offset:{q*1024}")
        for k_, q in enumerate(part):
            a(f"s_waitcnt lgkmcnt({len(part)-1-k_})")
            a(f"buffer_store_dwordx4 {vr(96+4*q,4)}, v94, {srd(sWS)}, s{sT+1+(q>>2)} offen offset:{(q&3)*1024} {opt.get('kvf', 'sc1')}")
    if mlate: merge8()
    a("s_waitcnt lgkmcnt(0)")
    return vm

ACC, B0 = 96, 8
def accreg(ct, tt): return ACC + 16*ct + 4*tt

def phaseA_consumer(a, name, cold, opt):
    vm = VM(a)
    XA, WA = 1, 3
    a("s_waitcnt lgkmcnt(0)")
    ws_base(a, opt)
    a.stamp(4)
    ln_loads(a, vm, opt, 16, 32)
    if opt.get("cpf", True):
        a(f"s_cmp_lg_u32 s{W}, 0")
        a(f"s_cbranch_scc1 {name}_nocpf")
        a(f"s_getpc_b64 s[{sT+8}:{sT+9}]")
        a.label(f"{name}_pc")
        a(f"s_sub_u32 s{sT+8}, s{sT+8}, {name}_pc-{name}")
        a(f"s_subb_u32 s{sT+9}, s{sT+9}, 0")
        a(f"s_lshl_b32 s{sT}, s{sLI}, 4")
        a("v_and_b32 v8, 15, v0")
        a(f"v_add_u32 v8, s{sT}, v8")
        a("v_lshlrev_b32 v8, 7, v8")
        a(f"v_min_u32 v8, {name}_end-{name}-4, v8")
        a(f"global_load_dword v250, v8, s[{sT+8}:{sT+9}]")
        a.label(f"{name}_nocpf")
        vm.issue("cpf", 1, cond=True)
    WM, WN = 52, 53
    a(f"s_lshr_b32 s{WM}, s{W}, 1")
    a(f"s_and_b32 s{WN}, s{W}, 1")
    a("v_and_b32 v8, 15, v0")
    a("v_lshrrev_b32 v9, 4, v0")
    a(f"s_lshl_b32 s{sT}, s{WM}, 6")
    a(f"v_add_u32 v10, s{sT}, v8")
    a("v_lshlrev_b32 v10, 7, v10")
    a("v_bfe_u32 v11, v0, 1, 3")
    a("v_xor_b32 v11, v11, v9")
    a(f"v_lshl_add_u32 v{XA}, v11, 4, v10")
    a(f"v_xor_b32 v{XA+1}, 64, v{XA}")
    a("v_bfe_u32 v10, v0, 2, 2")
    a("v_lshl_add_u32 v10, v9, 3, v10")
    a("v_lshlrev_b32 v10, 7, v10")
    a("v_and_b32 v11, 3, v0")
    a("v_lshl_add_u32 v10, v11, 3, v10")
    a("v_and_b32 v11, 1, v9")
    a("v_lshlrev_b32 v11, 1, v11")
    a("v_bfe_u32 v12, v0, 3, 1")
    a("v_or_b32 v11, v11, v12")
    a(f"s_lshl_b32 s{sT}, s{WN}, 1")
    a(f"v_xor_b32 v11, s{sT}, v11")
    a("v_lshl_add_u32 v10, v11, 5, v10")
    a(f"v_add_u32 v{WA}, {WOFF}, v10")
    a(f"v_xor_b32 v{WA+1}, 32, v{WA}")
    for r in range(96): a(f"v_mov_b32 v{ACC+r}, 0")
    a.stamp(5)
    vm.wait("lnld")
    a.stamp(6)
    assert WS_XN == 0
    ln_rows2(a, vm, 16, 32, 40, 72, 95, opt.get("dbg"), opt.get("lnrows", 2))
    def reads(buf, ks):
        b = B0 + 40*buf
        xr = [f"ds_read_b128 {vr(b+4*tt,4)}, v{XA+ks} offset:{tt*2048}" for tt in range(4)]
        wr = [f"ds_read_b64_tr_b16 {vr(b+16+4*ct+2*t,2)}, v{WA+(ct&1)} offset:{(ct>>1)*8192+ks*4096+t*512}" for ct in range(6) for t in range(2)]
        return [xr[0]] + wr[0:2] + xr[1:4] + wr[2:]
    def mfmas(buf):
        b = B0 + 40*buf
        o = []
        for ct in range(6):
            for tt in range(4):
                x = vr(b+4*tt, 4); w = vr(b+16+4*ct, 4)
                A, B = (w, x) if ct < 4 else (x, w)
                o.append(f"v_mfma_f32_16x16x32_bf16 {vr(accreg(ct,tt),4)}, {A}, {B}, {vr(accreg(ct,tt),4)}")
        return o
    KT, SI, DL, NEG = 48, 49, 50, 51
    pf = opt.get("pf", False)
    PD, PO, PV = 56, 54, 5
    if pf:
        for q in range(3):
            a(f"s_cmp_eq_u32 s{W}, 0")
            a(f"s_cselect_b32 s{PD+q}, s{sWG+q}, s{sWU+q}")
            a(f"s_cmp_eq_u32 s{W}, 2")
            a(f"s_cselect_b32 s{PD+q}, s{sWD+q}, s{PD+q}")
            a(f"s_cmp_eq_u32 s{W}, 3")
            a(f"s_cselect_b32 s{PD+q}, s{sWO+q}, s{PD+q}")
        a(f"s_mov_b32 s{PD+3}, 0x00020000")
        a(f"s_cselect_b32 s{PO}, 8192, 28672 + 0" if False else f"s_movk_i32 s{PO}, 0x7000")
        a(f"s_cselect_b32 s{PO}, 0x2000, s{PO}")
        a(f"s_mul_i32 s{PO}, s{PO}, s2")
        a(f"s_sub_u32 s{PO}, s{PO}, {opt.get('pf0', 2)*2048}")
        a(f"v_lshlrev_b32 v{PV}, 7, v0")
        a("v_cmp_gt_u32 vcc, 16, v0")
        a("v_mov_b32 v6, 0x7fff0000")
        a("s_nop 0")
        a(f"v_cndmask_b32 v{PV}, v6, v{PV}, vcc")
    a(f"s_mov_b32 s{KT}, 0")
    a(f"s_mov_b32 s{SI}, 0")
    a(f"s_mov_b32 s{NEG}, {(-2*SLOT) & 0xffffffff:#x}")
    a("s_waitcnt lgkmcnt(0)")
    if opt.get("cprio"): a(f"s_setprio {opt['cprio']}")
    a("s_barrier")
    a.stamp(1); a.cstamp(7)
    a(*reads(0, 0))
    a(".p2align 6")
    a.label(f"{name}_cloop")
    per = opt.get("rpg", 1)
    skip = opt.get("rskip", 0)
    if opt.get("nods"): reads = lambda buf, ks: []
    fine = opt.get("fine", False)
    def weave(m, r, extra, first=0, pend=16):
        i = 0
        for k, x in enumerate(m):
            kk = k + first
            if fine and kk % 4 == 0 and kk > 0:
                need = 6 + 2*(kk // 4)
                a(f"s_waitcnt lgkmcnt({min(15, pend - need + i)})")
            a(x)
            if k < skip: continue
            a(*r[i:i+per]); i = min(len(r), i + per)
            if i >= len(r) and k >= len(r) // per and extra: a(extra.pop(0))
    U = opt.get("cunroll", 2)
    barpos = opt.get("barpos", 2)
    for u in range(U):
        m = mfmas(0); r = reads(1, 1)
        a(f"s_add_u32 s{SI}, s{SI}, 1")
        a(f"s_cmp_eq_u32 s{SI}, 3")
        a(f"s_cselect_b32 s{DL}, s{NEG}, {SLOT}")
        a(f"s_cselect_b32 s{SI}, 0, s{SI}")
        ctr = opt.get("ctrace")
        if ctr: a("s_memtime s[76:77]")
        a(f"s_waitcnt lgkmcnt({10 if fine else 0})")
        ex = [f"v_add_u32 v{q}, s{DL}, v{q}" for q in (1, 2, 3, 4)]
        if ctr: ex = [f"s_lshl_b32 m0, s{KT}, 2", "v_writelane_b32 v255, s76, m0"] + ex
        weave(m, r, ex)
        m = mfmas(1); r = reads(0, 0)
        if ctr: a("s_memtime s[76:77]")
        a("s_waitcnt lgkmcnt(0)")
        a(*m[:barpos])
        if ctr:
            a("s_add_u32 m0, m0, 1")
            a("v_writelane_b32 v255, s76, m0")
            a("s_memtime s[78:79]")
        a("s_barrier")
        if ctr:
            a("s_memtime s[76:77]")
            a("s_waitcnt lgkmcnt(0)")
            a("s_add_u32 m0, m0, 1")
            a("v_writelane_b32 v255, s78, m0")
            a("s_add_u32 m0, m0, 1")
            a("v_writelane_b32 v255, s76, m0")
        if pf:
            a(f"s_cmp_lt_u32 s{KT}, {opt.get('pf0', 2)}")
            a(f"s_cselect_b32 s{sT}, 0x7fff0000, s{PO}")
            a(f"buffer_load_dword v254, v{PV}, {srd(PD)}, s{sT} offen")
            a(f"s_add_u32 s{PO}, s{PO}, 2048")
        fine_, fine = fine, False
        weave(m[barpos:], r, [f"s_add_u32 s{KT}, s{KT}, 1", f"s_cmp_lt_u32 s{KT}, 16"])
        fine = fine_
    a(f"s_cbranch_scc1 {name}_cloop")
    vm.q = []
    if opt.get("cprio"): a("s_setprio 0")
    a.stamp(2); a.cstamp(8)
    MR, CSQ, MV, RV, CSV, QR, AD, PK = 8, 16, 32, 48, 64, 66, 74, 78
    if not opt.get("t8a", True):
        a(f"s_lshl_b32 s{sT}, s{W}, 11")
        a(f"s_add_u32 s{sT}, s{sT}, {WS_R}")
        a(f"buffer_load_dwordx4 {vr(RKEY,4)}, v94, {srd(sWS)}, s{sT} offen sc1")
        a(f"buffer_load_dwordx4 {vr(RKEY+4,4)}, v94, {srd(sWS)}, s{sT} offen offset:1024 sc1")
    a("s_waitcnt lgkmcnt(0)")
    a("v_and_b32 v1, 15, v0")
    a("v_lshrrev_b32 v2, 4, v0")
    a(f"s_lshl_b32 s{sT}, s{WM}, 8")
    a(f"s_add_u32 s{sT}, s{sT}, {L_M}")
    a(f"s_mul_i32 s{sT+1}, s{WN}, 384")
    a(f"s_add_u32 s{sT+1}, s{sT+1}, {L_CS}")
    a("v_lshlrev_b32 v3, 2, v1")
    a(f"v_add_u32 v4, s{sT}, v3")
    for tt in range(4):
        a(f"ds_read_b32 v{MR+2*tt}, v4 offset:{tt*64}")
        a(f"ds_read_b32 v{MR+2*tt+1}, v4 offset:{tt*64+512}")
    a("v_lshlrev_b32 v5, 4, v2")
    a(f"v_add_u32 v6, s{sT+1}, v5")
    for ct in range(4): a(f"ds_read_b128 {vr(CSQ+4*ct,4)}, v6 offset:{ct*64}")
    a(f"v_add_u32 v6, s{sT}, v5")
    a(f"v_add_u32 v3, s{sT+1}, v3")
    a(f"ds_read_b32 v{CSV}, v3 offset:256")
    a(f"ds_read_b32 v{CSV+1}, v3 offset:320")
    for tt in range(4):
        a(f"ds_read_b128 {vr(MV+4*tt,4)}, v6 offset:{tt*64}")
        a(f"ds_read_b128 {vr(RV+4*tt,4)}, v6 offset:{tt*64+512}")
    a("v_lshrrev_b32 v3, 1, v2")
    a("v_and_b32 v4, 1, v2")
    a("v_lshl_add_u32 v5, v3, 5, v1")
    a("v_lshlrev_b32 v5, 4, v5")
    a("v_lshl_add_u32 v5, v4, 3, v5")
    a("v_lshl_add_u32 v6, v4, 5, v1")
    a("v_lshlrev_b32 v6, 4, v6")
    a("v_lshl_add_u32 v6, v3, 3, v6")
    a(f"s_lshl_b32 s{sT}, s{WN}, 1")
    a(f"s_add_u32 s{sT}, s{sT}, s{WM}")
    a(f"s_lshl_b32 s{sT}, s{sT}, 13")
    a(f"v_add_u32 v{AD}, s{sT}, v5")
    a(f"v_add_u32 v{AD+1}, s{sT}, v6")
    a(f"s_lshr_b32 s{sT}, s{sT}, 1")
    a(f"s_add_u32 s{sT}, s{sT}, {L_Q}")
    a(f"v_add_u32 v{AD+2}, s{sT}, v5")
    a(f"s_mov_b32 s{sT+1}, {QSCALE:#x}")
    a("s_waitcnt lgkmcnt(10)")
    for tt in range(4):
        a(f"v_mul_f32 v{QR+2*tt+1}, s{sT+1}, v{MR+2*tt+1}")
    n = 0
    def fin(ct, tt):
        nonlocal n
        r = accreg(ct, tt)
        p = PK + 2*(n % 4); n += 1
        for hf in range(2):
            pr = vr(r+2*hf, 2)
            if ct < 4:
                a(f"v_pk_fma_f32 {pr}, {vr(CSQ+4*ct+2*hf,2)}, {vr(MR+2*tt,2)}, {pr} op_sel_hi:[1,0,1] neg_lo:[0,1,0] neg_hi:[0,1,0]")
                sc = QR if ct < 2 else MR
                a(f"v_pk_mul_f32 {pr}, {pr}, {vr(sc+2*tt,2)} op_sel:[0,1] op_sel_hi:[1,1]")
            else:
                sel = "op_sel_hi:[1,0,1]" if ct == 4 else "op_sel:[0,1,0] op_sel_hi:[1,1,1]"
                a(f"v_pk_fma_f32 {pr}, {vr(MV+4*tt+2*hf,2)}, {vr(CSV,2)}, {pr} {sel} neg_lo:[0,1,0] neg_hi:[0,1,0]")
                a(f"v_pk_mul_f32 {pr}, {pr}, {vr(RV+4*tt+2*hf,2)}")
            a(f"v_cvt_pk_bf16_f32 v{p+hf}, v{r+2*hf}, v{r+2*hf+1}")
        if ct < 2:   a(f"ds_write_b64 v{AD+2}, {vr(p,2)} offset:{(tt>>1)*2048 + ct*1024 + (tt&1)*256}")
        elif ct < 4: a(f"ds_write_b64 v{AD}, {vr(p,2)} offset:{(tt>>1)*4096 + (ct-2)*1024 + (tt&1)*256}")
        else:        a(f"ds_write_b64 v{AD+1}, {vr(p,2)} offset:{(tt>>1)*4096 + 2048 + (tt&1)*1024 + (ct-4)*256}")
    a("s_waitcnt lgkmcnt(0)")
    for ct in (2, 3):
        for tt in range(4): fin(ct, tt)
    if opt.get("ksplit", True):
        a("s_waitcnt lgkmcnt(0)")
        a("s_barrier")
    for ct in (4, 5):
        for tt in range(4): fin(ct, tt)
    a("s_waitcnt lgkmcnt(0)")
    a("s_barrier")
    for ct in (0, 1):
        for tt in range(4): fin(ct, tt)
    a("s_waitcnt lgkmcnt(0)")
    return vm

def publish_kv(a, vm, R, opt):
    a(f"v_lshlrev_b32 v{R.VL}, 4, v0")
    a(f"s_and_b32 s{sT+1}, s{W}, 1")
    a(f"s_lshl_b32 s{sT+1}, s{sT+1}, 1")
    a(f"s_bfe_u32 s{sT+2}, s{W}, 0x10001")
    a(f"s_add_u32 s{sT+1}, s{sT+1}, s{sT+2}")
    a(f"s_lshl_b32 s{sT+1}, s{sT+1}, 12")
    a(f"s_add_u32 s{sT+1}, s{sT+1}, {L_Q}")
    a(f"v_add_u32 v3, s{sT+1}, v{R.VL}")
    for q in range(4): a(f"ds_read_b128 {vr(R.Q+4*q,4)}, v3 offset:{q*1024}")
    if opt.get("dbg"):
        a("s_waitcnt lgkmcnt(0)")
        head_of(a, sT+1, sT+2)
        a(f"s_lshl_b32 s{sT+1}, s{sT+1}, 6")
        a(f"s_lshl_b32 s{sT+2}, s{sMT}, 2")
        a(f"s_add_u32 s{sT+1}, s{sT+1}, s{sT+2}")
        a(f"s_and_b32 s{sT+2}, s{W}, 2")
        a(f"s_add_u32 s{sT+1}, s{sT+1}, s{sT+2}")
        a(f"s_lshl_b32 s{sT+1}, s{sT+1}, 11")
        a(f"s_add_u32 s{sT+1}, s{sT+1}, {WS_Q}")
        for q in range(4):
            a(f"buffer_store_dwordx4 {vr(R.Q+4*q,4)}, v{R.VL}, {srd(sWS)}, s{sT+1} offen offset:{q*1024}")
        vm.drain()

def gen_fused(name, **opt):
    a = Asm(); cold = []
    TICKET[0] = False
    R = AT.AttnRegs
    prologue(a, name, opt)
    a(f"s_cmp_ge_u32 s{W}, 4")
    a(f"s_cbranch_scc1 {name}_loader")
    phaseA_consumer(a, name, cold, opt)
    a(f"s_branch {name}_joinA")
    a.label(f"{name}_loader")
    phaseA_loader(a, name, cold, opt)
    a.stamp(2)
    a("s_setprio 0")
    a.label(f"{name}_joinA")
    a("s_barrier")
    a.stamp(3)
    if opt.get("dbgtime"): a("s_memrealtime s[94:95]")
    vm = VM(a)
    publish_kv(a, vm, R, opt)
    if opt.get("stop") != "A":
        import fused_bc
        fused_bc.phaseB(a, name, cold, opt, vm)
        if opt.get("stop") != "B":
            fused_bc.phaseC(a, name, cold, opt, vm)
    if opt.get("xprobe"):
        a("s_waitcnt vmcnt(0) lgkmcnt(0)")
        a(f"s_cmp_lg_u32 s{W}, 0")
        a(f"s_cbranch_scc1 {name}_done")
        a("s_getreg_b32 s76, hwreg(HW_REG_XCC_ID, 0, 4)")
        a("s_add_u32 s76, s76, 1")
        a("v_mov_b32 v1, 4")
        a("v_mov_b32 v2, s76")
        a("s_mov_b64 exec, 1")
        a(f"s_cmp_lg_u32 s2, {opt['xprobe']}")
        a(f"s_cbranch_scc1 {name}_xp0")
        a(f"buffer_atomic_add v2, v1, {srd(sDBG)}, 0 offen sc1")
        a("s_waitcnt vmcnt(0)")
        a("s_endpgm")
        a.label(f"{name}_xp0")
        a("s_cmp_lg_u32 s2, 0")
        a(f"s_cbranch_scc1 {name}_done")
        a("s_mov_b32 s78, 0")
        a.label(f"{name}_xp1")
        a("v_mov_b32 v2, 0")
        a(f"buffer_atomic_add v2, v1, {srd(sDBG)}, 0 offen sc0 sc1")
        a("s_add_u32 s78, s78, 1")
        a("s_cmp_gt_u32 s78, 100000")
        a(f"s_cbranch_scc1 {name}_done")
        a("s_waitcnt vmcnt(0)")
        a("v_readfirstlane_b32 s77, v2")
        a("s_nop 3")
        a("s_cmp_eq_u32 s77, 0")
        a(f"s_cbranch_scc1 {name}_xp1")
        a("s_cmp_eq_u32 s77, s76")
        a(f"s_cbranch_scc1 {name}_done")
        a("s_memrealtime s[80:81]")
        a("s_waitcnt lgkmcnt(0)")
        a.label(f"{name}_xp2")
        a("s_memrealtime s[78:79]")
        a("s_waitcnt lgkmcnt(0)")
        a("s_sub_u32 s78, s78, s80")
        a("s_cmp_lt_u32 s78, 4000")
        a(f"s_cbranch_scc1 {name}_xp2")
    if opt.get("probe"):
        i_, j_ = opt["probe"]
        a("s_waitcnt vmcnt(0) lgkmcnt(0)")
        a.stamp(9)
        a("s_waitcnt lgkmcnt(0)")
        a(f"s_or_b32 s76, s81, s{W}")
        a(f"s_cmp_lg_u32 s76, 0")
        a(f"s_cbranch_scc1 {name}_done")
        a(f"s_sub_u32 s76, s{82+2*j_}, s{82+2*i_}")
        a("s_lshl_b32 s76, s76, 2")
        a.label(f"{name}_probe")
        a("s_memrealtime s[78:79]")
        a("s_waitcnt lgkmcnt(0)")
        a("s_sub_u32 s78, s78, s100")
        a("s_cmp_lt_u32 s78, s76")
        a(f"s_cbranch_scc1 {name}_probe")
    else:
        a.stamp_dump(opt.get("kid", 0), W)
    if opt.get("dbgtime"):
        a("s_waitcnt vmcnt(0)")
        a("s_memrealtime s[98:99]")
        a("s_waitcnt lgkmcnt(0)")
        a("s_not_b32 s96, s96")
        a("v_mov_b32 v1, 4")
        a("v_mov_b32 v2, s96")
        a("v_mov_b32 v3, s98")
        a("v_mov_b32 v4, s94")
        a(f"s_cmp_lg_u32 s{W}, 0")
        a(f"s_cbranch_scc1 {name}_done")
        a("s_mov_b64 exec, 1")
        a(f"buffer_atomic_umax v2, v1, {srd(sDBG)}, 0 offen sc1")
        a(f"buffer_atomic_umax v3, v1, {srd(sDBG)}, 0 offen offset:4 sc1")
        a(f"buffer_atomic_umax v4, v1, {srd(sDBG)}, 0 offen offset:8 sc1")
        a("s_mov_b64 exec, -1")
    a.label(f"{name}_done")
    a("s_endpgm")
    for c in cold: a.lines += c.lines
    a.label(f"{name}_end")
    a("s_endpgm")
    return kernel_header(name) + a.text() + kernel_desc(name, 256, 102)

def xsel_fetch(a, vm, vidx, XR, XST, n=1):
    for i in range(n):
        a(f"s_mul_i32 s{sT+2}, s{W}, {n}")
        a(f"s_add_u32 s{sT+2}, s{sT+2}, {i}")
        a(f"v_readlane_b32 s{sT}, v{vidx}, s{sT+2}")
        a("s_nop 3")
        a(f"s_lshl_b32 s{sT+1}, s{sT}, 11")
        a(f"buffer_load_dwordx4 {vr(XR+8*i,4)}, v1, {srd(sX)}, s{sT+1} offen")
        a(f"buffer_load_dwordx4 {vr(XR+8*i+4,4)}, v1, {srd(sX)}, s{sT+1} offen offset:1024")
        a(f"s_lshr_b32 s{sT+1}, s{sT}, 3")
        a(f"s_lshl_b32 s{sT+1}, s{sT+1}, 5")
        a(f"s_and_b32 s{sT}, s{sT}, 7")
        a(f"s_add_u32 s{sT}, s{sT}, s{sT+1}")
        a(f"s_lshl_b32 s{sT}, s{sT}, 2")
        a(f"s_add_u32 s{sT}, s{sT}, {WS_ST}")
        a(f"v_mov_b32 v{XST+2*i+1}, s{sT}")
        a(f"buffer_load_dword v{XST+2*i}, v{XST+2*i+1}, {srd(sWS)}, 0 offen sc1")
        a(f"buffer_load_dword v{XST+2*i+1}, v{XST+2*i+1}, {srd(sWS)}, 0 offen offset:32 sc1")
    vm.issue("xsel", 4*n)

def xsel_normalise(a, T, XR, XST, n=1):
    XF = T + 2
    a(f"v_lshrrev_b32 v{T}, 2, v0")
    a(f"v_lshlrev_b32 v{T}, 9, v{T}")
    a(f"v_and_b32 v{T+1}, 3, v0")
    a(f"v_lshl_add_u32 v{T}, v{T+1}, 7, v{T}")
    a(f"s_lshl_b32 s{sT}, s{W}, {3+n}")
    a(f"s_add_u32 s{sT}, s{sT}, {L_XS}")
    a(f"v_add_u32 v{T}, s{sT}, v{T}")
    for i in range(n):
        for p in range(8):
            x = XR + 8*i + p
            f0, f1 = XF + 2*(p & 1), XF + 2*(p & 1) + 1
            a(f"v_lshlrev_b32 v{f0}, 16, v{x}")
            a(f"v_and_b32 v{f1}, 0xffff0000, v{x}")
            a(f"v_sub_f32 v{f0}, v{f0}, v{XST+2*i}")
            a(f"v_sub_f32 v{f1}, v{f1}, v{XST+2*i}")
            a(f"v_cvt_pk_bf16_f32 v{x}, v{f0}, v{f1}")
            a(f"v_lshlrev_b32 v{f0}, 16, v{x}")
            a(f"v_and_b32 v{f1}, 0xffff0000, v{x}")
            a(f"v_mul_f32 v{f0}, v{f0}, v{XST+2*i+1}")
            a(f"v_mul_f32 v{f1}, v{f1}, v{XST+2*i+1}")
            a(f"v_cvt_pk_bf16_f32 v{x}, v{f0}, v{f1}")
        a(f"ds_write_b128 v{T}, {vr(XR+8*i,4)} offset:{16*i}")
        a(f"ds_write_b128 v{T}, {vr(XR+8*i+4,4)} offset:{16*i+8192}")
```

```python
from asmlib import *
from asmlib import DIAG, TRACE
from layout import *
from fused import *
import fused as FU
from k_attn import M32, M16
import k_attn2 as AT
from k_attn2 import SM
from k_attn3 import Regs3
from k_moe import pi_row, round_bf16
from k_top8 import make_keys, decode_keys

L_S1, L_S2, L_EX, L_LX, L_HI = 32768, 131072, 131072, 129024, 159744
KH, HB, KA, KBK, VA, VBK, MASK, NEED, RET, S1O, HASJ, S2O, WOO, WOM = 48, 49, 50, 51, 52, 53, 54, 55, 56, 58, 59, 60, 61, 62
XSF, MACC, VFR, VD1, VD2, VP, VPA, VT = 220, 236, 243, 244, 245, 246, 247, 248
C_MS, C_IX, C_G, C_WT, C_AY = 206, 210, 212, 238, 240
C_XP, C_VX = 196, 204
WBF = 20

def unit(a, R, t, q, nb, hook=None, noqk=False):
    Sc, Sn = (R.S0, R.S1) if q == 0 else (R.S1, R.S0)
    P, Q, O, L = R.P, R.Q, R.O, R.L
    qn = 1 - q
    kn = t if q == 0 else t + 1
    vp = t - 1 if q == 0 else t
    K = R.KB + 8*(kn % nb); Vp = R.VB + 8*(vp % nb); Vc = R.VB + 8*(t % nb)
    e = lambda i: f"v_exp_f32 v{Sc+i}, v{Sc+i}"
    c = lambda i: f"v_cvt_pk_bf16_f32 v{P+i}, v{Sc+2*i}, v{Sc+2*i+1}"
    h = hook or (lambda pos: None)
    h("Ma")
    if not noqk: a(M32(Sn, K, Q+8*qn, None))
    h("Ma+"); a(e(0), e(1), e(2))
    h("Md"); a(M32(O+16*qn, Vp+4, P+4, O+16*qn)); h("Md+"); a(e(3), e(4), e(5))
    a(SM(L+4*qn, R.ONES, P, R.IDX), c(0), c(1), e(6), e(7))
    h("Mb")
    if not noqk: a(M32(Sn, K+4, Q+8*qn+4, Sn))
    h("Mb+"); a(c(2), c(3), e(8), e(9))
    h("Mc"); a(M32(O+16*q, Vc, P, O+16*q)); h("Mc+")
    a(e(10), e(11), c(4), e(12), c(5), e(13), e(14), e(15), c(6), c(7))

def xn_pair(o, t16, p, g0, g1, tmp):
    XP, MS = C_XP, C_MS
    o(f"v_lshlrev_b32 v{g0}, 16, v{XP+4*t16+p}")
    o(f"v_and_b32 v{g1}, 0xffff0000, v{XP+4*t16+p}")
    o(f"v_sub_f32 v{g0}, v{g0}, v{MS+2*t16}")
    o(f"v_sub_f32 v{g1}, v{g1}, v{MS+2*t16}")
    o(f"v_cvt_pk_bf16_f32 v{tmp}, v{g0}, v{g1}")
    o(f"v_lshlrev_b32 v{g0}, 16, v{tmp}")
    o(f"v_and_b32 v{g1}, 0xffff0000, v{tmp}")
    o(f"v_mul_f32 v{g0}, v{g0}, v{MS+2*t16+1}")
    o(f"v_mul_f32 v{g1}, v{g1}, v{MS+2*t16+1}")
    o(f"v_cvt_pk_bf16_f32 v{tmp}, v{g0}, v{g1}")
    o(f"v_lshlrev_b32 v{g0}, 16, v{tmp}")
    o(f"v_and_b32 v{g1}, 0xffff0000, v{tmp}")
def silu16(G, T):
    o = []
    for b in range(0, 16, 8):
        for e in range(8): o.append(f"v_mul_f32 v{T+e}, 0xbfb8aa3b, v{G+b+e}")
        for e in range(8): o.append(f"v_exp_f32 v{T+e}, v{T+e}")
        for e in range(8): o.append(f"v_add_f32 v{T+e}, 1.0, v{T+e}")
        for e in range(8): o.append(f"v_rcp_f32 v{T+e}, v{T+e}")
        for e in range(8): o.append(f"v_mul_f32 v{G+b+e}, v{G+b+e}, v{T+e}")
    return o

class OH:
    sOA, sOB, ROT, RAW, MASK, NEED, RET, GA, GB, ND = 50, 51, 60, 52, 72, 73, 44, 53, 54, 63
    GIDS = [55, 56, 57, 59]
    VPo, VPa = 236, 237
    SLOT = [132, 164, 68, 100]
def oh_setup(a, T):
    H = OH
    a(f"s_and_b32 s{H.ROT}, s{sJ}, 3")
    a(f"s_lshl_b32 s{sT}, s{sMT}, 2")
    a(f"s_and_b32 s{sT+1}, s{W}, 3")
    a(f"s_add_u32 s{sT}, s{sT}, s{sT+1}")
    a(f"s_lshl_b32 s{H.sOA}, s{sT}, 16")
    a(f"s_lshl_b32 s{sT+1}, s{KH}, 14")
    a(f"s_add_u32 s{H.sOA}, s{H.sOA}, s{sT+1}")
    a(f"s_add_u32 s{H.sOA}, s{H.sOA}, {WS_O}")
    a(f"s_add_u32 s{H.sOB}, s{H.sOA}, 32768")
    a(f"s_lshl_b32 s{sT}, s{sT}, 1")
    a(f"s_add_u32 s{sT}, s{sT}, s{KH}")
    a(f"s_lshl_b32 s{sT}, s{sT}, 7")
    a(f"s_add_u32 s{sT}, s{sT}, {WS_OF}")
    a(f"v_mov_b32 v{H.VPa}, s{sT}")
    a(f"s_mov_b32 s{H.RAW}, 0")
    a(f"s_mov_b32 s{H.NEED}, 0x1111")
def oh_poll(a, vm):
    apoll(a, OH.VPo, OH.VPa)
    vm.issue("opoll")
def oh_ready(o):
    H = OH
    o(f"v_readfirstlane_b32 s{H.RAW}, v{H.VPo}")
    o(f"s_lshl_b32 s{sT+10}, s{H.ROT}, 2")
    o(f"s_mul_i32 s{H.RAW}, s{H.RAW}, 0x10001")
    o(f"s_lshr_b32 s{H.RAW}, s{H.RAW}, s{sT+10}")
    o(f"s_lshr_b32 s{sT+10}, s{H.RAW}, 1")
    o(f"s_and_b32 s{H.MASK}, s{H.RAW}, s{sT+10}")
    o(f"s_lshr_b32 s{sT+10}, s{H.MASK}, 2")
    o(f"s_and_b32 s{H.MASK}, s{H.MASK}, s{sT+10}")
    o(f"s_and_b32 s{H.MASK}, s{H.MASK}, s{H.NEED}")
def oh_take(a, g):
    H = OH
    a(f"s_ff1_i32_b32 s{H.GA}, s{H.MASK}")
    a(f"s_bitset0_b32 s{H.NEED}, s{H.GA}")
    a(f"s_bitset0_b32 s{H.MASK}, s{H.GA}")
    a(f"s_lshr_b32 s{H.GA}, s{H.GA}, 2")
    a(f"s_add_u32 s{H.GA}, s{H.GA}, s{H.ROT}")
    a(f"s_and_b32 s{H.GIDS[g]}, s{H.GA}, 3")
    a(f"s_lshl_b32 s{H.GA}, s{H.GIDS[g]}, 12")
    a(f"s_add_u32 s{H.GB}, s{H.GA}, s{H.sOB}")
    a(f"s_add_u32 s{H.GA}, s{H.GA}, s{H.sOA}")
    for i in range(4):
        for t16 in range(2):
            a(f"buffer_load_dwordx4 {vr(H.SLOT[g]+8*i+4*t16,4)}, v1, {srd(sWS)}, s{(H.GA, H.GB)[t16]} offen offset:{i*1024}")

def phaseB(a, name, cold, opt, vm):
    R = Regs3
    VL, Q, P, O, L, T = R.VL, R.Q, R.P, R.O, R.L, R.T
    NB, NT = 4, 32
    BAR = opt.get("bar", 4)
    moe = opt.get("moe", True)
    nt = lambda k: "nt" if k in opt.get("nt", "ms") else ""
    a(f"s_lshr_b32 s{KH}, s{W}, 2")
    a(f"s_and_b32 s{sT}, s{W}, 1")
    a(f"s_lshl_b32 s{sT}, s{sT}, 1")
    a(f"s_add_u32 s{sT}, s{sT}, s{KH}")
    a(f"s_lshl_b32 s{sT}, s{sT}, 13")
    a(f"v_add_u32 v2, s{sT}, v{VL}")
    for t in range(2):
        for hf in range(2):
            a(f"ds_read_b128 {vr(R.KB+8*t+4*hf,4)}, v2 offset:{t*4096+hf*1024}")
    for t in range(2):
        for hf in range(2):
            a(f"ds_read_b128 {vr(R.VB+8*t+4*hf,4)}, v2 offset:{t*4096+2048+hf*1024}")
    head_of(a, HB, sT)
    a(f"s_lshl_b32 s{sT+1}, s{HB}, 8")
    a(f"s_lshl_b32 s{HB}, s{HB}, 18")
    a(f"s_add_u32 s{HB}, s{HB}, {WS_KV}")
    a(f"s_mov_b32 s{NEED}, 0xfffe")
    a(f"s_lshl_b32 s{sT}, s{KH}, 13")
    a(f"s_add_u32 s{S1O}, s{HB}, s{sT}")
    KVB = 63
    a(f"s_mov_b32 s{KVB}, s{S1O}")
    a(f"s_lshl_b32 s{sT}, s{KH}, 7")
    a(f"s_add_u32 s{sT}, s{sT}, s{sT+1}")
    a(f"s_add_u32 s{sT}, s{sT}, {WS_KVF}")
    a(f"v_mov_b32 v{VPA}, s{sT}")
    a(f"s_mov_b32 s{MASK}, 0")
    if moe and opt.get("ticket", False):
        a(f"v_mov_b32 v{VT}, {L_TK}")
        a(f"ds_read_b32 v{VT+1}, v{VT}")
        a("s_waitcnt lgkmcnt(0)")
        a(f"v_readfirstlane_b32 s{sXC}, v{VT+1}")
        FU.TICKET[0] = True
        a("s_nop 3")
        a(f"s_cmp_lt_u32 s{sXC}, 224")
        a(f"s_cselect_b32 s{HASJ}, 1, 0")
    elif moe:
        a(f"s_cmp_lt_u32 s{sLI}, 28")
        a(f"s_cselect_b32 s{HASJ}, 1, 0")
    if moe:
        a(f"v_bfe_u32 v{VD2}, v0, 5, 1")
        a(f"v_lshlrev_b32 v{VD2}, 3, v{VD2}")
        a(f"v_bfe_u32 v{VT}, v0, 3, 2")
        a(f"v_add_u32 v{VD2}, v{VD2}, v{VT}")
        a(f"v_bfe_u32 v{VT}, v0, 4, 2")
        a(f"v_lshlrev_b32 v{VT}, 1, v{VT}")
        a(f"v_and_b32 v{VT+1}, 7, v0")
        a(f"v_xor_b32 v{VT}, v{VT}, v{VT+1}")
        a(f"v_lshlrev_b32 v{VT}, 4, v{VT}")
        a(f"v_mul_u32_u24 v{VD1}, 7168, v{VD2}")
        a(f"v_add_u32 v{VD1}, v{VD1}, v{VT}")
        a(f"v_lshl_add_u32 v{VD2}, v{VD2}, 11, v{VT}")
        a(f"v_lshrrev_b32 v{VFR}, 2, v0")
        a(f"v_lshlrev_b32 v{VFR}, 7, v{VFR}")
        a(f"v_bfe_u32 v{VT}, v0, 3, 2")
        a(f"s_and_b32 s{sT}, s{W}, 3")
        a(f"v_xor_b32 v{VT}, s{sT}, v{VT}")
        a(f"v_lshl_add_u32 v{VFR}, v{VT}, 5, v{VFR}")
        a(f"v_and_b32 v{VT}, 3, v0")
        a(f"v_lshl_add_u32 v{VFR}, v{VT}, 3, v{VFR}")
        cg_of(a, sT)
        a(f"s_and_b32 s{sT+1}, s{sT}, 3")
        a(f"s_lshl_b32 s{sT+1}, s{sT+1}, 3")
        a(f"s_add_u32 s{sT+1}, s{sT+1}, s{W}")
        a(f"s_mul_i32 s{S1O}, s{sT+1}, {32*7168}")
        a(f"s_lshr_b32 s{sT}, s{sT}, 2")
        a(f"s_lshl_b32 s{sT}, s{sT}, 7")
        a(f"s_add_u32 s{S1O}, s{S1O}, s{sT}")
        a(f"s_lshr_b32 s{S2O}, s2, 4")
        a(f"s_mul_i32 s{S2O}, s{S2O}, 224")
        a(f"s_lshl_b32 s{sT}, s{KH}, 5")
        a(f"s_add_u32 s{S2O}, s{S2O}, s{sT}")
        a(f"s_and_b32 s{sT}, s{W}, 1")
        a(f"s_lshl_b32 s{sT}, s{sT}, 4")
        a(f"s_add_u32 s{S2O}, s{S2O}, s{sT}")
        a(f"s_and_b32 s{sT}, s{W}, 2")
        a(f"s_lshl_b32 s{sT}, s{sT}, 1")
        a(f"s_add_u32 s{S2O}, s{S2O}, s{sT}")
        a(f"s_lshl_b32 s{S2O}, s{S2O}, 11")
        a(f"s_and_b32 s{sT}, s2, 15")
        a(f"s_lshl_b32 s{sT}, s{sT}, 7")
        a(f"s_add_u32 s{S2O}, s{S2O}, s{sT}")
    def x_load():
        a(f"v_and_b32 v{VT}, 15, v0")
        a(f"s_lshl_b32 s{sT}, s{sMT}, 2")
        a(f"s_and_b32 s{sT+1}, s{W}, 3")
        a(f"s_add_u32 s{sT}, s{sT}, s{sT+1}")
        a(f"s_lshl_b32 s{sT}, s{sT}, 5")
        a(f"v_add_u32 v{VT}, s{sT}, v{VT}")
        a(f"v_lshlrev_b32 v{C_VX}, 11, v{VT}")
        a(f"v_bfe_u32 v{VT}, v0, 4, 1")
        a(f"v_lshl_add_u32 v{C_VX}, v{VT}, 5, v{C_VX}")
        a(f"v_lshrrev_b32 v{VT}, 5, v0")
        a(f"v_lshl_add_u32 v{C_VX}, v{VT}, 4, v{C_VX}")
        a(f"s_lshl_b32 s{sT}, s{sJ}, 7")
        a(f"s_lshl_b32 s{sT+1}, s{KH}, 6")
        a(f"s_add_u32 s{sT}, s{sT}, s{sT+1}")
        a(f"v_add_u32 v{C_VX}, s{sT}, v{C_VX}")
        a(f"s_mov_b32 s{sT}, 32768")
        a(f"buffer_load_dwordx4 {vr(C_XP,4)}, v{C_VX}, {srd(sX)}, 0 offen")
        a(f"buffer_load_dwordx4 {vr(C_XP+4,4)}, v{C_VX}, {srd(sX)}, s{sT} offen")
        vm.issue("xc", 2)
    def misc_read():
        a(f"v_and_b32 v{VT}, 15, v0")
        a(f"s_and_b32 s{sT}, s{W}, 3")
        a(f"s_lshl_b32 s{sT}, s{sT}, 5")
        a(f"v_add_u32 v{VT}, s{sT}, v{VT}")
        a(f"v_lshlrev_b32 v{VT}, 2, v{VT}")
        a(f"v_add_u32 v{VT}, {L_M}, v{VT}")
        for t16 in range(2):
            a(f"ds_read_b32 v{C_MS+2*t16}, v{VT} offset:{t16*64}")
            a(f"ds_read_b32 v{C_MS+2*t16+1}, v{VT} offset:{t16*64+512}")
        a(f"v_lshlrev_b32 v{VT}, 2, v0")
        a(f"v_add_u32 v{VT}, {L_IDX}, v{VT}")
        a(f"ds_read_b32 v{C_IX}, v{VT}")
    gwin = opt.get("gwin", False) and opt.get("t8a", True)
    if gwin: x_load(); misc_read()
    a(f"v_mov_b32 v{C_AY}, 0x7fff0000")
    a(f"v_mov_b32 v{C_AY+1}, 0x7fff0000")
    t8a = opt.get("t8a", True)
    if moe and t8a:
        a(f"v_and_b32 v{VT}, 7, v0")
        a(f"v_lshlrev_b32 v{VT}, 2, v{VT}")
        a(f"v_add_u32 v{VT}, {L_IDX}, v{VT}")
        a(f"ds_read_b32 v{VT+1}, v{VT}")
    AT.attn_consts(a, R, sparse=opt.get('sparse', 1))
    for r in range(4): a(f"v_mov_b32 v{R.VB+8*3+4+r}, 0")
    a("s_waitcnt lgkmcnt(0)")
    if moe and t8a: xsel_fetch(a, vm, VT+1, 228, 236)
    a(M32(R.S0, R.KB, Q, None))
    a(M32(R.S0, R.KB+4, Q+4, R.S0))
    a("s_nop 10")

    def kv_mask(o):
        o(f"v_readfirstlane_b32 s{MASK}, v{VP}")
        o("s_nop 0")
        o(f"s_mul_i32 s{MASK}, s{MASK}, 0x10001")
        o(f"s_lshr_b32 s{MASK}, s{MASK}, s{sMT}")
    c = Asm()
    c.label(f"{name}_kvspin")
    c(f"s_mov_b32 s{sT+11}, 0")
    c.label(f"{name}_kvagain")
    apoll(c, VP, VPA)
    c(f"s_add_u32 s{sT+11}, s{sT+11}, 1")
    c(f"s_cmp_gt_u32 s{sT+11}, {SPIN_LIMIT}")
    c(f"s_cselect_b32 s{MASK}, s{NEED}, s{MASK}")
    c(f"s_cbranch_scc1 {name}_kvout")
    c("s_waitcnt vmcnt(0)")
    kv_mask(c)
    c(f"s_and_b32 s{MASK}, s{MASK}, s{NEED}")
    if opt.get("fixed"):
        c(f"s_ff1_i32_b32 s{sT+10}, s{NEED}")
        c(f"s_bitcmp1_b32 s{MASK}, s{sT+10}")
    c(f"s_cbranch_scc0 {name}_kvagain")
    c.label(f"{name}_kvout")
    c(f"s_setpc_b64 s[{RET}:{RET+1}]")
    cold.append(c)
    def next_block():
        lab = a.new_label(f"{name}_nb")
        a(f"s_and_b32 s{MASK}, s{MASK}, s{NEED}")
        if opt.get("fixed"):
            a(f"s_ff1_i32_b32 s{sT+10}, s{NEED}")
            a(f"s_bitcmp1_b32 s{MASK}, s{sT+10}")
        a(f"s_cbranch_scc1 {lab}")
        a(f"s_call_b64 s[{RET}:{RET+1}], {name}_kvspin")
        a.label(lab)
        a(f"s_ff1_i32_b32 s{KBK}, s{MASK}")
        a(f"s_bitset0_b32 s{NEED}, s{KBK}")
        a(f"s_add_u32 s{KBK}, s{KBK}, s{sMT}")
        a(f"s_and_b32 s{KBK}, s{KBK}, 15")
        a(f"s_lshl_b32 s{KBK}, s{KBK}, 14")
        a(f"s_add_u32 s{KBK}, s{KBK}, s{KVB}")
    def adv(sr_, t):
        if t & 1: a(f"s_add_u32 s{sr_}, s{sr_}, 4096")
        else: a(f"s_mov_b32 s{sr_}, s{KBK}")
    def ldK(t, half):
        if half == 0:
            if not (t & 1): next_block()
            adv(KA, t)
        a(f"buffer_load_dwordx4 {vr(R.KB+8*(t%NB)+4*half,4)}, v{VL}, {srd(sWS)}, s{KA} offen offset:{half*1024}")
        vm.issue(f"K{t}_{half}")
    def ldV(t, half):
        if half == 0: adv(VA, t)
        a(f"buffer_load_dwordx4 {vr(R.VB+8*(t%NB)+4*half,4)}, v{VL}, {srd(sWS)}, s{VA} offen offset:{2048+half*1024}")
        vm.issue(f"V{t}_{half}")

    def guarded(fn):
        lab = a.new_label(f"{name}_g")
        a(f"s_cmp_eq_u32 s{HASJ}, 0")
        a(f"s_cbranch_scc1 {lab}")
        fn()
        a.label(lab)
    def s1_dma(i):
        def f():
            m, pc = i >> 2, i & 3
            a(f"s_lshl_b32 s{sT}, s{W}, 12")
            a(f"s_add_u32 m0, s{sT}, {L_S1 + m*32768 + pc*1024}")
            a(f"s_add_u32 s{sT}, s{S1O}, {(16*(pc&1) + 4*(pc>>1))*7168}")
            a(f"buffer_load_dwordx4 v{VD1}, {srd(sWG if m == 0 else sWU)}, s{sT} offen {nt('m')} lds")
            vm.issue("s1w", 1, cond=True)
        guarded(f)
    def s2_dma(jj):
        lab = a.new_label(f"{name}_s2d")
        if jj == 3:
            a(f"s_cmp_lg_u32 s{KH}, 0")
            a(f"s_cbranch_scc1 {lab}")
        a(f"s_lshl_b32 s{sT}, s{W}, 10")
        a(f"s_add_u32 m0, s{sT}, {L_S2 + jj*8192}")
        a(f"s_add_u32 s{sT}, s{S2O}, {jj*64*2048}")
        a(f"buffer_load_dwordx4 v{VD2}, {srd(sWD)}, s{sT} offen {nt('m')} lds")
        vm.issue("s2w", 1, cond=(jj == 3))
        a.label(lab)
    def touch_wd():
        a(f"s_lshl_b32 s{sT}, s2, 3")
        a(f"s_add_u32 s{sT}, s{sT}, s{W}")
        a(f"s_mul_i32 s{sT+1}, s{sT}, 3584")
        a(f"s_lshl_b32 s{sT}, s{sT}, 10")
        a(f"v_lshlrev_b32 v{VT}, 7, v0")
        a("s_bfm_b64 exec, 28, 0")
        a(f"buffer_load_dword v{VT+4}, v{VT}, {srd(sWD)}, s{sT+1} offen")
        a("s_mov_b64 exec, 0xff")
        a(f"buffer_load_dword v{VT+5}, v{VT}, {srd(sWO)}, s{sT} offen")
        a("s_mov_b64 exec, -1")
        vm.issue("tch", 2)
    def afrag_addr(base_s):
        a(f"v_and_b32 v{VT}, 7, v0")
        a(f"v_lshlrev_b32 v{VT}, 4, v{VT}")
        a(f"v_lshrrev_b32 v{VT+1}, 4, v0")
        a(f"v_lshl_add_u32 v{VT}, v{VT+1}, 7, v{VT}")
        a(f"v_add_u32 v{VT}, s{base_s}, v{VT}")
    def chain(n0, n1, first, wait=True):
        for ks in range(n0, n1):
            a(f"ds_read_b128 {vr(XSF+4*(ks&3),4)}, v{VT} offset:{ks*512}")
            for t_ in range(2):
                a(f"ds_read_b64_tr_b16 {vr(WBF+4*(ks&3)+2*t_,2)}, v{VT+2} offset:{ks*4096+t_*2048}")
        if wait: a("s_waitcnt lgkmcnt(0)")
    def mf(ks, first): a(f"v_mfma_f32_16x16x32_bf16 {vr(MACC,4)}, {vr(XSF+4*(ks&3),4)}, {vr(WBF+4*(ks&3),4)}, {'0' if first else vr(MACC,4)}")
    def out_addr(row_bytes):
        a(f"v_mul_u32_u24 v{VT+1}, {4*row_bytes}, v{VT+1}")
        a(f"v_and_b32 v{VT}, 15, v0")
        a(f"v_lshl_add_u32 v{VT}, v{VT}, 2, v{VT+1}")
    def atomics(row_bytes, tag, cond):
        a("s_bfm_b64 exec, 32, 0")
        for r in range(4):
            a(f"s_add_u32 s{sT+1}, s{sT}, {r*row_bytes}")
            a(f"buffer_atomic_add_f32 v{MACC+r}, v{VT}, {srd(sWS)}, s{sT+1} offen")
        a("s_mov_b64 exec, -1")
        vm.issue(tag, 4, cond=cond)
    def s1c_a():
        cg_of(a, sT+2)
        a(f"s_and_b32 s{sT}, s{sT+2}, 3")
        a(f"s_lshl_b32 s{sT}, s{sT}, 12")
        a(f"s_add_u32 s{sT}, s{sT}, {L_XS}")
        afrag_addr(sT)
        a(f"s_lshl_b32 s{sT}, s{KH}, 15")
        a(f"s_add_u32 s{sT}, s{sT}, {L_S1}")
        a(f"v_add_u32 v{VT+2}, s{sT}, v{VFR}")
        chain(0, 4, True, False)
    def s1c_b():
        a("s_waitcnt lgkmcnt(0)")
        for ks in range(4): mf(ks, ks == 0)
        chain(4, 8, False, False)
    def s1c_c():
        a("s_waitcnt lgkmcnt(0)")
        for ks in range(4, 8): mf(ks, False)
        out_addr(14336)
    def s1c_d():
        cg_of(a, sT+2)
        a(f"s_lshr_b32 s{sT}, s{sT+2}, 2")
        a(f"s_lshl_b32 s{sT}, s{sT}, 8")
        a(f"s_and_b32 s{sT+1}, s{W}, 3")
        a(f"s_lshl_b32 s{sT+1}, s{sT+1}, 6")
        a(f"s_add_u32 s{sT}, s{sT}, s{sT+1}")
        a(f"s_mul_i32 s{sT+1}, s{KH}, 114688")
        a(f"s_add_u32 s{sT}, s{sT}, s{sT+1}")
        a(f"s_add_u32 s{sT}, s{sT}, {WS_GU}")
        atomics(14336, "gat", True)
    def s1_compute():
        def f(): s1c_a(); s1c_b(); s1c_c(); s1c_d()
        guarded(f)
    def s1_flag():
        vm.wait("gat")
        def f():
            hf_addr(a, sT)
            signal(a, sT, 1, VT, VT+1)
            vm.issue("hfl", 1, cond=True)
        guarded(f)
    def one_wave(fn, tag):
        lab = a.new_label(f"{name}_w0")
        a(f"s_cmp_lg_u32 s{W}, 0")
        a(f"s_cbranch_scc1 {lab}")
        fn()
        a.label(lab)
    def s2_poll():
        def f():
            a(f"s_lshr_b32 s{sT}, s2, 4")
            a(f"s_mul_i32 s{sT}, s{sT}, 7")
            a(f"s_lshr_b32 s{sT}, s{sT}, 1")
            a(f"s_lshl_b32 s{sT}, s{sT}, 7")
            a(f"s_add_u32 s{sT}, s{sT}, {WS_HF}")
            a(f"v_lshlrev_b32 v{VT+4}, 7, v0")
            a(f"v_add_u32 v{VT+4}, s{sT}, v{VT+4}")
            apoll(a, VT+5, VT+4, 4)
        one_wave(f, "hp")
        vm.issue("hpoll", 1, cond=True)
    def s2_check():
        def f():
            vm.copy().wait("hpoll")
            acheck(a, f"{name}_hp", VT+5, VT+4, 32, 4, cold)
        one_wave(f, "hc")
    def s2_load():
        a(f"s_lshr_b32 s{sT}, s2, 4")
        a(f"s_mul_i32 s{sT}, s{sT}, 896")
        a(f"s_mul_i32 s{sT+1}, s{W}, 14336")
        a(f"s_add_u32 s{sT}, s{sT}, s{sT+1}")
        a(f"s_add_u32 s{sT}, s{sT}, {WS_GU}")
        a(f"s_add_u32 s{sT+1}, s{sT}, 114688")
        a("s_bfm_b64 exec, 56, 0")
        a(f"buffer_load_dwordx4 {vr(XSF,4)}, v{VL}, {srd(sWS)}, s{sT} offen sc1")
        a(f"buffer_load_dwordx4 {vr(XSF+4,4)}, v{VL}, {srd(sWS)}, s{sT+1} offen sc1")
        a("s_mov_b64 exec, -1")
        vm.issue("hld", 2)
    def s2_h():
        vm.wait("hld")
        Gs, Us, Tm = XSF, XSF+4, XSF+8
        for e in range(0, 4, 2):
            a(f"v_cvt_pk_bf16_f32 v{Tm}, v{Gs+e}, v{Gs+e+1}")
            a(f"v_cvt_pk_bf16_f32 v{Tm+1}, v{Us+e}, v{Us+e+1}")
            a(f"v_lshlrev_b32 v{Gs+e}, 16, v{Tm}")
            a(f"v_and_b32 v{Gs+e+1}, 0xffff0000, v{Tm}")
            a(f"v_lshlrev_b32 v{Us+e}, 16, v{Tm+1}")
            a(f"v_and_b32 v{Us+e+1}, 0xffff0000, v{Tm+1}")
        for e in range(4): a(f"v_mul_f32 v{Tm+e}, 0xbfb8aa3b, v{Gs+e}")
        for e in range(4): a(f"v_exp_f32 v{Tm+e}, v{Tm+e}")
        for e in range(4): a(f"v_add_f32 v{Tm+e}, 1.0, v{Tm+e}")
        for e in range(4): a(f"v_rcp_f32 v{Tm+e}, v{Tm+e}")
        for e in range(4): a(f"v_mul_f32 v{Gs+e}, v{Gs+e}, v{Tm+e}")
        for e in range(0, 4, 2):
            a(f"v_cvt_pk_bf16_f32 v{Tm}, v{Gs+e}, v{Gs+e+1}")
            a(f"v_lshlrev_b32 v{Gs+e}, 16, v{Tm}")
            a(f"v_and_b32 v{Gs+e+1}, 0xffff0000, v{Tm}")
        for e in range(4): a(f"v_mul_f32 v{Gs+e}, v{Gs+e}, v{Us+e}")
        a(f"v_cvt_pk_bf16_f32 v{Tm}, v{Gs}, v{Gs+1}")
        a(f"v_cvt_pk_bf16_f32 v{Tm+1}, v{Gs+2}, v{Gs+3}")
        a(f"v_lshrrev_b32 v{VT}, 1, v0")
        a(f"v_lshlrev_b32 v{VT}, 7, v{VT}")
        a(f"v_and_b32 v{VT+1}, 1, v0")
        a(f"v_lshl_add_u32 v{VT}, v{VT+1}, 3, v{VT}")
        a(f"s_lshl_b32 s{sT}, s{W}, 4")
        a(f"s_add_u32 s{sT}, s{sT}, {L_HI}")
        a(f"v_add_u32 v{VT}, s{sT}, v{VT}")
        a("s_bfm_b64 exec, 56, 0")
        a(f"ds_write_b64 v{VT}, {vr(Tm,2)}")
        a("s_mov_b64 exec, -1")
        if opt.get("dbg"):
            a(f"s_lshr_b32 s{sT}, s2, 4")
            a(f"s_mul_i32 s{sT}, s{sT}, 448")
            a(f"s_mul_i32 s{sT+1}, s{W}, 7168")
            a(f"s_add_u32 s{sT}, s{sT}, s{sT+1}")
            a(f"s_add_u32 s{sT}, s{sT}, {WS_H}")
            a(f"v_lshlrev_b32 v{VT}, 3, v0")
            a("s_bfm_b64 exec, 56, 0")
            a(f"buffer_store_dwordx2 {vr(Tm,2)}, v{VT}, {srd(sWS)}, s{sT} offen")
            a("s_mov_b64 exec, -1")
            vm.issue("dbg")
    def s2c_a():
        a(f"s_lshl_b32 s{sT}, s{KH}, 11")
        a(f"s_add_u32 s{sT}, s{sT}, {L_HI}")
        afrag_addr(sT)
        a(f"s_lshl_b32 s{sT}, s{KH}, 14")
        a(f"s_add_u32 s{sT}, s{sT}, {L_S2}")
        a(f"v_add_u32 v{VT+2}, s{sT}, v{VFR}")
        chain(0, 4, True, False)
    def s2c_b():
        a("s_waitcnt lgkmcnt(0)")
        a(f"s_cmp_lg_u32 s{KH}, 0")
        lab = a.new_label(f"{name}_s2k")
        for ks in range(4):
            if ks == 3: a(f"s_cbranch_scc1 {lab}")
            mf(ks, ks == 0)
        a.label(lab)
        out_addr(4096)
    def s2c_c():
        a(f"s_and_b32 s{sT}, s2, 15")
        a(f"s_lshl_b32 s{sT}, s{sT}, 8")
        a(f"s_and_b32 s{sT+1}, s{W}, 3")
        a(f"s_lshl_b32 s{sT+1}, s{sT+1}, 6")
        a(f"s_add_u32 s{sT}, s{sT}, s{sT+1}")
        a(f"s_add_u32 s{sT}, s{sT}, {WS_Y}")
        atomics(4096, "yat", False)
    def s2_compute(): s2c_a(); s2c_b(); s2c_c()
    def y_flag():
        vm.wait("yat")
        yf_addr(a, sT, sT+1)
        signal(a, sT, 1, VT, VT+1)
        vm.issue("yfl")
    RT = 58
    def route_detect():
        for i in range(8): a(f"v_readlane_b32 s{sT+i}, v{C_IX}, {i}")
        a(f"s_lshl_b32 s{sT+8}, s{sMT}, 2")
        a(f"s_and_b32 s{sT+9}, s{W}, 3")
        a(f"s_add_u32 s{sT+8}, s{sT+8}, s{sT+9}")
        a(f"s_mov_b32 s{RT}, 0")
        for i in range(8):
            a(f"s_lshr_b32 s{sT+9}, s{sT+i}, 5")
            a(f"s_cmp_eq_u32 s{sT+9}, s{sT+8}")
            a(f"s_cselect_b32 s{RT}, 1, s{RT}")
        a(f"s_cmp_lg_u32 s{RT}, 0")
        a(f"s_cbranch_scc1 {name}_rdet")
        a.label(f"{name}_rdet_done")
        vm.issue("ypoll", 1, cond=True)
        c = Asm()
        c.label(f"{name}_rdet")
        for t16 in range(2):
            c(f"v_lshrrev_b32 v{VT}, 11, v{C_VX}")
            c(f"v_add_u32 v{VT}, {16*t16}, v{VT}")
            c(f"v_mov_b32 v{C_AY+t16}, 0x7fff0000")
            c(f"v_mov_b32 v{C_WT+t16}, 0")
            c(f"v_and_b32 v{VT+1}, 0x7ff, v{C_VX}")
            c(f"v_lshlrev_b32 v{VT+1}, 1, v{VT+1}")
            c(f"v_add_u32 v{VT+1}, {WS_Y}, v{VT+1}")
            for i in range(8):
                c(f"v_readlane_b32 s{sT+8}, v{C_IX}, {8+i}")
                c(f"v_cmp_eq_u32 vcc, s{sT+i}, v{VT}")
                c(f"v_add_u32 v{VT+4}, {i*4096}, v{VT+1}")
                c(f"v_mov_b32 v{VT+5}, s{sT+8}")
                c(f"v_cndmask_b32 v{C_AY+t16}, v{C_AY+t16}, v{VT+4}, vcc")
                c(f"v_cndmask_b32 v{C_WT+t16}, v{C_WT+t16}, v{VT+5}, vcc")
        c(f"s_lshl_b32 s{sT+8}, s{sJ}, 7")
        c(f"s_add_u32 s{sT+8}, s{sT+8}, {WS_YF}")
        c(f"v_mov_b32 v{VT+4}, s{sT+8}")
        apoll(c, VT+5, VT+4)
        c(f"s_branch {name}_rdet_done")
        cold.append(c)
    def route_fetch():
        a(f"s_cmp_lg_u32 s{RT}, 0")
        a(f"s_cbranch_scc1 {name}_rfet")
        a.label(f"{name}_rfet_done")
        vm.issue("yld", 4, cond=True)
        c = Asm()
        c.label(f"{name}_rfet")
        c("s_waitcnt vmcnt(0)")
        acheck(c, f"{name}_yp", VT+5, VT+4, 128, 1, cold)
        for t16 in range(2):
            for hf in range(2):
                c(f"buffer_load_dwordx4 {vr(C_G+8*t16+4*hf,4)}, v{C_AY+t16}, {srd(sWS)}, 0 offen offset:{16*hf} sc1")
        c(f"s_branch {name}_rfet_done")
        cold.append(c)
    def wo_setup():
        a(f"v_lshrrev_b32 v{VD1}, 3, v0")
        a(f"v_lshlrev_b32 v{VD1}, 11, v{VD1}")
        a(f"v_bfe_u32 v{VT}, v0, 4, 1")
        a(f"s_bfe_u32 s{sT}, s{W}, 0x10001")
        a(f"s_lshl_b32 s{sT}, s{sT}, 1")
        a(f"v_or_b32 v{VT}, s{sT}, v{VT}")
        a(f"v_lshlrev_b32 v{VT}, 1, v{VT}")
        a(f"v_and_b32 v{VT+1}, 7, v0")
        a(f"v_xor_b32 v{VT}, v{VT}, v{VT+1}")
        a(f"v_lshl_add_u32 v{VD1}, v{VT}, 4, v{VD1}")
        a(f"s_lshl_b32 s{WOO}, s{W}, 14")
        a(f"s_lshl_b32 s{sT}, s{sJ}, 7")
        a(f"s_add_u32 s{WOO}, s{WOO}, s{sT}")
        a(f"s_lshl_b32 s{WOM}, s{W}, 10")
    def wo_dma(i, part=None):
        lab = a.new_label(f"{name}_wo")
        if part:
            a(f"s_cmp_ge_u32 s{W}, 6")
            a(f"s_cbranch_scc{1 if part == 'early' else 0} {lab}")
        a(f"s_add_u32 m0, s{WOM}, {i*8192}")
        a(f"s_add_u32 s{sT}, s{WOO}, {i*64*2048}")
        a(f"buffer_load_dwordx4 v{VD1}, {srd(sWO)}, s{sT} offen {nt('o')} lds")
        vm.issue("wo", 1, cond=bool(part))
        a.label(lab)
    FU.wo_dma = wo_dma

    sched = {}
    skip = opt.get("skip", [])
    def at(t, q, fn, tag=None):
        if tag in skip: return
        sched.setdefault((t, q), []).append(fn)
    def stag(t0, t1, fn, nm):
        if nm in skip: return
        if not opt.get("stag", True):
            at(*t0, fn); return
        sub = Asm(); sub.uid = a.uid + 1000*(len(cold) + 1)
        box = {}
        def emit(first):
            lab = a.new_label(f"{name}_st")
            a(f"s_cmp_{'lg' if first else 'eq'}_u32 s{KH}, 0")
            a(f"s_cbranch_scc1 {lab}")
            a(f"s_call_b64 s[{sT+6}:{sT+7}], {name}_{nm}")
            a.label(lab)
            if first:
                q0 = list(vm.q)
                keep = a.lines; a.lines = sub.lines
                a.label(f"{name}_{nm}")
                fn()
                a(f"s_setpc_b64 s[{sT+6}:{sT+7}]")
                a.lines = keep
                box["ops"] = [x for x in vm.q if x not in q0 or vm.q.count(x) > q0.count(x)]
                new = vm.q[len([x for x in vm.q if True]) - 0:]
                n_new = box_count(q0, vm.q)
                box["new"] = [(tg, True) for tg, _ in vm.q[len(vm.q) - n_new:]]
                vm.q = q0 + box["new"]
                cold.append(sub)
            else:
                vm.q += box["new"]
        at(*t0, lambda: emit(True)); at(*t1, lambda: emit(False))
    def box_count(q0, q1):
        n = 0
        ids0 = [x[0] for x in q0]
        for tg, _ in reversed(q1):
            if tg in ids0: break
            n += 1
        return n
    pre = {}
    chk = {}
    ldsw = set()
    assert BAR == 4
    if moe:
        E = opt.get("early", 0)
        if E and not opt.get("s1win"):
            for i in range(8): at(2 + i // 2, i & 1, lambda i=i: s1_dma(i), 'mdma')
        elif not opt.get("s1win"):
            for i in range(8): at(3 + i, 1, lambda i=i: s1_dma(i), 'mdma')
        pre[11-E] = ["s1w"]
        nb = opt.get("nb", True)
        if nb and "s1c" not in skip:
            for k_, fn in enumerate((s1c_a, s1c_b, s1c_c, s1c_d)): at(12 - E + k_//2, k_ & 1, lambda fn=fn: guarded(fn))
        elif not nb: stag((12-E, 0), (13-E, 0), s1_compute, "s1c")
        for i in range(4): at(16 - E + i, 0, lambda i=i: s2_dma(i), 'mdma')
        at(15-E, 0, s1_flag)
        at(18-E, 0, s2_poll, 'hp')
        chk[19-E] = s2_check
        at(20-E, 0, s2_load, 'hp')
        if nb and "s2h" not in skip: at(22-E, 0, s2_h)
        elif not nb: stag((22-E, 0), (23-E, 0), s2_h, "s2h")
        ldsw.add(23-E)
        pre[23-E] = ["s2w"]
        if nb and "s2c" not in skip:
            for k_, fn in enumerate((s2c_a, s2c_b, s2c_c)): at(24 - E + k_//2, k_ & 1, fn)
        elif not nb: stag((24-E, 0), (25-E, 1), s2_compute, "s2c")
        at(27-E, 1, y_flag)
        at(29, 0, route_detect)
        at(30, 0, route_fetch)
    at(16, 0, wo_setup)
    W0 = opt.get("wo0", 20)
    wsched = opt.get("wsched")
    if not wsched: wsched = [(W0 + (i*opt.get("won", 10))//15, 1) for i in range(15)] + [(W0 + opt.get("won", 10), 1)]
    for i in range(15): at(*wsched[i], lambda i=i: wo_dma(i), 'wo')
    at(*wsched[15], lambda: wo_dma(15, 'early'))
    def kv_refresh_issue():
        apoll(a, VP, VPA)
        vm.issue("kvp")
    def kv_refresh_use():
        vm.wait("kvp")
        kv_mask(a)
    for t_ in opt.get("kvr", [2, 5]):
        at(t_, 0, kv_refresh_issue)
        at(t_ + 2, 0, kv_refresh_use)
    if not gwin: at(21, 0, x_load)
    at(30, 0, lambda: oh_setup(a, VT))
    ldsw.add(19 - opt.get("early", 0))
    if not gwin: at(17 - opt.get("early", 0), 1, misc_read)

    def hooks(t, q):
        def h(pos):
            if t < 2: return
            if q == 0:
                if pos == "Mc": vm.wait(f"V{t}_0")
                if pos == "Ma+" and t + 3 < NT: ldV(t+3, 0)
                if pos == "Mb+" and t + 3 < NT: ldV(t+3, 1)
            else:
                if pos == "Ma": vm.wait(f"K{t+1}_1", f"V{t}_1")
                if pos == "Md+" and t + 4 < NT: ldK(t+4, 0)
                if pos == "Mc+" and t + 4 < NT: ldK(t+4, 1)
        return h
    pm = opt.get("pmode", 1)
    def prio(t):
        if pm == 1: a(f"s_setprio {3 - (t % BAR) * 4 // BAR}")
        if pm == 2 and t % 2 == 0: a(f"s_setprio {3 - (t % BAR)}")
        if pm == 0 and t == 2: a("s_setprio 0")
    def prio2(t):
        if pm == 3:
            if t % BAR == 0 or t == 2:
                lab = a.new_label(f"{name}_pr")
                a("s_setprio 0")
                a(f"s_cmp_eq_u32 s{KH}, 0")
                a(f"s_cbranch_scc1 {lab}")
                a("s_setprio 1")
                a.label(lab)
            if t % BAR == 2 and t != 2: a("s_setprio 0")
    XR, XST = 228, 236
    lab = a.new_label(f"{name}_kvf")
    a(f"s_cmp_eq_u32 s{KH}, 0")
    a(f"s_cselect_b32 s{sT}, 0, 1")
    a(f"s_cbranch_scc1 {lab}")
    a("s_setprio 3")
    a.label(lab)
    unit(a, R, 0, 0, NB); unit(a, R, 0, 1, NB)
    unit(a, R, 1, 0, NB)
    epoll = opt.get("epoll", False) and t8a
    if epoll: apoll(a, VP, VPA)
    unit(a, R, 1, 1, NB, noqk=True)
    vm.drain()
    if epoll: kv_mask(a)
    a(f"s_cmp_eq_u32 s{KH}, 0")
    a(f"s_cbranch_scc1 {lab}_f")
    kvf_addr(a, sT, sT+1)
    a(f"s_lshl_b32 s{sT+1}, 1, s{sMT}")
    signal(a, sT, f"s{sT+1}", VT, VT+1, "or")
    if moe and not t8a: a(f"s_branch {lab}_g")
    a.label(f"{lab}_f")
    win = moe and not t8a
    KEY, TT, CAND, XR2, XST2 = RKEY, 216, 224, 228, 244 - 0
    if win:
        a(f"s_lshl_b32 s{sT}, s{W}, 9")
        a(f"v_lshlrev_b32 v{CAND+1}, 2, v0")
        a(f"v_add_u32 v{CAND+1}, s{sT}, v{CAND+1}")
        make_keys(a, KEY, TT, CAND+1, [0, 1, 2, 3, 256, 257, 258, 259])
        a(f"v_mov_b32 v{CAND}, 0")
        for r in range(8): top8_round(a, list(range(KEY, KEY+8)), TT, CAND, sT, r)
        a(f"s_lshl_b32 s{sT}, s{W}, 5")
        a(f"s_add_u32 s{sT}, s{sT}, {L_CAND}")
        a(f"v_lshlrev_b32 v{CAND+1}, 2, v0")
        a(f"v_add_u32 v{CAND+1}, s{sT}, v{CAND+1}")
        a("s_mov_b64 exec, 0xff")
        a(f"ds_write_b32 v{CAND+1}, v{CAND}")
        a("s_mov_b64 exec, -1")
        a("s_waitcnt lgkmcnt(0)")
        a.label(f"{lab}_g")
        a.stamp(4)
        a("s_barrier")
        a(f"s_cmp_lg_u32 s{KH}, 0")
        a(f"s_cbranch_scc1 {lab}_h")
        a(f"v_and_b32 v{CAND+1}, 31, v0")
        a(f"v_lshlrev_b32 v{CAND+1}, 2, v{CAND+1}")
        a(f"v_add_u32 v{CAND+1}, {L_CAND}, v{CAND+1}")
        a(f"ds_read_b32 v{KEY}, v{CAND+1}")
        a("v_cmp_gt_u32 vcc, 32, v0")
        a("s_waitcnt lgkmcnt(0)")
        a(f"v_cndmask_b32 v{KEY}, 0, v{KEY}, vcc")
        for r in range(8): top8_round(a, [KEY], TT, CAND, sT, r)
        decode_keys(a, CAND, TT+1, TT+2, TT)
        a(f"v_lshlrev_b32 v{CAND+1}, 2, v0")
        a(f"v_add_u32 v{CAND+2}, {L_IDX}, v{CAND+1}")
        a("s_mov_b64 exec, 0xff")
        a(f"ds_write_b32 v{CAND+2}, v{TT+1}")
        a(f"ds_write_b32 v{CAND+2}, v{TT+2} offset:32")
        if opt.get("dbg"):
            a(f"s_mov_b32 s{sT}, {WS_IDX}")
            a(f"buffer_store_dword v{TT+1}, v{CAND+1}, {srd(sWS)}, s{sT} offen")
            a(f"buffer_store_dword v{TT+2}, v{CAND+1}, {srd(sWS)}, s{sT} offen offset:32")
        a("s_mov_b64 exec, -1")
        xsel_fetch(a, vm, TT+1, 196, 212, 2)
        vm.q = []
        a.label(f"{lab}_h")
    else:
        a.stamp(4)
        if moe and not epoll:
            xsel_normalise(a, VT, XR, XST)
            a("s_waitcnt lgkmcnt(0)")
        if moe:
            if opt.get("s1win"):
                lab2 = a.new_label(f"{name}_s1w")
                a(f"s_cmp_lg_u32 s{KH}, 0")
                a(f"s_cbranch_scc1 {lab2}")
                a(f"s_cmp_eq_u32 s{HASJ}, 0")
                a(f"s_cbranch_scc1 {lab2}")
                a(f"s_mul_i32 s{sT+1}, s{W}, {32*7168}")
                a(f"s_add_u32 s{sT+1}, s{sT+1}, s{S1O}")
                a(f"s_lshl_b32 s{sT+2}, s{W}, 13")
                for h2 in range(2):
                    for i in range(8):
                        m, pc = i >> 2, i & 3
                        a(f"s_add_u32 m0, s{sT+2}, {L_S1 + m*32768 + h2*4096 + pc*1024}")
                        a(f"s_add_u32 s{sT}, s{sT+1}, {(32*h2 + 16*(pc&1) + 4*(pc>>1))*7168}")
                        a(f"buffer_load_dwordx4 v{VD1}, {srd(sWG if m == 0 else sWU)}, s{sT} offen {nt('m')} lds")
                a.label(lab2)
                vm.issue("s1w", 16, cond=True)
    if gwin:
        for t16 in range(2):
            for p in range(4): xn_pair(a, t16, p, R.S1 + 8*t16 + 2*p, R.S1 + 8*t16 + 2*p + 1, R.T)
    a.stamp(5)
    ldK(2, 0)
    a.stamp(6)
    ldK(2, 1); ldV(2, 0); ldV(2, 1); ldK(3, 0); ldK(3, 1); ldV(3, 0); ldV(3, 1)
    ldK(4, 0); ldK(4, 1); ldV(4, 0); ldV(4, 1); ldK(5, 0); ldK(5, 1)
    if moe and epoll:
        xsel_normalise(a, VT, XR, XST)
        ldsw.add(3)
    if gwin:
        a(*silu16(R.S1, R.T))
        for p in range(8): a(f"v_cvt_pk_bf16_f32 v{C_G+p}, v{R.S1+2*p}, v{R.S1+2*p+1}")
    if win:
        a(f"s_cmp_lg_u32 s{KH}, 0")
        a(f"s_cbranch_scc1 {lab}_i")
        a("s_waitcnt vmcnt(14)")
        xsel_normalise(a, VT, 196, 212, 2)
        a("s_waitcnt lgkmcnt(0)")
        a.label(f"{lab}_i")
    vm.wait("K2_1")
    a(M32(R.S0, R.KB+16, Q, None))
    a(M32(R.S0, R.KB+20, Q+4, R.S0))
    a("s_nop 10")
    for t in range(2, NT):
        a.trace(t, "b")
        prio(t); prio2(t)
        for q in range(2):
            a.trace(2*t + q, "u")
            for fn in sched.get((t, q), []): fn()
            unit(a, R, t, q, NB, hooks(t, q))
        if (t % BAR) == BAR - 1 and t != NT - 1:
            if t in ldsw: a("s_waitcnt lgkmcnt(0)")
            if t in pre: vm.wait(*pre[t])
            if t in chk and 'hp' not in skip: chk[t]()
            a("s_barrier")
    a("s_setprio 0")
    a.stamp(7)
    a("s_nop 0")
    a(M32(O+16, R.VB+8*((NT-1)%NB)+4, P+4, O+16))
    a(SM(L+4, R.ONES, P, R.IDX))
    a.trace(50, "c")
    a("s_nop 7")
    a("s_nop 7")
    exchange_and_store(a, name, vm, R, opt, cold)
    c = Asm()
    AT.attn_slow_path(c, R, name, KH, sWS, HB, s0=sT)
    cold.append(c)

SLOWD = 74
def exchange_and_store(a, name, vm, R, opt, cold):
    O, L, T, VL, P = R.O, R.L, R.T, R.VL, R.P
    a(f"s_mov_b64 s[{SLOWD}:{SLOWD+1}], 0")
    a(f"v_add_f32 v{L}, v{L}, v{L+1}")
    a(f"v_add_f32 v{L+4}, v{L+4}, v{L+5}")
    a(f"s_lshl_b32 s{sT}, s{W}, 12")
    a(f"s_add_u32 s{sT}, s{sT}, {L_EX}")
    a(f"v_add_u32 v{T}, s{sT}, v{VL}")
    a(f"v_xor_b32 v{T+1}, 16384, v{T}")
    a(f"s_lshl_b32 s{sT}, s{W}, 8")
    a(f"s_add_u32 s{sT}, s{sT}, {L_LX}")
    a(f"v_lshrrev_b32 v{T+2}, 2, v{VL}")
    a(f"v_add_u32 v{T+2}, s{sT}, v{T+2}")
    a(f"v_xor_b32 v{T+3}, 1024, v{T+2}")
    a(f"s_cmp_eq_u32 s{KH}, 0")
    a(f"s_cbranch_scc1 {name}_kh0")
    for r in range(4): a(f"ds_write_b128 v{T}, {vr(O+4*r,4)} offset:{r*1024}")
    a(f"ds_write_b32 v{T+2}, v{L}")
    a("s_waitcnt lgkmcnt(0)")
    for r in range(16): a(f"v_mov_b32 v{O+r}, v{O+16+r}")
    a(f"v_mov_b32 v{L}, v{L+4}")
    a(f"s_branch {name}_khj")
    a.label(f"{name}_kh0")
    for r in range(4): a(f"ds_write_b128 v{T}, {vr(O+16+4*r,4)} offset:{r*1024}")
    a(f"ds_write_b32 v{T+2}, v{L+4}")
    a.label(f"{name}_khj")
    a("s_waitcnt lgkmcnt(0)")
    a("s_barrier")
    for r in range(4): a(f"ds_read_b128 {vr(O+16+4*r,4)}, v{T+1} offset:{r*1024}")
    a(f"ds_read_b32 v{L+4}, v{T+3}")
    otile(a, sT, sT+1)
    a(f"s_lshl_b32 s{sT}, s{sT}, 6")
    head_of(a, sT+1, sT+2)
    a(f"s_add_u32 s{sT}, s{sT}, s{sT+1}")
    a(f"s_lshl_b32 s{sT+4}, s{sT}, 10")
    a(f"s_add_u32 s{sT+4}, s{sT+4}, {WS_O}")
    a(f"v_bfe_u32 v{T+4}, v0, 4, 1")
    a(f"v_lshlrev_b32 v{T+4}, 15, v{T+4}")
    a(f"v_lshrrev_b32 v{T+5}, 5, v0")
    a(f"v_lshl_add_u32 v{T+4}, v{T+5}, 9, v{T+4}")
    a(f"v_and_b32 v{T+5}, 15, v0")
    a(f"v_lshl_add_u32 v{T+4}, v{T+5}, 4, v{T+4}")
    a("s_waitcnt lgkmcnt(0)")
    a.trace(51, "c")
    for r in range(16): a(f"v_add_f32 v{O+r}, v{O+r}, v{O+16+r}")
    a(f"v_add_f32 v{L}, v{L}, v{L+4}")
    a(f"v_mov_b32 v{T+1}, 0")
    a.label(f"{name}_fin")
    a(f"v_rcp_f32 v{T}, v{L}")
    a(f"s_mov_b32 s{sT}, 0x2b800000")
    for jj in range(2):
        for e_ in range(4):
            r0 = O + 8*jj + 2*e_
            a(f"v_pk_mul_f32 {vr(O+16+8*jj+2*e_,2)}, {vr(r0,2)}, {vr(T,2)} op_sel_hi:[1,0]")
            a(f"v_cvt_pk_bf16_f32 v{P+4*jj+e_}, v{O+16+8*jj+2*e_}, v{O+16+8*jj+2*e_+1}")
        a(f"buffer_store_dwordx4 {vr(P+4*jj,4)}, v{T+4}, {srd(sWS)}, s{sT+4} offen offset:{jj*256} {opt.get('of', 'sc1')}")
    vm.issue("ost", 2)
    a(f"v_mov_b32 v{T+1}, 0")
    for r in range(16): a(f"v_fmac_f32 v{T+1}, 0, v{O+r}")
    a(f"s_mov_b32 s{sT+1}, 0x5d800000")
    a(f"v_cmp_nle_f32 s[{sT+6}:{sT+7}], s{sT}, v{L}")
    a(f"v_cmp_nge_f32 s[{sT+2}:{sT+3}], s{sT+1}, v{L}")
    a(f"v_cmp_u_f32 vcc, v{T+1}, v{T+1}")
    a(f"s_or_b64 s[{sT+6}:{sT+7}], s[{sT+6}:{sT+7}], s[{sT+2}:{sT+3}]")
    a(f"s_or_b64 s[{sT+6}:{sT+7}], s[{sT+6}:{sT+7}], vcc")
    a(f"s_andn2_b64 s[{sT+6}:{sT+7}], s[{sT+6}:{sT+7}], s[{SLOWD}:{SLOWD+1}]")
    a(f"s_cmp_lg_u64 s[{sT+6}:{sT+7}], 0")
    a(f"s_cbranch_scc1 {name}_slow0_")
    c = Asm()
    c.label(f"{name}_slow0_")
    c(f"s_mov_b64 s[{SLOWD}:{SLOWD+1}], -1")
    c(f"s_branch {name}_slow")
    cold.append(c)
    a.trace(52, "c")

def phaseC(a, name, cold, opt, vm):
    H = OH
    ACC, WB = 4, 36
    XP, VX, MS = C_XP, C_VX, C_MS
    VL2, G, WA, WG, T = 1, C_G, 228, 232, 240
    moe = opt.get("moe", True)
    a(f"v_lshrrev_b32 v{T+1}, 4, v0")
    a(f"v_and_b32 v{T+6}, 1, v{T+1}")
    a(f"v_lshlrev_b32 v{T+7}, 4, v{T+6}")
    a(f"v_lshrrev_b32 v{T+8}, 1, v{T+1}")
    a(f"v_lshl_add_u32 v{T+7}, v{T+8}, 2, v{T+7}")
    a(f"v_bfe_u32 v{T+8}, v0, 2, 2")
    a(f"v_add_u32 v{T+7}, v{T+7}, v{T+8}")
    a(f"v_lshlrev_b32 v{T+7}, 7, v{T+7}")
    a(f"v_and_b32 v{T+8}, 3, v0")
    a(f"v_lshl_add_u32 v{T+7}, v{T+8}, 3, v{T+7}")
    a(f"v_lshlrev_b32 v{T+6}, 1, v{T+6}")
    a(f"v_bfe_u32 v{T+8}, v0, 3, 1")
    a(f"v_or_b32 v{T+6}, v{T+6}, v{T+8}")
    a(f"v_lshl_add_u32 v{T+7}, v{T+6}, 5, v{T+7}")
    a(f"s_lshl_b32 s{sT}, s{KH}, 16")
    a(f"v_add_u32 v{WA}, s{sT}, v{T+7}")
    for ct in range(1, 4): a(f"v_xor_b32 v{WA+ct}, {ct*32}, v{WA}")
    of_addr(a, sT, sT+1)
    a.trace(53, "c")
    vm.drain()
    a.trace(54, "c")
    signal(a, sT, f"s{sT+1}", T+6, T+7, "or")
    a.stamp(8)
    a("s_barrier")
    FU.wo_dma(15, 'late')
    oh_poll(a, vm)
    c = Asm()
    c.label(f"{name}_ospin")
    c(f"s_mov_b32 s{sT+11}, 0")
    c.label(f"{name}_oagain")
    apoll(c, H.VPo, H.VPa)
    c(f"s_add_u32 s{sT+11}, s{sT+11}, 1")
    c(f"s_cmp_gt_u32 s{sT+11}, {SPIN_LIMIT}")
    c(f"s_cselect_b32 s{H.MASK}, s{H.NEED}, s{H.MASK}")
    c(f"s_cbranch_scc1 {name}_oout")
    c("s_waitcnt vmcnt(0)")
    oh_ready(c)
    c(f"s_cbranch_scc0 {name}_oagain")
    c.label(f"{name}_oout")
    c(f"s_setpc_b64 s[{H.RET}:{H.RET+1}]")
    cold.append(c)
    def ogroup(g):
        lab = a.new_label(f"{name}_og")
        a(f"s_cmp_lg_u32 s{H.MASK}, 0")
        a(f"s_cbranch_scc1 {lab}")
        a(f"s_call_b64 s[{H.RET}:{H.RET+1}], {name}_ospin")
        a.label(lab)
        oh_take(a, g)
        for i in range(4*g, 4*g+4): vm.issue(f"O{i}", 2)
    xn = lambda o, t16, p, g0, g1: xn_pair(o, t16, p, g0, g1, T+6)
    gwin = opt.get("gwin", False) and opt.get("t8a", True)
    if moe:
        a("s_cmp_lg_u32 s58, 0")
        a(f"s_cbranch_scc1 {name}_routed")
    if gwin:
        for p in range(7, -1, -1):
            a(f"v_and_b32 v{G+2*p+1}, 0xffff0000, v{G+p}")
            a(f"v_lshlrev_b32 v{G+2*p}, 16, v{G+p}")
    else:
        for t16 in range(2):
            for p in range(4): xn(a, t16, p, G + 8*t16 + 2*p, G + 8*t16 + 2*p + 1)
    if moe:
        a.label(f"{name}_routed_done")
        c = Asm()
        c.label(f"{name}_routed")
        for t16 in range(2):
            for p in range(4):
                g0, g1 = G + 8*t16 + 2*p, G + 8*t16 + 2*p + 1
                c(f"v_cvt_pk_bf16_f32 v{T+7}, v{g0}, v{g1}")
                c(f"v_lshlrev_b32 v{g0}, 16, v{T+7}")
                c(f"v_and_b32 v{g1}, 0xffff0000, v{T+7}")
                c(f"v_mul_f32 v{g0}, v{g0}, v{C_WT+t16}")
                c(f"v_mul_f32 v{g1}, v{g1}, v{C_WT+t16}")
                c(f"v_cvt_pk_bf16_f32 v{T+7}, v{g0}, v{g1}")
                xn(c, t16, p, T+8, T+9)
                c(f"v_lshlrev_b32 v{g0}, 16, v{T+7}")
                c(f"v_and_b32 v{g1}, 0xffff0000, v{T+7}")
                c(f"v_add_f32 v{g0}, v{g0}, v{T+8}")
                c(f"v_add_f32 v{g1}, v{g1}, v{T+9}")
                c(f"v_cvt_pk_bf16_f32 v{T+7}, v{g0}, v{g1}")
                c(f"v_lshlrev_b32 v{g0}, 16, v{T+7}")
                c(f"v_and_b32 v{g1}, 0xffff0000, v{T+7}")
        if gwin: c(*silu16(G, T+6))
        c(f"s_branch {name}_routed_done")
        cold.append(c)
    a.trace(55, "c")
    pipe = opt.get("pipe", False)
    def look(more):
        if not any(tg == "opoll" for tg, _ in vm.q): return
        vm.wait("opoll")
        oh_ready(a)
        if more and pipe: oh_poll(a, vm)
    silu_ops = lambda: [] if gwin else silu16(G, T+6)
    weave = opt.get("sweave", False)
    fill = silu_ops() if weave else []
    look(True)
    if opt.get("bar1", True): a("s_barrier")
    if DIAG and TRACE: a(f"v_writelane_b32 v255, s{H.RAW}, 2")
    ogroup(0)
    a.trace(56, "c")
    if not weave: a(*silu_ops())
    look(True)
    ogroup(1)
    a.trace(40, "c")
    if not opt.get("bar1", True): a("s_barrier")
    a.trace(42, "c")
    def wgroup(g):
        a(f"s_lshl_b32 s{sT}, s{H.GIDS[g]}, 14")
        for ct in range(4): a(f"v_add_u32 v{WG+ct}, s{sT}, v{WA+ct}")
    def wreads(i):
        return [f"ds_read_b64_tr_b16 {vr(WB+16*(i&1)+4*ct+2*t_,2)}, v{WG+ct} offset:{(i%4)*4096+t_*1024}" for ct in range(4) for t_ in range(2)]
    wgroup(0)
    a(*wreads(0))
    a.trace(58, "c")
    G2, G3 = opt.get("g23", [1, 4])
    for i in range(16):
        if i == G2: look(True); ogroup(2)
        if i == G3: look(False); ogroup(3)
        if i < 15 and (i + 1) % 4 == 0: wgroup((i + 1) // 4)
        r = wreads(i+1) if i < 15 else []
        vm.wait(f"O{i}")
        a("s_waitcnt lgkmcnt(0)")
        if i == 0: a.trace(62, "c")
        if i == 8: a.trace(63, "c")
        k = 0
        for ct in range(4):
            for t16 in range(2):
                d = vr(ACC+16*t16+4*ct, 4)
                a(f"v_mfma_f32_16x16x32_bf16 {d}, {vr(WB+16*(i&1)+4*ct,4)}, {vr(H.SLOT[i//4]+8*(i%4)+4*t16,4)}, {d if i else 0}")
                if r: a(r[k])
                if fill and i >= opt.get("sw0", 4): a(fill.pop(0))
                k += 1
    a(*fill)
    a.trace(61, "c")
    EX = 131072
    a(f"s_lshl_b32 s{sT}, s{W}, 12")
    a(f"s_add_u32 s{sT}, s{sT}, {EX}")
    a(f"s_xor_b32 s{sT+1}, s{sT}, 16384")
    a(f"v_add_u32 v{T}, s{sT}, v{VL2}")
    a(f"v_add_u32 v{T+1}, s{sT+1}, v{VL2}")
    a(f"s_cmp_eq_u32 s{KH}, 0")
    a("s_nop 3")
    a(f"s_cbranch_scc1 {name}_ck0")
    for t16 in range(2):
        for cc in range(2): a(f"ds_write_b128 v{T}, {vr(ACC+16*t16+4*cc,4)} offset:{(2*t16+cc)*1024}")
    a("s_waitcnt lgkmcnt(0)")
    for t16 in range(2):
        for r in range(8): a(f"v_mov_b32 v{ACC+16*t16+r}, v{ACC+16*t16+8+r}")
    a(f"s_branch {name}_ckj")
    a.label(f"{name}_ck0")
    for t16 in range(2):
        for cc in range(2): a(f"ds_write_b128 v{T}, {vr(ACC+16*t16+8+4*cc,4)} offset:{(2*t16+cc)*1024}")
    a.label(f"{name}_ckj")
    XF = 68
    for t16 in range(2):
        for p in range(4):
            a(f"v_lshlrev_b32 v{XF+8*t16+2*p}, 16, v{XP+4*t16+p}")
            a(f"v_and_b32 v{XF+8*t16+2*p+1}, 0xffff0000, v{XP+4*t16+p}")
    a("s_waitcnt lgkmcnt(0)")
    a("s_barrier")
    for t16 in range(2):
        for cc in range(2): a(f"ds_read_b128 {vr(ACC+16*t16+8+4*cc,4)}, v{T+1} offset:{(2*t16+cc)*1024}")
    a(f"s_mov_b32 s{sT}, 32768")
    for t16 in range(2):
        b = ACC + 16*t16
        a(f"s_waitcnt lgkmcnt({2-2*t16})")
        for r in range(8): a(f"v_add_f32 v{b+r}, v{b+r}, v{b+8+r}")
        for r in range(4): a(f"v_permlane16_swap_b32 v{b+r}, v{b+4+r}")
        for e in range(8): a(f"v_fmac_f32 v{XF+8*t16+e}, v{b+e}, v{G+8*t16+e}")
        for p in range(4): a(f"v_cvt_pk_bf16_f32 v{XP+4*t16+p}, v{XF+8*t16+2*p}, v{XF+8*t16+2*p+1}")
        a(f"buffer_store_dwordx4 {vr(XP+4*t16,4)}, v{VX}, {srd(sOUT)}, {'0' if t16 == 0 else f's{sT}'} offen {opt.get('outf', 'nt')}")
```

```python
import os
from asmlib import *
from layout import *
from k_top8 import DPPS, make_keys, decode_keys
from k_attn import M32, M16
import k_attn2 as AT
from k_moe import pi_row, silu_bf16, round_bf16

QSCALE = 0x3e8293ee
sX, sWQ, sWS, sWR, sDBG, sWG, sWU, sWD, sWO, sOUT = 4, 8, 12, 16, 20, 24, 28, 32, 36, 40
sJ, sMT, sLI, sXC = 44, 45, 46, 47
sIDX, sWT = 48, 56
sT = 64
W = 3
SLOT, WOFF = 40960, 16384
L_Q, L_XS, L_MISC = 122880, 139264, 159744
L_M, L_RS, L_CS, L_CAND, L_IDX, L_H = L_MISC, L_MISC+512, L_MISC+1024, L_MISC+1792, L_MISC+1920, L_MISC+2048
L_ST, L_TK = L_MISC+3072, L_MISC+3200
LDS_BYTES = 163840
SPIN_LIMIT = 400000
RKEY = 208

def srd(r): return f"s[{r}:{r+3}]"

def wsum(a, r, sdst, op="add_f32"):
    for ctl in DPPS:
        bc = " bound_ctrl:0" if ctl.startswith("row_shr") and op == "add_f32" else ""
        a("s_nop 1")
        a(f"v_{op}_dpp v{r}, v{r}, v{r} {ctl}{bc}")
    a("s_nop 0")
    a(f"v_readlane_b32 s{sdst}, v{r}, 63")
    a("s_nop 1")

def ln_rows2(a, vm, X, WR, XB, T, voff, dbg, n=2):
    R2 = range(n)
    nop = "s_nop 0" if n == 2 else "s_nop 1"
    F_ = lambda i, e: XB + 16*i + e
    T_ = lambda i, k: T + 6*i + k
    def wsum2(k, sd):
        for ctl in DPPS:
            bc = " bound_ctrl:0" if ctl.startswith("row_shr") else ""
            a(nop)
            for i in R2: a(f"v_add_f32_dpp v{T_(i,k)}, v{T_(i,k)}, v{T_(i,k)} {ctl}{bc}")
        a("s_nop 0")
        for i in R2: a(f"v_readlane_b32 s{sT+3*i+sd}, v{T_(i,k)}, 63")
        a(nop)
    for i in R2:
        for p in range(8):
            a(f"v_lshlrev_b32 v{F_(i,2*p)}, 16, v{X+8*i+p}")
            a(f"v_and_b32 v{F_(i,2*p+1)}, 0xffff0000, v{X+8*i+p}")
    P2 = lambda r: vr(r, 2)
    for i in R2: a(f"v_pk_add_f32 {P2(T_(i,4))}, {P2(F_(i,0))}, {P2(F_(i,2))}")
    for e in range(4, 16, 2):
        for i in R2: a(f"v_pk_add_f32 {P2(T_(i,4))}, {P2(T_(i,4))}, {P2(F_(i,e))}")
    for i in R2: a(f"v_add_f32 v{T_(i,0)}, v{T_(i,4)}, v{T_(i,5)}")
    a("s_nop 0")
    wsum2(0, 0)
    for i in R2:
        a(f"v_mov_b32 v{T_(i,0)}, s{sT+3*i}")
    for i in R2:
        a(f"v_mul_f32 v{T_(i,0)}, 0x3a800000, v{T_(i,0)}")
    BC = "op_sel_hi:[1,0] neg_lo:[0,1] neg_hi:[0,1]"
    for e in range(0, 16, 2):
        for i in R2: a(f"v_pk_add_f32 {P2(T_(i,2))}, {P2(F_(i,e))}, {P2(T_(i,0))} {BC}")
        for i in R2:
            if e == 0: a(f"v_pk_mul_f32 {P2(T_(i,4))}, {P2(T_(i,2))}, {P2(T_(i,2))}")
            else: a(f"v_pk_fma_f32 {P2(T_(i,4))}, {P2(T_(i,2))}, {P2(T_(i,2))}, {P2(T_(i,4))}")
    for i in R2: a(f"v_add_f32 v{T_(i,1)}, v{T_(i,4)}, v{T_(i,5)}")
    a("s_nop 0")
    wsum2(1, 0)
    seq = lambda i: [
        f"v_mov_b32 v{T_(i,1)}, s{sT+3*i}",
        f"v_mul_f32 v{T_(i,1)}, 0x3a800000, v{T_(i,1)}",
        f"v_cvt_pk_bf16_f32 v{T_(i,2)}, v{T_(i,0)}, v{T_(i,1)}",
        f"v_lshlrev_b32 v{T_(i,0)}, 16, v{T_(i,2)}",
        f"v_and_b32 v{T_(i,1)}, 0xffff0000, v{T_(i,2)}",
        f"v_add_f32 v{T_(i,1)}, 0x3727c5ac, v{T_(i,1)}",
        f"v_cvt_pk_bf16_f32 v{T_(i,1)}, v{T_(i,1)}, v{T_(i,1)}",
        f"v_and_b32 v{T_(i,1)}, 0xffff0000, v{T_(i,1)}",
        f"v_sqrt_f32 v{T_(i,1)}, v{T_(i,1)}",
        f"v_readfirstlane_b32 s{sT+3*i}, v{T_(i,0)}",
        f"v_cvt_pk_bf16_f32 v{T_(i,1)}, v{T_(i,1)}, v{T_(i,1)}",
        f"v_and_b32 v{T_(i,1)}, 0xffff0000, v{T_(i,1)}",
        f"v_rcp_f32 v{T_(i,1)}, v{T_(i,1)}",
        f"v_mov_b32 v{T_(i,3)}, 0"]
    for xs in zip(*[seq(i) for i in R2]): a(*xs)
    if n == 1: a("s_nop 0")
    for p in range(8):
        st = lambda i: [
            f"v_pk_add_f32 {P2(F_(i,2*p))}, {P2(F_(i,2*p))}, {P2(T_(i,0))} {BC}",
            f"v_cvt_pk_bf16_f32 v{T_(i,2)}, v{F_(i,2*p)}, v{F_(i,2*p+1)}",
            f"v_lshlrev_b32 v{F_(i,2*p)}, 16, v{T_(i,2)}",
            f"v_and_b32 v{F_(i,2*p+1)}, 0xffff0000, v{T_(i,2)}",
            f"v_pk_mul_f32 {P2(F_(i,2*p))}, {P2(F_(i,2*p))}, {P2(T_(i,0))} op_sel:[0,1] op_sel_hi:[1,1]",
            f"v_cvt_pk_bf16_f32 v{X+8*i+p}, v{F_(i,2*p)}, v{F_(i,2*p+1)}"]
        for xs in zip(*[st(i) for i in R2]): a(*xs)
    for i in R2: a(f"v_readfirstlane_b32 s{sT+3*i+1}, v{T_(i,1)}")
    if dbg:
        for i in R2:
            a(f"buffer_store_dwordx4 {vr(X+8*i,4)}, v{voff}, {srd(sWS)}, 0 offen offset:{2048*i}")
            a(f"buffer_store_dwordx4 {vr(X+8*i+4,4)}, v{voff}, {srd(sWS)}, 0 offen offset:{2048*i+1024}")
    for p in range(8):
        for i in R2: a(f"v_dot2c_f32_bf16 v{T_(i,3)}, v{X+8*i+p}, v{WR+p}")
    a("s_nop 1")
    wsum2(3, 2)
    for i in R2: a(f"v_mov_b32 v{T_(i,0)}, s{sT+3*i+2}")
    for i in R2: a(f"v_cvt_pk_bf16_f32 v{T_(i,0)}, v{T_(i,0)}, v{T_(i,0)}")
    for i in R2: a(f"v_and_b32 v{T_(i,0)}, 0xffff0000, v{T_(i,0)}")
    a(f"v_mov_b32 v{T+1}, s{sT}")
    for i in R2: a(f"v_readfirstlane_b32 s{sT+3*i+2}, v{T_(i,0)}")
    a(f"v_lshlrev_b32 v{T+2}, 5, v0")
    a(f"s_lshl_b32 s{sT+6}, s{W}, {n+1}")
    a(f"s_add_u32 s{sT+6}, s{sT+6}, {L_ST}")
    a(f"v_add_u32 v{T+2}, s{sT+6}, v{T+2}")
    for l in range(1, 3*n): a(f"v_writelane_b32 v{T+1}, s{sT+l}, {l}")
    if n == 2:
        for l in range(3):
            a(f"s_add_u32 s{sT+7}, s{sT+6}, {l*32+4}")
            a(f"v_writelane_b32 v{T+2}, s{sT+7}, {3+l}")
    a(f"s_mov_b64 exec, {(1 << 3*n) - 1}")
    a(f"ds_write_b32 v{T+2}, v{T+1}")
    a("s_mov_b64 exec, -1")

def ln_loads(a, vm, opt, X=96, WR=112):
    n = opt.get("lnrows", 2)
    for q in range(2*n):
        a(f"buffer_load_dwordx4 {vr(X+4*q,4)}, v95, {srd(sX)}, 0 offen offset:{q*1024} {'nt' if 'l' in opt.get('nt', 'ms') else ''}")
    for q in range(2):
        a(f"buffer_load_dwordx4 {vr(WR+4*q,4)}, v94, {srd(sWR)}, 0 offen offset:{q*1024}")
    vm.issue("lnld", 2*n + 2)

def rec_of(a, d):
    a(f"s_lshl_b32 s{d}, s{sMT}, 4")
    a(f"s_add_u32 s{d}, s{d}, s{sJ}")

def publish_stats(a, vm, T):
    t = sT
    a(f"v_mov_b32 v{T+1}, 0")
    a("s_mov_b64 exec, 0xffffff")
    a(f"ds_read_b32 v{T+1}, v{T+2}")
    a(f"s_lshl_b32 s{t}, s2, 7")
    a(f"s_add_u32 s{t}, s{t}, {WS_Y}")
    a("s_mov_b64 exec, 0xff")
    a(f"buffer_store_dwordx4 {vr(T+4,4)}, v94, {srd(sWS)}, s{t} offen sc1")
    a(f"s_mul_i32 s{t}, s2, 896")
    a(f"s_add_u32 s{t}, s{t}, {WS_GU}")
    a("s_bfm_b64 exec, 56, 0")
    a(f"buffer_store_dwordx4 {vr(T+4,4)}, v94, {srd(sWS)}, s{t} offen sc1")
    a("s_bfm_b64 exec, 44, 0")
    a("s_waitcnt lgkmcnt(0)")
    a(f"buffer_store_dword v{T+1}, v{T}, {srd(sWS)}, 0 offen sc1")
    a("s_mov_b64 exec, -1")
    vm.issue("st", 3, cond=True)

def publish_zeros(a, vm, T):
    A_, D_, U_ = T, T+1, T+2
    t = sT
    a(f"v_lshlrev_b32 v{U_}, 2, v0")
    rec_of(a, t)
    a(f"s_lshl_b32 s{t}, s{t}, 7")
    a(f"s_add_u32 s{t}, s{t}, {WS_ST}")
    a(f"v_add_u32 v{A_}, s{t}, v{U_}")
    rec_of(a, t)
    a(f"s_lshl_b32 s{t}, s{t}, 5")
    a(f"s_add_u32 s{t}, s{t}, {WS_R - 64}")
    a(f"v_cmp_le_u32 vcc, 16, v0")
    a(f"v_add_u32 v{U_}, s{t}, v{U_}")
    a("s_nop 0")
    a(f"v_cndmask_b32 v{A_}, v{A_}, v{U_}, vcc")
    rec_of(a, t+2)
    a(f"s_lshl_b32 s{t+2}, s{t+2}, 7")
    a(f"s_add_u32 s{t+2}, s{t+2}, {WS_ST + 96}")
    a(f"s_lshl_b32 s{t}, s{sJ}, 9")
    a(f"s_add_u32 s{t}, s{t}, {WS_KVF}")
    a(f"v_and_b32 v{U_}, 3, v0")
    a(f"v_lshlrev_b32 v{U_}, 7, v{U_}")
    a(f"v_add_u32 v{U_}, s{t}, v{U_}")
    a(f"v_mov_b32 v{U_+1}, s{t+2}")
    a(f"s_cmp_eq_u32 s{sMT}, 0")
    a(f"s_cselect_b64 vcc, -1, 0")
    a(f"v_cndmask_b32 v{U_}, v{U_+1}, v{U_}, vcc")
    a(f"v_cmp_le_u32 vcc, 24, v0")
    a(f"s_lshl_b32 s{t}, s{sMT}, 10")
    a(f"s_add_u32 s{t}, s{t}, {WS_OF}")
    a(f"v_cndmask_b32 v{A_}, v{A_}, v{U_}, vcc")
    a(f"v_and_b32 v{U_}, 7, v0")
    a(f"v_lshlrev_b32 v{U_}, 7, v{U_}")
    a(f"v_add_u32 v{U_}, s{t}, v{U_}")
    a(f"s_cmp_eq_u32 s{sJ}, 0")
    a(f"s_cselect_b64 vcc, -1, 0")
    a(f"v_cndmask_b32 v{U_}, v{U_+1}, v{U_}, vcc")
    a(f"v_cmp_le_u32 vcc, 32, v0")
    a(f"s_lshl_b32 s{t}, s2, 7")
    a(f"s_add_u32 s{t+1}, s{t}, {WS_HF}")
    a(f"v_cndmask_b32 v{A_}, v{A_}, v{U_}, vcc")
    a(f"s_cmp_lt_u32 s2, 56")
    a(f"s_cselect_b32 s{t+1}, s{t+1}, s{t+2}")
    a(f"v_writelane_b32 v{A_}, s{t+1}, 40")
    a(f"s_add_u32 s{t+1}, s{t}, {WS_YF}")
    a(f"s_cmp_lt_u32 s2, 16")
    a(f"s_cselect_b32 s{t+1}, s{t+1}, s{t+2}")
    a(f"v_writelane_b32 v{A_}, s{t+1}, 41")
    csf_addr(a, t, t+1)
    a(f"s_cmp_eq_u32 s{sMT}, 0")
    a(f"s_cselect_b32 s{t}, s{t}, s{t+2}")
    a(f"v_writelane_b32 v{A_}, s{t}, 42")
    a(f"s_cmp_eq_u32 s2, 0")
    a(f"s_cselect_b32 s{t}, {WS_TK}, s{t+2}")
    a(f"v_writelane_b32 v{A_}, s{t}, 43")
    for r in range(4): a(f"v_mov_b32 v{T+4+r}, 0")
    a(f"v_lshlrev_b32 v{U_}, 2, v0")
    a(f"v_add_u32 v{U_}, {L_ST}, v{U_}")

def csf_addr(a, d, t):
    a(f"s_lshl_b32 s{d}, s{sJ}, 7")
    a(f"s_add_u32 s{d}, s{d}, {WS_CSF}")
def kvf_addr(a, d, t):
    a(f"s_lshl_b32 s{d}, s{sJ}, 2")
    a(f"s_and_b32 s{t}, s{W}, 3")
    a(f"s_add_u32 s{d}, s{d}, s{t}")
    a(f"s_lshl_b32 s{d}, s{d}, 7")
    a(f"s_add_u32 s{d}, s{d}, {WS_KVF}")
def otile(a, d, t):
    a(f"s_lshl_b32 s{d}, s{sMT}, 2")
    a(f"s_and_b32 s{t}, s{W}, 2")
    a(f"s_add_u32 s{d}, s{d}, s{t}")
    a(f"s_lshr_b32 s{t}, s{W}, 2")
    a(f"s_add_u32 s{d}, s{d}, s{t}")
def head_of(a, d, t):
    a(f"s_lshl_b32 s{d}, s{sJ}, 1")
    a(f"s_and_b32 s{t}, s{W}, 1")
    a(f"s_add_u32 s{d}, s{d}, s{t}")
def of_addr(a, d, t):
    otile(a, d, t)
    a(f"s_lshl_b32 s{d}, s{d}, 1")
    a(f"s_lshr_b32 s{t}, s{sJ}, 3")
    a(f"s_add_u32 s{d}, s{d}, s{t}")
    a(f"s_lshl_b32 s{d}, s{d}, 7")
    a(f"s_add_u32 s{d}, s{d}, {WS_OF}")
    a(f"s_and_b32 s{t}, s{sJ}, 7")
    a(f"s_lshl_b32 s{t}, s{t}, 1")
    a(f"s_and_b32 s{t+1}, s{W}, 1")
    a(f"s_add_u32 s{t}, s{t}, s{t+1}")
    a(f"s_lshl_b32 s{t}, 1, s{t}")
TICKET = [False]
def cg_of(a, d):
    if TICKET[0]:
        a(f"s_mov_b32 s{d}, s{sXC}")
        return
    a(f"s_mul_i32 s{d}, s{sXC}, 28")
    a(f"s_add_u32 s{d}, s{d}, s{sLI}")
def hf_addr(a, d):
    cg_of(a, d)
    a(f"s_lshr_b32 s{d}, s{d}, 2")
    a(f"s_lshl_b32 s{d}, s{d}, 7")
    a(f"s_add_u32 s{d}, s{d}, {WS_HF}")
def yf_addr(a, d, t):
    a(f"s_and_b32 s{d}, s2, 15")
    a(f"s_lshl_b32 s{d}, s{d}, 7")
    a(f"s_add_u32 s{d}, s{d}, {WS_YF}")

def signal(a, saddr, val, v0_, v1_, op="add"):
    a(f"v_mov_b32 v{v0_}, s{saddr}")
    a(f"v_mov_b32 v{v1_}, {val}")
    a("s_mov_b64 exec, 1")
    a(f"buffer_atomic_{op} v{v1_}, v{v0_}, {srd(sWS)}, 0 offen sc1")
    a("s_mov_b64 exec, -1")

def apoll(o, vreg, vaddr, lanes=1):
    o(f"v_mov_b32 v{vreg}, 0")
    o(f"s_mov_b64 exec, {(1 << lanes) - 1}")
    o(f"buffer_atomic_or v{vreg}, v{vaddr}, {srd(sWS)}, 0 offen sc0 sc1")
    o("s_mov_b64 exec, -1")

def acheck(a, name, vreg, vaddr, want, lanes, cold):
    lab = a.new_label(name)
    def cmp(o):
        o(f"v_cmp_gt_u32 vcc, {want}, v{vreg}")
        o(f"s_and_b32 vcc_lo, vcc_lo, {(1 << lanes) - 1}")
    cmp(a)
    a(f"s_cbranch_scc1 {lab}_spin")
    a.label(f"{lab}_ok")
    c = Asm()
    c.label(f"{lab}_spin")
    c(f"s_mov_b32 s{sT+11}, 0")
    c.label(f"{lab}_again")
    apoll(c, vreg, vaddr, lanes)
    c(f"s_add_u32 s{sT+11}, s{sT+11}, 1")
    c(f"s_cmp_gt_u32 s{sT+11}, {SPIN_LIMIT}")
    c(f"s_cbranch_scc1 {lab}_ok")
    c("s_waitcnt vmcnt(0)")
    cmp(c)
    c(f"s_cbranch_scc1 {lab}_again")
    c(f"s_branch {lab}_ok")
    cold.append(c)

def poll_check(a, name, vreg, vaddr, s_srd, want, mask, cold):
    lab = a.new_label(name)
    def cmp(o):
        o(f"v_cmp_gt_u32 vcc, {want}, v{vreg}" if want != 1 else f"v_cmp_ne_u32 vcc, 1, v{vreg}")
        if mask != -1:
            o(f"s_and_b32 vcc_lo, vcc_lo, {mask & 0xffffffff:#x}")
            o(f"s_and_b32 vcc_hi, vcc_hi, {(mask >> 32) & 0xffffffff:#x}")
        o("s_cmp_lg_u64 vcc, 0")
    cmp(a)
    a(f"s_cbranch_scc1 {lab}_spin")
    a.label(f"{lab}_ok")
    c = Asm()
    c.label(f"{lab}_spin")
    c(f"s_mov_b32 s{sT+11}, 0")
    c.label(f"{lab}_again")
    c(f"buffer_load_dword v{vreg}, v{vaddr}, {srd(s_srd)}, 0 offen sc1")
    c(f"s_add_u32 s{sT+11}, s{sT+11}, 1")
    c(f"s_cmp_gt_u32 s{sT+11}, {SPIN_LIMIT}")
    c(f"s_cbranch_scc1 {lab}_ok")
    c("s_waitcnt vmcnt(0)")
    cmp(c)
    c(f"s_cbranch_scc1 {lab}_again")
    c(f"s_branch {lab}_ok")
    cold.append(c)

def top8_round(a, keys, T, cand, st, rnd):
    n = len(keys)
    if rnd == 0: a(f"s_mov_b32 s{st}, -1")
    for e in range(n):
        a(f"v_sub_u32 v{T+e}, s{st}, v{keys[e]}")
    e = 1
    while e + 1 < n:
        a(f"v_min3_u32 v{T}, v{T}, v{T+e}, v{T+e+1}")
        e += 2
    if e < n: a(f"v_min_u32 v{T}, v{T}, v{T+e}")
    wsum(a, T, st+1, "min_u32")
    a(f"s_sub_u32 s{st}, s{st}, s{st+1}")
    a(f"v_writelane_b32 v{cand}, s{st}, {rnd}")
    a(f"s_sub_u32 s{st}, s{st}, 1")

def atomise(a, tmp):
    out, grp = [], None
    for l in tmp.lines:
        s_ = l.strip()
        if grp is not None:
            grp.append(s_)
            if s_ == "s_mov_b64 exec, -1": out.append(grp); grp = None
        elif ("exec," in s_ and s_ != "s_mov_b64 exec, -1") or "saveexec" in s_: grp = [s_]
        else: out.append([s_])
    assert grp is None
    return [(lambda g=g: a(*g)) for g in out]

def ws_base(a, opt):
    off = opt.get("wsoff", 0) << 20
    if off:
        a(f"s_add_u32 s{sWS}, s{sWS}, {off:#x}")
        a(f"s_addc_u32 s{sWS+1}, s{sWS+1}, 0")

def prologue(a, name, opt):
    a("s_cmp_ge_u32 s2, 256")
    a(f"s_cbranch_scc1 {name}_done")
    a.stamp_init(); a.stamp(0)
    if opt.get("dbgtime"): a("s_memrealtime s[96:97]")
    for r, off in ((sX, A_X), (sWQ, A_WQKV), (sWS, A_WS), (sWR, A_WR), (sDBG, A_DBG), (sWG, A_WG), (sWU, A_WU),
                   (sWD, A_WD), (sWO, A_WO), (sOUT, A_OUT)):
        a(f"s_load_dwordx2 s[{r}:{r+1}], s[0:1], {off}")
    a("v_lshrrev_b32 v1, 6, v0")
    a("v_and_b32 v0, 63, v0")
    a(f"v_readfirstlane_b32 s{W}, v1")
    a(f"s_and_b32 s{sXC}, s2, 7")
    a(f"s_lshr_b32 s{sLI}, s2, 3")
    a(f"s_and_b32 s{sMT}, s{sXC}, 1")
    a(f"s_lshl_b32 s{sMT}, s{sMT}, 3")
    a(f"s_and_b32 s{sT}, s{sLI}, 7")
    a(f"s_add_u32 s{sMT}, s{sMT}, s{sT}")
    a(f"s_lshr_b32 s{sJ}, s{sXC}, 1")
    a(f"s_lshl_b32 s{sJ}, s{sJ}, 2")
    a(f"s_lshr_b32 s{sT}, s{sLI}, 3")
    a(f"s_add_u32 s{sJ}, s{sJ}, s{sT}")
    a(f"s_lshl_b32 s{sT+3}, s{sMT}, 4")
    a(f"s_add_u32 s{sT+3}, s{sT+3}, s{sJ}")
    n = opt.get("lnrows", 2)
    a(f"s_lshl_b32 s{sT+3}, s{sT+3}, {4-n}")
    a(f"s_add_u32 s{sT+3}, s{sT+3}, s{W}")
    a(f"s_lshl_b32 s{sT}, s{sT+3}, {10+n}")
    a("v_lshlrev_b32 v94, 4, v0")
    a(f"v_add_u32 v95, s{sT}, v94")
    for r, n in ((sX, S*D*2), (sWQ, D*3*D*2), (sWS, WS_USED), (sWR, D*2), (sDBG, 256), (sWG, D*F*2), (sWU, D*F*2),
                 (sWD, D*F*2), (sWO, D*D*2), (sOUT, S*D*2)):
        a(f"s_mov_b32 s{r+2}, {n:#x}")
        a(f"s_mov_b32 s{r+3}, 0x00020000")

def phaseA_loader(a, name, cold, opt):
    vm = VM(a)
    LW, XB_, WB_, SX, SW = 48, 49, 50, 51, 52
    a(f"s_sub_u32 s{LW}, s{W}, 4")
    a("v_lshrrev_b32 v16, 3, v0")
    a("v_and_b32 v17, 7, v0")
    a(f"s_lshl_b32 s{sT}, s{sMT}, 7")
    a(f"s_lshl_b32 s{sT+1}, s{LW}, 5")
    a(f"s_add_u32 s{sT}, s{sT}, s{sT+1}")
    a(f"v_add_u32 v18, s{sT}, v16")
    a("v_lshlrev_b32 v18, 11, v18")
    a("v_lshrrev_b32 v19, 1, v16")
    a("v_xor_b32 v20, v19, v17")
    a("v_lshl_add_u32 v1, v20, 4, v18")
    a("v_xor_b32 v20, 4, v20")
    a("v_lshl_add_u32 v2, v20, 4, v18")
    a(f"v_add_u32 v2, {8*2048}, v2")
    a(f"v_add_u32 v3, {16*2048}, v1")
    a(f"v_add_u32 v4, {16*2048}, v2")
    a(f"s_lshl_b32 s{sT}, s{LW}, 4")
    a(f"v_add_u32 v18, s{sT}, v16")
    a("v_mul_u32_u24 v18, 6144, v18")
    a(f"s_lshl_b32 s{sT}, s{sJ}, 7")
    a(f"v_add_u32 v18, s{sT}, v18")
    a("v_bfe_u32 v19, v0, 4, 1")
    a("v_lshlrev_b32 v19, 1, v19")
    a("v_xor_b32 v19, v19, v17")
    a("v_lshl_add_u32 v5, v19, 4, v18")
    a("v_xor_b32 v19, 4, v19")
    a("v_lshl_add_u32 v6, v19, 4, v18")
    a(f"v_add_u32 v6, {8*6144}, v6")
    a(f"s_lshl_b32 s{XB_}, s{LW}, 12")
    a(f"s_lshl_b32 s{WB_}, s{LW}, 11")
    KR = 56
    SH = 57
    NS = opt.get("starts", 4)
    if opt.get("rotj", False): a(f"s_add_u32 s{KR}, s{sMT}, s{sJ}")
    else: a(f"s_mov_b32 s{KR}, s{sMT}")
    a(f"s_and_b32 s{KR}, s{KR}, {NS-1}")
    lg = NS.bit_length() - 1
    a(f"s_lshl_b32 s{KR}, s{KR}, {4 - lg}")
    a(f"s_lshr_b32 s{SH}, s{sMT}, {lg}")
    NSH = 16 // NS
    nt = lambda k: "nt" if k in opt.get("nt", "ms") else ""
    def offsets():
        a(f"s_and_b32 s{KR}, s{KR}, 15")
        a(f"s_lshl_b32 s{SX}, s{KR}, 7")
        a(f"s_mul_i32 s{SW}, s{KR}, {64*6144}")
        a(f"s_add_u32 s{SW+1}, s{SW}, 2048")
        a(f"s_add_u32 s{SW+2}, s{SW}, 4096")
        a(f"s_add_u32 s{KR}, s{KR}, 1")
    hoist = opt.get("hoist", True)
    def issue(kt, atoms=(), part=None):
        slot = (kt % 3) * SLOT
        atoms = list(atoms)
        if not (hoist and kt >= (1 if opt.get("t1late") else 2)) and (part is None or part[0] == 0): offsets()
        d = [(f"s_add_u32 m0, s{XB_}, {slot + i*1024}", f"buffer_load_dwordx4 v{1+i}, {srd(sX)}, s{SX} offen {nt('x')} lds") for i in range(4)]
        d += [(f"s_add_u32 m0, s{WB_}, {slot + WOFF + seg*8192 + i*1024}", f"buffer_load_dwordx4 v{5+i}, {srd(sWQ)}, s{SW+seg} offen {nt('w')} lds")
              for seg in range(3) for i in range(2)]
        if part: d = d[part[0]:part[1]]
        k = 0
        for i, (m, ld) in enumerate(d):
            if not (opt.get("noload") and kt > 2):
                a(m); a("s_nop 0"); a(ld)
                vm.issue(f"T{kt}")
            k2 = (i + 1) * len(atoms) // len(d)
            for at in atoms[k:k2]: at()
            k = k2
    a("s_waitcnt lgkmcnt(0)")
    ws_base(a, opt)
    a.stamp(4)
    if opt.get("lnrows", 2) == 1:
        ln_loads(a, vm, opt)
        issue(0)
        vm.wait("lnld")
        tmp = Asm(); ln_rows2(tmp, vm, 96, 112, 120, 152, 95, opt.get("dbg"), 1)
        if opt.get("dbg"): vm.issue("dbg", 2)
        issue(1, atomise(a, tmp))
    elif opt.get("t1late"):
        issue(0)
    elif opt.get("t1n", 6):
        issue(0); issue(1, part=(0, opt.get("t1n", 6)))
    else:
        issue(0); issue(1)
    a.stamp(5)
    a("v_lshrrev_b32 v16, 4, v0")
    a("v_bfe_u32 v17, v0, 2, 2")
    a("v_lshl_add_u32 v17, v16, 3, v17")
    a("v_lshlrev_b32 v17, 7, v17")
    a("v_and_b32 v18, 3, v0")
    a("v_lshl_add_u32 v17, v18, 3, v17")
    a("v_and_b32 v16, 1, v16")
    a("v_lshlrev_b32 v16, 1, v16")
    a("v_bfe_u32 v18, v0, 3, 1")
    a("v_or_b32 v16, v16, v18")
    a(f"s_mul_i32 s{sT+3}, s{SH}, 43")
    a(f"s_lshr_b32 s{sT+3}, s{sT+3}, 7")
    a(f"s_mul_i32 s{sT+3}, s{sT+3}, 3")
    a(f"s_sub_u32 s{sT+3}, s{SH}, s{sT+3}")
    a(f"s_mul_i32 s{sT+3}, s{sT+3}, {SLOT}")
    a(f"s_add_u32 s{sT+3}, s{sT+3}, {WOFF}")
    for i in range(3):
        a(f"s_and_b32 s{sT}, s{LW}, 1")
        a(f"s_mul_i32 s{sT}, s{sT}, 3")
        a(f"s_add_u32 s{sT}, s{sT}, {i}")
        a(f"s_and_b32 s{sT+1}, s{sT}, 1")
        a(f"s_and_b32 s{sT+2}, s{LW}, 2")
        a(f"s_or_b32 s{sT+1}, s{sT+1}, s{sT+2}")
        a(f"v_xor_b32 v18, s{sT+1}, v16")
        a(f"v_lshl_add_u32 v{10+i}, v18, 5, v17")
        a(f"s_lshr_b32 s{sT}, s{sT}, 1")
        a(f"s_lshl_b32 s{sT}, s{sT}, 13")
        a(f"s_add_u32 s{sT}, s{sT}, s{sT+3}")
        a(f"v_add_u32 v{10+i}, s{sT}, v{10+i}")
    for r in range(4): a(f"v_mov_b32 v{56+r}, 0x3f803f80")
    a(f"s_cmp_lg_u32 s{W}, 4")
    a(f"s_cbranch_scc1 {name}_nozero")
    publish_zeros(a, vm, 13 + 3)
    a.label(f"{name}_nozero")
    if opt.get("lprio", 0): a(f"s_setprio {opt.get('lprio', 0)}")
    KEY, TT, CAND = 28, 36, 44
    ST = sT + 8
    keys = list(range(KEY, KEY+8))
    a("s_waitcnt lgkmcnt(0)")
    if hoist and not opt.get("t1n", 6): offsets()
    vm.wait("T0")
    a("s_barrier")
    a.stamp(1)
    assert opt.get("p0", 8) <= 8
    t8a = opt.get("t8a", True)
    P0 = opt.get("p0", 8)
    cb = Asm()
    cb.label(f"{name}_colsum")
    for i in range(3):
        for ks in range(2):
            for t_ in range(2):
                cb(f"ds_read_b64_tr_b16 {vr(68+8*i+4*ks+2*t_,2)}, v{10+i} offset:{ks*4096+t_*512}")
    cb(f"s_lshl_b32 s{sT}, s{sJ}, 4")
    cb(f"s_add_u32 s{sT}, s{sT}, s{sMT}")
    cb(f"s_lshl_b32 s{sT}, s{sT}, 2")
    cb(f"s_add_u32 s{sT}, s{sT}, s{LW}")
    cb(f"s_mul_i32 s{sT}, s{sT}, 192")
    cb(f"s_add_u32 s{sT}, s{sT}, {WS_CSP}")
    cb("v_lshlrev_b32 v47, 2, v0")
    cb("s_waitcnt lgkmcnt(0)")
    for ks in range(2):
        for i in range(3):
            cb(f"v_mfma_f32_16x16x32_bf16 {vr(28+4*i,4)}, v[56:59], {vr(68+8*i+4*ks,4)}, {vr(28+4*i,4) if ks else 0}")
    cb("s_nop 7")
    cb("s_mov_b64 exec, 0xffff0000")
    cb("v_mov_b32 v28, v32")
    cb("s_bfm_b64 exec, 16, 32")
    cb("v_mov_b32 v28, v36")
    cb("s_bfm_b64 exec, 48, 0")
    cb(f"buffer_store_dword v28, v47, {srd(sWS)}, s{sT} offen sc1")
    cb("s_mov_b64 exec, -1")
    cb("s_setpc_b64 s[70:71]")
    cold.append(cb)
    def lines(fn):
        tmp = Asm(); tmp.uid = a.uid; fn(tmp); a.uid = tmp.uid
        out, grp = [], None
        for l in tmp.lines:
            s_ = l.strip()
            if grp is not None:
                grp.append(s_)
                if s_ == "s_mov_b64 exec, -1": out.append(grp); grp = None
            elif ("exec," in s_ and s_ != "s_mov_b64 exec, -1") or "saveexec" in s_: grp = [s_]
            else: out.append([s_])
        assert grp is None
        return [(lambda g=g: a(*g)) for g in out]
    def cs_load(i):
        def f():
            a(f"s_mul_i32 s{sT+2}, s{sJ}, {16*768}")
            a(f"s_mul_i32 s{sT+3}, s{LW}, 192")
            a(f"s_add_u32 s{sT+2}, s{sT+2}, s{sT+3}")
            a(f"s_add_u32 s{sT+2}, s{sT+2}, {WS_CSP}")
            a(f"buffer_load_dwordx4 {vr(60+4*i,4)}, v51, {srd(sWS)}, s{sT+2} offen offset:{i*768} sc1")
            vm.issue("csl")
        return f
    for kt in range(16):
        atoms = []
        def after_issue(kt=kt):
            if kt == 0:
                a(f"s_cmp_lg_u32 s{W}, 4")
                a(f"s_cbranch_scc1 {name}_nopub")
                publish_stats(a, vm, 16)
                a.label(f"{name}_nopub")
            if kt < NSH:
                lab = a.new_label(f"{name}_cs")
                a(f"s_cmp_lg_u32 s{SH}, {kt}")
                a(f"s_cbranch_scc1 {lab}")
                a(f"s_call_b64 s[70:71], {name}_colsum")
                a.label(lab)
                vm.issue("cs", 1, cond=True)
        def first_signal():
            a(f"s_cmp_lg_u32 s{W}, 4")
            a(f"s_cbranch_scc1 {name}_nosig")
            a(f"s_lshl_b32 s{sT}, s{sMT}, 4")
            a(f"v_mov_b32 v45, s{sT}")
            a("v_mov_b32 v46, 1")
            a("s_mov_b64 exec, 1")
            a(f"buffer_atomic_add v46, v45, {srd(sDBG)}, 0 offen sc1")
            a("s_mov_b64 exec, -1")
            a.label(f"{name}_nosig")
            vm.issue("sig", 1, cond=True)
        if kt == 2 and not opt.get("sig1", True): first_signal()
        if kt == P0:
            a("v_and_b32 v45, 15, v0")
            a("v_lshlrev_b32 v45, 4, v45")
            a(f"buffer_load_dword v46, v45, {srd(sDBG)}, 0 offen sc1")
            vm.issue("poll")
        if kt == P0 + 1:
            poll_check(a, f"{name}_p1", 46, 45, sDBG, 16, -1, cold)
            if t8a:
                a(f"s_lshl_b32 s{sT}, s{LW}, 11")
                a(f"s_add_u32 s{sT}, s{sT}, {WS_R}")
                a(f"buffer_load_dwordx4 {vr(KEY,4)}, v94, {srd(sWS)}, s{sT} offen sc1")
                a(f"buffer_load_dwordx4 {vr(KEY+4,4)}, v94, {srd(sWS)}, s{sT} offen offset:1024 sc1")
            a(f"s_lshl_b32 s{sT}, s{sMT}, 11")
            a(f"s_and_b32 s{sT+1}, s{LW}, 1")
            a(f"s_lshl_b32 s{sT+1}, s{sT+1}, 10")
            a(f"s_add_u32 s{sT}, s{sT}, s{sT+1}")
            a(f"s_add_u32 s{sT}, s{sT}, {WS_ST}")
            a("v_lshrrev_b32 v47, 3, v0")
            a("v_lshlrev_b32 v47, 7, v47")
            a("v_and_b32 v48, 7, v0")
            a("v_lshl_add_u32 v47, v48, 2, v47")
            a(f"buffer_load_dword v54, v47, {srd(sWS)}, s{sT} offen sc1")
            a(f"buffer_load_dword v55, v47, {srd(sWS)}, s{sT} offen offset:32 sc1")
            vm.issue("side", 4 if t8a else 2)
        CS0 = max(P0 + 1, NSH + 2)
        if kt == CS0:
            lab = a.new_label(f"{name}_cf")
            a(f"s_cmp_lg_u32 s{W}, 4")
            a(f"s_cbranch_scc1 {lab}")
            csf_addr(a, sT, sT+1)
            signal(a, sT, 1, 52, 53)
            a.label(lab)
            vm.issue("csf", 1, cond=True)
        if kt == CS0 + 1 + (CS0 < 10):
            csf_addr(a, sT, sT+1)
            a(f"v_mov_b32 v52, s{sT}")
            apoll(a, 53, 52)
            vm.issue("poll")
            def f(o):
                o("v_and_b32 v51, 15, v0")
                o("v_cmp_gt_u32 vcc, 12, v51")
                o("v_lshlrev_b32 v51, 4, v51")
                o("v_lshrrev_b32 v50, 4, v0")
                o("v_mul_u32_u24 v50, 4*768, v50")
                o("v_add_u32 v51, v51, v50")
                o("v_mov_b32 v50, 0x7fff0000")
                o("v_cndmask_b32 v51, v50, v51, vcc")
            atoms += lines(f)
        CS1 = CS0 + 2 + (CS0 < 10)
        if kt == CS1: acheck(a, f"{name}_p2", 53, 52, 16, 1, cold)
        if CS1 <= kt <= CS1 + 1:
            atoms += [cs_load(i) for i in ((0, 1), (2, 3))[kt - CS1]]
        if opt.get("ticket", False) and kt == 13:
            lab = a.new_label(f"{name}_tk")
            a(f"s_cmp_lg_u32 s{W}, 4")
            a(f"s_cbranch_scc1 {lab}")
            a(f"v_mov_b32 v24, {WS_TK}")
            a("v_mov_b32 v25, 1")
            a("s_mov_b64 exec, 1")
            a(f"buffer_atomic_add v25, v24, {srd(sWS)}, 0 offen sc0 sc1")
            a("s_mov_b64 exec, -1")
            a.label(lab)
            vm.issue("tk", 1, cond=True)
        if opt.get("ticket", False) and kt == 15:
            lab = a.new_label(f"{name}_tw")
            a(f"s_cmp_lg_u32 s{W}, 4")
            a(f"s_cbranch_scc1 {lab}")
            a(f"v_mov_b32 v24, {L_TK}")
            a("s_mov_b64 exec, 1")
            a("ds_write_b32 v24, v25")
            a("s_mov_b64 exec, -1")
            a.label(lab)
        if kt == 15:
            a(f"s_and_b32 s{sT}, s{LW}, 1")
            a(f"s_lshl_b32 s{sT}, s{sT}, 8")
            a(f"s_add_u32 s{sT}, s{sT}, {L_M}")
            a("v_lshlrev_b32 v47, 2, v0")
            a(f"v_add_u32 v47, s{sT}, v47")
            a("ds_write_b32 v47, v54")
            a("ds_write_b32 v47, v55 offset:512")
        if kt == P0 + 2:
            def f(o):
                if t8a:
                    o(f"s_lshl_b32 s{sT}, s{LW}, 9")
                    o("v_lshlrev_b32 v47, 2, v0")
                    o(f"v_add_u32 v47, s{sT}, v47")
                    make_keys(o, KEY, TT, 47, [0, 1, 2, 3, 256, 257, 258, 259])
                    o(f"v_mov_b32 v{CAND}, 0")
                    top8_round(o, keys, TT, CAND, ST, 0)
            atoms += lines(f)
        if t8a and P0 + 3 <= kt <= P0 + 6:
            rr = ((1, 2), (3, 4), (5, 6), (7,))[kt - P0 - 3]
            atoms += lines(lambda o: [top8_round(o, keys, TT, CAND, ST, r) for r in rr])
        def late_top8(kt=kt):
            if t8a and kt == 14:
                a(f"s_lshl_b32 s{sT}, s{LW}, 5")
                a(f"s_add_u32 s{sT}, s{sT}, {L_CAND}")
                a("v_lshlrev_b32 v47, 2, v0")
                a(f"v_add_u32 v47, s{sT}, v47")
                a("s_mov_b64 exec, 0xff")
                a(f"ds_write_b32 v47, v{CAND}")
                a("s_mov_b64 exec, -1")
                a("s_waitcnt lgkmcnt(0)")
        if t8a and kt == 15:
            a("v_and_b32 v46, 31, v0")
            a("v_lshlrev_b32 v46, 2, v46")
            a(f"v_add_u32 v46, {L_CAND}, v46")
            a(f"ds_read_b32 v{KEY}, v46")
        if kt == 15:
            vm.wait("csl")
            for i in range(1, 4):
                for r in range(4): a(f"v_add_f32 v{60+r}, v{60+r}, v{60+4*i+r}")
            a("s_nop 1")
            a("v_permlane32_swap_b32 v60, v62")
            a("v_permlane32_swap_b32 v61, v63")
            a("v_add_f32 v60, v60, v62")
            a("v_add_f32 v61, v61, v63")
            a("s_nop 1")
            a("v_permlane16_swap_b32 v60, v61")
            a("v_add_f32 v60, v60, v61")
            a("v_and_b32 v47, 15, v0")
            a("v_cmp_gt_u32 vcc, 12, v47")
            a("v_lshlrev_b32 v47, 4, v47")
            a("v_lshrrev_b32 v50, 4, v0")
            a("v_lshl_add_u32 v47, v50, 2, v47")
            a(f"s_mul_i32 s{sT}, s{LW}, 192")
            a(f"s_add_u32 s{sT}, s{sT}, {L_CS}")
            a(f"v_add_u32 v47, s{sT}, v47")
            a("s_and_saveexec_b64 s[66:67], vcc")
            a("ds_write_b32 v47, v60")
            a("s_mov_b64 exec, -1")
        PN, KS = opt.get("t1n", 6), opt.get("ks", 1)
        if kt < KS and PN:
            issue(kt+1, part=(PN, 10)); offsets()
        if kt == 0 and opt.get("t1late"):
            issue(1); offsets()
        if kt <= 13 and kt + 1 < KS and PN: issue(kt+2, atoms, part=(0, PN))
        elif kt <= 13: issue(kt+2, atoms)
        else:
            for at in atoms: at()
        after_issue()
        if hoist and kt < 13 and not (kt + 1 < opt.get("ks", 1) and opt.get("t1n", 6)): offsets()
        a("s_waitcnt lgkmcnt(0)")
        a.trace(3*kt+1)
        if kt < 15: vm.wait(f"T{kt+1}", "poll", "side", *(["st"] if kt == 1 else []), *(["cs"] if kt == NSH + 1 else []))
        late_top8()
        if kt == 1 and opt.get("sig1", True): first_signal()
        a.trace(3*kt+2)
        a("s_barrier")
        a.trace(3*kt+3)
    def merge8():
        if t8a:
            a("v_cmp_gt_u32 vcc, 32, v0")
            a("s_nop 1")
            a(f"v_cndmask_b32 v{KEY}, 0, v{KEY}, vcc")
            for r in range(8): top8_round(a, [KEY], TT, CAND, ST, r)
            decode_keys(a, CAND, 48, 49, TT)
            a("v_lshlrev_b32 v47, 2, v0")
            a(f"v_add_u32 v47, {L_IDX}, v47")
            a("s_mov_b64 exec, 0xff")
            a("ds_write_b32 v47, v48")
            a("ds_write_b32 v47, v49 offset:32")
            if opt.get("dbg"):
                a(f"s_mov_b32 s{sT}, {WS_IDX}")
                a("v_lshlrev_b32 v47, 2, v0")
                a(f"buffer_store_dword v48, v47, {srd(sWS)}, s{sT} offen")
                a(f"buffer_store_dword v49, v47, {srd(sWS)}, s{sT} offen offset:32")
            a("s_mov_b64 exec, -1")
    mlate = opt.get("mlate", False)
    if not mlate: merge8()
    a(f"s_lshl_b32 s{sT}, s{LW}, 13")
    a(f"v_add_u32 v2, s{sT}, v94")
    a(f"s_lshl_b32 s{sT+1}, s{sJ}, 1")
    a(f"s_lshr_b32 s{sT+2}, s{LW}, 1")
    a(f"s_add_u32 s{sT+1}, s{sT+1}, s{sT+2}")
    a(f"s_lshl_b32 s{sT+1}, s{sT+1}, 5")
    a(f"s_lshl_b32 s{sT+2}, s{sMT}, 1")
    a(f"s_add_u32 s{sT+1}, s{sT+1}, s{sT+2}")
    a(f"s_and_b32 s{sT+2}, s{LW}, 1")
    a(f"s_add_u32 s{sT+1}, s{sT+1}, s{sT+2}")
    a(f"s_lshl_b32 s{sT+1}, s{sT+1}, 13")
    a(f"s_add_u32 s{sT+1}, s{sT+1}, {WS_KV}")
    a(f"s_add_u32 s{sT+2}, s{sT+1}, 4096")
    for part in (((0, 1, 4, 5), (2, 3, 6, 7)) if opt.get("ksplit", True) else (tuple(range(8)),)):
        a("s_waitcnt lgkmcnt(0)")
        a("s_barrier")
        for q in part: a(f"ds_read_b128 {vr(96+4*q,4)}, v2 offset:{q*1024}")
        for k_, q in enumerate(part):
            a(f"s_waitcnt lgkmcnt({len(part)-1-k_})")
            a(f"buffer_store_dwordx4 {vr(96+4*q,4)}, v94, {srd(sWS)}, s{sT+1+(q>>2)} offen offset:{(q&3)*1024} {opt.get('kvf', 'sc1')}")
    if mlate: merge8()
    a("s_waitcnt lgkmcnt(0)")
    return vm

ACC, B0 = 96, 8
def accreg(ct, tt): return ACC + 16*ct + 4*tt

def phaseA_consumer(a, name, cold, opt):
    vm = VM(a)
    XA, WA = 1, 3
    a("s_waitcnt lgkmcnt(0)")
    ws_base(a, opt)
    a.stamp(4)
    ln_loads(a, vm, opt, 16, 32)
    wt = opt.get("wtouch", 0)
    if wt and opt.get("starts", 4) == 4 and not opt.get("rotj", False):
        a("v_and_b32 v8, 7, v0")
        a(f"s_lshr_b32 s{sT}, s{sMT}, 2")
        a(f"s_and_b32 s{sT}, s{sT}, 1")
        a(f"s_lshl_b32 s{sT}, s{sT}, 5")
        a(f"s_lshl_b32 s{sT+1}, s{W}, 3")
        a(f"s_add_u32 s{sT}, s{sT}, s{sT+1}")
        a(f"s_and_b32 s{sT+1}, s{sMT}, 3")
        a(f"s_lshl_b32 s{sT+1}, s{sT+1}, 8")
        a(f"s_add_u32 s{sT}, s{sT}, s{sT+1}")
        a(f"v_add_u32 v8, s{sT}, v8")
        a("v_lshrrev_b32 v9, 5, v0")
        a("v_lshl_add_u32 v8, v9, 6, v8")
        a("v_mul_u32_u24 v8, 6144, v8")
        a("v_bfe_u32 v9, v0, 3, 2")
        a("v_cmp_gt_u32 vcc, 3, v9")
        a("v_lshl_add_u32 v8, v9, 11, v8")
        a(f"s_lshl_b32 s{sT}, s{sJ}, 7")
        a(f"v_add_u32 v8, s{sT}, v8")
        a("v_mov_b32 v9, 0x7fff0000")
        a("v_cndmask_b32 v8, v9, v8, vcc")
        for t0 in range(1, wt + 1, 2):
            a(f"s_mov_b32 s{sT}, {t0*64*6144}")
            if t0 == wt: a("s_bfm_b64 exec, 32, 0")
            a(f"buffer_load_dword v{251+t0//2}, v8, {srd(sWQ)}, s{sT} offen")
            a("s_mov_b64 exec, -1")
            vm.issue("wt")
    if opt.get("cpf", True):
        a(f"s_cmp_lg_u32 s{W}, 0")
        a(f"s_cbranch_scc1 {name}_nocpf")
        a(f"s_getpc_b64 s[{sT+8}:{sT+9}]")
        a.label(f"{name}_pc")
        a(f"s_sub_u32 s{sT+8}, s{sT+8}, {name}_pc-{name}")
        a(f"s_subb_u32 s{sT+9}, s{sT+9}, 0")
        a(f"s_lshl_b32 s{sT}, s{sLI}, 4")
        a("v_and_b32 v8, 15, v0")
        a(f"v_add_u32 v8, s{sT}, v8")
        a("v_lshlrev_b32 v8, 7, v8")
        a(f"v_min_u32 v8, {name}_end-{name}-4, v8")
        a(f"global_load_dword v250, v8, s[{sT+8}:{sT+9}]")
        a.label(f"{name}_nocpf")
        vm.issue("cpf", 1, cond=True)
    WM, WN = 52, 53
    a(f"s_lshr_b32 s{WM}, s{W}, 1")
    a(f"s_and_b32 s{WN}, s{W}, 1")
    a("v_and_b32 v8, 15, v0")
    a("v_lshrrev_b32 v9, 4, v0")
    a(f"s_lshl_b32 s{sT}, s{WM}, 6")
    a(f"v_add_u32 v10, s{sT}, v8")
    a("v_lshlrev_b32 v10, 7, v10")
    a("v_bfe_u32 v11, v0, 1, 3")
    a("v_xor_b32 v11, v11, v9")
    a(f"v_lshl_add_u32 v{XA}, v11, 4, v10")
    a(f"v_xor_b32 v{XA+1}, 64, v{XA}")
    a("v_bfe_u32 v10, v0, 2, 2")
    a("v_lshl_add_u32 v10, v9, 3, v10")
    a("v_lshlrev_b32 v10, 7, v10")
    a("v_and_b32 v11, 3, v0")
    a("v_lshl_add_u32 v10, v11, 3, v10")
    a("v_and_b32 v11, 1, v9")
    a("v_lshlrev_b32 v11, 1, v11")
    a("v_bfe_u32 v12, v0, 3, 1")
    a("v_or_b32 v11, v11, v12")
    a(f"s_lshl_b32 s{sT}, s{WN}, 1")
    a(f"v_xor_b32 v11, s{sT}, v11")
    a("v_lshl_add_u32 v10, v11, 5, v10")
    a(f"v_add_u32 v{WA}, {WOFF}, v10")
    a(f"v_xor_b32 v{WA+1}, 32, v{WA}")
    for r in range(96): a(f"v_mov_b32 v{ACC+r}, 0")
    a.stamp(5)
    vm.wait("lnld")
    a.stamp(6)
    assert WS_XN == 0
    ln_rows2(a, vm, 16, 32, 40, 72, 95, opt.get("dbg"), opt.get("lnrows", 2))
    def reads(buf, ks):
        b = B0 + 40*buf
        xr = [f"ds_read_b128 {vr(b+4*tt,4)}, v{XA+ks} offset:{tt*2048}" for tt in range(4)]
        wr = [f"ds_read_b64_tr_b16 {vr(b+16+4*ct+2*t,2)}, v{WA+(ct&1)} offset:{(ct>>1)*8192+ks*4096+t*512}" for ct in range(6) for t in range(2)]
        return [xr[0]] + wr[0:2] + xr[1:4] + wr[2:]
    def mfmas(buf):
        b = B0 + 40*buf
        o = []
        for ct in range(6):
            for tt in range(4):
                x = vr(b+4*tt, 4); w = vr(b+16+4*ct, 4)
                A, B = (w, x) if ct < 4 else (x, w)
                o.append(f"v_mfma_f32_16x16x32_bf16 {vr(accreg(ct,tt),4)}, {A}, {B}, {vr(accreg(ct,tt),4)}")
        return o
    KT, SI, DL, NEG = 48, 49, 50, 51
    pf = opt.get("pf", False)
    PD, PO, PV = 56, 54, 5
    if pf:
        for q in range(3):
            a(f"s_cmp_eq_u32 s{W}, 0")
            a(f"s_cselect_b32 s{PD+q}, s{sWG+q}, s{sWU+q}")
            a(f"s_cmp_eq_u32 s{W}, 2")
            a(f"s_cselect_b32 s{PD+q}, s{sWD+q}, s{PD+q}")
            a(f"s_cmp_eq_u32 s{W}, 3")
            a(f"s_cselect_b32 s{PD+q}, s{sWO+q}, s{PD+q}")
        a(f"s_mov_b32 s{PD+3}, 0x00020000")
        a(f"s_cselect_b32 s{PO}, 8192, 28672 + 0" if False else f"s_movk_i32 s{PO}, 0x7000")
        a(f"s_cselect_b32 s{PO}, 0x2000, s{PO}")
        a(f"s_mul_i32 s{PO}, s{PO}, s2")
        a(f"s_sub_u32 s{PO}, s{PO}, {opt.get('pf0', 2)*2048}")
        a(f"v_lshlrev_b32 v{PV}, 7, v0")
        a("v_cmp_gt_u32 vcc, 16, v0")
        a("v_mov_b32 v6, 0x7fff0000")
        a("s_nop 0")
        a(f"v_cndmask_b32 v{PV}, v6, v{PV}, vcc")
    a(f"s_mov_b32 s{KT}, 0")
    a(f"s_mov_b32 s{SI}, 0")
    a(f"s_mov_b32 s{NEG}, {(-2*SLOT) & 0xffffffff:#x}")
    a("s_waitcnt lgkmcnt(0)")
    if opt.get("cprio"): a(f"s_setprio {opt['cprio']}")
    a("s_barrier")
    a.stamp(1); a.cstamp(7)
    a(*reads(0, 0))
    a(".p2align 6")
    a.label(f"{name}_cloop")
    per = opt.get("rpg", 1)
    skip = opt.get("rskip", 0)
    if opt.get("nods"): reads = lambda buf, ks: []
    fine = opt.get("fine", False)
    def weave(m, r, extra, first=0, pend=16):
        i = 0
        for k, x in enumerate(m):
            kk = k + first
            if fine and kk % 4 == 0 and kk > 0:
                need = 6 + 2*(kk // 4)
                a(f"s_waitcnt lgkmcnt({min(15, pend - need + i)})")
            a(x)
            if k < skip: continue
            a(*r[i:i+per]); i = min(len(r), i + per)
            if i >= len(r) and k >= len(r) // per and extra: a(extra.pop(0))
    U = opt.get("cunroll", 2)
    barpos = opt.get("barpos", 2)
    for u in range(U):
        m = mfmas(0); r = reads(1, 1)
        a(f"s_add_u32 s{SI}, s{SI}, 1")
        a(f"s_cmp_eq_u32 s{SI}, 3")
        a(f"s_cselect_b32 s{DL}, s{NEG}, {SLOT}")
        a(f"s_cselect_b32 s{SI}, 0, s{SI}")
        ctr = opt.get("ctrace")
        if ctr: a("s_memtime s[76:77]")
        a(f"s_waitcnt lgkmcnt({10 if fine else 0})")
        ex = [f"v_add_u32 v{q}, s{DL}, v{q}" for q in (1, 2, 3, 4)]
        if ctr: ex = [f"s_lshl_b32 m0, s{KT}, 2", "v_writelane_b32 v255, s76, m0"] + ex
        weave(m, r, ex)
        m = mfmas(1); r = reads(0, 0)
        if ctr: a("s_memtime s[76:77]")
        a("s_waitcnt lgkmcnt(0)")
        a(*m[:barpos])
        if ctr:
            a("s_add_u32 m0, m0, 1")
            a("v_writelane_b32 v255, s76, m0")
            a("s_memtime s[78:79]")
        a("s_barrier")
        if ctr:
            a("s_memtime s[76:77]")
            a("s_waitcnt lgkmcnt(0)")
            a("s_add_u32 m0, m0, 1")
            a("v_writelane_b32 v255, s78, m0")
            a("s_add_u32 m0, m0, 1")
            a("v_writelane_b32 v255, s76, m0")
        if pf:
            a(f"s_cmp_lt_u32 s{KT}, {opt.get('pf0', 2)}")
            a(f"s_cselect_b32 s{sT}, 0x7fff0000, s{PO}")
            a(f"buffer_load_dword v254, v{PV}, {srd(PD)}, s{sT} offen")
            a(f"s_add_u32 s{PO}, s{PO}, 2048")
        fine_, fine = fine, False
        weave(m[barpos:], r, [f"s_add_u32 s{KT}, s{KT}, 1", f"s_cmp_lt_u32 s{KT}, 16"])
        fine = fine_
    a(f"s_cbranch_scc1 {name}_cloop")
    vm.q = []
    if opt.get("cprio"): a("s_setprio 0")
    a.stamp(2); a.cstamp(8)
    MR, CSQ, MV, RV, CSV, QR, AD, PK = 8, 16, 32, 48, 64, 66, 74, 78
    if not opt.get("t8a", True):
        a(f"s_lshl_b32 s{sT}, s{W}, 11")
        a(f"s_add_u32 s{sT}, s{sT}, {WS_R}")
        a(f"buffer_load_dwordx4 {vr(RKEY,4)}, v94, {srd(sWS)}, s{sT} offen sc1")
        a(f"buffer_load_dwordx4 {vr(RKEY+4,4)}, v94, {srd(sWS)}, s{sT} offen offset:1024 sc1")
    a("s_waitcnt lgkmcnt(0)")
    a("v_and_b32 v1, 15, v0")
    a("v_lshrrev_b32 v2, 4, v0")
    a(f"s_lshl_b32 s{sT}, s{WM}, 8")
    a(f"s_add_u32 s{sT}, s{sT}, {L_M}")
    a(f"s_mul_i32 s{sT+1}, s{WN}, 384")
    a(f"s_add_u32 s{sT+1}, s{sT+1}, {L_CS}")
    a("v_lshlrev_b32 v3, 2, v1")
    a(f"v_add_u32 v4, s{sT}, v3")
    for tt in range(4):
        a(f"ds_read_b32 v{MR+2*tt}, v4 offset:{tt*64}")
        a(f"ds_read_b32 v{MR+2*tt+1}, v4 offset:{tt*64+512}")
    a("v_lshlrev_b32 v5, 4, v2")
    a(f"v_add_u32 v6, s{sT+1}, v5")
    for ct in range(4): a(f"ds_read_b128 {vr(CSQ+4*ct,4)}, v6 offset:{ct*64}")
    a(f"v_add_u32 v6, s{sT}, v5")
    a(f"v_add_u32 v3, s{sT+1}, v3")
    a(f"ds_read_b32 v{CSV}, v3 offset:256")
    a(f"ds_read_b32 v{CSV+1}, v3 offset:320")
    for tt in range(4):
        a(f"ds_read_b128 {vr(MV+4*tt,4)}, v6 offset:{tt*64}")
        a(f"ds_read_b128 {vr(RV+4*tt,4)}, v6 offset:{tt*64+512}")
    a("v_lshrrev_b32 v3, 1, v2")
    a("v_and_b32 v4, 1, v2")
    a("v_lshl_add_u32 v5, v3, 5, v1")
    a("v_lshlrev_b32 v5, 4, v5")
    a("v_lshl_add_u32 v5, v4, 3, v5")
    a("v_lshl_add_u32 v6, v4, 5, v1")
    a("v_lshlrev_b32 v6, 4, v6")
    a("v_lshl_add_u32 v6, v3, 3, v6")
    a(f"s_lshl_b32 s{sT}, s{WN}, 1")
    a(f"s_add_u32 s{sT}, s{sT}, s{WM}")
    a(f"s_lshl_b32 s{sT}, s{sT}, 13")
    a(f"v_add_u32 v{AD}, s{sT}, v5")
    a(f"v_add_u32 v{AD+1}, s{sT}, v6")
    a(f"s_lshr_b32 s{sT}, s{sT}, 1")
    a(f"s_add_u32 s{sT}, s{sT}, {L_Q}")
    a(f"v_add_u32 v{AD+2}, s{sT}, v5")
    a(f"s_mov_b32 s{sT+1}, {QSCALE:#x}")
    a("s_waitcnt lgkmcnt(10)")
    for tt in range(4):
        a(f"v_mul_f32 v{QR+2*tt+1}, s{sT+1}, v{MR+2*tt+1}")
    n = 0
    def fin(ct, tt):
        nonlocal n
        r = accreg(ct, tt)
        p = PK + 2*(n % 4); n += 1
        for hf in range(2):
            pr = vr(r+2*hf, 2)
            if ct < 4:
                a(f"v_pk_fma_f32 {pr}, {vr(CSQ+4*ct+2*hf,2)}, {vr(MR+2*tt,2)}, {pr} op_sel_hi:[1,0,1] neg_lo:[0,1,0] neg_hi:[0,1,0]")
                sc = QR if ct < 2 else MR
                a(f"v_pk_mul_f32 {pr}, {pr}, {vr(sc+2*tt,2)} op_sel:[0,1] op_sel_hi:[1,1]")
            else:
                sel = "op_sel_hi:[1,0,1]" if ct == 4 else "op_sel:[0,1,0] op_sel_hi:[1,1,1]"
                a(f"v_pk_fma_f32 {pr}, {vr(MV+4*tt+2*hf,2)}, {vr(CSV,2)}, {pr} {sel} neg_lo:[0,1,0] neg_hi:[0,1,0]")
                a(f"v_pk_mul_f32 {pr}, {pr}, {vr(RV+4*tt+2*hf,2)}")
            a(f"v_cvt_pk_bf16_f32 v{p+hf}, v{r+2*hf}, v{r+2*hf+1}")
        if ct < 2:   a(f"ds_write_b64 v{AD+2}, {vr(p,2)} offset:{(tt>>1)*2048 + ct*1024 + (tt&1)*256}")
        elif ct < 4: a(f"ds_write_b64 v{AD}, {vr(p,2)} offset:{(tt>>1)*4096 + (ct-2)*1024 + (tt&1)*256}")
        else:        a(f"ds_write_b64 v{AD+1}, {vr(p,2)} offset:{(tt>>1)*4096 + 2048 + (tt&1)*1024 + (ct-4)*256}")
    a("s_waitcnt lgkmcnt(0)")
    for ct in (2, 3):
        for tt in range(4): fin(ct, tt)
    if opt.get("ksplit", True):
        a("s_waitcnt lgkmcnt(0)")
        a("s_barrier")
    for ct in (4, 5):
        for tt in range(4): fin(ct, tt)
    a("s_waitcnt lgkmcnt(0)")
    a("s_barrier")
    for ct in (0, 1):
        for tt in range(4): fin(ct, tt)
    a("s_waitcnt lgkmcnt(0)")
    return vm

def publish_kv(a, vm, R, opt):
    a(f"v_lshlrev_b32 v{R.VL}, 4, v0")
    a(f"s_and_b32 s{sT+1}, s{W}, 1")
    a(f"s_lshl_b32 s{sT+1}, s{sT+1}, 1")
    a(f"s_bfe_u32 s{sT+2}, s{W}, 0x10001")
    a(f"s_add_u32 s{sT+1}, s{sT+1}, s{sT+2}")
    a(f"s_lshl_b32 s{sT+1}, s{sT+1}, 12")
    a(f"s_add_u32 s{sT+1}, s{sT+1}, {L_Q}")
    a(f"v_add_u32 v3, s{sT+1}, v{R.VL}")
    for q in range(4): a(f"ds_read_b128 {vr(R.Q+4*q,4)}, v3 offset:{q*1024}")
    if opt.get("dbg"):
        a("s_waitcnt lgkmcnt(0)")
        head_of(a, sT+1, sT+2)
        a(f"s_lshl_b32 s{sT+1}, s{sT+1}, 6")
        a(f"s_lshl_b32 s{sT+2}, s{sMT}, 2")
        a(f"s_add_u32 s{sT+1}, s{sT+1}, s{sT+2}")
        a(f"s_and_b32 s{sT+2}, s{W}, 2")
        a(f"s_add_u32 s{sT+1}, s{sT+1}, s{sT+2}")
        a(f"s_lshl_b32 s{sT+1}, s{sT+1}, 11")
        a(f"s_add_u32 s{sT+1}, s{sT+1}, {WS_Q}")
        for q in range(4):
            a(f"buffer_store_dwordx4 {vr(R.Q+4*q,4)}, v{R.VL}, {srd(sWS)}, s{sT+1} offen offset:{q*1024}")
        vm.drain()

def gen_fused(name, **opt):
    a = Asm(); cold = []
    TICKET[0] = False
    R = AT.AttnRegs
    prologue(a, name, opt)
    a(f"s_cmp_ge_u32 s{W}, 4")
    a(f"s_cbranch_scc1 {name}_loader")
    phaseA_consumer(a, name, cold, opt)
    a(f"s_branch {name}_joinA")
    a.label(f"{name}_loader")
    phaseA_loader(a, name, cold, opt)
    a.stamp(2)
    a("s_setprio 0")
    a.label(f"{name}_joinA")
    a("s_barrier")
    a.stamp(3)
    if opt.get("dbgtime"): a("s_memrealtime s[94:95]")
    vm = VM(a)
    publish_kv(a, vm, R, opt)
    if opt.get("stop") != "A":
        import fused_bc
        fused_bc.phaseB(a, name, cold, opt, vm)
        if opt.get("stop") != "B":
            fused_bc.phaseC(a, name, cold, opt, vm)
    if opt.get("xprobe"):
        a("s_waitcnt vmcnt(0) lgkmcnt(0)")
        a(f"s_cmp_lg_u32 s{W}, 0")
        a(f"s_cbranch_scc1 {name}_done")
        a("s_getreg_b32 s76, hwreg(HW_REG_XCC_ID, 0, 4)")
        a("s_add_u32 s76, s76, 1")
        a("v_mov_b32 v1, 4")
        a("v_mov_b32 v2, s76")
        a("s_mov_b64 exec, 1")
        a(f"s_cmp_lg_u32 s2, {opt['xprobe']}")
        a(f"s_cbranch_scc1 {name}_xp0")
        a(f"buffer_atomic_add v2, v1, {srd(sDBG)}, 0 offen sc1")
        a("s_waitcnt vmcnt(0)")
        a("s_endpgm")
        a.label(f"{name}_xp0")
        a("s_cmp_lg_u32 s2, 0")
        a(f"s_cbranch_scc1 {name}_done")
        a("s_mov_b32 s78, 0")
        a.label(f"{name}_xp1")
        a("v_mov_b32 v2, 0")
        a(f"buffer_atomic_add v2, v1, {srd(sDBG)}, 0 offen sc0 sc1")
        a("s_add_u32 s78, s78, 1")
        a("s_cmp_gt_u32 s78, 100000")
        a(f"s_cbranch_scc1 {name}_done")
        a("s_waitcnt vmcnt(0)")
        a("v_readfirstlane_b32 s77, v2")
        a("s_nop 3")
        a("s_cmp_eq_u32 s77, 0")
        a(f"s_cbranch_scc1 {name}_xp1")
        a("s_cmp_eq_u32 s77, s76")
        a(f"s_cbranch_scc1 {name}_done")
        a("s_memrealtime s[80:81]")
        a("s_waitcnt lgkmcnt(0)")
        a.label(f"{name}_xp2")
        a("s_memrealtime s[78:79]")
        a("s_waitcnt lgkmcnt(0)")
        a("s_sub_u32 s78, s78, s80")
        a("s_cmp_lt_u32 s78, 4000")
        a(f"s_cbranch_scc1 {name}_xp2")
    if opt.get("probe"):
        i_, j_ = opt["probe"]
        a("s_waitcnt vmcnt(0) lgkmcnt(0)")
        a.stamp(9)
        a("s_waitcnt lgkmcnt(0)")
        a(f"s_or_b32 s76, s81, s{W}")
        a(f"s_cmp_lg_u32 s76, 0")
        a(f"s_cbranch_scc1 {name}_done")
        a(f"s_sub_u32 s76, s{82+2*j_}, s{82+2*i_}")
        a("s_lshl_b32 s76, s76, 2")
        a.label(f"{name}_probe")
        a("s_memrealtime s[78:79]")
        a("s_waitcnt lgkmcnt(0)")
        a("s_sub_u32 s78, s78, s100")
        a("s_cmp_lt_u32 s78, s76")
        a(f"s_cbranch_scc1 {name}_probe")
    else:
        a.stamp_dump(opt.get("kid", 0), W)
    if opt.get("dbgtime"):
        a("s_waitcnt vmcnt(0)")
        a("s_memrealtime s[98:99]")
        a("s_waitcnt lgkmcnt(0)")
        a("s_not_b32 s96, s96")
        a("v_mov_b32 v1, 4")
        a("v_mov_b32 v2, s96")
        a("v_mov_b32 v3, s98")
        a("v_mov_b32 v4, s94")
        a(f"s_cmp_lg_u32 s{W}, 0")
        a(f"s_cbranch_scc1 {name}_done")
        a("s_mov_b64 exec, 1")
        a(f"buffer_atomic_umax v2, v1, {srd(sDBG)}, 0 offen sc1")
        a(f"buffer_atomic_umax v3, v1, {srd(sDBG)}, 0 offen offset:4 sc1")
        a(f"buffer_atomic_umax v4, v1, {srd(sDBG)}, 0 offen offset:8 sc1")
        a("s_mov_b64 exec, -1")
    a.label(f"{name}_done")
    a("s_endpgm")
    for c in cold: a.lines += c.lines
    a.label(f"{name}_end")
    a("s_endpgm")
    return kernel_header(name) + a.text() + kernel_desc(name, 256, 102)

def xsel_fetch(a, vm, vidx, XR, XST, n=1):
    for i in range(n):
        a(f"s_mul_i32 s{sT+2}, s{W}, {n}")
        a(f"s_add_u32 s{sT+2}, s{sT+2}, {i}")
        a(f"v_readlane_b32 s{sT}, v{vidx}, s{sT+2}")
        a("s_nop 3")
        a(f"s_lshl_b32 s{sT+1}, s{sT}, 11")
        a(f"buffer_load_dwordx4 {vr(XR+8*i,4)}, v1, {srd(sX)}, s{sT+1} offen")
        a(f"buffer_load_dwordx4 {vr(XR+8*i+4,4)}, v1, {srd(sX)}, s{sT+1} offen offset:1024")
        a(f"s_lshr_b32 s{sT+1}, s{sT}, 3")
        a(f"s_lshl_b32 s{sT+1}, s{sT+1}, 5")
        a(f"s_and_b32 s{sT}, s{sT}, 7")
        a(f"s_add_u32 s{sT}, s{sT}, s{sT+1}")
        a(f"s_lshl_b32 s{sT}, s{sT}, 2")
        a(f"s_add_u32 s{sT}, s{sT}, {WS_ST}")
        a(f"v_mov_b32 v{XST+2*i+1}, s{sT}")
        a(f"buffer_load_dword v{XST+2*i}, v{XST+2*i+1}, {srd(sWS)}, 0 offen sc1")
        a(f"buffer_load_dword v{XST+2*i+1}, v{XST+2*i+1}, {srd(sWS)}, 0 offen offset:32 sc1")
    vm.issue("xsel", 4*n)

def xsel_normalise(a, T, XR, XST, n=1):
    XF = T + 2
    a(f"v_lshrrev_b32 v{T}, 2, v0")
    a(f"v_lshlrev_b32 v{T}, 9, v{T}")
    a(f"v_and_b32 v{T+1}, 3, v0")
    a(f"v_lshl_add_u32 v{T}, v{T+1}, 7, v{T}")
    a(f"s_lshl_b32 s{sT}, s{W}, {3+n}")
    a(f"s_add_u32 s{sT}, s{sT}, {L_XS}")
    a(f"v_add_u32 v{T}, s{sT}, v{T}")
    for i in range(n):
        for p in range(8):
            x = XR + 8*i + p
            f0, f1 = XF + 2*(p & 1), XF + 2*(p & 1) + 1
            a(f"v_lshlrev_b32 v{f0}, 16, v{x}")
            a(f"v_and_b32 v{f1}, 0xffff0000, v{x}")
            a(f"v_sub_f32 v{f0}, v{f0}, v{XST+2*i}")
            a(f"v_sub_f32 v{f1}, v{f1}, v{XST+2*i}")
            a(f"v_cvt_pk_bf16_f32 v{x}, v{f0}, v{f1}")
            a(f"v_lshlrev_b32 v{f0}, 16, v{x}")
            a(f"v_and_b32 v{f1}, 0xffff0000, v{x}")
            a(f"v_mul_f32 v{f0}, v{f0}, v{XST+2*i+1}")
            a(f"v_mul_f32 v{f1}, v{f1}, v{XST+2*i+1}")
            a(f"v_cvt_pk_bf16_f32 v{x}, v{f0}, v{f1}")
        a(f"ds_write_b128 v{T}, {vr(XR+8*i,4)} offset:{16*i}")
        a(f"ds_write_b128 v{T}, {vr(XR+8*i+4,4)} offset:{16*i+8192}")
```

```python
import os
from asmlib import *
from layout import *
from k_top8 import DPPS, make_keys, decode_keys
from k_attn import M32, M16
import k_attn2 as AT
from k_moe import pi_row, silu_bf16, round_bf16

QSCALE = 0x3e8293ee
sX, sWQ, sWS, sWR, sDBG, sWG, sWU, sWD, sWO, sOUT = 4, 8, 12, 16, 20, 24, 28, 32, 36, 40
sJ, sMT, sLI, sXC = 44, 45, 46, 47
sIDX, sWT = 48, 56
sT = 64
W = 3
SLOT, WOFF = 40960, 16384
L_Q, L_XS, L_MISC = 122880, 139264, 159744
L_M, L_RS, L_CS, L_CAND, L_IDX, L_H = L_MISC, L_MISC+512, L_MISC+1024, L_MISC+1792, L_MISC+1920, L_MISC+2048
L_ST, L_TK = L_MISC+3072, L_MISC+3200
LDS_BYTES = 163840
SPIN_LIMIT = 400000
RKEY = 208

def srd(r): return f"s[{r}:{r+3}]"

def wsum(a, r, sdst, op="add_f32"):
    for ctl in DPPS:
        bc = " bound_ctrl:0" if ctl.startswith("row_shr") and op == "add_f32" else ""
        a("s_nop 1")
        a(f"v_{op}_dpp v{r}, v{r}, v{r} {ctl}{bc}")
    a("s_nop 0")
    a(f"v_readlane_b32 s{sdst}, v{r}, 63")
    a("s_nop 1")

def ln_rows2(a, vm, X, WR, XB, T, voff, dbg, n=2):
    R2 = range(n)
    nop = "s_nop 0" if n == 2 else "s_nop 1"
    F_ = lambda i, e: XB + 16*i + e
    T_ = lambda i, k: T + 6*i + k
    def wsum2(k, sd):
        for ctl in DPPS:
            bc = " bound_ctrl:0" if ctl.startswith("row_shr") else ""
            a(nop)
            for i in R2: a(f"v_add_f32_dpp v{T_(i,k)}, v{T_(i,k)}, v{T_(i,k)} {ctl}{bc}")
        a("s_nop 0")
        for i in R2: a(f"v_readlane_b32 s{sT+3*i+sd}, v{T_(i,k)}, 63")
        a(nop)
    for i in R2:
        for p in range(8):
            a(f"v_lshlrev_b32 v{F_(i,2*p)}, 16, v{X+8*i+p}")
            a(f"v_and_b32 v{F_(i,2*p+1)}, 0xffff0000, v{X+8*i+p}")
    P2 = lambda r: vr(r, 2)
    for i in R2: a(f"v_pk_add_f32 {P2(T_(i,4))}, {P2(F_(i,0))}, {P2(F_(i,2))}")
    for e in range(4, 16, 2):
        for i in R2: a(f"v_pk_add_f32 {P2(T_(i,4))}, {P2(T_(i,4))}, {P2(F_(i,e))}")
    for i in R2: a(f"v_add_f32 v{T_(i,0)}, v{T_(i,4)}, v{T_(i,5)}")
    a("s_nop 0")
    wsum2(0, 0)
    for i in R2:
        a(f"v_mov_b32 v{T_(i,0)}, s{sT+3*i}")
    for i in R2:
        a(f"v_mul_f32 v{T_(i,0)}, 0x3a800000, v{T_(i,0)}")
    BC = "op_sel_hi:[1,0] neg_lo:[0,1] neg_hi:[0,1]"
    for e in range(0, 16, 2):
        for i in R2: a(f"v_pk_add_f32 {P2(T_(i,2))}, {P2(F_(i,e))}, {P2(T_(i,0))} {BC}")
        for i in R2:
            if e == 0: a(f"v_pk_mul_f32 {P2(T_(i,4))}, {P2(T_(i,2))}, {P2(T_(i,2))}")
            else: a(f"v_pk_fma_f32 {P2(T_(i,4))}, {P2(T_(i,2))}, {P2(T_(i,2))}, {P2(T_(i,4))}")
    for i in R2: a(f"v_add_f32 v{T_(i,1)}, v{T_(i,4)}, v{T_(i,5)}")
    a("s_nop 0")
    wsum2(1, 0)
    seq = lambda i: [
        f"v_mov_b32 v{T_(i,1)}, s{sT+3*i}",
        f"v_mul_f32 v{T_(i,1)}, 0x3a800000, v{T_(i,1)}",
        f"v_cvt_pk_bf16_f32 v{T_(i,2)}, v{T_(i,0)}, v{T_(i,1)}",
        f"v_lshlrev_b32 v{T_(i,0)}, 16, v{T_(i,2)}",
        f"v_and_b32 v{T_(i,1)}, 0xffff0000, v{T_(i,2)}",
        f"v_add_f32 v{T_(i,1)}, 0x3727c5ac, v{T_(i,1)}",
        f"v_cvt_pk_bf16_f32 v{T_(i,1)}, v{T_(i,1)}, v{T_(i,1)}",
        f"v_and_b32 v{T_(i,1)}, 0xffff0000, v{T_(i,1)}",
        f"v_sqrt_f32 v{T_(i,1)}, v{T_(i,1)}",
        f"v_readfirstlane_b32 s{sT+3*i}, v{T_(i,0)}",
        f"v_cvt_pk_bf16_f32 v{T_(i,1)}, v{T_(i,1)}, v{T_(i,1)}",
        f"v_and_b32 v{T_(i,1)}, 0xffff0000, v{T_(i,1)}",
        f"v_rcp_f32 v{T_(i,1)}, v{T_(i,1)}",
        f"v_mov_b32 v{T_(i,3)}, 0"]
    for xs in zip(*[seq(i) for i in R2]): a(*xs)
    if n == 1: a("s_nop 0")
    for p in range(8):
        st = lambda i: [
            f"v_pk_add_f32 {P2(F_(i,2*p))}, {P2(F_(i,2*p))}, {P2(T_(i,0))} {BC}",
            f"v_cvt_pk_bf16_f32 v{T_(i,2)}, v{F_(i,2*p)}, v{F_(i,2*p+1)}",
            f"v_lshlrev_b32 v{F_(i,2*p)}, 16, v{T_(i,2)}",
            f"v_and_b32 v{F_(i,2*p+1)}, 0xffff0000, v{T_(i,2)}",
            f"v_pk_mul_f32 {P2(F_(i,2*p))}, {P2(F_(i,2*p))}, {P2(T_(i,0))} op_sel:[0,1] op_sel_hi:[1,1]",
            f"v_cvt_pk_bf16_f32 v{X+8*i+p}, v{F_(i,2*p)}, v{F_(i,2*p+1)}"]
        for xs in zip(*[st(i) for i in R2]): a(*xs)
    for i in R2: a(f"v_readfirstlane_b32 s{sT+3*i+1}, v{T_(i,1)}")
    if dbg:
        for i in R2:
            a(f"buffer_store_dwordx4 {vr(X+8*i,4)}, v{voff}, {srd(sWS)}, 0 offen offset:{2048*i}")
            a(f"buffer_store_dwordx4 {vr(X+8*i+4,4)}, v{voff}, {srd(sWS)}, 0 offen offset:{2048*i+1024}")
    for p in range(8):
        for i in R2: a(f"v_dot2c_f32_bf16 v{T_(i,3)}, v{X+8*i+p}, v{WR+p}")
    a("s_nop 1")
    wsum2(3, 2)
    for i in R2: a(f"v_mov_b32 v{T_(i,0)}, s{sT+3*i+2}")
    for i in R2: a(f"v_cvt_pk_bf16_f32 v{T_(i,0)}, v{T_(i,0)}, v{T_(i,0)}")
    for i in R2: a(f"v_and_b32 v{T_(i,0)}, 0xffff0000, v{T_(i,0)}")
    a(f"v_mov_b32 v{T+1}, s{sT}")
    for i in R2: a(f"v_readfirstlane_b32 s{sT+3*i+2}, v{T_(i,0)}")
    a(f"v_lshlrev_b32 v{T+2}, 5, v0")
    a(f"s_lshl_b32 s{sT+6}, s{W}, {n+1}")
    a(f"s_add_u32 s{sT+6}, s{sT+6}, {L_ST}")
    a(f"v_add_u32 v{T+2}, s{sT+6}, v{T+2}")
    for l in range(1, 3*n): a(f"v_writelane_b32 v{T+1}, s{sT+l}, {l}")
    if n == 2:
        for l in range(3):
            a(f"s_add_u32 s{sT+7}, s{sT+6}, {l*32+4}")
            a(f"v_writelane_b32 v{T+2}, s{sT+7}, {3+l}")
    a(f"s_mov_b64 exec, {(1 << 3*n) - 1}")
    a(f"ds_write_b32 v{T+2}, v{T+1}")
    a("s_mov_b64 exec, -1")

def ln_loads(a, vm, opt, X=96, WR=112):
    n = opt.get("lnrows", 2)
    for q in range(2*n):
        a(f"buffer_load_dwordx4 {vr(X+4*q,4)}, v95, {srd(sX)}, 0 offen offset:{q*1024} {'nt' if 'l' in opt.get('nt', 'ms') else ''}")
    for q in range(2):
        a(f"buffer_load_dwordx4 {vr(WR+4*q,4)}, v94, {srd(sWR)}, 0 offen offset:{q*1024}")
    vm.issue("lnld", 2*n + 2)

def rec_of(a, d):
    a(f"s_lshl_b32 s{d}, s{sMT}, 4")
    a(f"s_add_u32 s{d}, s{d}, s{sJ}")

def publish_stats(a, vm, T):
    t = sT
    a(f"v_mov_b32 v{T+1}, 0")
    a("s_mov_b64 exec, 0xffffff")
    a(f"ds_read_b32 v{T+1}, v{T+2}")
    a(f"s_lshl_b32 s{t}, s2, 7")
    a(f"s_add_u32 s{t}, s{t}, {WS_Y}")
    a("s_mov_b64 exec, 0xff")
    a(f"buffer_store_dwordx4 {vr(T+4,4)}, v94, {srd(sWS)}, s{t} offen sc1")
    a(f"s_mul_i32 s{t}, s2, 896")
    a(f"s_add_u32 s{t}, s{t}, {WS_GU}")
    a("s_bfm_b64 exec, 56, 0")
    a(f"buffer_store_dwordx4 {vr(T+4,4)}, v94, {srd(sWS)}, s{t} offen sc1")
    a("s_bfm_b64 exec, 44, 0")
    a("s_waitcnt lgkmcnt(0)")
    a(f"buffer_store_dword v{T+1}, v{T}, {srd(sWS)}, 0 offen sc1")
    a("s_mov_b64 exec, -1")
    vm.issue("st", 3, cond=True)

def publish_zeros(a, vm, T):
    A_, D_, U_ = T, T+1, T+2
    t = sT
    a(f"v_lshlrev_b32 v{U_}, 2, v0")
    rec_of(a, t)
    a(f"s_lshl_b32 s{t}, s{t}, 7")
    a(f"s_add_u32 s{t}, s{t}, {WS_ST}")
    a(f"v_add_u32 v{A_}, s{t}, v{U_}")
    rec_of(a, t)
    a(f"s_lshl_b32 s{t}, s{t}, 5")
    a(f"s_add_u32 s{t}, s{t}, {WS_R - 64}")
    a(f"v_cmp_le_u32 vcc, 16, v0")
    a(f"v_add_u32 v{U_}, s{t}, v{U_}")
    a("s_nop 0")
    a(f"v_cndmask_b32 v{A_}, v{A_}, v{U_}, vcc")
    rec_of(a, t+2)
    a(f"s_lshl_b32 s{t+2}, s{t+2}, 7")
    a(f"s_add_u32 s{t+2}, s{t+2}, {WS_ST + 96}")
    a(f"s_lshl_b32 s{t}, s{sJ}, 9")
    a(f"s_add_u32 s{t}, s{t}, {WS_KVF}")
    a(f"v_and_b32 v{U_}, 3, v0")
    a(f"v_lshlrev_b32 v{U_}, 7, v{U_}")
    a(f"v_add_u32 v{U_}, s{t}, v{U_}")
    a(f"v_mov_b32 v{U_+1}, s{t+2}")
    a(f"s_cmp_eq_u32 s{sMT}, 0")
    a(f"s_cselect_b64 vcc, -1, 0")
    a(f"v_cndmask_b32 v{U_}, v{U_+1}, v{U_}, vcc")
    a(f"v_cmp_le_u32 vcc, 24, v0")
    a(f"s_lshl_b32 s{t}, s{sMT}, 10")
    a(f"s_add_u32 s{t}, s{t}, {WS_OF}")
    a(f"v_cndmask_b32 v{A_}, v{A_}, v{U_}, vcc")
    a(f"v_and_b32 v{U_}, 7, v0")
    a(f"v_lshlrev_b32 v{U_}, 7, v{U_}")
    a(f"v_add_u32 v{U_}, s{t}, v{U_}")
    a(f"s_cmp_eq_u32 s{sJ}, 0")
    a(f"s_cselect_b64 vcc, -1, 0")
    a(f"v_cndmask_b32 v{U_}, v{U_+1}, v{U_}, vcc")
    a(f"v_cmp_le_u32 vcc, 32, v0")
    a(f"s_lshl_b32 s{t}, s2, 7")
    a(f"s_add_u32 s{t+1}, s{t}, {WS_HF}")
    a(f"v_cndmask_b32 v{A_}, v{A_}, v{U_}, vcc")
    a(f"s_cmp_lt_u32 s2, 56")
    a(f"s_cselect_b32 s{t+1}, s{t+1}, s{t+2}")
    a(f"v_writelane_b32 v{A_}, s{t+1}, 40")
    a(f"s_add_u32 s{t+1}, s{t}, {WS_YF}")
    a(f"s_cmp_lt_u32 s2, 16")
    a(f"s_cselect_b32 s{t+1}, s{t+1}, s{t+2}")
    a(f"v_writelane_b32 v{A_}, s{t+1}, 41")
    csf_addr(a, t, t+1)
    a(f"s_cmp_eq_u32 s{sMT}, 0")
    a(f"s_cselect_b32 s{t}, s{t}, s{t+2}")
    a(f"v_writelane_b32 v{A_}, s{t}, 42")
    a(f"s_cmp_eq_u32 s2, 0")
    a(f"s_cselect_b32 s{t}, {WS_TK}, s{t+2}")
    a(f"v_writelane_b32 v{A_}, s{t}, 43")
    for r in range(4): a(f"v_mov_b32 v{T+4+r}, 0")
    a(f"v_lshlrev_b32 v{U_}, 2, v0")
    a(f"v_add_u32 v{U_}, {L_ST}, v{U_}")

def csf_addr(a, d, t):
    a(f"s_lshl_b32 s{d}, s{sJ}, 7")
    a(f"s_add_u32 s{d}, s{d}, {WS_CSF}")
def kvf_addr(a, d, t):
    a(f"s_lshl_b32 s{d}, s{sJ}, 2")
    a(f"s_and_b32 s{t}, s{W}, 3")
    a(f"s_add_u32 s{d}, s{d}, s{t}")
    a(f"s_lshl_b32 s{d}, s{d}, 7")
    a(f"s_add_u32 s{d}, s{d}, {WS_KVF}")
def otile(a, d, t):
    a(f"s_lshl_b32 s{d}, s{sMT}, 2")
    a(f"s_and_b32 s{t}, s{W}, 2")
    a(f"s_add_u32 s{d}, s{d}, s{t}")
    a(f"s_lshr_b32 s{t}, s{W}, 2")
    a(f"s_add_u32 s{d}, s{d}, s{t}")
def head_of(a, d, t):
    a(f"s_lshl_b32 s{d}, s{sJ}, 1")
    a(f"s_and_b32 s{t}, s{W}, 1")
    a(f"s_add_u32 s{d}, s{d}, s{t}")
def of_addr(a, d, t):
    otile(a, d, t)
    a(f"s_lshl_b32 s{d}, s{d}, 1")
    a(f"s_lshr_b32 s{t}, s{sJ}, 3")
    a(f"s_add_u32 s{d}, s{d}, s{t}")
    a(f"s_lshl_b32 s{d}, s{d}, 7")
    a(f"s_add_u32 s{d}, s{d}, {WS_OF}")
    a(f"s_and_b32 s{t}, s{sJ}, 7")
    a(f"s_lshl_b32 s{t}, s{t}, 1")
    a(f"s_and_b32 s{t+1}, s{W}, 1")
    a(f"s_add_u32 s{t}, s{t}, s{t+1}")
    a(f"s_lshl_b32 s{t}, 1, s{t}")
TICKET = [False]
def cg_of(a, d):
    if TICKET[0]:
        a(f"s_mov_b32 s{d}, s{sXC}")
        return
    a(f"s_mul_i32 s{d}, s{sXC}, 28")
    a(f"s_add_u32 s{d}, s{d}, s{sLI}")
def hf_addr(a, d):
    cg_of(a, d)
    a(f"s_lshr_b32 s{d}, s{d}, 2")
    a(f"s_lshl_b32 s{d}, s{d}, 7")
    a(f"s_add_u32 s{d}, s{d}, {WS_HF}")
def yf_addr(a, d, t):
    a(f"s_and_b32 s{d}, s2, 15")
    a(f"s_lshl_b32 s{d}, s{d}, 7")
    a(f"s_add_u32 s{d}, s{d}, {WS_YF}")

def signal(a, saddr, val, v0_, v1_, op="add"):
    a(f"v_mov_b32 v{v0_}, s{saddr}")
    a(f"v_mov_b32 v{v1_}, {val}")
    a("s_mov_b64 exec, 1")
    a(f"buffer_atomic_{op} v{v1_}, v{v0_}, {srd(sWS)}, 0 offen sc1")
    a("s_mov_b64 exec, -1")

def apoll(o, vreg, vaddr, lanes=1):
    o(f"v_mov_b32 v{vreg}, 0")
    o(f"s_mov_b64 exec, {(1 << lanes) - 1}")
    o(f"buffer_atomic_or v{vreg}, v{vaddr}, {srd(sWS)}, 0 offen sc0 sc1")
    o("s_mov_b64 exec, -1")

def acheck(a, name, vreg, vaddr, want, lanes, cold):
    lab = a.new_label(name)
    def cmp(o):
        o(f"v_cmp_gt_u32 vcc, {want}, v{vreg}")
        o(f"s_and_b32 vcc_lo, vcc_lo, {(1 << lanes) - 1}")
    cmp(a)
    a(f"s_cbranch_scc1 {lab}_spin")
    a.label(f"{lab}_ok")
    c = Asm()
    c.label(f"{lab}_spin")
    c(f"s_mov_b32 s{sT+11}, 0")
    c.label(f"{lab}_again")
    apoll(c, vreg, vaddr, lanes)
    c(f"s_add_u32 s{sT+11}, s{sT+11}, 1")
    c(f"s_cmp_gt_u32 s{sT+11}, {SPIN_LIMIT}")
    c(f"s_cbranch_scc1 {lab}_ok")
    c("s_waitcnt vmcnt(0)")
    cmp(c)
    c(f"s_cbranch_scc1 {lab}_again")
    c(f"s_branch {lab}_ok")
    cold.append(c)

def poll_check(a, name, vreg, vaddr, s_srd, want, mask, cold):
    lab = a.new_label(name)
    def cmp(o):
        o(f"v_cmp_gt_u32 vcc, {want}, v{vreg}" if want != 1 else f"v_cmp_ne_u32 vcc, 1, v{vreg}")
        if mask != -1:
            o(f"s_and_b32 vcc_lo, vcc_lo, {mask & 0xffffffff:#x}")
            o(f"s_and_b32 vcc_hi, vcc_hi, {(mask >> 32) & 0xffffffff:#x}")
        o("s_cmp_lg_u64 vcc, 0")
    cmp(a)
    a(f"s_cbranch_scc1 {lab}_spin")
    a.label(f"{lab}_ok")
    c = Asm()
    c.label(f"{lab}_spin")
    c(f"s_mov_b32 s{sT+11}, 0")
    c.label(f"{lab}_again")
    c(f"buffer_load_dword v{vreg}, v{vaddr}, {srd(s_srd)}, 0 offen sc1")
    c(f"s_add_u32 s{sT+11}, s{sT+11}, 1")
    c(f"s_cmp_gt_u32 s{sT+11}, {SPIN_LIMIT}")
    c(f"s_cbranch_scc1 {lab}_ok")
    c("s_waitcnt vmcnt(0)")
    cmp(c)
    c(f"s_cbranch_scc1 {lab}_again")
    c(f"s_branch {lab}_ok")
    cold.append(c)

def top8_round(a, keys, T, cand, st, rnd):
    n = len(keys)
    if rnd == 0: a(f"s_mov_b32 s{st}, -1")
    for e in range(n):
        a(f"v_sub_u32 v{T+e}, s{st}, v{keys[e]}")
    e = 1
    while e + 1 < n:
        a(f"v_min3_u32 v{T}, v{T}, v{T+e}, v{T+e+1}")
        e += 2
    if e < n: a(f"v_min_u32 v{T}, v{T}, v{T+e}")
    wsum(a, T, st+1, "min_u32")
    a(f"s_sub_u32 s{st}, s{st}, s{st+1}")
    a(f"v_writelane_b32 v{cand}, s{st}, {rnd}")
    a(f"s_sub_u32 s{st}, s{st}, 1")

def atomise(a, tmp):
    out, grp = [], None
    for l in tmp.lines:
        s_ = l.strip()
        if grp is not None:
            grp.append(s_)
            if s_ == "s_mov_b64 exec, -1": out.append(grp); grp = None
        elif ("exec," in s_ and s_ != "s_mov_b64 exec, -1") or "saveexec" in s_: grp = [s_]
        else: out.append([s_])
    assert grp is None
    return [(lambda g=g: a(*g)) for g in out]

def ws_base(a, opt):
    off = opt.get("wsoff", 0) << 20
    if off:
        a(f"s_add_u32 s{sWS}, s{sWS}, {off:#x}")
        a(f"s_addc_u32 s{sWS+1}, s{sWS+1}, 0")

def prologue(a, name, opt):
    a("s_cmp_ge_u32 s2, 256")
    a(f"s_cbranch_scc1 {name}_done")
    a.stamp_init(); a.stamp(0)
    if opt.get("dbgtime"): a("s_memrealtime s[96:97]")
    for r, off in ((sX, A_X), (sWQ, A_WQKV), (sWS, A_WS), (sWR, A_WR), (sDBG, A_DBG), (sWG, A_WG), (sWU, A_WU),
                   (sWD, A_WD), (sWO, A_WO), (sOUT, A_OUT)):
        a(f"s_load_dwordx2 s[{r}:{r+1}], s[0:1], {off}")
    a("v_lshrrev_b32 v1, 6, v0")
    a("v_and_b32 v0, 63, v0")
    a(f"v_readfirstlane_b32 s{W}, v1")
    a(f"s_and_b32 s{sXC}, s2, 7")
    a(f"s_lshr_b32 s{sLI}, s2, 3")
    a(f"s_and_b32 s{sMT}, s{sXC}, 1")
    a(f"s_lshl_b32 s{sMT}, s{sMT}, 3")
    a(f"s_and_b32 s{sT}, s{sLI}, 7")
    a(f"s_add_u32 s{sMT}, s{sMT}, s{sT}")
    a(f"s_lshr_b32 s{sJ}, s{sXC}, 1")
    a(f"s_lshl_b32 s{sJ}, s{sJ}, 2")
    a(f"s_lshr_b32 s{sT}, s{sLI}, 3")
    a(f"s_add_u32 s{sJ}, s{sJ}, s{sT}")
    a(f"s_lshl_b32 s{sT+3}, s{sMT}, 4")
    a(f"s_add_u32 s{sT+3}, s{sT+3}, s{sJ}")
    n = opt.get("lnrows", 2)
    a(f"s_lshl_b32 s{sT+3}, s{sT+3}, {4-n}")
    a(f"s_add_u32 s{sT+3}, s{sT+3}, s{W}")
    a(f"s_lshl_b32 s{sT}, s{sT+3}, {10+n}")
    a("v_lshlrev_b32 v94, 4, v0")
    a(f"v_add_u32 v95, s{sT}, v94")
    for r, n in ((sX, S*D*2), (sWQ, D*3*D*2), (sWS, WS_USED), (sWR, D*2), (sDBG, 256), (sWG, D*F*2), (sWU, D*F*2),
                 (sWD, D*F*2), (sWO, D*D*2), (sOUT, S*D*2)):
        a(f"s_mov_b32 s{r+2}, {n:#x}")
        a(f"s_mov_b32 s{r+3}, 0x00020000")

def phaseA_loader(a, name, cold, opt):
    vm = VM(a)
    LW, XB_, WB_, SX, SW = 48, 49, 50, 51, 52
    a(f"s_sub_u32 s{LW}, s{W}, 4")
    a("v_lshrrev_b32 v16, 3, v0")
    a("v_and_b32 v17, 7, v0")
    a(f"s_lshl_b32 s{sT}, s{sMT}, 7")
    a(f"s_lshl_b32 s{sT+1}, s{LW}, 5")
    a(f"s_add_u32 s{sT}, s{sT}, s{sT+1}")
    a(f"v_add_u32 v18, s{sT}, v16")
    a("v_lshlrev_b32 v18, 11, v18")
    a("v_lshrrev_b32 v19, 1, v16")
    a("v_xor_b32 v20, v19, v17")
    a("v_lshl_add_u32 v1, v20, 4, v18")
    a("v_xor_b32 v20, 4, v20")
    a("v_lshl_add_u32 v2, v20, 4, v18")
    a(f"v_add_u32 v2, {8*2048}, v2")
    a(f"v_add_u32 v3, {16*2048}, v1")
    a(f"v_add_u32 v4, {16*2048}, v2")
    a(f"s_lshl_b32 s{sT}, s{LW}, 4")
    a(f"v_add_u32 v18, s{sT}, v16")
    a("v_mul_u32_u24 v18, 6144, v18")
    a(f"s_lshl_b32 s{sT}, s{sJ}, 7")
    a(f"v_add_u32 v18, s{sT}, v18")
    a("v_bfe_u32 v19, v0, 4, 1")
    a("v_lshlrev_b32 v19, 1, v19")
    a("v_xor_b32 v19, v19, v17")
    a("v_lshl_add_u32 v5, v19, 4, v18")
    a("v_xor_b32 v19, 4, v19")
    a("v_lshl_add_u32 v6, v19, 4, v18")
    a(f"v_add_u32 v6, {8*6144}, v6")
    a(f"s_lshl_b32 s{XB_}, s{LW}, 12")
    a(f"s_lshl_b32 s{WB_}, s{LW}, 11")
    KR = 56
    SH = 57
    NS = opt.get("starts", 4)
    if opt.get("rotj", False): a(f"s_add_u32 s{KR}, s{sMT}, s{sJ}")
    else: a(f"s_mov_b32 s{KR}, s{sMT}")
    a(f"s_and_b32 s{KR}, s{KR}, {NS-1}")
    lg = NS.bit_length() - 1
    a(f"s_lshl_b32 s{KR}, s{KR}, {4 - lg}")
    a(f"s_lshr_b32 s{SH}, s{sMT}, {lg}")
    NSH = 16 // NS
    nt = lambda k: "nt" if k in opt.get("nt", "ms") else ""
    def offsets():
        a(f"s_and_b32 s{KR}, s{KR}, 15")
        a(f"s_lshl_b32 s{SX}, s{KR}, 7")
        a(f"s_mul_i32 s{SW}, s{KR}, {64*6144}")
        a(f"s_add_u32 s{SW+1}, s{SW}, 2048")
        a(f"s_add_u32 s{SW+2}, s{SW}, 4096")
        a(f"s_add_u32 s{KR}, s{KR}, 1")
    hoist = opt.get("hoist", True)
    def issue(kt, atoms=(), part=None):
        slot = (kt % 3) * SLOT
        atoms = list(atoms)
        if not (hoist and kt >= (1 if opt.get("t1late") else 2)) and (part is None or part[0] == 0): offsets()
        d = [(f"s_add_u32 m0, s{XB_}, {slot + i*1024}", f"buffer_load_dwordx4 v{1+i}, {srd(sX)}, s{SX} offen {nt('x')} lds") for i in range(4)]
        d += [(f"s_add_u32 m0, s{WB_}, {slot + WOFF + seg*8192 + i*1024}", f"buffer_load_dwordx4 v{5+i}, {srd(sWQ)}, s{SW+seg} offen {nt('w')} lds")
              for seg in range(3) for i in range(2)]
        if part: d = d[part[0]:part[1]]
        k = 0
        for i, (m, ld) in enumerate(d):
            if not (opt.get("noload") and kt > 2):
                a(m); a("s_nop 0"); a(ld)
                vm.issue(f"T{kt}")
            k2 = (i + 1) * len(atoms) // len(d)
            for at in atoms[k:k2]: at()
            k = k2
    a("s_waitcnt lgkmcnt(0)")
    ws_base(a, opt)
    a.stamp(4)
    a.trace(1, "s")
    if opt.get("lnrows", 2) == 1:
        ln_loads(a, vm, opt)
        issue(0)
        vm.wait("lnld")
        tmp = Asm(); ln_rows2(tmp, vm, 96, 112, 120, 152, 95, opt.get("dbg"), 1)
        if opt.get("dbg"): vm.issue("dbg", 2)
        issue(1, atomise(a, tmp))
    elif opt.get("t1late"):
        issue(0)
    elif opt.get("t1n", 6):
        issue(0); issue(1, part=(0, opt.get("t1n", 6)))
    else:
        issue(0); issue(1)
    a.stamp(5)
    a.trace(2, "s")
    a("v_lshrrev_b32 v16, 4, v0")
    a("v_bfe_u32 v17, v0, 2, 2")
    a("v_lshl_add_u32 v17, v16, 3, v17")
    a("v_lshlrev_b32 v17, 7, v17")
    a("v_and_b32 v18, 3, v0")
    a("v_lshl_add_u32 v17, v18, 3, v17")
    a("v_and_b32 v16, 1, v16")
    a("v_lshlrev_b32 v16, 1, v16")
    a("v_bfe_u32 v18, v0, 3, 1")
    a("v_or_b32 v16, v16, v18")
    a(f"s_mul_i32 s{sT+3}, s{SH}, 43")
    a(f"s_lshr_b32 s{sT+3}, s{sT+3}, 7")
    a(f"s_mul_i32 s{sT+3}, s{sT+3}, 3")
    a(f"s_sub_u32 s{sT+3}, s{SH}, s{sT+3}")
    a(f"s_mul_i32 s{sT+3}, s{sT+3}, {SLOT}")
    a(f"s_add_u32 s{sT+3}, s{sT+3}, {WOFF}")
    for i in range(3):
        a(f"s_and_b32 s{sT}, s{LW}, 1")
        a(f"s_mul_i32 s{sT}, s{sT}, 3")
        a(f"s_add_u32 s{sT}, s{sT}, {i}")
        a(f"s_and_b32 s{sT+1}, s{sT}, 1")
        a(f"s_and_b32 s{sT+2}, s{LW}, 2")
        a(f"s_or_b32 s{sT+1}, s{sT+1}, s{sT+2}")
        a(f"v_xor_b32 v18, s{sT+1}, v16")
        a(f"v_lshl_add_u32 v{10+i}, v18, 5, v17")
        a(f"s_lshr_b32 s{sT}, s{sT}, 1")
        a(f"s_lshl_b32 s{sT}, s{sT}, 13")
        a(f"s_add_u32 s{sT}, s{sT}, s{sT+3}")
        a(f"v_add_u32 v{10+i}, s{sT}, v{10+i}")
    for r in range(4): a(f"v_mov_b32 v{56+r}, 0x3f803f80")
    a(f"s_cmp_lg_u32 s{W}, 4")
    a(f"s_cbranch_scc1 {name}_nozero")
    publish_zeros(a, vm, 13 + 3)
    a.label(f"{name}_nozero")
    if opt.get("lprio", 0): a(f"s_setprio {opt.get('lprio', 0)}")
    KEY, TT, CAND = 28, 36, 44
    ST = sT + 8
    keys = list(range(KEY, KEY+8))
    a("s_waitcnt lgkmcnt(0)")
    if hoist and not opt.get("t1n", 6): offsets()
    a.trace(3, "s")
    vm.wait("T0")
    a.trace(4, "s")
    a("s_barrier")
    a.trace(6, "s")
    a.stamp(1)
    assert opt.get("p0", 8) <= 8
    t8a = opt.get("t8a", True)
    P0 = opt.get("p0", 8)
    cb = Asm()
    cb.label(f"{name}_colsum")
    for i in range(3):
        for ks in range(2):
            for t_ in range(2):
                cb(f"ds_read_b64_tr_b16 {vr(68+8*i+4*ks+2*t_,2)}, v{10+i} offset:{ks*4096+t_*512}")
    cb(f"s_lshl_b32 s{sT}, s{sJ}, 4")
    cb(f"s_add_u32 s{sT}, s{sT}, s{sMT}")
    cb(f"s_lshl_b32 s{sT}, s{sT}, 2")
    cb(f"s_add_u32 s{sT}, s{sT}, s{LW}")
    cb(f"s_mul_i32 s{sT}, s{sT}, 192")
    cb(f"s_add_u32 s{sT}, s{sT}, {WS_CSP}")
    cb("v_lshlrev_b32 v47, 2, v0")
    cb("s_waitcnt lgkmcnt(0)")
    for ks in range(2):
        for i in range(3):
            cb(f"v_mfma_f32_16x16x32_bf16 {vr(28+4*i,4)}, v[56:59], {vr(68+8*i+4*ks,4)}, {vr(28+4*i,4) if ks else 0}")
    cb("s_nop 7")
    cb("s_mov_b64 exec, 0xffff0000")
    cb("v_mov_b32 v28, v32")
    cb("s_bfm_b64 exec, 16, 32")
    cb("v_mov_b32 v28, v36")
    cb("s_bfm_b64 exec, 48, 0")
    cb(f"buffer_store_dword v28, v47, {srd(sWS)}, s{sT} offen sc1")
    cb("s_mov_b64 exec, -1")
    cb("s_setpc_b64 s[70:71]")
    cold.append(cb)
    def lines(fn):
        tmp = Asm(); tmp.uid = a.uid; fn(tmp); a.uid = tmp.uid
        out, grp = [], None
        for l in tmp.lines:
            s_ = l.strip()
            if grp is not None:
                grp.append(s_)
                if s_ == "s_mov_b64 exec, -1": out.append(grp); grp = None
            elif ("exec," in s_ and s_ != "s_mov_b64 exec, -1") or "saveexec" in s_: grp = [s_]
            else: out.append([s_])
        assert grp is None
        return [(lambda g=g: a(*g)) for g in out]
    def cs_load(i):
        def f():
            a(f"s_mul_i32 s{sT+2}, s{sJ}, {16*768}")
            a(f"s_mul_i32 s{sT+3}, s{LW}, 192")
            a(f"s_add_u32 s{sT+2}, s{sT+2}, s{sT+3}")
            a(f"s_add_u32 s{sT+2}, s{sT+2}, {WS_CSP}")
            a(f"buffer_load_dwordx4 {vr(60+4*i,4)}, v51, {srd(sWS)}, s{sT+2} offen offset:{i*768} sc1")
            vm.issue("csl")
        return f
    for kt in range(16):
        atoms = []
        def after_issue(kt=kt):
            if kt == 0:
                a(f"s_cmp_lg_u32 s{W}, 4")
                a(f"s_cbranch_scc1 {name}_nopub")
                publish_stats(a, vm, 16)
                a.label(f"{name}_nopub")
            if kt < NSH:
                lab = a.new_label(f"{name}_cs")
                a(f"s_cmp_lg_u32 s{SH}, {kt}")
                a(f"s_cbranch_scc1 {lab}")
                a(f"s_call_b64 s[70:71], {name}_colsum")
                a.label(lab)
                vm.issue("cs", 1, cond=True)
        def first_signal():
            a(f"s_cmp_lg_u32 s{W}, 4")
            a(f"s_cbranch_scc1 {name}_nosig")
            a(f"s_lshl_b32 s{sT}, s{sMT}, 4")
            a(f"v_mov_b32 v45, s{sT}")
            a("v_mov_b32 v46, 1")
            a("s_mov_b64 exec, 1")
            a(f"buffer_atomic_add v46, v45, {srd(sDBG)}, 0 offen sc1")
            a("s_mov_b64 exec, -1")
            a.label(f"{name}_nosig")
            vm.issue("sig", 1, cond=True)
        if kt == 2 and not opt.get("sig1", True): first_signal()
        if kt == P0:
            a("v_and_b32 v45, 15, v0")
            a("v_lshlrev_b32 v45, 4, v45")
            a(f"buffer_load_dword v46, v45, {srd(sDBG)}, 0 offen sc1")
            vm.issue("poll")
        if kt == P0 + 1:
            poll_check(a, f"{name}_p1", 46, 45, sDBG, 16, -1, cold)
            if t8a:
                a(f"s_lshl_b32 s{sT}, s{LW}, 11")
                a(f"s_add_u32 s{sT}, s{sT}, {WS_R}")
                a(f"buffer_load_dwordx4 {vr(KEY,4)}, v94, {srd(sWS)}, s{sT} offen sc1")
                a(f"buffer_load_dwordx4 {vr(KEY+4,4)}, v94, {srd(sWS)}, s{sT} offen offset:1024 sc1")
            a(f"s_lshl_b32 s{sT}, s{sMT}, 11")
            a(f"s_and_b32 s{sT+1}, s{LW}, 1")
            a(f"s_lshl_b32 s{sT+1}, s{sT+1}, 10")
            a(f"s_add_u32 s{sT}, s{sT}, s{sT+1}")
            a(f"s_add_u32 s{sT}, s{sT}, {WS_ST}")
            a("v_lshrrev_b32 v47, 3, v0")
            a("v_lshlrev_b32 v47, 7, v47")
            a("v_and_b32 v48, 7, v0")
            a("v_lshl_add_u32 v47, v48, 2, v47")
            a(f"buffer_load_dword v54, v47, {srd(sWS)}, s{sT} offen sc1")
            a(f"buffer_load_dword v55, v47, {srd(sWS)}, s{sT} offen offset:32 sc1")
            vm.issue("side", 4 if t8a else 2)
        CS0 = max(P0 + 1, NSH + 2)
        if kt == CS0:
            lab = a.new_label(f"{name}_cf")
            a(f"s_cmp_lg_u32 s{W}, 4")
            a(f"s_cbranch_scc1 {lab}")
            csf_addr(a, sT, sT+1)
            signal(a, sT, 1, 52, 53)
            a.label(lab)
            vm.issue("csf", 1, cond=True)
        if kt == CS0 + 1 + (CS0 < 10):
            csf_addr(a, sT, sT+1)
            a(f"v_mov_b32 v52, s{sT}")
            apoll(a, 53, 52)
            vm.issue("poll")
            def f(o):
                o("v_and_b32 v51, 15, v0")
                o("v_cmp_gt_u32 vcc, 12, v51")
                o("v_lshlrev_b32 v51, 4, v51")
                o("v_lshrrev_b32 v50, 4, v0")
                o("v_mul_u32_u24 v50, 4*768, v50")
                o("v_add_u32 v51, v51, v50")
                o("v_mov_b32 v50, 0x7fff0000")
                o("v_cndmask_b32 v51, v50, v51, vcc")
            atoms += lines(f)
        CS1 = CS0 + 2 + (CS0 < 10)
        if kt == CS1: acheck(a, f"{name}_p2", 53, 52, 16, 1, cold)
        if CS1 <= kt <= CS1 + 1:
            atoms += [cs_load(i) for i in ((0, 1), (2, 3))[kt - CS1]]
        if opt.get("ticket", False) and kt == 13:
            lab = a.new_label(f"{name}_tk")
            a(f"s_cmp_lg_u32 s{W}, 4")
            a(f"s_cbranch_scc1 {lab}")
            a(f"v_mov_b32 v24, {WS_TK}")
            a("v_mov_b32 v25, 1")
            a("s_mov_b64 exec, 1")
            a(f"buffer_atomic_add v25, v24, {srd(sWS)}, 0 offen sc0 sc1")
            a("s_mov_b64 exec, -1")
            a.label(lab)
            vm.issue("tk", 1, cond=True)
        if opt.get("ticket", False) and kt == 15:
            lab = a.new_label(f"{name}_tw")
            a(f"s_cmp_lg_u32 s{W}, 4")
            a(f"s_cbranch_scc1 {lab}")
            a(f"v_mov_b32 v24, {L_TK}")
            a("s_mov_b64 exec, 1")
            a("ds_write_b32 v24, v25")
            a("s_mov_b64 exec, -1")
            a.label(lab)
        if kt == 15:
            a(f"s_and_b32 s{sT}, s{LW}, 1")
            a(f"s_lshl_b32 s{sT}, s{sT}, 8")
            a(f"s_add_u32 s{sT}, s{sT}, {L_M}")
            a("v_lshlrev_b32 v47, 2, v0")
            a(f"v_add_u32 v47, s{sT}, v47")
            a("ds_write_b32 v47, v54")
            a("ds_write_b32 v47, v55 offset:512")
        if kt == P0 + 2:
            def f(o):
                if t8a:
                    o(f"s_lshl_b32 s{sT}, s{LW}, 9")
                    o("v_lshlrev_b32 v47, 2, v0")
                    o(f"v_add_u32 v47, s{sT}, v47")
                    make_keys(o, KEY, TT, 47, [0, 1, 2, 3, 256, 257, 258, 259])
                    o(f"v_mov_b32 v{CAND}, 0")
                    top8_round(o, keys, TT, CAND, ST, 0)
            atoms += lines(f)
        if t8a and P0 + 3 <= kt <= P0 + 6:
            rr = ((1, 2), (3, 4), (5, 6), (7,))[kt - P0 - 3]
            atoms += lines(lambda o: [top8_round(o, keys, TT, CAND, ST, r) for r in rr])
        def late_top8(kt=kt):
            if t8a and kt == 14:
                a(f"s_lshl_b32 s{sT}, s{LW}, 5")
                a(f"s_add_u32 s{sT}, s{sT}, {L_CAND}")
                a("v_lshlrev_b32 v47, 2, v0")
                a(f"v_add_u32 v47, s{sT}, v47")
                a("s_mov_b64 exec, 0xff")
                a(f"ds_write_b32 v47, v{CAND}")
                a("s_mov_b64 exec, -1")
                a("s_waitcnt lgkmcnt(0)")
        if t8a and kt == 15:
            a("v_and_b32 v46, 31, v0")
            a("v_lshlrev_b32 v46, 2, v46")
            a(f"v_add_u32 v46, {L_CAND}, v46")
            a(f"ds_read_b32 v{KEY}, v46")
        if kt == 15:
            vm.wait("csl")
            for i in range(1, 4):
                for r in range(4): a(f"v_add_f32 v{60+r}, v{60+r}, v{60+4*i+r}")
            a("s_nop 1")
            a("v_permlane32_swap_b32 v60, v62")
            a("v_permlane32_swap_b32 v61, v63")
            a("v_add_f32 v60, v60, v62")
            a("v_add_f32 v61, v61, v63")
            a("s_nop 1")
            a("v_permlane16_swap_b32 v60, v61")
            a("v_add_f32 v60, v60, v61")
            a("v_and_b32 v47, 15, v0")
            a("v_cmp_gt_u32 vcc, 12, v47")
            a("v_lshlrev_b32 v47, 4, v47")
            a("v_lshrrev_b32 v50, 4, v0")
            a("v_lshl_add_u32 v47, v50, 2, v47")
            a(f"s_mul_i32 s{sT}, s{LW}, 192")
            a(f"s_add_u32 s{sT}, s{sT}, {L_CS}")
            a(f"v_add_u32 v47, s{sT}, v47")
            a("s_and_saveexec_b64 s[66:67], vcc")
            a("ds_write_b32 v47, v60")
            a("s_mov_b64 exec, -1")
        PN, KS = opt.get("t1n", 6), opt.get("ks", 1)
        if kt < KS and PN:
            issue(kt+1, part=(PN, 10)); offsets()
        if kt == 0 and opt.get("t1late"):
            issue(1); offsets()
        if kt <= 13 and kt + 1 < KS and PN: issue(kt+2, atoms, part=(0, PN))
        elif kt <= 13: issue(kt+2, atoms)
        else:
            for at in atoms: at()
        after_issue()
        if hoist and kt < 13 and not (kt + 1 < opt.get("ks", 1) and opt.get("t1n", 6)): offsets()
        a("s_waitcnt lgkmcnt(0)")
        a.trace(3*kt+1)
        if kt < 15: vm.wait(f"T{kt+1}", "poll", "side", *(["st"] if kt == 1 else []), *(["cs"] if kt == NSH + 1 else []))
        late_top8()
        if kt == 1 and opt.get("sig1", True): first_signal()
        a.trace(3*kt+2)
        a("s_barrier")
        a.trace(3*kt+3)
    def merge8():
        if t8a:
            a("v_cmp_gt_u32 vcc, 32, v0")
            a("s_nop 1")
            a(f"v_cndmask_b32 v{KEY}, 0, v{KEY}, vcc")
            SA, SP = 58, 66
            if not opt.get("rank", True):
                for r in range(8): top8_round(a, [KEY], TT, CAND, ST, r)
                a(f"v_mov_b32 v{KEY}, v{CAND}")
                a(f"v_mov_b32 v{TT+3}, v0")
            else: a(f"v_mov_b32 v{TT+3}, 0")
            for j in range(32 + 4 if opt.get("rank", True) else 0):
                if j < 32: a(f"v_readlane_b32 s{SA + j % 4}, v{KEY}, {j}")
                if 2 <= j < 34: a(f"v_cmp_gt_u32 s[{SP + 2*(j % 2)}:{SP + 2*(j % 2) + 1}], s{SA + (j-2) % 4}, v{KEY}")
                if 3 <= j < 35: a(f"v_addc_co_u32 v{TT+3}, s[70:71], 0, v{TT+3}, s[{SP + 2*((j-1) % 2)}:{SP + 2*((j-1) % 2) + 1}]")
                if j >= 32: a("s_nop 0")
            decode_keys(a, KEY, 48, 49, TT)
            a(f"v_cmp_gt_u32 vcc, 8, v{TT+3}")
            a(f"v_lshlrev_b32 v46, 2, v{TT+3}")
            a(f"v_add_u32 v47, {L_IDX}, v46")
            a("s_mov_b32 exec_lo, vcc_lo")
            a("s_mov_b32 exec_hi, 0")
            a("ds_write_b32 v47, v48")
            a("ds_write_b32 v47, v49 offset:32")
            if opt.get("dbg"):
                a(f"s_mov_b32 s{sT}, {WS_IDX}")
                a(f"buffer_store_dword v48, v46, {srd(sWS)}, s{sT} offen")
                a(f"buffer_store_dword v49, v46, {srd(sWS)}, s{sT} offen offset:32")
                a(f"s_lshl_b32 s{sT}, s2, 2")
                a(f"s_add_u32 s{sT}, s{sT}, s{LW}")
                a(f"s_lshl_b32 s{sT}, s{sT}, 5")
                a(f"s_add_u32 s{sT}, s{sT}, {WS_DBG}")
                a(f"buffer_store_dword v48, v46, {srd(sWS)}, s{sT} offen")
            a("s_mov_b64 exec, -1")
    mlate = opt.get("mlate", False)
    a.trace(1, "w")
    if not mlate: merge8()
    a.trace(2, "w")
    a(f"s_lshl_b32 s{sT}, s{LW}, 13")
    a(f"v_add_u32 v2, s{sT}, v94")
    a(f"s_lshl_b32 s{sT+1}, s{sJ}, 1")
    a(f"s_lshr_b32 s{sT+2}, s{LW}, 1")
    a(f"s_add_u32 s{sT+1}, s{sT+1}, s{sT+2}")
    a(f"s_lshl_b32 s{sT+1}, s{sT+1}, 5")
    a(f"s_lshl_b32 s{sT+2}, s{sMT}, 1")
    a(f"s_add_u32 s{sT+1}, s{sT+1}, s{sT+2}")
    a(f"s_and_b32 s{sT+2}, s{LW}, 1")
    a(f"s_add_u32 s{sT+1}, s{sT+1}, s{sT+2}")
    a(f"s_lshl_b32 s{sT+1}, s{sT+1}, 13")
    a(f"s_add_u32 s{sT+1}, s{sT+1}, {WS_KV}")
    a(f"s_add_u32 s{sT+2}, s{sT+1}, 4096")
    for part in (((0, 1, 4, 5), (2, 3, 6, 7)) if opt.get("ksplit", True) else (tuple(range(8)),)):
        a("s_waitcnt lgkmcnt(0)")
        a.trace(3 + 2*(part[0] == 2), "w")
        a("s_barrier")
        a.trace(4 + 2*(part[0] == 2), "w")
        for q in part: a(f"ds_read_b128 {vr(96+4*q,4)}, v2 offset:{q*1024}")
        for k_, q in enumerate(part):
            a(f"s_waitcnt lgkmcnt({len(part)-1-k_})")
            a(f"buffer_store_dwordx4 {vr(96+4*q,4)}, v94, {srd(sWS)}, s{sT+1+(q>>2)} offen offset:{(q&3)*1024} {opt.get('kvf', 'sc1')}")
    if mlate: merge8()
    a("s_waitcnt lgkmcnt(0)")
    a.trace(7, "w")
    return vm

ACC, B0 = 96, 8
def accreg(ct, tt): return ACC + 16*ct + 4*tt

def phaseA_consumer(a, name, cold, opt):
    vm = VM(a)
    XA, WA = 1, 3
    a("s_waitcnt lgkmcnt(0)")
    ws_base(a, opt)
    a.stamp(4)
    a.trace(1, "s")
    ln_loads(a, vm, opt, 16, 32)
    a.trace(2, "s")
    wt = opt.get("wtouch", 0)
    if wt and opt.get("starts", 4) == 4 and not opt.get("rotj", False):
        a("v_and_b32 v8, 7, v0")
        a(f"s_lshr_b32 s{sT}, s{sMT}, 2")
        a(f"s_and_b32 s{sT}, s{sT}, 1")
        a(f"s_lshl_b32 s{sT}, s{sT}, 5")
        a(f"s_lshl_b32 s{sT+1}, s{W}, 3")
        a(f"s_add_u32 s{sT}, s{sT}, s{sT+1}")
        a(f"s_and_b32 s{sT+1}, s{sMT}, 3")
        a(f"s_lshl_b32 s{sT+1}, s{sT+1}, 8")
        a(f"s_add_u32 s{sT}, s{sT}, s{sT+1}")
        a(f"v_add_u32 v8, s{sT}, v8")
        a("v_lshrrev_b32 v9, 5, v0")
        a("v_lshl_add_u32 v8, v9, 6, v8")
        a("v_mul_u32_u24 v8, 6144, v8")
        a("v_bfe_u32 v9, v0, 3, 2")
        a("v_cmp_gt_u32 vcc, 3, v9")
        a("v_lshl_add_u32 v8, v9, 11, v8")
        a(f"s_lshl_b32 s{sT}, s{sJ}, 7")
        a(f"v_add_u32 v8, s{sT}, v8")
        a("v_mov_b32 v9, 0x7fff0000")
        a("v_cndmask_b32 v8, v9, v8, vcc")
        for t0 in range(1, wt + 1, 2):
            a(f"s_mov_b32 s{sT}, {t0*64*6144}")
            if t0 == wt: a("s_bfm_b64 exec, 32, 0")
            a(f"buffer_load_dword v{251+t0//2}, v8, {srd(sWQ)}, s{sT} offen")
            a("s_mov_b64 exec, -1")
            vm.issue("wt")
    if opt.get("cpf", True):
        a(f"s_cmp_lg_u32 s{W}, 0")
        a(f"s_cbranch_scc1 {name}_nocpf")
        a(f"s_getpc_b64 s[{sT+8}:{sT+9}]")
        a.label(f"{name}_pc")
        a(f"s_sub_u32 s{sT+8}, s{sT+8}, {name}_pc-{name}")
        a(f"s_subb_u32 s{sT+9}, s{sT+9}, 0")
        a(f"s_lshl_b32 s{sT}, s{sLI}, 4")
        a("v_and_b32 v8, 15, v0")
        a(f"v_add_u32 v8, s{sT}, v8")
        a("v_lshlrev_b32 v8, 7, v8")
        a(f"v_min_u32 v8, {name}_end-{name}-4, v8")
        a(f"global_load_dword v250, v8, s[{sT+8}:{sT+9}]")
        a.label(f"{name}_nocpf")
        vm.issue("cpf", 1, cond=True)
    WM, WN = 52, 53
    a(f"s_lshr_b32 s{WM}, s{W}, 1")
    a(f"s_and_b32 s{WN}, s{W}, 1")
    a("v_and_b32 v8, 15, v0")
    a("v_lshrrev_b32 v9, 4, v0")
    a(f"s_lshl_b32 s{sT}, s{WM}, 6")
    a(f"v_add_u32 v10, s{sT}, v8")
    a("v_lshlrev_b32 v10, 7, v10")
    a("v_bfe_u32 v11, v0, 1, 3")
    a("v_xor_b32 v11, v11, v9")
    a(f"v_lshl_add_u32 v{XA}, v11, 4, v10")
    a(f"v_xor_b32 v{XA+1}, 64, v{XA}")
    a("v_bfe_u32 v10, v0, 2, 2")
    a("v_lshl_add_u32 v10, v9, 3, v10")
    a("v_lshlrev_b32 v10, 7, v10")
    a("v_and_b32 v11, 3, v0")
    a("v_lshl_add_u32 v10, v11, 3, v10")
    a("v_and_b32 v11, 1, v9")
    a("v_lshlrev_b32 v11, 1, v11")
    a("v_bfe_u32 v12, v0, 3, 1")
    a("v_or_b32 v11, v11, v12")
    a(f"s_lshl_b32 s{sT}, s{WN}, 1")
    a(f"v_xor_b32 v11, s{sT}, v11")
    a("v_lshl_add_u32 v10, v11, 5, v10")
    a(f"v_add_u32 v{WA}, {WOFF}, v10")
    a(f"v_xor_b32 v{WA+1}, 32, v{WA}")
    for r in range(96): a(f"v_mov_b32 v{ACC+r}, 0")
    a.stamp(5)
    a.trace(3, "s")
    vm.wait("lnld")
    a.stamp(6)
    a.trace(4, "s")
    assert WS_XN == 0
    ln_rows2(a, vm, 16, 32, 40, 72, 95, opt.get("dbg"), opt.get("lnrows", 2))
    a.trace(5, "s")
    def reads(buf, ks):
        b = B0 + 40*buf
        xr = [f"ds_read_b128 {vr(b+4*tt,4)}, v{XA+ks} offset:{tt*2048}" for tt in range(4)]
        wr = [f"ds_read_b64_tr_b16 {vr(b+16+4*ct+2*t,2)}, v{WA+(ct&1)} offset:{(ct>>1)*8192+ks*4096+t*512}" for ct in range(6) for t in range(2)]
        return [xr[0]] + wr[0:2] + xr[1:4] + wr[2:]
    def mfmas(buf):
        b = B0 + 40*buf
        o = []
        for ct in range(6):
            for tt in range(4):
                x = vr(b+4*tt, 4); w = vr(b+16+4*ct, 4)
                A, B = (w, x) if ct < 4 else (x, w)
                o.append(f"v_mfma_f32_16x16x32_bf16 {vr(accreg(ct,tt),4)}, {A}, {B}, {vr(accreg(ct,tt),4)}")
        return o
    KT, SI, DL, NEG = 48, 49, 50, 51
    pf = opt.get("pf", False)
    PD, PO, PV = 56, 54, 5
    if pf:
        for q in range(3):
            a(f"s_cmp_eq_u32 s{W}, 0")
            a(f"s_cselect_b32 s{PD+q}, s{sWG+q}, s{sWU+q}")
            a(f"s_cmp_eq_u32 s{W}, 2")
            a(f"s_cselect_b32 s{PD+q}, s{sWD+q}, s{PD+q}")
            a(f"s_cmp_eq_u32 s{W}, 3")
            a(f"s_cselect_b32 s{PD+q}, s{sWO+q}, s{PD+q}")
        a(f"s_mov_b32 s{PD+3}, 0x00020000")
        a(f"s_cselect_b32 s{PO}, 8192, 28672 + 0" if False else f"s_movk_i32 s{PO}, 0x7000")
        a(f"s_cselect_b32 s{PO}, 0x2000, s{PO}")
        a(f"s_mul_i32 s{PO}, s{PO}, s2")
        a(f"s_sub_u32 s{PO}, s{PO}, {opt.get('pf0', 2)*2048}")
        a(f"v_lshlrev_b32 v{PV}, 7, v0")
        a("v_cmp_gt_u32 vcc, 16, v0")
        a("v_mov_b32 v6, 0x7fff0000")
        a("s_nop 0")
        a(f"v_cndmask_b32 v{PV}, v6, v{PV}, vcc")
        if opt.get("pfm", 15) != 15:
            a(f"s_lshr_b32 s{sT}, {opt['pfm']}, s{W}")
            a(f"s_and_b32 s{sT}, s{sT}, 1")
            a(f"s_cselect_b32 s{PD+2}, s{PD+2}, 0")
    a(f"s_mov_b32 s{KT}, 0")
    a(f"s_mov_b32 s{SI}, 0")
    a(f"s_mov_b32 s{NEG}, {(-2*SLOT) & 0xffffffff:#x}")
    a("s_waitcnt lgkmcnt(0)")
    if opt.get("cprio"): a(f"s_setprio {opt['cprio']}")
    a("s_barrier")
    a.stamp(1); a.cstamp(7)
    a(*reads(0, 0))
    a(".p2align 6")
    a.label(f"{name}_cloop")
    per = opt.get("rpg", 1)
    skip = opt.get("rskip", 0)
    if opt.get("nods"): reads = lambda buf, ks: []
    fine = opt.get("fine", False)
    def weave(m, r, extra, first=0, pend=16):
        i = 0
        for k, x in enumerate(m):
            kk = k + first
            if fine and kk % 4 == 0 and kk > 0:
                need = 6 + 2*(kk // 4)
                a(f"s_waitcnt lgkmcnt({min(15, pend - need + i)})")
            a(x)
            if k < skip: continue
            a(*r[i:i+per]); i = min(len(r), i + per)
            if i >= len(r) and k >= len(r) // per and extra: a(extra.pop(0))
    U = opt.get("cunroll", 2)
    barpos = opt.get("barpos", 2)
    for u in range(U):
        m = mfmas(0); r = reads(1, 1)
        a(f"s_add_u32 s{SI}, s{SI}, 1")
        a(f"s_cmp_eq_u32 s{SI}, 3")
        a(f"s_cselect_b32 s{DL}, s{NEG}, {SLOT}")
        a(f"s_cselect_b32 s{SI}, 0, s{SI}")
        ctr = opt.get("ctrace")
        if ctr: a("s_memtime s[76:77]")
        a(f"s_waitcnt lgkmcnt({10 if fine else 0})")
        ex = [f"v_add_u32 v{q}, s{DL}, v{q}" for q in (1, 2, 3, 4)]
        if ctr: ex = [f"s_lshl_b32 m0, s{KT}, 2", "v_writelane_b32 v255, s76, m0"] + ex
        weave(m, r, ex)
        m = mfmas(1); r = reads(0, 0)
        if ctr: a("s_memtime s[76:77]")
        a("s_waitcnt lgkmcnt(0)")
        a(*m[:barpos])
        if ctr:
            a("s_add_u32 m0, m0, 1")
            a("v_writelane_b32 v255, s76, m0")
            a("s_memtime s[78:79]")
        a("s_barrier")
        if ctr:
            a("s_memtime s[76:77]")
            a("s_waitcnt lgkmcnt(0)")
            a("s_add_u32 m0, m0, 1")
            a("v_writelane_b32 v255, s78, m0")
            a("s_add_u32 m0, m0, 1")
            a("v_writelane_b32 v255, s76, m0")
        if pf:
            a(f"s_cmp_lt_u32 s{KT}, {opt.get('pf0', 2)}")
            a(f"s_cselect_b32 s{sT}, 0x7fff0000, s{PO}")
            a(f"buffer_load_dword v254, v{PV}, {srd(PD)}, s{sT} offen")
            a(f"s_add_u32 s{PO}, s{PO}, 2048")
        fine_, fine = fine, False
        weave(m[barpos:], r, [f"s_add_u32 s{KT}, s{KT}, 1", f"s_cmp_lt_u32 s{KT}, 16"])
        fine = fine_
    a(f"s_cbranch_scc1 {name}_cloop")
    vm.q = []
    if opt.get("cprio"): a("s_setprio 0")
    a.stamp(2); a.cstamp(8)
    MR, CSQ, MV, RV, CSV, QR, AD, PK = 8, 16, 32, 48, 64, 66, 74, 78
    a.trace(1, "w")
    if not opt.get("t8a", True):
        a(f"s_lshl_b32 s{sT}, s{W}, 11")
        a(f"s_add_u32 s{sT}, s{sT}, {WS_R}")
        a(f"buffer_load_dwordx4 {vr(RKEY,4)}, v94, {srd(sWS)}, s{sT} offen sc1")
        a(f"buffer_load_dwordx4 {vr(RKEY+4,4)}, v94, {srd(sWS)}, s{sT} offen offset:1024 sc1")
    a("s_waitcnt lgkmcnt(0)")
    a("v_and_b32 v1, 15, v0")
    a("v_lshrrev_b32 v2, 4, v0")
    a(f"s_lshl_b32 s{sT}, s{WM}, 8")
    a(f"s_add_u32 s{sT}, s{sT}, {L_M}")
    a(f"s_mul_i32 s{sT+1}, s{WN}, 384")
    a(f"s_add_u32 s{sT+1}, s{sT+1}, {L_CS}")
    a("v_lshlrev_b32 v3, 2, v1")
    a(f"v_add_u32 v4, s{sT}, v3")
    for tt in range(4):
        a(f"ds_read_b32 v{MR+2*tt}, v4 offset:{tt*64}")
        a(f"ds_read_b32 v{MR+2*tt+1}, v4 offset:{tt*64+512}")
    a("v_lshlrev_b32 v5, 4, v2")
    a(f"v_add_u32 v6, s{sT+1}, v5")
    for ct in range(4): a(f"ds_read_b128 {vr(CSQ+4*ct,4)}, v6 offset:{ct*64}")
    a(f"v_add_u32 v6, s{sT}, v5")
    a(f"v_add_u32 v3, s{sT+1}, v3")
    a(f"ds_read_b32 v{CSV}, v3 offset:256")
    a(f"ds_read_b32 v{CSV+1}, v3 offset:320")
    for tt in range(4):
        a(f"ds_read_b128 {vr(MV+4*tt,4)}, v6 offset:{tt*64}")
        a(f"ds_read_b128 {vr(RV+4*tt,4)}, v6 offset:{tt*64+512}")
    a("v_lshrrev_b32 v3, 1, v2")
    a("v_and_b32 v4, 1, v2")
    a("v_lshl_add_u32 v5, v3, 5, v1")
    a("v_lshlrev_b32 v5, 4, v5")
    a("v_lshl_add_u32 v5, v4, 3, v5")
    a("v_lshl_add_u32 v6, v4, 5, v1")
    a("v_lshlrev_b32 v6, 4, v6")
    a("v_lshl_add_u32 v6, v3, 3, v6")
    a(f"s_lshl_b32 s{sT}, s{WN}, 1")
    a(f"s_add_u32 s{sT}, s{sT}, s{WM}")
    a(f"s_lshl_b32 s{sT}, s{sT}, 13")
    a(f"v_add_u32 v{AD}, s{sT}, v5")
    a(f"v_add_u32 v{AD+1}, s{sT}, v6")
    a(f"s_lshr_b32 s{sT}, s{sT}, 1")
    a(f"s_add_u32 s{sT}, s{sT}, {L_Q}")
    a(f"v_add_u32 v{AD+2}, s{sT}, v5")
    a(f"s_mov_b32 s{sT+1}, {QSCALE:#x}")
    a("s_waitcnt lgkmcnt(10)")
    for tt in range(4):
        a(f"v_mul_f32 v{QR+2*tt+1}, s{sT+1}, v{MR+2*tt+1}")
    n = 0
    def fin(ct, tt):
        nonlocal n
        r = accreg(ct, tt)
        p = PK + 2*(n % 4); n += 1
        for hf in range(2):
            pr = vr(r+2*hf, 2)
            if ct < 4:
                a(f"v_pk_fma_f32 {pr}, {vr(CSQ+4*ct+2*hf,2)}, {vr(MR+2*tt,2)}, {pr} op_sel_hi:[1,0,1] neg_lo:[0,1,0] neg_hi:[0,1,0]")
                sc = QR if ct < 2 else MR
                a(f"v_pk_mul_f32 {pr}, {pr}, {vr(sc+2*tt,2)} op_sel:[0,1] op_sel_hi:[1,1]")
            else:
                sel = "op_sel_hi:[1,0,1]" if ct == 4 else "op_sel:[0,1,0] op_sel_hi:[1,1,1]"
                a(f"v_pk_fma_f32 {pr}, {vr(MV+4*tt+2*hf,2)}, {vr(CSV,2)}, {pr} {sel} neg_lo:[0,1,0] neg_hi:[0,1,0]")
                a(f"v_pk_mul_f32 {pr}, {pr}, {vr(RV+4*tt+2*hf,2)}")
            a(f"v_cvt_pk_bf16_f32 v{p+hf}, v{r+2*hf}, v{r+2*hf+1}")
        if ct < 2:   a(f"ds_write_b64 v{AD+2}, {vr(p,2)} offset:{(tt>>1)*2048 + ct*1024 + (tt&1)*256}")
        elif ct < 4: a(f"ds_write_b64 v{AD}, {vr(p,2)} offset:{(tt>>1)*4096 + (ct-2)*1024 + (tt&1)*256}")
        else:        a(f"ds_write_b64 v{AD+1}, {vr(p,2)} offset:{(tt>>1)*4096 + 2048 + (tt&1)*1024 + (ct-4)*256}")
    a("s_waitcnt lgkmcnt(0)")
    a.trace(2, "w")
    for ct in (2, 3):
        for tt in range(4): fin(ct, tt)
    if opt.get("ksplit", True):
        a("s_waitcnt lgkmcnt(0)")
        a.trace(3, "w")
        a("s_barrier")
        a.trace(4, "w")
    for ct in (4, 5):
        for tt in range(4): fin(ct, tt)
    a("s_waitcnt lgkmcnt(0)")
    a.trace(5, "w")
    a("s_barrier")
    a.trace(6, "w")
    for ct in (0, 1):
        for tt in range(4): fin(ct, tt)
    a("s_waitcnt lgkmcnt(0)")
    a.trace(7, "w")
    return vm

def publish_kv(a, vm, R, opt):
    a(f"v_lshlrev_b32 v{R.VL}, 4, v0")
    a(f"s_and_b32 s{sT+1}, s{W}, 1")
    a(f"s_lshl_b32 s{sT+1}, s{sT+1}, 1")
    a(f"s_bfe_u32 s{sT+2}, s{W}, 0x10001")
    a(f"s_add_u32 s{sT+1}, s{sT+1}, s{sT+2}")
    a(f"s_lshl_b32 s{sT+1}, s{sT+1}, 12")
    a(f"s_add_u32 s{sT+1}, s{sT+1}, {L_Q}")
    a(f"v_add_u32 v3, s{sT+1}, v{R.VL}")
    for q in range(4): a(f"ds_read_b128 {vr(R.Q+4*q,4)}, v3 offset:{q*1024}")
    if opt.get("dbg"):
        a("s_waitcnt lgkmcnt(0)")
        head_of(a, sT+1, sT+2)
        a(f"s_lshl_b32 s{sT+1}, s{sT+1}, 6")
        a(f"s_lshl_b32 s{sT+2}, s{sMT}, 2")
        a(f"s_add_u32 s{sT+1}, s{sT+1}, s{sT+2}")
        a(f"s_and_b32 s{sT+2}, s{W}, 2")
        a(f"s_add_u32 s{sT+1}, s{sT+1}, s{sT+2}")
        a(f"s_lshl_b32 s{sT+1}, s{sT+1}, 11")
        a(f"s_add_u32 s{sT+1}, s{sT+1}, {WS_Q}")
        for q in range(4):
            a(f"buffer_store_dwordx4 {vr(R.Q+4*q,4)}, v{R.VL}, {srd(sWS)}, s{sT+1} offen offset:{q*1024}")
        vm.drain()

def gen_fused(name, **opt):
    a = Asm(); cold = []
    TICKET[0] = False
    R = AT.AttnRegs
    prologue(a, name, opt)
    a(f"s_cmp_ge_u32 s{W}, 4")
    a(f"s_cbranch_scc1 {name}_loader")
    phaseA_consumer(a, name, cold, opt)
    a(f"s_branch {name}_joinA")
    a.label(f"{name}_loader")
    phaseA_loader(a, name, cold, opt)
    a.stamp(2)
    a("s_setprio 0")
    a.label(f"{name}_joinA")
    a("s_barrier")
    a.stamp(3)
    a.trace(8, "w")
    if opt.get("dbgtime"): a("s_memrealtime s[94:95]")
    vm = VM(a)
    publish_kv(a, vm, R, opt)
    if opt.get("stop") != "A":
        import fused_bc
        fused_bc.phaseB(a, name, cold, opt, vm)
        if opt.get("stop") != "B":
            fused_bc.phaseC(a, name, cold, opt, vm)
    if opt.get("xprobe"):
        a("s_waitcnt vmcnt(0) lgkmcnt(0)")
        a(f"s_cmp_lg_u32 s{W}, 0")
        a(f"s_cbranch_scc1 {name}_done")
        a("s_getreg_b32 s76, hwreg(HW_REG_XCC_ID, 0, 4)")
        a("s_add_u32 s76, s76, 1")
        a("v_mov_b32 v1, 4")
        a("v_mov_b32 v2, s76")
        a("s_mov_b64 exec, 1")
        a(f"s_cmp_lg_u32 s2, {opt['xprobe']}")
        a(f"s_cbranch_scc1 {name}_xp0")
        a(f"buffer_atomic_add v2, v1, {srd(sDBG)}, 0 offen sc1")
        a("s_waitcnt vmcnt(0)")
        a("s_endpgm")
        a.label(f"{name}_xp0")
        a("s_cmp_lg_u32 s2, 0")
        a(f"s_cbranch_scc1 {name}_done")
        a("s_mov_b32 s78, 0")
        a.label(f"{name}_xp1")
        a("v_mov_b32 v2, 0")
        a(f"buffer_atomic_add v2, v1, {srd(sDBG)}, 0 offen sc0 sc1")
        a("s_add_u32 s78, s78, 1")
        a("s_cmp_gt_u32 s78, 100000")
        a(f"s_cbranch_scc1 {name}_done")
        a("s_waitcnt vmcnt(0)")
        a("v_readfirstlane_b32 s77, v2")
        a("s_nop 3")
        a("s_cmp_eq_u32 s77, 0")
        a(f"s_cbranch_scc1 {name}_xp1")
        a("s_cmp_eq_u32 s77, s76")
        a(f"s_cbranch_scc1 {name}_done")
        a("s_memrealtime s[80:81]")
        a("s_waitcnt lgkmcnt(0)")
        a.label(f"{name}_xp2")
        a("s_memrealtime s[78:79]")
        a("s_waitcnt lgkmcnt(0)")
        a("s_sub_u32 s78, s78, s80")
        a("s_cmp_lt_u32 s78, 4000")
        a(f"s_cbranch_scc1 {name}_xp2")
    if opt.get("probe"):
        i_, j_ = opt["probe"]
        a("s_waitcnt vmcnt(0) lgkmcnt(0)")
        a.stamp(9)
        a("s_waitcnt lgkmcnt(0)")
        a(f"s_or_b32 s76, s81, s{W}")
        a(f"s_cmp_lg_u32 s76, 0")
        a(f"s_cbranch_scc1 {name}_done")
        a(f"s_sub_u32 s76, s{82+2*j_}, s{82+2*i_}")
        a("s_lshl_b32 s76, s76, 2")
        a.label(f"{name}_probe")
        a("s_memrealtime s[78:79]")
        a("s_waitcnt lgkmcnt(0)")
        a("s_sub_u32 s78, s78, s100")
        a("s_cmp_lt_u32 s78, s76")
        a(f"s_cbranch_scc1 {name}_probe")
    else:
        a.stamp_dump(opt.get("kid", 0), W)
    if opt.get("dbgtime"):
        a("s_waitcnt vmcnt(0)")
        a("s_memrealtime s[98:99]")
        a("s_waitcnt lgkmcnt(0)")
        a("s_not_b32 s96, s96")
        a("v_mov_b32 v1, 4")
        a("v_mov_b32 v2, s96")
        a("v_mov_b32 v3, s98")
        a("v_mov_b32 v4, s94")
        a(f"s_cmp_lg_u32 s{W}, 0")
        a(f"s_cbranch_scc1 {name}_done")
        a("s_mov_b64 exec, 1")
        a(f"buffer_atomic_umax v2, v1, {srd(sDBG)}, 0 offen sc1")
        a(f"buffer_atomic_umax v3, v1, {srd(sDBG)}, 0 offen offset:4 sc1")
        a(f"buffer_atomic_umax v4, v1, {srd(sDBG)}, 0 offen offset:8 sc1")
        a("s_mov_b64 exec, -1")
    a.label(f"{name}_done")
    a("s_endpgm")
    for c in cold: a.lines += c.lines
    a.label(f"{name}_end")
    a("s_endpgm")
    return kernel_header(name) + a.text() + kernel_desc(name, 256, 102)

def xsel_fetch(a, vm, vidx, XR, XST, n=1):
    for i in range(n):
        a(f"s_mul_i32 s{sT+2}, s{W}, {n}")
        a(f"s_add_u32 s{sT+2}, s{sT+2}, {i}")
        a(f"v_readlane_b32 s{sT}, v{vidx}, s{sT+2}")
        a("s_nop 3")
        a(f"s_lshl_b32 s{sT+1}, s{sT}, 11")
        a(f"buffer_load_dwordx4 {vr(XR+8*i,4)}, v1, {srd(sX)}, s{sT+1} offen")
        a(f"buffer_load_dwordx4 {vr(XR+8*i+4,4)}, v1, {srd(sX)}, s{sT+1} offen offset:1024")
        a(f"s_lshr_b32 s{sT+1}, s{sT}, 3")
        a(f"s_lshl_b32 s{sT+1}, s{sT+1}, 5")
        a(f"s_and_b32 s{sT}, s{sT}, 7")
        a(f"s_add_u32 s{sT}, s{sT}, s{sT+1}")
        a(f"s_lshl_b32 s{sT}, s{sT}, 2")
        a(f"s_add_u32 s{sT}, s{sT}, {WS_ST}")
        a(f"v_mov_b32 v{XST+2*i+1}, s{sT}")
        a(f"buffer_load_dword v{XST+2*i}, v{XST+2*i+1}, {srd(sWS)}, 0 offen sc1")
        a(f"buffer_load_dword v{XST+2*i+1}, v{XST+2*i+1}, {srd(sWS)}, 0 offen offset:32 sc1")
    vm.issue("xsel", 4*n)

def xsel_normalise(a, T, XR, XST, n=1, pk=True):
    XF = T + 2
    a(f"v_lshrrev_b32 v{T}, 2, v0")
    a(f"v_lshlrev_b32 v{T}, 9, v{T}")
    a(f"v_and_b32 v{T+1}, 3, v0")
    a(f"v_lshl_add_u32 v{T}, v{T+1}, 7, v{T}")
    a(f"s_lshl_b32 s{sT}, s{W}, {3+n}")
    a(f"s_add_u32 s{sT}, s{sT}, {L_XS}")
    a(f"v_add_u32 v{T}, s{sT}, v{T}")
    for i in range(n):
        for p in range(8):
            x = XR + 8*i + p
            f0, f1 = XF + 2*(p & 1), XF + 2*(p & 1) + 1
            a(f"v_lshlrev_b32 v{f0}, 16, v{x}")
            a(f"v_and_b32 v{f1}, 0xffff0000, v{x}")
            if pk: a(f"v_pk_add_f32 {vr(f0,2)}, {vr(f0,2)}, {vr(XST+2*i,2)} op_sel_hi:[1,0] neg_lo:[0,1] neg_hi:[0,1]")
            else: a(f"v_sub_f32 v{f0}, v{f0}, v{XST+2*i}", f"v_sub_f32 v{f1}, v{f1}, v{XST+2*i}")
            a(f"v_cvt_pk_bf16_f32 v{x}, v{f0}, v{f1}")
            a(f"v_lshlrev_b32 v{f0}, 16, v{x}")
            a(f"v_and_b32 v{f1}, 0xffff0000, v{x}")
            if pk: a(f"v_pk_mul_f32 {vr(f0,2)}, {vr(f0,2)}, {vr(XST+2*i,2)} op_sel:[0,1] op_sel_hi:[1,1]")
            else: a(f"v_mul_f32 v{f0}, v{f0}, v{XST+2*i+1}", f"v_mul_f32 v{f1}, v{f1}, v{XST+2*i+1}")
            a(f"v_cvt_pk_bf16_f32 v{x}, v{f0}, v{f1}")
        a(f"ds_write_b128 v{T}, {vr(XR+8*i,4)} offset:{16*i}")
        a(f"ds_write_b128 v{T}, {vr(XR+8*i+4,4)} offset:{16*i+8192}")
```

```python
from asmlib import *
from asmlib import DIAG, TRACE
from layout import *
from fused import *
import fused as FU
from k_attn import M32, M16
import k_attn2 as AT
from k_attn2 import SM
from k_attn3 import Regs3
from k_moe import pi_row, round_bf16
from k_top8 import make_keys, decode_keys

L_S1, L_S2, L_EX, L_LX, L_HI = 32768, 131072, 131072, 129024, 159744
KH, HB, KA, KBK, VA, VBK, MASK, NEED, RET, S1O, HASJ, S2O, WOO, WOM = 48, 49, 50, 51, 52, 53, 54, 55, 56, 58, 59, 60, 61, 62
XSF, MACC, VFR, VD1, VD2, VP, VPA, VT = 220, 236, 243, 244, 245, 246, 247, 248
C_MS, C_IX, C_G, C_WT, C_AY = 206, 210, 212, 238, 240
C_XP, C_VX = 196, 204
WBF = 20

def unit(a, R, t, q, nb, hook=None, noqk=False, noprev=False, fresh=False):
    Sc, Sn = (R.S0, R.S1) if q == 0 else (R.S1, R.S0)
    P, Q, O, L = R.P, R.Q, R.O, R.L
    qn = 1 - q
    kn = t if q == 0 else t + 1
    vp = t - 1 if q == 0 else t
    K = R.KB + 8*(kn % nb); Vp = R.VB + 8*(vp % nb); Vc = R.VB + 8*(t % nb)
    e = lambda i: f"v_exp_f32 v{Sc+i}, v{Sc+i}"
    c = lambda i: f"v_cvt_pk_bf16_f32 v{P+i}, v{Sc+2*i}, v{Sc+2*i+1}"
    h = hook or (lambda pos: None)
    h("Ma")
    if not noqk: a(M32(Sn, K, Q+8*qn, None))
    h("Ma+"); a(e(0), e(1), e(2))
    h("Md")
    if not noprev: a(M32(O+16*qn, Vp+4, P+4, O+16*qn))
    h("Md+"); a(e(3), e(4), e(5))
    if not noprev: a(SM(L+4*qn, R.ONES, P, R.IDX))
    a(c(0), c(1), e(6), e(7))
    h("Mb")
    if not noqk: a(M32(Sn, K+4, Q+8*qn+4, Sn))
    h("Mb+"); a(c(2), c(3), e(8), e(9))
    h("Mc"); a(M32(O+16*q, Vc, P, None if fresh else O+16*q)); h("Mc+")
    a(e(10), e(11), c(4), e(12), c(5), e(13), e(14), e(15), c(6), c(7))

def xn_pair(o, t16, p, g0, g1, tmp):
    XP, MS = C_XP, C_MS
    o(f"v_lshlrev_b32 v{g0}, 16, v{XP+4*t16+p}")
    o(f"v_and_b32 v{g1}, 0xffff0000, v{XP+4*t16+p}")
    o(f"v_sub_f32 v{g0}, v{g0}, v{MS+2*t16}")
    o(f"v_sub_f32 v{g1}, v{g1}, v{MS+2*t16}")
    o(f"v_cvt_pk_bf16_f32 v{tmp}, v{g0}, v{g1}")
    o(f"v_lshlrev_b32 v{g0}, 16, v{tmp}")
    o(f"v_and_b32 v{g1}, 0xffff0000, v{tmp}")
    o(f"v_mul_f32 v{g0}, v{g0}, v{MS+2*t16+1}")
    o(f"v_mul_f32 v{g1}, v{g1}, v{MS+2*t16+1}")
    o(f"v_cvt_pk_bf16_f32 v{tmp}, v{g0}, v{g1}")
    o(f"v_lshlrev_b32 v{g0}, 16, v{tmp}")
    o(f"v_and_b32 v{g1}, 0xffff0000, v{tmp}")
def silu16(G, T):
    o = []
    for b in range(0, 16, 8):
        for e in range(8): o.append(f"v_mul_f32 v{T+e}, 0xbfb8aa3b, v{G+b+e}")
        for e in range(8): o.append(f"v_exp_f32 v{T+e}, v{T+e}")
        for e in range(8): o.append(f"v_add_f32 v{T+e}, 1.0, v{T+e}")
        for e in range(8): o.append(f"v_rcp_f32 v{T+e}, v{T+e}")
        for e in range(8): o.append(f"v_mul_f32 v{G+b+e}, v{G+b+e}, v{T+e}")
    return o

class OH:
    sOA, sOB, ROT, RAW, MASK, NEED, RET, GA, GB, ND = 50, 51, 60, 52, 72, 73, 44, 53, 54, 63
    GIDS = [55, 56, 57, 59]
    VPo, VPa = 236, 237
    SLOT = [132, 164, 68, 100]
def oh_setup(a, T):
    H = OH
    a(f"s_and_b32 s{H.ROT}, s{sJ}, 3")
    a(f"s_lshl_b32 s{sT}, s{sMT}, 2")
    a(f"s_and_b32 s{sT+1}, s{W}, 3")
    a(f"s_add_u32 s{sT}, s{sT}, s{sT+1}")
    a(f"s_lshl_b32 s{H.sOA}, s{sT}, 16")
    a(f"s_lshl_b32 s{sT+1}, s{KH}, 14")
    a(f"s_add_u32 s{H.sOA}, s{H.sOA}, s{sT+1}")
    a(f"s_add_u32 s{H.sOA}, s{H.sOA}, {WS_O}")
    a(f"s_add_u32 s{H.sOB}, s{H.sOA}, 32768")
    a(f"s_lshl_b32 s{sT}, s{sT}, 1")
    a(f"s_add_u32 s{sT}, s{sT}, s{KH}")
    a(f"s_lshl_b32 s{sT}, s{sT}, 7")
    a(f"s_add_u32 s{sT}, s{sT}, {WS_OF}")
    a(f"v_mov_b32 v{H.VPa}, s{sT}")
    a(f"s_mov_b32 s{H.RAW}, 0")
    a(f"s_mov_b32 s{H.NEED}, 0x1111")
def oh_poll(a, vm):
    apoll(a, OH.VPo, OH.VPa)
    vm.issue("opoll")
def oh_ready(o):
    H = OH
    o(f"v_readfirstlane_b32 s{H.RAW}, v{H.VPo}")
    o(f"s_lshl_b32 s{sT+10}, s{H.ROT}, 2")
    o(f"s_mul_i32 s{H.RAW}, s{H.RAW}, 0x10001")
    o(f"s_lshr_b32 s{H.RAW}, s{H.RAW}, s{sT+10}")
    o(f"s_lshr_b32 s{sT+10}, s{H.RAW}, 1")
    o(f"s_and_b32 s{H.MASK}, s{H.RAW}, s{sT+10}")
    o(f"s_lshr_b32 s{sT+10}, s{H.MASK}, 2")
    o(f"s_and_b32 s{H.MASK}, s{H.MASK}, s{sT+10}")
    o(f"s_and_b32 s{H.MASK}, s{H.MASK}, s{H.NEED}")
def oh_take(a, g):
    H = OH
    a(f"s_ff1_i32_b32 s{H.GA}, s{H.MASK}")
    a(f"s_bitset0_b32 s{H.NEED}, s{H.GA}")
    a(f"s_bitset0_b32 s{H.MASK}, s{H.GA}")
    a(f"s_lshr_b32 s{H.GA}, s{H.GA}, 2")
    a(f"s_add_u32 s{H.GA}, s{H.GA}, s{H.ROT}")
    a(f"s_and_b32 s{H.GIDS[g]}, s{H.GA}, 3")
    a(f"s_lshl_b32 s{H.GA}, s{H.GIDS[g]}, 12")
    a(f"s_add_u32 s{H.GB}, s{H.GA}, s{H.sOB}")
    a(f"s_add_u32 s{H.GA}, s{H.GA}, s{H.sOA}")
    for i in range(4):
        for t16 in range(2):
            a(f"buffer_load_dwordx4 {vr(H.SLOT[g]+8*i+4*t16,4)}, v1, {srd(sWS)}, s{(H.GA, H.GB)[t16]} offen offset:{i*1024}")

def phaseB(a, name, cold, opt, vm):
    R = Regs3
    VL, Q, P, O, L, T = R.VL, R.Q, R.P, R.O, R.L, R.T
    NB, NT = 4, 32
    BAR = opt.get("bar", 4)
    moe = opt.get("moe", True)
    nt = lambda k: "nt" if k in opt.get("nt", "ms") else ""
    a(f"s_lshr_b32 s{KH}, s{W}, 2")
    a(f"s_and_b32 s{sT}, s{W}, 1")
    a(f"s_lshl_b32 s{sT}, s{sT}, 1")
    a(f"s_add_u32 s{sT}, s{sT}, s{KH}")
    a(f"s_lshl_b32 s{sT}, s{sT}, 13")
    a(f"v_add_u32 v2, s{sT}, v{VL}")
    for t in range(2):
        for hf in range(2):
            a(f"ds_read_b128 {vr(R.KB+8*t+4*hf,4)}, v2 offset:{t*4096+hf*1024}")
    for t in range(2):
        for hf in range(2):
            a(f"ds_read_b128 {vr(R.VB+8*t+4*hf,4)}, v2 offset:{t*4096+2048+hf*1024}")
    head_of(a, HB, sT)
    a(f"s_lshl_b32 s{sT+1}, s{HB}, 8")
    a(f"s_lshl_b32 s{HB}, s{HB}, 18")
    a(f"s_add_u32 s{HB}, s{HB}, {WS_KV}")
    a(f"s_mov_b32 s{NEED}, 0xfffe")
    a(f"s_lshl_b32 s{sT}, s{KH}, 13")
    a(f"s_add_u32 s{S1O}, s{HB}, s{sT}")
    KVB = 63
    a(f"s_mov_b32 s{KVB}, s{S1O}")
    a(f"s_lshl_b32 s{sT}, s{KH}, 7")
    a(f"s_add_u32 s{sT}, s{sT}, s{sT+1}")
    a(f"s_add_u32 s{sT}, s{sT}, {WS_KVF}")
    a(f"v_mov_b32 v{VPA}, s{sT}")
    a(f"s_mov_b32 s{MASK}, 0")
    def moe_setup():
        a(f"s_cmp_lt_u32 s{sLI}, 28")
        a(f"s_cselect_b32 s{HASJ}, 1, 0")
        a(f"v_bfe_u32 v{VD2}, v0, 5, 1")
        a(f"v_lshlrev_b32 v{VD2}, 3, v{VD2}")
        a(f"v_bfe_u32 v{VT}, v0, 3, 2")
        a(f"v_add_u32 v{VD2}, v{VD2}, v{VT}")
        a(f"v_bfe_u32 v{VT}, v0, 4, 2")
        a(f"v_lshlrev_b32 v{VT}, 1, v{VT}")
        a(f"v_and_b32 v{VT+1}, 7, v0")
        a(f"v_xor_b32 v{VT}, v{VT}, v{VT+1}")
        a(f"v_lshlrev_b32 v{VT}, 4, v{VT}")
        a(f"v_mul_u32_u24 v{VD1}, 7168, v{VD2}")
        a(f"v_add_u32 v{VD1}, v{VD1}, v{VT}")
        a(f"v_lshl_add_u32 v{VD2}, v{VD2}, 11, v{VT}")
        a(f"v_lshrrev_b32 v{VFR}, 2, v0")
        a(f"v_lshlrev_b32 v{VFR}, 7, v{VFR}")
        a(f"v_bfe_u32 v{VT}, v0, 3, 2")
        a(f"s_and_b32 s{sT}, s{W}, 3")
        a(f"v_xor_b32 v{VT}, s{sT}, v{VT}")
        a(f"v_lshl_add_u32 v{VFR}, v{VT}, 5, v{VFR}")
        a(f"v_and_b32 v{VT}, 3, v0")
        a(f"v_lshl_add_u32 v{VFR}, v{VT}, 3, v{VFR}")
        cg_of(a, sT)
        a(f"s_and_b32 s{sT+1}, s{sT}, 3")
        a(f"s_lshl_b32 s{sT+1}, s{sT+1}, 3")
        a(f"s_add_u32 s{sT+1}, s{sT+1}, s{W}")
        a(f"s_mul_i32 s{S1O}, s{sT+1}, {32*7168}")
        a(f"s_lshr_b32 s{sT}, s{sT}, 2")
        a(f"s_lshl_b32 s{sT}, s{sT}, 7")
        a(f"s_add_u32 s{S1O}, s{S1O}, s{sT}")
        a(f"s_lshr_b32 s{S2O}, s2, 4")
        a(f"s_mul_i32 s{S2O}, s{S2O}, 224")
        a(f"s_lshl_b32 s{sT}, s{KH}, 5")
        a(f"s_add_u32 s{S2O}, s{S2O}, s{sT}")
        a(f"s_and_b32 s{sT}, s{W}, 1")
        a(f"s_lshl_b32 s{sT}, s{sT}, 4")
        a(f"s_add_u32 s{S2O}, s{S2O}, s{sT}")
        a(f"s_and_b32 s{sT}, s{W}, 2")
        a(f"s_lshl_b32 s{sT}, s{sT}, 1")
        a(f"s_add_u32 s{S2O}, s{S2O}, s{sT}")
        a(f"s_lshl_b32 s{S2O}, s{S2O}, 11")
        a(f"s_and_b32 s{sT}, s2, 15")
        a(f"s_lshl_b32 s{sT}, s{sT}, 7")
        a(f"s_add_u32 s{S2O}, s{S2O}, s{sT}")
    def x_load():
        a(f"v_and_b32 v{VT}, 15, v0")
        a(f"s_lshl_b32 s{sT}, s{sMT}, 2")
        a(f"s_and_b32 s{sT+1}, s{W}, 3")
        a(f"s_add_u32 s{sT}, s{sT}, s{sT+1}")
        a(f"s_lshl_b32 s{sT}, s{sT}, 5")
        a(f"v_add_u32 v{VT}, s{sT}, v{VT}")
        a(f"v_lshlrev_b32 v{C_VX}, 11, v{VT}")
        a(f"v_bfe_u32 v{VT}, v0, 4, 1")
        a(f"v_lshl_add_u32 v{C_VX}, v{VT}, 5, v{C_VX}")
        a(f"v_lshrrev_b32 v{VT}, 5, v0")
        a(f"v_lshl_add_u32 v{C_VX}, v{VT}, 4, v{C_VX}")
        a(f"s_lshl_b32 s{sT}, s{sJ}, 7")
        a(f"s_lshl_b32 s{sT+1}, s{KH}, 6")
        a(f"s_add_u32 s{sT}, s{sT}, s{sT+1}")
        a(f"v_add_u32 v{C_VX}, s{sT}, v{C_VX}")
        a(f"s_mov_b32 s{sT}, 32768")
        a(f"buffer_load_dwordx4 {vr(C_XP,4)}, v{C_VX}, {srd(sX)}, 0 offen")
        a(f"buffer_load_dwordx4 {vr(C_XP+4,4)}, v{C_VX}, {srd(sX)}, s{sT} offen")
        vm.issue("xc", 2)
    def misc_read():
        a(f"v_and_b32 v{VT}, 15, v0")
        a(f"s_and_b32 s{sT}, s{W}, 3")
        a(f"s_lshl_b32 s{sT}, s{sT}, 5")
        a(f"v_add_u32 v{VT}, s{sT}, v{VT}")
        a(f"v_lshlrev_b32 v{VT}, 2, v{VT}")
        a(f"v_add_u32 v{VT}, {L_M}, v{VT}")
        for t16 in range(2):
            a(f"ds_read_b32 v{C_MS+2*t16}, v{VT} offset:{t16*64}")
            a(f"ds_read_b32 v{C_MS+2*t16+1}, v{VT} offset:{t16*64+512}")
        a(f"v_lshlrev_b32 v{VT}, 2, v0")
        a(f"v_add_u32 v{VT}, {L_IDX}, v{VT}")
        a(f"ds_read_b32 v{C_IX}, v{VT}")
    gwin = False
    if moe:
        a(f"v_and_b32 v{VT+2}, 7, v0")
        a(f"v_lshlrev_b32 v{VT+2}, 2, v{VT+2}")
        a(f"v_add_u32 v{VT+2}, {L_IDX}, v{VT+2}")
        a(f"ds_read_b32 v{VT+2}, v{VT+2}")
    lab = a.new_label(f"{name}_kvf")
    a(f"s_cmp_eq_u32 s{KH}, 0")
    a(f"s_cbranch_scc1 {lab}")
    a("s_waitcnt vmcnt(0)")
    kvf_addr(a, sT, sT+1)
    a(f"s_lshl_b32 s{sT+1}, 1, s{sMT}")
    signal(a, sT, f"s{sT+1}", VT, VT+1, "or")
    a.label(lab)
    a.stamp(4)
    AT.attn_consts(a, R, sparse=opt.get('sparse', 1), lean=True)
    a("s_waitcnt lgkmcnt(0)")
    a.trace(9, "w")
    a(M32(R.S0, R.KB, Q, None))
    a(M32(R.S0, R.KB+4, Q+4, R.S0))
    if moe: xsel_fetch(a, vm, VT+2, 228, 236)
    a("s_nop 10")
    a.trace(10, "w")

    def kv_mask(o):
        o(f"v_readfirstlane_b32 s{MASK}, v{VP}")
        o("s_nop 0")
        o(f"s_mul_i32 s{MASK}, s{MASK}, 0x10001")
        o(f"s_lshr_b32 s{MASK}, s{MASK}, s{sMT}")
    c = Asm()
    c.label(f"{name}_kvspin")
    c(f"s_mov_b32 s{sT+11}, 0")
    c.label(f"{name}_kvagain")
    apoll(c, VP, VPA)
    c(f"s_add_u32 s{sT+11}, s{sT+11}, 1")
    c(f"s_cmp_gt_u32 s{sT+11}, {SPIN_LIMIT}")
    c(f"s_cselect_b32 s{MASK}, s{NEED}, s{MASK}")
    c(f"s_cbranch_scc1 {name}_kvout")
    c("s_waitcnt vmcnt(0)")
    kv_mask(c)
    c(f"s_and_b32 s{MASK}, s{MASK}, s{NEED}")
    if opt.get("fixed"):
        c(f"s_ff1_i32_b32 s{sT+10}, s{NEED}")
        c(f"s_bitcmp1_b32 s{MASK}, s{sT+10}")
    c(f"s_cbranch_scc0 {name}_kvagain")
    c.label(f"{name}_kvout")
    c(f"s_setpc_b64 s[{RET}:{RET+1}]")
    cold.append(c)
    def next_block():
        lab = a.new_label(f"{name}_nb")
        a(f"s_and_b32 s{MASK}, s{MASK}, s{NEED}")
        if opt.get("fixed"):
            a(f"s_ff1_i32_b32 s{sT+10}, s{NEED}")
            a(f"s_bitcmp1_b32 s{MASK}, s{sT+10}")
        a(f"s_cbranch_scc1 {lab}")
        a(f"s_call_b64 s[{RET}:{RET+1}], {name}_kvspin")
        a.label(lab)
        a(f"s_ff1_i32_b32 s{KBK}, s{MASK}")
        a(f"s_bitset0_b32 s{NEED}, s{KBK}")
        a(f"s_add_u32 s{KBK}, s{KBK}, s{sMT}")
        a(f"s_and_b32 s{KBK}, s{KBK}, 15")
        a(f"s_lshl_b32 s{KBK}, s{KBK}, 14")
        a(f"s_add_u32 s{KBK}, s{KBK}, s{KVB}")
    def adv(sr_, t):
        if t & 1: a(f"s_add_u32 s{sr_}, s{sr_}, 4096")
        else: a(f"s_mov_b32 s{sr_}, s{KBK}")
    def ldK(t, half):
        if half == 0:
            if not (t & 1): next_block()
            adv(KA, t)
        a(f"buffer_load_dwordx4 {vr(R.KB+8*(t%NB)+4*half,4)}, v{VL}, {srd(sWS)}, s{KA} offen offset:{half*1024}")
        vm.issue(f"K{t}_{half}")
    def ldV(t, half):
        if half == 0: adv(VA, t)
        a(f"buffer_load_dwordx4 {vr(R.VB+8*(t%NB)+4*half,4)}, v{VL}, {srd(sWS)}, s{VA} offen offset:{2048+half*1024}")
        vm.issue(f"V{t}_{half}")

    def guarded(fn):
        lab = a.new_label(f"{name}_g")
        a(f"s_cmp_eq_u32 s{HASJ}, 0")
        a(f"s_cbranch_scc1 {lab}")
        fn()
        a.label(lab)
    def s1_dma(i):
        def f():
            m, pc = i >> 2, i & 3
            a(f"s_lshl_b32 s{sT}, s{W}, 12")
            a(f"s_add_u32 m0, s{sT}, {L_S1 + m*32768 + pc*1024}")
            a(f"s_add_u32 s{sT}, s{S1O}, {(16*(pc&1) + 4*(pc>>1))*7168}")
            a(f"buffer_load_dwordx4 v{VD1}, {srd(sWG if m == 0 else sWU)}, s{sT} offen {nt('m')} lds")
            vm.issue("s1w", 1, cond=True)
        guarded(f)
    def s2_dma(jj):
        lab = a.new_label(f"{name}_s2d")
        if jj == 3:
            a(f"s_cmp_lg_u32 s{KH}, 0")
            a(f"s_cbranch_scc1 {lab}")
        a(f"s_lshl_b32 s{sT}, s{W}, 10")
        a(f"s_add_u32 m0, s{sT}, {L_S2 + jj*8192}")
        a(f"s_add_u32 s{sT}, s{S2O}, {jj*64*2048}")
        a(f"buffer_load_dwordx4 v{VD2}, {srd(sWD)}, s{sT} offen {nt('m')} lds")
        vm.issue("s2w", 1, cond=(jj == 3))
        a.label(lab)
    def touch_wd():
        a(f"s_lshl_b32 s{sT}, s2, 3")
        a(f"s_add_u32 s{sT}, s{sT}, s{W}")
        a(f"s_mul_i32 s{sT+1}, s{sT}, 3584")
        a(f"s_lshl_b32 s{sT}, s{sT}, 10")
        a(f"v_lshlrev_b32 v{VT}, 7, v0")
        a("s_bfm_b64 exec, 28, 0")
        a(f"buffer_load_dword v{VT+4}, v{VT}, {srd(sWD)}, s{sT+1} offen")
        a("s_mov_b64 exec, 0xff")
        a(f"buffer_load_dword v{VT+5}, v{VT}, {srd(sWO)}, s{sT} offen")
        a("s_mov_b64 exec, -1")
        vm.issue("tch", 2)
    def afrag_addr(base_s):
        a(f"v_and_b32 v{VT}, 7, v0")
        a(f"v_lshlrev_b32 v{VT}, 4, v{VT}")
        a(f"v_lshrrev_b32 v{VT+1}, 4, v0")
        a(f"v_lshl_add_u32 v{VT}, v{VT+1}, 7, v{VT}")
        a(f"v_add_u32 v{VT}, s{base_s}, v{VT}")
    def chain(n0, n1, first, wait=True):
        for ks in range(n0, n1):
            a(f"ds_read_b128 {vr(XSF+4*(ks&3),4)}, v{VT} offset:{ks*512}")
            for t_ in range(2):
                a(f"ds_read_b64_tr_b16 {vr(WBF+4*(ks&3)+2*t_,2)}, v{VT+2} offset:{ks*4096+t_*2048}")
        if wait: a("s_waitcnt lgkmcnt(0)")
    def mf(ks, first): a(f"v_mfma_f32_16x16x32_bf16 {vr(MACC,4)}, {vr(XSF+4*(ks&3),4)}, {vr(WBF+4*(ks&3),4)}, {'0' if first else vr(MACC,4)}")
    def out_addr(row_bytes):
        a(f"v_mul_u32_u24 v{VT+1}, {4*row_bytes}, v{VT+1}")
        a(f"v_and_b32 v{VT}, 15, v0")
        a(f"v_lshl_add_u32 v{VT}, v{VT}, 2, v{VT+1}")
    def atomics(row_bytes, tag, cond):
        a("s_bfm_b64 exec, 32, 0")
        for r in range(4):
            a(f"s_add_u32 s{sT+1}, s{sT}, {r*row_bytes}")
            a(f"buffer_atomic_add_f32 v{MACC+r}, v{VT}, {srd(sWS)}, s{sT+1} offen")
        a("s_mov_b64 exec, -1")
        vm.issue(tag, 4, cond=cond)
    def s1c_a():
        cg_of(a, sT+2)
        a(f"s_and_b32 s{sT}, s{sT+2}, 3")
        a(f"s_lshl_b32 s{sT}, s{sT}, 12")
        a(f"s_add_u32 s{sT}, s{sT}, {L_XS}")
        afrag_addr(sT)
        a(f"s_lshl_b32 s{sT}, s{KH}, 15")
        a(f"s_add_u32 s{sT}, s{sT}, {L_S1}")
        a(f"v_add_u32 v{VT+2}, s{sT}, v{VFR}")
        chain(0, 4, True, False)
    def s1c_b():
        a("s_waitcnt lgkmcnt(0)")
        for ks in range(4): mf(ks, ks == 0)
        chain(4, 8, False, False)
    def s1c_c():
        a("s_waitcnt lgkmcnt(0)")
        for ks in range(4, 8): mf(ks, False)
        out_addr(14336)
    def s1c_d():
        cg_of(a, sT+2)
        a(f"s_lshr_b32 s{sT}, s{sT+2}, 2")
        a(f"s_lshl_b32 s{sT}, s{sT}, 8")
        a(f"s_and_b32 s{sT+1}, s{W}, 3")
        a(f"s_lshl_b32 s{sT+1}, s{sT+1}, 6")
        a(f"s_add_u32 s{sT}, s{sT}, s{sT+1}")
        a(f"s_mul_i32 s{sT+1}, s{KH}, 114688")
        a(f"s_add_u32 s{sT}, s{sT}, s{sT+1}")
        a(f"s_add_u32 s{sT}, s{sT}, {WS_GU}")
        atomics(14336, "gat", True)
    def s1_compute():
        def f(): s1c_a(); s1c_b(); s1c_c(); s1c_d()
        guarded(f)
    def s1_flag():
        vm.wait("gat")
        def f():
            hf_addr(a, sT)
            signal(a, sT, 1, VT, VT+1)
            vm.issue("hfl", 1, cond=True)
        guarded(f)
    def one_wave(fn, tag):
        lab = a.new_label(f"{name}_w0")
        a(f"s_cmp_lg_u32 s{W}, 0")
        a(f"s_cbranch_scc1 {lab}")
        fn()
        a.label(lab)
    def s2_poll():
        def f():
            a(f"s_lshr_b32 s{sT}, s2, 4")
            a(f"s_mul_i32 s{sT}, s{sT}, 7")
            a(f"s_lshr_b32 s{sT}, s{sT}, 1")
            a(f"s_lshl_b32 s{sT}, s{sT}, 7")
            a(f"s_add_u32 s{sT}, s{sT}, {WS_HF}")
            a(f"v_lshlrev_b32 v{VT+4}, 7, v0")
            a(f"v_add_u32 v{VT+4}, s{sT}, v{VT+4}")
            apoll(a, VT+5, VT+4, 4)
        one_wave(f, "hp")
        vm.issue("hpoll", 1, cond=True)
    def s2_check():
        def f():
            vm.copy().wait("hpoll")
            acheck(a, f"{name}_hp", VT+5, VT+4, 32, 4, cold)
        one_wave(f, "hc")
    def s2_load():
        a(f"s_lshr_b32 s{sT}, s2, 4")
        a(f"s_mul_i32 s{sT}, s{sT}, 896")
        a(f"s_mul_i32 s{sT+1}, s{W}, 14336")
        a(f"s_add_u32 s{sT}, s{sT}, s{sT+1}")
        a(f"s_add_u32 s{sT}, s{sT}, {WS_GU}")
        a(f"s_add_u32 s{sT+1}, s{sT}, 114688")
        a("s_bfm_b64 exec, 56, 0")
        a(f"buffer_load_dwordx4 {vr(XSF,4)}, v{VL}, {srd(sWS)}, s{sT} offen sc1")
        a(f"buffer_load_dwordx4 {vr(XSF+4,4)}, v{VL}, {srd(sWS)}, s{sT+1} offen sc1")
        a("s_mov_b64 exec, -1")
        vm.issue("hld", 2)
    def s2_h():
        vm.wait("hld")
        Gs, Us, Tm = XSF, XSF+4, XSF+8
        for e in range(0, 4, 2):
            a(f"v_cvt_pk_bf16_f32 v{Tm}, v{Gs+e}, v{Gs+e+1}")
            a(f"v_cvt_pk_bf16_f32 v{Tm+1}, v{Us+e}, v{Us+e+1}")
            a(f"v_lshlrev_b32 v{Gs+e}, 16, v{Tm}")
            a(f"v_and_b32 v{Gs+e+1}, 0xffff0000, v{Tm}")
            a(f"v_lshlrev_b32 v{Us+e}, 16, v{Tm+1}")
            a(f"v_and_b32 v{Us+e+1}, 0xffff0000, v{Tm+1}")
        for e in range(4): a(f"v_mul_f32 v{Tm+e}, 0xbfb8aa3b, v{Gs+e}")
        for e in range(4): a(f"v_exp_f32 v{Tm+e}, v{Tm+e}")
        for e in range(4): a(f"v_add_f32 v{Tm+e}, 1.0, v{Tm+e}")
        for e in range(4): a(f"v_rcp_f32 v{Tm+e}, v{Tm+e}")
        for e in range(4): a(f"v_mul_f32 v{Gs+e}, v{Gs+e}, v{Tm+e}")
        for e in range(0, 4, 2):
            a(f"v_cvt_pk_bf16_f32 v{Tm}, v{Gs+e}, v{Gs+e+1}")
            a(f"v_lshlrev_b32 v{Gs+e}, 16, v{Tm}")
            a(f"v_and_b32 v{Gs+e+1}, 0xffff0000, v{Tm}")
        for e in range(4): a(f"v_mul_f32 v{Gs+e}, v{Gs+e}, v{Us+e}")
        a(f"v_cvt_pk_bf16_f32 v{Tm}, v{Gs}, v{Gs+1}")
        a(f"v_cvt_pk_bf16_f32 v{Tm+1}, v{Gs+2}, v{Gs+3}")
        a(f"v_lshrrev_b32 v{VT}, 1, v0")
        a(f"v_lshlrev_b32 v{VT}, 7, v{VT}")
        a(f"v_and_b32 v{VT+1}, 1, v0")
        a(f"v_lshl_add_u32 v{VT}, v{VT+1}, 3, v{VT}")
        a(f"s_lshl_b32 s{sT}, s{W}, 4")
        a(f"s_add_u32 s{sT}, s{sT}, {L_HI}")
        a(f"v_add_u32 v{VT}, s{sT}, v{VT}")
        a("s_bfm_b64 exec, 56, 0")
        a(f"ds_write_b64 v{VT}, {vr(Tm,2)}")
        a("s_mov_b64 exec, -1")
        if opt.get("dbg"):
            a(f"s_lshr_b32 s{sT}, s2, 4")
            a(f"s_mul_i32 s{sT}, s{sT}, 448")
            a(f"s_mul_i32 s{sT+1}, s{W}, 7168")
            a(f"s_add_u32 s{sT}, s{sT}, s{sT+1}")
            a(f"s_add_u32 s{sT}, s{sT}, {WS_H}")
            a(f"v_lshlrev_b32 v{VT}, 3, v0")
            a("s_bfm_b64 exec, 56, 0")
            a(f"buffer_store_dwordx2 {vr(Tm,2)}, v{VT}, {srd(sWS)}, s{sT} offen")
            a("s_mov_b64 exec, -1")
            vm.issue("dbg")
    def s2c_a():
        a(f"s_lshl_b32 s{sT}, s{KH}, 11")
        a(f"s_add_u32 s{sT}, s{sT}, {L_HI}")
        afrag_addr(sT)
        a(f"s_lshl_b32 s{sT}, s{KH}, 14")
        a(f"s_add_u32 s{sT}, s{sT}, {L_S2}")
        a(f"v_add_u32 v{VT+2}, s{sT}, v{VFR}")
        chain(0, 4, True, False)
    def s2c_b():
        a("s_waitcnt lgkmcnt(0)")
        a(f"s_cmp_lg_u32 s{KH}, 0")
        lab = a.new_label(f"{name}_s2k")
        for ks in range(4):
            if ks == 3: a(f"s_cbranch_scc1 {lab}")
            mf(ks, ks == 0)
        a.label(lab)
        out_addr(4096)
    def s2c_c():
        a(f"s_and_b32 s{sT}, s2, 15")
        a(f"s_lshl_b32 s{sT}, s{sT}, 8")
        a(f"s_and_b32 s{sT+1}, s{W}, 3")
        a(f"s_lshl_b32 s{sT+1}, s{sT+1}, 6")
        a(f"s_add_u32 s{sT}, s{sT}, s{sT+1}")
        a(f"s_add_u32 s{sT}, s{sT}, {WS_Y}")
        atomics(4096, "yat", False)
    def s2_compute(): s2c_a(); s2c_b(); s2c_c()
    def y_flag():
        vm.wait("yat")
        yf_addr(a, sT, sT+1)
        signal(a, sT, 1, VT, VT+1)
        vm.issue("yfl")
    RT = 58
    def route_detect():
        for i in range(8): a(f"v_readlane_b32 s{sT+i}, v{C_IX}, {i}")
        a(f"s_lshl_b32 s{sT+8}, s{sMT}, 2")
        a(f"s_and_b32 s{sT+9}, s{W}, 3")
        a(f"s_add_u32 s{sT+8}, s{sT+8}, s{sT+9}")
        a(f"s_mov_b32 s{RT}, 0")
        for i in range(8):
            a(f"s_lshr_b32 s{sT+9}, s{sT+i}, 5")
            a(f"s_cmp_eq_u32 s{sT+9}, s{sT+8}")
            a(f"s_cselect_b32 s{RT}, 1, s{RT}")
        a(f"s_cmp_lg_u32 s{RT}, 0")
        a(f"s_cbranch_scc1 {name}_rdet")
        a.label(f"{name}_rdet_done")
        vm.issue("ypoll", 1, cond=True)
        c = Asm()
        c.label(f"{name}_rdet")
        for t16 in range(2):
            c(f"v_lshrrev_b32 v{VT}, 11, v{C_VX}")
            c(f"v_add_u32 v{VT}, {16*t16}, v{VT}")
            c(f"v_mov_b32 v{C_AY+t16}, 0x7fff0000")
            c(f"v_mov_b32 v{C_WT+t16}, 0")
            c(f"v_and_b32 v{VT+1}, 0x7ff, v{C_VX}")
            c(f"v_lshlrev_b32 v{VT+1}, 1, v{VT+1}")
            c(f"v_add_u32 v{VT+1}, {WS_Y}, v{VT+1}")
            for i in range(8):
                c(f"v_readlane_b32 s{sT+8}, v{C_IX}, {8+i}")
                c(f"v_cmp_eq_u32 vcc, s{sT+i}, v{VT}")
                c(f"v_add_u32 v{VT+4}, {i*4096}, v{VT+1}")
                c(f"v_mov_b32 v{VT+5}, s{sT+8}")
                c(f"v_cndmask_b32 v{C_AY+t16}, v{C_AY+t16}, v{VT+4}, vcc")
                c(f"v_cndmask_b32 v{C_WT+t16}, v{C_WT+t16}, v{VT+5}, vcc")
        c(f"s_lshl_b32 s{sT+8}, s{sJ}, 7")
        c(f"s_add_u32 s{sT+8}, s{sT+8}, {WS_YF}")
        c(f"v_mov_b32 v{VT+4}, s{sT+8}")
        apoll(c, VT+5, VT+4)
        c(f"s_branch {name}_rdet_done")
        cold.append(c)
    def route_fetch():
        a(f"s_cmp_lg_u32 s{RT}, 0")
        a(f"s_cbranch_scc1 {name}_rfet")
        a.label(f"{name}_rfet_done")
        vm.issue("yld", 4, cond=True)
        c = Asm()
        c.label(f"{name}_rfet")
        c("s_waitcnt vmcnt(0)")
        acheck(c, f"{name}_yp", VT+5, VT+4, 128, 1, cold)
        for t16 in range(2):
            for hf in range(2):
                c(f"buffer_load_dwordx4 {vr(C_G+8*t16+4*hf,4)}, v{C_AY+t16}, {srd(sWS)}, 0 offen offset:{16*hf} sc1")
        c(f"s_branch {name}_rfet_done")
        cold.append(c)
    def wo_setup():
        a(f"v_lshrrev_b32 v{VD1}, 3, v0")
        a(f"v_lshlrev_b32 v{VD1}, 11, v{VD1}")
        a(f"v_bfe_u32 v{VT}, v0, 4, 1")
        a(f"s_bfe_u32 s{sT}, s{W}, 0x10001")
        a(f"s_lshl_b32 s{sT}, s{sT}, 1")
        a(f"v_or_b32 v{VT}, s{sT}, v{VT}")
        a(f"v_lshlrev_b32 v{VT}, 1, v{VT}")
        a(f"v_and_b32 v{VT+1}, 7, v0")
        a(f"v_xor_b32 v{VT}, v{VT}, v{VT+1}")
        a(f"v_lshl_add_u32 v{VD1}, v{VT}, 4, v{VD1}")
        a(f"s_lshl_b32 s{WOO}, s{W}, 14")
        a(f"s_lshl_b32 s{sT}, s{sJ}, 7")
        a(f"s_add_u32 s{WOO}, s{WOO}, s{sT}")
        a(f"s_lshl_b32 s{WOM}, s{W}, 10")
    def wo_dma(i, part=None):
        lab = a.new_label(f"{name}_wo")
        if part:
            a(f"s_cmp_ge_u32 s{W}, 6")
            a(f"s_cbranch_scc{1 if part == 'early' else 0} {lab}")
        a(f"s_add_u32 m0, s{WOM}, {i*8192}")
        a(f"s_add_u32 s{sT}, s{WOO}, {i*64*2048}")
        a(f"buffer_load_dwordx4 v{VD1}, {srd(sWO)}, s{sT} offen {nt('o')} lds")
        vm.issue("wo", 1, cond=bool(part))
        a.label(lab)
    FU.wo_dma = wo_dma

    sched = {}
    skip = opt.get("skip", [])
    def at(t, q, fn, tag=None):
        if tag in skip: return
        sched.setdefault((t, q), []).append(fn)
    def stag(t0, t1, fn, nm):
        if nm in skip: return
        if not opt.get("stag", True):
            at(*t0, fn); return
        sub = Asm(); sub.uid = a.uid + 1000*(len(cold) + 1)
        box = {}
        def emit(first):
            lab = a.new_label(f"{name}_st")
            a(f"s_cmp_{'lg' if first else 'eq'}_u32 s{KH}, 0")
            a(f"s_cbranch_scc1 {lab}")
            a(f"s_call_b64 s[{sT+6}:{sT+7}], {name}_{nm}")
            a.label(lab)
            if first:
                q0 = list(vm.q)
                keep = a.lines; a.lines = sub.lines
                a.label(f"{name}_{nm}")
                fn()
                a(f"s_setpc_b64 s[{sT+6}:{sT+7}]")
                a.lines = keep
                box["ops"] = [x for x in vm.q if x not in q0 or vm.q.count(x) > q0.count(x)]
                new = vm.q[len([x for x in vm.q if True]) - 0:]
                n_new = box_count(q0, vm.q)
                box["new"] = [(tg, True) for tg, _ in vm.q[len(vm.q) - n_new:]]
                vm.q = q0 + box["new"]
                cold.append(sub)
            else:
                vm.q += box["new"]
        at(*t0, lambda: emit(True)); at(*t1, lambda: emit(False))
    def box_count(q0, q1):
        n = 0
        ids0 = [x[0] for x in q0]
        for tg, _ in reversed(q1):
            if tg in ids0: break
            n += 1
        return n
    pre = {}
    chk = {}
    ldsw = set()
    assert BAR == 4
    if moe:
        E = opt.get("early", 0)
        if E and not opt.get("s1win"):
            for i in range(8): at(2 + i // 2, i & 1, lambda i=i: s1_dma(i), 'mdma')
        elif not opt.get("s1win"):
            for i in range(8): at(3 + i, 1, lambda i=i: s1_dma(i), 'mdma')
        pre[11-E] = ["s1w"]
        nb = opt.get("nb", True)
        if nb and "s1c" not in skip:
            for k_, fn in enumerate((s1c_a, s1c_b, s1c_c, s1c_d)): at(12 - E + k_//2, k_ & 1, lambda fn=fn: guarded(fn))
        elif not nb: stag((12-E, 0), (13-E, 0), s1_compute, "s1c")
        for i in range(4): at(16 - E + i, 0, lambda i=i: s2_dma(i), 'mdma')
        at(15-E, 0, s1_flag)
        at(18-E, 0, s2_poll, 'hp')
        chk[19-E] = s2_check
        at(20-E, 0, s2_load, 'hp')
        if nb and "s2h" not in skip: at(22-E, 0, s2_h)
        elif not nb: stag((22-E, 0), (23-E, 0), s2_h, "s2h")
        ldsw.add(23-E)
        pre[23-E] = ["s2w"]
        if nb and "s2c" not in skip:
            for k_, fn in enumerate((s2c_a, s2c_b, s2c_c)): at(24 - E + k_//2, k_ & 1, fn)
        elif not nb: stag((24-E, 0), (25-E, 1), s2_compute, "s2c")
        at(27-E, 1, y_flag)
        at(29, 0, route_detect)
        at(30, 0, route_fetch)
    at(16, 0, wo_setup)
    W0 = opt.get("wo0", 20)
    wsched = opt.get("wsched")
    if not wsched: wsched = [(W0 + (i*opt.get("won", 10))//15, 1) for i in range(15)] + [(W0 + opt.get("won", 10), 1)]
    for i in range(15): at(*wsched[i], lambda i=i: wo_dma(i), 'wo')
    at(*wsched[15], lambda: wo_dma(15, 'early'))
    def kv_refresh_issue():
        apoll(a, VP, VPA)
        vm.issue("kvp")
    def kv_refresh_use():
        vm.wait("kvp")
        kv_mask(a)
    for t_ in opt.get("kvr", [2, 5]):
        at(t_, 0, kv_refresh_issue)
        at(t_ + 2, 0, kv_refresh_use)
    if not gwin: at(21, 0, x_load)
    at(30, 0, lambda: oh_setup(a, VT))
    ldsw.add(19 - opt.get("early", 0))
    if not gwin: at(17 - opt.get("early", 0), 1, misc_read)

    def hooks(t, q):
        def h(pos):
            if t < 2: return
            if q == 0:
                if pos == "Mc": vm.wait(f"V{t}_0")
                if pos == "Ma+" and t + 3 < NT: ldV(t+3, 0)
                if pos == "Mb+" and t + 3 < NT: ldV(t+3, 1)
            else:
                if pos == "Ma": vm.wait(f"K{t+1}_1", f"V{t}_1")
                if pos == "Md+" and t + 4 < NT: ldK(t+4, 0)
                if pos == "Mc+" and t + 4 < NT: ldK(t+4, 1)
        return h
    pm = opt.get("pmode", 1)
    def prio(t):
        if pm == 1: a(f"s_setprio {3 - (t % BAR) * 4 // BAR}")
        if pm == 2 and t % 2 == 0: a(f"s_setprio {3 - (t % BAR)}")
        if pm == 0 and t == 2: a("s_setprio 0")
    def prio2(t):
        if pm == 3:
            if t % BAR == 0 or t == 2:
                lab = a.new_label(f"{name}_pr")
                a("s_setprio 0")
                a(f"s_cmp_eq_u32 s{KH}, 0")
                a(f"s_cbranch_scc1 {lab}")
                a("s_setprio 1")
                a.label(lab)
            if t % BAR == 2 and t != 2: a("s_setprio 0")
    XR, XST = 228, 236
    unit(a, R, 0, 0, NB, noprev=True, fresh=True); unit(a, R, 0, 1, NB, fresh=True)
    a.trace(11, "w")
    epos = opt.get("epos", 1)
    if epos == 0: apoll(a, VP, VPA)
    unit(a, R, 1, 0, NB)
    if epos == 1: apoll(a, VP, VPA)
    unit(a, R, 1, 1, NB, noqk=True)
    a.trace(12, "w")
    vm.drain()
    a.trace(13, "w")
    kv_mask(a)
    a.stamp(5)
    a.trace(14, "w")
    ldK(2, 0)
    a.trace(15, "w")
    a.stamp(6)
    ldK(2, 1); ldV(2, 0); ldV(2, 1); ldK(3, 0); ldK(3, 1); ldV(3, 0); ldV(3, 1)
    if opt.get("burst", 1) == 2:
        ldK(4, 0); ldK(4, 1); ldV(4, 0); ldV(4, 1); ldK(5, 0); ldK(5, 1)
    a(f"v_mov_b32 v{C_AY}, 0x7fff0000")
    a(f"v_mov_b32 v{C_AY+1}, 0x7fff0000")
    if moe:
        moe_setup()
        xsel_normalise(a, VT, XR, XST, pk=opt.get("pkx", True))
        ldsw.add(3)
    if opt.get("burst", 1) == 1:
        ldK(4, 0); ldK(4, 1); ldV(4, 0); ldV(4, 1); ldK(5, 0); ldK(5, 1)
    a.trace(16, "w")
    vm.wait("K2_1")
    a.trace(17, "w")
    a(M32(R.S0, R.KB+16, Q, None))
    a(M32(R.S0, R.KB+20, Q+4, R.S0))
    a("s_nop 10")
    for t in range(2, NT):
        a.trace(t, "b")
        if t in (3, 4, 5, 8): a.trace(20 + t, "x")
        prio(t); prio2(t)
        for q in range(2):
            a.trace(2*t + q, "u")
            for fn in sched.get((t, q), []): fn()
            unit(a, R, t, q, NB, hooks(t, q))
        if (t % BAR) == BAR - 1 and t != NT - 1:
            if t in ldsw: a("s_waitcnt lgkmcnt(0)")
            if t in pre: vm.wait(*pre[t])
            if t in chk and 'hp' not in skip: chk[t]()
            a("s_barrier")
    a("s_setprio 0")
    a.stamp(7)
    a("s_nop 0")
    a(M32(O+16, R.VB+8*((NT-1)%NB)+4, P+4, O+16))
    a(SM(L+4, R.ONES, P, R.IDX))
    a.trace(50, "c")
    a("s_nop 7")
    a("s_nop 7")
    exchange_and_store(a, name, vm, R, opt, cold)
    c = Asm()
    AT.attn_slow_path(c, R, name, KH, sWS, HB, s0=sT)
    cold.append(c)

SLOWD = 74
def exchange_and_store(a, name, vm, R, opt, cold):
    O, L, T, VL, P = R.O, R.L, R.T, R.VL, R.P
    a(f"s_mov_b64 s[{SLOWD}:{SLOWD+1}], 0")
    a(f"v_add_f32 v{L}, v{L}, v{L+1}")
    a(f"v_add_f32 v{L+4}, v{L+4}, v{L+5}")
    a(f"s_lshl_b32 s{sT}, s{W}, 12")
    a(f"s_add_u32 s{sT}, s{sT}, {L_EX}")
    a(f"v_add_u32 v{T}, s{sT}, v{VL}")
    a(f"v_xor_b32 v{T+1}, 16384, v{T}")
    a(f"s_lshl_b32 s{sT}, s{W}, 8")
    a(f"s_add_u32 s{sT}, s{sT}, {L_LX}")
    a(f"v_lshrrev_b32 v{T+2}, 2, v{VL}")
    a(f"v_add_u32 v{T+2}, s{sT}, v{T+2}")
    a(f"v_xor_b32 v{T+3}, 1024, v{T+2}")
    a(f"s_cmp_eq_u32 s{KH}, 0")
    a(f"s_cbranch_scc1 {name}_kh0")
    for r in range(4): a(f"ds_write_b128 v{T}, {vr(O+4*r,4)} offset:{r*1024}")
    a(f"ds_write_b32 v{T+2}, v{L}")
    a(f"s_branch {name}_khj")
    a.label(f"{name}_kh0")
    for r in range(4): a(f"ds_write_b128 v{T}, {vr(O+16+4*r,4)} offset:{r*1024}")
    a(f"ds_write_b32 v{T+2}, v{L+4}")
    a.label(f"{name}_khj")
    otile(a, sT, sT+1)
    a(f"s_lshl_b32 s{sT}, s{sT}, 6")
    head_of(a, sT+1, sT+2)
    a(f"s_add_u32 s{sT}, s{sT}, s{sT+1}")
    a(f"s_lshl_b32 s{sT+4}, s{sT}, 10")
    a(f"s_add_u32 s{sT+4}, s{sT+4}, {WS_O}")
    a(f"v_bfe_u32 v{T+4}, v0, 4, 1")
    a(f"v_lshlrev_b32 v{T+4}, 15, v{T+4}")
    a(f"v_lshrrev_b32 v{T+5}, 5, v0")
    a(f"v_lshl_add_u32 v{T+4}, v{T+5}, 9, v{T+4}")
    a(f"v_and_b32 v{T+5}, 15, v0")
    a(f"v_lshl_add_u32 v{T+4}, v{T+5}, 4, v{T+4}")
    a("s_waitcnt lgkmcnt(0)")
    a("s_barrier")
    a(f"s_cmp_eq_u32 s{KH}, 0")
    a(f"s_cbranch_scc1 {name}_kr0")
    for r in range(4): a(f"ds_read_b128 {vr(O+4*r,4)}, v{T+1} offset:{r*1024}")
    a(f"ds_read_b32 v{L}, v{T+3}")
    a(f"s_branch {name}_krj")
    a.label(f"{name}_kr0")
    for r in range(4): a(f"ds_read_b128 {vr(O+16+4*r,4)}, v{T+1} offset:{r*1024}")
    a(f"ds_read_b32 v{L+4}, v{T+3}")
    a.label(f"{name}_krj")
    a("s_waitcnt lgkmcnt(0)")
    a.trace(51, "c")
    for r in range(0, 16, 2): a(f"v_pk_add_f32 {vr(O+r,2)}, {vr(O+r,2)}, {vr(O+16+r,2)}")
    a(f"v_add_f32 v{L}, v{L}, v{L+4}")
    a(f"v_mov_b32 v{T+1}, 0")
    a.label(f"{name}_fin")
    a(f"v_rcp_f32 v{T}, v{L}")
    a(f"s_mov_b32 s{sT}, 0x2b800000")
    for jj in range(2):
        for e_ in range(4):
            r0 = O + 8*jj + 2*e_
            a(f"v_pk_mul_f32 {vr(O+16+8*jj+2*e_,2)}, {vr(r0,2)}, {vr(T,2)} op_sel_hi:[1,0]")
            a(f"v_cvt_pk_bf16_f32 v{P+4*jj+e_}, v{O+16+8*jj+2*e_}, v{O+16+8*jj+2*e_+1}")
        a(f"buffer_store_dwordx4 {vr(P+4*jj,4)}, v{T+4}, {srd(sWS)}, s{sT+4} offen offset:{jj*256} {opt.get('of', 'sc1')}")
    vm.issue("ost", 2)
    a(f"v_mov_b32 v{T+1}, 0")
    for r in range(16): a(f"v_fmac_f32 v{T+1}, 0, v{O+r}")
    a(f"s_mov_b32 s{sT+1}, 0x5d800000")
    a(f"v_cmp_nle_f32 s[{sT+6}:{sT+7}], s{sT}, v{L}")
    a(f"v_cmp_nge_f32 s[{sT+2}:{sT+3}], s{sT+1}, v{L}")
    a(f"v_cmp_u_f32 vcc, v{T+1}, v{T+1}")
    a(f"s_or_b64 s[{sT+6}:{sT+7}], s[{sT+6}:{sT+7}], s[{sT+2}:{sT+3}]")
    a(f"s_or_b64 s[{sT+6}:{sT+7}], s[{sT+6}:{sT+7}], vcc")
    a(f"s_andn2_b64 s[{sT+6}:{sT+7}], s[{sT+6}:{sT+7}], s[{SLOWD}:{SLOWD+1}]")
    a(f"s_cmp_lg_u64 s[{sT+6}:{sT+7}], 0")
    a(f"s_cbranch_scc1 {name}_slow0_")
    c = Asm()
    c.label(f"{name}_slow0_")
    c(f"s_mov_b64 s[{SLOWD}:{SLOWD+1}], -1")
    c(f"s_branch {name}_slow")
    cold.append(c)
    a.trace(52, "c")

def phaseC(a, name, cold, opt, vm):
    H = OH
    ACC, WB = 4, 36
    XP, VX, MS = C_XP, C_VX, C_MS
    VL2, G, WA, WG, T = 1, C_G, 228, 232, 240
    moe = opt.get("moe", True)
    a(f"v_lshrrev_b32 v{T+1}, 4, v0")
    a(f"v_and_b32 v{T+6}, 1, v{T+1}")
    a(f"v_lshlrev_b32 v{T+7}, 4, v{T+6}")
    a(f"v_lshrrev_b32 v{T+8}, 1, v{T+1}")
    a(f"v_lshl_add_u32 v{T+7}, v{T+8}, 2, v{T+7}")
    a(f"v_bfe_u32 v{T+8}, v0, 2, 2")
    a(f"v_add_u32 v{T+7}, v{T+7}, v{T+8}")
    a(f"v_lshlrev_b32 v{T+7}, 7, v{T+7}")
    a(f"v_and_b32 v{T+8}, 3, v0")
    a(f"v_lshl_add_u32 v{T+7}, v{T+8}, 3, v{T+7}")
    a(f"v_lshlrev_b32 v{T+6}, 1, v{T+6}")
    a(f"v_bfe_u32 v{T+8}, v0, 3, 1")
    a(f"v_or_b32 v{T+6}, v{T+6}, v{T+8}")
    a(f"v_lshl_add_u32 v{T+7}, v{T+6}, 5, v{T+7}")
    a(f"s_lshl_b32 s{sT}, s{KH}, 16")
    a(f"v_add_u32 v{WA}, s{sT}, v{T+7}")
    for ct in range(1, 4): a(f"v_xor_b32 v{WA+ct}, {ct*32}, v{WA}")
    of_addr(a, sT, sT+1)
    a.trace(53, "c")
    vm.drain()
    a.trace(54, "c")
    signal(a, sT, f"s{sT+1}", T+6, T+7, "or")
    a.stamp(8)
    a("s_barrier")
    FU.wo_dma(15, 'late')
    oh_poll(a, vm)
    c = Asm()
    c.label(f"{name}_ospin")
    c(f"s_mov_b32 s{sT+11}, 0")
    c.label(f"{name}_oagain")
    apoll(c, H.VPo, H.VPa)
    c(f"s_add_u32 s{sT+11}, s{sT+11}, 1")
    c(f"s_cmp_gt_u32 s{sT+11}, {SPIN_LIMIT}")
    c(f"s_cselect_b32 s{H.MASK}, s{H.NEED}, s{H.MASK}")
    c(f"s_cbranch_scc1 {name}_oout")
    c("s_waitcnt vmcnt(0)")
    oh_ready(c)
    c(f"s_cbranch_scc0 {name}_oagain")
    c.label(f"{name}_oout")
    c(f"s_setpc_b64 s[{H.RET}:{H.RET+1}]")
    cold.append(c)
    def ogroup(g):
        lab = a.new_label(f"{name}_og")
        a(f"s_cmp_lg_u32 s{H.MASK}, 0")
        a(f"s_cbranch_scc1 {lab}")
        a(f"s_call_b64 s[{H.RET}:{H.RET+1}], {name}_ospin")
        a.label(lab)
        oh_take(a, g)
        for i in range(4*g, 4*g+4): vm.issue(f"O{i}", 2)
    xn = lambda o, t16, p, g0, g1: xn_pair(o, t16, p, g0, g1, T+6)
    gwin = opt.get("gwin", False) and opt.get("t8a", True)
    if moe:
        a("s_cmp_lg_u32 s58, 0")
        a(f"s_cbranch_scc1 {name}_routed")
    if gwin:
        for p in range(7, -1, -1):
            a(f"v_and_b32 v{G+2*p+1}, 0xffff0000, v{G+p}")
            a(f"v_lshlrev_b32 v{G+2*p}, 16, v{G+p}")
    else:
        for t16 in range(2):
            for p in range(4): xn(a, t16, p, G + 8*t16 + 2*p, G + 8*t16 + 2*p + 1)
    if moe:
        a.label(f"{name}_routed_done")
        c = Asm()
        c.label(f"{name}_routed")
        for t16 in range(2):
            for p in range(4):
                g0, g1 = G + 8*t16 + 2*p, G + 8*t16 + 2*p + 1
                c(f"v_cvt_pk_bf16_f32 v{T+7}, v{g0}, v{g1}")
                c(f"v_lshlrev_b32 v{g0}, 16, v{T+7}")
                c(f"v_and_b32 v{g1}, 0xffff0000, v{T+7}")
                c(f"v_mul_f32 v{g0}, v{g0}, v{C_WT+t16}")
                c(f"v_mul_f32 v{g1}, v{g1}, v{C_WT+t16}")
                c(f"v_cvt_pk_bf16_f32 v{T+7}, v{g0}, v{g1}")
                xn(c, t16, p, T+8, T+9)
                c(f"v_lshlrev_b32 v{g0}, 16, v{T+7}")
                c(f"v_and_b32 v{g1}, 0xffff0000, v{T+7}")
                c(f"v_add_f32 v{g0}, v{g0}, v{T+8}")
                c(f"v_add_f32 v{g1}, v{g1}, v{T+9}")
                c(f"v_cvt_pk_bf16_f32 v{T+7}, v{g0}, v{g1}")
                c(f"v_lshlrev_b32 v{g0}, 16, v{T+7}")
                c(f"v_and_b32 v{g1}, 0xffff0000, v{T+7}")
        if gwin: c(*silu16(G, T+6))
        c(f"s_branch {name}_routed_done")
        cold.append(c)
    a.trace(55, "c")
    pipe = opt.get("pipe", False)
    def look(more):
        if not any(tg == "opoll" for tg, _ in vm.q): return
        vm.wait("opoll")
        oh_ready(a)
        if more and pipe: oh_poll(a, vm)
    silu_ops = lambda: [] if gwin else silu16(G, T+6)
    weave = opt.get("sweave", False)
    fill = silu_ops() if weave else []
    look(True)
    if opt.get("bar1", True): a("s_barrier")
    if DIAG and TRACE: a(f"v_writelane_b32 v255, s{H.RAW}, 2")
    ogroup(0)
    a.trace(56, "c")
    if not weave: a(*silu_ops())
    look(True)
    ogroup(1)
    a.trace(40, "c")
    if not opt.get("bar1", True): a("s_barrier")
    a.trace(42, "c")
    def wgroup(g):
        a(f"s_lshl_b32 s{sT}, s{H.GIDS[g]}, 14")
        for ct in range(4): a(f"v_add_u32 v{WG+ct}, s{sT}, v{WA+ct}")
    def wreads(i):
        return [f"ds_read_b64_tr_b16 {vr(WB+16*(i&1)+4*ct+2*t_,2)}, v{WG+ct} offset:{(i%4)*4096+t_*1024}" for ct in range(4) for t_ in range(2)]
    wgroup(0)
    a(*wreads(0))
    a.trace(58, "c")
    G2, G3 = opt.get("g23", [1, 4])
    for i in range(16):
        if i == G2: look(True); ogroup(2)
        if i == G3: look(False); ogroup(3)
        if i < 15 and (i + 1) % 4 == 0: wgroup((i + 1) // 4)
        r = wreads(i+1) if i < 15 else []
        vm.wait(f"O{i}")
        a("s_waitcnt lgkmcnt(0)")
        if i == 0: a.trace(62, "c")
        if i == 8: a.trace(63, "c")
        k = 0
        for ct in range(4):
            for t16 in range(2):
                d = vr(ACC+16*t16+4*ct, 4)
                a(f"v_mfma_f32_16x16x32_bf16 {d}, {vr(WB+16*(i&1)+4*ct,4)}, {vr(H.SLOT[i//4]+8*(i%4)+4*t16,4)}, {d if i else 0}")
                if r: a(r[k])
                if fill and i >= opt.get("sw0", 4): a(fill.pop(0))
                k += 1
    a(*fill)
    a.trace(61, "c")
    EX = 131072
    a(f"s_lshl_b32 s{sT}, s{W}, 12")
    a(f"s_add_u32 s{sT}, s{sT}, {EX}")
    a(f"s_xor_b32 s{sT+1}, s{sT}, 16384")
    a(f"v_add_u32 v{T}, s{sT}, v{VL2}")
    a(f"v_add_u32 v{T+1}, s{sT+1}, v{VL2}")
    a(f"s_cmp_eq_u32 s{KH}, 0")
    a("s_nop 3")
    a(f"s_cbranch_scc1 {name}_ck0")
    for t16 in range(2):
        for cc in range(2): a(f"ds_write_b128 v{T}, {vr(ACC+16*t16+4*cc,4)} offset:{(2*t16+cc)*1024}")
    a(f"s_branch {name}_ckj")
    a.label(f"{name}_ck0")
    for t16 in range(2):
        for cc in range(2): a(f"ds_write_b128 v{T}, {vr(ACC+16*t16+8+4*cc,4)} offset:{(2*t16+cc)*1024}")
    a.label(f"{name}_ckj")
    XF = 68
    for t16 in range(2):
        for p in range(4):
            a(f"v_lshlrev_b32 v{XF+8*t16+2*p}, 16, v{XP+4*t16+p}")
            a(f"v_and_b32 v{XF+8*t16+2*p+1}, 0xffff0000, v{XP+4*t16+p}")
    a("s_waitcnt lgkmcnt(0)")
    a("s_barrier")
    a(f"s_cmp_eq_u32 s{KH}, 0")
    a(f"s_cbranch_scc1 {name}_cr0")
    for t16 in range(2):
        for cc in range(2): a(f"ds_read_b128 {vr(ACC+16*t16+4*cc,4)}, v{T+1} offset:{(2*t16+cc)*1024}")
    a(f"s_branch {name}_crj")
    a.label(f"{name}_cr0")
    for t16 in range(2):
        for cc in range(2): a(f"ds_read_b128 {vr(ACC+16*t16+8+4*cc,4)}, v{T+1} offset:{(2*t16+cc)*1024}")
    a.label(f"{name}_crj")
    a(f"s_mov_b32 s{sT}, 32768")
    for t16 in range(2):
        b = ACC + 16*t16
        a(f"s_waitcnt lgkmcnt({2-2*t16})")
        for r in (0, 4, 2, 6): a(f"v_pk_add_f32 {vr(b+r,2)}, {vr(b+r,2)}, {vr(b+8+r,2)}")
        a("s_nop 0")
        for r in range(4): a(f"v_permlane16_swap_b32 v{b+r}, v{b+4+r}")
        for e in range(0, 8, 2): a(f"v_pk_fma_f32 {vr(XF+8*t16+e,2)}, {vr(b+e,2)}, {vr(G+8*t16+e,2)}, {vr(XF+8*t16+e,2)}")
        for p in range(4): a(f"v_cvt_pk_bf16_f32 v{XP+4*t16+p}, v{XF+8*t16+2*p}, v{XF+8*t16+2*p+1}")
        a(f"buffer_store_dwordx4 {vr(XP+4*t16,4)}, v{VX}, {srd(sOUT)}, {'0' if t16 == 0 else f's{sT}'} offen {opt.get('outf', 'nt')}")
```

```python
from asmlib import *
from layout import *
from k_attn import M32, M16

class AttnRegs:
    VL, CUR, PRV = 1, 2, 3
    Q, K, V, P = 4, 20, 28, 36
    ONES, IDX, L = 44, 48, 52
    O, S0, S1 = 60, 92, 108
    T = 124
    END = 132

def SM(d, A, B, idx): return f"v_smfmac_f32_16x16x64_bf16 {vr(d,4)}, {vr(A,4)}, {vr(B,8)}, v{idx}"

def attn_consts(a, R, lane=0, sparse=0, lean=False):
    T = R.T
    a(f"v_bfe_u32 v{T}, v{lane}, 2, 1")
    a(f"v_cmp_eq_u32 vcc, 0, v{T}")
    a(f"v_mov_b32 v{T+1}, 0x3f803f80")
    a(f"v_and_b32 v{T}, 1, v{lane}")
    a(f"v_cndmask_b32 v{R.ONES}, 0, v{T+1}, vcc")
    a(f"v_cndmask_b32 v{R.ONES+1}, 0, v{T+1}, vcc")
    a(f"v_cndmask_b32 v{R.ONES+2}, v{T+1}, 0, vcc")
    a(f"v_cndmask_b32 v{R.ONES+3}, v{T+1}, 0, vcc")
    if sparse:
        a(f"v_bfe_u32 v{T+2}, v{lane}, 1, 1")
        a(f"v_cmp_eq_u32 vcc, 0, v{T+2}")
        a("s_nop 1")
        for r in range(4): a(f"v_cndmask_b32 v{R.ONES+r}, 0, v{R.ONES+r}, vcc")
    a(f"v_mul_u32_u24 v{T}, 0xaaaa, v{T}")
    a(f"v_add_u32 v{R.IDX}, 0x4444, v{T}")
    if lean:
        for r in range(8): a(f"v_mov_b32 v{R.L+r}, 0")
        return
    for r in range(32): a(f"v_mov_b32 v{R.O+r}, 0")
    for r in range(8):
        a(f"v_mov_b32 v{R.L+r}, 0")
        a(f"v_mov_b32 v{R.P+r}, 0")
    for r in range(4): a(f"v_mov_b32 v{R.V+4+r}, 0")

def attn_phase(a, R, p, mode="smf", exp=True):
    q = p & 1
    Sc, Sn = (R.S0, R.S1) if q == 0 else (R.S1, R.S0)
    K, V, P, Q, O, L = R.K, R.V, R.P, R.Q, R.O, R.L
    qn, qp = 1 - q, 1 - q
    e = lambda i: f"v_exp_f32 v{Sc+i}, v{Sc+i}"
    c = lambda i: f"v_cvt_pk_bf16_f32 v{P+i}, v{Sc+2*i}, v{Sc+2*i+1}"
    def rd(dst, base, tile, part): return f"ds_read_b128 {vr(dst,4)}, v{base} offset:{tile*4096+part*1024}"
    if q == 0:
        kt = 0 if p == 0 else 1
        vb, vt = (R.PRV, 1) if p == 0 else (R.CUR, 0)
        rK0, rK1, rV1, rV0 = [rd(K, R.CUR, kt, 0)], [rd(K+4, R.CUR, kt, 1)], [rd(V+4, vb, vt, 3)], []
        w0, w1 = [], ["s_waitcnt lgkmcnt(3)"]
    else:
        rK0, rK1, rV1, rV0 = [], [], [], [rd(V, R.CUR, 0 if p == 1 else 1, 2)]
        w0, w1 = ["s_waitcnt lgkmcnt(0)"], []
    Ma = M32(Sn, K, Q+8*qn, None)
    Mb = M32(Sn, K+4, Q+8*qn+4, Sn)
    Mc = M32(O+16*q, V, P, O+16*q)
    Md = M32(O+16*qp, V+4, P+4, O+16*qp)
    if mode == "smf":
        a(*w0, Ma, *rK0, e(0), e(1), e(2))
        a(Md, *rV1, e(3), e(4), e(5))
        a(SM(L+4*qp, R.ONES, P, R.IDX), c(0), c(1), e(6), e(7))
        a(Mb, *rK1, c(2), c(3), e(8), e(9))
        a(*w1, Mc, *rV0, e(10), e(11), c(4), e(12), c(5), e(13), e(14), e(15), c(6), c(7))
    elif mode == "m16":
        a(*w0, Ma, *rK0, e(0), e(1), e(2))
        a(Md, *rV1, e(3), c(0), e(4), c(1))
        a(M16(L+4*qp, R.ONES, P+4, L+4*qp), e(5))
        a(Mb, *rK1, e(6), c(2), e(7), e(8), c(3), e(9), e(10))
        a(*w1, Mc, *rV0, e(11), c(4), e(12), c(5))
        a(M16(L+4*q, R.ONES, P, L+4*q), e(13), e(14), e(15), c(6), c(7))
    elif mode == "nosum":
        a(*w0, Ma, *rK0, e(0), e(1), e(2))
        a(Md, *rV1, e(3), e(4), e(5))
        a(c(0), c(1), e(6), e(7))
        a(Mb, *rK1, c(2), c(3), e(8), e(9))
        a(*w1, Mc, *rV0, e(10), e(11), c(4), e(12), c(5), e(13), e(14), e(15), c(6), c(7))

def attn_check_and_pair_reduce(a, R, name, skh, swave, xbase):
    O, L, T, VL = R.O, R.L, R.T, R.VL
    a(f"v_add_f32 v{L}, v{L}, v{L+1}")
    a(f"v_add_f32 v{L+4}, v{L+4}, v{L+5}")
    a(f"s_mul_i32 s31, s{swave}, 4352")
    a(f"s_add_u32 s31, s31, {xbase}")
    a(f"v_add_u32 v{T}, s31, v{VL}")
    a(f"s_xor_b32 s31, s{swave}, 4")
    a(f"s_mul_i32 s31, s31, 4352")
    a(f"s_add_u32 s31, s31, {xbase}")
    a(f"v_add_u32 v{T+1}, s31, v{VL}")
    a(f"v_lshrrev_b32 v{T+2}, 2, v{VL}")
    a(f"v_add_u32 v{T+3}, s31, v{T+2}")
    a(f"s_mul_i32 s31, s{swave}, 4352")
    a(f"s_add_u32 s31, s31, {xbase}")
    a(f"v_add_u32 v{T+2}, s31, v{T+2}")
    a(f"s_cmp_eq_u32 s{skh}, 0")
    a(f"s_cbranch_scc1 {name}_kh0")
    for r in range(4): a(f"ds_write_b128 v{T}, {vr(O+4*r,4)} offset:{r*1024}")
    a(f"ds_write_b32 v{T+2}, v{L} offset:4096")
    a("s_waitcnt lgkmcnt(0)")
    for r in range(16): a(f"v_mov_b32 v{O+r}, v{O+16+r}")
    a(f"v_mov_b32 v{L}, v{L+4}")
    a(f"s_branch {name}_khj")
    a.label(f"{name}_kh0")
    for r in range(4): a(f"ds_write_b128 v{T}, {vr(O+16+4*r,4)} offset:{r*1024}")
    a(f"ds_write_b32 v{T+2}, v{L+4} offset:4096")
    a.label(f"{name}_khj")
    a("s_waitcnt lgkmcnt(0)")
    a("s_barrier")
    for r in range(4): a(f"ds_read_b128 {vr(O+16+4*r,4)}, v{T+1} offset:{r*1024}")
    a(f"ds_read_b32 v{L+4}, v{T+3} offset:4096")
    a("s_waitcnt lgkmcnt(0)")
    for r in range(16): a(f"v_add_f32 v{O+r}, v{O+r}, v{O+16+r}")
    a(f"v_add_f32 v{L}, v{L}, v{L+4}")
    a(f"v_mov_b32 v{T+1}, 0")
    for r in range(16): a(f"v_fmac_f32 v{T+1}, 0, v{O+r}")
    a("s_mov_b32 s32, 0x2b800000")
    a("s_mov_b32 s33, 0x5d800000")
    a(f"v_cmp_nle_f32 s[34:35], s32, v{L}")
    a(f"v_cmp_nge_f32 s[36:37], s33, v{L}")
    a(f"v_cmp_u_f32 vcc, v{T+1}, v{T+1}")
    a("s_or_b64 s[34:35], s[34:35], s[36:37]")
    a("s_or_b64 s[34:35], s[34:35], vcc")
    a("s_cmp_lg_u64 s[34:35], 0")
    a(f"s_cbranch_scc1 {name}_slow")
    a.label(f"{name}_fin")

def attn_slow_path(a, R, name, skh, srd_kv, shead, ld_flags="", s0=30):
    K, V, P, Q, O, L, T, VL, S0, S1 = R.K, R.V, R.P, R.Q, R.O, R.L, R.T, R.VL, R.S0, R.S1
    a.label(f"{name}_slow")
    a("s_waitcnt vmcnt(0)")
    a(f"s_cmp_eq_u32 s{skh}, 0")
    a(f"s_cbranch_scc1 {name}_slow0")
    for r in range(8): a(f"v_mov_b32 v{Q+r}, v{Q+8+r}")
    a.label(f"{name}_slow0")
    a(f"v_mov_b32 v{T}, 0xff800000")
    a(f"s_mov_b32 s{s0}, 0")
    a.label(f"{name}_slow1")
    a(f"s_lshl_b32 s{s0+1}, s{s0}, 12")
    a(f"s_add_u32 s{s0+1}, s{s0+1}, s{shead}")
    a(f"buffer_load_dwordx4 {vr(K,4)}, v{VL}, {sr(srd_kv,4)}, s{s0+1} offen {ld_flags}")
    a(f"buffer_load_dwordx4 {vr(K+4,4)}, v{VL}, {sr(srd_kv,4)}, s{s0+1} offen offset:1024 {ld_flags}")
    a("s_waitcnt vmcnt(0)")
    a(M32(S0, K, Q, None))
    a(M32(S0, K+4, Q+4, S0))
    a("s_nop 15")
    for r in range(0, 16, 2):
        a(f"v_max3_f32 v{T}, v{T}, v{S0+r}, v{S0+r+1}")
    a(f"s_add_u32 s{s0}, s{s0}, 1")
    a(f"s_cmp_lt_u32 s{s0}, 64")
    a(f"s_cbranch_scc1 {name}_slow1")
    a(f"v_mov_b32 v{T+1}, v{T}")
    a("s_nop 1")
    a(f"v_permlane32_swap_b32 v{T}, v{T+1}")
    a("s_nop 1")
    a(f"v_max_f32 v{T}, v{T}, v{T+1}")
    for r in range(16):
        a(f"v_sub_f32 v{S1+r}, 0, v{T}")
        a(f"v_mov_b32 v{O+r}, 0")
    for r in range(4): a(f"v_mov_b32 v{L+r}, 0")
    a(f"s_mov_b32 s{s0}, 0")
    a.label(f"{name}_slow2")
    a(f"s_lshl_b32 s{s0+1}, s{s0}, 12")
    a(f"s_add_u32 s{s0+1}, s{s0+1}, s{shead}")
    for q in range(4):
        a(f"buffer_load_dwordx4 {vr(K+4*q,4)}, v{VL}, {sr(srd_kv,4)}, s{s0+1} offen offset:{q*1024} {ld_flags}")
    a("s_waitcnt vmcnt(0)")
    a(M32(S0, K, Q, S1))
    a(M32(S0, K+4, Q+4, S0))
    a("s_nop 15")
    for r in range(16): a(f"v_exp_f32 v{S0+r}, v{S0+r}")
    a("s_nop 0")
    for r in range(8): a(f"v_cvt_pk_bf16_f32 v{P+r}, v{S0+2*r}, v{S0+2*r+1}")
    a("s_nop 1")
    a(M32(O, V, P, O))
    a(M32(O, V+4, P+4, O))
    a(SM(L, R.ONES, P, R.IDX))
    a(f"s_add_u32 s{s0}, s{s0}, 1")
    a(f"s_cmp_lt_u32 s{s0}, 64")
    a(f"s_cbranch_scc1 {name}_slow2")
    a("s_nop 15")
    a(f"v_add_f32 v{L}, v{L}, v{L+1}")
    a(f"s_branch {name}_fin")

def gen_attn2(name, kid=5, mode="smf", prio=False, spread=False):
    a = Asm()
    R = AttnRegs
    VL, CUR, PRV, Q, K, V, P, O, L, T = R.VL, R.CUR, R.PRV, R.Q, R.K, R.V, R.P, R.O, R.L, R.T
    a("s_cmp_ge_u32 s2, 256")
    a(f"s_cbranch_scc1 {name}_done")
    a.stamp_init(); a.stamp(0)
    a(f"s_load_dwordx2 s[8:9], s[0:1], {A_WS}")
    a("v_lshrrev_b32 v4, 6, v0")
    a("v_and_b32 v0, 63, v0")
    a("v_readfirstlane_b32 s3, v4")
    a(f"v_lshlrev_b32 v{VL}, 4, v0")
    a("s_and_b32 s10, s2, 7")
    a("s_lshl_b32 s10, s10, 2")
    a("s_lshr_b32 s11, s2, 6")
    a("s_add_u32 s10, s10, s11")
    a("s_bfe_u32 s11, s2, 0x30003")
    a("s_lshr_b32 s38, s3, 2")
    a("s_and_b32 s39, s3, 3")
    a("s_lshl_b32 s11, s11, 3")
    a("s_lshl_b32 s24, s39, 1")
    a("s_add_u32 s11, s11, s24")
    a("s_lshl_b32 s24, s3, 11")
    a("s_lshl_b32 s25, s10, 18")
    a("s_add_u32 s26, s25, s24")
    a("s_mov_b32 s27, s24")
    a("s_lshl_b32 s28, s10, 17")
    a("s_lshl_b32 s29, s11, 11")
    a("s_add_u32 s28, s28, s29")
    a("s_waitcnt lgkmcnt(0)")
    a.srd(12, 8, WS_KV, KV_BYTES)
    a.srd(16, 8, WS_Q, Q_BYTES)
    a.srd(20, 8, WS_O, O_BYTES)
    def dma():
        a("s_mov_b32 m0, s27")
        a("s_add_u32 s27, s27, 16384")
        a(f"buffer_load_dwordx4 v{VL}, s[12:15], s26 offen lds")
        a(f"buffer_load_dwordx4 v{VL}, s[12:15], s26 offen offset:1024 lds")
        a("s_and_b32 s27, s27, 0xffff")
        a("s_add_u32 s26, s26, 16384")
    for q in range(4):
        a(f"buffer_load_dwordx4 {vr(Q+4*q,4)}, v{VL}, s[16:19], s28 offen offset:{q*1024}")
    dma(); dma()
    a("s_lshl_b32 s31, s38, 13")
    a(f"v_add_u32 v{CUR}, s31, v{VL}")
    attn_consts(a, R)
    a("s_mov_b32 s30, 0")
    a.stamp(1)
    a("s_waitcnt vmcnt(2)")
    a("s_barrier")
    a.stamp(2); a.cstamp(5)
    a(f"ds_read_b128 {vr(K,4)}, v{CUR}")
    a(f"ds_read_b128 {vr(K+4,4)}, v{CUR} offset:1024")
    a(f"ds_read_b128 {vr(V,4)}, v{CUR} offset:2048")
    dma()
    a("s_waitcnt lgkmcnt(0)")
    a(M32(R.S0, K, Q, None))
    a(M32(R.S0, K+4, Q+4, R.S0))
    a("s_nop 10")
    a(f"s_branch {name}_p2")
    def sp(p):
        if prio: a(f"s_setprio {3-p}")
    def dma1(i):
        a("s_cmp_ge_u32 s30, 14")
        a(f"s_cbranch_scc1 {name}_nd{i}")
        if i == 0:
            a("s_mov_b32 m0, s27")
            a("s_add_u32 s27, s27, 16384")
            a(f"buffer_load_dwordx4 v{VL}, s[12:15], s26 offen lds")
            a("s_and_b32 s27, s27, 0xffff")
        else:
            a(f"buffer_load_dwordx4 v{VL}, s[12:15], s26 offen offset:1024 lds")
            a("s_add_u32 s26, s26, 16384")
        a.label(f"{name}_nd{i}")
    a(".p2align 6")
    a.label(f"{name}_loop")
    sp(1)
    if spread: dma1(0)
    attn_phase(a, R, 1, mode)
    a("s_cmp_eq_u32 s30, 16")
    a(f"s_cbranch_scc1 {name}_exit")
    sp(2)
    if spread: dma1(1)
    a.label(f"{name}_p2")
    attn_phase(a, R, 2, mode)
    a("s_add_u32 s30, s30, 1")
    sp(3); attn_phase(a, R, 3, mode)
    a("s_cmp_ge_u32 s30, 15")
    a(f"s_cbranch_scc1 {name}_tail")
    a("s_waitcnt vmcnt(2)")
    a("s_barrier")
    if prio: a("s_setprio 3")
    if not spread:
        a("s_cmp_ge_u32 s30, 14")
        a(f"s_cbranch_scc1 {name}_rej")
        dma()
    a.label(f"{name}_rej")
    a(f"v_mov_b32 v{PRV}, v{CUR}")
    a(f"v_add_u32 v{CUR}, 16384, v{CUR}")
    a(f"v_and_b32 v{CUR}, 0xffff, v{CUR}")
    attn_phase(a, R, 0, mode)
    a(f"s_branch {name}_loop")
    a.label(f"{name}_tail")
    a("s_waitcnt vmcnt(0)")
    a("s_barrier")
    if prio: a("s_setprio 3")
    a(f"s_branch {name}_rej")
    a.label(f"{name}_exit")
    a.stamp(3); a.cstamp(6)
    a("s_waitcnt lgkmcnt(0)")
    a("s_nop 0")
    a(M32(O+16, V+4, P+4, O+16))
    a(SM(L+4, R.ONES, P, R.IDX))
    a("s_add_u32 s28, s11, s38")
    a("s_lshl_b32 s28, s28, 16")
    a("s_lshl_b32 s29, s10, 11")
    a("s_add_u32 s28, s28, s29")
    a("s_nop 7")
    a("s_nop 7")
    attn_check_and_pair_reduce(a, R, name, 38, 3, 65536)
    a(f"v_rcp_f32 v{T}, v{L}")
    a("s_nop 0")
    for jj in range(2):
        for e_ in range(4):
            r0 = O + 8*jj + 2*e_
            a(f"v_mul_f32 v{r0}, v{r0}, v{T}")
            a(f"v_mul_f32 v{r0+1}, v{r0+1}, v{T}")
            a(f"v_cvt_pk_bf16_f32 v{P+4*jj+e_}, v{r0}, v{r0+1}")
        a(f"buffer_store_dwordx4 {vr(P+4*jj,4)}, v{VL}, s[20:23], s28 offen offset:{jj*1024}")
    a.stamp(4)
    a.stamp_dump(kid, 3)
    a("s_endpgm")
    attn_slow_path(a, R, name, 38, 12, 25)
    a.label(f"{name}_done")
    a("s_endpgm")
    return kernel_header(name) + a.text() + kernel_desc(name, R.END, 48)
```
